```python
import torch

def _softmax(x, axis=-1):
    return torch.softmax(x, dim=axis)
def _gelu(x):
    return torch.nn.functional.gelu(x, approximate="tanh")
def _silu(x):
    return torch.nn.functional.silu(x)
def _sigmoid(x):
    return torch.sigmoid(x)
def _layernorm(x, axis=-1, eps=1e-5):
    m = x.mean(dim=axis, keepdim=True)
    v = x.var(dim=axis, keepdim=True, unbiased=False)
    return (x - m) / torch.sqrt(v + eps)
def _scatter_add(tgt, idx, src, axis=0):
    return tgt.clone().index_add_(axis, idx, src)
def _segment_sum(src, seg, n):
    out = torch.zeros((n,) + src.shape[1:], dtype=src.dtype)
    return out.index_add_(0, seg, src)
def _pad(x, pw):
    flat = tuple(v for pair in reversed(pw) for v in pair)
    return torch.nn.functional.pad(x, flat)

kernel_name = 'gated_mix__sliding_local_dilated__mha_block__prompt'

def setup_inputs():

    _w = (lambda a: (lambda t: t.to(torch.bfloat16) if t.is_floating_point() else t)(torch.as_tensor(a)))
    def _A_setup():
        B, S, D = 1, 2048, 640
        return {
            "x": _w((lambda *s: torch.randn(*s, dtype=torch.bfloat16) * 0.05)(B, S, D)),
            "wqkv": _w((lambda *s: torch.randn(*s, dtype=torch.bfloat16) * 1.6)(D, 3 * D)),
            "wo": _w((lambda *s: torch.randn(*s, dtype=torch.bfloat16) * 0.05)(D, D)),
        }
    _A_in = _A_setup()

    def _B_setup():
        B, S, D, H = 1, 2048, 640, 32
        return {
            "x": _w((lambda *s: torch.randn(*s, dtype=torch.bfloat16) * 0.05)(B, S, D)),
            "wqkv": _w((lambda *s: torch.randn(*s, dtype=torch.bfloat16) * 1.6)(D, 3 * D)),
            "wo": _w((lambda *s: torch.randn(*s, dtype=torch.bfloat16) * 0.1)(D, D)),
        }
    _B_in = _B_setup()

    return {
        "A_x": _A_in["x"],
        "A_wqkv": _A_in["wqkv"],
        "A_wo": _A_in["wo"],
        "B_x": _B_in["x"],
        "B_wqkv": _B_in["wqkv"],
        "B_wo": _B_in["wo"],
        "gate_w": _w((lambda *s: torch.randn(*s, dtype=torch.bfloat16) * 0.05)(640) * 16.0),
    }

def reference(A_x, A_wqkv, A_wo, B_x, B_wqkv, B_wo, gate_w):
    def _A_ref(x, wqkv, wo):
        B, S, D = x.shape
        H = 32; Dh = D // H
        W, dil = 8, 2
        qkv = (lambda x, *d: x.permute(*d))((x @ wqkv).reshape(B, S, 3, H, Dh), 2, 0, 3, 1, 4)
        q, k, v = qkv[0], qkv[1], qkv[2]
        scale = Dh ** -0.5
        pos = torch.arange(S)
        off = torch.arange(W) * dil
        idx = pos[:, None] - off[None, :]
        mask = idx >= 0
        idx_c = torch.where(mask, idx, 0).reshape(-1)
        kg = k[:, :, idx_c, :].reshape(B, H, S, W, Dh)
        vg = v[:, :, idx_c, :].reshape(B, H, S, W, Dh)
        logits = torch.einsum("bhsd,bhswd->bhsw", q, kg) * scale
        logits = torch.where(mask[None, None, :, :], logits, -1e9)
        attn = _softmax(logits, axis=-1)
        o = torch.einsum("bhsw,bhswd->bhsd", attn, vg)
        return (lambda x, *d: x.permute(*d))(o, 0, 2, 1, 3).reshape(B, S, D) @ wo

    def _B_ref(x, wqkv, wo):
        B, S, D = x.shape
        H = 32
        Dh = D // H
        qkv = (lambda x, *d: x.permute(*d))((x @ wqkv).reshape(B, S, 3, H, Dh), 2, 0, 3, 1, 4)
        q, k, v = qkv[0], qkv[1], qkv[2]
        scores = torch.einsum("bhqd,bhkd->bhqk", q, k) * (Dh ** -0.5)
        p = _softmax(scores, axis=-1)
        o = torch.einsum("bhqk,bhkd->bhqd", p, v)
        return (lambda x, *d: x.permute(*d))(o, 0, 2, 1, 3).reshape(B, S, D) @ wo

    x = A_x
    g = _sigmoid((x * gate_w).sum(-1, keepdims=True))
    a = _A_ref(x, A_wqkv, A_wo)
    b = _B_ref(x, B_wqkv, B_wo)
    return g * a + (1 - g) * b
```

```python
import sys, math, struct

NAME = "gated_mix__sliding_local_dilated__mha_block__prompt"
OUT = f"cdna_kernels/{NAME}.s"

REC = 3904
HS = 64 * REC
BRS = 32 * HS
O_OFF = 16 << 20
O_BR = 2621440
WOF_OFF = 24 << 20
WOF_BR = 819200
G_OFF = 28 << 20
WS_BYTES = 32 << 20
QSCALE = (20 ** -0.5) * math.log2(math.e)


def f32(x):
    return "0x%08x" % struct.unpack("<I", struct.pack("<f", x))[0]


def pi5(i):
    return (i & ~12) | ((i & 4) << 1) | ((i & 8) >> 1)


class Asm:
    def __init__(self):
        self.L = []

    def __call__(self, s):
        for l in s.strip("\n").split("\n"):
            self.L.append("    " + l.strip())

    def label(self, l):
        self.L.append(l + ":")

    def raw(self, s):
        self.L.append(s)

    def text(self):
        return "\n".join(self.L) + "\n"


def vr(b, n=1, p="v"):
    return f"{p}{b}" if n == 1 else f"{p}[{b}:{b+n-1}]"


def ar(b, n=1):
    return vr(b, n, "a")


def sr(b, n=1):
    return vr(b, n, "s")


def kernel_head(a, name):
    a.raw(f".globl {name}")
    a.raw(".p2align 8")
    a.raw(f".type {name},@function")
    a.label(name)


def kernel_desc(name, vgpr_total, accum, sgpr):
    return f""".amdhsa_kernel {name}
  .amdhsa_next_free_vgpr {vgpr_total}
  .amdhsa_next_free_sgpr {sgpr}
  .amdhsa_accum_offset {accum}
  .amdhsa_group_segment_fixed_size 0
  .amdhsa_kernarg_size 80
  .amdhsa_user_sgpr_count 2
  .amdhsa_user_sgpr_kernarg_segment_ptr 1
  .amdhsa_system_sgpr_workgroup_id_x 1
.end_amdhsa_kernel
"""


def srd(a, d, base, nbytes):
    a(f"s_mov_b32 s{d}, s{base}")
    a(f"s_mov_b32 s{d+1}, s{base+1}")
    a(f"s_mov_b32 s{d+2}, {nbytes}")
    a(f"s_mov_b32 s{d+3}, 0x00020000")


K1_STAGE = 15872
K1_G = 3968
K1_NS = 10
K1_LDS = K1_STAGE * K1_NS


def gen_k1(a):
    name = "qkv_kernel"
    kernel_head(a, name)
    SX, SW, SR = 20, 24, 28
    sW_off, sX0, sX1, sM0, sIt, sJump = 32, 33, 34, 35, 36, 37
    sS0 = 38
    sQK = 40
    sV = 46
    sWave = 19
    ACC = 32
    FR = [0, 60]
    XA = 120
    vX, vW, vTr, vQK, vV, vT = 10, 11, 15, 18, 22, 152
    a("s_cmp_ge_u32 s2, 256")
    a("s_cbranch_scc1 K1_END")
    a("""
    s_load_dwordx4 s[4:7], s[0:1], 0
    s_load_dwordx2 s[8:9], s[0:1], 32
    s_load_dwordx2 s[10:11], s[0:1], 72
    v_lshrrev_b32 v2, 6, v0
    v_and_b32 v1, 63, v0
    s_and_b32 s12, s2, 7
    v_readfirstlane_b32 s19, v2
    s_lshr_b32 s13, s2, 3
    s_lshr_b32 s14, s12, 2
    s_and_b32 s15, s13, 7
    s_and_b32 s16, s12, 3
    s_lshl_b32 s16, s16, 2
    s_lshr_b32 s17, s13, 3
    s_add_u32 s16, s16, s17
    s_lshr_b32 s17, s16, 3
    s_and_b32 s18, s16, 7
    """)
    a(f"""
    v_cmp_le_u32 s[50:51], 30, v1
    v_and_b32 v3, 15, v1
    v_lshrrev_b32 v4, 4, v1
    v_cndmask_b32 v5, 0, 1, s[50:51]
    v_mul_u32_u24 v6, 30, v5
    v_sub_u32 v6, v1, v6
    v_mul_u32_u24 v7, 26, v6
    v_lshrrev_b32 v7, 8, v7
    v_mul_u32_u24 v5, 3840, v5
    v_mul_u32_u24 v7, 1120, v7
    v_lshlrev_b32 v6, 4, v6
    v_add3_u32 v{vW}, v5, v6, v7
    v_add_u32 v{vW+1}, 6720, v{vW}
    v_add_u32 v{vW+2}, 13440, v{vW}
    v_add_u32 v{vW+3}, 20160, v{vW}
    v_mul_u32_u24 v5, 2560, v3
    v_lshl_add_u32 v{vX}, v4, 4, v5
    """)
    a(f"""
    s_mul_i32 s{sW_off}, s{sWave}, {8*3840}
    s_mul_i32 s3, s18, 160
    s_add_u32 s{sW_off}, s{sW_off}, s3
    s_lshl_b32 s3, s15, 2
    s_add_u32 s3, s3, s{sWave}
    s_mul_i32 s{sX0}, s3, {32*2560}
    s_mul_i32 s12, s14, 1280
    s_add_u32 s{sX0}, s{sX0}, s12
    s_add_u32 s{sX1}, s{sX0}, 40960
    s_mul_i32 s{sM0}, s{sWave}, {K1_G}
    s_mov_b32 s{sIt}, 0
    s_mov_b32 s{sJump}, 0
    s_lshl_b32 s12, s14, 5
    s_add_u32 s3, s3, s12
    s_mul_i32 s{sS0}, s3, {REC}
    s_mul_i32 s12, s18, {4*HS}
    s_add_u32 s{sS0}, s{sS0}, s12
    s_mul_i32 s12, s17, {BRS}
    s_add_u32 s{sS0}, s{sS0}, s12
    s_cmp_eq_u32 s17, 0
    s_waitcnt lgkmcnt(0)
    s_cselect_b64 s[6:7], s[6:7], s[8:9]
    """)
    srd(a, SX, 4, 2621440)
    srd(a, SW, 6, 2457600)
    srd(a, SR, 10, WS_BYTES)

    def loads(stage, ximm, xset, first=True):
        L = []
        L.append(f"s_add_u32 m0, s{sM0}, {stage*K1_STAGE}")
        L.append("s_mov_b32 exec_hi, 0x0fffffff")
        for i in range(4):
            L.append(f"buffer_load_dwordx4 v{vW+i}, {sr(SW,4)}, s{sW_off} offen offset:{960*i} lds")
        L.append("s_mov_b32 exec_hi, -1")
        L.append(f"s_add_u32 s{sW_off}, s{sW_off}, 122880")
        L.append(f"buffer_load_dwordx4 {ar(XA+8*xset,4)}, v{vX}, {sr(SX,4)}, s{sX0} offen offset:{ximm}")
        L.append(f"buffer_load_dwordx4 {ar(XA+8*xset+4,4)}, v{vX}, {sr(SX,4)}, s{sX1} offen offset:{ximm}")
        return L

    for ks in range(9):
        for l in loads(ks, ks * 64, ks):
            a(l)
    a(f"""
    v_mul_u32_u24 v5, {K1_G}, v4
    v_lshrrev_b32 v6, 2, v3
    v_mul_u32_u24 v6, 480, v6
    v_and_b32 v7, 3, v3
    v_lshlrev_b32 v7, 3, v7
    v_add3_u32 v{vTr}, v5, v6, v7
    v_add_u32 v{vTr+1}, {4*K1_STAGE}, v{vTr}
    v_add_u32 v{vTr+2}, {8*K1_STAGE}, v{vTr}
    """)
    a(f"""
    v_and_b32 v5, 3, v3
    v_bfe_u32 v6, v3, 2, 1
    v_lshl_or_b32 v5, v6, 3, v5
    v_bfe_u32 v6, v3, 3, 1
    v_lshl_or_b32 v5, v6, 2, v5
    v_lshlrev_b32 v5, 3, v5
    v_lshl_add_u32 v{vQK}, v4, 8, v5
    v_and_b32 v5, 1, v4
    v_mul_u32_u24 v5, 672, v5
    v_lshrrev_b32 v6, 1, v4
    v_mul_u32_u24 v6, 336, v6
    v_lshlrev_b32 v7, 4, v3
    v_add3_u32 v{vV}, v5, v6, v7
    v_add_u32 v8, {HS-1280}, v{vQK}
    v_add_u32 v9, {HS-320}, v{vV}
    """)
    for t in (1, 2, 3):
        a(f"v_cmp_le_u32 s[50:51], {t}, v4")
        a(f"v_cmp_le_u32 s[52:53], {4*t}, v3")
        a("s_nop 1")
        a(f"v_cndmask_b32 v{vQK+t}, v{vQK}, v8, s[50:51]")
        a(f"v_cndmask_b32 v{vV+t}, v{vV}, v9, s[52:53]")
    hl0 = [0, 0, 1, 2, 3]
    for t in range(5):
        a(f"s_add_u32 s{sQK+t}, s{sS0}, {t*1024 + hl0[t]*(HS-1280)}")
        a(f"s_add_u32 s{sV+t}, s{sS0}, {t*256 + hl0[t]*(HS-320)}")
    for i in range(120):
        a(f"v_mov_b32 v{ACC+i}, 0")

    def reads(stage, fset):
        L = []
        base = vTr + stage // 4
        for t in range(15):
            for s in range(2):
                L.append(f"ds_read_b64_tr_b16 {ar(FR[fset]+4*t+2*s,2)}, v{base} offset:{(stage%4)*K1_STAGE + s*1920 + t*32}")
        return L

    a("s_waitcnt vmcnt(48)")
    a("s_barrier")
    for l in reads(0, 0):
        a(l)
    a.raw(".p2align 3")
    a.label("K1_LOOP")
    for s in range(10):
        fs = s % 2
        rd = reads((s + 1) % 10, 1 - fs)
        ld = loads((s + 9) % 10, (s + 9) * 64, (s + 9) % 10)
        if s == 0:
            ld.append(f"s_add_u32 s{sX0}, s{sX0}, s{sJump}")
            ld.append(f"s_add_u32 s{sX1}, s{sX1}, s{sJump}")
        mf = []
        for t in range(15):
            for mt in range(2):
                acc = vr(ACC + (t * 2 + mt) * 4, 4)
                w = ar(FR[fs] + 4 * t, 4)
                x = ar(XA + 8 * s + 4 * mt, 4)
                if t < 10:
                    mf.append(f"v_mfma_f32_16x16x32_bf16 {acc}, {w}, {x}, {acc}")
                else:
                    mf.append(f"v_mfma_f32_16x16x32_bf16 {acc}, {x}, {w}, {acc}")
        a("s_waitcnt vmcnt(42)")
        a("s_barrier")
        for i in range(30):
            if i in (0, 14, 28):
                a("s_waitcnt lgkmcnt(15)")
            a(mf[i])
            if i == 0:
                for l in ld[:7]:
                    a(l)
            a(rd[i])
            if i == 4:
                for l in ld[7:]:
                    a(l)
    a(f"""
    s_add_u32 s{sX0}, s{sX0}, 640
    s_add_u32 s{sX1}, s{sX1}, 640
    s_mov_b32 s{sJump}, 0x40000000
    s_add_u32 s{sIt}, s{sIt}, 1
    s_cmp_lt_u32 s{sIt}, 2
    s_cbranch_scc1 K1_LOOP
    """)
    a(f"s_mov_b32 s3, {f32(QSCALE)}")
    a("s_nop 7")
    a(f"""
    v_lshrrev_b32 v5, 2, v3
    v_mul_u32_u24 v5, {HS}, v5
    v_and_b32 v6, 3, v3
    v_mul_u32_u24 v6, 336, v6
    v_add_u32 v5, v5, v6
    v_mov_b32 v{vT}, 0x3f803f80
    v_mov_b32 v{vT+1}, 0x3f803f80
    v_mov_b32 v{vT+2}, 0x3f803f80
    v_mov_b32 v{vT+3}, 0x3f803f80
    buffer_store_dwordx4 {vr(vT,4)}, v5, {sr(SR,4)}, s{sS0} offen offset:{2560+320}
    """)
    for t in range(5):
        b0 = ACC + ((10 + t) * 2) * 4
        b1 = b0 + 4
        a(f"v_cvt_pk_bf16_f32 v{b0}, v{b0}, v{b0+1}")
        a(f"v_cvt_pk_bf16_f32 v{b0+1}, v{b0+2}, v{b0+3}")
        a(f"v_cvt_pk_bf16_f32 v{b0+2}, v{b1}, v{b1+1}")
        a(f"v_cvt_pk_bf16_f32 v{b0+3}, v{b1+2}, v{b1+3}")
        a("s_nop 1")
        a(f"v_permlane16_swap_b32 v{b0}, v{b0+2}")
        a(f"v_permlane16_swap_b32 v{b0+1}, v{b0+3}")
        va = vV + (t if t in (1, 2, 3) else 0)
        a("s_nop 0")
        a(f"buffer_store_dwordx4 {vr(b0,4)}, v{va}, {sr(SR,4)}, s{sV+t} offen offset:2560")
    for seg in (1, 0):
        for t in range(5):
            for mt in range(2):
                b = ACC + ((seg * 5 + t) * 2 + mt) * 4
                if seg == 0:
                    for i in range(4):
                        a(f"v_mul_f32 v{b+i}, s3, v{b+i}")
                a(f"v_cvt_pk_bf16_f32 v{b}, v{b}, v{b+1}")
                a(f"v_cvt_pk_bf16_f32 v{b+1}, v{b+2}, v{b+3}")
                va = vQK + (t if t in (1, 2, 3) else 0)
                a(f"buffer_store_dwordx2 {vr(b,2)}, v{va}, {sr(SR,4)}, s{sQK+t} offen offset:{seg*1280 + mt*128}")
    a.label("K1_END")
    a("s_endpgm")
    return kernel_desc(name, 360, 160, 56)


K2_TILE = 2624
K2_SLOT = 8 * K2_TILE
K2_R = 4
K2_FLAG = K2_SLOT * K2_R
K2_LDS = K2_FLAG + 512


def gen_k2(a):
    name = "attn_kernel"
    kernel_head(a, name)
    SWS, SHB, SXG, SGW, SWO = 20, 24, 28, 32, 36
    sWave, sHead, sT = 16, 17, 18
    sDma, sM0, sSlot, sC, sRedo = 40, 41, 42, 43, 44
    sRecA, sRecAp, sRecB, sOA, sOB = 45, 46, 47, 48, 49
    sTmp = 50
    sPrev = 60
    vL8, vLV, vL16, vK, vV, vO = 2, 3, 4, 5, 6, 7
    vt = 8
    Q1, Q2 = 16, 20
    KF1, KF2 = 24, 28
    VF = 32
    P = 40
    NEGM = 48
    SB = [64, 80]
    O = 96
    AQ1, AQ2 = 112, 116
    AK1, AK2 = 120, 124
    AKP1, AKP2 = 128, 132
    AV = 136
    GX, GW = 148, 153
    WF = 160
    vWFa = 168
    NV = 172
    a("s_cmp_ge_u32 s2, 256")
    a("s_cbranch_scc1 K2_END")
    a("""
    s_load_dwordx2 s[4:5], s[0:1], 0
    s_load_dwordx2 s[6:7], s[0:1], 16
    s_load_dwordx4 s[8:11], s[0:1], 40
    s_load_dwordx2 s[12:13], s[0:1], 72
    v_lshrrev_b32 v8, 6, v0
    v_and_b32 v1, 63, v0
    s_and_b32 s14, s2, 7
    v_readfirstlane_b32 s16, v8
    s_lshr_b32 s15, s2, 3
    s_lshl_b32 s17, s14, 2
    s_lshr_b32 s3, s15, 3
    s_add_u32 s17, s17, s3
    s_and_b32 s15, s15, 7
    s_lshl_b32 s18, s15, 3
    s_add_u32 s18, s18, s16
    """)
    a(f"""
    v_lshlrev_b32 v{vL8}, 3, v1
    v_lshlrev_b32 v{vL16}, 4, v1
    v_and_b32 v8, 31, v1
    v_lshrrev_b32 v9, 5, v1
    v_mul_u32_u24 v10, 336, v9
    v_lshl_add_u32 v{vLV}, v8, 4, v10
    s_mul_i32 s{sRecA}, s{sHead}, {HS}
    s_mul_i32 s3, s{sT}, {REC}
    s_add_u32 s{sRecB}, s{sRecA}, {BRS}
    s_add_u32 s{sRecA}, s{sRecA}, s3
    s_and_b32 s14, s{sT}, 31
    s_cmp_lg_u32 s14, 0
    s_cselect_b32 s14, {REC}, 0
    s_cselect_b64 s[{sPrev}:{sPrev+1}], -1, 0
    s_sub_u32 s{sRecAp}, s{sRecA}, s14
    s_waitcnt lgkmcnt(0)
    """)
    srd(a, SWS, 12, WS_BYTES)
    a(f"""
    s_add_u32 s{SHB}, s12, s{sRecB}
    s_addc_u32 s{SHB+1}, s13, 0
    s_mov_b32 s{SHB+2}, {HS}
    s_mov_b32 s{SHB+3}, 0x00020000
    s_add_u32 s{sRecB}, s{sRecB}, s3
    """)
    for (r1, r2, so, off) in ((AQ1, AQ2, sRecA, 0), (AK1, AK2, sRecA, 1280), (AKP1, AKP2, sRecAp, 1280)):
        a(f"buffer_load_dwordx2 {vr(r1,2)}, v{vL8}, {sr(SWS,4)}, s{so} offen offset:{off}")
        a(f"buffer_load_dwordx2 {vr(r1+2,2)}, v{vL8}, {sr(SWS,4)}, s{so} offen offset:{off+512}")
        a(f"buffer_load_dwordx2 {vr(r2,2)}, v{vL8}, {sr(SWS,4)}, s{so} offen offset:{off+1024}")
    a(f"buffer_load_dwordx4 {vr(AV,4)}, v{vLV}, {sr(SWS,4)}, s{sRecA} offen offset:2560")
    a(f"buffer_load_dwordx4 {vr(AV+4,4)}, v{vLV}, {sr(SWS,4)}, s{sRecA} offen offset:{2560+672}")
    a(f"buffer_load_dwordx4 {vr(AV+8,4)}, v{vLV}, {sr(SWS,4)}, s{sRecAp} offen offset:{2560+672}")
    a(f"buffer_load_dwordx2 {vr(Q1,2)}, v{vL8}, {sr(SWS,4)}, s{sRecB} offen")
    a(f"buffer_load_dwordx2 {vr(Q1+2,2)}, v{vL8}, {sr(SWS,4)}, s{sRecB} offen offset:512")
    a(f"buffer_load_dwordx2 {vr(Q2,2)}, v{vL8}, {sr(SWS,4)}, s{sRecB} offen offset:1024")

    def dma_chunk():
        return [
            f"s_mov_b32 m0, s{sM0}",
            f"s_add_u32 s{sM0}, s{sM0}, {K2_SLOT}",
            f"buffer_load_dwordx4 v{vL16}, {sr(SHB,4)}, s{sDma} offen lds",
            f"buffer_load_dwordx4 v{vL16}, {sr(SHB,4)}, s{sDma} offen offset:1024 lds",
            "s_mov_b32 exec_hi, 0xf",
            f"buffer_load_dwordx4 v{vL16}, {sr(SHB,4)}, s{sDma} offen offset:2048 lds",
            "s_mov_b32 exec_hi, -1",
            f"s_add_u32 s{sDma}, s{sDma}, {8*REC}",
            f"s_cmp_ge_u32 s{sM0}, {K2_SLOT*K2_R}",
            f"s_cselect_b32 s{sTmp}, {K2_SLOT*K2_R}, 0",
            f"s_sub_u32 s{sM0}, s{sM0}, s{sTmp}",
        ]

    def dma_init():
        a(f"s_mul_i32 s{sDma}, s{sWave}, {REC}")
        a(f"s_add_u32 s{sDma}, s{sDma}, 1280")
        a(f"s_mul_i32 s{sM0}, s{sWave}, {K2_TILE}")
        for c in range(3):
            for l in dma_chunk():
                a(l)

    a(f"s_mov_b32 s{sRedo}, 0")
    dma_init()
    srd(a, SXG, 4, 2621440)
    srd(a, SGW, 10, 1280)
    a(f"""
    s_lshl_b32 s3, s15, 8
    s_lshl_b32 s14, s{sHead}, 3
    s_add_u32 s3, s3, s14
    s_add_u32 s3, s3, s{sWave}
    s_and_b32 s14, s3, 1023
    s_mul_i32 s14, s14, 2560
    s_lshr_b32 s{sTmp}, s3, 10
    s_mul_i32 s{sTmp}, s{sTmp}, 1280
    s_add_u32 s14, s14, s{sTmp}
    s_lshl_b32 s{sTmp+9}, s3, 2
    s_add_u32 s{sTmp+9}, s{sTmp+9}, {G_OFF}
    v_lshlrev_b32 v10, 2, v1
    """)
    for i in range(5):
        a(f"buffer_load_dword v{GX+i}, v10, {sr(SXG,4)}, s14 offen offset:{256*i}")
        a(f"buffer_load_dword v{GW+i}, v10, {sr(SGW,4)}, 0 offen offset:{256*i}")
    a(f"""
    s_lshl_b32 s3, s2, 3
    s_add_u32 s3, s3, s{sWave}
    s_cmp_ge_u32 s3, 800
    s_cselect_b64 s[6:7], s[8:9], s[6:7]
    s_cselect_b32 s14, 800, 0
    s_sub_u32 s14, s3, s14
    s_mul_i32 s{sTmp}, s14, 3277
    s_lshr_b32 s{sTmp}, s{sTmp}, 16
    s_mul_i32 s{sTmp+1}, s{sTmp}, 20
    s_sub_u32 s{sTmp+1}, s14, s{sTmp+1}
    s_mul_i32 s{sTmp+1}, s{sTmp+1}, {32*1280}
    s_lshl_b32 s{sTmp}, s{sTmp}, 5
    s_add_u32 s{sTmp}, s{sTmp}, s{sTmp+1}
    s_add_u32 s{sTmp+1}, s{sTmp}, 5120
    s_lshl_b32 s{sTmp+8}, s3, 10
    s_add_u32 s{sTmp+8}, s{sTmp+8}, {WOF_OFF}
    s_cmp_ge_u32 s3, 1600
    s_cselect_b32 s{sTmp+8}, 0x7f000000, s{sTmp+8}
    v_and_b32 v10, 15, v1
    v_lshrrev_b32 v11, 4, v1
    v_mul_u32_u24 v11, {8*1280}, v11
    v_lshl_add_u32 v{vWFa}, v10, 1, v11
    """)
    srd(a, SWO, 6, 819200)
    for i in range(8):
        so = sTmp if i < 4 else sTmp + 1
        a(f"buffer_load_ushort v{WF+i}, v{vWFa}, {sr(SWO,4)}, s{so} offen offset:{(i%4)*1280}")
    a(f"""
    v_mov_b32 v10, {K2_FLAG+256}
    v_mov_b32 v11, 0
    ds_write_b32 v10, v11
    """)
    a(f"""
    v_and_b32 v10, 3, v8
    v_bfe_u32 v11, v8, 2, 1
    v_lshl_or_b32 v10, v11, 3, v10
    v_bfe_u32 v11, v8, 3, 1
    v_lshl_or_b32 v10, v11, 2, v10
    v_lshlrev_b32 v10, 4, v10
    v_lshrrev_b32 v11, 4, v8
    v_mul_u32_u24 v11, 20480, v11
    s_mul_i32 s3, s{sHead}, 5
    v_add_u32 v12, s3, v9
    v_lshrrev_b32 v13, 1, v12
    v_lshlrev_b32 v13, 8, v13
    v_and_b32 v12, 1, v12
    v_lshlrev_b32 v12, 3, v12
    v_add3_u32 v10, v10, v11, v12
    v_add_u32 v{vO}, v10, v13
    s_mul_i32 s{sOA}, s{sT}, 40960
    s_add_u32 s{sOA}, s{sOA}, {O_OFF}
    s_add_u32 s{sOB}, s{sOA}, {O_BR}
    """)

    a(f"v_mov_b32 v{vt}, {f32(-1e30)}")

    def lanemask(fn):
        m = 0
        for l in range(64):
            if fn(l):
                m |= 1 << l
        return m
    k = 0
    for r in range(16):
        m = lanemask(lambda l: 0 <= pi5(l % 32) - (16 * (r // 8) + 8 * (l // 32) + r % 8) <= 7)
        sp = sTmp + 2 + 2 * (k % 3); k += 1
        a(f"s_mov_b32 s{sp}, 0x{m & 0xffffffff:08x}")
        a(f"s_mov_b32 s{sp+1}, 0x{m >> 32:08x}")
        a(f"v_cndmask_b32 v{SB[0]+r}, v{vt}, 0, s[{sp}:{sp+1}]")
    for r in range(8, 16):
        m = lanemask(lambda l: pi5(l % 32) + 32 - (16 * (r // 8) + 8 * (l // 32) + r % 8) <= 7)
        sp = sTmp + 2 + 2 * (k % 3); k += 1
        a(f"s_and_b32 s{sp}, s{sPrev}, 0x{m & 0xffffffff:08x}")
        a(f"s_and_b32 s{sp+1}, s{sPrev}, 0x{m >> 32:08x}")
        a(f"v_cndmask_b32 v{SB[1]+r}, v{vt}, 0, s[{sp}:{sp+1}]")
    for r in range(8):
        a(f"v_mov_b32 v{SB[1]+r}, 0")
    a("s_waitcnt vmcnt(27)")
    a(f"""
    s_mov_b32 exec_lo, 0
    v_mov_b32 v{AQ2}, 0
    v_mov_b32 v{AQ2+1}, 0
    v_mov_b32 v{Q2}, 0
    v_mov_b32 v{Q2+1}, 0
    s_mov_b32 exec_lo, -1
    s_nop 1
    v_mfma_f32_32x32x16_bf16 {vr(SB[0],16)}, {vr(AK1,4)}, {vr(AQ1,4)}, {vr(SB[0],16)}
    v_mfma_f32_32x32x8_bf16 {vr(SB[0],16)}, {vr(AK2,2)}, {vr(AQ2,2)}, {vr(SB[0],16)}
    v_mfma_f32_32x32x16_bf16 {vr(SB[1],16)}, {vr(AKP1,4)}, {vr(AQ1,4)}, {vr(SB[1],16)}
    v_mfma_f32_32x32x8_bf16 {vr(SB[1],16)}, {vr(AKP2,2)}, {vr(AQ2,2)}, {vr(SB[1],16)}
    s_nop 15
    """)

    def maxtree(regs, dst):
        a(f"v_max3_f32 v{dst}, v{regs[0]}, v{regs[1]}, v{regs[2]}")
        i = 3
        while i + 1 < len(regs):
            a(f"v_max3_f32 v{dst}, v{dst}, v{regs[i]}, v{regs[i+1]}")
            i += 2
        if i < len(regs):
            a(f"v_max_f32 v{dst}, v{dst}, v{regs[i]}")
        a(f"v_mov_b32 v{dst+1}, v{dst}")
        a("s_nop 1")
        a(f"v_permlane32_swap_b32 v{dst}, v{dst+1}")
        a("s_nop 1")
        a(f"v_max_f32 v{dst}, v{dst}, v{dst+1}")

    aregs = [SB[0] + r for r in range(16)] + [SB[1] + r for r in range(8, 16)]
    maxtree(aregs, vt)
    for r in aregs:
        a(f"v_sub_f32 v{r}, v{r}, v{vt}")
    for r in aregs:
        a(f"v_exp_f32 v{r}, v{r}")
    a("s_nop 0")
    AP = NEGM
    for i in range(12):
        a(f"v_cvt_pk_bf16_f32 v{AP+i}, v{aregs[2*i]}, v{aregs[2*i+1]}")
    a(f"""
    s_nop 1
    v_mfma_f32_32x32x16_bf16 {vr(O,16)}, {vr(AV,4)}, {vr(AP,4)}, 0
    v_mfma_f32_32x32x16_bf16 {vr(O,16)}, {vr(AV+4,4)}, {vr(AP+4,4)}, {vr(O,16)}
    v_mfma_f32_32x32x16_bf16 {vr(O,16)}, {vr(AV+8,4)}, {vr(AP+8,4)}, {vr(O,16)}
    """)
    a("s_waitcnt vmcnt(0)")
    a(f"v_mov_b32 v{vt+2}, 0")
    for i in range(5):
        a(f"v_dot2_f32_bf16 v{vt+2}, v{GX+i}, v{GW+i}, v{vt+2}")
    for i in range(4):
        a(f"v_lshl_or_b32 v{WF+i}, v{WF+2*i+1}, 16, v{WF+2*i}")
    a(f"buffer_store_dwordx4 {vr(WF,4)}, v{vL16}, {sr(SWS,4)}, s{sTmp+8} offen")
    a("s_nop 3")
    for sh in ("row_shr:1", "row_shr:2", "row_shr:4", "row_shr:8"):
        a(f"v_add_f32_dpp v{vt+2}, v{vt+2}, v{vt+2} {sh} row_mask:0xf bank_mask:0xf bound_ctrl:0")
        a("s_nop 1")
    a(f"v_add_f32_dpp v{vt+2}, v{vt+2}, v{vt+2} row_bcast:15 row_mask:0xa bank_mask:0xf")
    a("s_nop 1")
    a(f"v_add_f32_dpp v{vt+2}, v{vt+2}, v{vt+2} row_bcast:31 row_mask:0xc bank_mask:0xf")
    a(f"""
    v_mul_f32 v{vt+2}, {f32(-math.log2(math.e))}, v{vt+2}
    v_exp_f32 v{vt+2}, v{vt+2}
    s_nop 0
    v_add_f32 v{vt+2}, 1.0, v{vt+2}
    v_rcp_f32 v{vt+2}, v{vt+2}
    v_mov_b32 v{vt+3}, 0
    s_mov_b32 exec_lo, 0
    s_mov_b32 exec_hi, 0x80000000
    buffer_store_dword v{vt+2}, v{vt+3}, {sr(SWS,4)}, s{sTmp+9} offen
    s_mov_b64 exec, -1
    """)

    def get_l():
        a(f"""
        v_mov_b32 v{vt}, v{O+8}
        v_mov_b32 v{vt+1}, v{O+8}
        s_nop 1
        v_permlane32_swap_b32 v{vt}, v{vt+1}
        s_nop 1
        """)

    def store_o(so):
        a(f"v_rcp_f32 v{vt}, v{vt+1}")
        a("s_nop 0")
        for r in range(12):
            a(f"v_mul_f32 v{O+r}, v{O+r}, v{vt}")
        for i in range(6):
            a(f"v_cvt_pk_bf16_f32 v{O+i}, v{O+2*i}, v{O+2*i+1}")
        a(f"buffer_store_dwordx2 {vr(O,2)}, v{vO}, {sr(SWS,4)}, s{so} offen")
        a(f"buffer_store_dwordx2 {vr(O+2,2)}, v{vO}, {sr(SWS,4)}, s{so} offen offset:256")
        a("s_mov_b32 exec_hi, 0")
        a(f"buffer_store_dwordx2 {vr(O+4,2)}, v{vO}, {sr(SWS,4)}, s{so} offen offset:512")
        a("s_mov_b32 exec_hi, -1")

    get_l()
    store_o(sOA)

    def kreads(tile):
        o = tile * K2_TILE
        return [f"ds_read_b64 {vr(KF1,2)}, v{vK} offset:{o}",
                f"ds_read_b64 {vr(KF1+2,2)}, v{vK} offset:{o+512}",
                f"ds_read_b64 {vr(KF2,2)}, v{vK} offset:{o+1024}"]

    def vreads(tile):
        o = tile * K2_TILE + 1280
        return [f"ds_read_b128 {vr(VF,4)}, v{vV} offset:{o}",
                f"ds_read_b128 {vr(VF+4,4)}, v{vV} offset:{o+672}"]

    def qk(sb, c):
        return [f"v_mfma_f32_32x32x16_bf16 {vr(sb,16)}, {vr(KF1,4)}, {vr(Q1,4)}, {c}",
                f"v_mfma_f32_32x32x8_bf16 {vr(sb,16)}, {vr(KF2,2)}, {vr(Q2,2)}, {vr(sb,16)}"]

    a.label("K2_B_START")
    a(f"""
    s_waitcnt vmcnt(0) lgkmcnt(0)
    s_barrier
    v_mov_b32 v{vK}, v{vL8}
    v_mov_b32 v{vV}, v{vLV}
    s_mov_b32 s{sSlot}, {K2_SLOT}
    s_mov_b32 s{sC}, 0
    """)
    for l in kreads(0):
        a(l)
    for r in range(16):
        a(f"v_mov_b32 v{O+r}, 0")
    a(f"s_cmp_lg_u32 s{sRedo}, 0")
    a("s_cbranch_scc1 K2_HAVE_M")
    a("s_waitcnt lgkmcnt(0)")
    for l in qk(SB[0], "0"):
        a(l)
    a("s_nop 15")
    maxtree([SB[0] + r for r in range(16)], vt)
    for r in range(16):
        a(f"v_sub_f32 v{NEGM+r}, 0, v{vt}")
    a.label("K2_HAVE_M")
    a("s_waitcnt lgkmcnt(0)")
    a("s_nop 1")
    for l in qk(SB[0], vr(NEGM, 16)):
        a(l)
    for l in kreads(1):
        a(l)
    for l in vreads(0):
        a(l)
    a("s_nop 7")
    a.raw(".p2align 3")
    a.label("K2_LOOP")
    for i in range(8):
        cur, nxt = SB[i % 2], SB[1 - i % 2]
        e = [f"v_exp_f32 v{cur+r}, v{cur+r}" for r in range(16)]
        c = [f"v_cvt_pk_bf16_f32 v{P+j}, v{cur+2*j}, v{cur+2*j+1}" for j in range(8)]
        q = qk(nxt, vr(NEGM, 16))
        pv = [f"v_mfma_f32_32x32x16_bf16 {vr(O,16)}, {vr(VF+4*j,4)}, {vr(P+4*j,4)}, {vr(O,16)}" for j in range(2)]
        kr = kreads((i + 2) % 8)
        vrd = vreads((i + 1) % 8)
        if i == 6:
            a("s_waitcnt vmcnt(3)")
            a("s_barrier")
            for l in dma_chunk():
                a(l)
            a(f"v_add_u32 v{vK}, s{sSlot}, v{vL8}")
        a("s_waitcnt lgkmcnt(2)")
        a(q[0])
        a(e[0]); a(e[1]); a(e[2]); a(e[3])
        a(q[1])
        a(e[4]); a(c[0]); a(e[5]); a(c[1])
        for l in kr:
            a(l)
        a(e[6]); a(e[7]); a(c[2]); a(e[8]); a(c[3]); a(e[9])
        a("s_waitcnt lgkmcnt(3)")
        a(e[10])
        a(pv[0])
        a(e[11]); a(c[4]); a(e[12]); a(c[5]); a(e[13]); a(e[14]); a(e[15]); a(c[6])
        if i == 7:
            a(f"v_add_u32 v{vV}, s{sSlot}, v{vLV}")
            a(c[7])
            a(f"s_add_u32 s{sSlot}, s{sSlot}, {K2_SLOT}")
            a(f"s_cmp_ge_u32 s{sSlot}, {K2_SLOT*K2_R}")
            a(f"s_cselect_b32 s{sSlot}, 0, s{sSlot}")
        else:
            a(c[7])
            a("s_nop 1")
        a(pv[1])
        for l in vrd:
            a(l)
    a(f"""
    s_add_u32 s{sC}, s{sC}, 1
    s_cmp_lt_u32 s{sC}, 8
    s_cbranch_scc1 K2_LOOP
    s_nop 15
    """)
    get_l()
    a(f"v_mov_b32 v{vt+2}, v{vt+1}")
    for r in range(9):
        a(f"v_fma_f32 v{vt+2}, v{O+r}, 0, v{vt+2}")
    a("s_mov_b32 exec_hi, 0")
    for r in range(9, 12):
        a(f"v_fma_f32 v{vt+2}, v{O+r}, 0, v{vt+2}")
    a(f"""
    s_mov_b32 exec_hi, -1
    s_mov_b32 s3, {f32(2.0**100)}
    v_cmp_nlt_f32 s[{sTmp}:{sTmp+1}], v{vt+2}, s3
    v_mov_b32 v{vt+3}, {K2_FLAG+256}
    v_mov_b32 v{vt+4}, 1
    s_nop 1
    s_cmp_eq_u64 s[{sTmp}:{sTmp+1}], 0
    s_cbranch_scc1 K2_NOFLAG
    ds_write_b32 v{vt+3}, v{vt+4}
    """)
    a.label("K2_NOFLAG")
    a(f"""
    s_waitcnt vmcnt(0) lgkmcnt(0)
    s_barrier
    ds_read_b32 v{vt+4}, v{vt+3}
    s_waitcnt lgkmcnt(0)
    v_readfirstlane_b32 s3, v{vt+4}
    s_nop 3
    s_cmp_gt_u32 s3, s{sRedo}
    s_cbranch_scc0 K2_FINISH
    """)
    a(f"""
    s_mov_b32 s{sRedo}, 1
    s_mov_b32 s{sC}, 1280
    v_mov_b32 v{vt+2}, 0xff800000
    """)
    a.label("K2_MAXLOOP")
    a(f"""
    buffer_load_dwordx2 {vr(KF1,2)}, v{vL8}, {sr(SHB,4)}, s{sC} offen
    buffer_load_dwordx2 {vr(KF1+2,2)}, v{vL8}, {sr(SHB,4)}, s{sC} offen offset:512
    buffer_load_dwordx2 {vr(KF2,2)}, v{vL8}, {sr(SHB,4)}, s{sC} offen offset:1024
    s_waitcnt vmcnt(0)
    """)
    for l in qk(SB[0], "0"):
        a(l)
    a("s_nop 15")
    for r in range(0, 16, 2):
        a(f"v_max3_f32 v{vt+2}, v{vt+2}, v{SB[0]+r}, v{SB[0]+r+1}")
    a(f"""
    s_add_u32 s{sC}, s{sC}, {REC}
    s_cmp_lt_u32 s{sC}, {HS}
    s_cbranch_scc1 K2_MAXLOOP
    v_mov_b32 v{vt+3}, v{vt+2}
    s_nop 1
    v_permlane32_swap_b32 v{vt+2}, v{vt+3}
    s_nop 1
    v_max_f32 v{vt+2}, v{vt+2}, v{vt+3}
    """)
    for r in range(16):
        a(f"v_sub_f32 v{NEGM+r}, 0, v{vt+2}")
    dma_init()
    a("s_branch K2_B_START")
    a.label("K2_FINISH")
    store_o(sOB)
    a.label("K2_END")
    a("s_endpgm")
    return kernel_desc(name, NV, NV, 64)


K3_LDS = 4 * 4 * 5 * 1024


def gen_k3(a):
    name = "proj_kernel"
    kernel_head(a, name)
    SWS, SOUT = 20, 24
    sWave, sMb, sNb = 16, 17, 18
    sO, sW = 28, 29
    vJ = 2
    vG, vOut, vL16 = 7, 8, 2
    ACC = 16
    RD = 96
    NSET = 6
    a("s_cmp_ge_u32 s2, 256")
    a("s_cbranch_scc1 K3_END")
    a("""
    s_load_dwordx2 s[4:5], s[0:1], 56
    s_load_dwordx2 s[6:7], s[0:1], 72
    v_lshrrev_b32 v9, 6, v0
    v_and_b32 v1, 63, v0
    s_and_b32 s14, s2, 7
    v_readfirstlane_b32 s16, v9
    s_lshr_b32 s15, s2, 3
    s_lshr_b32 s17, s14, 1
    s_lshl_b32 s17, s17, 3
    s_and_b32 s3, s15, 7
    s_add_u32 s17, s17, s3
    s_and_b32 s18, s14, 1
    s_lshl_b32 s18, s18, 2
    s_lshr_b32 s3, s15, 3
    s_add_u32 s18, s18, s3
    v_lshlrev_b32 v2, 4, v1
    """)
    for j in range(1, 5):
        a(f"v_add_u32 v{vJ+j}, {20480*j}, v{vJ}")
    a(f"""
    s_lshr_b32 s3, s{sWave}, 1
    s_and_b32 s14, s{sWave}, 1
    s_mul_i32 s14, s14, 10240
    s_mul_i32 s{sO}, s3, {O_BR}
    s_mul_i32 s15, s{sMb}, {4*20480}
    s_add_u32 s{sO}, s{sO}, s15
    s_add_u32 s{sO}, s{sO}, s14
    s_add_u32 s{sO}, s{sO}, {O_OFF}
    s_mul_i32 s{sW}, s3, {WOF_BR}
    s_mul_i32 s15, s{sNb}, {5*20480}
    s_add_u32 s{sW}, s{sW}, s15
    s_add_u32 s{sW}, s{sW}, s14
    s_add_u32 s{sW}, s{sW}, {WOF_OFF}
    s_waitcnt lgkmcnt(0)
    """)
    srd(a, SWS, 6, WS_BYTES)
    srd(a, SOUT, 4, 2621440)

    def loads(i):
        base = (i % NSET) * 36
        L = []
        if i in (4, 8):
            L.append(f"s_add_u32 s{sO}, s{sO}, 4096")
            L.append(f"s_add_u32 s{sW}, s{sW}, 4096")
        for nt in range(5):
            L.append(f"buffer_load_dwordx4 {ar(base+16+4*nt,4)}, v{vJ+nt}, {sr(SWS,4)}, s{sW} offen offset:{(i%4)*1024}")
        for mt in range(4):
            L.append(f"buffer_load_dwordx4 {ar(base+4*mt,4)}, v{vJ+mt}, {sr(SWS,4)}, s{sO} offen offset:{(i%4)*1024}")
        return L

    a(f"""
    v_and_b32 v9, 15, v1
    v_lshlrev_b32 v10, 2, v9
    s_lshl_b32 s3, s{sMb}, 2
    s_add_u32 s3, s3, s{sWave}
    s_lshl_b32 s14, s3, 6
    s_add_u32 s14, s14, {G_OFF}
    buffer_load_dword v{vG}, v10, {sr(SWS,4)}, s14 offen
    """)
    for i in range(NSET):
        for l in loads(i):
            a(l)
    a(f"""
    v_lshrrev_b32 v11, 4, v1
    v_mul_u32_u24 v12, 2560, v9
    v_and_b32 v13, 1, v11
    v_lshlrev_b32 v13, 5, v13
    v_lshrrev_b32 v14, 1, v11
    v_lshlrev_b32 v14, 4, v14
    v_add3_u32 v{vOut}, v12, v13, v14
    v_lshl_add_u32 v9, v11, 3, v12
    s_and_b32 s14, s3, 63
    s_mul_i32 s14, s14, {16*2560}
    s_lshr_b32 s15, s3, 6
    s_mul_i32 s15, s15, 1280
    s_add_u32 s30, s14, s15
    s_mul_i32 s15, s{sNb}, 160
    s_add_u32 s30, s30, s15
    """)
    issued = NSET
    for i in range(10):
        base = (i % NSET) * 36
        a(f"s_waitcnt vmcnt({9*(issued-1-i)})")
        for mt in range(4):
            for nt in range(5):
                acc = vr(ACC + (mt * 5 + nt) * 4, 4)
                c = "0" if i == 0 else acc
                a(f"v_mfma_f32_16x16x32_bf16 {acc}, {ar(base+16+4*nt,4)}, {ar(base+4*mt,4)}, {c}")
        if issued < 10:
            for l in loads(issued):
                a(l)
            issued += 1
    a("s_nop 7")
    a(f"""
    s_mul_i32 s3, s{sWave}, 20480
    v_add_u32 v10, s3, v{vL16}
    s_mul_i32 s3, s{sWave}, 5120
    v_add_u32 v11, s3, v{vL16}
    """)
    for mt in range(4):
        a(f"s_cmp_eq_u32 s{sWave}, {mt}")
        a(f"s_cbranch_scc1 K3_SKIPW{mt}")
        for nt in range(5):
            a(f"ds_write_b128 v10, {vr(ACC+(mt*5+nt)*4,4)} offset:{(mt*5+nt)*1024}")
        a(f"s_branch K3_DONEW{mt}")
        a.label(f"K3_SKIPW{mt}")
        if mt != 0:
            for i in range(20):
                a(f"v_mov_b32 v{ACC+i}, v{ACC+mt*20+i}")
        a.label(f"K3_DONEW{mt}")
    a("s_waitcnt lgkmcnt(0)")
    a("s_barrier")
    for k, x in enumerate((1, 2, 3)):
        a(f"s_xor_b32 s3, s{sWave}, {x}")
        a(f"s_mul_i32 s3, s3, 20480")
        a(f"v_add_u32 v{12+k}, s3, v11")
    for k in range(3):
        for nt in range(5):
            a(f"ds_read_b128 {vr(RD+k*20+nt*4,4)}, v{12+k} offset:{nt*1024}")
    a(f"""
    v_sub_f32 v10, 1.0, v{vG}
    s_cmp_lt_u32 s{sWave}, 2
    s_cselect_b64 s[32:33], -1, 0
    v_cndmask_b32 v11, v10, v{vG}, s[32:33]
    v_cndmask_b32 v10, v{vG}, v10, s[32:33]
    s_waitcnt lgkmcnt(0)
    """)
    for i in range(20):
        a(f"v_add_f32 v{ACC+i}, v{ACC+i}, v{RD+i}")
        a(f"v_add_f32 v{RD+20+i}, v{RD+20+i}, v{RD+40+i}")
        a(f"v_mul_f32 v{ACC+i}, v{ACC+i}, v11")
        a(f"v_fma_f32 v{ACC+i}, v{RD+20+i}, v10, v{ACC+i}")
    for pr in range(2):
        b0 = ACC + pr * 8
        b1 = b0 + 4
        a(f"v_cvt_pk_bf16_f32 v{b0}, v{b0}, v{b0+1}")
        a(f"v_cvt_pk_bf16_f32 v{b0+1}, v{b0+2}, v{b0+3}")
        a(f"v_cvt_pk_bf16_f32 v{b0+2}, v{b1}, v{b1+1}")
        a(f"v_cvt_pk_bf16_f32 v{b0+3}, v{b1+2}, v{b1+3}")
        a("s_nop 1")
        a(f"v_permlane16_swap_b32 v{b0}, v{b0+2}")
        a(f"v_permlane16_swap_b32 v{b0+1}, v{b0+3}")
        a("s_nop 0")
        a(f"buffer_store_dwordx4 {vr(b0,4)}, v{vOut}, {sr(SOUT,4)}, s30 offen offset:{pr*64}")
    b0 = ACC + 16
    a(f"v_cvt_pk_bf16_f32 v{b0}, v{b0}, v{b0+1}")
    a(f"v_cvt_pk_bf16_f32 v{b0+1}, v{b0+2}, v{b0+3}")
    a(f"buffer_store_dwordx2 {vr(b0,2)}, v9, {sr(SOUT,4)}, s30 offen offset:128")
    a.label("K3_END")
    a("s_endpgm")
    return kernel_desc(name, 160 + NSET * 36, 160, 40)


def main():
    ref = open(OUT + ".ref").read().split("\n")
    head = [l for l in ref if l.startswith(";") and "@launch" not in l]
    a = Asm()
    for l in head:
        a.raw(l)
    a.raw(f"; @launch kernel=qkv_kernel grid=(256,1,1) block=(256,1,1) lds={K1_LDS}")
    a.raw(f"; @launch kernel=attn_kernel grid=(256,1,1) block=(512,1,1) lds={K2_LDS}")
    a.raw(f"; @launch kernel=proj_kernel grid=(256,1,1) block=(256,1,1) lds={K3_LDS}")
    a.raw('.amdgcn_target "amdgcn-amd-amdhsa--gfx950"')
    a.raw(".text")
    d = [gen_k1(a), gen_k2(a), gen_k3(a)]
    a.raw('.section .rodata,"a"')
    for x in d:
        a.raw(".p2align 6")
        a.raw(x.rstrip("\n"))
    out = sys.argv[1] if len(sys.argv) > 1 else OUT
    open(out, "w").write(a.text())
    print("wrote", out, len(a.L), "lines")


if __name__ == "__main__":
    main()
```

```python
import sys, math, struct, os
EXP = os.environ.get('EXP', '').split(',')

NAME = "gated_mix__sliding_local_dilated__mha_block__prompt"
OUT = f"cdna_kernels/{NAME}.s"

SEGB = 2621440
TB = 40960
O_OFF = 16 << 20
O_BR = 2621440
WOF_OFF = 24 << 20
WOF_BR = 819200
G_OFF = 28 << 20
WS_BYTES = 32 << 20
QSCALE = (20 ** -0.5) * math.log2(math.e)


def f32(x):
    return "0x%08x" % struct.unpack("<I", struct.pack("<f", x))[0]


def pi5(i):
    return (i & ~12) | ((i & 4) << 1) | ((i & 8) >> 1)


class Asm:
    def __init__(self):
        self.L = []

    def __call__(self, s):
        for l in s.strip("\n").split("\n"):
            self.L.append("    " + l.strip())

    def label(self, l):
        self.L.append(l + ":")

    def raw(self, s):
        self.L.append(s)

    def text(self):
        return "\n".join(self.L) + "\n"


def vr(b, n=1, p="v"):
    return f"{p}{b}" if n == 1 else f"{p}[{b}:{b+n-1}]"


def ar(b, n=1):
    return vr(b, n, "a")


def sr(b, n=1):
    return vr(b, n, "s")


STAMP = False
DBG_OFF = 30 << 20


def stamp(a, idx, sbase=70):
    if not STAMP:
        return
    a(f"s_memtime s[{sbase+16}:{sbase+17}]")
    a("s_waitcnt lgkmcnt(0)")
    a(f"s_mov_b32 s{sbase+idx}, s{sbase+16}")


def stamp_rt(a, idx, sbase=70):
    if not STAMP:
        return
    a(f"s_memrealtime s[{sbase+16}:{sbase+17}]")
    a("s_waitcnt lgkmcnt(0)")
    a(f"s_mov_b32 s{sbase+idx}, s{sbase+16}")


def stamp_flush(a, kidx, srd_ws, swave, n, vtmp, sbase=70):
    if not STAMP:
        return
    a("s_mov_b64 exec, -1")
    a(f"s_lshl_b32 s{sbase+16}, s2, 3")
    a(f"s_add_u32 s{sbase+16}, s{sbase+16}, s{swave}")
    a(f"s_lshl_b32 s{sbase+16}, s{sbase+16}, 6")
    a(f"s_add_u32 s{sbase+16}, s{sbase+16}, {DBG_OFF + kidx*(1<<17)}")
    a(f"v_mov_b32 v{vtmp+1}, 0")
    for i in range(n):
        a(f"v_mov_b32 v{vtmp}, s{sbase+i}")
        a(f"buffer_store_dword v{vtmp}, v{vtmp+1}, s[{srd_ws}:{srd_ws+3}], s{sbase+16} offen offset:{4*i}")


def kernel_head(a, name):
    a.raw(f".globl {name}")
    a.raw(".p2align 8")
    a.raw(f".type {name},@function")
    a.label(name)


def kernel_desc(name, vgpr_total, accum, sgpr):
    return f""".amdhsa_kernel {name}
  .amdhsa_next_free_vgpr {vgpr_total}
  .amdhsa_next_free_sgpr {96 if STAMP else sgpr}
  .amdhsa_accum_offset {accum}
  .amdhsa_group_segment_fixed_size 0
  .amdhsa_kernarg_size 80
  .amdhsa_user_sgpr_count 2
  .amdhsa_user_sgpr_kernarg_segment_ptr 1
  .amdhsa_system_sgpr_workgroup_id_x 1
.end_amdhsa_kernel
"""


def srd(a, d, base, nbytes):
    a(f"s_mov_b32 s{d}, s{base}")
    a(f"s_mov_b32 s{d+1}, s{base+1}")
    a(f"s_mov_b32 s{d+2}, {nbytes}")
    a(f"s_mov_b32 s{d+3}, 0x00020000")


K1_WST = 16896
K1_NSW = 5
K1_NSX = 3
K1_XB = K1_WST * K1_NSW
K1_LDS = K1_XB + K1_NSX * 16384


STF = '' if 'k1_plain' in EXP else ' sc1'


def gen_k1(a):
    name = "qkv_kernel"
    kernel_head(a, name)
    SX, SW, SR = 20, 24, 28
    sWave = 19
    a("s_cmp_ge_u32 s2, 256")
    a("s_cbranch_scc1 K1_END")
    stamp(a, 0); stamp_rt(a, 1)
    a("""
    s_load_dwordx4 s[4:7], s[0:1], 0
    s_load_dwordx2 s[8:9], s[0:1], 32
    s_load_dwordx2 s[10:11], s[0:1], 72
    v_lshrrev_b32 v2, 6, v0
    v_and_b32 v1, 63, v0
    s_and_b32 s12, s2, 7
    v_readfirstlane_b32 s19, v2
    s_cmp_ge_u32 s2, 240
    s_cbranch_scc1 K1_SIDE
    s_lshr_b32 s13, s2, 3
    s_mul_i32 s12, s12, 30
    s_add_u32 s12, s12, s13
    s_cmp_ge_u32 s12, 120
    s_cselect_b32 s14, 1, 0
    s_cselect_b32 s13, 120, 0
    s_sub_u32 s12, s12, s13
    s_and_b32 s15, s12, 7
    s_lshr_b32 s16, s12, 3
    v_and_b32 v3, 15, v1
    v_lshrrev_b32 v4, 4, v1
    """)
    a(f"""
    s_cmp_ge_u32 s{sWave}, 4
    s_cselect_b32 s12, 1, 0
    s_lshr_b32 s12, s{sWave}, s12
    s_and_b32 s12, s12, 1
    s_lshl_b32 s17, s16, 1
    s_add_u32 s17, s17, s12
    s_cmp_ge_u32 s17, 15
    s_cselect_b32 s18, 1, 0
    s_cselect_b32 s13, 15, 0
    s_sub_u32 s17, s17, s13
    s_cmp_ge_u32 s{sWave}, 4
    s_cbranch_scc0 K1_COMPUTE
    """)
    vW, vXg = 8, 12
    sWo, sXo, sWl, sXl = 32, 33, 34, 35
    a(f"""
    v_lshrrev_b32 v5, 1, v4
    v_and_b32 v6, 1, v4
    v_lshlrev_b32 v5, 4, v5
    v_lshl_add_u32 v5, v6, 2, v5
    v_mul_u32_u24 v5, 3840, v5
    v_lshl_add_u32 v{vW}, v3, 4, v5
    v_add_u32 v{vW+1}, 2784, v{vW}
    v_add_u32 v{vW+2}, {2*2784}, v{vW}
    v_add_u32 v{vW+3}, {3*2784}, v{vW}
    v_lshrrev_b32 v5, 3, v1
    v_and_b32 v6, 7, v1
    v_xor_b32 v6, v6, v5
    v_mul_u32_u24 v5, 2560, v5
    v_lshl_add_u32 v{vXg}, v6, 4, v5
    v_add_u32 v{vXg+1}, 19456, v{vXg}
    v_add_u32 v{vXg+2}, {2*19456}, v{vXg}
    v_add_u32 v{vXg+3}, {3*19456}, v{vXg}
    s_and_b32 s13, s{sWave}, 1
    s_mul_i32 s{sWo}, s13, {8*3840}
    s_lshl_b32 s3, s17, 8
    s_add_u32 s{sWo}, s{sWo}, s3
    s_and_b32 s3, s{sWave}, 3
    s_mul_i32 s{sWl}, s3, {4*1056}
    s_lshl_b32 s{sXl}, s3, 12
    s_add_u32 s{sXl}, s{sXl}, {K1_XB}
    s_lshl_b32 s13, s15, 2
    s_add_u32 s13, s13, s3
    s_mul_i32 s{sXo}, s13, {32*2560}
    s_mul_i32 s13, s14, 1280
    s_add_u32 s{sXo}, s{sXo}, s13
    s_cmp_eq_u32 s18, 0
    s_waitcnt lgkmcnt(0)
    s_cselect_b64 s[6:7], s[6:7], s[8:9]
    """)
    srd(a, SX, 4, 2621440)
    srd(a, SW, 6, 2457600)
    if STAMP:
        srd(a, SR, 10, WS_BYTES)
    hist = []

    def wl(k):
        a(f"s_add_u32 m0, s{sWl}, {(k % K1_NSW) * K1_WST}")
        if k:
            a(f"s_add_u32 s{sWo}, s{sWo}, 122880")
        else:
            a("s_nop 0")
        for i in range(4):
            a(f"buffer_load_dwordx4 v{vW+i}, {sr(SW,4)}, s{sWo} offen offset:{1056*i} lds")
        hist.append(("W", k))

    def xl(j):
        a(f"s_add_u32 m0, s{sXl}, {(j % K1_NSX) * 16384}")
        if j:
            a(f"s_add_u32 s{sXo}, s{sXo}, 128")
        else:
            a("s_nop 0")
        for q in range(4):
            a(f"buffer_load_dwordx4 v{vXg+q}, {sr(SX,4)}, s{sXo} offen offset:{1024*q} lds")
        hist.append(("X", j))

    def need(ks):
        req = [("W", ks), ("X", ks // 2)]
        last = max(hist.index(r) for r in req)
        a(f"s_waitcnt vmcnt({4 * (len(hist) - 1 - last)})")
        a("s_barrier")

    xl(0); wl(0); wl(1); xl(1); wl(2)
    stamp(a, 2)
    need(0)
    stamp(a, 3)
    wl(3); xl(2); wl(4)
    for ks in range(19):
        need(ks + 1)
        if ks % 2 == 1 and (ks - 1) // 2 + K1_NSX < 10:
            xl((ks - 1) // 2 + K1_NSX)
        if ks + K1_NSW < 20:
            wl(ks + K1_NSW)
    a("s_barrier")
    stamp(a, 4); stamp(a, 5); stamp(a, 6); stamp_rt(a, 7)
    stamp_flush(a, 0, SR, sWave, 8, 2)
    a("s_endpgm")

    a.label("K1_COMPUTE")
    ACC = 32
    WFR = [0, 32]
    XFR = [64, 80]
    vTr0, vTr, vXr0, vXr, vSt = 8, 9, 10, 12, 14
    sRd, sXr, sIt, sSt, sSeg = 32, 33, 34, 36, 35
    a(f"""
    v_and_b32 v5, 1, v4
    v_lshrrev_b32 v6, 2, v3
    v_lshl_add_u32 v5, v5, 2, v6
    v_mul_u32_u24 v5, 1056, v5
    v_lshrrev_b32 v6, 1, v4
    v_lshlrev_b32 v6, 9, v6
    v_and_b32 v7, 3, v3
    v_lshlrev_b32 v7, 3, v7
    v_add3_u32 v5, v5, v6, v7
    s_mul_i32 s3, s12, 8448
    v_add_u32 v{vTr0}, s3, v5
    v_and_b32 v5, 3, v3
    v_bfe_u32 v6, v3, 2, 1
    v_lshl_or_b32 v5, v6, 3, v5
    v_bfe_u32 v6, v3, 3, 1
    v_lshl_or_b32 v5, v6, 2, v5
    v_and_b32 v6, 7, v5
    v_xor_b32 v6, v6, v4
    v_lshlrev_b32 v6, 4, v6
    v_lshl_add_u32 v5, v5, 7, v6
    s_lshr_b32 s13, s{sWave}, 1
    s_lshl_b32 s3, s13, 13
    s_add_u32 s3, s3, {K1_XB}
    v_add_u32 v{vXr0}, s3, v5
    v_xor_b32 v{vXr0+1}, 64, v{vXr0}
    v_mov_b32 v{vXr}, v{vXr0}
    v_mov_b32 v{vXr+1}, v{vXr0+1}
    v_mov_b32 v{vTr}, v{vTr0}
    s_mov_b32 s{sRd}, {K1_WST}
    s_mov_b32 s{sXr}, 16384
    s_mov_b32 s{sIt}, 0
    s_mul_i32 s{sSeg}, s17, 52
    s_lshr_b32 s{sSeg}, s{sSeg}, 8
    s_mul_i32 s3, s{sSeg}, 5
    s_sub_u32 s17, s17, s3
    s_mul_i32 s3, s18, 3
    s_add_u32 s3, s3, s{sSeg}
    s_mul_i32 s{sSt}, s3, {SEGB}
    s_lshl_b32 s3, s14, 4
    s_lshl_b32 s16, s15, 1
    s_add_u32 s3, s3, s16
    s_add_u32 s3, s3, s13
    s_mul_i32 s3, s3, {2*TB}
    s_add_u32 s{sSt}, s{sSt}, s3
    s_waitcnt lgkmcnt(0)
    """)
    srd(a, SR, 10, WS_BYTES)
    for i in range(128):
        a(f"v_mov_b32 v{ACC+i}, 0")

    def reads(fset, kk):
        L = [f"ds_read_b128 {ar(XFR[fset]+4*mt,4)}, v{vXr+kk} offset:{2048*mt}" for mt in range(4)]
        for t in range(8):
            for s in range(2):
                L.append(f"ds_read_b64_tr_b16 {ar(WFR[fset]+4*t+2*s,2)}, v{vTr} offset:{s*256 + t*32}")
        return L

    stamp(a, 2)
    a("s_barrier")
    stamp(a, 3)
    for l in reads(0, 0):
        a(l)
    a(f"s_cmp_eq_u32 s{sSeg}, 2")
    a("s_cbranch_scc1 K1_LOOP_N")
    for ori in ("T", "N"):
        a.raw(".p2align 3")
        a.label(f"K1_LOOP_{ori}")
        for s in range(2):
            fs = s
            rd = reads(1 - fs, 1 - s)
            mf = []
            for t in range(8):
                for mt in range(4):
                    acc = vr(ACC + (t * 4 + mt) * 4, 4)
                    w = ar(WFR[fs] + 4 * t, 4)
                    x = ar(XFR[fs] + 4 * mt, 4)
                    if ori == "T":
                        mf.append(f"v_mfma_f32_16x16x32_bf16 {acc}, {w}, {x}, {acc}")
                    else:
                        mf.append(f"v_mfma_f32_16x16x32_bf16 {acc}, {x}, {w}, {acc}")
            a(f"v_add_u32 v{vTr}, s{sRd}, v{vTr0}")
            rest = [f"s_add_u32 s{sRd}, s{sRd}, {K1_WST}",
                    f"s_cmp_ge_u32 s{sRd}, {K1_XB}",
                    f"s_cselect_b32 s{sRd}, 0, s{sRd}"]
            if s == 1:
                a(f"v_add_u32 v{vXr}, s{sXr}, v{vXr0}")
                rest += [f"v_add_u32 v{vXr+1}, s{sXr}, v{vXr0+1}",
                         f"s_add_u32 s{sXr}, s{sXr}, 16384",
                         f"s_cmp_ge_u32 s{sXr}, {K1_NSX*16384}",
                         f"s_cselect_b32 s{sXr}, 0, s{sXr}",
                         f"s_add_u32 s{sIt}, s{sIt}, 1",
                         f"s_cmp_lt_u32 s{sIt}, 10"]
            a("s_waitcnt lgkmcnt(0)")
            a("s_barrier")
            fill = rd + rest
            for i in range(32):
                a(mf[i])
                if i < len(fill):
                    a(fill[i])
        a(f"s_cbranch_scc1 K1_LOOP_{ori}")
        stamp(a, 4)
        if ori == "T":
            a(f"""
            s_lshl_b32 s3, s17, 13
            s_add_u32 s{sSt}, s{sSt}, s3
            s_add_u32 s{sSt+1}, s{sSt}, 4096
            s_add_u32 s{sSt+2}, s{sSt}, {TB}
            s_add_u32 s{sSt+3}, s{sSt+1}, {TB}
            s_cmp_eq_u32 s{sSeg}, 0
            s_cselect_b32 s40, {f32(QSCALE)}, 1.0
            s_mov_b32 s41, s40
            v_lshlrev_b32 v{vSt}, 4, v1
            s_nop 3
            """)
        else:
            a(f"""
            s_lshl_b32 s3, s17, 11
            s_add_u32 s{sSt}, s{sSt}, s3
            s_add_u32 s{sSt+2}, s{sSt}, {TB}
            v_mul_u32_u24 v5, 10240, v4
            v_lshl_add_u32 v{vSt}, v3, 4, v5
            s_nop 7
            """)
        for t in range(8):
            for mp in range(2):
                b0 = ACC + (t * 4 + 2 * mp) * 4
                b1 = b0 + 4
                if ori == "T":
                    for i in range(4):
                        a(f"v_pk_mul_f32 {vr(b0+2*i,2)}, {vr(b0+2*i,2)}, s[40:41]")
                a(f"v_cvt_pk_bf16_f32 v{b0}, v{b0}, v{b0+1}")
                a(f"v_cvt_pk_bf16_f32 v{b0+1}, v{b0+2}, v{b0+3}")
                a(f"v_cvt_pk_bf16_f32 v{b0+2}, v{b1}, v{b1+1}")
                a(f"v_cvt_pk_bf16_f32 v{b0+3}, v{b1+2}, v{b1+3}")
                a("s_nop 1")
                sw = "v_permlane16_swap_b32" if ori == "T" else "v_permlane32_swap_b32"
                a(f"{sw} v{b0}, v{b0+2}")
                a(f"{sw} v{b0+1}, v{b0+3}")
                a("s_nop 0")
                if ori == "T":
                    a(f"buffer_store_dwordx4 {vr(b0,4)}, v{vSt}, {sr(SR,4)}, s{sSt + 2*mp + t//4} offen offset:{(t%4)*1024}{STF}")
                else:
                    a(f"buffer_store_dwordx4 {vr(b0,4)}, v{vSt}, {sr(SR,4)}, s{sSt + 2*mp} offen offset:{t*256}{STF}")
        stamp(a, 5)
        if STAMP: a("s_waitcnt vmcnt(0)")
        stamp(a, 6); stamp_rt(a, 7)
        stamp_flush(a, 0, SR, sWave, 8, 2)
        a("s_endpgm")

    a.label("K1_SIDE")
    SGW, SWO = 32, 36
    a(f"""
    s_load_dwordx2 s[46:47], s[0:1], 16
    s_load_dwordx4 s[12:15], s[0:1], 40
    s_sub_u32 s16, s2, 240
    s_lshl_b32 s16, s16, 3
    s_add_u32 s16, s16, s{sWave}
    v_lshlrev_b32 v2, 2, v1
    v_lshlrev_b32 v5, 4, v1
    v_lshrrev_b32 v3, 3, v1
    v_and_b32 v4, 7, v1
    v_mul_u32_u24 v3, 1280, v3
    v_lshl_add_u32 v3, v4, 4, v3
    v_lshrrev_b32 v4, 4, v1
    v_bfe_u32 v6, v1, 2, 2
    v_lshl_add_u32 v4, v4, 3, v6
    v_and_b32 v6, 3, v1
    v_lshlrev_b32 v6, 3, v6
    v_lshl_add_u32 v6, v4, 7, v6
    s_lshl_b32 s40, s{sWave}, 14
    v_add_u32 v6, s40, v6
    v_mov_b32 v4, 0
    s_waitcnt lgkmcnt(0)
    """)
    srd(a, SX, 4, 2621440)
    srd(a, SR, 10, WS_BYTES)
    srd(a, SGW, 14, 1280)
    a(f"s_mov_b32 s{SWO+2}, 819200")
    a(f"s_mov_b32 s{SWO+3}, 0x00020000")
    for i in range(4):
        a(f"""
        s_add_u32 s41, s16, {128*i}
        s_cmp_ge_u32 s41, 200
        s_cselect_b32 s{SWO}, s12, s46
        s_cselect_b32 s{SWO+1}, s13, s47
        s_cselect_b32 s3, 200, 0
        s_cselect_b32 s{42+i}, {WOF_BR}, 0
        s_add_u32 s{42+i}, s{42+i}, {WOF_OFF}
        s_sub_u32 s3, s41, s3
        s_mul_i32 s17, s3, 6554
        s_lshr_b32 s17, s17, 16
        s_mul_i32 s18, s17, 10
        s_sub_u32 s18, s3, s18
        s_lshl_b32 s3, s17, 10
        s_add_u32 s{42+i}, s{42+i}, s3
        s_mul_i32 s3, s18, {4*20480}
        s_add_u32 s{42+i}, s{42+i}, s3
        s_mul_i32 s17, s17, {32*1280}
        s_lshl_b32 s18, s18, 7
        s_add_u32 s17, s17, s18
        s_cmp_ge_u32 s41, 400
        s_cselect_b32 s{42+i}, 0x7f000000, s{42+i}
        s_cselect_b32 s17, 0x7f000000, s17
        """)
        for q in range(4):
            a(f"s_add_u32 m0, s40, {4096*i + 1024*q}")
            a("s_nop 0")
            a(f"buffer_load_dwordx4 v3, {sr(SWO,4)}, s17 offen lds")
            a(f"s_add_u32 s17, s17, {8*1280}")
    GW, GX = 8, 16
    for i in range(5):
        a(f"buffer_load_dword v{GW+i}, v2, {sr(SGW,4)}, 0 offen offset:{256*i}")
    a(f"""
    s_and_b32 s3, s16, 63
    s_mul_i32 s17, s3, {16*2560}
    s_lshr_b32 s3, s16, 6
    s_mul_i32 s3, s3, 1280
    s_add_u32 s17, s17, s3
    s_lshl_b32 s18, s16, 6
    s_add_u32 s18, s18, {G_OFF}
    """)
    for half in range(2):
        for r in range(8):
            for i in range(5):
                a(f"buffer_load_dword v{GX+5*r+i}, v2, {sr(SX,4)}, s17 offen offset:{256*i}")
            a("s_add_u32 s17, s17, 2560")
        if half == 0:
            a("s_waitcnt vmcnt(45)")
            for i in range(4):
                for nt in range(4):
                    b = 72 + (4 * i + nt) * 4
                    a(f"ds_read_b64_tr_b16 {vr(b,2)}, v6 offset:{4096*i + 32*nt}")
                    a(f"ds_read_b64_tr_b16 {vr(b+2,2)}, v6 offset:{4096*i + 32*nt + 512}")
                a("s_waitcnt lgkmcnt(0)")
            a("s_waitcnt vmcnt(0)")
            for i in range(4):
                for nt in range(4):
                    b = 72 + (4 * i + nt) * 4
                    a(f"buffer_store_dwordx4 {vr(b,4)}, v5, {sr(SR,4)}, s{42+i} offen")
                    a(f"s_add_u32 s{42+i}, s{42+i}, 20480")
        else:
            a("s_waitcnt vmcnt(0)")
        for r in range(8):
            a(f"v_dot2_f32_bf16 v{60+r}, v{GX+5*r}, v{GW}, 0")
        for i in range(1, 5):
            for r in range(8):
                a(f"v_dot2_f32_bf16 v{60+r}, v{GX+5*r+i}, v{GW+i}, v{60+r}")
        a("s_nop 3")
        for sh in ("row_shr:1 row_mask:0xf bank_mask:0xf bound_ctrl:0", "row_shr:2 row_mask:0xf bank_mask:0xf bound_ctrl:0",
                   "row_shr:4 row_mask:0xf bank_mask:0xf bound_ctrl:0", "row_shr:8 row_mask:0xf bank_mask:0xf bound_ctrl:0",
                   "row_bcast:15 row_mask:0xa bank_mask:0xf", "row_bcast:31 row_mask:0xc bank_mask:0xf"):
            for r in range(8):
                a(f"v_add_f32_dpp v{60+r}, v{60+r}, v{60+r} {sh}")
        for r in range(8):
            a(f"v_mul_f32 v{60+r}, {f32(-math.log2(math.e))}, v{60+r}")
        for r in range(8):
            a(f"v_exp_f32 v{60+r}, v{60+r}")
        for r in range(8):
            a(f"v_add_f32 v{60+r}, 1.0, v{60+r}")
        for r in range(8):
            a(f"v_rcp_f32 v{60+r}, v{60+r}")
        a("s_mov_b32 exec_lo, 0")
        a("s_mov_b32 exec_hi, 0x80000000")
        a(f"buffer_store_dwordx4 v[60:63], v4, {sr(SR,4)}, s18 offen offset:{32*half}")
        a(f"buffer_store_dwordx4 v[64:67], v4, {sr(SR,4)}, s18 offen offset:{32*half+16}")
        a("s_mov_b64 exec, -1")
        a("s_nop 1")
    if STAMP:
        a("s_waitcnt vmcnt(0)")
        for i in range(2, 7):
            stamp(a, i)
        stamp_rt(a, 7)
        stamp_flush(a, 0, SR, sWave, 8, 2)
    a.label("K1_END")
    a("s_endpgm")
    return kernel_desc(name, 256, 160, 48)


K2_TILE = 2880
K2_SLOT = 8 * K2_TILE
K2_R = 4
K2_FLAG = K2_SLOT * K2_R + 256
K2_LDS = K2_FLAG + 256


def gen_k2(a):
    name = "attn_kernel"
    kernel_head(a, name)
    SWS = 20
    sWave, sHead, sT = 16, 17, 18
    sDma, sM0, sSlot, sC, sRedo = 24, 25, 26, 27, 28
    sTA, sTAp, sOA, sOB, sTouch = 29, 30, 31, 32, 33
    sTmp = 36
    sPrev = 46
    vK10, vK20, vLV, vK1, vK2, vV, vO = 2, 3, 4, 5, 6, 7, 15
    vt = 8
    Q1, Q2 = 16, 20
    KF1, KF2 = 24, 28
    vD = 22
    vD2 = 30
    vGK1, vGK2 = 31, 112
    vGV = 113
    VF = 32
    P = 40
    NEGM = 48
    SB = [64, 80]
    O = 96
    AQ1, AQ2 = 116, 120
    AK1, AK2 = 124, 128
    AKP1, AKP2 = 132, 136
    AV = 140
    AC = [152, 168]
    NV = 184
    a("s_cmp_ge_u32 s2, 256")
    a("s_cbranch_scc1 K2_END")
    stamp(a, 0); stamp_rt(a, 1)
    a("""
    s_load_dwordx2 s[12:13], s[0:1], 72
    v_lshrrev_b32 v8, 6, v0
    v_and_b32 v1, 63, v0
    s_and_b32 s14, s2, 7
    v_readfirstlane_b32 s16, v8
    s_lshr_b32 s15, s2, 3
    s_lshl_b32 s17, s14, 2
    s_lshr_b32 s3, s15, 3
    s_add_u32 s17, s17, s3
    s_and_b32 s4, s15, 7
    s_lshl_b32 s18, s4, 3
    s_add_u32 s18, s18, s16
    """)
    a(f"""
    v_and_b32 v8, 31, v1
    v_lshrrev_b32 v9, 5, v1
    v_lshlrev_b32 v10, 4, v1
    s_and_b32 s4, s{sHead}, 1
    s_mul_i32 s5, s{sHead}, 5
    s_lshr_b32 s5, s5, 1
    s_lshl_b32 s5, s5, 9
    s_lshl_b32 s6, s4, 9
    s_cmp_eq_u32 s4, 0
    s_cselect_b32 s7, 1024, 8
    v_add_u32 v{vK10}, s6, v10
    v_lshl_add_u32 v{vK20}, v8, 4, s7
    v_add_u32 v{vGK1}, s5, v{vK10}
    v_add_u32 v{vGK2}, s5, v{vK20}
    s_add_u32 s5, s5, {4*SEGB}
    v_add_u32 v{vD}, s5, v10
    s_mul_i32 s6, s{sHead}, 320
    s_add_u32 s7, s6, {5*SEGB - 1024 - 512}
    v_subrev_u32 v11, 32, v1
    v_cmp_le_u32 s[{sTmp}:{sTmp+1}], 53, v1
    v_mov_b32 v12, {10240-336}
    v_add_u32 v13, s7, v10
    v_cndmask_b32 v12, 0, v12, s[{sTmp}:{sTmp+1}]
    v_add_u32 v13, v13, v12
    v_cmp_le_u32 s[{sTmp}:{sTmp+1}], 32, v1
    v_add_u32 v11, 32, v1
    v_mul_u32_u24 v11, 49, v11
    v_cndmask_b32 v{vD+1}, v{vD}, v13, s[{sTmp}:{sTmp+1}]
    v_lshrrev_b32 v11, 10, v11
    v_mul_u32_u24 v11, {10240-336}, v11
    s_add_u32 s7, s6, {5*SEGB - 2048 + 512}
    v_add3_u32 v{vD2}, v11, v10, s7
    s_mul_i32 s{sTA}, s{sT}, {TB}
    s_add_u32 s8, s{sTA}, {3*SEGB}
    s_waitcnt lgkmcnt(0)
    """)
    srd(a, SWS, 12, WS_BYTES)
    a(f"buffer_load_dwordx4 {vr(Q1,4)}, v{vGK1}, {sr(SWS,4)}, s8 offen")
    a(f"buffer_load_dwordx2 {vr(Q2,2)}, v{vGK2}, {sr(SWS,4)}, s8 offen")

    m1 = ((1 << 64) - 1) & ~(1 << 52)
    m2 = ((1 << 52) - 1) & ~(1 << 9) & ~(1 << 30) & ~(1 << 51)

    def dma_chunk():
        return [
            f"s_mov_b32 m0, s{sM0}",
            f"s_add_u32 s{sM0}, s{sM0}, {K2_SLOT}",
            f"buffer_load_dwordx4 v{vD}, {sr(SWS,4)}, s{sDma} offen lds",
            f"s_mov_b32 exec_hi, 0x{m1 >> 32:08x}",
            f"buffer_load_dwordx4 v{vD+1}, {sr(SWS,4)}, s{sDma} offen offset:1024 lds",
            f"s_mov_b32 exec_lo, 0x{m2 & 0xffffffff:08x}",
            f"s_mov_b32 exec_hi, 0x{m2 >> 32:08x}",
            f"buffer_load_dwordx4 v{vD2}, {sr(SWS,4)}, s{sDma} offen offset:2048 lds",
            "s_mov_b64 exec, -1",
            f"s_add_u32 s{sDma}, s{sDma}, {8*TB}",
            f"s_cmp_ge_u32 s{sDma}, {64*TB}",
            f"s_cselect_b32 s{sDma}, 0x40000000, s{sDma}",
            f"s_cmp_ge_u32 s{sM0}, {K2_SLOT*K2_R}",
            f"s_cselect_b32 s{sTmp}, {K2_SLOT*K2_R}, 0",
            f"s_sub_u32 s{sM0}, s{sM0}, s{sTmp}",
        ]

    def dma_init():
        a(f"s_mul_i32 s{sDma}, s{sWave}, {TB}")
        a(f"s_mul_i32 s{sM0}, s{sWave}, {K2_TILE}")
        for c in range(3):
            for l in dma_chunk():
                a(l)

    a(f"s_mov_b32 s{sRedo}, 0")
    dma_init()
    a(f"""
    v_mul_u32_u24 v11, 336, v9
    v_lshl_add_u32 v{vLV}, v8, 4, v11
    v_add_u32 v{vLV}, 1536, v{vLV}
    v_bfe_u32 v11, v1, 2, 2
    v_mul_u32_u24 v11, {K2_SLOT}, v11
    v_and_b32 v12, 3, v1
    v_mul_u32_u24 v12, 336, v12
    s_mul_i32 s3, s{sWave}, {K2_TILE}
    v_add3_u32 v11, v11, v12, s3
    """)
    for i in range(12):
        a(f"v_mov_b32 v{AV+i}, 0x3f803f80")
    a(f"""
    ds_write_b128 v11, {vr(AV,4)} offset:{1536+320}
    v_mov_b32 v11, {K2_FLAG}
    v_mov_b32 v12, 0
    ds_write_b32 v11, v12
    v_mul_u32_u24 v11, 10240, v9
    v_lshl_add_u32 v11, v8, 4, v11
    v_add_u32 v{vGV}, s6, v11
    s_and_b32 s14, s{sT}, 31
    s_cmp_lg_u32 s14, 0
    s_cselect_b32 s14, {TB}, 0
    s_cselect_b64 s[{sPrev}:{sPrev+1}], -1, 0
    s_sub_u32 s{sTAp}, s{sTA}, s14
    s_lshl_b32 s{sTouch}, s15, 3
    s_add_u32 s{sTouch}, s{sTouch}, s{sWave}
    s_mul_i32 s{sTouch}, s{sTouch}, 6400
    s_add_u32 s{sTouch}, s{sTouch}, {WOF_OFF}
    """)
    a(f"""
    v_and_b32 v10, 3, v8
    v_bfe_u32 v11, v8, 2, 1
    v_lshl_or_b32 v10, v11, 3, v10
    v_bfe_u32 v11, v8, 3, 1
    v_lshl_or_b32 v10, v11, 2, v10
    v_lshlrev_b32 v10, 4, v10
    v_lshrrev_b32 v11, 4, v8
    v_mul_u32_u24 v11, 20480, v11
    s_mul_i32 s3, s{sHead}, 5
    v_add_u32 v12, s3, v9
    v_lshrrev_b32 v13, 1, v12
    v_lshlrev_b32 v13, 8, v13
    v_and_b32 v12, 1, v12
    v_lshlrev_b32 v12, 3, v12
    v_add3_u32 v10, v10, v11, v12
    v_add_u32 v{vO}, v10, v13
    s_add_u32 s{sOA}, s{sTA}, {O_OFF}
    s_add_u32 s{sOB}, s{sOA}, {O_BR}
    """)
    a(f"v_mov_b32 v{vt}, {f32(-1e30)}")

    def lanemask(fn):
        m = 0
        for l in range(64):
            if fn(l):
                m |= 1 << l
        return m
    k = 0
    for r in range(16):
        m = lanemask(lambda l: 0 <= pi5(l % 32) - (16 * (r // 8) + 8 * (l // 32) + r % 8) <= 7)
        sp = sTmp + 2 + 2 * (k % 3); k += 1
        a(f"s_mov_b32 s{sp}, 0x{m & 0xffffffff:08x}")
        a(f"s_mov_b32 s{sp+1}, 0x{m >> 32:08x}")
        a(f"v_cndmask_b32 v{AC[0]+r}, v{vt}, 0, s[{sp}:{sp+1}]")
    for r in range(8, 16):
        m = lanemask(lambda l: pi5(l % 32) + 32 - (16 * (r // 8) + 8 * (l // 32) + r % 8) <= 7)
        sp = sTmp + 2 + 2 * (k % 3); k += 1
        a(f"s_and_b32 s{sp}, s{sPrev}, 0x{m & 0xffffffff:08x}")
        a(f"s_and_b32 s{sp+1}, s{sPrev}, 0x{m >> 32:08x}")
        a(f"v_cndmask_b32 v{AC[1]+r}, v{vt}, 0, s[{sp}:{sp+1}]")
    for r in range(8):
        a(f"v_mov_b32 v{AC[1]+r}, 0")

    def maxtree(regs, dst):
        a(f"v_max3_f32 v{dst}, v{regs[0]}, v{regs[1]}, v{regs[2]}")
        i = 3
        while i + 1 < len(regs):
            a(f"v_max3_f32 v{dst}, v{dst}, v{regs[i]}, v{regs[i+1]}")
            i += 2
        if i < len(regs):
            a(f"v_max_f32 v{dst}, v{dst}, v{regs[i]}")
        a(f"v_mov_b32 v{dst+1}, v{dst}")
        a("s_nop 1")
        a(f"v_permlane32_swap_b32 v{dst}, v{dst+1}")
        a("s_nop 1")
        a(f"v_max_f32 v{dst}, v{dst}, v{dst+1}")

    def get_l():
        a(f"""
        v_mov_b32 v{vt}, v{O+8}
        v_mov_b32 v{vt+1}, v{O+8}
        s_nop 1
        v_permlane32_swap_b32 v{vt}, v{vt+1}
        s_nop 1
        """)

    def store_o(so):
        a(f"v_rcp_f32 v{vt}, v{vt+1}")
        a("s_nop 0")
        for r in range(12):
            a(f"v_mul_f32 v{O+r}, v{O+r}, v{vt}")
        for i in range(6):
            a(f"v_cvt_pk_bf16_f32 v{P+i}, v{O+2*i}, v{O+2*i+1}")
        a(f"buffer_store_dwordx2 {vr(P,2)}, v{vO}, {sr(SWS,4)}, s{so} offen")
        a(f"buffer_store_dwordx2 {vr(P+2,2)}, v{vO}, {sr(SWS,4)}, s{so} offen offset:256")
        a("s_mov_b32 exec_hi, 0")
        a(f"buffer_store_dwordx2 {vr(P+4,2)}, v{vO}, {sr(SWS,4)}, s{so} offen offset:512")
        a("s_mov_b32 exec_hi, -1")

    def kreads(tile):
        o = tile * K2_TILE
        return [f"ds_read_b128 {vr(KF1,4)}, v{vK1} offset:{o}",
                f"ds_read_b64 {vr(KF2,2)}, v{vK2} offset:{o}"]

    def vread(tile, j):
        return f"ds_read_b128 {vr(VF+4*j,4)}, v{vV} offset:{tile * K2_TILE + 672*j}"

    def qk(sb, c):
        return [f"v_mfma_f32_32x32x16_bf16 {vr(sb,16)}, {vr(KF1,4)}, {vr(Q1,4)}, {c}",
                f"v_mfma_f32_32x32x8_bf16 {vr(sb,16)}, {vr(KF2,2)}, {vr(Q2,2)}, {vr(sb,16)}"]

    stamp(a, 2)
    a.label("K2_B_START")
    for r in range(16):
        a(f"v_mov_b32 v{O+r}, 0")
    for r in range(4):
        a(f"v_mov_b32 v{P+4+r}, 0")
        a(f"v_mov_b32 v{VF+4+r}, 0")
    a(f"""
    v_mov_b32 v{vK1}, v{vK10}
    v_mov_b32 v{vK2}, v{vK20}
    v_mov_b32 v{vV}, v{vLV}
    s_mov_b32 s{sSlot}, {K2_SLOT}
    s_mov_b32 s{sC}, 0
    s_waitcnt vmcnt(6) lgkmcnt(0)
    s_barrier
    """)
    stamp(a, 3)
    for l in kreads(0):
        a(l)
    a(f"""
    s_mov_b32 exec_lo, 0
    v_mov_b32 v{Q2}, 0
    v_mov_b32 v{Q2+1}, 0
    s_mov_b32 exec_lo, -1
    s_cmp_lg_u32 s{sRedo}, 0
    s_cbranch_scc1 K2_HAVE_M
    """)
    a("s_waitcnt lgkmcnt(0)")
    for l in qk(SB[0], "0"):
        a(l)
    a("s_nop 15")
    maxtree([SB[0] + r for r in range(16)], vt)
    for r in range(16):
        a(f"v_sub_f32 v{NEGM+r}, 0, v{vt}")
    a.label("K2_HAVE_M")
    a("s_waitcnt lgkmcnt(0)")
    a("s_nop 1")
    for l in qk(SB[0], vr(NEGM, 16)):
        a(l)
    for l in kreads(1):
        a(l)
    a(vread(0, 0))
    a("s_nop 9")
    stamp(a, 4)
    a.raw(".p2align 3")
    a.label("K2_LOOP")
    prio = {0: 3, 3: 2, 5: 1, 7: 0} if 'k2_noprio' not in EXP else {}
    for i in range(8):
        cur, nxt = SB[i % 2], SB[1 - i % 2]
        e = [f"v_exp_f32 v{cur+r}, v{cur+r}" for r in range(16)]
        c = [f"v_cvt_pk_bf16_f32 v{P+j}, v{cur+2*j}, v{cur+2*j+1}" for j in range(8)]
        q = qk(nxt, vr(NEGM, 16))
        pv = [f"v_mfma_f32_32x32x16_bf16 {vr(O,16)}, {vr(VF+4*j,4)}, {vr(P+4*j,4)}, {vr(O,16)}" for j in range(2)]
        kr = kreads((i + 2) % 8)
        if i == 6:
            a("s_waitcnt vmcnt(3)")
            a("s_barrier")
            a(f"s_cmp_eq_u32 s{sC}, 0")
            a("s_cbranch_scc1 K2_SIDE0")
            a(f"s_cmp_eq_u32 s{sC}, 6")
            a("s_cbranch_scc1 K2_SIDE6")
            a.label("K2_SIDE_RET")
            for l in dma_chunk():
                a(l)
            a(f"v_add_u32 v{vK1}, s{sSlot}, v{vK10}")
            a(f"v_add_u32 v{vK2}, s{sSlot}, v{vK20}")
        if (i - 6) % 8 in prio:
            a(f"s_setprio {prio[(i - 6) % 8]}")
        a(e[0]); a(e[1])
        a(pv[1])
        a(vread(i, 1))
        a(e[2]); a(e[3]); a(c[0]); a(e[4]); a(c[1])
        a("s_waitcnt lgkmcnt(1)")
        a(q[0])
        a(e[5]); a(e[6]); a(e[7]); a(c[2]); a(e[8]); a(c[3])
        a(q[1])
        for l in kr:
            a(l)
        a(e[9]); a(e[10]); a(e[11]); a(c[4]); a(e[12]); a(c[5])
        if i == 7:
            a(f"v_add_u32 v{vV}, s{sSlot}, v{vLV}")
        a(pv[0])
        a(vread((i + 1) % 8, 0))
        a(e[13]); a(e[14]); a(e[15]); a(c[6])
        a("s_waitcnt lgkmcnt(3)")
        a(c[7])
        if i == 7:
            a(f"s_add_u32 s{sSlot}, s{sSlot}, {K2_SLOT}")
            a(f"s_cmp_ge_u32 s{sSlot}, {K2_SLOT*K2_R}")
            a(f"s_cselect_b32 s{sSlot}, 0, s{sSlot}")
    a(f"""
    s_add_u32 s{sC}, s{sC}, 1
    s_cmp_lt_u32 s{sC}, 8
    s_cbranch_scc1 K2_LOOP
    v_mfma_f32_32x32x16_bf16 {vr(O,16)}, {vr(VF+4,4)}, {vr(P+4,4)}, {vr(O,16)}
    """)
    stamp(a, 5)
    a(f"s_cmp_lg_u32 s{sRedo}, 0")
    a("s_cbranch_scc1 K2_SKIP_AQK")
    a(f"""
    s_mov_b32 exec_lo, 0
    v_mov_b32 v{AQ2}, 0
    v_mov_b32 v{AQ2+1}, 0
    s_mov_b32 exec_lo, -1
    s_nop 1
    v_mfma_f32_32x32x16_bf16 {vr(AC[0],16)}, {vr(AK1,4)}, {vr(AQ1,4)}, {vr(AC[0],16)}
    v_mfma_f32_32x32x8_bf16 {vr(AC[0],16)}, {vr(AK2,2)}, {vr(AQ2,2)}, {vr(AC[0],16)}
    v_mfma_f32_32x32x16_bf16 {vr(AC[1],16)}, {vr(AKP1,4)}, {vr(AQ1,4)}, {vr(AC[1],16)}
    v_mfma_f32_32x32x8_bf16 {vr(AC[1],16)}, {vr(AKP2,2)}, {vr(AQ2,2)}, {vr(AC[1],16)}
    """)
    a.label("K2_SKIP_AQK")
    a("s_nop 11")
    get_l()
    a(f"v_mov_b32 v{vt+2}, v{vt+1}")
    for r in range(9):
        a(f"v_fma_f32 v{vt+2}, v{O+r}, 0, v{vt+2}")
    a("s_mov_b32 exec_hi, 0")
    for r in range(9, 12):
        a(f"v_fma_f32 v{vt+2}, v{O+r}, 0, v{vt+2}")
    a(f"""
    s_mov_b32 exec_hi, -1
    s_mov_b32 s3, {f32(2.0**100)}
    v_cmp_nlt_f32 s[{sTmp}:{sTmp+1}], v{vt+2}, s3
    v_mov_b32 v{vt+3}, {K2_FLAG}
    v_mov_b32 v{vt+4}, 1
    s_nop 1
    s_cmp_eq_u64 s[{sTmp}:{sTmp+1}], 0
    s_cbranch_scc1 K2_NOFLAG
    ds_write_b32 v{vt+3}, v{vt+4}
    """)
    a.label("K2_NOFLAG")
    a(f"""
    s_waitcnt vmcnt(0) lgkmcnt(0)
    s_barrier
    ds_read_b32 v{vt+4}, v{vt+3}
    s_waitcnt lgkmcnt(0)
    v_readfirstlane_b32 s3, v{vt+4}
    s_nop 3
    s_cmp_gt_u32 s3, s{sRedo}
    s_cbranch_scc1 K2_FALLBACK
    """)
    store_o(sOB)
    aregs = [AC[0] + r for r in range(16)] + [AC[1] + r for r in range(8, 16)]
    maxtree(aregs, vt)
    for r in aregs:
        a(f"v_sub_f32 v{r}, v{r}, v{vt}")
    for r in aregs:
        a(f"v_exp_f32 v{r}, v{r}")
    a("s_nop 0")
    AP = NEGM
    for i in range(12):
        a(f"v_cvt_pk_bf16_f32 v{AP+i}, v{aregs[2*i]}, v{aregs[2*i+1]}")
    a(f"""
    s_nop 1
    v_mfma_f32_32x32x16_bf16 {vr(O,16)}, {vr(AV,4)}, {vr(AP,4)}, 0
    v_mfma_f32_32x32x16_bf16 {vr(O,16)}, {vr(AV+4,4)}, {vr(AP+4,4)}, {vr(O,16)}
    v_mfma_f32_32x32x16_bf16 {vr(O,16)}, {vr(AV+8,4)}, {vr(AP+8,4)}, {vr(O,16)}
    s_nop 15
    """)
    get_l()
    store_o(sOA)
    if STAMP: a("s_waitcnt vmcnt(0)")
    stamp(a, 6); stamp_rt(a, 7)
    stamp_flush(a, 1, SWS, sWave, 8, 8)
    a.label("K2_END")
    a("s_endpgm")

    a.label("K2_SIDE0")
    a(f"s_add_u32 s3, s{sTA}, {SEGB}")
    a(f"s_add_u32 s4, s{sTAp}, {SEGB}")
    for (r1, r2, so) in ((AQ1, AQ2, sTA), (AK1, AK2, 3), (AKP1, AKP2, 4)):
        a(f"buffer_load_dwordx4 {vr(r1,4)}, v{vGK1}, {sr(SWS,4)}, s{so} offen")
        a(f"buffer_load_dwordx2 {vr(r2,2)}, v{vGK2}, {sr(SWS,4)}, s{so} offen")
    a(f"""
    s_add_u32 s3, s{sTA}, {2*SEGB}
    s_add_u32 s4, s3, 20480
    s_add_u32 s5, s{sTAp}, {2*SEGB+20480}
    s_mov_b32 exec_lo, 0xffefffff
    s_mov_b32 exec_hi, 0xffefffff
    buffer_load_dwordx4 {vr(AV,4)}, v{vGV}, {sr(SWS,4)}, s3 offen
    buffer_load_dwordx4 {vr(AV+4,4)}, v{vGV}, {sr(SWS,4)}, s4 offen
    buffer_load_dwordx4 {vr(AV+8,4)}, v{vGV}, {sr(SWS,4)}, s5 offen
    s_mov_b64 exec, -1
    s_branch K2_SIDE_RET
    """)
    a.label("K2_SIDE6")
    a(f"""
    v_lshlrev_b32 v{vt}, 7, v1
    s_mov_b32 exec_hi, 0x3ffff
    buffer_load_dword v{vt+1}, v{vt}, {sr(SWS,4)}, s{sTouch} offen
    s_mov_b32 exec_hi, -1
    s_branch K2_SIDE_RET
    """)
    a.label("K2_FALLBACK")
    a(f"""
    s_mov_b32 s{sRedo}, 1
    s_mov_b32 s{sC}, {4*SEGB}
    v_mov_b32 v{vt+2}, 0xff800000
    """)
    a.label("K2_MAXLOOP")
    a(f"""
    buffer_load_dwordx4 {vr(KF1,4)}, v{vGK1}, {sr(SWS,4)}, s{sC} offen
    buffer_load_dwordx2 {vr(KF2,2)}, v{vGK2}, {sr(SWS,4)}, s{sC} offen
    s_waitcnt vmcnt(0)
    """)
    for l in qk(SB[0], "0"):
        a(l)
    a("s_nop 15")
    for r in range(0, 16, 2):
        a(f"v_max3_f32 v{vt+2}, v{vt+2}, v{SB[0]+r}, v{SB[0]+r+1}")
    a(f"""
    s_add_u32 s{sC}, s{sC}, {TB}
    s_cmp_lt_u32 s{sC}, {5*SEGB}
    s_cbranch_scc1 K2_MAXLOOP
    v_mov_b32 v{vt+3}, v{vt+2}
    s_nop 1
    v_permlane32_swap_b32 v{vt+2}, v{vt+3}
    s_nop 1
    v_max_f32 v{vt+2}, v{vt+2}, v{vt+3}
    """)
    for r in range(16):
        a(f"v_sub_f32 v{NEGM+r}, 0, v{vt+2}")
    dma_init()
    a("s_branch K2_B_START")
    return kernel_desc(name, NV, NV, 48)


K3_LDS = 4 * 4 * 5 * 1024


def gen_k3(a):
    name = "proj_kernel"
    kernel_head(a, name)
    SWS, SOUT = 20, 24
    sWave, sMb, sNb = 16, 17, 18
    sO, sW = 28, 29
    vJ = 2
    vG, vOut, vL16 = 7, 8, 2
    ACC = 16
    RD = 96
    NSET = 6
    a("s_cmp_ge_u32 s2, 256")
    a("s_cbranch_scc1 K3_END")
    stamp(a, 0); stamp_rt(a, 1)
    a("""
    s_load_dwordx2 s[4:5], s[0:1], 56
    s_load_dwordx2 s[6:7], s[0:1], 72
    v_lshrrev_b32 v9, 6, v0
    v_and_b32 v1, 63, v0
    s_and_b32 s14, s2, 7
    v_readfirstlane_b32 s16, v9
    s_lshr_b32 s15, s2, 3
    s_lshl_b32 s17, s14, 2
    s_and_b32 s3, s15, 3
    s_add_u32 s17, s17, s3
    s_lshr_b32 s18, s15, 2
    v_lshlrev_b32 v2, 4, v1
    """)
    for j in range(1, 5):
        a(f"v_add_u32 v{vJ+j}, {20480*j}, v{vJ}")
    a(f"""
    s_lshr_b32 s3, s{sWave}, 1
    s_and_b32 s14, s{sWave}, 1
    s_mul_i32 s14, s14, 10240
    s_mul_i32 s{sO}, s3, {O_BR}
    s_mul_i32 s15, s{sMb}, {4*20480}
    s_add_u32 s{sO}, s{sO}, s15
    s_add_u32 s{sO}, s{sO}, s14
    s_add_u32 s{sO}, s{sO}, {O_OFF}
    s_mul_i32 s{sW}, s3, {WOF_BR}
    s_mul_i32 s15, s{sNb}, {5*20480}
    s_add_u32 s{sW}, s{sW}, s15
    s_add_u32 s{sW}, s{sW}, s14
    s_add_u32 s{sW}, s{sW}, {WOF_OFF}
    s_waitcnt lgkmcnt(0)
    """)
    srd(a, SWS, 6, WS_BYTES)
    srd(a, SOUT, 4, 2621440)

    def loads(i):
        base = (i % NSET) * 36
        L = []
        if i in (4, 8):
            L.append(f"s_add_u32 s{sO}, s{sO}, 4096")
            L.append(f"s_add_u32 s{sW}, s{sW}, 4096")
        for nt in range(5):
            L.append(f"buffer_load_dwordx4 {ar(base+16+4*nt,4)}, v{vJ+nt}, {sr(SWS,4)}, s{sW} offen offset:{(i%4)*1024}")
        for mt in range(4):
            L.append(f"buffer_load_dwordx4 {ar(base+4*mt,4)}, v{vJ+mt}, {sr(SWS,4)}, s{sO} offen offset:{(i%4)*1024}")
        return L

    a(f"""
    v_and_b32 v9, 15, v1
    v_lshlrev_b32 v10, 2, v9
    s_lshl_b32 s3, s{sMb}, 2
    s_add_u32 s3, s3, s{sWave}
    s_lshl_b32 s14, s3, 6
    s_add_u32 s14, s14, {G_OFF}
    buffer_load_dword v{vG}, v10, {sr(SWS,4)}, s14 offen
    """)
    for i in range(NSET):
        for l in loads(i):
            a(l)
    a(f"""
    v_lshrrev_b32 v11, 4, v1
    v_mul_u32_u24 v12, 2560, v9
    v_and_b32 v13, 1, v11
    v_lshlrev_b32 v13, 5, v13
    v_lshrrev_b32 v14, 1, v11
    v_lshlrev_b32 v14, 4, v14
    v_add3_u32 v{vOut}, v12, v13, v14
    v_lshl_add_u32 v9, v11, 3, v12
    s_and_b32 s14, s3, 63
    s_mul_i32 s14, s14, {16*2560}
    s_lshr_b32 s15, s3, 6
    s_mul_i32 s15, s15, 1280
    s_add_u32 s30, s14, s15
    s_mul_i32 s15, s{sNb}, 160
    s_add_u32 s30, s30, s15
    """)
    issued = NSET
    for i in range(10):
        base = (i % NSET) * 36
        if i == 0: stamp(a, 2)
        a(f"s_waitcnt vmcnt({9*(issued-1-i)})")
        if i == 0: stamp(a, 3)
        for mt in range(4):
            for nt in range(5):
                acc = vr(ACC + (mt * 5 + nt) * 4, 4)
                c = "0" if i == 0 else acc
                a(f"v_mfma_f32_16x16x32_bf16 {acc}, {ar(base+16+4*nt,4)}, {ar(base+4*mt,4)}, {c}")
        if issued < 10:
            for l in loads(issued):
                a(l)
            issued += 1
    a("s_nop 7")
    stamp(a, 4)
    a(f"""
    s_mul_i32 s3, s{sWave}, 20480
    v_add_u32 v10, s3, v{vL16}
    s_mul_i32 s3, s{sWave}, 5120
    v_add_u32 v11, s3, v{vL16}
    """)
    for mt in range(4):
        a(f"s_cmp_eq_u32 s{sWave}, {mt}")
        a(f"s_cbranch_scc1 K3_SKIPW{mt}")
        for nt in range(5):
            a(f"ds_write_b128 v10, {vr(ACC+(mt*5+nt)*4,4)} offset:{(mt*5+nt)*1024}")
        a(f"s_branch K3_DONEW{mt}")
        a.label(f"K3_SKIPW{mt}")
        if mt != 0:
            for i in range(20):
                a(f"v_mov_b32 v{ACC+i}, v{ACC+mt*20+i}")
        a.label(f"K3_DONEW{mt}")
    a("s_waitcnt lgkmcnt(0)")
    a("s_barrier")
    for k, x in enumerate((1, 2, 3)):
        a(f"s_xor_b32 s3, s{sWave}, {x}")
        a(f"s_mul_i32 s3, s3, 20480")
        a(f"v_add_u32 v{12+k}, s3, v11")
    for k in range(3):
        for nt in range(5):
            a(f"ds_read_b128 {vr(RD+k*20+nt*4,4)}, v{12+k} offset:{nt*1024}")
    a(f"""
    v_sub_f32 v10, 1.0, v{vG}
    s_cmp_lt_u32 s{sWave}, 2
    s_cselect_b64 s[32:33], -1, 0
    v_cndmask_b32 v11, v10, v{vG}, s[32:33]
    v_cndmask_b32 v10, v{vG}, v10, s[32:33]
    s_waitcnt lgkmcnt(0)
    """)
    for i in range(20):
        a(f"v_add_f32 v{ACC+i}, v{ACC+i}, v{RD+i}")
        a(f"v_add_f32 v{RD+20+i}, v{RD+20+i}, v{RD+40+i}")
        a(f"v_mul_f32 v{ACC+i}, v{ACC+i}, v11")
        a(f"v_fma_f32 v{ACC+i}, v{RD+20+i}, v10, v{ACC+i}")
    for pr in range(2):
        b0 = ACC + pr * 8
        b1 = b0 + 4
        a(f"v_cvt_pk_bf16_f32 v{b0}, v{b0}, v{b0+1}")
        a(f"v_cvt_pk_bf16_f32 v{b0+1}, v{b0+2}, v{b0+3}")
        a(f"v_cvt_pk_bf16_f32 v{b0+2}, v{b1}, v{b1+1}")
        a(f"v_cvt_pk_bf16_f32 v{b0+3}, v{b1+2}, v{b1+3}")
        a("s_nop 1")
        a(f"v_permlane16_swap_b32 v{b0}, v{b0+2}")
        a(f"v_permlane16_swap_b32 v{b0+1}, v{b0+3}")
        a("s_nop 0")
        a(f"buffer_store_dwordx4 {vr(b0,4)}, v{vOut}, {sr(SOUT,4)}, s30 offen offset:{pr*64}")
    b0 = ACC + 16
    a(f"v_cvt_pk_bf16_f32 v{b0}, v{b0}, v{b0+1}")
    a(f"v_cvt_pk_bf16_f32 v{b0+1}, v{b0+2}, v{b0+3}")
    a(f"buffer_store_dwordx2 {vr(b0,2)}, v9, {sr(SOUT,4)}, s30 offen offset:128")
    stamp(a, 5)
    if STAMP: a("s_waitcnt vmcnt(0)")
    stamp(a, 6); stamp_rt(a, 7)
    stamp_flush(a, 2, SWS, sWave, 8, 10)
    a.label("K3_END")
    a("s_endpgm")
    return kernel_desc(name, 160 + NSET * 36, 160, 40)


def main():
    global STAMP
    if "--stamp" in sys.argv:
        STAMP = True
        sys.argv.remove("--stamp")
    ref = open(OUT + ".ref").read().split("\n")
    head = [l for l in ref if l.startswith(";") and "@launch" not in l]
    a = Asm()
    for l in head:
        a.raw(l)
    a.raw(f"; @launch kernel=qkv_kernel grid=(256,1,1) block=(512,1,1) lds={K1_LDS}")
    a.raw(f"; @launch kernel=attn_kernel grid=(256,1,1) block=(512,1,1) lds={K2_LDS}")
    a.raw(f"; @launch kernel=proj_kernel grid=(256,1,1) block=(256,1,1) lds={K3_LDS}")
    a.raw('.amdgcn_target "amdgcn-amd-amdhsa--gfx950"')
    a.raw(".text")
    d = [gen_k1(a), gen_k2(a), gen_k3(a)]
    a.raw('.section .rodata,"a"')
    for x in d:
        a.raw(".p2align 6")
        a.raw(x.rstrip("\n"))
    out = sys.argv[1] if len(sys.argv) > 1 else OUT
    open(out, "w").write(a.text())
    print("wrote", out, len(a.L), "lines")


if __name__ == "__main__":
    main()
```

```python
import sys, math, struct, os
EXP = os.environ.get('EXP', '').split(',')

NAME = "gated_mix__sliding_local_dilated__mha_block__prompt"
OUT = f"cdna_kernels/{NAME}.s"

SEGB = 2621440
TB = 40960
O_OFF = 16 << 20
O_BR = 2621440
WOF_OFF = 24 << 20
WOF_BR = 819200
G_OFF = 28 << 20
WS_BYTES = 32 << 20
QSCALE = (20 ** -0.5) * math.log2(math.e)


def f32(x):
    return "0x%08x" % struct.unpack("<I", struct.pack("<f", x))[0]


def pi5(i):
    return (i & ~12) | ((i & 4) << 1) | ((i & 8) >> 1)


class Asm:
    def __init__(self):
        self.L = []

    def __call__(self, s):
        for l in s.strip("\n").split("\n"):
            self.L.append("    " + l.strip())

    def label(self, l):
        self.L.append(l + ":")

    def raw(self, s):
        self.L.append(s)

    def text(self):
        return "\n".join(self.L) + "\n"


def vr(b, n=1, p="v"):
    return f"{p}{b}" if n == 1 else f"{p}[{b}:{b+n-1}]"


def ar(b, n=1):
    return vr(b, n, "a")


def sr(b, n=1):
    return vr(b, n, "s")


STAMP = False
DBG_OFF = 30 << 20


def stamp(a, idx, sbase=70):
    if not STAMP:
        return
    a(f"s_memtime s[{sbase+16}:{sbase+17}]")
    a("s_waitcnt lgkmcnt(0)")
    a(f"s_mov_b32 s{sbase+idx}, s{sbase+16}")


def stamp_rt(a, idx, sbase=70):
    if not STAMP:
        return
    a(f"s_memrealtime s[{sbase+16}:{sbase+17}]")
    a("s_waitcnt lgkmcnt(0)")
    a(f"s_mov_b32 s{sbase+idx}, s{sbase+16}")


def stamp_flush(a, kidx, srd_ws, swave, n, vtmp, sbase=70, shift=4):
    if not STAMP:
        return
    a("s_mov_b64 exec, -1")
    a(f"s_lshl_b32 s{sbase+16}, s2, 4")
    a(f"s_add_u32 s{sbase+16}, s{sbase+16}, s{swave}")
    a(f"s_lshl_b32 s{sbase+16}, s{sbase+16}, 6")
    a(f"s_add_u32 s{sbase+16}, s{sbase+16}, {DBG_OFF + kidx*(1<<18)}")
    a(f"v_mov_b32 v{vtmp+1}, 0")
    for i in range(n):
        a(f"v_mov_b32 v{vtmp}, s{sbase+i}")
        a(f"buffer_store_dword v{vtmp}, v{vtmp+1}, s[{srd_ws}:{srd_ws+3}], s{sbase+16} offen offset:{4*i}")


def kernel_head(a, name):
    a.raw(f".globl {name}")
    a.raw(".p2align 8")
    a.raw(f".type {name},@function")
    a.label(name)


def kernel_desc(name, vgpr_total, accum, sgpr):
    return f""".amdhsa_kernel {name}
  .amdhsa_next_free_vgpr {vgpr_total}
  .amdhsa_next_free_sgpr {96 if STAMP else sgpr}
  .amdhsa_accum_offset {accum}
  .amdhsa_group_segment_fixed_size 0
  .amdhsa_kernarg_size 80
  .amdhsa_user_sgpr_count 2
  .amdhsa_user_sgpr_kernarg_segment_ptr 1
  .amdhsa_system_sgpr_workgroup_id_x 1
.end_amdhsa_kernel
"""


def srd(a, d, base, nbytes):
    a(f"s_mov_b32 s{d}, s{base}")
    a(f"s_mov_b32 s{d+1}, s{base+1}")
    a(f"s_mov_b32 s{d+2}, {nbytes}")
    a(f"s_mov_b32 s{d+3}, 0x00020000")


K1_WST = 16896
K1_NSW = 6 if 'k1_nsw6' in EXP else 5
K1_NSX = 3
K1_XB = K1_WST * K1_NSW
K1_LDS = K1_XB + K1_NSX * 16384


STF = '' if 'k1_plain' in EXP else ' sc1'


def gen_k1(a):
    name = "qkv_kernel"
    kernel_head(a, name)
    SX, SW, SR = 20, 24, 28
    sWave = 19
    a("s_cmp_ge_u32 s2, 256")
    a("s_cbranch_scc1 K1_END")
    stamp(a, 0); stamp_rt(a, 1)
    a("""
    s_load_dwordx4 s[4:7], s[0:1], 0
    s_load_dwordx2 s[8:9], s[0:1], 32
    s_load_dwordx2 s[10:11], s[0:1], 72
    v_lshrrev_b32 v2, 6, v0
    v_and_b32 v1, 63, v0
    s_and_b32 s12, s2, 7
    v_readfirstlane_b32 s19, v2
    s_cmp_ge_u32 s2, 240
    s_cbranch_scc1 K1_SIDE
    s_lshr_b32 s13, s2, 3
    s_mul_i32 s12, s12, 30
    s_add_u32 s12, s12, s13
    s_cmp_ge_u32 s12, 120
    s_cselect_b32 s14, 1, 0
    s_cselect_b32 s13, 120, 0
    s_sub_u32 s12, s12, s13
    s_and_b32 s15, s12, 7
    s_lshr_b32 s16, s12, 3
    v_and_b32 v3, 15, v1
    v_lshrrev_b32 v4, 4, v1
    """)
    a(f"""
    s_cmp_ge_u32 s{sWave}, 4
    s_cselect_b32 s12, 1, 0
    s_lshr_b32 s12, s{sWave}, s12
    s_and_b32 s12, s12, 1
    s_lshl_b32 s17, s16, 1
    s_add_u32 s17, s17, s12
    s_cmp_ge_u32 s17, 15
    s_cselect_b32 s18, 1, 0
    s_cselect_b32 s13, 15, 0
    s_sub_u32 s17, s17, s13
    s_movk_i32 s60, 3840
    s_mov_b32 s62, 2621440
    s_movk_i32 s63, 128
    s_cmp_ge_u32 s{sWave}, 4
    s_cbranch_scc0 K1_COMPUTE
    """)
    vW, vXg = 8, 12
    sWo, sXo, sWl, sXl = 32, 33, 34, 35
    a(f"""
    v_lshrrev_b32 v5, 1, v4
    v_and_b32 v6, 1, v4
    v_lshlrev_b32 v5, 4, v5
    v_lshl_add_u32 v5, v6, 2, v5
    v_mul_u32_u24 v5, 3840, v5
    v_lshl_add_u32 v{vW}, v3, 4, v5
    v_add_u32 v{vW+1}, 2784, v{vW}
    v_add_u32 v{vW+2}, {2*2784}, v{vW}
    v_add_u32 v{vW+3}, {3*2784}, v{vW}
    v_lshrrev_b32 v5, 3, v1
    v_and_b32 v6, 7, v1
    v_xor_b32 v6, v6, v5
    v_mul_u32_u24 v5, 2560, v5
    v_lshl_add_u32 v{vXg}, v6, 4, v5
    v_add_u32 v{vXg+1}, 19456, v{vXg}
    v_add_u32 v{vXg+2}, {2*19456}, v{vXg}
    v_add_u32 v{vXg+3}, {3*19456}, v{vXg}
    s_and_b32 s13, s{sWave}, 1
    s_mul_i32 s{sWo}, s13, {8*3840}
    s_lshl_b32 s3, s17, 8
    s_add_u32 s{sWo}, s{sWo}, s3
    s_and_b32 s3, s{sWave}, 3
    s_mul_i32 s{sWl}, s3, {4*1056}
    s_lshl_b32 s{sXl}, s3, 12
    s_add_u32 s{sXl}, s{sXl}, {K1_XB}
    s_lshl_b32 s13, s15, 2
    s_add_u32 s13, s13, s3
    s_mul_i32 s{sXo}, s13, {32*2560}
    s_mul_i32 s13, s14, 1280
    s_add_u32 s{sXo}, s{sXo}, s13
    s_cmp_eq_u32 s18, 0
    s_waitcnt lgkmcnt(0)
    s_cselect_b64 s[6:7], s[6:7], s[8:9]
    """)
    srd(a, SX, 4, 2621440)
    srd(a, SW, 6, 2457600)
    if STAMP:
        srd(a, SR, 10, WS_BYTES)
    hist = []

    def wl(k):
        a(f"s_add_u32 m0, s{sWl}, {(k % K1_NSW) * K1_WST}")
        if k:
            a(f"s_add_u32 s{sWo}, s{sWo}, 122880")
        else:
            a("s_nop 0")
        for i in range(4):
            a(f"buffer_load_dwordx4 v{vW+i}, {sr(SW,4)}, s{sWo} offen offset:{1056*i} lds")
        hist.append(("W", k))

    def xl(j):
        a(f"s_add_u32 m0, s{sXl}, {(j % K1_NSX) * 16384}")
        if j:
            a(f"s_add_u32 s{sXo}, s{sXo}, 128")
        else:
            a("s_nop 0")
        for q in range(4):
            a(f"buffer_load_dwordx4 v{vXg+q}, {sr(SX,4)}, s{sXo} offen offset:{1024*q} lds")
        hist.append(("X", j))

    def need(ks):
        req = [("W", ks), ("X", ks // 2)]
        last = max(hist.index(r) for r in req)
        a(f"s_waitcnt vmcnt({4 * (len(hist) - 1 - last)})")
        a("s_barrier")

    xl(0); wl(0); wl(1); xl(1); wl(2)
    stamp(a, 2)
    need(0)
    stamp(a, 3)
    wl(3); xl(2); wl(4)
    if K1_NSW == 6: wl(5)
    for ks in range(19):
        need(ks + 1)
        if ks % 2 == 1 and (ks - 1) // 2 + K1_NSX < 10:
            xl((ks - 1) // 2 + K1_NSX)
        if ks + K1_NSW < 20:
            wl(ks + K1_NSW)
    a("s_barrier")
    stamp(a, 4); stamp(a, 5); stamp(a, 6); stamp_rt(a, 7)
    stamp_flush(a, 0, SR, sWave, 8, 2)
    a("s_endpgm")

    a.label("K1_COMPUTE")
    ACC = 32
    WFR = [0, 32]
    XFR = [64, 80]
    vTr0, vTr, vXr0, vXr, vSt = 8, 9, 10, 12, 14
    sRd, sXr, sIt, sSt, sSeg = 32, 33, 34, 36, 35
    TOUCH = 'k1_notouch' not in EXP
    ST, sTo, sTs = 44, 42, 43
    TD = 5
    if TOUCH:
        a(f"""
        v_lshrrev_b32 v5, 1, v1
        v_and_b32 v6, 1, v1
        v_lshlrev_b32 v6, 7, v6
        v_mad_u32_u24 v16, v5, s60, v6
        v_mul_u32_u24 v17, 2560, v1
        s_mul_i32 s{sTo}, s15, {8*3840}
        s_lshl_b32 s3, s17, 8
        s_add_u32 s{sTo}, s{sTo}, s3
        s_add_u32 s{sTo}, s{sTo}, {3*64*3840}
        s_lshl_b32 s3, s15, 3
        s_and_b32 s13, s16, 3
        s_lshl_b32 s13, s13, 1
        s_add_u32 s3, s3, s13
        s_and_b32 s13, s{sWave}, 1
        s_add_u32 s3, s3, s13
        s_mul_i32 s3, s3, {16*2560}
        s_mul_i32 s13, s14, 1280
        s_add_u32 s3, s3, s13
        s_add_u32 s3, s3, {3*128}
        s_cmp_eq_u32 s18, 0
        s_waitcnt lgkmcnt(0)
        s_cselect_b64 s[6:7], s[6:7], s[8:9]
        s_cmp_lt_u32 s{sWave}, 2
        s_cselect_b64 s[{ST}:{ST+1}], s[6:7], s[4:5]
        s_cselect_b32 s{ST+2}, 2457600, s62
        s_mov_b32 s{ST+3}, 0x00020000
        s_cselect_b32 s{sTo}, s{sTo}, s3
        s_cselect_b32 s{sTs}, {64*3840}, s63
        s_cselect_b64 s[50:51], -1, 0
        v_cndmask_b32 v16, v17, v16, s[50:51]
        v_cmp_gt_u32 s[50:51], 16, v1
        v_mov_b32 v17, 0x40000000
        s_nop 0
        v_cndmask_b32 v16, v17, v16, s[50:51]
        """)
        for b in range(3, TD):
            a(f"buffer_load_dword v18, v16, {sr(ST,4)}, s{sTo} offen")
            a(f"s_add_u32 s{sTo}, s{sTo}, s{sTs}")
    a(f"""
    v_and_b32 v5, 1, v4
    v_lshrrev_b32 v6, 2, v3
    v_lshl_add_u32 v5, v5, 2, v6
    v_mul_u32_u24 v5, 1056, v5
    v_lshrrev_b32 v6, 1, v4
    v_lshlrev_b32 v6, 9, v6
    v_and_b32 v7, 3, v3
    v_lshlrev_b32 v7, 3, v7
    v_add3_u32 v5, v5, v6, v7
    s_mul_i32 s3, s12, 8448
    v_add_u32 v{vTr0}, s3, v5
    v_and_b32 v5, 3, v3
    v_bfe_u32 v6, v3, 2, 1
    v_lshl_or_b32 v5, v6, 3, v5
    v_bfe_u32 v6, v3, 3, 1
    v_lshl_or_b32 v5, v6, 2, v5
    v_and_b32 v6, 7, v5
    v_xor_b32 v6, v6, v4
    v_lshlrev_b32 v6, 4, v6
    v_lshl_add_u32 v5, v5, 7, v6
    s_lshr_b32 s13, s{sWave}, 1
    s_lshl_b32 s3, s13, 13
    s_add_u32 s3, s3, {K1_XB}
    v_add_u32 v{vXr0}, s3, v5
    v_xor_b32 v{vXr0+1}, 64, v{vXr0}
    v_mov_b32 v{vXr}, v{vXr0}
    v_mov_b32 v{vXr+1}, v{vXr0+1}
    v_mov_b32 v{vTr}, v{vTr0}
    s_mov_b32 s{sRd}, {K1_WST}
    s_mov_b32 s{sXr}, 16384
    s_mov_b32 s{sIt}, 0
    s_mul_i32 s{sSeg}, s17, 52
    s_lshr_b32 s{sSeg}, s{sSeg}, 8
    s_mul_i32 s3, s{sSeg}, 5
    s_sub_u32 s17, s17, s3
    s_mul_i32 s3, s18, 3
    s_add_u32 s3, s3, s{sSeg}
    s_mul_i32 s{sSt}, s3, {SEGB}
    s_lshl_b32 s3, s14, 4
    s_lshl_b32 s16, s15, 1
    s_add_u32 s3, s3, s16
    s_add_u32 s3, s3, s13
    s_mul_i32 s3, s3, {2*TB}
    s_add_u32 s{sSt}, s{sSt}, s3
    s_waitcnt lgkmcnt(0)
    """)
    srd(a, SR, 10, WS_BYTES)
    for i in range(128):
        a(f"v_mov_b32 v{ACC+i}, 0")

    def reads(fset, kk):
        L = [f"ds_read_b128 {ar(XFR[fset]+4*mt,4)}, v{vXr+kk} offset:{2048*mt}" for mt in range(4)]
        for t in range(8):
            for s in range(2):
                L.append(f"ds_read_b64_tr_b16 {ar(WFR[fset]+4*t+2*s,2)}, v{vTr} offset:{s*256 + t*32}")
        return L

    stamp(a, 2)
    a("s_barrier")
    stamp(a, 3)
    for l in reads(0, 0):
        a(l)
    a(f"s_cmp_eq_u32 s{sSeg}, 2")
    a("s_cbranch_scc1 K1_LOOP_N")
    for ori in ("T", "N"):
        a.raw(".p2align 3")
        a.label(f"K1_LOOP_{ori}")
        for s in range(2):
            fs = s
            rd = reads(1 - fs, 1 - s)
            mf = []
            for t in range(8):
                for mt in range(4):
                    acc = vr(ACC + (t * 4 + mt) * 4, 4)
                    w = ar(WFR[fs] + 4 * t, 4)
                    x = ar(XFR[fs] + 4 * mt, 4)
                    if ori == "T":
                        mf.append(f"v_mfma_f32_16x16x32_bf16 {acc}, {w}, {x}, {acc}")
                    else:
                        mf.append(f"v_mfma_f32_16x16x32_bf16 {acc}, {x}, {w}, {acc}")
            a(f"v_add_u32 v{vTr}, s{sRd}, v{vTr0}")
            rest = [f"s_add_u32 s{sRd}, s{sRd}, {K1_WST}",
                    f"s_cmp_ge_u32 s{sRd}, {K1_XB}",
                    f"s_cselect_b32 s{sRd}, 0, s{sRd}"]
            if s == 0 and TOUCH:
                rest += [f"s_cmp_lt_u32 s{sIt}, {10-TD}",
                         f"s_cselect_b32 s{sTo}, s{sTo}, 0x40000000",
                         f"buffer_load_dword v18, v16, {sr(ST,4)}, s{sTo} offen",
                         f"s_add_u32 s{sTo}, s{sTo}, s{sTs}"]
            if s == 1:
                a(f"v_add_u32 v{vXr}, s{sXr}, v{vXr0}")
                rest += [f"v_add_u32 v{vXr+1}, s{sXr}, v{vXr0+1}",
                         f"s_add_u32 s{sXr}, s{sXr}, 16384",
                         f"s_cmp_ge_u32 s{sXr}, {K1_NSX*16384}",
                         f"s_cselect_b32 s{sXr}, 0, s{sXr}",
                         f"s_add_u32 s{sIt}, s{sIt}, 1",
                         f"s_cmp_lt_u32 s{sIt}, 10"]
            a("s_waitcnt lgkmcnt(0)")
            a("s_barrier")
            fill = rd + rest
            for i in range(32):
                a(mf[i])
                if i < len(fill):
                    a(fill[i])
        a(f"s_cbranch_scc1 K1_LOOP_{ori}")
        stamp(a, 4)
        if ori == "T":
            a(f"""
            s_lshl_b32 s3, s17, 13
            s_add_u32 s{sSt}, s{sSt}, s3
            s_add_u32 s{sSt+1}, s{sSt}, 4096
            s_add_u32 s{sSt+2}, s{sSt}, {TB}
            s_add_u32 s{sSt+3}, s{sSt+1}, {TB}
            s_cmp_eq_u32 s{sSeg}, 0
            s_cselect_b32 s40, {f32(QSCALE)}, 1.0
            s_mov_b32 s41, s40
            v_lshlrev_b32 v{vSt}, 4, v1
            s_nop 3
            """)
        else:
            a(f"""
            s_lshl_b32 s3, s17, 11
            s_add_u32 s{sSt}, s{sSt}, s3
            s_add_u32 s{sSt+2}, s{sSt}, {TB}
            v_mul_u32_u24 v5, 10240, v4
            v_lshl_add_u32 v{vSt}, v3, 4, v5
            s_nop 7
            """)
        for t in range(8):
            for mp in range(2):
                b0 = ACC + (t * 4 + 2 * mp) * 4
                b1 = b0 + 4
                if ori == "T":
                    for i in range(4):
                        a(f"v_pk_mul_f32 {vr(b0+2*i,2)}, {vr(b0+2*i,2)}, s[40:41]")
                a(f"v_cvt_pk_bf16_f32 v{b0}, v{b0}, v{b0+1}")
                a(f"v_cvt_pk_bf16_f32 v{b0+1}, v{b0+2}, v{b0+3}")
                a(f"v_cvt_pk_bf16_f32 v{b0+2}, v{b1}, v{b1+1}")
                a(f"v_cvt_pk_bf16_f32 v{b0+3}, v{b1+2}, v{b1+3}")
                a("s_nop 1")
                sw = "v_permlane16_swap_b32" if ori == "T" else "v_permlane32_swap_b32"
                a(f"{sw} v{b0}, v{b0+2}")
                a(f"{sw} v{b0+1}, v{b0+3}")
                a("s_nop 0")
                if ori == "T":
                    a(f"buffer_store_dwordx4 {vr(b0,4)}, v{vSt}, {sr(SR,4)}, s{sSt + 2*mp + t//4} offen offset:{(t%4)*1024}{STF}")
                else:
                    a(f"buffer_store_dwordx4 {vr(b0,4)}, v{vSt}, {sr(SR,4)}, s{sSt + 2*mp} offen offset:{t*256}{STF}")
        stamp(a, 5)
        if STAMP: a("s_waitcnt vmcnt(0)")
        stamp(a, 6); stamp_rt(a, 7)
        stamp_flush(a, 0, SR, sWave, 8, 2)
        a("s_endpgm")

    a.label("K1_SIDE")
    SGW, SWO = 32, 36
    a(f"""
    s_load_dwordx2 s[46:47], s[0:1], 16
    s_load_dwordx4 s[12:15], s[0:1], 40
    s_sub_u32 s16, s2, 240
    s_lshl_b32 s16, s16, 3
    s_add_u32 s16, s16, s{sWave}
    v_lshlrev_b32 v2, 2, v1
    v_lshlrev_b32 v5, 4, v1
    v_lshrrev_b32 v3, 3, v1
    v_and_b32 v4, 7, v1
    v_mul_u32_u24 v3, 1280, v3
    v_lshl_add_u32 v3, v4, 4, v3
    v_lshrrev_b32 v4, 4, v1
    v_bfe_u32 v6, v1, 2, 2
    v_lshl_add_u32 v4, v4, 3, v6
    v_and_b32 v6, 3, v1
    v_lshlrev_b32 v6, 3, v6
    v_lshl_add_u32 v6, v4, 7, v6
    s_lshl_b32 s40, s{sWave}, 14
    v_add_u32 v6, s40, v6
    v_mov_b32 v4, 0
    s_waitcnt lgkmcnt(0)
    """)
    srd(a, SX, 4, 2621440)
    srd(a, SR, 10, WS_BYTES)
    srd(a, SGW, 14, 1280)
    a(f"s_mov_b32 s{SWO+2}, 819200")
    a(f"s_mov_b32 s{SWO+3}, 0x00020000")
    for i in range(4):
        a(f"""
        s_add_u32 s41, s16, {128*i}
        s_cmp_ge_u32 s41, 200
        s_cselect_b32 s{SWO}, s12, s46
        s_cselect_b32 s{SWO+1}, s13, s47
        s_cselect_b32 s3, 200, 0
        s_cselect_b32 s{42+i}, {WOF_BR}, 0
        s_add_u32 s{42+i}, s{42+i}, {WOF_OFF}
        s_sub_u32 s3, s41, s3
        s_mul_i32 s17, s3, 6554
        s_lshr_b32 s17, s17, 16
        s_mul_i32 s18, s17, 10
        s_sub_u32 s18, s3, s18
        s_lshl_b32 s3, s17, 10
        s_add_u32 s{42+i}, s{42+i}, s3
        s_mul_i32 s3, s18, {4*20480}
        s_add_u32 s{42+i}, s{42+i}, s3
        s_mul_i32 s17, s17, {32*1280}
        s_lshl_b32 s18, s18, 7
        s_add_u32 s17, s17, s18
        s_cmp_ge_u32 s41, 400
        s_cselect_b32 s{42+i}, 0x7f000000, s{42+i}
        s_cselect_b32 s17, 0x7f000000, s17
        """)
        for q in range(4):
            a(f"s_add_u32 m0, s40, {4096*i + 1024*q}")
            a("s_nop 0")
            a(f"buffer_load_dwordx4 v3, {sr(SWO,4)}, s17 offen lds")
            a(f"s_add_u32 s17, s17, {8*1280}")
    GW, GX = 8, 16
    for i in range(5):
        a(f"buffer_load_dword v{GW+i}, v2, {sr(SGW,4)}, 0 offen offset:{256*i}")
    a(f"""
    s_and_b32 s3, s16, 63
    s_mul_i32 s17, s3, {16*2560}
    s_lshr_b32 s3, s16, 6
    s_mul_i32 s3, s3, 1280
    s_add_u32 s17, s17, s3
    s_lshl_b32 s18, s16, 6
    s_add_u32 s18, s18, {G_OFF}
    """)
    for half in range(2):
        for r in range(8):
            for i in range(5):
                a(f"buffer_load_dword v{GX+5*r+i}, v2, {sr(SX,4)}, s17 offen offset:{256*i}")
            a("s_add_u32 s17, s17, 2560")
        if half == 0:
            a("s_waitcnt vmcnt(45)")
            for i in range(4):
                for nt in range(4):
                    b = 72 + (4 * i + nt) * 4
                    a(f"ds_read_b64_tr_b16 {vr(b,2)}, v6 offset:{4096*i + 32*nt}")
                    a(f"ds_read_b64_tr_b16 {vr(b+2,2)}, v6 offset:{4096*i + 32*nt + 512}")
                a("s_waitcnt lgkmcnt(0)")
            a("s_waitcnt vmcnt(0)")
            for i in range(4):
                for nt in range(4):
                    b = 72 + (4 * i + nt) * 4
                    a(f"buffer_store_dwordx4 {vr(b,4)}, v5, {sr(SR,4)}, s{42+i} offen")
                    a(f"s_add_u32 s{42+i}, s{42+i}, 20480")
        else:
            a("s_waitcnt vmcnt(0)")
        for r in range(8):
            a(f"v_dot2_f32_bf16 v{60+r}, v{GX+5*r}, v{GW}, 0")
        for i in range(1, 5):
            for r in range(8):
                a(f"v_dot2_f32_bf16 v{60+r}, v{GX+5*r+i}, v{GW+i}, v{60+r}")
        a("s_nop 3")
        for sh in ("row_shr:1 row_mask:0xf bank_mask:0xf bound_ctrl:0", "row_shr:2 row_mask:0xf bank_mask:0xf bound_ctrl:0",
                   "row_shr:4 row_mask:0xf bank_mask:0xf bound_ctrl:0", "row_shr:8 row_mask:0xf bank_mask:0xf bound_ctrl:0",
                   "row_bcast:15 row_mask:0xa bank_mask:0xf", "row_bcast:31 row_mask:0xc bank_mask:0xf"):
            for r in range(8):
                a(f"v_add_f32_dpp v{60+r}, v{60+r}, v{60+r} {sh}")
        for r in range(8):
            a(f"v_mul_f32 v{60+r}, {f32(-math.log2(math.e))}, v{60+r}")
        for r in range(8):
            a(f"v_exp_f32 v{60+r}, v{60+r}")
        for r in range(8):
            a(f"v_add_f32 v{60+r}, 1.0, v{60+r}")
        for r in range(8):
            a(f"v_rcp_f32 v{60+r}, v{60+r}")
        a("s_mov_b32 exec_lo, 0")
        a("s_mov_b32 exec_hi, 0x80000000")
        a(f"buffer_store_dwordx4 v[60:63], v4, {sr(SR,4)}, s18 offen offset:{32*half}")
        a(f"buffer_store_dwordx4 v[64:67], v4, {sr(SR,4)}, s18 offen offset:{32*half+16}")
        a("s_mov_b64 exec, -1")
        a("s_nop 1")
    if STAMP:
        a("s_waitcnt vmcnt(0)")
        for i in range(2, 7):
            stamp(a, i)
        stamp_rt(a, 7)
        stamp_flush(a, 0, SR, sWave, 8, 2)
    a.label("K1_END")
    a("s_endpgm")
    return kernel_desc(name, 256, 160, 64)


K2_TILE = 2880
K2_SLOT = 16 * K2_TILE
K2_R = 3
K2_FLAG = K2_SLOT * K2_R + 256
K2_LDS = K2_FLAG + 256


def gen_k2(a):
    name = "attn_kernel"
    kernel_head(a, name)
    SWS = 20
    sWave, sHead, sT, sKh = 16, 17, 18, 19
    sDma, sM0, sSlot, sC, sRedo = 24, 25, 26, 27, 28
    sTA, sTAp, sOA, sOB, sTouch = 29, 30, 31, 32, 33
    sTmp = 36
    sPrev = 46
    vK10, vK20, vLV, vK1, vK2, vV, vO = 2, 3, 4, 5, 6, 7, 15
    vt = 8
    Q1, Q2 = 16, 20
    KF1, KF2 = 24, 28
    vD = 22
    vD2 = 30
    vGK1, vGK2 = 31, 112
    vGV, vX = 113, 114
    VF = 32
    P = 40
    NEGM = 48
    SB = [64, 80]
    O = 96
    AQ1, AQ2 = 116, 120
    AK1, AK2 = KF1, KF2
    AKP1, AKP2 = 124, 122
    AV = [VF, VF + 4, P]
    AC = SB
    NV = 128
    a("s_cmp_ge_u32 s2, 256")
    a("s_cbranch_scc1 K2_END")
    stamp(a, 0); stamp_rt(a, 1)
    a("""
    s_load_dwordx2 s[12:13], s[0:1], 72
    v_lshrrev_b32 v8, 6, v0
    v_and_b32 v1, 63, v0
    s_and_b32 s14, s2, 7
    v_readfirstlane_b32 s16, v8
    s_lshr_b32 s15, s2, 3
    s_lshl_b32 s17, s14, 2
    s_lshr_b32 s3, s15, 3
    s_add_u32 s17, s17, s3
    s_and_b32 s4, s15, 7
    s_lshl_b32 s18, s4, 3
    s_and_b32 s3, s16, 7
    s_add_u32 s18, s18, s3
    s_lshr_b32 s19, s16, 3
    """)
    a(f"""
    v_and_b32 v8, 31, v1
    v_lshrrev_b32 v9, 5, v1
    v_lshlrev_b32 v10, 4, v1
    s_and_b32 s4, s{sHead}, 1
    s_mul_i32 s5, s{sHead}, 5
    s_lshr_b32 s5, s5, 1
    s_lshl_b32 s5, s5, 9
    s_lshl_b32 s6, s4, 9
    s_cmp_eq_u32 s4, 0
    s_cselect_b32 s7, 1024, 8
    v_add_u32 v{vK1}, s6, v10
    v_lshl_add_u32 v{vK2}, v8, 4, s7
    v_add_u32 v{vGK1}, s5, v{vK1}
    v_add_u32 v{vGK2}, s5, v{vK2}
    s_add_u32 s5, s5, {4*SEGB}
    v_add_u32 v{vD}, s5, v10
    s_mul_i32 s6, s{sHead}, 320
    s_add_u32 s7, s6, {5*SEGB - 1024 - 512}
    v_cmp_le_u32 s[{sTmp}:{sTmp+1}], 53, v1
    v_mov_b32 v12, {10240-336}
    v_add_u32 v13, s7, v10
    v_cndmask_b32 v12, 0, v12, s[{sTmp}:{sTmp+1}]
    v_add_u32 v13, v13, v12
    v_cmp_le_u32 s[{sTmp}:{sTmp+1}], 32, v1
    v_add_u32 v11, 32, v1
    v_mul_u32_u24 v11, 49, v11
    v_cndmask_b32 v{vD+1}, v{vD}, v13, s[{sTmp}:{sTmp+1}]
    v_lshrrev_b32 v11, 10, v11
    v_mul_u32_u24 v11, {10240-336}, v11
    s_add_u32 s7, s6, {5*SEGB - 2048 + 512}
    v_add3_u32 v{vD2}, v11, v10, s7
    s_mul_i32 s{sTA}, s{sT}, {TB}
    s_add_u32 s8, s{sTA}, {3*SEGB}
    s_mul_i32 s{sDma}, s{sWave}, {TB}
    s_mul_i32 s{sM0}, s{sWave}, {K2_TILE}
    s_waitcnt lgkmcnt(0)
    """)
    srd(a, SWS, 12, WS_BYTES)

    m1 = ((1 << 64) - 1) & ~(1 << 52)
    m2 = ((1 << 52) - 1) & ~(1 << 9) & ~(1 << 30) & ~(1 << 51)

    def dma_chunk(c, dt=0):
        a(f"""
        s_add_u32 m0, s{sM0}, {(c % K2_R) * K2_SLOT + dt * K2_TILE}
        s_add_u32 s{sTmp}, s{sDma}, {(c * 16 + dt) * TB}
        buffer_load_dwordx4 v{vD}, {sr(SWS,4)}, s{sTmp} offen lds
        s_mov_b32 exec_hi, 0x{m1 >> 32:08x}
        buffer_load_dwordx4 v{vD+1}, {sr(SWS,4)}, s{sTmp} offen offset:1024 lds
        s_mov_b32 exec_lo, 0x{m2 & 0xffffffff:08x}
        s_mov_b32 exec_hi, 0x{m2 >> 32:08x}
        buffer_load_dwordx4 v{vD2}, {sr(SWS,4)}, s{sTmp} offen offset:2048 lds
        s_mov_b64 exec, -1
        """)

    dma_chunk(0)
    a(f"buffer_load_dwordx4 {vr(Q1,4)}, v{vGK1}, {sr(SWS,4)}, s8 offen")
    a(f"buffer_load_dwordx2 {vr(Q2,2)}, v{vGK2}, {sr(SWS,4)}, s8 offen")
    a(f"""
    s_mov_b32 s{sRedo}, 0
    v_mov_b32 v{VF}, 0x3f803f80
    v_mov_b32 v{VF+1}, 0x3f803f80
    v_mov_b32 v{VF+2}, 0x3f803f80
    v_mov_b32 v{VF+3}, 0x3f803f80
    v_bfe_u32 v11, v1, 2, 2
    v_min_u32 v11, 2, v11
    v_mul_u32_u24 v11, {K2_SLOT}, v11
    v_and_b32 v12, 3, v1
    v_mul_u32_u24 v12, 336, v12
    v_add3_u32 v11, v11, v12, s{sM0}
    ds_write_b128 v11, {vr(VF,4)} offset:{1536+320}
    v_mov_b32 v11, {K2_FLAG}
    v_mov_b32 v12, 0
    ds_write_b32 v11, v12
    s_mul_i32 s3, s{sKh}, {8*K2_TILE}
    v_add_u32 v{vK10}, s3, v{vK1}
    v_add_u32 v{vK20}, s3, v{vK2}
    v_mul_u32_u24 v11, 336, v9
    v_lshl_add_u32 v11, v8, 4, v11
    s_add_u32 s3, s3, 1536
    v_add_u32 v{vLV}, s3, v11
    v_mul_u32_u24 v11, 10240, v9
    v_lshl_add_u32 v11, v8, 4, v11
    v_add_u32 v{vGV}, s6, v11
    """)
    a(f"""
    v_and_b32 v10, 3, v8
    v_bfe_u32 v11, v8, 2, 1
    v_lshl_or_b32 v10, v11, 3, v10
    v_bfe_u32 v11, v8, 3, 1
    v_lshl_or_b32 v10, v11, 2, v10
    v_lshlrev_b32 v10, 4, v10
    v_lshrrev_b32 v11, 4, v8
    v_mul_u32_u24 v11, 20480, v11
    s_mul_i32 s3, s{sHead}, 5
    v_add_u32 v12, s3, v9
    v_lshrrev_b32 v13, 1, v12
    v_lshlrev_b32 v13, 8, v13
    v_and_b32 v12, 1, v12
    v_lshlrev_b32 v12, 3, v12
    v_add3_u32 v10, v10, v11, v12
    v_add_u32 v{vO}, v10, v13
    s_add_u32 s{sOA}, s{sTA}, {O_OFF}
    s_add_u32 s{sOB}, s{sOA}, {O_BR}
    s_lshl_b32 s{sTouch}, s15, 4
    s_add_u32 s{sTouch}, s{sTouch}, s{sWave}
    s_mul_i32 s{sTouch}, s{sTouch}, 3200
    s_add_u32 s{sTouch}, s{sTouch}, {WOF_OFF}
    s_and_b32 s3, s{sWave}, 7
    s_mul_i32 s3, s3, 3072
    s_add_u32 s3, s3, {K2_SLOT}
    v_lshlrev_b32 v10, 4, v1
    v_add_u32 v{vX}, s3, v10
    s_waitcnt vmcnt(0) lgkmcnt(0)
    """)
    stamp(a, 2)
    a(f"""
    s_barrier
    s_mov_b32 exec_lo, 0
    v_mov_b32 v{Q2}, 0
    v_mov_b32 v{Q2+1}, 0
    s_mov_b32 exec_lo, -1
    s_cmp_eq_u32 s{sKh}, 0
    s_cbranch_scc1 K2_B_START
    """)
    a(f"""
    s_and_b32 s14, s{sT}, 31
    s_cmp_lg_u32 s14, 0
    s_cselect_b32 s14, {TB}, 0
    s_cselect_b64 s[{sPrev}:{sPrev+1}], -1, 0
    s_sub_u32 s{sTAp}, s{sTA}, s14
    s_add_u32 s3, s{sTA}, {SEGB}
    s_add_u32 s4, s{sTAp}, {SEGB}
    """)
    for i in range(4):
        a(f"v_mov_b32 v{VF+4+i}, 0x3f803f80")
        a(f"v_mov_b32 v{P+i}, 0x3f803f80")
    for (r1, r2, so) in ((AQ1, AQ2, sTA), (AK1, AK2, 3), (AKP1, AKP2, 4)):
        a(f"buffer_load_dwordx4 {vr(r1,4)}, v{vGK1}, {sr(SWS,4)}, s{so} offen")
        a(f"buffer_load_dwordx2 {vr(r2,2)}, v{vGK2}, {sr(SWS,4)}, s{so} offen")
    a(f"""
    s_add_u32 s3, s{sTA}, {2*SEGB}
    s_add_u32 s4, s3, 20480
    s_add_u32 s5, s{sTAp}, {2*SEGB+20480}
    s_mov_b32 exec_lo, 0xffefffff
    s_mov_b32 exec_hi, 0xffefffff
    buffer_load_dwordx4 {vr(AV[0],4)}, v{vGV}, {sr(SWS,4)}, s3 offen
    buffer_load_dwordx4 {vr(AV[1],4)}, v{vGV}, {sr(SWS,4)}, s4 offen
    buffer_load_dwordx4 {vr(AV[2],4)}, v{vGV}, {sr(SWS,4)}, s5 offen
    s_mov_b64 exec, -1
    """)
    dma_chunk(1, -8)
    dma_chunk(1)
    dma_chunk(2, -8)
    dma_chunk(2)

    def maxtree(regs, dst):
        a(f"v_max3_f32 v{dst}, v{regs[0]}, v{regs[1]}, v{regs[2]}")
        i = 3
        while i + 1 < len(regs):
            a(f"v_max3_f32 v{dst}, v{dst}, v{regs[i]}, v{regs[i+1]}")
            i += 2
        if i < len(regs):
            a(f"v_max_f32 v{dst}, v{dst}, v{regs[i]}")
        a(f"v_mov_b32 v{dst+1}, v{dst}")
        a("s_nop 1")
        a(f"v_permlane32_swap_b32 v{dst}, v{dst+1}")
        a("s_nop 1")
        a(f"v_max_f32 v{dst}, v{dst}, v{dst+1}")

    def get_l():
        a(f"""
        v_mov_b32 v{vt}, v{O+8}
        v_mov_b32 v{vt+1}, v{O+8}
        s_nop 1
        v_permlane32_swap_b32 v{vt}, v{vt+1}
        s_nop 1
        """)

    def store_o(so, D):
        a(f"v_rcp_f32 v{vt}, v{vt+1}")
        a("s_nop 0")
        for r in range(12):
            a(f"v_mul_f32 v{O+r}, v{O+r}, v{vt}")
        for i in range(6):
            a(f"v_cvt_pk_bf16_f32 v{D+i}, v{O+2*i}, v{O+2*i+1}")
        a(f"buffer_store_dwordx2 {vr(D,2)}, v{vO}, {sr(SWS,4)}, s{so} offen")
        a(f"buffer_store_dwordx2 {vr(D+2,2)}, v{vO}, {sr(SWS,4)}, s{so} offen offset:256")
        a("s_mov_b32 exec_hi, 0")
        a(f"buffer_store_dwordx2 {vr(D+4,2)}, v{vO}, {sr(SWS,4)}, s{so} offen offset:512")
        a("s_mov_b32 exec_hi, -1")

    a(f"v_mov_b32 v{vt}, {f32(-1e30)}")

    def lanemask(fn):
        m = 0
        for l in range(64):
            if fn(l):
                m |= 1 << l
        return m
    k = 0
    for r in range(16):
        m = lanemask(lambda l: 0 <= pi5(l % 32) - (16 * (r // 8) + 8 * (l // 32) + r % 8) <= 7)
        sp = sTmp + 2 + 2 * (k % 3); k += 1
        a(f"s_mov_b32 s{sp}, 0x{m & 0xffffffff:08x}")
        a(f"s_mov_b32 s{sp+1}, 0x{m >> 32:08x}")
        a(f"v_cndmask_b32 v{AC[0]+r}, v{vt}, 0, s[{sp}:{sp+1}]")
    for r in range(8, 16):
        m = lanemask(lambda l: pi5(l % 32) + 32 - (16 * (r // 8) + 8 * (l // 32) + r % 8) <= 7)
        sp = sTmp + 2 + 2 * (k % 3); k += 1
        a(f"s_and_b32 s{sp}, s{sPrev}, 0x{m & 0xffffffff:08x}")
        a(f"s_and_b32 s{sp+1}, s{sPrev}, 0x{m >> 32:08x}")
        a(f"v_cndmask_b32 v{AC[1]+r}, v{vt}, 0, s[{sp}:{sp+1}]")
    a(f"""
    s_waitcnt vmcnt(12)
    s_mov_b32 exec_lo, 0
    v_mov_b32 v{AQ2}, 0
    v_mov_b32 v{AQ2+1}, 0
    s_mov_b32 exec_lo, -1
    s_nop 1
    v_mfma_f32_32x32x16_bf16 {vr(AC[0],16)}, {vr(AK1,4)}, {vr(AQ1,4)}, {vr(AC[0],16)}
    v_mfma_f32_32x32x8_bf16 {vr(AC[0],16)}, {vr(AK2,2)}, {vr(AQ2,2)}, {vr(AC[0],16)}
    v_mfma_f32_32x32x16_bf16 {vr(AC[1],16)}, {vr(AKP1,4)}, {vr(AQ1,4)}, {vr(AC[1],16)}
    v_mfma_f32_32x32x8_bf16 {vr(AC[1],16)}, {vr(AKP2,2)}, {vr(AQ2,2)}, {vr(AC[1],16)}
    s_nop 11
    """)
    aregs = [AC[0] + r for r in range(16)] + [AC[1] + r for r in range(8, 16)]
    maxtree(aregs, vt)
    for r in aregs:
        a(f"v_sub_f32 v{r}, v{r}, v{vt}")
    for r in aregs:
        a(f"v_exp_f32 v{r}, v{r}")
    a("s_nop 0")
    AP = NEGM
    for i in range(12):
        a(f"v_cvt_pk_bf16_f32 v{AP+i}, v{aregs[2*i]}, v{aregs[2*i+1]}")
    a(f"""
    s_nop 1
    v_mfma_f32_32x32x16_bf16 {vr(O,16)}, {vr(AV[0],4)}, {vr(AP,4)}, 0
    v_mfma_f32_32x32x16_bf16 {vr(O,16)}, {vr(AV[1],4)}, {vr(AP+4,4)}, {vr(O,16)}
    v_mfma_f32_32x32x16_bf16 {vr(O,16)}, {vr(AV[2],4)}, {vr(AP+8,4)}, {vr(O,16)}
    s_nop 11
    """)
    get_l()
    store_o(sOA, AQ1)

    def kreads(tile, k1=vK1, k2=vK2):
        o = tile * K2_TILE
        return [f"ds_read_b128 {vr(KF1,4)}, v{k1} offset:{o}",
                f"ds_read_b64 {vr(KF2,2)}, v{k2} offset:{o}"]

    def vread(tile, j):
        return f"ds_read_b128 {vr(VF+4*j,4)}, v{vV} offset:{tile * K2_TILE + 672*j}"

    def qk(sb, c):
        return [f"v_mfma_f32_32x32x16_bf16 {vr(sb,16)}, {vr(KF1,4)}, {vr(Q1,4)}, {c}",
                f"v_mfma_f32_32x32x8_bf16 {vr(sb,16)}, {vr(KF2,2)}, {vr(Q2,2)}, {vr(sb,16)}"]

    a.label("K2_B_START")
    stamp(a, 3)
    for l in kreads(0):
        a(l)
    a("s_waitcnt lgkmcnt(0)")
    for l in qk(SB[0], "0"):
        a(l)
    a.label("K2_B_RESTART")
    for l in kreads(0, vK10, vK20):
        a(l)
    for r in range(16):
        a(f"v_mov_b32 v{O+r}, 0")
    for r in range(4):
        a(f"v_mov_b32 v{P+4+r}, 0")
        a(f"v_mov_b32 v{VF+4+r}, 0")
    a(f"""
    v_mov_b32 v{vK1}, v{vK10}
    v_mov_b32 v{vK2}, v{vK20}
    v_mov_b32 v{vV}, v{vLV}
    s_mov_b32 s{sSlot}, {K2_SLOT}
    s_mov_b32 s{sC}, 0
    s_cmp_lg_u32 s{sRedo}, 0
    s_cbranch_scc1 K2_HAVE_M
    """)
    maxtree([SB[0] + r for r in range(16)], vt)
    for r in range(16):
        a(f"v_sub_f32 v{NEGM+r}, 0, v{vt}")
    a.label("K2_HAVE_M")
    a("s_waitcnt lgkmcnt(0)")
    a("s_nop 1")
    for l in qk(SB[0], vr(NEGM, 16)):
        a(l)
    for l in kreads(1):
        a(l)
    a(vread(0, 0))
    a("s_nop 9")
    stamp(a, 4)
    a.raw(".p2align 3")
    a.label("K2_LOOP")
    prio = {0: 3, 3: 2, 5: 1, 7: 0} if 'k2_noprio' not in EXP else {}
    for i in range(8):
        cur, nxt = SB[i % 2], SB[1 - i % 2]
        e = [f"v_exp_f32 v{cur+r}, v{cur+r}" for r in range(16)]
        c = [f"v_cvt_pk_bf16_f32 v{P+j}, v{cur+2*j}, v{cur+2*j+1}" for j in range(8)]
        q = qk(nxt, vr(NEGM, 16))
        pv = [f"v_mfma_f32_32x32x16_bf16 {vr(O,16)}, {vr(VF+4*j,4)}, {vr(P+4*j,4)}, {vr(O,16)}" for j in range(2)]
        kr = kreads((i + 2) % 8)
        if i == 6:
            a("s_waitcnt vmcnt(0)")
            a("s_barrier")
            a(f"s_cmp_eq_u32 s{sC}, 1")
            a("s_cbranch_scc1 K2_SIDE1")
            a.label("K2_SIDE_RET")
            a(f"v_add_u32 v{vK1}, s{sSlot}, v{vK10}")
            a(f"v_add_u32 v{vK2}, s{sSlot}, v{vK20}")
        if (i - 6) % 8 in prio:
            a(f"s_setprio {prio[(i - 6) % 8]}")
        a(e[0]); a(e[1])
        a(pv[1])
        a(vread(i, 1))
        a(e[2]); a(e[3]); a(c[0]); a(e[4]); a(c[1])
        a("s_waitcnt lgkmcnt(1)")
        a(q[0])
        a(e[5]); a(e[6]); a(e[7]); a(c[2]); a(e[8]); a(c[3])
        a(q[1])
        for l in kr:
            a(l)
        a(e[9]); a(e[10]); a(e[11]); a(c[4]); a(e[12]); a(c[5])
        if i == 7:
            a(f"v_add_u32 v{vV}, s{sSlot}, v{vLV}")
        a(pv[0])
        a(vread((i + 1) % 8, 0))
        a(e[13]); a(e[14]); a(e[15]); a(c[6])
        a("s_waitcnt lgkmcnt(3)")
        a(c[7])
        if i == 7:
            a(f"s_add_u32 s{sSlot}, s{sSlot}, {K2_SLOT}")
            a(f"s_cmp_ge_u32 s{sSlot}, {K2_SLOT*K2_R}")
            a(f"s_cselect_b32 s{sSlot}, 0, s{sSlot}")
    a(f"""
    s_add_u32 s{sC}, s{sC}, 1
    s_cmp_lt_u32 s{sC}, 4
    s_cbranch_scc1 K2_LOOP
    v_mfma_f32_32x32x16_bf16 {vr(O,16)}, {vr(VF+4,4)}, {vr(P+4,4)}, {vr(O,16)}
    v_mov_b32 v{vt+3}, {K2_FLAG}
    v_mov_b32 v{vt+4}, 1
    s_mov_b32 s3, {f32(2.0**100)}
    s_waitcnt lgkmcnt(0)
    s_nop 8
    """)
    stamp(a, 5)
    a(f"v_mov_b32 v{vt+2}, v{O+8}")
    a("s_mov_b32 exec_hi, 0")
    a(f"v_mul_f32 v{vt+2}, 0, v{O+8}")
    for r in range(9, 12):
        a(f"v_fma_f32 v{vt+2}, v{O+r}, 0, v{vt+2}")
    a("s_mov_b32 exec_hi, -1")
    for r in range(8):
        a(f"v_fma_f32 v{vt+2}, v{O+r}, 0, v{vt+2}")
    a(f"""
    v_cmp_nlt_f32 s[{sTmp}:{sTmp+1}], v{vt+2}, s3
    s_cmp_eq_u32 s{sKh}, 0
    s_cbranch_scc1 K2_NOXW
    ds_write_b128 v{vX}, {vr(O,4)}
    ds_write_b128 v{vX}, {vr(O+4,4)} offset:1024
    ds_write_b128 v{vX}, {vr(O+8,4)} offset:2048
    """)
    a.label("K2_NOXW")
    a(f"""
    s_cmp_eq_u64 s[{sTmp}:{sTmp+1}], 0
    s_cbranch_scc1 K2_NOFLAG
    ds_write_b32 v{vt+3}, v{vt+4}
    """)
    a.label("K2_NOFLAG")
    a(f"""
    s_waitcnt lgkmcnt(0)
    s_barrier
    ds_read_b32 v{vt+4}, v{vt+3}
    ds_read_b128 {vr(SB[0],4)}, v{vX}
    ds_read_b128 {vr(SB[0]+4,4)}, v{vX} offset:1024
    ds_read_b128 {vr(SB[0]+8,4)}, v{vX} offset:2048
    s_waitcnt lgkmcnt(0)
    v_readfirstlane_b32 s3, v{vt+4}
    s_nop 3
    s_cmp_gt_u32 s3, s{sRedo}
    s_cbranch_scc1 K2_FALLBACK
    s_cmp_eq_u32 s{sKh}, 0
    s_cbranch_scc0 K2_DONE
    """)
    for r in range(12):
        a(f"v_add_f32 v{O+r}, v{O+r}, v{SB[0]+r}")
    get_l()
    store_o(sOB, P)
    a.label("K2_DONE")
    if STAMP: a("s_waitcnt vmcnt(0)")
    stamp(a, 6); stamp_rt(a, 7)
    stamp_flush(a, 1, SWS, sWave, 8, 8, shift=4)
    a.label("K2_END")
    a("s_endpgm")

    a.label("K2_SIDE1")
    dma_chunk(3)
    a(f"""
    v_lshlrev_b32 v{vt}, 7, v1
    s_mov_b32 exec_lo, 0x1ffffff
    s_mov_b32 exec_hi, 0
    buffer_load_dword v{vt+1}, v{vt}, {sr(SWS,4)}, s{sTouch} offen
    s_mov_b64 exec, -1
    s_branch K2_SIDE_RET
    """)
    a.label("K2_FALLBACK")
    a(f"""
    s_mov_b32 s{sRedo}, 1
    s_mov_b32 s{sC}, {4*SEGB}
    v_mov_b32 v{vt+2}, 0xff800000
    s_barrier
    """)
    a(f"""
    v_mov_b32 v{VF}, 0x3f803f80
    v_mov_b32 v{VF+1}, 0x3f803f80
    v_mov_b32 v{VF+2}, 0x3f803f80
    v_mov_b32 v{VF+3}, 0x3f803f80
    v_bfe_u32 v11, v1, 2, 2
    v_min_u32 v11, 2, v11
    v_mul_u32_u24 v11, {K2_SLOT}, v11
    v_and_b32 v12, 3, v1
    v_mul_u32_u24 v12, 336, v12
    v_add3_u32 v11, v11, v12, s{sM0}
    ds_write_b128 v11, {vr(VF,4)} offset:{1536+320}
    """)
    for c in range(3):
        dma_chunk(c)
    a.label("K2_MAXLOOP")
    a(f"""
    buffer_load_dwordx4 {vr(KF1,4)}, v{vGK1}, {sr(SWS,4)}, s{sC} offen
    buffer_load_dwordx2 {vr(KF2,2)}, v{vGK2}, {sr(SWS,4)}, s{sC} offen
    s_waitcnt vmcnt(0)
    """)
    for l in qk(SB[0], "0"):
        a(l)
    a("s_nop 15")
    for r in range(0, 16, 2):
        a(f"v_max3_f32 v{vt+2}, v{vt+2}, v{SB[0]+r}, v{SB[0]+r+1}")
    a(f"""
    s_add_u32 s{sC}, s{sC}, {TB}
    s_cmp_lt_u32 s{sC}, {5*SEGB}
    s_cbranch_scc1 K2_MAXLOOP
    v_mov_b32 v{vt+3}, v{vt+2}
    s_nop 1
    v_permlane32_swap_b32 v{vt+2}, v{vt+3}
    s_nop 1
    v_max_f32 v{vt+2}, v{vt+2}, v{vt+3}
    """)
    for r in range(16):
        a(f"v_sub_f32 v{NEGM+r}, 0, v{vt+2}")
    a("s_waitcnt lgkmcnt(0)")
    a("s_barrier")
    a("s_branch K2_B_RESTART")
    return kernel_desc(name, NV, NV, 48)


K3_LDS = 4 * 4 * 5 * 1024


def gen_k3(a):
    name = "proj_kernel"
    kernel_head(a, name)
    SWS, SOUT = 20, 24
    sWave, sMb, sNb = 16, 17, 18
    sO, sW = 28, 29
    vJ = 2
    vG, vOut, vL16 = 7, 8, 2
    ACC = 16
    RD = 96
    NSET = 6
    a("s_cmp_ge_u32 s2, 256")
    a("s_cbranch_scc1 K3_END")
    stamp(a, 0); stamp_rt(a, 1)
    a("""
    s_load_dwordx2 s[4:5], s[0:1], 56
    s_load_dwordx2 s[6:7], s[0:1], 72
    v_lshrrev_b32 v9, 6, v0
    v_and_b32 v1, 63, v0
    s_and_b32 s14, s2, 7
    v_readfirstlane_b32 s16, v9
    s_lshr_b32 s15, s2, 3
    s_lshl_b32 s17, s14, 2
    s_and_b32 s3, s15, 3
    s_add_u32 s17, s17, s3
    s_lshr_b32 s18, s15, 2
    v_lshlrev_b32 v2, 4, v1
    """)
    for j in range(1, 5):
        a(f"v_add_u32 v{vJ+j}, {20480*j}, v{vJ}")
    a(f"""
    s_lshr_b32 s3, s{sWave}, 1
    s_and_b32 s14, s{sWave}, 1
    s_mul_i32 s14, s14, 10240
    s_mul_i32 s{sO}, s3, {O_BR}
    s_mul_i32 s15, s{sMb}, {4*20480}
    s_add_u32 s{sO}, s{sO}, s15
    s_add_u32 s{sO}, s{sO}, s14
    s_add_u32 s{sO}, s{sO}, {O_OFF}
    s_mul_i32 s{sW}, s3, {WOF_BR}
    s_mul_i32 s15, s{sNb}, {5*20480}
    s_add_u32 s{sW}, s{sW}, s15
    s_add_u32 s{sW}, s{sW}, s14
    s_add_u32 s{sW}, s{sW}, {WOF_OFF}
    s_waitcnt lgkmcnt(0)
    """)
    srd(a, SWS, 6, WS_BYTES)
    srd(a, SOUT, 4, 2621440)

    def loads(i):
        base = (i % NSET) * 36
        L = []
        if i in (4, 8):
            L.append(f"s_add_u32 s{sO}, s{sO}, 4096")
            L.append(f"s_add_u32 s{sW}, s{sW}, 4096")
        for nt in range(5):
            L.append(f"buffer_load_dwordx4 {ar(base+16+4*nt,4)}, v{vJ+nt}, {sr(SWS,4)}, s{sW} offen offset:{(i%4)*1024}")
        for mt in range(4):
            L.append(f"buffer_load_dwordx4 {ar(base+4*mt,4)}, v{vJ+mt}, {sr(SWS,4)}, s{sO} offen offset:{(i%4)*1024}")
        return L

    a(f"""
    v_and_b32 v9, 15, v1
    v_lshlrev_b32 v10, 2, v9
    s_lshl_b32 s3, s{sMb}, 2
    s_add_u32 s3, s3, s{sWave}
    s_lshl_b32 s14, s3, 6
    s_add_u32 s14, s14, {G_OFF}
    buffer_load_dword v{vG}, v10, {sr(SWS,4)}, s14 offen
    """)
    for i in range(NSET):
        for l in loads(i):
            a(l)
    a(f"""
    v_lshrrev_b32 v11, 4, v1
    v_mul_u32_u24 v12, 2560, v9
    v_and_b32 v13, 1, v11
    v_lshlrev_b32 v13, 5, v13
    v_lshrrev_b32 v14, 1, v11
    v_lshlrev_b32 v14, 4, v14
    v_add3_u32 v{vOut}, v12, v13, v14
    v_lshl_add_u32 v9, v11, 3, v12
    s_and_b32 s14, s3, 63
    s_mul_i32 s14, s14, {16*2560}
    s_lshr_b32 s15, s3, 6
    s_mul_i32 s15, s15, 1280
    s_add_u32 s30, s14, s15
    s_mul_i32 s15, s{sNb}, 160
    s_add_u32 s30, s30, s15
    """)
    issued = NSET
    for i in range(10):
        base = (i % NSET) * 36
        if i == 0: stamp(a, 2)
        a(f"s_waitcnt vmcnt({9*(issued-1-i)})")
        if i == 0: stamp(a, 3)
        for mt in range(4):
            for nt in range(5):
                acc = vr(ACC + (mt * 5 + nt) * 4, 4)
                c = "0" if i == 0 else acc
                a(f"v_mfma_f32_16x16x32_bf16 {acc}, {ar(base+16+4*nt,4)}, {ar(base+4*mt,4)}, {c}")
        if issued < 10:
            for l in loads(issued):
                a(l)
            issued += 1
    a("s_nop 7")
    stamp(a, 4)
    a(f"""
    s_mul_i32 s3, s{sWave}, 20480
    v_add_u32 v10, s3, v{vL16}
    s_mul_i32 s3, s{sWave}, 5120
    v_add_u32 v11, s3, v{vL16}
    """)
    for mt in range(4):
        a(f"s_cmp_eq_u32 s{sWave}, {mt}")
        a(f"s_cbranch_scc1 K3_SKIPW{mt}")
        for nt in range(5):
            a(f"ds_write_b128 v10, {vr(ACC+(mt*5+nt)*4,4)} offset:{(mt*5+nt)*1024}")
        a(f"s_branch K3_DONEW{mt}")
        a.label(f"K3_SKIPW{mt}")
        if mt != 0:
            for i in range(20):
                a(f"v_mov_b32 v{ACC+i}, v{ACC+mt*20+i}")
        a.label(f"K3_DONEW{mt}")
    a("s_waitcnt lgkmcnt(0)")
    a("s_barrier")
    for k, x in enumerate((1, 2, 3)):
        a(f"s_xor_b32 s3, s{sWave}, {x}")
        a(f"s_mul_i32 s3, s3, 20480")
        a(f"v_add_u32 v{12+k}, s3, v11")
    for k in range(3):
        for nt in range(5):
            a(f"ds_read_b128 {vr(RD+k*20+nt*4,4)}, v{12+k} offset:{nt*1024}")
    a(f"""
    v_sub_f32 v10, 1.0, v{vG}
    s_cmp_lt_u32 s{sWave}, 2
    s_cselect_b64 s[32:33], -1, 0
    v_cndmask_b32 v11, v10, v{vG}, s[32:33]
    v_cndmask_b32 v10, v{vG}, v10, s[32:33]
    s_waitcnt lgkmcnt(0)
    """)
    for i in range(20):
        a(f"v_add_f32 v{ACC+i}, v{ACC+i}, v{RD+i}")
        a(f"v_add_f32 v{RD+20+i}, v{RD+20+i}, v{RD+40+i}")
        a(f"v_mul_f32 v{ACC+i}, v{ACC+i}, v11")
        a(f"v_fma_f32 v{ACC+i}, v{RD+20+i}, v10, v{ACC+i}")
    for pr in range(2):
        b0 = ACC + pr * 8
        b1 = b0 + 4
        a(f"v_cvt_pk_bf16_f32 v{b0}, v{b0}, v{b0+1}")
        a(f"v_cvt_pk_bf16_f32 v{b0+1}, v{b0+2}, v{b0+3}")
        a(f"v_cvt_pk_bf16_f32 v{b0+2}, v{b1}, v{b1+1}")
        a(f"v_cvt_pk_bf16_f32 v{b0+3}, v{b1+2}, v{b1+3}")
        a("s_nop 1")
        a(f"v_permlane16_swap_b32 v{b0}, v{b0+2}")
        a(f"v_permlane16_swap_b32 v{b0+1}, v{b0+3}")
        a("s_nop 0")
        a(f"buffer_store_dwordx4 {vr(b0,4)}, v{vOut}, {sr(SOUT,4)}, s30 offen offset:{pr*64}")
    b0 = ACC + 16
    a(f"v_cvt_pk_bf16_f32 v{b0}, v{b0}, v{b0+1}")
    a(f"v_cvt_pk_bf16_f32 v{b0+1}, v{b0+2}, v{b0+3}")
    a(f"buffer_store_dwordx2 {vr(b0,2)}, v9, {sr(SOUT,4)}, s30 offen offset:128")
    stamp(a, 5)
    if STAMP: a("s_waitcnt vmcnt(0)")
    stamp(a, 6); stamp_rt(a, 7)
    stamp_flush(a, 2, SWS, sWave, 8, 10)
    a.label("K3_END")
    a("s_endpgm")
    return kernel_desc(name, 160 + NSET * 36, 160, 40)


def main():
    global STAMP
    if "--stamp" in sys.argv:
        STAMP = True
        sys.argv.remove("--stamp")
    ref = open(OUT + ".ref").read().split("\n")
    head = [l for l in ref if l.startswith(";") and "@launch" not in l]
    a = Asm()
    for l in head:
        a.raw(l)
    a.raw(f"; @launch kernel=qkv_kernel grid=(256,1,1) block=(512,1,1) lds={K1_LDS}")
    a.raw(f"; @launch kernel=attn_kernel grid=(256,1,1) block=(1024,1,1) lds={K2_LDS}")
    a.raw(f"; @launch kernel=proj_kernel grid=(256,1,1) block=(256,1,1) lds={K3_LDS}")
    a.raw('.amdgcn_target "amdgcn-amd-amdhsa--gfx950"')
    a.raw(".text")
    d = [gen_k1(a), gen_k2(a), gen_k3(a)]
    a.raw('.section .rodata,"a"')
    for x in d:
        a.raw(".p2align 6")
        a.raw(x.rstrip("\n"))
    out = sys.argv[1] if len(sys.argv) > 1 else OUT
    open(out, "w").write(a.text())
    print("wrote", out, len(a.L), "lines")


if __name__ == "__main__":
    main()
```

```python
import sys, math, struct, os
EXP = os.environ.get('EXP', '').split(',')

NAME = "gated_mix__sliding_local_dilated__mha_block__prompt"
OUT = f"cdna_kernels/{NAME}.s"

SEGB = 2621440
TB = 40960
O_OFF = 16 << 20
O_BR = 2621440
WOF_OFF = 24 << 20
WOF_BR = 819200
G_OFF = 28 << 20
WS_BYTES = 32 << 20
QSCALE = (20 ** -0.5) * math.log2(math.e)


def f32(x):
    return "0x%08x" % struct.unpack("<I", struct.pack("<f", x))[0]


def pi5(i):
    return (i & ~12) | ((i & 4) << 1) | ((i & 8) >> 1)


class Asm:
    def __init__(self):
        self.L = []

    def __call__(self, s):
        for l in s.strip("\n").split("\n"):
            self.L.append("    " + l.strip())

    def label(self, l):
        self.L.append(l + ":")

    def raw(self, s):
        self.L.append(s)

    def text(self):
        return "\n".join(self.L) + "\n"


def vr(b, n=1, p="v"):
    return f"{p}{b}" if n == 1 else f"{p}[{b}:{b+n-1}]"


def ar(b, n=1):
    return vr(b, n, "a")


def sr(b, n=1):
    return vr(b, n, "s")


STAMP = False
DBG_OFF = 30 << 20


def stamp(a, idx, sbase=70):
    if not STAMP:
        return
    a(f"s_memtime s[{sbase+16}:{sbase+17}]")
    a("s_waitcnt lgkmcnt(0)")
    a(f"s_mov_b32 s{sbase+idx}, s{sbase+16}")


def stamp_rt(a, idx, sbase=70):
    if not STAMP:
        return
    a(f"s_memrealtime s[{sbase+16}:{sbase+17}]")
    a("s_waitcnt lgkmcnt(0)")
    a(f"s_mov_b32 s{sbase+idx}, s{sbase+16}")


def stamp_flush(a, kidx, srd_ws, swave, n, vtmp, sbase=70, shift=4):
    if not STAMP:
        return
    a("s_mov_b64 exec, -1")
    a(f"s_lshl_b32 s{sbase+16}, s2, 4")
    a(f"s_add_u32 s{sbase+16}, s{sbase+16}, s{swave}")
    a(f"s_lshl_b32 s{sbase+16}, s{sbase+16}, 6")
    a(f"s_add_u32 s{sbase+16}, s{sbase+16}, {DBG_OFF + kidx*(1<<18)}")
    a(f"v_mov_b32 v{vtmp+1}, 0")
    for i in range(n):
        a(f"v_mov_b32 v{vtmp}, s{sbase+i}")
        a(f"buffer_store_dword v{vtmp}, v{vtmp+1}, s[{srd_ws}:{srd_ws+3}], s{sbase+16} offen offset:{4*i}")


def kernel_head(a, name):
    a.raw(f".globl {name}")
    a.raw(".p2align 8")
    a.raw(f".type {name},@function")
    a.label(name)


def kernel_desc(name, vgpr_total, accum, sgpr):
    return f""".amdhsa_kernel {name}
  .amdhsa_next_free_vgpr {vgpr_total}
  .amdhsa_next_free_sgpr {96 if STAMP else sgpr}
  .amdhsa_accum_offset {accum}
  .amdhsa_group_segment_fixed_size 0
  .amdhsa_kernarg_size 80
  .amdhsa_user_sgpr_count 2
  .amdhsa_user_sgpr_kernarg_segment_ptr 1
  .amdhsa_system_sgpr_workgroup_id_x 1
.end_amdhsa_kernel
"""


def srd(a, d, base, nbytes):
    a(f"s_mov_b32 s{d}, s{base}")
    a(f"s_mov_b32 s{d+1}, s{base+1}")
    a(f"s_mov_b32 s{d+2}, {nbytes}")
    a(f"s_mov_b32 s{d+3}, 0x00020000")


K1_WST = 16896
K1_NSW = 6 if 'k1_nsw6' in EXP else 5
K1_NSX = 3
K1_XB = K1_WST * K1_NSW
K1_LDS = K1_XB + K1_NSX * 16384


STF = '' if 'k1_plain' in EXP else ' sc1'


def gen_k1(a):
    name = "qkv_kernel"
    kernel_head(a, name)
    SX, SW, SR = 20, 24, 28
    sWave = 19
    a("s_cmp_ge_u32 s2, 256")
    a("s_cbranch_scc1 K1_END")
    stamp(a, 0); stamp_rt(a, 1)
    a("""
    s_load_dwordx4 s[4:7], s[0:1], 0
    s_load_dwordx2 s[8:9], s[0:1], 32
    s_load_dwordx2 s[10:11], s[0:1], 72
    v_lshrrev_b32 v2, 6, v0
    v_and_b32 v1, 63, v0
    s_and_b32 s12, s2, 7
    v_readfirstlane_b32 s19, v2
    s_cmp_ge_u32 s2, 240
    s_cbranch_scc1 K1_SIDE
    s_lshr_b32 s13, s2, 3
    s_mul_i32 s12, s12, 30
    s_add_u32 s12, s12, s13
    s_cmp_ge_u32 s12, 120
    s_cselect_b32 s14, 1, 0
    s_cselect_b32 s13, 120, 0
    s_sub_u32 s12, s12, s13
    s_and_b32 s15, s12, 7
    s_lshr_b32 s16, s12, 3
    v_and_b32 v3, 15, v1
    v_lshrrev_b32 v4, 4, v1
    """)
    a(f"""
    s_cmp_ge_u32 s{sWave}, 4
    s_cselect_b32 s12, 1, 0
    s_lshr_b32 s12, s{sWave}, s12
    s_and_b32 s12, s12, 1
    s_lshl_b32 s17, s16, 1
    s_add_u32 s17, s17, s12
    s_cmp_ge_u32 s17, 15
    s_cselect_b32 s18, 1, 0
    s_cselect_b32 s13, 15, 0
    s_sub_u32 s17, s17, s13
    s_movk_i32 s60, 3840
    s_mov_b32 s62, 2621440
    s_movk_i32 s63, 128
    s_cmp_ge_u32 s{sWave}, 4
    s_cbranch_scc0 K1_COMPUTE
    """)
    vW, vXg = 8, 12
    sWo, sXo, sWl, sXl, sWe, sXe = 32, 33, 34, 35, 36, 37
    ROTC, ROTR, ROTP = (0, 0, 0) if 'k1_norot' in EXP else ((5, 5, 0) if 'k1_rot2' in EXP else ((0, 0, 5) if 'k1_rotp' in EXP else (3, 1, 5)))
    a(f"""
    v_lshrrev_b32 v5, 1, v4
    v_and_b32 v6, 1, v4
    v_lshlrev_b32 v5, 4, v5
    v_lshl_add_u32 v5, v6, 2, v5
    v_mul_u32_u24 v5, 3840, v5
    v_lshl_add_u32 v{vW}, v3, 4, v5
    v_add_u32 v{vW+1}, 2784, v{vW}
    v_add_u32 v{vW+2}, {2*2784}, v{vW}
    v_add_u32 v{vW+3}, {3*2784}, v{vW}
    v_lshrrev_b32 v5, 3, v1
    v_and_b32 v6, 7, v1
    v_xor_b32 v6, v6, v5
    v_mul_u32_u24 v5, 2560, v5
    v_lshl_add_u32 v{vXg}, v6, 4, v5
    v_add_u32 v{vXg+1}, 19456, v{vXg}
    v_add_u32 v{vXg+2}, {2*19456}, v{vXg}
    v_add_u32 v{vXg+3}, {3*19456}, v{vXg}
    s_and_b32 s13, s{sWave}, 1
    s_mul_i32 s{sWo}, s13, {8*3840}
    s_lshl_b32 s3, s17, 8
    s_add_u32 s{sWo}, s{sWo}, s3
    s_and_b32 s3, s{sWave}, 3
    s_mul_i32 s{sWl}, s3, {4*1056}
    s_lshl_b32 s{sXl}, s3, 12
    s_add_u32 s{sXl}, s{sXl}, {K1_XB}
    s_lshl_b32 s13, s15, 2
    s_add_u32 s13, s13, s3
    s_mul_i32 s{sXo}, s13, {32*2560}
    s_mul_i32 s13, s14, 1280
    s_add_u32 s{sXo}, s{sXo}, s13
    s_add_u32 s{sWe}, s{sWo}, {20*122880}
    s_add_u32 s{sXe}, s{sXo}, 1280
    s_mul_i32 s3, s16, {ROTC}
    s_mul_i32 s13, s15, {ROTR}
    s_add_u32 s3, s3, s13
    s_mul_i32 s13, s14, {ROTP}
    s_add_u32 s3, s3, s13
    s_mul_i32 s13, s3, 6554
    s_lshr_b32 s13, s13, 16
    s_mul_i32 s13, s13, 10
    s_sub_u32 s3, s3, s13
    s_mul_i32 s13, s3, {2*122880}
    s_add_u32 s{sWo}, s{sWo}, s13
    s_lshl_b32 s13, s3, 7
    s_add_u32 s{sXo}, s{sXo}, s13
    s_cmp_eq_u32 s18, 0
    s_waitcnt lgkmcnt(0)
    s_cselect_b64 s[6:7], s[6:7], s[8:9]
    """)
    srd(a, SX, 4, 2621440)
    srd(a, SW, 6, 2457600)
    if STAMP:
        srd(a, SR, 10, WS_BYTES)
    hist = []

    def wl(k):
        a(f"s_add_u32 m0, s{sWl}, {(k % K1_NSW) * K1_WST}")
        if k:
            a(f"s_add_u32 s{sWo}, s{sWo}, 122880")
            if k % 2 == 0:
                a(f"s_cmp_ge_u32 s{sWo}, s{sWe}")
                a(f"s_cselect_b32 s3, {20*122880}, 0")
                a(f"s_sub_u32 s{sWo}, s{sWo}, s3")
        else:
            a("s_nop 0")
        for i in range(4):
            a(f"buffer_load_dwordx4 v{vW+i}, {sr(SW,4)}, s{sWo} offen offset:{1056*i} lds")
        hist.append(("W", k))

    def xl(j):
        a(f"s_add_u32 m0, s{sXl}, {(j % K1_NSX) * 16384}")
        if j:
            a(f"s_add_u32 s{sXo}, s{sXo}, 128")
            a(f"s_cmp_ge_u32 s{sXo}, s{sXe}")
            a(f"s_cselect_b32 s3, 1280, 0")
            a(f"s_sub_u32 s{sXo}, s{sXo}, s3")
        else:
            a("s_nop 0")
        for q in range(4):
            a(f"buffer_load_dwordx4 v{vXg+q}, {sr(SX,4)}, s{sXo} offen offset:{1024*q} lds")
        hist.append(("X", j))

    def need(ks):
        req = [("W", ks), ("X", ks // 2)]
        last = max(hist.index(r) for r in req)
        a(f"s_waitcnt vmcnt({4 * (len(hist) - 1 - last)})")
        a("s_barrier")

    xl(0); wl(0); wl(1); xl(1); wl(2)
    stamp(a, 2)
    need(0)
    stamp(a, 3)
    wl(3); xl(2); wl(4)
    if K1_NSW == 6: wl(5)
    for ks in range(19):
        need(ks + 1)
        if ks % 2 == 1 and (ks - 1) // 2 + K1_NSX < 10:
            xl((ks - 1) // 2 + K1_NSX)
        if ks + K1_NSW < 20:
            wl(ks + K1_NSW)
    a("s_barrier")
    stamp(a, 4); stamp(a, 5); stamp(a, 6); stamp_rt(a, 7)
    stamp_flush(a, 0, SR, sWave, 8, 2)
    a("s_endpgm")

    a.label("K1_COMPUTE")
    ACC = 32
    WFR = [0, 32]
    XFR = [64, 80]
    vTr0, vTr, vXr0, vXr, vSt = 8, 9, 10, 12, 14
    sRd, sXr, sIt, sSt, sSeg = 32, 33, 34, 36, 35
    TOUCH = 'k1_touch' in EXP
    ST, sTo, sTs = 44, 42, 43
    TD = 5
    if TOUCH:
        a(f"""
        v_lshrrev_b32 v5, 1, v1
        v_and_b32 v6, 1, v1
        v_lshlrev_b32 v6, 7, v6
        v_mad_u32_u24 v16, v5, s60, v6
        v_mul_u32_u24 v17, 2560, v1
        s_mul_i32 s{sTo}, s15, {8*3840}
        s_lshl_b32 s3, s17, 8
        s_add_u32 s{sTo}, s{sTo}, s3
        s_add_u32 s{sTo}, s{sTo}, {3*64*3840}
        s_lshl_b32 s3, s15, 3
        s_and_b32 s13, s16, 3
        s_lshl_b32 s13, s13, 1
        s_add_u32 s3, s3, s13
        s_and_b32 s13, s{sWave}, 1
        s_add_u32 s3, s3, s13
        s_mul_i32 s3, s3, {16*2560}
        s_mul_i32 s13, s14, 1280
        s_add_u32 s3, s3, s13
        s_add_u32 s3, s3, {3*128}
        s_cmp_eq_u32 s18, 0
        s_waitcnt lgkmcnt(0)
        s_cselect_b64 s[6:7], s[6:7], s[8:9]
        s_cmp_lt_u32 s{sWave}, 2
        s_cselect_b64 s[{ST}:{ST+1}], s[6:7], s[4:5]
        s_cselect_b32 s{ST+2}, 2457600, s62
        s_mov_b32 s{ST+3}, 0x00020000
        s_cselect_b32 s{sTo}, s{sTo}, s3
        s_cselect_b32 s{sTs}, {64*3840}, s63
        s_cselect_b64 s[50:51], -1, 0
        v_cndmask_b32 v16, v17, v16, s[50:51]
        v_cmp_gt_u32 s[50:51], 16, v1
        v_mov_b32 v17, 0x40000000
        s_nop 0
        v_cndmask_b32 v16, v17, v16, s[50:51]
        """)
        for b in range(3, TD):
            a(f"buffer_load_dword v18, v16, {sr(ST,4)}, s{sTo} offen")
            a(f"s_add_u32 s{sTo}, s{sTo}, s{sTs}")
    a(f"""
    v_and_b32 v5, 1, v4
    v_lshrrev_b32 v6, 2, v3
    v_lshl_add_u32 v5, v5, 2, v6
    v_mul_u32_u24 v5, 1056, v5
    v_lshrrev_b32 v6, 1, v4
    v_lshlrev_b32 v6, 9, v6
    v_and_b32 v7, 3, v3
    v_lshlrev_b32 v7, 3, v7
    v_add3_u32 v5, v5, v6, v7
    s_mul_i32 s3, s12, 8448
    v_add_u32 v{vTr0}, s3, v5
    v_and_b32 v5, 3, v3
    v_bfe_u32 v6, v3, 2, 1
    v_lshl_or_b32 v5, v6, 3, v5
    v_bfe_u32 v6, v3, 3, 1
    v_lshl_or_b32 v5, v6, 2, v5
    v_and_b32 v6, 7, v5
    v_xor_b32 v6, v6, v4
    v_lshlrev_b32 v6, 4, v6
    v_lshl_add_u32 v5, v5, 7, v6
    s_lshr_b32 s13, s{sWave}, 1
    s_lshl_b32 s3, s13, 13
    s_add_u32 s3, s3, {K1_XB}
    v_add_u32 v{vXr0}, s3, v5
    v_xor_b32 v{vXr0+1}, 64, v{vXr0}
    v_mov_b32 v{vXr}, v{vXr0}
    v_mov_b32 v{vXr+1}, v{vXr0+1}
    v_mov_b32 v{vTr}, v{vTr0}
    s_mov_b32 s{sRd}, {K1_WST}
    s_mov_b32 s{sXr}, 16384
    s_mov_b32 s{sIt}, 0
    s_mul_i32 s{sSeg}, s17, 52
    s_lshr_b32 s{sSeg}, s{sSeg}, 8
    s_mul_i32 s3, s{sSeg}, 5
    s_sub_u32 s17, s17, s3
    s_mul_i32 s3, s18, 3
    s_add_u32 s3, s3, s{sSeg}
    s_mul_i32 s{sSt}, s3, {SEGB}
    s_lshl_b32 s3, s14, 4
    s_lshl_b32 s16, s15, 1
    s_add_u32 s3, s3, s16
    s_add_u32 s3, s3, s13
    s_mul_i32 s3, s3, {2*TB}
    s_add_u32 s{sSt}, s{sSt}, s3
    s_waitcnt lgkmcnt(0)
    """)
    srd(a, SR, 10, WS_BYTES)
    for i in range(128):
        a(f"v_mov_b32 v{ACC+i}, 0")

    def reads(fset, kk):
        L = [f"ds_read_b128 {ar(XFR[fset]+4*mt,4)}, v{vXr+kk} offset:{2048*mt}" for mt in range(4)]
        for t in range(8):
            for s in range(2):
                L.append(f"ds_read_b64_tr_b16 {ar(WFR[fset]+4*t+2*s,2)}, v{vTr} offset:{s*256 + t*32}")
        return L

    stamp(a, 2)
    a("s_barrier")
    stamp(a, 3)
    for l in reads(0, 0):
        a(l)
    a(f"s_cmp_eq_u32 s{sSeg}, 2")
    a("s_cbranch_scc1 K1_LOOP_N")
    for ori in ("T", "N"):
        a.raw(".p2align 3")
        a.label(f"K1_LOOP_{ori}")
        for s in range(2):
            fs = s
            rd = reads(1 - fs, 1 - s)
            mf = []
            for t in range(8):
                for mt in range(4):
                    acc = vr(ACC + (t * 4 + mt) * 4, 4)
                    w = ar(WFR[fs] + 4 * t, 4)
                    x = ar(XFR[fs] + 4 * mt, 4)
                    if ori == "T":
                        mf.append(f"v_mfma_f32_16x16x32_bf16 {acc}, {w}, {x}, {acc}")
                    else:
                        mf.append(f"v_mfma_f32_16x16x32_bf16 {acc}, {x}, {w}, {acc}")
            a(f"v_add_u32 v{vTr}, s{sRd}, v{vTr0}")
            rest = [f"s_add_u32 s{sRd}, s{sRd}, {K1_WST}",
                    f"s_cmp_ge_u32 s{sRd}, {K1_XB}",
                    f"s_cselect_b32 s{sRd}, 0, s{sRd}"]
            if s == 0 and TOUCH:
                rest += [f"s_cmp_lt_u32 s{sIt}, {10-TD}",
                         f"s_cselect_b32 s{sTo}, s{sTo}, 0x40000000",
                         f"buffer_load_dword v18, v16, {sr(ST,4)}, s{sTo} offen",
                         f"s_add_u32 s{sTo}, s{sTo}, s{sTs}"]
            if s == 1:
                a(f"v_add_u32 v{vXr}, s{sXr}, v{vXr0}")
                rest += [f"v_add_u32 v{vXr+1}, s{sXr}, v{vXr0+1}",
                         f"s_add_u32 s{sXr}, s{sXr}, 16384",
                         f"s_cmp_ge_u32 s{sXr}, {K1_NSX*16384}",
                         f"s_cselect_b32 s{sXr}, 0, s{sXr}",
                         f"s_add_u32 s{sIt}, s{sIt}, 1",
                         f"s_cmp_lt_u32 s{sIt}, 10"]
            a("s_waitcnt lgkmcnt(0)")
            a("s_barrier")
            fill = rd + rest
            for i in range(32):
                a(mf[i])
                if i < len(fill):
                    a(fill[i])
        a(f"s_cbranch_scc1 K1_LOOP_{ori}")
        stamp(a, 4)
        if ori == "T":
            a(f"""
            s_lshl_b32 s3, s17, 13
            s_add_u32 s{sSt}, s{sSt}, s3
            s_add_u32 s{sSt+1}, s{sSt}, 4096
            s_add_u32 s{sSt+2}, s{sSt}, {TB}
            s_add_u32 s{sSt+3}, s{sSt+1}, {TB}
            s_cmp_eq_u32 s{sSeg}, 0
            s_cselect_b32 s40, {f32(QSCALE)}, 1.0
            s_mov_b32 s41, s40
            v_lshlrev_b32 v{vSt}, 4, v1
            s_nop 3
            """)
        else:
            a(f"""
            s_lshl_b32 s3, s17, 11
            s_add_u32 s{sSt}, s{sSt}, s3
            s_add_u32 s{sSt+2}, s{sSt}, {TB}
            v_mul_u32_u24 v5, 10240, v4
            v_lshl_add_u32 v{vSt}, v3, 4, v5
            s_nop 7
            """)
        for t in range(8):
            for mp in range(2):
                b0 = ACC + (t * 4 + 2 * mp) * 4
                b1 = b0 + 4
                if ori == "T":
                    for i in range(4):
                        a(f"v_pk_mul_f32 {vr(b0+2*i,2)}, {vr(b0+2*i,2)}, s[40:41]")
                a(f"v_cvt_pk_bf16_f32 v{b0}, v{b0}, v{b0+1}")
                a(f"v_cvt_pk_bf16_f32 v{b0+1}, v{b0+2}, v{b0+3}")
                a(f"v_cvt_pk_bf16_f32 v{b0+2}, v{b1}, v{b1+1}")
                a(f"v_cvt_pk_bf16_f32 v{b0+3}, v{b1+2}, v{b1+3}")
                a("s_nop 1")
                sw = "v_permlane16_swap_b32" if ori == "T" else "v_permlane32_swap_b32"
                a(f"{sw} v{b0}, v{b0+2}")
                a(f"{sw} v{b0+1}, v{b0+3}")
                a("s_nop 0")
                if ori == "T":
                    a(f"buffer_store_dwordx4 {vr(b0,4)}, v{vSt}, {sr(SR,4)}, s{sSt + 2*mp + t//4} offen offset:{(t%4)*1024}{STF}")
                else:
                    a(f"buffer_store_dwordx4 {vr(b0,4)}, v{vSt}, {sr(SR,4)}, s{sSt + 2*mp} offen offset:{t*256}{STF}")
        stamp(a, 5)
        if STAMP: a("s_waitcnt vmcnt(0)")
        stamp(a, 6); stamp_rt(a, 7)
        stamp_flush(a, 0, SR, sWave, 8, 2)
        a("s_endpgm")

    a.label("K1_SIDE")
    SGW, SWO = 32, 36
    a(f"""
    s_load_dwordx2 s[46:47], s[0:1], 16
    s_load_dwordx4 s[12:15], s[0:1], 40
    s_sub_u32 s16, s2, 240
    s_lshl_b32 s16, s16, 3
    s_add_u32 s16, s16, s{sWave}
    v_lshlrev_b32 v2, 2, v1
    v_lshlrev_b32 v5, 4, v1
    v_lshrrev_b32 v3, 3, v1
    v_and_b32 v4, 7, v1
    v_mul_u32_u24 v3, 1280, v3
    v_lshl_add_u32 v3, v4, 4, v3
    v_lshrrev_b32 v4, 4, v1
    v_bfe_u32 v6, v1, 2, 2
    v_lshl_add_u32 v4, v4, 3, v6
    v_and_b32 v6, 3, v1
    v_lshlrev_b32 v6, 3, v6
    v_lshl_add_u32 v6, v4, 7, v6
    s_lshl_b32 s40, s{sWave}, 14
    v_add_u32 v6, s40, v6
    v_mov_b32 v4, 0
    s_waitcnt lgkmcnt(0)
    """)
    srd(a, SX, 4, 2621440)
    srd(a, SR, 10, WS_BYTES)
    srd(a, SGW, 14, 1280)
    a(f"s_mov_b32 s{SWO+2}, 819200")
    a(f"s_mov_b32 s{SWO+3}, 0x00020000")
    for i in range(4):
        a(f"""
        s_add_u32 s41, s16, {128*i}
        s_cmp_ge_u32 s41, 200
        s_cselect_b32 s{SWO}, s12, s46
        s_cselect_b32 s{SWO+1}, s13, s47
        s_cselect_b32 s3, 200, 0
        s_cselect_b32 s{42+i}, {WOF_BR}, 0
        s_add_u32 s{42+i}, s{42+i}, {WOF_OFF}
        s_sub_u32 s3, s41, s3
        s_mul_i32 s17, s3, 6554
        s_lshr_b32 s17, s17, 16
        s_mul_i32 s18, s17, 10
        s_sub_u32 s18, s3, s18
        s_lshl_b32 s3, s17, 10
        s_add_u32 s{42+i}, s{42+i}, s3
        s_mul_i32 s3, s18, {4*20480}
        s_add_u32 s{42+i}, s{42+i}, s3
        s_mul_i32 s17, s17, {32*1280}
        s_lshl_b32 s18, s18, 7
        s_add_u32 s17, s17, s18
        s_cmp_ge_u32 s41, 400
        s_cselect_b32 s{42+i}, 0x7f000000, s{42+i}
        s_cselect_b32 s17, 0x7f000000, s17
        """)
        for q in range(4):
            a(f"s_add_u32 m0, s40, {4096*i + 1024*q}")
            a("s_nop 0")
            a(f"buffer_load_dwordx4 v3, {sr(SWO,4)}, s17 offen lds")
            a(f"s_add_u32 s17, s17, {8*1280}")
    GW, GX = 8, 16
    for i in range(5):
        a(f"buffer_load_dword v{GW+i}, v2, {sr(SGW,4)}, 0 offen offset:{256*i}")
    a(f"""
    s_and_b32 s3, s16, 63
    s_mul_i32 s17, s3, {16*2560}
    s_lshr_b32 s3, s16, 6
    s_mul_i32 s3, s3, 1280
    s_add_u32 s17, s17, s3
    s_lshl_b32 s18, s16, 6
    s_add_u32 s18, s18, {G_OFF}
    """)
    for half in range(2):
        for r in range(8):
            for i in range(5):
                a(f"buffer_load_dword v{GX+5*r+i}, v2, {sr(SX,4)}, s17 offen offset:{256*i}")
            a("s_add_u32 s17, s17, 2560")
        if half == 0:
            a("s_waitcnt vmcnt(45)")
            for i in range(4):
                for nt in range(4):
                    b = 72 + (4 * i + nt) * 4
                    a(f"ds_read_b64_tr_b16 {vr(b,2)}, v6 offset:{4096*i + 32*nt}")
                    a(f"ds_read_b64_tr_b16 {vr(b+2,2)}, v6 offset:{4096*i + 32*nt + 512}")
                a("s_waitcnt lgkmcnt(0)")
            a("s_waitcnt vmcnt(0)")
            for i in range(4):
                for nt in range(4):
                    b = 72 + (4 * i + nt) * 4
                    a(f"buffer_store_dwordx4 {vr(b,4)}, v5, {sr(SR,4)}, s{42+i} offen")
                    a(f"s_add_u32 s{42+i}, s{42+i}, 20480")
        else:
            a("s_waitcnt vmcnt(0)")
        for r in range(8):
            a(f"v_dot2_f32_bf16 v{60+r}, v{GX+5*r}, v{GW}, 0")
        for i in range(1, 5):
            for r in range(8):
                a(f"v_dot2_f32_bf16 v{60+r}, v{GX+5*r+i}, v{GW+i}, v{60+r}")
        a("s_nop 3")
        for sh in ("row_shr:1 row_mask:0xf bank_mask:0xf bound_ctrl:0", "row_shr:2 row_mask:0xf bank_mask:0xf bound_ctrl:0",
                   "row_shr:4 row_mask:0xf bank_mask:0xf bound_ctrl:0", "row_shr:8 row_mask:0xf bank_mask:0xf bound_ctrl:0",
                   "row_bcast:15 row_mask:0xa bank_mask:0xf", "row_bcast:31 row_mask:0xc bank_mask:0xf"):
            for r in range(8):
                a(f"v_add_f32_dpp v{60+r}, v{60+r}, v{60+r} {sh}")
        for r in range(8):
            a(f"v_mul_f32 v{60+r}, {f32(-math.log2(math.e))}, v{60+r}")
        for r in range(8):
            a(f"v_exp_f32 v{60+r}, v{60+r}")
        for r in range(8):
            a(f"v_add_f32 v{60+r}, 1.0, v{60+r}")
        for r in range(8):
            a(f"v_rcp_f32 v{60+r}, v{60+r}")
        a("s_mov_b32 exec_lo, 0")
        a("s_mov_b32 exec_hi, 0x80000000")
        a(f"buffer_store_dwordx4 v[60:63], v4, {sr(SR,4)}, s18 offen offset:{32*half}")
        a(f"buffer_store_dwordx4 v[64:67], v4, {sr(SR,4)}, s18 offen offset:{32*half+16}")
        a("s_mov_b64 exec, -1")
        a("s_nop 1")
    if STAMP:
        a("s_waitcnt vmcnt(0)")
        for i in range(2, 7):
            stamp(a, i)
        stamp_rt(a, 7)
        stamp_flush(a, 0, SR, sWave, 8, 2)
    a.label("K1_END")
    a("s_endpgm")
    return kernel_desc(name, 256, 160, 64)


K2_TILE = 2880
K2_SLOT = 16 * K2_TILE
K2_R = 3
K2_FLAG = K2_SLOT * K2_R + 256
K2_LDS = K2_FLAG + 256


def gen_k2(a):
    name = "attn_kernel"
    kernel_head(a, name)
    SWS = 20
    sWave, sHead, sT, sKh = 16, 17, 18, 19
    sDma, sM0, sSlot, sC, sRedo = 24, 25, 26, 27, 28
    sTA, sTAp, sOA, sOB, sTouch = 29, 30, 31, 32, 33
    sTmp = 36
    sPrev = 46
    vK10, vK20, vLV, vK1, vK2, vV, vO = 2, 3, 4, 5, 6, 7, 15
    vt = 8
    Q1, Q2 = 16, 20
    KF1, KF2 = 24, 28
    vD = 22
    vD2 = 30
    vGK1, vGK2 = 31, 112
    vGV, vX = 113, 114
    VF = 32
    P = 40
    NEGM = 48
    SB = [64, 80]
    O = 96
    AQ1, AQ2 = 116, 120
    AK1, AK2 = KF1, KF2
    AKP1, AKP2 = 124, 122
    AV = [VF, VF + 4, P]
    AC = SB
    NV = 128
    a("s_cmp_ge_u32 s2, 256")
    a("s_cbranch_scc1 K2_END")
    stamp(a, 0); stamp_rt(a, 1)
    a("""
    s_load_dwordx2 s[12:13], s[0:1], 72
    v_lshrrev_b32 v8, 6, v0
    v_and_b32 v1, 63, v0
    s_and_b32 s14, s2, 7
    v_readfirstlane_b32 s16, v8
    s_lshr_b32 s15, s2, 3
    s_lshl_b32 s17, s14, 2
    s_lshr_b32 s3, s15, 3
    s_add_u32 s17, s17, s3
    s_and_b32 s4, s15, 7
    s_lshl_b32 s18, s4, 3
    s_and_b32 s3, s16, 7
    s_add_u32 s18, s18, s3
    s_lshr_b32 s19, s16, 3
    """)
    a(f"""
    v_and_b32 v8, 31, v1
    v_lshrrev_b32 v9, 5, v1
    v_lshlrev_b32 v10, 4, v1
    s_and_b32 s4, s{sHead}, 1
    s_mul_i32 s5, s{sHead}, 5
    s_lshr_b32 s5, s5, 1
    s_lshl_b32 s5, s5, 9
    s_lshl_b32 s6, s4, 9
    s_cmp_eq_u32 s4, 0
    s_cselect_b32 s7, 1024, 8
    v_add_u32 v{vK1}, s6, v10
    v_lshl_add_u32 v{vK2}, v8, 4, s7
    v_add_u32 v{vGK1}, s5, v{vK1}
    v_add_u32 v{vGK2}, s5, v{vK2}
    s_add_u32 s5, s5, {4*SEGB}
    v_add_u32 v{vD}, s5, v10
    s_mul_i32 s6, s{sHead}, 320
    s_add_u32 s7, s6, {5*SEGB - 1024 - 512}
    v_cmp_le_u32 s[{sTmp}:{sTmp+1}], 53, v1
    v_mov_b32 v12, {10240-336}
    v_add_u32 v13, s7, v10
    v_cndmask_b32 v12, 0, v12, s[{sTmp}:{sTmp+1}]
    v_add_u32 v13, v13, v12
    v_cmp_le_u32 s[{sTmp}:{sTmp+1}], 32, v1
    v_add_u32 v11, 32, v1
    v_mul_u32_u24 v11, 49, v11
    v_cndmask_b32 v{vD+1}, v{vD}, v13, s[{sTmp}:{sTmp+1}]
    v_lshrrev_b32 v11, 10, v11
    v_mul_u32_u24 v11, {10240-336}, v11
    s_add_u32 s7, s6, {5*SEGB - 2048 + 512}
    v_add3_u32 v{vD2}, v11, v10, s7
    s_mul_i32 s{sTA}, s{sT}, {TB}
    s_add_u32 s8, s{sTA}, {3*SEGB}
    s_mul_i32 s{sDma}, s{sWave}, {TB}
    s_mul_i32 s{sM0}, s{sWave}, {K2_TILE}
    s_waitcnt lgkmcnt(0)
    """)
    srd(a, SWS, 12, WS_BYTES)

    m1 = ((1 << 64) - 1) & ~(1 << 52)
    m2 = ((1 << 52) - 1) & ~(1 << 9) & ~(1 << 30) & ~(1 << 51)

    def dma_chunk(c, dt=0):
        a(f"""
        s_add_u32 m0, s{sM0}, {(c % K2_R) * K2_SLOT + dt * K2_TILE}
        s_add_u32 s{sTmp}, s{sDma}, {(c * 16 + dt) * TB}
        buffer_load_dwordx4 v{vD}, {sr(SWS,4)}, s{sTmp} offen lds
        s_mov_b32 exec_hi, 0x{m1 >> 32:08x}
        buffer_load_dwordx4 v{vD+1}, {sr(SWS,4)}, s{sTmp} offen offset:1024 lds
        s_mov_b32 exec_lo, 0x{m2 & 0xffffffff:08x}
        s_mov_b32 exec_hi, 0x{m2 >> 32:08x}
        buffer_load_dwordx4 v{vD2}, {sr(SWS,4)}, s{sTmp} offen offset:2048 lds
        s_mov_b64 exec, -1
        """)

    dma_chunk(0)
    a(f"buffer_load_dwordx4 {vr(Q1,4)}, v{vGK1}, {sr(SWS,4)}, s8 offen")
    a(f"buffer_load_dwordx2 {vr(Q2,2)}, v{vGK2}, {sr(SWS,4)}, s8 offen")
    a(f"""
    s_mov_b32 s{sRedo}, 0
    v_mov_b32 v{VF}, 0x3f803f80
    v_mov_b32 v{VF+1}, 0x3f803f80
    v_mov_b32 v{VF+2}, 0x3f803f80
    v_mov_b32 v{VF+3}, 0x3f803f80
    v_bfe_u32 v11, v1, 2, 2
    v_min_u32 v11, 2, v11
    v_mul_u32_u24 v11, {K2_SLOT}, v11
    v_and_b32 v12, 3, v1
    v_mul_u32_u24 v12, 336, v12
    v_add3_u32 v11, v11, v12, s{sM0}
    ds_write_b128 v11, {vr(VF,4)} offset:{1536+320}
    v_mov_b32 v11, {K2_FLAG}
    v_mov_b32 v12, 0
    ds_write_b32 v11, v12
    s_mul_i32 s3, s{sKh}, {8*K2_TILE}
    v_add_u32 v{vK10}, s3, v{vK1}
    v_add_u32 v{vK20}, s3, v{vK2}
    v_mul_u32_u24 v11, 336, v9
    v_lshl_add_u32 v11, v8, 4, v11
    s_add_u32 s3, s3, 1536
    v_add_u32 v{vLV}, s3, v11
    v_mul_u32_u24 v11, 10240, v9
    v_lshl_add_u32 v11, v8, 4, v11
    v_add_u32 v{vGV}, s6, v11
    """)
    a(f"""
    v_and_b32 v10, 3, v8
    v_bfe_u32 v11, v8, 2, 1
    v_lshl_or_b32 v10, v11, 3, v10
    v_bfe_u32 v11, v8, 3, 1
    v_lshl_or_b32 v10, v11, 2, v10
    v_lshlrev_b32 v10, 4, v10
    v_lshrrev_b32 v11, 4, v8
    v_mul_u32_u24 v11, 20480, v11
    s_mul_i32 s3, s{sHead}, 5
    v_add_u32 v12, s3, v9
    v_lshrrev_b32 v13, 1, v12
    v_lshlrev_b32 v13, 8, v13
    v_and_b32 v12, 1, v12
    v_lshlrev_b32 v12, 3, v12
    v_add3_u32 v10, v10, v11, v12
    v_add_u32 v{vO}, v10, v13
    s_add_u32 s{sOA}, s{sTA}, {O_OFF}
    s_add_u32 s{sOB}, s{sOA}, {O_BR}
    s_lshl_b32 s{sTouch}, s15, 4
    s_add_u32 s{sTouch}, s{sTouch}, s{sWave}
    s_mul_i32 s{sTouch}, s{sTouch}, 3200
    s_add_u32 s{sTouch}, s{sTouch}, {WOF_OFF}
    s_and_b32 s3, s{sWave}, 7
    s_mul_i32 s3, s3, 3072
    s_add_u32 s3, s3, {K2_SLOT}
    v_lshlrev_b32 v10, 4, v1
    v_add_u32 v{vX}, s3, v10
    s_waitcnt vmcnt(0) lgkmcnt(0)
    """)
    stamp(a, 2)
    a(f"""
    s_barrier
    s_mov_b32 exec_lo, 0
    v_mov_b32 v{Q2}, 0
    v_mov_b32 v{Q2+1}, 0
    s_mov_b32 exec_lo, -1
    s_cmp_eq_u32 s{sKh}, 0
    s_cbranch_scc1 K2_B_START
    """)
    a(f"""
    s_and_b32 s14, s{sT}, 31
    s_cmp_lg_u32 s14, 0
    s_cselect_b32 s14, {TB}, 0
    s_cselect_b64 s[{sPrev}:{sPrev+1}], -1, 0
    s_sub_u32 s{sTAp}, s{sTA}, s14
    s_add_u32 s3, s{sTA}, {SEGB}
    s_add_u32 s4, s{sTAp}, {SEGB}
    """)
    for i in range(4):
        a(f"v_mov_b32 v{VF+4+i}, 0x3f803f80")
        a(f"v_mov_b32 v{P+i}, 0x3f803f80")
    for (r1, r2, so) in ((AQ1, AQ2, sTA), (AK1, AK2, 3), (AKP1, AKP2, 4)):
        a(f"buffer_load_dwordx4 {vr(r1,4)}, v{vGK1}, {sr(SWS,4)}, s{so} offen")
        a(f"buffer_load_dwordx2 {vr(r2,2)}, v{vGK2}, {sr(SWS,4)}, s{so} offen")
    a(f"""
    s_add_u32 s3, s{sTA}, {2*SEGB}
    s_add_u32 s4, s3, 20480
    s_add_u32 s5, s{sTAp}, {2*SEGB+20480}
    s_mov_b32 exec_lo, 0xffefffff
    s_mov_b32 exec_hi, 0xffefffff
    buffer_load_dwordx4 {vr(AV[0],4)}, v{vGV}, {sr(SWS,4)}, s3 offen
    buffer_load_dwordx4 {vr(AV[1],4)}, v{vGV}, {sr(SWS,4)}, s4 offen
    buffer_load_dwordx4 {vr(AV[2],4)}, v{vGV}, {sr(SWS,4)}, s5 offen
    s_mov_b64 exec, -1
    """)
    dma_chunk(1, -8)
    dma_chunk(1)
    dma_chunk(2, -8)
    dma_chunk(2)

    def maxtree(regs, dst):
        a(f"v_max3_f32 v{dst}, v{regs[0]}, v{regs[1]}, v{regs[2]}")
        i = 3
        while i + 1 < len(regs):
            a(f"v_max3_f32 v{dst}, v{dst}, v{regs[i]}, v{regs[i+1]}")
            i += 2
        if i < len(regs):
            a(f"v_max_f32 v{dst}, v{dst}, v{regs[i]}")
        a(f"v_mov_b32 v{dst+1}, v{dst}")
        a("s_nop 1")
        a(f"v_permlane32_swap_b32 v{dst}, v{dst+1}")
        a("s_nop 1")
        a(f"v_max_f32 v{dst}, v{dst}, v{dst+1}")

    def get_l():
        a(f"""
        v_mov_b32 v{vt}, v{O+8}
        v_mov_b32 v{vt+1}, v{O+8}
        s_nop 1
        v_permlane32_swap_b32 v{vt}, v{vt+1}
        s_nop 1
        """)

    def store_o(so, D):
        a(f"v_rcp_f32 v{vt}, v{vt+1}")
        a("s_nop 0")
        for r in range(12):
            a(f"v_mul_f32 v{O+r}, v{O+r}, v{vt}")
        for i in range(6):
            a(f"v_cvt_pk_bf16_f32 v{D+i}, v{O+2*i}, v{O+2*i+1}")
        a(f"buffer_store_dwordx2 {vr(D,2)}, v{vO}, {sr(SWS,4)}, s{so} offen")
        a(f"buffer_store_dwordx2 {vr(D+2,2)}, v{vO}, {sr(SWS,4)}, s{so} offen offset:256")
        a("s_mov_b32 exec_hi, 0")
        a(f"buffer_store_dwordx2 {vr(D+4,2)}, v{vO}, {sr(SWS,4)}, s{so} offen offset:512")
        a("s_mov_b32 exec_hi, -1")

    a(f"v_mov_b32 v{vt}, {f32(-1e30)}")

    def lanemask(fn):
        m = 0
        for l in range(64):
            if fn(l):
                m |= 1 << l
        return m
    k = 0
    for r in range(16):
        m = lanemask(lambda l: 0 <= pi5(l % 32) - (16 * (r // 8) + 8 * (l // 32) + r % 8) <= 7)
        sp = sTmp + 2 + 2 * (k % 3); k += 1
        a(f"s_mov_b32 s{sp}, 0x{m & 0xffffffff:08x}")
        a(f"s_mov_b32 s{sp+1}, 0x{m >> 32:08x}")
        a(f"v_cndmask_b32 v{AC[0]+r}, v{vt}, 0, s[{sp}:{sp+1}]")
    for r in range(8, 16):
        m = lanemask(lambda l: pi5(l % 32) + 32 - (16 * (r // 8) + 8 * (l // 32) + r % 8) <= 7)
        sp = sTmp + 2 + 2 * (k % 3); k += 1
        a(f"s_and_b32 s{sp}, s{sPrev}, 0x{m & 0xffffffff:08x}")
        a(f"s_and_b32 s{sp+1}, s{sPrev}, 0x{m >> 32:08x}")
        a(f"v_cndmask_b32 v{AC[1]+r}, v{vt}, 0, s[{sp}:{sp+1}]")
    a(f"""
    s_waitcnt vmcnt(12)
    s_mov_b32 exec_lo, 0
    v_mov_b32 v{AQ2}, 0
    v_mov_b32 v{AQ2+1}, 0
    s_mov_b32 exec_lo, -1
    s_nop 1
    v_mfma_f32_32x32x16_bf16 {vr(AC[0],16)}, {vr(AK1,4)}, {vr(AQ1,4)}, {vr(AC[0],16)}
    v_mfma_f32_32x32x8_bf16 {vr(AC[0],16)}, {vr(AK2,2)}, {vr(AQ2,2)}, {vr(AC[0],16)}
    v_mfma_f32_32x32x16_bf16 {vr(AC[1],16)}, {vr(AKP1,4)}, {vr(AQ1,4)}, {vr(AC[1],16)}
    v_mfma_f32_32x32x8_bf16 {vr(AC[1],16)}, {vr(AKP2,2)}, {vr(AQ2,2)}, {vr(AC[1],16)}
    s_nop 11
    """)
    aregs = [AC[0] + r for r in range(16)] + [AC[1] + r for r in range(8, 16)]
    maxtree(aregs, vt)
    for r in aregs:
        a(f"v_sub_f32 v{r}, v{r}, v{vt}")
    for r in aregs:
        a(f"v_exp_f32 v{r}, v{r}")
    a("s_nop 0")
    AP = NEGM
    for i in range(12):
        a(f"v_cvt_pk_bf16_f32 v{AP+i}, v{aregs[2*i]}, v{aregs[2*i+1]}")
    a(f"""
    s_nop 1
    v_mfma_f32_32x32x16_bf16 {vr(O,16)}, {vr(AV[0],4)}, {vr(AP,4)}, 0
    v_mfma_f32_32x32x16_bf16 {vr(O,16)}, {vr(AV[1],4)}, {vr(AP+4,4)}, {vr(O,16)}
    v_mfma_f32_32x32x16_bf16 {vr(O,16)}, {vr(AV[2],4)}, {vr(AP+8,4)}, {vr(O,16)}
    s_nop 11
    """)
    get_l()
    store_o(sOA, AQ1)

    def kreads(tile, k1=vK1, k2=vK2):
        o = tile * K2_TILE
        return [f"ds_read_b128 {vr(KF1,4)}, v{k1} offset:{o}",
                f"ds_read_b64 {vr(KF2,2)}, v{k2} offset:{o}"]

    def vread(tile, j):
        return f"ds_read_b128 {vr(VF+4*j,4)}, v{vV} offset:{tile * K2_TILE + 672*j}"

    def qk(sb, c):
        return [f"v_mfma_f32_32x32x16_bf16 {vr(sb,16)}, {vr(KF1,4)}, {vr(Q1,4)}, {c}",
                f"v_mfma_f32_32x32x8_bf16 {vr(sb,16)}, {vr(KF2,2)}, {vr(Q2,2)}, {vr(sb,16)}"]

    a.label("K2_B_START")
    stamp(a, 3)
    for l in kreads(0):
        a(l)
    a("s_waitcnt lgkmcnt(0)")
    for l in qk(SB[0], "0"):
        a(l)
    a.label("K2_B_RESTART")
    for l in kreads(0, vK10, vK20):
        a(l)
    for r in range(16):
        a(f"v_mov_b32 v{O+r}, 0")
    for r in range(4):
        a(f"v_mov_b32 v{P+4+r}, 0")
        a(f"v_mov_b32 v{VF+4+r}, 0")
    a(f"""
    v_mov_b32 v{vK1}, v{vK10}
    v_mov_b32 v{vK2}, v{vK20}
    v_mov_b32 v{vV}, v{vLV}
    s_mov_b32 s{sSlot}, {K2_SLOT}
    s_mov_b32 s{sC}, 0
    s_cmp_lg_u32 s{sRedo}, 0
    s_cbranch_scc1 K2_HAVE_M
    """)
    maxtree([SB[0] + r for r in range(16)], vt)
    for r in range(16):
        a(f"v_sub_f32 v{NEGM+r}, 0, v{vt}")
    a.label("K2_HAVE_M")
    a("s_waitcnt lgkmcnt(0)")
    a("s_nop 1")
    for l in qk(SB[0], vr(NEGM, 16)):
        a(l)
    for l in kreads(1):
        a(l)
    a(vread(0, 0))
    a("s_nop 9")
    stamp(a, 4)
    a.raw(".p2align 3")
    a.label("K2_LOOP")
    prio = {0: 3, 3: 2, 5: 1, 7: 0} if 'k2_noprio' not in EXP else {}
    for i in range(8):
        cur, nxt = SB[i % 2], SB[1 - i % 2]
        e = [f"v_exp_f32 v{cur+r}, v{cur+r}" for r in range(16)]
        c = [f"v_cvt_pk_bf16_f32 v{P+j}, v{cur+2*j}, v{cur+2*j+1}" for j in range(8)]
        q = qk(nxt, vr(NEGM, 16))
        pv = [f"v_mfma_f32_32x32x16_bf16 {vr(O,16)}, {vr(VF+4*j,4)}, {vr(P+4*j,4)}, {vr(O,16)}" for j in range(2)]
        kr = kreads((i + 2) % 8)
        if i == 6:
            a("s_waitcnt vmcnt(0)")
            a("s_barrier")
            a(f"s_cmp_eq_u32 s{sC}, 1")
            a("s_cbranch_scc1 K2_SIDE1")
            a.label("K2_SIDE_RET")
            a(f"v_add_u32 v{vK1}, s{sSlot}, v{vK10}")
            a(f"v_add_u32 v{vK2}, s{sSlot}, v{vK20}")
        if (i - 6) % 8 in prio:
            a(f"s_setprio {prio[(i - 6) % 8]}")
        a(e[0]); a(e[1])
        a(pv[1])
        a(vread(i, 1))
        a(e[2]); a(e[3]); a(c[0]); a(e[4]); a(c[1])
        a("s_waitcnt lgkmcnt(1)")
        a(q[0])
        a(e[5]); a(e[6]); a(e[7]); a(c[2]); a(e[8]); a(c[3])
        a(q[1])
        for l in kr:
            a(l)
        a(e[9]); a(e[10]); a(e[11]); a(c[4]); a(e[12]); a(c[5])
        if i == 7:
            a(f"v_add_u32 v{vV}, s{sSlot}, v{vLV}")
        a(pv[0])
        a(vread((i + 1) % 8, 0))
        a(e[13]); a(e[14]); a(e[15]); a(c[6])
        a("s_waitcnt lgkmcnt(3)")
        a(c[7])
        if i == 7:
            a(f"s_add_u32 s{sSlot}, s{sSlot}, {K2_SLOT}")
            a(f"s_cmp_ge_u32 s{sSlot}, {K2_SLOT*K2_R}")
            a(f"s_cselect_b32 s{sSlot}, 0, s{sSlot}")
    a(f"""
    s_add_u32 s{sC}, s{sC}, 1
    s_cmp_lt_u32 s{sC}, 4
    s_cbranch_scc1 K2_LOOP
    v_mfma_f32_32x32x16_bf16 {vr(O,16)}, {vr(VF+4,4)}, {vr(P+4,4)}, {vr(O,16)}
    v_mov_b32 v{vt+3}, {K2_FLAG}
    v_mov_b32 v{vt+4}, 1
    s_mov_b32 s3, {f32(2.0**100)}
    s_waitcnt lgkmcnt(0)
    s_nop 8
    """)
    stamp(a, 5)
    a(f"v_mov_b32 v{vt+2}, v{O+8}")
    a("s_mov_b32 exec_hi, 0")
    a(f"v_mul_f32 v{vt+2}, 0, v{O+8}")
    for r in range(9, 12):
        a(f"v_fma_f32 v{vt+2}, v{O+r}, 0, v{vt+2}")
    a("s_mov_b32 exec_hi, -1")
    for r in range(8):
        a(f"v_fma_f32 v{vt+2}, v{O+r}, 0, v{vt+2}")
    a(f"""
    v_cmp_nlt_f32 s[{sTmp}:{sTmp+1}], v{vt+2}, s3
    s_cmp_eq_u32 s{sKh}, 0
    s_cbranch_scc1 K2_NOXW
    ds_write_b128 v{vX}, {vr(O,4)}
    ds_write_b128 v{vX}, {vr(O+4,4)} offset:1024
    ds_write_b128 v{vX}, {vr(O+8,4)} offset:2048
    """)
    a.label("K2_NOXW")
    a(f"""
    s_cmp_eq_u64 s[{sTmp}:{sTmp+1}], 0
    s_cbranch_scc1 K2_NOFLAG
    ds_write_b32 v{vt+3}, v{vt+4}
    """)
    a.label("K2_NOFLAG")
    a(f"""
    s_waitcnt lgkmcnt(0)
    s_barrier
    ds_read_b32 v{vt+4}, v{vt+3}
    ds_read_b128 {vr(SB[0],4)}, v{vX}
    ds_read_b128 {vr(SB[0]+4,4)}, v{vX} offset:1024
    ds_read_b128 {vr(SB[0]+8,4)}, v{vX} offset:2048
    s_waitcnt lgkmcnt(0)
    v_readfirstlane_b32 s3, v{vt+4}
    s_nop 3
    s_cmp_gt_u32 s3, s{sRedo}
    s_cbranch_scc1 K2_FALLBACK
    s_cmp_eq_u32 s{sKh}, 0
    s_cbranch_scc0 K2_DONE
    """)
    for r in range(12):
        a(f"v_add_f32 v{O+r}, v{O+r}, v{SB[0]+r}")
    get_l()
    store_o(sOB, P)
    a.label("K2_DONE")
    if STAMP: a("s_waitcnt vmcnt(0)")
    stamp(a, 6); stamp_rt(a, 7)
    stamp_flush(a, 1, SWS, sWave, 8, 8, shift=4)
    a.label("K2_END")
    a("s_endpgm")

    a.label("K2_SIDE1")
    dma_chunk(3)
    a(f"""
    v_lshlrev_b32 v{vt}, 7, v1
    s_mov_b32 exec_lo, 0x1ffffff
    s_mov_b32 exec_hi, 0
    buffer_load_dword v{vt+1}, v{vt}, {sr(SWS,4)}, s{sTouch} offen
    s_mov_b64 exec, -1
    s_branch K2_SIDE_RET
    """)
    a.label("K2_FALLBACK")
    a(f"""
    s_mov_b32 s{sRedo}, 1
    s_mov_b32 s{sC}, {4*SEGB}
    v_mov_b32 v{vt+2}, 0xff800000
    s_barrier
    """)
    a(f"""
    v_mov_b32 v{VF}, 0x3f803f80
    v_mov_b32 v{VF+1}, 0x3f803f80
    v_mov_b32 v{VF+2}, 0x3f803f80
    v_mov_b32 v{VF+3}, 0x3f803f80
    v_bfe_u32 v11, v1, 2, 2
    v_min_u32 v11, 2, v11
    v_mul_u32_u24 v11, {K2_SLOT}, v11
    v_and_b32 v12, 3, v1
    v_mul_u32_u24 v12, 336, v12
    v_add3_u32 v11, v11, v12, s{sM0}
    ds_write_b128 v11, {vr(VF,4)} offset:{1536+320}
    """)
    for c in range(3):
        dma_chunk(c)
    a.label("K2_MAXLOOP")
    a(f"""
    buffer_load_dwordx4 {vr(KF1,4)}, v{vGK1}, {sr(SWS,4)}, s{sC} offen
    buffer_load_dwordx2 {vr(KF2,2)}, v{vGK2}, {sr(SWS,4)}, s{sC} offen
    s_waitcnt vmcnt(0)
    """)
    for l in qk(SB[0], "0"):
        a(l)
    a("s_nop 15")
    for r in range(0, 16, 2):
        a(f"v_max3_f32 v{vt+2}, v{vt+2}, v{SB[0]+r}, v{SB[0]+r+1}")
    a(f"""
    s_add_u32 s{sC}, s{sC}, {TB}
    s_cmp_lt_u32 s{sC}, {5*SEGB}
    s_cbranch_scc1 K2_MAXLOOP
    v_mov_b32 v{vt+3}, v{vt+2}
    s_nop 1
    v_permlane32_swap_b32 v{vt+2}, v{vt+3}
    s_nop 1
    v_max_f32 v{vt+2}, v{vt+2}, v{vt+3}
    """)
    for r in range(16):
        a(f"v_sub_f32 v{NEGM+r}, 0, v{vt+2}")
    a("s_waitcnt lgkmcnt(0)")
    a("s_barrier")
    a("s_branch K2_B_RESTART")
    return kernel_desc(name, NV, NV, 48)


K3_LDS = 4 * 4 * 5 * 1024


def gen_k3(a):
    name = "proj_kernel"
    kernel_head(a, name)
    SWS, SOUT = 20, 24
    sWave, sMb, sNb = 16, 17, 18
    sO, sW = 28, 29
    vJ = 2
    vG, vOut, vL16 = 7, 8, 2
    ACC = 16
    RD = 96
    NSET = 6
    a("s_cmp_ge_u32 s2, 256")
    a("s_cbranch_scc1 K3_END")
    stamp(a, 0); stamp_rt(a, 1)
    a("""
    s_load_dwordx2 s[4:5], s[0:1], 56
    s_load_dwordx2 s[6:7], s[0:1], 72
    v_lshrrev_b32 v9, 6, v0
    v_and_b32 v1, 63, v0
    s_and_b32 s14, s2, 7
    v_readfirstlane_b32 s16, v9
    s_lshr_b32 s15, s2, 3
    s_lshl_b32 s17, s14, 2
    s_and_b32 s3, s15, 3
    s_add_u32 s17, s17, s3
    s_lshr_b32 s18, s15, 2
    v_lshlrev_b32 v2, 4, v1
    """)
    for j in range(1, 5):
        a(f"v_add_u32 v{vJ+j}, {20480*j}, v{vJ}")
    a(f"""
    s_lshr_b32 s3, s{sWave}, 1
    s_and_b32 s14, s{sWave}, 1
    s_mul_i32 s14, s14, 10240
    s_mul_i32 s{sO}, s3, {O_BR}
    s_mul_i32 s15, s{sMb}, {4*20480}
    s_add_u32 s{sO}, s{sO}, s15
    s_add_u32 s{sO}, s{sO}, s14
    s_add_u32 s{sO}, s{sO}, {O_OFF}
    s_mul_i32 s{sW}, s3, {WOF_BR}
    s_mul_i32 s15, s{sNb}, {5*20480}
    s_add_u32 s{sW}, s{sW}, s15
    s_add_u32 s{sW}, s{sW}, s14
    s_add_u32 s{sW}, s{sW}, {WOF_OFF}
    s_waitcnt lgkmcnt(0)
    """)
    srd(a, SWS, 6, WS_BYTES)
    srd(a, SOUT, 4, 2621440)

    def loads(i):
        base = (i % NSET) * 36
        L = []
        if i in (4, 8):
            L.append(f"s_add_u32 s{sO}, s{sO}, 4096")
            L.append(f"s_add_u32 s{sW}, s{sW}, 4096")
        for nt in range(5):
            L.append(f"buffer_load_dwordx4 {ar(base+16+4*nt,4)}, v{vJ+nt}, {sr(SWS,4)}, s{sW} offen offset:{(i%4)*1024}")
        for mt in range(4):
            L.append(f"buffer_load_dwordx4 {ar(base+4*mt,4)}, v{vJ+mt}, {sr(SWS,4)}, s{sO} offen offset:{(i%4)*1024}")
        return L

    a(f"""
    v_and_b32 v9, 15, v1
    v_lshlrev_b32 v10, 2, v9
    s_lshl_b32 s3, s{sMb}, 2
    s_add_u32 s3, s3, s{sWave}
    s_lshl_b32 s14, s3, 6
    s_add_u32 s14, s14, {G_OFF}
    buffer_load_dword v{vG}, v10, {sr(SWS,4)}, s14 offen
    """)
    for i in range(NSET):
        for l in loads(i):
            a(l)
    a(f"""
    v_lshrrev_b32 v11, 4, v1
    v_mul_u32_u24 v12, 2560, v9
    v_and_b32 v13, 1, v11
    v_lshlrev_b32 v13, 5, v13
    v_lshrrev_b32 v14, 1, v11
    v_lshlrev_b32 v14, 4, v14
    v_add3_u32 v{vOut}, v12, v13, v14
    v_lshl_add_u32 v9, v11, 3, v12
    s_and_b32 s14, s3, 63
    s_mul_i32 s14, s14, {16*2560}
    s_lshr_b32 s15, s3, 6
    s_mul_i32 s15, s15, 1280
    s_add_u32 s30, s14, s15
    s_mul_i32 s15, s{sNb}, 160
    s_add_u32 s30, s30, s15
    """)
    issued = NSET
    for i in range(10):
        base = (i % NSET) * 36
        if i == 0: stamp(a, 2)
        a(f"s_waitcnt vmcnt({9*(issued-1-i)})")
        if i == 0: stamp(a, 3)
        for mt in range(4):
            for nt in range(5):
                acc = vr(ACC + (mt * 5 + nt) * 4, 4)
                c = "0" if i == 0 else acc
                a(f"v_mfma_f32_16x16x32_bf16 {acc}, {ar(base+16+4*nt,4)}, {ar(base+4*mt,4)}, {c}")
        if issued < 10:
            for l in loads(issued):
                a(l)
            issued += 1
    a("s_nop 7")
    stamp(a, 4)
    a(f"""
    s_mul_i32 s3, s{sWave}, 20480
    v_add_u32 v10, s3, v{vL16}
    s_mul_i32 s3, s{sWave}, 5120
    v_add_u32 v11, s3, v{vL16}
    """)
    for mt in range(4):
        a(f"s_cmp_eq_u32 s{sWave}, {mt}")
        a(f"s_cbranch_scc1 K3_SKIPW{mt}")
        for nt in range(5):
            a(f"ds_write_b128 v10, {vr(ACC+(mt*5+nt)*4,4)} offset:{(mt*5+nt)*1024}")
        a(f"s_branch K3_DONEW{mt}")
        a.label(f"K3_SKIPW{mt}")
        if mt != 0:
            for i in range(20):
                a(f"v_mov_b32 v{ACC+i}, v{ACC+mt*20+i}")
        a.label(f"K3_DONEW{mt}")
    a("s_waitcnt lgkmcnt(0)")
    a("s_barrier")
    for k, x in enumerate((1, 2, 3)):
        a(f"s_xor_b32 s3, s{sWave}, {x}")
        a(f"s_mul_i32 s3, s3, 20480")
        a(f"v_add_u32 v{12+k}, s3, v11")
    for k in range(3):
        for nt in range(5):
            a(f"ds_read_b128 {vr(RD+k*20+nt*4,4)}, v{12+k} offset:{nt*1024}")
    a(f"""
    v_sub_f32 v10, 1.0, v{vG}
    s_cmp_lt_u32 s{sWave}, 2
    s_cselect_b64 s[32:33], -1, 0
    v_cndmask_b32 v11, v10, v{vG}, s[32:33]
    v_cndmask_b32 v10, v{vG}, v10, s[32:33]
    s_waitcnt lgkmcnt(0)
    """)
    for i in range(20):
        a(f"v_add_f32 v{ACC+i}, v{ACC+i}, v{RD+i}")
        a(f"v_add_f32 v{RD+20+i}, v{RD+20+i}, v{RD+40+i}")
        a(f"v_mul_f32 v{ACC+i}, v{ACC+i}, v11")
        a(f"v_fma_f32 v{ACC+i}, v{RD+20+i}, v10, v{ACC+i}")
    for pr in range(2):
        b0 = ACC + pr * 8
        b1 = b0 + 4
        a(f"v_cvt_pk_bf16_f32 v{b0}, v{b0}, v{b0+1}")
        a(f"v_cvt_pk_bf16_f32 v{b0+1}, v{b0+2}, v{b0+3}")
        a(f"v_cvt_pk_bf16_f32 v{b0+2}, v{b1}, v{b1+1}")
        a(f"v_cvt_pk_bf16_f32 v{b0+3}, v{b1+2}, v{b1+3}")
        a("s_nop 1")
        a(f"v_permlane16_swap_b32 v{b0}, v{b0+2}")
        a(f"v_permlane16_swap_b32 v{b0+1}, v{b0+3}")
        a("s_nop 0")
        a(f"buffer_store_dwordx4 {vr(b0,4)}, v{vOut}, {sr(SOUT,4)}, s30 offen offset:{pr*64}")
    b0 = ACC + 16
    a(f"v_cvt_pk_bf16_f32 v{b0}, v{b0}, v{b0+1}")
    a(f"v_cvt_pk_bf16_f32 v{b0+1}, v{b0+2}, v{b0+3}")
    a(f"buffer_store_dwordx2 {vr(b0,2)}, v9, {sr(SOUT,4)}, s30 offen offset:128")
    stamp(a, 5)
    if STAMP: a("s_waitcnt vmcnt(0)")
    stamp(a, 6); stamp_rt(a, 7)
    stamp_flush(a, 2, SWS, sWave, 8, 10)
    a.label("K3_END")
    a("s_endpgm")
    return kernel_desc(name, 160 + NSET * 36, 160, 40)


def main():
    global STAMP
    if "--stamp" in sys.argv:
        STAMP = True
        sys.argv.remove("--stamp")
    ref = open(OUT + ".ref").read().split("\n")
    head = [l for l in ref if l.startswith(";") and "@launch" not in l]
    a = Asm()
    for l in head:
        a.raw(l)
    a.raw(f"; @launch kernel=qkv_kernel grid=(256,1,1) block=(512,1,1) lds={K1_LDS}")
    a.raw(f"; @launch kernel=attn_kernel grid=(256,1,1) block=(1024,1,1) lds={K2_LDS}")
    a.raw(f"; @launch kernel=proj_kernel grid=(256,1,1) block=(256,1,1) lds={K3_LDS}")
    a.raw('.amdgcn_target "amdgcn-amd-amdhsa--gfx950"')
    a.raw(".text")
    d = [gen_k1(a), gen_k2(a), gen_k3(a)]
    a.raw('.section .rodata,"a"')
    for x in d:
        a.raw(".p2align 6")
        a.raw(x.rstrip("\n"))
    out = sys.argv[1] if len(sys.argv) > 1 else OUT
    open(out, "w").write(a.text())
    print("wrote", out, len(a.L), "lines")


if __name__ == "__main__":
    main()
```

```python
import sys, math, struct, os
EXP = os.environ.get('EXP', '').split(',')

NAME = "gated_mix__sliding_local_dilated__mha_block__prompt"
OUT = f"cdna_kernels/{NAME}.s"

SEGB = 2621440
TB = 40960
O_OFF = 16 << 20
O_BR = 2621440
WOF_OFF = 24 << 20
WOF_BR = 819200
G_OFF = 28 << 20
WS_BYTES = 32 << 20
QSCALE = (20 ** -0.5) * math.log2(math.e)


def f32(x):
    return "0x%08x" % struct.unpack("<I", struct.pack("<f", x))[0]


def pi5(i):
    return (i & ~12) | ((i & 4) << 1) | ((i & 8) >> 1)


class Asm:
    def __init__(self):
        self.L = []

    def __call__(self, s):
        for l in s.strip("\n").split("\n"):
            self.L.append("    " + l.strip())

    def label(self, l):
        self.L.append(l + ":")

    def raw(self, s):
        self.L.append(s)

    def text(self):
        return "\n".join(self.L) + "\n"


def vr(b, n=1, p="v"):
    return f"{p}{b}" if n == 1 else f"{p}[{b}:{b+n-1}]"


def ar(b, n=1):
    return vr(b, n, "a")


def sr(b, n=1):
    return vr(b, n, "s")


STAMP = False
DBG_OFF = 30 << 20


def stamp(a, idx, sbase=70):
    if not STAMP:
        return
    a(f"s_memtime s[{sbase+16}:{sbase+17}]")
    a("s_waitcnt lgkmcnt(0)")
    a(f"s_mov_b32 s{sbase+idx}, s{sbase+16}")


def stamp_rt(a, idx, sbase=70):
    if not STAMP:
        return
    a(f"s_memrealtime s[{sbase+16}:{sbase+17}]")
    a("s_waitcnt lgkmcnt(0)")
    a(f"s_mov_b32 s{sbase+idx}, s{sbase+16}")


def stamp_flush(a, kidx, srd_ws, swave, n, vtmp, sbase=70, shift=4):
    if not STAMP:
        return
    a("s_mov_b64 exec, -1")
    a(f"s_lshl_b32 s{sbase+16}, s2, 4")
    a(f"s_add_u32 s{sbase+16}, s{sbase+16}, s{swave}")
    a(f"s_lshl_b32 s{sbase+16}, s{sbase+16}, 6")
    a(f"s_add_u32 s{sbase+16}, s{sbase+16}, {DBG_OFF + kidx*(1<<18)}")
    a(f"v_mov_b32 v{vtmp+1}, 0")
    for i in range(n):
        a(f"v_mov_b32 v{vtmp}, s{sbase+i}")
        a(f"buffer_store_dword v{vtmp}, v{vtmp+1}, s[{srd_ws}:{srd_ws+3}], s{sbase+16} offen offset:{4*i}")


def kernel_head(a, name):
    a.raw(f".globl {name}")
    a.raw(".p2align 8")
    a.raw(f".type {name},@function")
    a.label(name)


def kernel_desc(name, vgpr_total, accum, sgpr):
    return f""".amdhsa_kernel {name}
  .amdhsa_next_free_vgpr {vgpr_total}
  .amdhsa_next_free_sgpr {96 if STAMP else sgpr}
  .amdhsa_accum_offset {accum}
  .amdhsa_group_segment_fixed_size 0
  .amdhsa_kernarg_size 80
  .amdhsa_user_sgpr_count 2
  .amdhsa_user_sgpr_kernarg_segment_ptr 1
  .amdhsa_system_sgpr_workgroup_id_x 1
.end_amdhsa_kernel
"""


def srd(a, d, base, nbytes):
    a(f"s_mov_b32 s{d}, s{base}")
    a(f"s_mov_b32 s{d+1}, s{base+1}")
    a(f"s_mov_b32 s{d+2}, {nbytes}")
    a(f"s_mov_b32 s{d+3}, 0x00020000")


K1_WST = 16896
K1_NSW = 6 if 'k1_nsw6' in EXP else 5
K1_NSX = 3
K1_XB = K1_WST * K1_NSW
K1_LDS = K1_XB + K1_NSX * 16384


STF = '' if 'k1_plain' in EXP else (' nt' if 'k1_nt' in EXP else (' sc1 nt' if 'k1_sc1nt' in EXP else (' sc0 sc1 nt' if 'k1_all' in EXP else ' sc1')))


def gen_k1(a):
    name = "qkv_kernel"
    kernel_head(a, name)
    SX, SW, SR = 20, 24, 28
    sWave = 19
    a("s_cmp_ge_u32 s2, 256")
    a("s_cbranch_scc1 K1_END")
    stamp(a, 0); stamp_rt(a, 1)
    a("""
    s_load_dwordx4 s[4:7], s[0:1], 0
    s_load_dwordx2 s[8:9], s[0:1], 32
    s_load_dwordx2 s[10:11], s[0:1], 72
    v_lshrrev_b32 v2, 6, v0
    v_and_b32 v1, 63, v0
    s_and_b32 s12, s2, 7
    v_readfirstlane_b32 s19, v2
    s_cmp_ge_u32 s2, 240
    s_cbranch_scc1 K1_SIDE
    s_lshr_b32 s13, s2, 3
    s_mul_i32 s12, s12, 30
    s_add_u32 s12, s12, s13
    s_cmp_ge_u32 s12, 120
    s_cselect_b32 s14, 1, 0
    s_cselect_b32 s13, 120, 0
    s_sub_u32 s12, s12, s13
    s_and_b32 s15, s12, 7
    s_lshr_b32 s16, s12, 3
    v_and_b32 v3, 15, v1
    v_lshrrev_b32 v4, 4, v1
    """)
    a(f"""
    s_cmp_ge_u32 s{sWave}, 4
    s_cselect_b32 s12, 1, 0
    s_lshr_b32 s12, s{sWave}, s12
    s_and_b32 s12, s12, 1
    s_lshl_b32 s17, s16, 1
    s_add_u32 s17, s17, s12
    s_cmp_ge_u32 s17, 15
    s_cselect_b32 s18, 1, 0
    s_cselect_b32 s13, 15, 0
    s_sub_u32 s17, s17, s13
    s_movk_i32 s60, 3840
    s_mov_b32 s62, 2621440
    s_movk_i32 s63, 128
    s_cmp_ge_u32 s{sWave}, 4
    s_cbranch_scc0 K1_COMPUTE
    """)
    vW, vXg = 8, 12
    sWo, sXo, sWl, sXl, sWc, sXc, sOrd = 32, 33, 34, 35, 36, 37, 38
    K1_D = int(os.environ.get('K1D', '2'))
    ORD = []
    for g in range(4):
        o = list(range(10))
        for b in range(10):
            if b % 4 == g and K1_D:
                p = o.index(b)
                o.pop(p)
                o.insert(max(0, p - K1_D), b)
        ORD.append(sum(b << (4 * i) for i, b in enumerate(o)))
    a(f"""
    v_lshrrev_b32 v5, 1, v4
    v_and_b32 v6, 1, v4
    v_lshlrev_b32 v5, 4, v5
    v_lshl_add_u32 v5, v6, 2, v5
    v_mul_u32_u24 v5, 3840, v5
    v_lshl_add_u32 v{vW}, v3, 4, v5
    v_add_u32 v{vW+1}, 2784, v{vW}
    v_add_u32 v{vW+2}, {2*2784}, v{vW}
    v_add_u32 v{vW+3}, {3*2784}, v{vW}
    v_lshrrev_b32 v5, 3, v1
    v_and_b32 v6, 7, v1
    v_xor_b32 v6, v6, v5
    v_mul_u32_u24 v5, 2560, v5
    v_lshl_add_u32 v{vXg}, v6, 4, v5
    v_add_u32 v{vXg+1}, 19456, v{vXg}
    v_add_u32 v{vXg+2}, {2*19456}, v{vXg}
    v_add_u32 v{vXg+3}, {3*19456}, v{vXg}
    s_and_b32 s13, s{sWave}, 1
    s_mul_i32 s{sWo}, s13, {8*3840}
    s_lshl_b32 s3, s17, 8
    s_add_u32 s{sWo}, s{sWo}, s3
    s_and_b32 s3, s{sWave}, 3
    s_mul_i32 s{sWl}, s3, {4*1056}
    s_lshl_b32 s{sXl}, s3, 12
    s_add_u32 s{sXl}, s{sXl}, {K1_XB}
    s_lshl_b32 s13, s15, 2
    s_add_u32 s13, s13, s3
    s_mul_i32 s{sXo}, s13, {32*2560}
    s_mul_i32 s13, s14, 1280
    s_add_u32 s{sXo}, s{sXo}, s13
    s_add_u32 s3, s15, s16
    s_and_b32 s3, s3, 3
    s_mov_b32 s{sOrd}, {ORD[0] & 0xffffffff}
    s_mov_b32 s{sOrd+1}, {ORD[0] >> 32}
    s_cmp_eq_u32 s3, 1
    s_cselect_b32 s{sOrd}, {ORD[1] & 0xffffffff}, s{sOrd}
    s_cselect_b32 s{sOrd+1}, {ORD[1] >> 32}, s{sOrd+1}
    s_cmp_eq_u32 s3, 2
    s_cselect_b32 s{sOrd}, {ORD[2] & 0xffffffff}, s{sOrd}
    s_cselect_b32 s{sOrd+1}, {ORD[2] >> 32}, s{sOrd+1}
    s_cmp_eq_u32 s3, 3
    s_cselect_b32 s{sOrd}, {ORD[3] & 0xffffffff}, s{sOrd}
    s_cselect_b32 s{sOrd+1}, {ORD[3] >> 32}, s{sOrd+1}
    s_cmp_eq_u32 s18, 0
    s_waitcnt lgkmcnt(0)
    s_cselect_b64 s[6:7], s[6:7], s[8:9]
    """)
    srd(a, SX, 4, 2621440)
    srd(a, SW, 6, 2457600)
    if STAMP:
        srd(a, SR, 10, WS_BYTES)
    hist = []

    def blk(j, dst):
        r = sOrd + (j // 8)
        a(f"s_bfe_u32 s{dst}, s{r}, {(4 << 16) | (4 * (j % 8))}")

    def wl(k):
        a(f"s_add_u32 m0, s{sWl}, {(k % K1_NSW) * K1_WST}")
        if k % 2 == 0:
            blk(k // 2, sWc)
            a(f"s_mul_i32 s{sWc}, s{sWc}, {2*122880}")
            a(f"s_add_u32 s{sWc}, s{sWc}, s{sWo}")
        else:
            a(f"s_add_u32 s{sWc}, s{sWc}, 122880")
        for i in range(4):
            a(f"buffer_load_dwordx4 v{vW+i}, {sr(SW,4)}, s{sWc} offen offset:{1056*i} lds")
        hist.append(("W", k))

    def xl(j):
        a(f"s_add_u32 m0, s{sXl}, {(j % K1_NSX) * 16384}")
        blk(j, sXc)
        a(f"s_lshl_b32 s{sXc}, s{sXc}, 7")
        a(f"s_add_u32 s{sXc}, s{sXc}, s{sXo}")
        for q in range(4):
            a(f"buffer_load_dwordx4 v{vXg+q}, {sr(SX,4)}, s{sXc} offen offset:{1024*q} lds")
        hist.append(("X", j))

    def need(ks):
        req = [("W", ks), ("X", ks // 2)]
        last = max(hist.index(r) for r in req)
        a(f"s_waitcnt vmcnt({4 * (len(hist) - 1 - last)})")
        a("s_barrier")

    seq = []
    for j in range(10):
        seq += [("X", j), ("W", 2 * j), ("W", 2 * j + 1)]
    pos = [0]

    def free_at(it):
        t, i = it
        if t == "W":
            return i - K1_NSW
        return 2 * (i - K1_NSX) + 1

    def issue(step, nmax):
        n = 0
        while pos[0] < len(seq) and n < nmax and free_at(seq[pos[0]]) <= step:
            t, i = seq[pos[0]]
            (wl if t == "W" else xl)(i)
            pos[0] += 1
            n += 1
    RAMP = [int(c) for c in os.environ.get('K1RAMP', '32222')]
    issue(-2, RAMP[0])
    stamp(a, 2)
    need(0)
    stamp(a, 3)
    issue(-1, RAMP[1])
    for ks in range(19):
        need(ks + 1)
        if ks % 2 == 1 and ks <= 15: stamp(a, 8 + ks // 2)
        issue(ks, RAMP[ks + 2] if ks + 2 < len(RAMP) else RAMP[-1])
    assert pos[0] == len(seq)
    a("s_barrier")
    stamp(a, 4); stamp(a, 5); stamp(a, 6); stamp_rt(a, 7)
    stamp_flush(a, 0, SR, sWave, 16, 2)
    a("s_endpgm")

    a.label("K1_COMPUTE")
    ACC = 32
    WFR = [0, 32]
    XFR = [64, 80]
    vTr0, vTr, vXr0, vXr, vSt = 8, 9, 10, 12, 14
    sRd, sXr, sIt, sSt, sSeg = 32, 33, 34, 36, 35
    TOUCH = 'k1_touch' in EXP
    ST, sTo, sTs = 44, 42, 43
    TD = 5
    if TOUCH:
        a(f"""
        v_lshrrev_b32 v5, 1, v1
        v_and_b32 v6, 1, v1
        v_lshlrev_b32 v6, 7, v6
        v_mad_u32_u24 v16, v5, s60, v6
        v_mul_u32_u24 v17, 2560, v1
        s_mul_i32 s{sTo}, s15, {8*3840}
        s_lshl_b32 s3, s17, 8
        s_add_u32 s{sTo}, s{sTo}, s3
        s_add_u32 s{sTo}, s{sTo}, {3*64*3840}
        s_lshl_b32 s3, s15, 3
        s_and_b32 s13, s16, 3
        s_lshl_b32 s13, s13, 1
        s_add_u32 s3, s3, s13
        s_and_b32 s13, s{sWave}, 1
        s_add_u32 s3, s3, s13
        s_mul_i32 s3, s3, {16*2560}
        s_mul_i32 s13, s14, 1280
        s_add_u32 s3, s3, s13
        s_add_u32 s3, s3, {3*128}
        s_cmp_eq_u32 s18, 0
        s_waitcnt lgkmcnt(0)
        s_cselect_b64 s[6:7], s[6:7], s[8:9]
        s_cmp_lt_u32 s{sWave}, 2
        s_cselect_b64 s[{ST}:{ST+1}], s[6:7], s[4:5]
        s_cselect_b32 s{ST+2}, 2457600, s62
        s_mov_b32 s{ST+3}, 0x00020000
        s_cselect_b32 s{sTo}, s{sTo}, s3
        s_cselect_b32 s{sTs}, {64*3840}, s63
        s_cselect_b64 s[50:51], -1, 0
        v_cndmask_b32 v16, v17, v16, s[50:51]
        v_cmp_gt_u32 s[50:51], 16, v1
        v_mov_b32 v17, 0x40000000
        s_nop 0
        v_cndmask_b32 v16, v17, v16, s[50:51]
        """)
        for b in range(3, TD):
            a(f"buffer_load_dword v18, v16, {sr(ST,4)}, s{sTo} offen")
            a(f"s_add_u32 s{sTo}, s{sTo}, s{sTs}")
    a(f"""
    v_and_b32 v5, 1, v4
    v_lshrrev_b32 v6, 2, v3
    v_lshl_add_u32 v5, v5, 2, v6
    v_mul_u32_u24 v5, 1056, v5
    v_lshrrev_b32 v6, 1, v4
    v_lshlrev_b32 v6, 9, v6
    v_and_b32 v7, 3, v3
    v_lshlrev_b32 v7, 3, v7
    v_add3_u32 v5, v5, v6, v7
    s_mul_i32 s3, s12, 8448
    v_add_u32 v{vTr0}, s3, v5
    v_and_b32 v5, 3, v3
    v_bfe_u32 v6, v3, 2, 1
    v_lshl_or_b32 v5, v6, 3, v5
    v_bfe_u32 v6, v3, 3, 1
    v_lshl_or_b32 v5, v6, 2, v5
    v_and_b32 v6, 7, v5
    v_xor_b32 v6, v6, v4
    v_lshlrev_b32 v6, 4, v6
    v_lshl_add_u32 v5, v5, 7, v6
    s_lshr_b32 s13, s{sWave}, 1
    s_lshl_b32 s3, s13, 13
    s_add_u32 s3, s3, {K1_XB}
    v_add_u32 v{vXr0}, s3, v5
    v_xor_b32 v{vXr0+1}, 64, v{vXr0}
    v_mov_b32 v{vXr}, v{vXr0}
    v_mov_b32 v{vXr+1}, v{vXr0+1}
    v_mov_b32 v{vTr}, v{vTr0}
    s_mov_b32 s{sRd}, {K1_WST}
    s_mov_b32 s{sXr}, 16384
    s_mov_b32 s{sIt}, 0
    s_mul_i32 s{sSeg}, s17, 52
    s_lshr_b32 s{sSeg}, s{sSeg}, 8
    s_mul_i32 s3, s{sSeg}, 5
    s_sub_u32 s17, s17, s3
    s_mul_i32 s3, s18, 3
    s_add_u32 s3, s3, s{sSeg}
    s_mul_i32 s{sSt}, s3, {SEGB}
    s_lshl_b32 s3, s14, 4
    s_lshl_b32 s16, s15, 1
    s_add_u32 s3, s3, s16
    s_add_u32 s3, s3, s13
    s_mul_i32 s3, s3, {2*TB}
    s_add_u32 s{sSt}, s{sSt}, s3
    s_waitcnt lgkmcnt(0)
    """)
    srd(a, SR, 10, WS_BYTES)
    for i in range(128):
        a(f"v_mov_b32 v{ACC+i}, 0")

    def reads(fset, kk):
        L = [f"ds_read_b128 {ar(XFR[fset]+4*mt,4)}, v{vXr+kk} offset:{2048*mt}" for mt in range(4)]
        for t in range(8):
            for s in range(2):
                L.append(f"ds_read_b64_tr_b16 {ar(WFR[fset]+4*t+2*s,2)}, v{vTr} offset:{s*256 + t*32}")
        return L

    stamp(a, 2)
    a("s_barrier")
    stamp(a, 3)
    for l in reads(0, 0):
        a(l)
    a(f"s_cmp_eq_u32 s{sSeg}, 2")
    a("s_cbranch_scc1 K1_LOOP_N")
    for ori in ("T", "N"):
        a.raw(".p2align 3")
        a.label(f"K1_LOOP_{ori}")
        for s in range(2):
            fs = s
            rd = reads(1 - fs, 1 - s)
            mf = []
            for t in range(8):
                for mt in range(4):
                    acc = vr(ACC + (t * 4 + mt) * 4, 4)
                    w = ar(WFR[fs] + 4 * t, 4)
                    x = ar(XFR[fs] + 4 * mt, 4)
                    if ori == "T":
                        mf.append(f"v_mfma_f32_16x16x32_bf16 {acc}, {w}, {x}, {acc}")
                    else:
                        mf.append(f"v_mfma_f32_16x16x32_bf16 {acc}, {x}, {w}, {acc}")
            a(f"v_add_u32 v{vTr}, s{sRd}, v{vTr0}")
            rest = [f"s_add_u32 s{sRd}, s{sRd}, {K1_WST}",
                    f"s_cmp_ge_u32 s{sRd}, {K1_XB}",
                    f"s_cselect_b32 s{sRd}, 0, s{sRd}"]
            if s == 0 and TOUCH:
                rest += [f"s_cmp_lt_u32 s{sIt}, {10-TD}",
                         f"s_cselect_b32 s{sTo}, s{sTo}, 0x40000000",
                         f"buffer_load_dword v18, v16, {sr(ST,4)}, s{sTo} offen",
                         f"s_add_u32 s{sTo}, s{sTo}, s{sTs}"]
            if s == 1:
                a(f"v_add_u32 v{vXr}, s{sXr}, v{vXr0}")
                rest += [f"v_add_u32 v{vXr+1}, s{sXr}, v{vXr0+1}",
                         f"s_add_u32 s{sXr}, s{sXr}, 16384",
                         f"s_cmp_ge_u32 s{sXr}, {K1_NSX*16384}",
                         f"s_cselect_b32 s{sXr}, 0, s{sXr}",
                         f"s_add_u32 s{sIt}, s{sIt}, 1",
                         f"s_cmp_lt_u32 s{sIt}, 10"]
            a("s_waitcnt lgkmcnt(0)")
            a("s_barrier")
            fill = rd + rest
            for i in range(32):
                a(mf[i])
                if i < len(fill):
                    a(fill[i])
        a(f"s_cbranch_scc1 K1_LOOP_{ori}")
        stamp(a, 4)
        if ori == "T":
            a(f"""
            s_lshl_b32 s3, s17, 13
            s_add_u32 s{sSt}, s{sSt}, s3
            s_add_u32 s{sSt+1}, s{sSt}, 4096
            s_add_u32 s{sSt+2}, s{sSt}, {TB}
            s_add_u32 s{sSt+3}, s{sSt+1}, {TB}
            s_cmp_eq_u32 s{sSeg}, 0
            s_cselect_b32 s40, {f32(QSCALE)}, 1.0
            s_mov_b32 s41, s40
            v_lshlrev_b32 v{vSt}, 4, v1
            s_nop 3
            """)
        else:
            a(f"""
            s_lshl_b32 s3, s17, 11
            s_add_u32 s{sSt}, s{sSt}, s3
            s_add_u32 s{sSt+2}, s{sSt}, {TB}
            v_mul_u32_u24 v5, 10240, v4
            v_lshl_add_u32 v{vSt}, v3, 4, v5
            s_nop 7
            """)
        for t in range(8):
            for mp in range(2):
                b0 = ACC + (t * 4 + 2 * mp) * 4
                b1 = b0 + 4
                if ori == "T":
                    for i in range(4):
                        a(f"v_pk_mul_f32 {vr(b0+2*i,2)}, {vr(b0+2*i,2)}, s[40:41]")
                a(f"v_cvt_pk_bf16_f32 v{b0}, v{b0}, v{b0+1}")
                a(f"v_cvt_pk_bf16_f32 v{b0+1}, v{b0+2}, v{b0+3}")
                a(f"v_cvt_pk_bf16_f32 v{b0+2}, v{b1}, v{b1+1}")
                a(f"v_cvt_pk_bf16_f32 v{b0+3}, v{b1+2}, v{b1+3}")
                a("s_nop 1")
                sw = "v_permlane16_swap_b32" if ori == "T" else "v_permlane32_swap_b32"
                a(f"{sw} v{b0}, v{b0+2}")
                a(f"{sw} v{b0+1}, v{b0+3}")
                a("s_nop 0")
                if ori == "T":
                    a(f"buffer_store_dwordx4 {vr(b0,4)}, v{vSt}, {sr(SR,4)}, s{sSt + 2*mp + t//4} offen offset:{(t%4)*1024}{STF}")
                else:
                    a(f"buffer_store_dwordx4 {vr(b0,4)}, v{vSt}, {sr(SR,4)}, s{sSt + 2*mp} offen offset:{t*256}{STF}")
        stamp(a, 5)
        if STAMP: a("s_waitcnt vmcnt(0)")
        stamp(a, 6); stamp_rt(a, 7)
        stamp_flush(a, 0, SR, sWave, 8, 2)
        a("s_endpgm")

    a.label("K1_SIDE")
    SGW, SWO = 32, 36
    a(f"""
    s_load_dwordx2 s[46:47], s[0:1], 16
    s_load_dwordx4 s[12:15], s[0:1], 40
    s_sub_u32 s16, s2, 240
    s_lshl_b32 s16, s16, 3
    s_add_u32 s16, s16, s{sWave}
    v_lshlrev_b32 v2, 2, v1
    v_lshlrev_b32 v5, 4, v1
    v_lshrrev_b32 v3, 3, v1
    v_and_b32 v4, 7, v1
    v_mul_u32_u24 v3, 1280, v3
    v_lshl_add_u32 v3, v4, 4, v3
    v_lshrrev_b32 v4, 4, v1
    v_bfe_u32 v6, v1, 2, 2
    v_lshl_add_u32 v4, v4, 3, v6
    v_and_b32 v6, 3, v1
    v_lshlrev_b32 v6, 3, v6
    v_lshl_add_u32 v6, v4, 7, v6
    s_lshl_b32 s40, s{sWave}, 14
    v_add_u32 v6, s40, v6
    v_mov_b32 v4, 0
    s_waitcnt lgkmcnt(0)
    """)
    srd(a, SX, 4, 2621440)
    srd(a, SR, 10, WS_BYTES)
    srd(a, SGW, 14, 1280)
    a(f"s_mov_b32 s{SWO+2}, 819200")
    a(f"s_mov_b32 s{SWO+3}, 0x00020000")
    for i in range(4):
        a(f"""
        s_add_u32 s41, s16, {128*i}
        s_cmp_ge_u32 s41, 200
        s_cselect_b32 s{SWO}, s12, s46
        s_cselect_b32 s{SWO+1}, s13, s47
        s_cselect_b32 s3, 200, 0
        s_cselect_b32 s{42+i}, {WOF_BR}, 0
        s_add_u32 s{42+i}, s{42+i}, {WOF_OFF}
        s_sub_u32 s3, s41, s3
        s_mul_i32 s17, s3, 6554
        s_lshr_b32 s17, s17, 16
        s_mul_i32 s18, s17, 10
        s_sub_u32 s18, s3, s18
        s_lshl_b32 s3, s17, 10
        s_add_u32 s{42+i}, s{42+i}, s3
        s_mul_i32 s3, s18, {4*20480}
        s_add_u32 s{42+i}, s{42+i}, s3
        s_mul_i32 s17, s17, {32*1280}
        s_lshl_b32 s18, s18, 7
        s_add_u32 s17, s17, s18
        s_cmp_ge_u32 s41, 400
        s_cselect_b32 s{42+i}, 0x7f000000, s{42+i}
        s_cselect_b32 s17, 0x7f000000, s17
        """)
        for q in range(4):
            a(f"s_add_u32 m0, s40, {4096*i + 1024*q}")
            a("s_nop 0")
            a(f"buffer_load_dwordx4 v3, {sr(SWO,4)}, s17 offen lds")
            a(f"s_add_u32 s17, s17, {8*1280}")
    GW, GX = 8, 16
    for i in range(5):
        a(f"buffer_load_dword v{GW+i}, v2, {sr(SGW,4)}, 0 offen offset:{256*i}")
    a(f"""
    s_and_b32 s3, s16, 63
    s_mul_i32 s17, s3, {16*2560}
    s_lshr_b32 s3, s16, 6
    s_mul_i32 s3, s3, 1280
    s_add_u32 s17, s17, s3
    s_lshl_b32 s18, s16, 6
    s_add_u32 s18, s18, {G_OFF}
    """)
    for half in range(2):
        for r in range(8):
            for i in range(5):
                a(f"buffer_load_dword v{GX+5*r+i}, v2, {sr(SX,4)}, s17 offen offset:{256*i}")
            a("s_add_u32 s17, s17, 2560")
        if half == 0:
            a("s_waitcnt vmcnt(45)")
            for i in range(4):
                for nt in range(4):
                    b = 72 + (4 * i + nt) * 4
                    a(f"ds_read_b64_tr_b16 {vr(b,2)}, v6 offset:{4096*i + 32*nt}")
                    a(f"ds_read_b64_tr_b16 {vr(b+2,2)}, v6 offset:{4096*i + 32*nt + 512}")
                a("s_waitcnt lgkmcnt(0)")
            a("s_waitcnt vmcnt(0)")
            for i in range(4):
                for nt in range(4):
                    b = 72 + (4 * i + nt) * 4
                    a(f"buffer_store_dwordx4 {vr(b,4)}, v5, {sr(SR,4)}, s{42+i} offen")
                    a(f"s_add_u32 s{42+i}, s{42+i}, 20480")
        else:
            a("s_waitcnt vmcnt(0)")
        for r in range(8):
            a(f"v_dot2_f32_bf16 v{60+r}, v{GX+5*r}, v{GW}, 0")
        for i in range(1, 5):
            for r in range(8):
                a(f"v_dot2_f32_bf16 v{60+r}, v{GX+5*r+i}, v{GW+i}, v{60+r}")
        a("s_nop 3")
        for sh in ("row_shr:1 row_mask:0xf bank_mask:0xf bound_ctrl:0", "row_shr:2 row_mask:0xf bank_mask:0xf bound_ctrl:0",
                   "row_shr:4 row_mask:0xf bank_mask:0xf bound_ctrl:0", "row_shr:8 row_mask:0xf bank_mask:0xf bound_ctrl:0",
                   "row_bcast:15 row_mask:0xa bank_mask:0xf", "row_bcast:31 row_mask:0xc bank_mask:0xf"):
            for r in range(8):
                a(f"v_add_f32_dpp v{60+r}, v{60+r}, v{60+r} {sh}")
        for r in range(8):
            a(f"v_mul_f32 v{60+r}, {f32(-math.log2(math.e))}, v{60+r}")
        for r in range(8):
            a(f"v_exp_f32 v{60+r}, v{60+r}")
        for r in range(8):
            a(f"v_add_f32 v{60+r}, 1.0, v{60+r}")
        for r in range(8):
            a(f"v_rcp_f32 v{60+r}, v{60+r}")
        a("s_mov_b32 exec_lo, 0")
        a("s_mov_b32 exec_hi, 0x80000000")
        a(f"buffer_store_dwordx4 v[60:63], v4, {sr(SR,4)}, s18 offen offset:{32*half}")
        a(f"buffer_store_dwordx4 v[64:67], v4, {sr(SR,4)}, s18 offen offset:{32*half+16}")
        a("s_mov_b64 exec, -1")
        a("s_nop 1")
    if STAMP:
        a("s_waitcnt vmcnt(0)")
        for i in range(2, 7):
            stamp(a, i)
        stamp_rt(a, 7)
        stamp_flush(a, 0, SR, sWave, 8, 2)
    a.label("K1_END")
    a("s_endpgm")
    return kernel_desc(name, 256, 160, 64)


K2_TILE = 2880
K2_SLOT = 16 * K2_TILE
K2_R = 3
K2_FLAG = K2_SLOT * K2_R + 256
K2_LDS = K2_FLAG + 256


def gen_k2(a):
    name = "attn_kernel"
    kernel_head(a, name)
    SWS = 20
    sWave, sHead, sT, sKh = 16, 17, 18, 19
    sDma, sM0, sSlot, sC, sRedo = 24, 25, 26, 27, 28
    sTA, sTAp, sOA, sOB, sTouch = 29, 30, 31, 32, 33
    sTmp = 36
    sPrev = 46
    vK10, vK20, vLV, vK1, vK2, vV, vO = 2, 3, 4, 5, 6, 7, 15
    vt = 8
    Q1, Q2 = 16, 20
    KF1, KF2 = 24, 28
    vD = 22
    vD2 = 30
    vGK1, vGK2 = 31, 112
    vGV, vX = 113, 114
    VF = 32
    P = 40
    NEGM = 48
    SB = [64, 80]
    O = 96
    AQ1, AQ2 = 116, 120
    AK1, AK2 = KF1, KF2
    AKP1, AKP2 = 124, 122
    AV = [VF, VF + 4, P]
    AC = SB
    NV = 128
    a("s_cmp_ge_u32 s2, 256")
    a("s_cbranch_scc1 K2_END")
    stamp(a, 0); stamp_rt(a, 1)
    a("""
    s_load_dwordx2 s[12:13], s[0:1], 72
    v_lshrrev_b32 v8, 6, v0
    v_and_b32 v1, 63, v0
    s_and_b32 s14, s2, 7
    v_readfirstlane_b32 s16, v8
    s_lshr_b32 s15, s2, 3
    s_lshl_b32 s17, s14, 2
    s_lshr_b32 s3, s15, 3
    s_add_u32 s17, s17, s3
    s_and_b32 s4, s15, 7
    s_lshl_b32 s18, s4, 3
    s_and_b32 s3, s16, 7
    s_add_u32 s18, s18, s3
    s_lshr_b32 s19, s16, 3
    """)
    a(f"""
    v_and_b32 v8, 31, v1
    v_lshrrev_b32 v9, 5, v1
    v_lshlrev_b32 v10, 4, v1
    s_and_b32 s4, s{sHead}, 1
    s_mul_i32 s5, s{sHead}, 5
    s_lshr_b32 s5, s5, 1
    s_lshl_b32 s5, s5, 9
    s_lshl_b32 s6, s4, 9
    s_cmp_eq_u32 s4, 0
    s_cselect_b32 s7, 1024, 8
    v_add_u32 v{vK1}, s6, v10
    v_lshl_add_u32 v{vK2}, v8, 4, s7
    v_add_u32 v{vGK1}, s5, v{vK1}
    v_add_u32 v{vGK2}, s5, v{vK2}
    s_add_u32 s5, s5, {4*SEGB}
    v_add_u32 v{vD}, s5, v10
    s_mul_i32 s6, s{sHead}, 320
    s_add_u32 s7, s6, {5*SEGB - 1024 - 512}
    v_cmp_le_u32 s[{sTmp}:{sTmp+1}], 53, v1
    v_mov_b32 v12, {10240-336}
    v_add_u32 v13, s7, v10
    v_cndmask_b32 v12, 0, v12, s[{sTmp}:{sTmp+1}]
    v_add_u32 v13, v13, v12
    v_cmp_le_u32 s[{sTmp}:{sTmp+1}], 32, v1
    v_add_u32 v11, 32, v1
    v_mul_u32_u24 v11, 49, v11
    v_cndmask_b32 v{vD+1}, v{vD}, v13, s[{sTmp}:{sTmp+1}]
    v_lshrrev_b32 v11, 10, v11
    v_mul_u32_u24 v11, {10240-336}, v11
    s_add_u32 s7, s6, {5*SEGB - 2048 + 512}
    v_add3_u32 v{vD2}, v11, v10, s7
    s_mul_i32 s{sTA}, s{sT}, {TB}
    s_add_u32 s8, s{sTA}, {3*SEGB}
    s_mul_i32 s{sDma}, s{sWave}, {TB}
    s_mul_i32 s{sM0}, s{sWave}, {K2_TILE}
    s_waitcnt lgkmcnt(0)
    """)
    srd(a, SWS, 12, WS_BYTES)

    m1 = ((1 << 64) - 1) & ~(1 << 52)
    m2 = ((1 << 52) - 1) & ~(1 << 9) & ~(1 << 30) & ~(1 << 51)

    def dma_chunk(c, dt=0):
        a(f"""
        s_add_u32 m0, s{sM0}, {(c % K2_R) * K2_SLOT + dt * K2_TILE}
        s_add_u32 s{sTmp}, s{sDma}, {(c * 16 + dt) * TB}
        buffer_load_dwordx4 v{vD}, {sr(SWS,4)}, s{sTmp} offen lds
        s_mov_b32 exec_hi, 0x{m1 >> 32:08x}
        buffer_load_dwordx4 v{vD+1}, {sr(SWS,4)}, s{sTmp} offen offset:1024 lds
        s_mov_b32 exec_lo, 0x{m2 & 0xffffffff:08x}
        s_mov_b32 exec_hi, 0x{m2 >> 32:08x}
        buffer_load_dwordx4 v{vD2}, {sr(SWS,4)}, s{sTmp} offen offset:2048 lds
        s_mov_b64 exec, -1
        """)

    dma_chunk(0)
    a(f"buffer_load_dwordx4 {vr(Q1,4)}, v{vGK1}, {sr(SWS,4)}, s8 offen")
    a(f"buffer_load_dwordx2 {vr(Q2,2)}, v{vGK2}, {sr(SWS,4)}, s8 offen")
    a(f"""
    s_mov_b32 s{sRedo}, 0
    v_mov_b32 v{VF}, 0x3f803f80
    v_mov_b32 v{VF+1}, 0x3f803f80
    v_mov_b32 v{VF+2}, 0x3f803f80
    v_mov_b32 v{VF+3}, 0x3f803f80
    v_bfe_u32 v11, v1, 2, 2
    v_min_u32 v11, 2, v11
    v_mul_u32_u24 v11, {K2_SLOT}, v11
    v_and_b32 v12, 3, v1
    v_mul_u32_u24 v12, 336, v12
    v_add3_u32 v11, v11, v12, s{sM0}
    ds_write_b128 v11, {vr(VF,4)} offset:{1536+320}
    v_mov_b32 v11, {K2_FLAG}
    v_mov_b32 v12, 0
    ds_write_b32 v11, v12
    s_mul_i32 s3, s{sKh}, {8*K2_TILE}
    v_add_u32 v{vK10}, s3, v{vK1}
    v_add_u32 v{vK20}, s3, v{vK2}
    v_mul_u32_u24 v11, 336, v9
    v_lshl_add_u32 v11, v8, 4, v11
    s_add_u32 s3, s3, 1536
    v_add_u32 v{vLV}, s3, v11
    v_mul_u32_u24 v11, 10240, v9
    v_lshl_add_u32 v11, v8, 4, v11
    v_add_u32 v{vGV}, s6, v11
    """)
    a(f"""
    v_and_b32 v10, 3, v8
    v_bfe_u32 v11, v8, 2, 1
    v_lshl_or_b32 v10, v11, 3, v10
    v_bfe_u32 v11, v8, 3, 1
    v_lshl_or_b32 v10, v11, 2, v10
    v_lshlrev_b32 v10, 4, v10
    v_lshrrev_b32 v11, 4, v8
    v_mul_u32_u24 v11, 20480, v11
    s_mul_i32 s3, s{sHead}, 5
    v_add_u32 v12, s3, v9
    v_lshrrev_b32 v13, 1, v12
    v_lshlrev_b32 v13, 8, v13
    v_and_b32 v12, 1, v12
    v_lshlrev_b32 v12, 3, v12
    v_add3_u32 v10, v10, v11, v12
    v_add_u32 v{vO}, v10, v13
    s_add_u32 s{sOA}, s{sTA}, {O_OFF}
    s_add_u32 s{sOB}, s{sOA}, {O_BR}
    s_lshl_b32 s{sTouch}, s15, 4
    s_add_u32 s{sTouch}, s{sTouch}, s{sWave}
    s_mul_i32 s{sTouch}, s{sTouch}, 3200
    s_add_u32 s{sTouch}, s{sTouch}, {WOF_OFF}
    s_and_b32 s3, s{sWave}, 7
    s_mul_i32 s3, s3, 3072
    s_add_u32 s3, s3, {K2_SLOT}
    v_lshlrev_b32 v10, 4, v1
    v_add_u32 v{vX}, s3, v10
    s_waitcnt vmcnt(0) lgkmcnt(0)
    """)
    stamp(a, 2)
    a(f"""
    s_barrier
    s_mov_b32 exec_lo, 0
    v_mov_b32 v{Q2}, 0
    v_mov_b32 v{Q2+1}, 0
    s_mov_b32 exec_lo, -1
    s_cmp_eq_u32 s{sKh}, 0
    s_cbranch_scc1 K2_B_START
    """)
    a(f"""
    s_and_b32 s14, s{sT}, 31
    s_cmp_lg_u32 s14, 0
    s_cselect_b32 s14, {TB}, 0
    s_cselect_b64 s[{sPrev}:{sPrev+1}], -1, 0
    s_sub_u32 s{sTAp}, s{sTA}, s14
    s_add_u32 s3, s{sTA}, {SEGB}
    s_add_u32 s4, s{sTAp}, {SEGB}
    """)
    for i in range(4):
        a(f"v_mov_b32 v{VF+4+i}, 0x3f803f80")
        a(f"v_mov_b32 v{P+i}, 0x3f803f80")
    for (r1, r2, so) in ((AQ1, AQ2, sTA), (AK1, AK2, 3), (AKP1, AKP2, 4)):
        a(f"buffer_load_dwordx4 {vr(r1,4)}, v{vGK1}, {sr(SWS,4)}, s{so} offen")
        a(f"buffer_load_dwordx2 {vr(r2,2)}, v{vGK2}, {sr(SWS,4)}, s{so} offen")
    a(f"""
    s_add_u32 s3, s{sTA}, {2*SEGB}
    s_add_u32 s4, s3, 20480
    s_add_u32 s5, s{sTAp}, {2*SEGB+20480}
    s_mov_b32 exec_lo, 0xffefffff
    s_mov_b32 exec_hi, 0xffefffff
    buffer_load_dwordx4 {vr(AV[0],4)}, v{vGV}, {sr(SWS,4)}, s3 offen
    buffer_load_dwordx4 {vr(AV[1],4)}, v{vGV}, {sr(SWS,4)}, s4 offen
    buffer_load_dwordx4 {vr(AV[2],4)}, v{vGV}, {sr(SWS,4)}, s5 offen
    s_mov_b64 exec, -1
    """)
    dma_chunk(1, -8)
    dma_chunk(1)
    dma_chunk(2, -8)
    dma_chunk(2)

    def maxtree(regs, dst):
        a(f"v_max3_f32 v{dst}, v{regs[0]}, v{regs[1]}, v{regs[2]}")
        i = 3
        while i + 1 < len(regs):
            a(f"v_max3_f32 v{dst}, v{dst}, v{regs[i]}, v{regs[i+1]}")
            i += 2
        if i < len(regs):
            a(f"v_max_f32 v{dst}, v{dst}, v{regs[i]}")
        a(f"v_mov_b32 v{dst+1}, v{dst}")
        a("s_nop 1")
        a(f"v_permlane32_swap_b32 v{dst}, v{dst+1}")
        a("s_nop 1")
        a(f"v_max_f32 v{dst}, v{dst}, v{dst+1}")

    def get_l():
        a(f"""
        v_mov_b32 v{vt}, v{O+8}
        v_mov_b32 v{vt+1}, v{O+8}
        s_nop 1
        v_permlane32_swap_b32 v{vt}, v{vt+1}
        s_nop 1
        """)

    def store_o(so, D):
        a(f"v_rcp_f32 v{vt}, v{vt+1}")
        a("s_nop 0")
        for r in range(12):
            a(f"v_mul_f32 v{O+r}, v{O+r}, v{vt}")
        for i in range(6):
            a(f"v_cvt_pk_bf16_f32 v{D+i}, v{O+2*i}, v{O+2*i+1}")
        a(f"buffer_store_dwordx2 {vr(D,2)}, v{vO}, {sr(SWS,4)}, s{so} offen")
        a(f"buffer_store_dwordx2 {vr(D+2,2)}, v{vO}, {sr(SWS,4)}, s{so} offen offset:256")
        a("s_mov_b32 exec_hi, 0")
        a(f"buffer_store_dwordx2 {vr(D+4,2)}, v{vO}, {sr(SWS,4)}, s{so} offen offset:512")
        a("s_mov_b32 exec_hi, -1")

    a(f"v_mov_b32 v{vt}, {f32(-1e30)}")

    def lanemask(fn):
        m = 0
        for l in range(64):
            if fn(l):
                m |= 1 << l
        return m
    k = 0
    for r in range(16):
        m = lanemask(lambda l: 0 <= pi5(l % 32) - (16 * (r // 8) + 8 * (l // 32) + r % 8) <= 7)
        sp = sTmp + 2 + 2 * (k % 3); k += 1
        a(f"s_mov_b32 s{sp}, 0x{m & 0xffffffff:08x}")
        a(f"s_mov_b32 s{sp+1}, 0x{m >> 32:08x}")
        a(f"v_cndmask_b32 v{AC[0]+r}, v{vt}, 0, s[{sp}:{sp+1}]")
    for r in range(8, 16):
        m = lanemask(lambda l: pi5(l % 32) + 32 - (16 * (r // 8) + 8 * (l // 32) + r % 8) <= 7)
        sp = sTmp + 2 + 2 * (k % 3); k += 1
        a(f"s_and_b32 s{sp}, s{sPrev}, 0x{m & 0xffffffff:08x}")
        a(f"s_and_b32 s{sp+1}, s{sPrev}, 0x{m >> 32:08x}")
        a(f"v_cndmask_b32 v{AC[1]+r}, v{vt}, 0, s[{sp}:{sp+1}]")
    a(f"""
    s_waitcnt vmcnt(12)
    s_mov_b32 exec_lo, 0
    v_mov_b32 v{AQ2}, 0
    v_mov_b32 v{AQ2+1}, 0
    s_mov_b32 exec_lo, -1
    s_nop 1
    v_mfma_f32_32x32x16_bf16 {vr(AC[0],16)}, {vr(AK1,4)}, {vr(AQ1,4)}, {vr(AC[0],16)}
    v_mfma_f32_32x32x8_bf16 {vr(AC[0],16)}, {vr(AK2,2)}, {vr(AQ2,2)}, {vr(AC[0],16)}
    v_mfma_f32_32x32x16_bf16 {vr(AC[1],16)}, {vr(AKP1,4)}, {vr(AQ1,4)}, {vr(AC[1],16)}
    v_mfma_f32_32x32x8_bf16 {vr(AC[1],16)}, {vr(AKP2,2)}, {vr(AQ2,2)}, {vr(AC[1],16)}
    s_nop 11
    """)
    aregs = [AC[0] + r for r in range(16)] + [AC[1] + r for r in range(8, 16)]
    maxtree(aregs, vt)
    for r in aregs:
        a(f"v_sub_f32 v{r}, v{r}, v{vt}")
    for r in aregs:
        a(f"v_exp_f32 v{r}, v{r}")
    a("s_nop 0")
    AP = NEGM
    for i in range(12):
        a(f"v_cvt_pk_bf16_f32 v{AP+i}, v{aregs[2*i]}, v{aregs[2*i+1]}")
    a(f"""
    s_nop 1
    v_mfma_f32_32x32x16_bf16 {vr(O,16)}, {vr(AV[0],4)}, {vr(AP,4)}, 0
    v_mfma_f32_32x32x16_bf16 {vr(O,16)}, {vr(AV[1],4)}, {vr(AP+4,4)}, {vr(O,16)}
    v_mfma_f32_32x32x16_bf16 {vr(O,16)}, {vr(AV[2],4)}, {vr(AP+8,4)}, {vr(O,16)}
    s_nop 11
    """)
    get_l()
    store_o(sOA, AQ1)

    def kreads(tile, k1=vK1, k2=vK2):
        o = tile * K2_TILE
        return [f"ds_read_b128 {vr(KF1,4)}, v{k1} offset:{o}",
                f"ds_read_b64 {vr(KF2,2)}, v{k2} offset:{o}"]

    def vread(tile, j):
        return f"ds_read_b128 {vr(VF+4*j,4)}, v{vV} offset:{tile * K2_TILE + 672*j}"

    def qk(sb, c):
        return [f"v_mfma_f32_32x32x16_bf16 {vr(sb,16)}, {vr(KF1,4)}, {vr(Q1,4)}, {c}",
                f"v_mfma_f32_32x32x8_bf16 {vr(sb,16)}, {vr(KF2,2)}, {vr(Q2,2)}, {vr(sb,16)}"]

    a.label("K2_B_START")
    stamp(a, 3)
    for l in kreads(0):
        a(l)
    a("s_waitcnt lgkmcnt(0)")
    for l in qk(SB[0], "0"):
        a(l)
    a.label("K2_B_RESTART")
    for l in kreads(0, vK10, vK20):
        a(l)
    for r in range(16):
        a(f"v_mov_b32 v{O+r}, 0")
    for r in range(4):
        a(f"v_mov_b32 v{P+4+r}, 0")
        a(f"v_mov_b32 v{VF+4+r}, 0")
    a(f"""
    v_mov_b32 v{vK1}, v{vK10}
    v_mov_b32 v{vK2}, v{vK20}
    v_mov_b32 v{vV}, v{vLV}
    s_mov_b32 s{sSlot}, {K2_SLOT}
    s_mov_b32 s{sC}, 0
    s_cmp_lg_u32 s{sRedo}, 0
    s_cbranch_scc1 K2_HAVE_M
    """)
    maxtree([SB[0] + r for r in range(16)], vt)
    for r in range(16):
        a(f"v_sub_f32 v{NEGM+r}, 0, v{vt}")
    a.label("K2_HAVE_M")
    a("s_waitcnt lgkmcnt(0)")
    a("s_nop 1")
    for l in qk(SB[0], vr(NEGM, 16)):
        a(l)
    for l in kreads(1):
        a(l)
    a(vread(0, 0))
    a("s_nop 9")
    stamp(a, 4)
    a.raw(".p2align 3")
    a.label("K2_LOOP")
    prio = {0: 3, 3: 2, 5: 1, 7: 0} if 'k2_noprio' not in EXP else {}
    for i in range(8):
        cur, nxt = SB[i % 2], SB[1 - i % 2]
        e = [f"v_exp_f32 v{cur+r}, v{cur+r}" for r in range(16)]
        c = [f"v_cvt_pk_bf16_f32 v{P+j}, v{cur+2*j}, v{cur+2*j+1}" for j in range(8)]
        q = qk(nxt, vr(NEGM, 16))
        pv = [f"v_mfma_f32_32x32x16_bf16 {vr(O,16)}, {vr(VF+4*j,4)}, {vr(P+4*j,4)}, {vr(O,16)}" for j in range(2)]
        kr = kreads((i + 2) % 8)
        if i == 6:
            a("s_waitcnt vmcnt(0)")
            a("s_barrier")
            a(f"s_cmp_eq_u32 s{sC}, 1")
            a("s_cbranch_scc1 K2_SIDE1")
            a.label("K2_SIDE_RET")
            a(f"v_add_u32 v{vK1}, s{sSlot}, v{vK10}")
            a(f"v_add_u32 v{vK2}, s{sSlot}, v{vK20}")
        if (i - 6) % 8 in prio:
            a(f"s_setprio {prio[(i - 6) % 8]}")
        a(e[0]); a(e[1])
        a(pv[1])
        a(vread(i, 1))
        a(e[2]); a(e[3]); a(c[0]); a(e[4]); a(c[1])
        a("s_waitcnt lgkmcnt(1)")
        a(q[0])
        a(e[5]); a(e[6]); a(e[7]); a(c[2]); a(e[8]); a(c[3])
        a(q[1])
        for l in kr:
            a(l)
        a(e[9]); a(e[10]); a(e[11]); a(c[4]); a(e[12]); a(c[5])
        if i == 7:
            a(f"v_add_u32 v{vV}, s{sSlot}, v{vLV}")
        a(pv[0])
        a(vread((i + 1) % 8, 0))
        a(e[13]); a(e[14]); a(e[15]); a(c[6])
        a("s_waitcnt lgkmcnt(3)")
        a(c[7])
        if i == 7:
            a(f"s_add_u32 s{sSlot}, s{sSlot}, {K2_SLOT}")
            a(f"s_cmp_ge_u32 s{sSlot}, {K2_SLOT*K2_R}")
            a(f"s_cselect_b32 s{sSlot}, 0, s{sSlot}")
    a(f"""
    s_add_u32 s{sC}, s{sC}, 1
    s_cmp_lt_u32 s{sC}, 4
    s_cbranch_scc1 K2_LOOP
    v_mfma_f32_32x32x16_bf16 {vr(O,16)}, {vr(VF+4,4)}, {vr(P+4,4)}, {vr(O,16)}
    v_mov_b32 v{vt+3}, {K2_FLAG}
    v_mov_b32 v{vt+4}, 1
    s_mov_b32 s3, {f32(2.0**100)}
    s_waitcnt lgkmcnt(0)
    s_nop 8
    """)
    stamp(a, 5)
    a(f"v_mov_b32 v{vt+2}, v{O+8}")
    a("s_mov_b32 exec_hi, 0")
    a(f"v_mul_f32 v{vt+2}, 0, v{O+8}")
    for r in range(9, 12):
        a(f"v_fma_f32 v{vt+2}, v{O+r}, 0, v{vt+2}")
    a("s_mov_b32 exec_hi, -1")
    for r in range(8):
        a(f"v_fma_f32 v{vt+2}, v{O+r}, 0, v{vt+2}")
    a(f"""
    v_cmp_nlt_f32 s[{sTmp}:{sTmp+1}], v{vt+2}, s3
    s_cmp_eq_u32 s{sKh}, 0
    s_cbranch_scc1 K2_NOXW
    ds_write_b128 v{vX}, {vr(O,4)}
    ds_write_b128 v{vX}, {vr(O+4,4)} offset:1024
    ds_write_b128 v{vX}, {vr(O+8,4)} offset:2048
    """)
    a.label("K2_NOXW")
    a(f"""
    s_cmp_eq_u64 s[{sTmp}:{sTmp+1}], 0
    s_cbranch_scc1 K2_NOFLAG
    ds_write_b32 v{vt+3}, v{vt+4}
    """)
    a.label("K2_NOFLAG")
    a(f"""
    s_waitcnt lgkmcnt(0)
    s_barrier
    ds_read_b32 v{vt+4}, v{vt+3}
    ds_read_b128 {vr(SB[0],4)}, v{vX}
    ds_read_b128 {vr(SB[0]+4,4)}, v{vX} offset:1024
    ds_read_b128 {vr(SB[0]+8,4)}, v{vX} offset:2048
    s_waitcnt lgkmcnt(0)
    v_readfirstlane_b32 s3, v{vt+4}
    s_nop 3
    s_cmp_gt_u32 s3, s{sRedo}
    s_cbranch_scc1 K2_FALLBACK
    s_cmp_eq_u32 s{sKh}, 0
    s_cbranch_scc0 K2_DONE
    """)
    for r in range(12):
        a(f"v_add_f32 v{O+r}, v{O+r}, v{SB[0]+r}")
    get_l()
    store_o(sOB, P)
    a.label("K2_DONE")
    if STAMP: a("s_waitcnt vmcnt(0)")
    stamp(a, 6); stamp_rt(a, 7)
    stamp_flush(a, 1, SWS, sWave, 8, 8, shift=4)
    a.label("K2_END")
    a("s_endpgm")

    a.label("K2_SIDE1")
    dma_chunk(3)
    a(f"""
    v_lshlrev_b32 v{vt}, 7, v1
    s_mov_b32 exec_lo, 0x1ffffff
    s_mov_b32 exec_hi, 0
    buffer_load_dword v{vt+1}, v{vt}, {sr(SWS,4)}, s{sTouch} offen
    s_mov_b64 exec, -1
    s_branch K2_SIDE_RET
    """)
    a.label("K2_FALLBACK")
    a(f"""
    s_mov_b32 s{sRedo}, 1
    s_mov_b32 s{sC}, {4*SEGB}
    v_mov_b32 v{vt+2}, 0xff800000
    s_barrier
    """)
    a(f"""
    v_mov_b32 v{VF}, 0x3f803f80
    v_mov_b32 v{VF+1}, 0x3f803f80
    v_mov_b32 v{VF+2}, 0x3f803f80
    v_mov_b32 v{VF+3}, 0x3f803f80
    v_bfe_u32 v11, v1, 2, 2
    v_min_u32 v11, 2, v11
    v_mul_u32_u24 v11, {K2_SLOT}, v11
    v_and_b32 v12, 3, v1
    v_mul_u32_u24 v12, 336, v12
    v_add3_u32 v11, v11, v12, s{sM0}
    ds_write_b128 v11, {vr(VF,4)} offset:{1536+320}
    """)
    for c in range(3):
        dma_chunk(c)
    a.label("K2_MAXLOOP")
    a(f"""
    buffer_load_dwordx4 {vr(KF1,4)}, v{vGK1}, {sr(SWS,4)}, s{sC} offen
    buffer_load_dwordx2 {vr(KF2,2)}, v{vGK2}, {sr(SWS,4)}, s{sC} offen
    s_waitcnt vmcnt(0)
    """)
    for l in qk(SB[0], "0"):
        a(l)
    a("s_nop 15")
    for r in range(0, 16, 2):
        a(f"v_max3_f32 v{vt+2}, v{vt+2}, v{SB[0]+r}, v{SB[0]+r+1}")
    a(f"""
    s_add_u32 s{sC}, s{sC}, {TB}
    s_cmp_lt_u32 s{sC}, {5*SEGB}
    s_cbranch_scc1 K2_MAXLOOP
    v_mov_b32 v{vt+3}, v{vt+2}
    s_nop 1
    v_permlane32_swap_b32 v{vt+2}, v{vt+3}
    s_nop 1
    v_max_f32 v{vt+2}, v{vt+2}, v{vt+3}
    """)
    for r in range(16):
        a(f"v_sub_f32 v{NEGM+r}, 0, v{vt+2}")
    a("s_waitcnt lgkmcnt(0)")
    a("s_barrier")
    a("s_branch K2_B_RESTART")
    return kernel_desc(name, NV, NV, 48)


K3_LDS = 4 * 4 * 5 * 1024


def gen_k3(a):
    name = "proj_kernel"
    kernel_head(a, name)
    SWS, SOUT = 20, 24
    sWave, sMb, sNb = 16, 17, 18
    sO, sW = 28, 29
    vJ = 2
    vG, vOut, vL16 = 7, 8, 2
    ACC = 16
    RD = 96
    NSET = 6
    a("s_cmp_ge_u32 s2, 256")
    a("s_cbranch_scc1 K3_END")
    stamp(a, 0); stamp_rt(a, 1)
    a("""
    s_load_dwordx2 s[4:5], s[0:1], 56
    s_load_dwordx2 s[6:7], s[0:1], 72
    v_lshrrev_b32 v9, 6, v0
    v_and_b32 v1, 63, v0
    s_and_b32 s14, s2, 7
    v_readfirstlane_b32 s16, v9
    s_lshr_b32 s15, s2, 3
    s_lshl_b32 s17, s14, 2
    s_and_b32 s3, s15, 3
    s_add_u32 s17, s17, s3
    s_lshr_b32 s18, s15, 2
    v_lshlrev_b32 v2, 4, v1
    """)
    for j in range(1, 5):
        a(f"v_add_u32 v{vJ+j}, {20480*j}, v{vJ}")
    a(f"""
    s_lshr_b32 s3, s{sWave}, 1
    s_and_b32 s14, s{sWave}, 1
    s_mul_i32 s14, s14, 10240
    s_mul_i32 s{sO}, s3, {O_BR}
    s_mul_i32 s15, s{sMb}, {4*20480}
    s_add_u32 s{sO}, s{sO}, s15
    s_add_u32 s{sO}, s{sO}, s14
    s_add_u32 s{sO}, s{sO}, {O_OFF}
    s_mul_i32 s{sW}, s3, {WOF_BR}
    s_mul_i32 s15, s{sNb}, {5*20480}
    s_add_u32 s{sW}, s{sW}, s15
    s_add_u32 s{sW}, s{sW}, s14
    s_add_u32 s{sW}, s{sW}, {WOF_OFF}
    s_waitcnt lgkmcnt(0)
    """)
    srd(a, SWS, 6, WS_BYTES)
    srd(a, SOUT, 4, 2621440)

    def loads(i):
        base = (i % NSET) * 36
        L = []
        if i in (4, 8):
            L.append(f"s_add_u32 s{sO}, s{sO}, 4096")
            L.append(f"s_add_u32 s{sW}, s{sW}, 4096")
        for nt in range(5):
            L.append(f"buffer_load_dwordx4 {ar(base+16+4*nt,4)}, v{vJ+nt}, {sr(SWS,4)}, s{sW} offen offset:{(i%4)*1024}")
        for mt in range(4):
            L.append(f"buffer_load_dwordx4 {ar(base+4*mt,4)}, v{vJ+mt}, {sr(SWS,4)}, s{sO} offen offset:{(i%4)*1024}")
        return L

    a(f"""
    v_and_b32 v9, 15, v1
    v_lshlrev_b32 v10, 2, v9
    s_lshl_b32 s3, s{sMb}, 2
    s_add_u32 s3, s3, s{sWave}
    s_lshl_b32 s14, s3, 6
    s_add_u32 s14, s14, {G_OFF}
    buffer_load_dword v{vG}, v10, {sr(SWS,4)}, s14 offen
    """)
    for i in range(NSET):
        for l in loads(i):
            a(l)
    a(f"""
    v_lshrrev_b32 v11, 4, v1
    v_mul_u32_u24 v12, 2560, v9
    v_and_b32 v13, 1, v11
    v_lshlrev_b32 v13, 5, v13
    v_lshrrev_b32 v14, 1, v11
    v_lshlrev_b32 v14, 4, v14
    v_add3_u32 v{vOut}, v12, v13, v14
    v_lshl_add_u32 v9, v11, 3, v12
    s_and_b32 s14, s3, 63
    s_mul_i32 s14, s14, {16*2560}
    s_lshr_b32 s15, s3, 6
    s_mul_i32 s15, s15, 1280
    s_add_u32 s30, s14, s15
    s_mul_i32 s15, s{sNb}, 160
    s_add_u32 s30, s30, s15
    """)
    issued = NSET
    for i in range(10):
        base = (i % NSET) * 36
        if i == 0: stamp(a, 2)
        a(f"s_waitcnt vmcnt({9*(issued-1-i)})")
        if i == 0: stamp(a, 3)
        for mt in range(4):
            for nt in range(5):
                acc = vr(ACC + (mt * 5 + nt) * 4, 4)
                c = "0" if i == 0 else acc
                a(f"v_mfma_f32_16x16x32_bf16 {acc}, {ar(base+16+4*nt,4)}, {ar(base+4*mt,4)}, {c}")
        if issued < 10:
            for l in loads(issued):
                a(l)
            issued += 1
    a("s_nop 7")
    stamp(a, 4)
    a(f"""
    s_mul_i32 s3, s{sWave}, 20480
    v_add_u32 v10, s3, v{vL16}
    s_mul_i32 s3, s{sWave}, 5120
    v_add_u32 v11, s3, v{vL16}
    """)
    for mt in range(4):
        a(f"s_cmp_eq_u32 s{sWave}, {mt}")
        a(f"s_cbranch_scc1 K3_SKIPW{mt}")
        for nt in range(5):
            a(f"ds_write_b128 v10, {vr(ACC+(mt*5+nt)*4,4)} offset:{(mt*5+nt)*1024}")
        a(f"s_branch K3_DONEW{mt}")
        a.label(f"K3_SKIPW{mt}")
        if mt != 0:
            for i in range(20):
                a(f"v_mov_b32 v{ACC+i}, v{ACC+mt*20+i}")
        a.label(f"K3_DONEW{mt}")
    a("s_waitcnt lgkmcnt(0)")
    a("s_barrier")
    for k, x in enumerate((1, 2, 3)):
        a(f"s_xor_b32 s3, s{sWave}, {x}")
        a(f"s_mul_i32 s3, s3, 20480")
        a(f"v_add_u32 v{12+k}, s3, v11")
    for k in range(3):
        for nt in range(5):
            a(f"ds_read_b128 {vr(RD+k*20+nt*4,4)}, v{12+k} offset:{nt*1024}")
    a(f"""
    v_sub_f32 v10, 1.0, v{vG}
    s_cmp_lt_u32 s{sWave}, 2
    s_cselect_b64 s[32:33], -1, 0
    v_cndmask_b32 v11, v10, v{vG}, s[32:33]
    v_cndmask_b32 v10, v{vG}, v10, s[32:33]
    s_waitcnt lgkmcnt(0)
    """)
    for i in range(20):
        a(f"v_add_f32 v{ACC+i}, v{ACC+i}, v{RD+i}")
        a(f"v_add_f32 v{RD+20+i}, v{RD+20+i}, v{RD+40+i}")
        a(f"v_mul_f32 v{ACC+i}, v{ACC+i}, v11")
        a(f"v_fma_f32 v{ACC+i}, v{RD+20+i}, v10, v{ACC+i}")
    for pr in range(2):
        b0 = ACC + pr * 8
        b1 = b0 + 4
        a(f"v_cvt_pk_bf16_f32 v{b0}, v{b0}, v{b0+1}")
        a(f"v_cvt_pk_bf16_f32 v{b0+1}, v{b0+2}, v{b0+3}")
        a(f"v_cvt_pk_bf16_f32 v{b0+2}, v{b1}, v{b1+1}")
        a(f"v_cvt_pk_bf16_f32 v{b0+3}, v{b1+2}, v{b1+3}")
        a("s_nop 1")
        a(f"v_permlane16_swap_b32 v{b0}, v{b0+2}")
        a(f"v_permlane16_swap_b32 v{b0+1}, v{b0+3}")
        a("s_nop 0")
        a(f"buffer_store_dwordx4 {vr(b0,4)}, v{vOut}, {sr(SOUT,4)}, s30 offen offset:{pr*64}")
    b0 = ACC + 16
    a(f"v_cvt_pk_bf16_f32 v{b0}, v{b0}, v{b0+1}")
    a(f"v_cvt_pk_bf16_f32 v{b0+1}, v{b0+2}, v{b0+3}")
    a(f"buffer_store_dwordx2 {vr(b0,2)}, v9, {sr(SOUT,4)}, s30 offen offset:128")
    stamp(a, 5)
    if STAMP: a("s_waitcnt vmcnt(0)")
    stamp(a, 6); stamp_rt(a, 7)
    stamp_flush(a, 2, SWS, sWave, 8, 10)
    a.label("K3_END")
    a("s_endpgm")
    return kernel_desc(name, 160 + NSET * 36, 160, 40)


def main():
    global STAMP
    if "--stamp" in sys.argv:
        STAMP = True
        sys.argv.remove("--stamp")
    ref = open(OUT + ".ref").read().split("\n")
    head = [l for l in ref if l.startswith(";") and "@launch" not in l]
    a = Asm()
    for l in head:
        a.raw(l)
    a.raw(f"; @launch kernel=qkv_kernel grid=(256,1,1) block=(512,1,1) lds={K1_LDS}")
    a.raw(f"; @launch kernel=attn_kernel grid=(256,1,1) block=(1024,1,1) lds={K2_LDS}")
    a.raw(f"; @launch kernel=proj_kernel grid=(256,1,1) block=(256,1,1) lds={K3_LDS}")
    a.raw('.amdgcn_target "amdgcn-amd-amdhsa--gfx950"')
    a.raw(".text")
    d = [gen_k1(a), gen_k2(a), gen_k3(a)]
    a.raw('.section .rodata,"a"')
    for x in d:
        a.raw(".p2align 6")
        a.raw(x.rstrip("\n"))
    out = sys.argv[1] if len(sys.argv) > 1 else OUT
    open(out, "w").write(a.text())
    print("wrote", out, len(a.L), "lines")


if __name__ == "__main__":
    main()
```

```python
import sys, math, struct, os
EXP = os.environ.get('EXP', '').split(',')

NAME = "gated_mix__sliding_local_dilated__mha_block__prompt"
OUT = f"cdna_kernels/{NAME}.s"

SEGB = 2621440
TB = 40960
O_OFF = 16 << 20
O_BR = 2621440
WOF_OFF = 24 << 20
WOF_BR = 819200
G_OFF = 28 << 20
WS_BYTES = 32 << 20
QSCALE = (20 ** -0.5) * math.log2(math.e)


def f32(x):
    return "0x%08x" % struct.unpack("<I", struct.pack("<f", x))[0]


def pi5(i):
    return (i & ~12) | ((i & 4) << 1) | ((i & 8) >> 1)


class Asm:
    def __init__(self):
        self.L = []

    def __call__(self, s):
        for l in s.strip("\n").split("\n"):
            self.L.append("    " + l.strip())

    def label(self, l):
        self.L.append(l + ":")

    def raw(self, s):
        self.L.append(s)

    def text(self):
        return "\n".join(self.L) + "\n"


def vr(b, n=1, p="v"):
    return f"{p}{b}" if n == 1 else f"{p}[{b}:{b+n-1}]"


def ar(b, n=1):
    return vr(b, n, "a")


def sr(b, n=1):
    return vr(b, n, "s")


STAMP = False
K2STF = ' sc1' if 'k2_sc1' in EXP else ''
DBG_OFF = 30 << 20


def stamp(a, idx, sbase=70):
    if not STAMP:
        return
    a(f"s_memtime s[{sbase+16}:{sbase+17}]")
    a("s_waitcnt lgkmcnt(0)")
    a(f"s_mov_b32 s{sbase+idx}, s{sbase+16}")


def stamp_rt(a, idx, sbase=70):
    if not STAMP:
        return
    a(f"s_memrealtime s[{sbase+16}:{sbase+17}]")
    a("s_waitcnt lgkmcnt(0)")
    a(f"s_mov_b32 s{sbase+idx}, s{sbase+16}")


def stamp_flush(a, kidx, srd_ws, swave, n, vtmp, sbase=70, shift=4):
    if not STAMP:
        return
    a("s_mov_b64 exec, -1")
    a(f"s_lshl_b32 s{sbase+16}, s2, 4")
    a(f"s_add_u32 s{sbase+16}, s{sbase+16}, s{swave}")
    a(f"s_lshl_b32 s{sbase+16}, s{sbase+16}, 6")
    a(f"s_add_u32 s{sbase+16}, s{sbase+16}, {DBG_OFF + kidx*(1<<18)}")
    a(f"v_mov_b32 v{vtmp+1}, 0")
    for i in range(n):
        a(f"v_mov_b32 v{vtmp}, s{sbase+i}")
        a(f"buffer_store_dword v{vtmp}, v{vtmp+1}, s[{srd_ws}:{srd_ws+3}], s{sbase+16} offen offset:{4*i}")


def kernel_head(a, name):
    a.raw(f".globl {name}")
    a.raw(".p2align 8")
    a.raw(f".type {name},@function")
    a.label(name)


def kernel_desc(name, vgpr_total, accum, sgpr):
    return f""".amdhsa_kernel {name}
  .amdhsa_next_free_vgpr {vgpr_total}
  .amdhsa_next_free_sgpr {96 if STAMP else sgpr}
  .amdhsa_accum_offset {accum}
  .amdhsa_group_segment_fixed_size 0
  .amdhsa_kernarg_size 80
  .amdhsa_user_sgpr_count 2
  .amdhsa_user_sgpr_kernarg_segment_ptr 1
  .amdhsa_system_sgpr_workgroup_id_x 1
.end_amdhsa_kernel
"""


def srd(a, d, base, nbytes):
    a(f"s_mov_b32 s{d}, s{base}")
    a(f"s_mov_b32 s{d+1}, s{base+1}")
    a(f"s_mov_b32 s{d+2}, {nbytes}")
    a(f"s_mov_b32 s{d+3}, 0x00020000")


K1_WST = 16896
K1_NSW = 6 if 'k1_nsw6' in EXP else 5
K1_NSX = 3
K1_XB = K1_WST * K1_NSW
K1_LDS = K1_XB + K1_NSX * 16384


STF = '' if 'k1_plain' in EXP else (' nt' if 'k1_nt' in EXP else (' sc1 nt' if 'k1_sc1nt' in EXP else (' sc0 sc1 nt' if 'k1_all' in EXP else ' sc1')))


def gen_k1(a):
    name = "qkv_kernel"
    kernel_head(a, name)
    SX, SW, SR = 20, 24, 28
    sWave = 19
    a("s_cmp_ge_u32 s2, 256")
    a("s_cbranch_scc1 K1_END")
    stamp(a, 0); stamp_rt(a, 1)
    a("""
    s_load_dwordx4 s[4:7], s[0:1], 0
    s_load_dwordx2 s[8:9], s[0:1], 32
    s_load_dwordx2 s[10:11], s[0:1], 72
    """)
    if 'noct' not in EXP:
        code_touch(a, 31, 30, 52, "K1_CT0", "attn_kernel", lane="v0")
        a.label("K1_CT0")
    a("""
    v_lshrrev_b32 v2, 6, v0
    v_and_b32 v1, 63, v0
    s_and_b32 s12, s2, 7
    v_readfirstlane_b32 s19, v2
    s_cmp_ge_u32 s2, 240
    s_cbranch_scc1 K1_SIDE
    s_lshr_b32 s13, s2, 3
    s_mul_i32 s12, s12, 30
    s_add_u32 s12, s12, s13
    s_cmp_ge_u32 s12, 120
    s_cselect_b32 s14, 1, 0
    s_cselect_b32 s13, 120, 0
    s_sub_u32 s12, s12, s13
    s_and_b32 s15, s12, 7
    s_lshr_b32 s16, s12, 3
    v_and_b32 v3, 15, v1
    v_lshrrev_b32 v4, 4, v1
    """)
    a(f"""
    s_cmp_ge_u32 s{sWave}, 4
    s_cselect_b32 s12, 1, 0
    s_lshr_b32 s12, s{sWave}, s12
    s_and_b32 s12, s12, 1
    s_lshl_b32 s17, s16, 1
    s_add_u32 s17, s17, s12
    s_cmp_ge_u32 s17, 15
    s_cselect_b32 s18, 1, 0
    s_cselect_b32 s13, 15, 0
    s_sub_u32 s17, s17, s13
    s_movk_i32 s60, 3840
    s_mov_b32 s62, 2621440
    s_movk_i32 s63, 128
    s_cmp_ge_u32 s{sWave}, 4
    s_cbranch_scc0 K1_COMPUTE
    """)
    vW, vXg = 8, 12
    sWo, sXo, sWl, sXl, sWc, sXc, sOrd = 32, 33, 34, 35, 36, 37, 38
    K1_D = int(os.environ.get('K1D', '2'))
    ORD = []
    for g in range(4):
        o = list(range(10))
        for b in range(10):
            if b % 4 == g and K1_D:
                p = o.index(b)
                o.pop(p)
                o.insert(max(0, p - K1_D), b)
        ORD.append(sum(b << (4 * i) for i, b in enumerate(o)))
    a(f"""
    v_lshrrev_b32 v5, 1, v4
    v_and_b32 v6, 1, v4
    v_lshlrev_b32 v5, 4, v5
    v_lshl_add_u32 v5, v6, 2, v5
    v_mul_u32_u24 v5, 3840, v5
    v_lshl_add_u32 v{vW}, v3, 4, v5
    v_add_u32 v{vW+1}, 2784, v{vW}
    v_add_u32 v{vW+2}, {2*2784}, v{vW}
    v_add_u32 v{vW+3}, {3*2784}, v{vW}
    v_lshrrev_b32 v5, 3, v1
    v_and_b32 v6, 7, v1
    v_xor_b32 v6, v6, v5
    v_mul_u32_u24 v5, 2560, v5
    v_lshl_add_u32 v{vXg}, v6, 4, v5
    v_add_u32 v{vXg+1}, 19456, v{vXg}
    v_add_u32 v{vXg+2}, {2*19456}, v{vXg}
    v_add_u32 v{vXg+3}, {3*19456}, v{vXg}
    s_and_b32 s13, s{sWave}, 1
    s_mul_i32 s{sWo}, s13, {8*3840}
    s_lshl_b32 s3, s17, 8
    s_add_u32 s{sWo}, s{sWo}, s3
    s_and_b32 s3, s{sWave}, 3
    s_mul_i32 s{sWl}, s3, {4*1056}
    s_lshl_b32 s{sXl}, s3, 12
    s_add_u32 s{sXl}, s{sXl}, {K1_XB}
    s_lshl_b32 s13, s15, 2
    s_add_u32 s13, s13, s3
    s_mul_i32 s{sXo}, s13, {32*2560}
    s_mul_i32 s13, s14, 1280
    s_add_u32 s{sXo}, s{sXo}, s13
    s_add_u32 s3, s15, s16
    s_and_b32 s3, s3, 3
    s_mov_b32 s{sOrd}, {ORD[0] & 0xffffffff}
    s_mov_b32 s{sOrd+1}, {ORD[0] >> 32}
    s_cmp_eq_u32 s3, 1
    s_cselect_b32 s{sOrd}, {ORD[1] & 0xffffffff}, s{sOrd}
    s_cselect_b32 s{sOrd+1}, {ORD[1] >> 32}, s{sOrd+1}
    s_cmp_eq_u32 s3, 2
    s_cselect_b32 s{sOrd}, {ORD[2] & 0xffffffff}, s{sOrd}
    s_cselect_b32 s{sOrd+1}, {ORD[2] >> 32}, s{sOrd+1}
    s_cmp_eq_u32 s3, 3
    s_cselect_b32 s{sOrd}, {ORD[3] & 0xffffffff}, s{sOrd}
    s_cselect_b32 s{sOrd+1}, {ORD[3] >> 32}, s{sOrd+1}
    s_cmp_eq_u32 s18, 0
    s_waitcnt lgkmcnt(0)
    s_cselect_b64 s[6:7], s[6:7], s[8:9]
    """)
    srd(a, SX, 4, 2621440)
    srd(a, SW, 6, 2457600)
    if STAMP:
        srd(a, SR, 10, WS_BYTES)
    hist = []

    def blk(j, dst):
        r = sOrd + (j // 8)
        a(f"s_bfe_u32 s{dst}, s{r}, {(4 << 16) | (4 * (j % 8))}")

    def wl(k):
        a(f"s_add_u32 m0, s{sWl}, {(k % K1_NSW) * K1_WST}")
        if k % 2 == 0:
            blk(k // 2, sWc)
            a(f"s_mul_i32 s{sWc}, s{sWc}, {2*122880}")
            a(f"s_add_u32 s{sWc}, s{sWc}, s{sWo}")
        else:
            a(f"s_add_u32 s{sWc}, s{sWc}, 122880")
        for i in range(4):
            a(f"buffer_load_dwordx4 v{vW+i}, {sr(SW,4)}, s{sWc} offen offset:{1056*i} lds")
        hist.append(("W", k))

    def xl(j):
        a(f"s_add_u32 m0, s{sXl}, {(j % K1_NSX) * 16384}")
        blk(j, sXc)
        a(f"s_lshl_b32 s{sXc}, s{sXc}, 7")
        a(f"s_add_u32 s{sXc}, s{sXc}, s{sXo}")
        for q in range(4):
            a(f"buffer_load_dwordx4 v{vXg+q}, {sr(SX,4)}, s{sXc} offen offset:{1024*q} lds")
        hist.append(("X", j))

    def need(ks):
        req = [("W", ks), ("X", ks // 2)]
        last = max(hist.index(r) for r in req)
        a(f"s_waitcnt vmcnt({4 * (len(hist) - 1 - last)})")
        a("s_barrier")

    seq = []
    for j in range(10):
        seq += [("X", j), ("W", 2 * j), ("W", 2 * j + 1)]
    pos = [0]

    def free_at(it):
        t, i = it
        if t == "W":
            return i - K1_NSW
        return 2 * (i - K1_NSX) + 1

    def issue(step, nmax):
        n = 0
        while pos[0] < len(seq) and n < nmax and free_at(seq[pos[0]]) <= step:
            t, i = seq[pos[0]]
            (wl if t == "W" else xl)(i)
            pos[0] += 1
            n += 1
    RAMP = [int(c) for c in os.environ.get('K1RAMP', '32222')]
    issue(-2, RAMP[0])
    stamp(a, 2)
    need(0)
    stamp(a, 3)
    issue(-1, RAMP[1])
    for ks in range(19):
        need(ks + 1)
        if ks % 2 == 1 and ks <= 15: stamp(a, 8 + ks // 2)
        issue(ks, RAMP[ks + 2] if ks + 2 < len(RAMP) else RAMP[-1])
    assert pos[0] == len(seq)
    a("s_barrier")
    stamp(a, 4); stamp(a, 5); stamp(a, 6); stamp_rt(a, 7)
    stamp_flush(a, 0, SR, sWave, 16, 2)
    a("s_endpgm")

    a.label("K1_COMPUTE")
    ACC = 32
    WFR = [0, 32]
    XFR = [64, 80]
    vTr0, vTr, vXr0, vXr, vSt = 8, 9, 10, 12, 14
    sRd, sXr, sIt, sSt, sSeg = 32, 33, 34, 36, 35
    TOUCH = 'k1_touch' in EXP
    ST, sTo, sTs = 44, 42, 43
    TD = 5
    if TOUCH:
        a(f"""
        v_lshrrev_b32 v5, 1, v1
        v_and_b32 v6, 1, v1
        v_lshlrev_b32 v6, 7, v6
        v_mad_u32_u24 v16, v5, s60, v6
        v_mul_u32_u24 v17, 2560, v1
        s_mul_i32 s{sTo}, s15, {8*3840}
        s_lshl_b32 s3, s17, 8
        s_add_u32 s{sTo}, s{sTo}, s3
        s_add_u32 s{sTo}, s{sTo}, {3*64*3840}
        s_lshl_b32 s3, s15, 3
        s_and_b32 s13, s16, 3
        s_lshl_b32 s13, s13, 1
        s_add_u32 s3, s3, s13
        s_and_b32 s13, s{sWave}, 1
        s_add_u32 s3, s3, s13
        s_mul_i32 s3, s3, {16*2560}
        s_mul_i32 s13, s14, 1280
        s_add_u32 s3, s3, s13
        s_add_u32 s3, s3, {3*128}
        s_cmp_eq_u32 s18, 0
        s_waitcnt lgkmcnt(0)
        s_cselect_b64 s[6:7], s[6:7], s[8:9]
        s_cmp_lt_u32 s{sWave}, 2
        s_cselect_b64 s[{ST}:{ST+1}], s[6:7], s[4:5]
        s_cselect_b32 s{ST+2}, 2457600, s62
        s_mov_b32 s{ST+3}, 0x00020000
        s_cselect_b32 s{sTo}, s{sTo}, s3
        s_cselect_b32 s{sTs}, {64*3840}, s63
        s_cselect_b64 s[50:51], -1, 0
        v_cndmask_b32 v16, v17, v16, s[50:51]
        v_cmp_gt_u32 s[50:51], 16, v1
        v_mov_b32 v17, 0x40000000
        s_nop 0
        v_cndmask_b32 v16, v17, v16, s[50:51]
        """)
        for b in range(3, TD):
            a(f"buffer_load_dword v18, v16, {sr(ST,4)}, s{sTo} offen")
            a(f"s_add_u32 s{sTo}, s{sTo}, s{sTs}")
    a(f"""
    v_and_b32 v5, 1, v4
    v_lshrrev_b32 v6, 2, v3
    v_lshl_add_u32 v5, v5, 2, v6
    v_mul_u32_u24 v5, 1056, v5
    v_lshrrev_b32 v6, 1, v4
    v_lshlrev_b32 v6, 9, v6
    v_and_b32 v7, 3, v3
    v_lshlrev_b32 v7, 3, v7
    v_add3_u32 v5, v5, v6, v7
    s_mul_i32 s3, s12, 8448
    v_add_u32 v{vTr0}, s3, v5
    v_and_b32 v5, 3, v3
    v_bfe_u32 v6, v3, 2, 1
    v_lshl_or_b32 v5, v6, 3, v5
    v_bfe_u32 v6, v3, 3, 1
    v_lshl_or_b32 v5, v6, 2, v5
    v_and_b32 v6, 7, v5
    v_xor_b32 v6, v6, v4
    v_lshlrev_b32 v6, 4, v6
    v_lshl_add_u32 v5, v5, 7, v6
    s_lshr_b32 s13, s{sWave}, 1
    s_lshl_b32 s3, s13, 13
    s_add_u32 s3, s3, {K1_XB}
    v_add_u32 v{vXr0}, s3, v5
    v_xor_b32 v{vXr0+1}, 64, v{vXr0}
    v_mov_b32 v{vXr}, v{vXr0}
    v_mov_b32 v{vXr+1}, v{vXr0+1}
    v_mov_b32 v{vTr}, v{vTr0}
    s_mov_b32 s{sRd}, {K1_WST}
    s_mov_b32 s{sXr}, 16384
    s_mov_b32 s{sIt}, 0
    s_mul_i32 s{sSeg}, s17, 52
    s_lshr_b32 s{sSeg}, s{sSeg}, 8
    s_mul_i32 s3, s{sSeg}, 5
    s_sub_u32 s17, s17, s3
    s_mul_i32 s3, s18, 3
    s_add_u32 s3, s3, s{sSeg}
    s_mul_i32 s{sSt}, s3, {SEGB}
    s_lshl_b32 s3, s14, 4
    s_lshl_b32 s16, s15, 1
    s_add_u32 s3, s3, s16
    s_add_u32 s3, s3, s13
    s_mul_i32 s3, s3, {2*TB}
    s_add_u32 s{sSt}, s{sSt}, s3
    s_waitcnt lgkmcnt(0)
    """)
    srd(a, SR, 10, WS_BYTES)
    for i in range(128):
        a(f"v_mov_b32 v{ACC+i}, 0")

    def reads(fset, kk):
        L = [f"ds_read_b128 {ar(XFR[fset]+4*mt,4)}, v{vXr+kk} offset:{2048*mt}" for mt in range(4)]
        for t in range(8):
            for s in range(2):
                L.append(f"ds_read_b64_tr_b16 {ar(WFR[fset]+4*t+2*s,2)}, v{vTr} offset:{s*256 + t*32}")
        return L

    stamp(a, 2)
    a("s_barrier")
    stamp(a, 3)
    for l in reads(0, 0):
        a(l)
    a(f"s_cmp_eq_u32 s{sSeg}, 2")
    a("s_cbranch_scc1 K1_LOOP_N")
    for ori in ("T", "N"):
        a.raw(".p2align 3")
        a.label(f"K1_LOOP_{ori}")
        for s in range(2):
            fs = s
            rd = reads(1 - fs, 1 - s)
            mf = []
            for t in range(8):
                for mt in range(4):
                    acc = vr(ACC + (t * 4 + mt) * 4, 4)
                    w = ar(WFR[fs] + 4 * t, 4)
                    x = ar(XFR[fs] + 4 * mt, 4)
                    if ori == "T":
                        mf.append(f"v_mfma_f32_16x16x32_bf16 {acc}, {w}, {x}, {acc}")
                    else:
                        mf.append(f"v_mfma_f32_16x16x32_bf16 {acc}, {x}, {w}, {acc}")
            a(f"v_add_u32 v{vTr}, s{sRd}, v{vTr0}")
            rest = [f"s_add_u32 s{sRd}, s{sRd}, {K1_WST}",
                    f"s_cmp_ge_u32 s{sRd}, {K1_XB}",
                    f"s_cselect_b32 s{sRd}, 0, s{sRd}"]
            if s == 0 and TOUCH:
                rest += [f"s_cmp_lt_u32 s{sIt}, {10-TD}",
                         f"s_cselect_b32 s{sTo}, s{sTo}, 0x40000000",
                         f"buffer_load_dword v18, v16, {sr(ST,4)}, s{sTo} offen",
                         f"s_add_u32 s{sTo}, s{sTo}, s{sTs}"]
            if s == 1:
                a(f"v_add_u32 v{vXr}, s{sXr}, v{vXr0}")
                rest += [f"v_add_u32 v{vXr+1}, s{sXr}, v{vXr0+1}",
                         f"s_add_u32 s{sXr}, s{sXr}, 16384",
                         f"s_cmp_ge_u32 s{sXr}, {K1_NSX*16384}",
                         f"s_cselect_b32 s{sXr}, 0, s{sXr}",
                         f"s_add_u32 s{sIt}, s{sIt}, 1",
                         f"s_cmp_lt_u32 s{sIt}, 10"]
            a("s_waitcnt lgkmcnt(0)")
            a("s_barrier")
            fill = rd + rest
            for i in range(32):
                a(mf[i])
                if i < len(fill):
                    a(fill[i])
        a(f"s_cbranch_scc1 K1_LOOP_{ori}")
        stamp(a, 4)
        if ori == "T":
            a(f"""
            s_lshl_b32 s3, s17, 13
            s_add_u32 s{sSt}, s{sSt}, s3
            s_add_u32 s{sSt+1}, s{sSt}, 4096
            s_add_u32 s{sSt+2}, s{sSt}, {TB}
            s_add_u32 s{sSt+3}, s{sSt+1}, {TB}
            s_cmp_eq_u32 s{sSeg}, 0
            s_cselect_b32 s40, {f32(QSCALE)}, 1.0
            s_mov_b32 s41, s40
            v_lshlrev_b32 v{vSt}, 4, v1
            s_nop 3
            """)
        else:
            a(f"""
            s_lshl_b32 s3, s17, 11
            s_add_u32 s{sSt}, s{sSt}, s3
            s_add_u32 s{sSt+2}, s{sSt}, {TB}
            v_mul_u32_u24 v5, 10240, v4
            v_lshl_add_u32 v{vSt}, v3, 4, v5
            s_nop 7
            """)
        for t in range(8):
            for mp in range(2):
                b0 = ACC + (t * 4 + 2 * mp) * 4
                b1 = b0 + 4
                if ori == "T":
                    for i in range(4):
                        a(f"v_pk_mul_f32 {vr(b0+2*i,2)}, {vr(b0+2*i,2)}, s[40:41]")
                a(f"v_cvt_pk_bf16_f32 v{b0}, v{b0}, v{b0+1}")
                a(f"v_cvt_pk_bf16_f32 v{b0+1}, v{b0+2}, v{b0+3}")
                a(f"v_cvt_pk_bf16_f32 v{b0+2}, v{b1}, v{b1+1}")
                a(f"v_cvt_pk_bf16_f32 v{b0+3}, v{b1+2}, v{b1+3}")
                a("s_nop 1")
                sw = "v_permlane16_swap_b32" if ori == "T" else "v_permlane32_swap_b32"
                a(f"{sw} v{b0}, v{b0+2}")
                a(f"{sw} v{b0+1}, v{b0+3}")
                a("s_nop 0")
                if ori == "T":
                    a(f"buffer_store_dwordx4 {vr(b0,4)}, v{vSt}, {sr(SR,4)}, s{sSt + 2*mp + t//4} offen offset:{(t%4)*1024}{STF}")
                else:
                    a(f"buffer_store_dwordx4 {vr(b0,4)}, v{vSt}, {sr(SR,4)}, s{sSt + 2*mp} offen offset:{t*256}{STF}")
        stamp(a, 5)
        if STAMP: a("s_waitcnt vmcnt(0)")
        stamp(a, 6); stamp_rt(a, 7)
        stamp_flush(a, 0, SR, sWave, 8, 2)
        a("s_endpgm")

    a.label("K1_SIDE")
    SGW, SWO = 32, 36
    a(f"""
    s_load_dwordx2 s[46:47], s[0:1], 16
    s_load_dwordx4 s[12:15], s[0:1], 40
    s_sub_u32 s16, s2, 240
    s_lshl_b32 s16, s16, 3
    s_add_u32 s16, s16, s{sWave}
    v_lshlrev_b32 v2, 2, v1
    v_lshlrev_b32 v5, 4, v1
    v_lshrrev_b32 v3, 3, v1
    v_and_b32 v4, 7, v1
    v_mul_u32_u24 v3, 1280, v3
    v_lshl_add_u32 v3, v4, 4, v3
    v_lshrrev_b32 v4, 4, v1
    v_bfe_u32 v6, v1, 2, 2
    v_lshl_add_u32 v4, v4, 3, v6
    v_and_b32 v6, 3, v1
    v_lshlrev_b32 v6, 3, v6
    v_lshl_add_u32 v6, v4, 7, v6
    s_lshl_b32 s40, s{sWave}, 14
    v_add_u32 v6, s40, v6
    v_mov_b32 v4, 0
    s_waitcnt lgkmcnt(0)
    """)
    srd(a, SX, 4, 2621440)
    srd(a, SR, 10, WS_BYTES)
    srd(a, SGW, 14, 1280)
    a(f"s_mov_b32 s{SWO+2}, 819200")
    a(f"s_mov_b32 s{SWO+3}, 0x00020000")
    for i in range(4):
        a(f"""
        s_add_u32 s41, s16, {128*i}
        s_cmp_ge_u32 s41, 200
        s_cselect_b32 s{SWO}, s12, s46
        s_cselect_b32 s{SWO+1}, s13, s47
        s_cselect_b32 s3, 200, 0
        s_cselect_b32 s{42+i}, {WOF_BR}, 0
        s_add_u32 s{42+i}, s{42+i}, {WOF_OFF}
        s_sub_u32 s3, s41, s3
        s_mul_i32 s17, s3, 6554
        s_lshr_b32 s17, s17, 16
        s_mul_i32 s18, s17, 10
        s_sub_u32 s18, s3, s18
        s_lshl_b32 s3, s17, 10
        s_add_u32 s{42+i}, s{42+i}, s3
        s_mul_i32 s3, s18, {4*20480}
        s_add_u32 s{42+i}, s{42+i}, s3
        s_mul_i32 s17, s17, {32*1280}
        s_lshl_b32 s18, s18, 7
        s_add_u32 s17, s17, s18
        s_cmp_ge_u32 s41, 400
        s_cselect_b32 s{42+i}, 0x7f000000, s{42+i}
        s_cselect_b32 s17, 0x7f000000, s17
        """)
        for q in range(4):
            a(f"s_add_u32 m0, s40, {4096*i + 1024*q}")
            a("s_nop 0")
            a(f"buffer_load_dwordx4 v3, {sr(SWO,4)}, s17 offen lds")
            a(f"s_add_u32 s17, s17, {8*1280}")
    GW, GX = 8, 16
    for i in range(5):
        a(f"buffer_load_dword v{GW+i}, v2, {sr(SGW,4)}, 0 offen offset:{256*i}")
    a(f"""
    s_and_b32 s3, s16, 63
    s_mul_i32 s17, s3, {16*2560}
    s_lshr_b32 s3, s16, 6
    s_mul_i32 s3, s3, 1280
    s_add_u32 s17, s17, s3
    s_lshl_b32 s18, s16, 6
    s_add_u32 s18, s18, {G_OFF}
    """)
    for half in range(2):
        for r in range(8):
            for i in range(5):
                a(f"buffer_load_dword v{GX+5*r+i}, v2, {sr(SX,4)}, s17 offen offset:{256*i}")
            a("s_add_u32 s17, s17, 2560")
        if half == 0:
            a("s_waitcnt vmcnt(45)")
            for i in range(4):
                for nt in range(4):
                    b = 72 + (4 * i + nt) * 4
                    a(f"ds_read_b64_tr_b16 {vr(b,2)}, v6 offset:{4096*i + 32*nt}")
                    a(f"ds_read_b64_tr_b16 {vr(b+2,2)}, v6 offset:{4096*i + 32*nt + 512}")
                a("s_waitcnt lgkmcnt(0)")
            a("s_waitcnt vmcnt(0)")
            for i in range(4):
                for nt in range(4):
                    b = 72 + (4 * i + nt) * 4
                    a(f"buffer_store_dwordx4 {vr(b,4)}, v5, {sr(SR,4)}, s{42+i} offen")
                    a(f"s_add_u32 s{42+i}, s{42+i}, 20480")
        else:
            a("s_waitcnt vmcnt(0)")
        for r in range(8):
            a(f"v_dot2_f32_bf16 v{60+r}, v{GX+5*r}, v{GW}, 0")
        for i in range(1, 5):
            for r in range(8):
                a(f"v_dot2_f32_bf16 v{60+r}, v{GX+5*r+i}, v{GW+i}, v{60+r}")
        a("s_nop 3")
        for sh in ("row_shr:1 row_mask:0xf bank_mask:0xf bound_ctrl:0", "row_shr:2 row_mask:0xf bank_mask:0xf bound_ctrl:0",
                   "row_shr:4 row_mask:0xf bank_mask:0xf bound_ctrl:0", "row_shr:8 row_mask:0xf bank_mask:0xf bound_ctrl:0",
                   "row_bcast:15 row_mask:0xa bank_mask:0xf", "row_bcast:31 row_mask:0xc bank_mask:0xf"):
            for r in range(8):
                a(f"v_add_f32_dpp v{60+r}, v{60+r}, v{60+r} {sh}")
        for r in range(8):
            a(f"v_mul_f32 v{60+r}, {f32(-math.log2(math.e))}, v{60+r}")
        for r in range(8):
            a(f"v_exp_f32 v{60+r}, v{60+r}")
        for r in range(8):
            a(f"v_add_f32 v{60+r}, 1.0, v{60+r}")
        for r in range(8):
            a(f"v_rcp_f32 v{60+r}, v{60+r}")
        a("s_mov_b32 exec_lo, 0")
        a("s_mov_b32 exec_hi, 0x80000000")
        a(f"buffer_store_dwordx4 v[60:63], v4, {sr(SR,4)}, s18 offen offset:{32*half}")
        a(f"buffer_store_dwordx4 v[64:67], v4, {sr(SR,4)}, s18 offen offset:{32*half+16}")
        a("s_mov_b64 exec, -1")
        a("s_nop 1")
    if 'noct' not in EXP:
        code_touch(a, 31, 30, 52, "attn_kernel", "CODE_END", lane="v0")
    if STAMP:
        a("s_waitcnt vmcnt(0)")
        for i in range(2, 7):
            stamp(a, i)
        stamp_rt(a, 7)
        stamp_flush(a, 0, SR, sWave, 8, 2)
    a.label("K1_END")
    a("s_endpgm")
    return kernel_desc(name, 256, 160, 64)


K2_TILE = 2880
K2_SLOT = 16 * K2_TILE
K2_R = 3
K2_FLAG = K2_SLOT * K2_R + 256
K2_MASK = K2_FLAG + 256
K2_LDS = K2_MASK + 6 * 1024


def code_touch(a, vdst, vaddr, stmp, first, last, lane="v1"):
    lab = f"CT_{len(a.L)}"
    a(f"s_getpc_b64 s[{stmp}:{stmp+1}]")
    a.label(lab)
    a(f"s_add_u32 s{stmp}, s{stmp}, {first}-{lab}")
    a(f"s_addc_u32 s{stmp+1}, s{stmp+1}, 0")
    a(f"v_lshlrev_b32 v{vaddr}, 7, {lane}")
    a(f"v_min_u32 v{vaddr}, {last}-{first}-4, v{vaddr}")
    a(f"global_load_dword v{vdst}, v{vaddr}, s[{stmp}:{stmp+1}]")


def gen_k2(a):
    name = "attn_kernel"
    kernel_head(a, name)
    SWS = 20
    sWave, sHead, sT, sKh = 16, 17, 18, 19
    sDma, sM0, sSlot, sC, sRedo = 24, 25, 26, 27, 28
    sTA, sO, sTouch, sAD = 29, 31, 33, 30
    sTmp = 36
    vK10, vK20, vLV, vK1, vK2, vV, vO = 2, 3, 4, 5, 6, 7, 15
    vt = 8
    Q1, Q2 = 16, 20
    KF1, KF2 = 24, 28
    vD = 22
    vD2 = 30
    vGK1, vGK2 = 31, 112
    vL16, vX = 113, 114
    VF = 32
    P = 40
    NEGM = 48
    SB = [64, 80]
    O = 96
    AQ1, AQ2 = 116, 120
    AKP1, AKP2 = 124, 122
    NV = 128
    a("s_cmp_ge_u32 s2, 256")
    a("s_cbranch_scc1 K2_END")
    stamp(a, 0); stamp_rt(a, 1)
    a("""
    s_load_dwordx2 s[12:13], s[0:1], 72
    v_lshrrev_b32 v8, 6, v0
    v_and_b32 v1, 63, v0
    s_and_b32 s14, s2, 7
    v_readfirstlane_b32 s16, v8
    s_lshr_b32 s15, s2, 3
    s_lshl_b32 s17, s14, 2
    s_lshr_b32 s3, s15, 3
    s_add_u32 s17, s17, s3
    s_and_b32 s9, s15, 7
    s_lshl_b32 s9, s9, 3
    s_and_b32 s3, s16, 7
    s_add_u32 s18, s9, s3
    s_lshr_b32 s19, s16, 3
    """)
    a(f"""
    v_and_b32 v8, 31, v1
    v_lshrrev_b32 v9, 5, v1
    v_lshlrev_b32 v{vL16}, 4, v1
    s_and_b32 s4, s{sHead}, 1
    s_mul_i32 s5, s{sHead}, 5
    s_lshr_b32 s5, s5, 1
    s_lshl_b32 s5, s5, 9
    s_lshl_b32 s6, s4, 9
    s_cmp_eq_u32 s4, 0
    s_cselect_b32 s7, 1024, 8
    v_add_u32 v{vK1}, s6, v{vL16}
    v_lshl_add_u32 v{vK2}, v8, 4, s7
    v_add_u32 v{vGK1}, s5, v{vK1}
    v_add_u32 v{vGK2}, s5, v{vK2}
    s_add_u32 s5, s5, {SEGB}
    v_add_u32 v{vD}, s5, v{vL16}
    s_mul_i32 s6, s{sHead}, 320
    s_add_u32 s7, s6, {2*SEGB - 1024 - 512}
    v_cmp_le_u32 s[{sTmp}:{sTmp+1}], 53, v1
    v_mov_b32 v12, {10240-336}
    v_add_u32 v13, s7, v{vL16}
    v_cndmask_b32 v12, 0, v12, s[{sTmp}:{sTmp+1}]
    v_add_u32 v13, v13, v12
    v_cmp_le_u32 s[{sTmp}:{sTmp+1}], 32, v1
    v_add_u32 v11, 32, v1
    v_mul_u32_u24 v11, 49, v11
    v_cndmask_b32 v{vD+1}, v{vD}, v13, s[{sTmp}:{sTmp+1}]
    v_lshrrev_b32 v11, 10, v11
    v_mul_u32_u24 v11, {10240-336}, v11
    s_add_u32 s7, s6, {2*SEGB - 2048 + 512}
    v_add3_u32 v{vD2}, v11, v{vL16}, s7
    s_mul_i32 s{sTA}, s{sT}, {TB}
    s_add_u32 s8, s{sTA}, {3*SEGB}
    s_mul_i32 s{sDma}, s{sWave}, {TB}
    s_add_u32 s{sDma}, s{sDma}, {3*SEGB}
    s_mul_i32 s{sM0}, s{sWave}, {K2_TILE}
    s_waitcnt lgkmcnt(0)
    """)
    srd(a, SWS, 12, WS_BYTES)

    m1 = ((1 << 64) - 1) & ~(1 << 52)
    m2 = ((1 << 52) - 1) & ~(1 << 9) & ~(1 << 30) & ~(1 << 51)

    def dma_tile(slot, soff):
        a(f"""
        s_add_u32 m0, s{sM0}, {slot * K2_SLOT}
        {soff}
        buffer_load_dwordx4 v{vD}, {sr(SWS,4)}, s{sTmp} offen lds
        s_mov_b32 exec_hi, 0x{m1 >> 32:08x}
        buffer_load_dwordx4 v{vD+1}, {sr(SWS,4)}, s{sTmp} offen offset:1024 lds
        s_mov_b32 exec_lo, 0x{m2 & 0xffffffff:08x}
        s_mov_b32 exec_hi, 0x{m2 >> 32:08x}
        buffer_load_dwordx4 v{vD2}, {sr(SWS,4)}, s{sTmp} offen offset:2048 lds
        s_mov_b64 exec, -1
        """)

    def dma_chunk(c):
        dma_tile(c % K2_R, f"s_add_u32 s{sTmp}, s{sDma}, {c * 16 * TB}")

    def ones_rows():
        a(f"""
        v_mov_b32 v{VF}, 0x3f803f80
        v_mov_b32 v{VF+1}, 0x3f803f80
        v_mov_b32 v{VF+2}, 0x3f803f80
        v_mov_b32 v{VF+3}, 0x3f803f80
        v_bfe_u32 v11, v1, 2, 2
        v_min_u32 v11, 2, v11
        v_mul_u32_u24 v11, {K2_SLOT}, v11
        v_and_b32 v12, 3, v1
        v_mul_u32_u24 v12, 336, v12
        v_add3_u32 v11, v11, v12, s{sM0}
        ds_write_b128 v11, {vr(VF,4)} offset:{1536+320}
        """)

    def zero_state():
        for r in range(16):
            a(f"v_mov_b32 v{O+r}, 0")
        for r in range(4):
            a(f"v_mov_b32 v{P+4+r}, 0")
            a(f"v_mov_b32 v{VF+4+r}, 0")
        a(f"""
        v_mov_b32 v{vV}, v{vLV}
        s_mov_b32 s{sSlot}, {K2_SLOT}
        s_mov_b32 s{sC}, 0
        """)

    dma_chunk(0)
    a(f"buffer_load_dwordx4 {vr(Q1,4)}, v{vGK1}, {sr(SWS,4)}, s8 offen")
    a(f"buffer_load_dwordx2 {vr(Q2,2)}, v{vGK2}, {sr(SWS,4)}, s8 offen")
    a(f"s_mov_b32 s{sRedo}, 0")
    ones_rows()
    a(f"""
    v_mov_b32 v11, {K2_FLAG}
    v_mov_b32 v12, 0
    ds_write_b32 v11, v12
    s_mul_i32 s3, s{sKh}, {8*K2_TILE}
    v_add_u32 v{vK10}, s3, v{vK1}
    v_add_u32 v{vK20}, s3, v{vK2}
    v_mul_u32_u24 v11, 336, v9
    v_lshl_add_u32 v11, v8, 4, v11
    s_add_u32 s3, s3, 1536
    v_add_u32 v{vLV}, s3, v11
    """)
    a(f"""
    v_and_b32 v10, 3, v8
    v_bfe_u32 v11, v8, 2, 1
    v_lshl_or_b32 v10, v11, 3, v10
    v_bfe_u32 v11, v8, 3, 1
    v_lshl_or_b32 v10, v11, 2, v10
    v_lshrrev_b32 v11, 4, v8
    v_lshl_or_b32 v14, v11, 4, v10
    v_lshlrev_b32 v10, 4, v10
    v_mul_u32_u24 v11, 20480, v11
    s_mul_i32 s3, s{sHead}, 5
    v_add_u32 v12, s3, v9
    v_lshrrev_b32 v13, 1, v12
    v_lshlrev_b32 v13, 8, v13
    v_and_b32 v12, 1, v12
    v_lshlrev_b32 v12, 3, v12
    v_add3_u32 v10, v10, v11, v12
    v_add_u32 v{vO}, v10, v13
    s_mul_i32 s3, s{sKh}, {O_BR}
    s_add_u32 s{sO}, s{sTA}, {O_OFF}
    s_add_u32 s{sO}, s{sO}, s3
    s_lshl_b32 s{sTouch}, s15, 4
    s_add_u32 s{sTouch}, s{sTouch}, s{sWave}
    s_mul_i32 s{sTouch}, s{sTouch}, 3200
    s_add_u32 s{sTouch}, s{sTouch}, {WOF_OFF}
    s_and_b32 s3, s{sWave}, 7
    s_mul_i32 s3, s3, 3072
    s_add_u32 s3, s3, {2*K2_SLOT}
    v_add_u32 v{vX}, s3, v{vL16}
    s_add_u32 s3, s9, s{sWave}
    s_max_u32 s3, s3, 1
    s_sub_u32 s3, s3, 1
    s_mul_i32 s{sAD}, s3, {TB}
    s_cmp_gt_u32 s{sWave}, 8
    s_cselect_b32 s{sAD}, 0x40000000, s{sAD}
    """)
    a(f"""
    s_and_b32 s3, s{sWave}, 7
    s_min_u32 s3, s3, 5
    s_lshr_b32 s4, s3, 1
    s_lshl_b32 s4, s4, 4
    s_and_b32 s5, s3, 1
    s_lshl_b32 s5, s5, 2
    s_add_u32 s4, s4, s5
    s_cmp_ge_u32 s3, 4
    s_cselect_b32 s5, 48, 0
    s_sub_u32 s4, s4, s5
    v_lshlrev_b32 v11, 3, v9
    v_sub_u32 v11, v14, v11
    v_subrev_u32 v11, s4, v11
    v_mov_b32 v12, {f32(-1e30)}
    s_lshl_b32 s3, s3, 10
    v_add_u32 v13, s3, v{vL16}
    """)
    for i in range(4):
        a(f"v_subrev_u32 v10, {i}, v11")
        a(f"v_cmp_gt_u32 s[{sTmp+2*i}:{sTmp+2*i+1}], 8, v10")
    a("s_nop 0")
    for i in range(4):
        a(f"v_cndmask_b32 v{P+i}, v12, 0, s[{sTmp+2*i}:{sTmp+2*i+1}]")
    a(f"ds_write_b128 v13, {vr(P,4)} offset:{K2_MASK - 65536*(K2_MASK//65536)}" if K2_MASK < 65536 else
      f"v_add_u32 v13, {K2_MASK}, v13\nds_write_b128 v13, {vr(P,4)}")
    zero_state()
    a("s_waitcnt vmcnt(0) lgkmcnt(0)")
    stamp(a, 2)
    a("s_barrier")

    def maxtree(regs, dst):
        a(f"v_max3_f32 v{dst}, v{regs[0]}, v{regs[1]}, v{regs[2]}")
        i = 3
        while i + 1 < len(regs):
            a(f"v_max3_f32 v{dst}, v{dst}, v{regs[i]}, v{regs[i+1]}")
            i += 2
        if i < len(regs):
            a(f"v_max_f32 v{dst}, v{dst}, v{regs[i]}")
        a(f"v_mov_b32 v{dst+1}, v{dst}")
        a("s_nop 1")
        a(f"v_permlane32_swap_b32 v{dst}, v{dst+1}")
        a("s_nop 1")
        a(f"v_max_f32 v{dst}, v{dst}, v{dst+1}")

    def store_o(D):
        a(f"""
        v_mov_b32 v{vt}, v{O+8}
        v_mov_b32 v{vt+1}, v{O+8}
        s_nop 1
        v_permlane32_swap_b32 v{vt}, v{vt+1}
        s_nop 1
        v_rcp_f32 v{vt}, v{vt+1}
        s_nop 0
        """)
        for r in range(12):
            a(f"v_mul_f32 v{O+r}, v{O+r}, v{vt}")
        for i in range(6):
            a(f"v_cvt_pk_bf16_f32 v{D+i}, v{O+2*i}, v{O+2*i+1}")
        a(f"buffer_store_dwordx2 {vr(D,2)}, v{vO}, {sr(SWS,4)}, s{sO} offen{K2STF}")
        a(f"buffer_store_dwordx2 {vr(D+2,2)}, v{vO}, {sr(SWS,4)}, s{sO} offen offset:256{K2STF}")
        a("s_mov_b32 exec_hi, 0")
        a(f"buffer_store_dwordx2 {vr(D+4,2)}, v{vO}, {sr(SWS,4)}, s{sO} offen offset:512{K2STF}")
        a("s_mov_b32 exec_hi, -1")

    def kreads(tile, k1=vK1, k2=vK2):
        o = tile * K2_TILE
        return [f"ds_read_b128 {vr(KF1,4)}, v{k1} offset:{o}",
                f"ds_read_b64 {vr(KF2,2)}, v{k2} offset:{o}"]

    def vread(tile, j):
        return f"ds_read_b128 {vr(VF+4*j,4)}, v{vV} offset:{tile * K2_TILE + 672*j}"

    def qk(sb, c):
        return [f"v_mfma_f32_32x32x16_bf16 {vr(sb,16)}, {vr(KF1,4)}, {vr(Q1,4)}, {c}",
                f"v_mfma_f32_32x32x8_bf16 {vr(sb,16)}, {vr(KF2,2)}, {vr(Q2,2)}, {vr(sb,16)}"]

    stamp(a, 3)
    for l in kreads(0):
        a(l)
    a(f"""
    s_mov_b32 exec_lo, 0
    v_mov_b32 v{Q2}, 0
    v_mov_b32 v{Q2+1}, 0
    s_mov_b32 exec_lo, -1
    s_waitcnt lgkmcnt(0)
    """)
    for l in qk(SB[0], "0"):
        a(l)
    for l in kreads(0, vK10, vK20):
        a(l)
    dma_chunk(1)
    dma_chunk(2)
    maxtree([SB[0] + r for r in range(16)], vt)
    for r in range(16):
        a(f"v_sub_f32 v{NEGM+r}, 0, v{vt}")
    a.label("K2_HAVE_M")
    a(f"""
    v_mov_b32 v{vK1}, v{vK10}
    v_mov_b32 v{vK2}, v{vK20}
    s_waitcnt lgkmcnt(0)
    """)
    for l in qk(SB[0], vr(NEGM, 16)):
        a(l)
    for l in kreads(1):
        a(l)
    a(vread(0, 0))
    a("s_nop 9")
    stamp(a, 4)
    a.raw(".p2align 3")
    a.label("K2_LOOP")
    prio = {0: 3, 3: 2, 5: 1, 7: 0} if 'k2_noprio' not in EXP else {}
    for i in range(8):
        cur, nxt = SB[i % 2], SB[1 - i % 2]
        e = [f"v_exp_f32 v{cur+r}, v{cur+r}" for r in range(16)]
        c = [f"v_cvt_pk_bf16_f32 v{P+j}, v{cur+2*j}, v{cur+2*j+1}" for j in range(8)]
        q = qk(nxt, vr(NEGM, 16))
        pv = [f"v_mfma_f32_32x32x16_bf16 {vr(O,16)}, {vr(VF+4*j,4)}, {vr(P+4*j,4)}, {vr(O,16)}" for j in range(2)]
        kr = kreads((i + 2) % 8)
        if i == 6:
            if STAMP:
                a("s_memtime s[86:87]")
                a("s_waitcnt lgkmcnt(0)")
                for cc in range(4):
                    a(f"s_cmp_eq_u32 s{sC}, {cc}")
                    a(f"s_cselect_b32 s{78+cc}, s86, s{78+cc}")
            a("s_waitcnt vmcnt(0)")
            a("s_barrier")
            if STAMP:
                a("s_memtime s[86:87]")
                a("s_waitcnt lgkmcnt(0)")
                for cc in range(4):
                    a(f"s_cmp_eq_u32 s{sC}, {cc}")
                    a(f"s_cselect_b32 s{82+cc}, s86, s{82+cc}")
            a(f"s_sub_u32 s3, s{sC}, 1")
            a(f"s_cmp_lt_u32 s3, 2")
            a("s_cbranch_scc1 K2_SIDE")
            a.label("K2_SIDE_RET")
            a(f"v_add_u32 v{vK1}, s{sSlot}, v{vK10}")
            a(f"v_add_u32 v{vK2}, s{sSlot}, v{vK20}")
        if (i - 6) % 8 in prio:
            a(f"s_setprio {prio[(i - 6) % 8]}")
        a(e[0]); a(e[1])
        a(pv[1])
        a(vread(i, 1))
        a(e[2]); a(e[3]); a(c[0]); a(e[4]); a(c[1])
        a("s_waitcnt lgkmcnt(1)")
        a(q[0])
        a(e[5]); a(e[6]); a(e[7]); a(c[2]); a(e[8]); a(c[3])
        a(q[1])
        for l in kr:
            a(l)
        a(e[9]); a(e[10]); a(e[11]); a(c[4]); a(e[12]); a(c[5])
        if i == 7:
            a(f"v_add_u32 v{vV}, s{sSlot}, v{vLV}")
        a(pv[0])
        a(vread((i + 1) % 8, 0))
        a(e[13]); a(e[14]); a(e[15]); a(c[6])
        a("s_waitcnt lgkmcnt(3)")
        a(c[7])
        if i == 7:
            a(f"s_add_u32 s{sSlot}, s{sSlot}, {K2_SLOT}")
            a(f"s_cmp_ge_u32 s{sSlot}, {K2_SLOT*K2_R}")
            a(f"s_cselect_b32 s{sSlot}, 0, s{sSlot}")
    a(f"""
    s_add_u32 s{sC}, s{sC}, 1
    s_cmp_lt_u32 s{sC}, 4
    s_cbranch_scc1 K2_LOOP
    v_mfma_f32_32x32x16_bf16 {vr(O,16)}, {vr(VF+4,4)}, {vr(P+4,4)}, {vr(O,16)}
    v_mov_b32 v{vt+3}, {K2_FLAG}
    v_mov_b32 v{vt+4}, 1
    s_mov_b32 s3, {f32(2.0**100)}
    s_add_u32 s4, s{sM0}, {K2_SLOT}
    v_add_u32 v{vK1}, s4, v{vK10}
    v_add_u32 v{vK2}, s4, v{vK20}
    v_add_u32 v{vV}, s4, v{vLV}
    v_add_u32 v{vt+5}, {K2_MASK}, v{vL16}
    s_waitcnt lgkmcnt(0)
    s_nop 4
    """)
    stamp(a, 5)
    a(f"v_mov_b32 v{vt+2}, v{O+8}")
    a("s_mov_b32 exec_hi, 0")
    a(f"v_mul_f32 v{vt+2}, 0, v{O+8}")
    for r in range(9, 12):
        a(f"v_fma_f32 v{vt+2}, v{O+r}, 0, v{vt+2}")
    a("s_mov_b32 exec_hi, -1")
    for r in range(8):
        a(f"v_fma_f32 v{vt+2}, v{O+r}, 0, v{vt+2}")
    a(f"""
    v_cmp_nlt_f32 s[{sTmp}:{sTmp+1}], v{vt+2}, s3
    s_nop 3
    s_cmp_eq_u64 s[{sTmp}:{sTmp+1}], 0
    s_cbranch_scc1 K2_NOFLAG
    ds_write_b32 v{vt+3}, v{vt+4}
    """)
    a.label("K2_NOFLAG")
    a(f"""
    s_cmp_eq_u32 s{sKh}, 0
    s_cbranch_scc0 K2_JOIN
    ds_write_b128 v{vX}, {vr(O,4)}
    ds_write_b128 v{vX}, {vr(O+4,4)} offset:1024
    ds_write_b128 v{vX}, {vr(O+8,4)} offset:2048
    s_cmp_lg_u32 s{sRedo}, 0
    s_cbranch_scc1 K2_JOIN
    """)
    AC = SB
    for g in range(4):
        a(f"ds_read_b128 {vr(AC[0]+4*g,4)}, v{vt+5} offset:{1024*g}")
    for g in range(2):
        a(f"ds_read_b128 {vr(AC[1]+8+4*g,4)}, v{vt+5} offset:{4096+1024*g}")
    for l in kreads(1):
        a(l)
    a(f"""
    ds_read_b128 {vr(AKP1,4)}, v{vK1}
    ds_read_b64 {vr(AKP2,2)}, v{vK2}
    {vread(1, 0)}
    {vread(1, 1)}
    ds_read_b128 {vr(P,4)}, v{vV} offset:672
    s_mov_b32 exec_lo, 0
    v_mov_b32 v{AQ2}, 0
    v_mov_b32 v{AQ2+1}, 0
    s_mov_b32 exec_lo, -1
    s_and_b32 s3, s{sT}, 31
    s_cmp_lg_u32 s3, 0
    s_waitcnt lgkmcnt(3)
    s_cbranch_scc1 K2_HASPREV
    """)
    for r in range(8, 16):
        a(f"v_mov_b32 v{AC[1]+r}, {f32(-1e30)}")
    a("s_nop 1")
    a.label("K2_HASPREV")
    a(f"""
    v_mfma_f32_32x32x16_bf16 {vr(AC[0],16)}, {vr(KF1,4)}, {vr(AQ1,4)}, {vr(AC[0],16)}
    v_mfma_f32_32x32x8_bf16 {vr(AC[0],16)}, {vr(KF2,2)}, {vr(AQ2,2)}, {vr(AC[0],16)}
    v_mfma_f32_32x32x16_bf16 {vr(AC[1],16)}, {vr(AKP1,4)}, {vr(AQ1,4)}, {vr(AC[1],16)}
    v_mfma_f32_32x32x8_bf16 {vr(AC[1],16)}, {vr(AKP2,2)}, {vr(AQ2,2)}, {vr(AC[1],16)}
    s_nop 11
    """)
    aregs = [AC[0] + r for r in range(16)] + [AC[1] + r for r in range(8, 16)]
    maxtree(aregs, vt)
    for r in aregs:
        a(f"v_sub_f32 v{r}, v{r}, v{vt}")
    for r in aregs:
        a(f"v_exp_f32 v{r}, v{r}")
    a("s_waitcnt lgkmcnt(0)")
    AP = NEGM
    for i in range(12):
        a(f"v_cvt_pk_bf16_f32 v{AP+i}, v{aregs[2*i]}, v{aregs[2*i+1]}")
    a(f"""
    s_nop 1
    v_mfma_f32_32x32x16_bf16 {vr(O,16)}, {vr(VF,4)}, {vr(AP,4)}, 0
    v_mfma_f32_32x32x16_bf16 {vr(O,16)}, {vr(VF+4,4)}, {vr(AP+4,4)}, {vr(O,16)}
    v_mfma_f32_32x32x16_bf16 {vr(O,16)}, {vr(P,4)}, {vr(AP+8,4)}, {vr(O,16)}
    s_nop 11
    """)
    store_o(AQ1)
    a.label("K2_JOIN")
    a(f"""
    s_waitcnt lgkmcnt(0)
    s_barrier
    ds_read_b32 v{vt+4}, v{vt+3}
    ds_read_b128 {vr(SB[0],4)}, v{vX}
    ds_read_b128 {vr(SB[0]+4,4)}, v{vX} offset:1024
    ds_read_b128 {vr(SB[0]+8,4)}, v{vX} offset:2048
    s_waitcnt lgkmcnt(0)
    v_readfirstlane_b32 s3, v{vt+4}
    s_nop 3
    s_cmp_gt_u32 s3, s{sRedo}
    s_cbranch_scc1 K2_FALLBACK
    s_cmp_eq_u32 s{sKh}, 0
    s_cbranch_scc1 K2_DONE
    """)
    for r in range(12):
        a(f"v_add_f32 v{O+r}, v{O+r}, v{SB[0]+r}")
    store_o(P)
    a.label("K2_DONE")
    if STAMP: a("s_waitcnt vmcnt(0)")
    stamp(a, 6); stamp_rt(a, 7)
    stamp_flush(a, 1, SWS, sWave, 16, 8)
    a.label("K2_END")
    a("s_endpgm")

    a.label("K2_SIDE")
    a("s_cmp_eq_u32 s3, 0")
    a("s_cbranch_scc0 K2_SIDE2")
    dma_chunk(3)
    a("s_branch K2_SIDE_RET")
    a.label("K2_SIDE2")
    dma_tile(1, f"s_mov_b32 s{sTmp}, s{sAD}")
    a(f"""
    buffer_load_dwordx4 {vr(AQ1,4)}, v{vGK1}, {sr(SWS,4)}, s{sTA} offen
    buffer_load_dwordx2 {vr(AQ2,2)}, v{vGK2}, {sr(SWS,4)}, s{sTA} offen
    v_lshlrev_b32 v{vt}, 7, v1
    s_mov_b32 exec_lo, 0x1ffffff
    s_mov_b32 exec_hi, 0
    buffer_load_dword v{vt+1}, v{vt}, {sr(SWS,4)}, s{sTouch} offen
    s_mov_b64 exec, -1
    s_cmp_eq_u32 s{sWave}, 15
    s_cbranch_scc0 K2_SIDE_RET
    """)
    code_touch(a, vt + 2, vt, sTmp, "proj_kernel", "CODE_END")
    a("s_branch K2_SIDE_RET")
    a.label("K2_FALLBACK")
    a(f"""
    s_mov_b32 s{sRedo}, 1
    s_mov_b32 s3, {4*SEGB}
    v_mov_b32 v{vt+2}, 0xff800000
    s_barrier
    """)
    ones_rows()
    for c in range(3):
        dma_chunk(c)
    a.label("K2_MAXLOOP")
    a(f"""
    buffer_load_dwordx4 {vr(KF1,4)}, v{vGK1}, {sr(SWS,4)}, s3 offen
    buffer_load_dwordx2 {vr(KF2,2)}, v{vGK2}, {sr(SWS,4)}, s3 offen
    s_waitcnt vmcnt(0)
    """)
    for l in qk(SB[0], "0"):
        a(l)
    a("s_nop 15")
    for r in range(0, 16, 2):
        a(f"v_max3_f32 v{vt+2}, v{vt+2}, v{SB[0]+r}, v{SB[0]+r+1}")
    a(f"""
    s_add_u32 s3, s3, {TB}
    s_cmp_lt_u32 s3, {5*SEGB}
    s_cbranch_scc1 K2_MAXLOOP
    v_mov_b32 v{vt+3}, v{vt+2}
    s_nop 1
    v_permlane32_swap_b32 v{vt+2}, v{vt+3}
    s_nop 1
    v_max_f32 v{vt+2}, v{vt+2}, v{vt+3}
    """)
    for r in range(16):
        a(f"v_sub_f32 v{NEGM+r}, 0, v{vt+2}")
    zero_state()
    a("s_waitcnt lgkmcnt(0)")
    a("s_barrier")
    for l in kreads(0, vK10, vK20):
        a(l)
    a("s_branch K2_HAVE_M")
    return kernel_desc(name, NV, NV, 48)


K3_DIST = int(os.environ.get('K3D', '2'))
K3_NS = K3_DIST + 2
K3_LDS = K3_NS * 20480


def gen_k3(a):
    name = "proj_kernel"
    kernel_head(a, name)
    SWS, SOUT = 20, 24
    sWave, sMb, sNb = 16, 17, 18
    sO, sW, sRot, sM0, sOc, sWc = 28, 29, 31, 32, 33, 34
    vL16, vWj, vG, vOut, vOut2 = 2, 3, 7, 8, 9
    ACC = [16, 36]
    OF = 56
    WF = 56 + 16 * (K3_DIST + 1)
    NV = WF + 40
    DIST = K3_DIST
    NO = DIST + 1
    a("s_cmp_ge_u32 s2, 256")
    a("s_cbranch_scc1 K3_END")
    stamp(a, 0); stamp_rt(a, 1)
    a("""
    s_load_dwordx2 s[4:5], s[0:1], 56
    s_load_dwordx2 s[6:7], s[0:1], 72
    v_lshrrev_b32 v9, 6, v0
    v_and_b32 v1, 63, v0
    s_and_b32 s14, s2, 7
    v_readfirstlane_b32 s16, v9
    s_lshr_b32 s15, s2, 3
    s_lshl_b32 s17, s14, 2
    s_and_b32 s3, s15, 3
    s_add_u32 s17, s17, s3
    s_lshr_b32 s18, s15, 2
    v_lshlrev_b32 v2, 4, v1
    """)
    a(f"""
    s_and_b32 s19, s{sNb}, 1
    s_lshr_b32 s{sRot}, s{sNb}, 1
    s_lshl_b32 s3, s{sMb}, 2
    s_add_u32 s3, s3, s{sWave}
    s_mul_i32 s{sO}, s3, 20480
    s_add_u32 s{sO}, s{sO}, {O_OFF}
    s_mul_i32 s{sW}, s{sNb}, {5*20480}
    s_lshl_b32 s14, s{sWave}, 10
    s_add_u32 s{sW}, s{sW}, s14
    s_add_u32 s{sW}, s{sW}, {WOF_OFF}
    s_mov_b32 s{sM0}, s14
    s_mul_i32 s14, s19, {O_BR}
    s_mul_i32 s15, s19, {WOF_BR}
    s_sub_u32 s36, {O_BR}, s14
    s_sub_u32 s37, {WOF_BR}, s15
    s_add_u32 s36, s36, s{sO}
    s_add_u32 s37, s37, s{sW}
    s_add_u32 s{sO}, s{sO}, s14
    s_add_u32 s{sW}, s{sW}, s15
    s_waitcnt lgkmcnt(0)
    """)
    srd(a, SWS, 6, WS_BYTES)
    srd(a, SOUT, 4, 2621440)

    def load_items(g):
        pre = []
        if g == 5:
            pre += [f"s_mov_b32 s{sO}, s36", f"s_mov_b32 s{sW}, s37"]
        pre += [f"s_lshl_b32 s14, s{sRot}, 12",
                f"s_add_u32 s{sOc}, s{sO}, s14",
                f"s_add_u32 s{sWc}, s{sW}, s14",
                f"s_add_u32 s{sRot}, s{sRot}, 1",
                f"s_cmp_ge_u32 s{sRot}, 5",
                f"s_cselect_b32 s{sRot}, 0, s{sRot}"]
        items = []
        for k in range(4):
            items.append([f"buffer_load_dwordx4 {vr(OF + (g % NO) * 16 + 4 * k, 4)}, v{vL16}, {sr(SWS,4)}, s{sOc} offen offset:{1024*k}"])
        for nt in range(5):
            items.append([f"s_add_u32 m0, s{sM0}, {(g % K3_NS) * 20480 + nt * 4096}",
                          f"s_add_u32 s{sWc}, s{sWc}, 20480" if nt else "s_nop 0",
                          f"buffer_load_dwordx4 v{vL16}, {sr(SWS,4)}, s{sWc} offen lds"])
        items[0] = pre + items[0]
        return items

    def loads(g):
        for it in load_items(g):
            for l in it:
                a(l)

    for g in range(DIST):
        loads(g)
    a(f"""
    v_and_b32 v9, 15, v1
    v_lshlrev_b32 v10, 2, v9
    s_lshl_b32 s14, s3, 6
    s_add_u32 s35, s14, {G_OFF}
    v_lshrrev_b32 v11, 4, v1
    v_mul_u32_u24 v12, 2560, v9
    v_and_b32 v13, 1, v11
    v_lshlrev_b32 v13, 5, v13
    v_lshrrev_b32 v14, 1, v11
    v_lshlrev_b32 v14, 4, v14
    v_add3_u32 v{vOut}, v12, v13, v14
    v_lshl_add_u32 v{vOut2}, v11, 3, v12
    v_add_u32 v{vWj}, 40960, v{vL16}
    v_add_u32 v{vWj+1}, 81920, v{vL16}
    s_and_b32 s14, s3, 63
    s_mul_i32 s14, s14, {16*2560}
    s_lshr_b32 s15, s3, 6
    s_mul_i32 s15, s15, 1280
    s_add_u32 s30, s14, s15
    s_mul_i32 s15, s{sNb}, 160
    s_add_u32 s30, s30, s15
    """)

    def wread(g, k):
        slot = g % K3_NS
        base, off = ((vL16, vWj, vWj + 1)[slot // 2], (slot % 2) * 20480)
        return [f"ds_read_b128 {vr(WF + (k % 2) * 20 + 4 * nt, 4)}, v{base} offset:{off + nt*4096 + k*1024}" for nt in range(5)]

    for g in range(10):
        if g == 0: stamp(a, 2)
        n_after = 9 * (min(10, g + DIST) - 1 - g) + (1 if g == 9 else 0)
        a(f"s_waitcnt vmcnt({n_after})")
        a("s_barrier")
        if g == 0: stamp(a, 3)
        for l in wread(g, 0):
            a(l)
        items = load_items(g + DIST) if g + DIST < 10 else []
        if g == 8:
            items = [[f"buffer_load_dword v{vG}, v10, {sr(SWS,4)}, s35 offen"]]
        if items:
            for l in items.pop(0):
                a(l)
        acc = ACC[g // 5]
        for k in range(4):
            if k < 3:
                for l in wread(g, k + 1):
                    a(l)
                a("s_waitcnt lgkmcnt(5)")
            else:
                a("s_waitcnt lgkmcnt(0)")
            for nt in range(5):
                d = vr(acc + 4 * nt, 4)
                c = "0" if (g % 5 == 0 and k == 0) else d
                a(f"v_mfma_f32_16x16x32_bf16 {d}, {vr(WF + (k % 2) * 20 + 4 * nt, 4)}, {vr(OF + (g % NO) * 16 + 4 * k, 4)}, {c}")
                if nt in (1, 3) and items:
                    for l in items.pop(0):
                        a(l)
        assert not items
    stamp(a, 4)
    a(f"""
    s_waitcnt vmcnt(0)
    v_sub_f32 v10, 1.0, v{vG}
    s_cmp_eq_u32 s19, 0
    s_cselect_b64 s[38:39], -1, 0
    v_cndmask_b32 v11, v10, v{vG}, s[38:39]
    v_cndmask_b32 v10, v{vG}, v10, s[38:39]
    """)
    A0, A1 = ACC
    for i in range(20):
        a(f"v_mul_f32 v{A0+i}, v{A0+i}, v11")
    for i in range(20):
        a(f"v_fma_f32 v{A0+i}, v{A1+i}, v10, v{A0+i}")
    for pr in range(2):
        b0 = A0 + pr * 8
        b1 = b0 + 4
        a(f"v_cvt_pk_bf16_f32 v{b0}, v{b0}, v{b0+1}")
        a(f"v_cvt_pk_bf16_f32 v{b0+1}, v{b0+2}, v{b0+3}")
        a(f"v_cvt_pk_bf16_f32 v{b0+2}, v{b1}, v{b1+1}")
        a(f"v_cvt_pk_bf16_f32 v{b0+3}, v{b1+2}, v{b1+3}")
        a("s_nop 1")
        a(f"v_permlane16_swap_b32 v{b0}, v{b0+2}")
        a(f"v_permlane16_swap_b32 v{b0+1}, v{b0+3}")
        a("s_nop 0")
        a(f"buffer_store_dwordx4 {vr(b0,4)}, v{vOut}, {sr(SOUT,4)}, s30 offen offset:{pr*64}")
    b0 = A0 + 16
    a(f"v_cvt_pk_bf16_f32 v{b0}, v{b0}, v{b0+1}")
    a(f"v_cvt_pk_bf16_f32 v{b0+1}, v{b0+2}, v{b0+3}")
    a(f"buffer_store_dwordx2 {vr(b0,2)}, v{vOut2}, {sr(SOUT,4)}, s30 offen offset:128")
    stamp(a, 5)
    if STAMP: a("s_waitcnt vmcnt(0)")
    stamp(a, 6); stamp_rt(a, 7)
    stamp_flush(a, 2, SWS, sWave, 8, 10)
    a.label("K3_END")
    a("s_endpgm")
    a.label("CODE_END")
    return kernel_desc(name, NV, NV, 44)


def main():
    global STAMP
    if "--stamp" in sys.argv:
        STAMP = True
        sys.argv.remove("--stamp")
    ref = open(OUT + ".ref").read().split("\n")
    head = [l for l in ref if l.startswith(";") and "@launch" not in l]
    a = Asm()
    for l in head:
        a.raw(l)
    a.raw(f"; @launch kernel=qkv_kernel grid=(256,1,1) block=(512,1,1) lds={K1_LDS}")
    a.raw(f"; @launch kernel=attn_kernel grid=(256,1,1) block=(1024,1,1) lds={K2_LDS}")
    a.raw(f"; @launch kernel=proj_kernel grid=(256,1,1) block=(256,1,1) lds={K3_LDS}")
    a.raw('.amdgcn_target "amdgcn-amd-amdhsa--gfx950"')
    a.raw(".text")
    d = [gen_k1(a), gen_k2(a), gen_k3(a)]
    a.raw('.section .rodata,"a"')
    for x in d:
        a.raw(".p2align 6")
        a.raw(x.rstrip("\n"))
    out = sys.argv[1] if len(sys.argv) > 1 else OUT
    open(out, "w").write(a.text())
    print("wrote", out, len(a.L), "lines")


if __name__ == "__main__":
    main()
```

```python
import sys, math, struct, os
EXP = os.environ.get('EXP', '').split(',')

NAME = "gated_mix__sliding_local_dilated__mha_block__prompt"
OUT = f"cdna_kernels/{NAME}.s"

SEGB = 2621440
TB = 40960
O_OFF = 16 << 20
O_BR = 2621440
WOF_OFF = 24 << 20
WOF_BR = 819200
G_OFF = 28 << 20
WS_BYTES = 32 << 20
QSCALE = (20 ** -0.5) * math.log2(math.e)


def f32(x):
    return "0x%08x" % struct.unpack("<I", struct.pack("<f", x))[0]


def pi5(i):
    return (i & ~12) | ((i & 4) << 1) | ((i & 8) >> 1)


class Asm:
    def __init__(self):
        self.L = []

    def __call__(self, s):
        for l in s.strip("\n").split("\n"):
            self.L.append("    " + l.strip())

    def label(self, l):
        self.L.append(l + ":")

    def raw(self, s):
        self.L.append(s)

    def text(self):
        return "\n".join(self.L) + "\n"


def vr(b, n=1, p="v"):
    return f"{p}{b}" if n == 1 else f"{p}[{b}:{b+n-1}]"


def ar(b, n=1):
    return vr(b, n, "a")


def sr(b, n=1):
    return vr(b, n, "s")


STAMP = False
K2STF = ' sc1' if 'k2_sc1' in EXP else ''
DBG_OFF = 30 << 20


def stamp(a, idx, sbase=70):
    if not STAMP:
        return
    a(f"s_memtime s[{sbase+16}:{sbase+17}]")
    a("s_waitcnt lgkmcnt(0)")
    a(f"s_mov_b32 s{sbase+idx}, s{sbase+16}")


def stamp_rt(a, idx, sbase=70):
    if not STAMP:
        return
    a(f"s_memrealtime s[{sbase+16}:{sbase+17}]")
    a("s_waitcnt lgkmcnt(0)")
    a(f"s_mov_b32 s{sbase+idx}, s{sbase+16}")


def stamp_flush(a, kidx, srd_ws, swave, n, vtmp, sbase=70, shift=4):
    if not STAMP:
        return
    a("s_mov_b64 exec, -1")
    a(f"s_lshl_b32 s{sbase+16}, s2, 4")
    a(f"s_add_u32 s{sbase+16}, s{sbase+16}, s{swave}")
    a(f"s_lshl_b32 s{sbase+16}, s{sbase+16}, 6")
    a(f"s_add_u32 s{sbase+16}, s{sbase+16}, {DBG_OFF + kidx*(1<<18)}")
    a(f"v_mov_b32 v{vtmp+1}, 0")
    for i in range(n):
        a(f"v_mov_b32 v{vtmp}, s{sbase+i}")
        a(f"buffer_store_dword v{vtmp}, v{vtmp+1}, s[{srd_ws}:{srd_ws+3}], s{sbase+16} offen offset:{4*i}")


def kernel_head(a, name):
    a.raw(f".globl {name}")
    a.raw(".p2align 8")
    a.raw(f".type {name},@function")
    a.label(name)


def kernel_desc(name, vgpr_total, accum, sgpr):
    return f""".amdhsa_kernel {name}
  .amdhsa_next_free_vgpr {vgpr_total}
  .amdhsa_next_free_sgpr {96 if STAMP else sgpr}
  .amdhsa_accum_offset {accum}
  .amdhsa_group_segment_fixed_size 0
  .amdhsa_kernarg_size 80
  .amdhsa_user_sgpr_count 2
  .amdhsa_user_sgpr_kernarg_segment_ptr 1
  .amdhsa_system_sgpr_workgroup_id_x 1
.end_amdhsa_kernel
"""


def srd(a, d, base, nbytes):
    a(f"s_mov_b32 s{d}, s{base}")
    a(f"s_mov_b32 s{d+1}, s{base+1}")
    a(f"s_mov_b32 s{d+2}, {nbytes}")
    a(f"s_mov_b32 s{d+3}, 0x00020000")


K1_WST = 16896
K1_NSW = 6 if 'k1_nsw6' in EXP else 5
K1_NSX = 3
K1_XB = K1_WST * K1_NSW
K1_LDS = K1_XB + K1_NSX * 16384


STF = '' if 'k1_plain' in EXP else (' nt' if 'k1_nt' in EXP else (' sc1 nt' if 'k1_sc1nt' in EXP else (' sc0 sc1 nt' if 'k1_all' in EXP else ' sc1')))


def gen_k1(a):
    name = "qkv_kernel"
    kernel_head(a, name)
    SX, SW, SR = 20, 24, 28
    sWave = 19
    a("s_cmp_ge_u32 s2, 256")
    a("s_cbranch_scc1 K1_END")
    stamp(a, 0); stamp_rt(a, 1)
    a("""
    s_load_dwordx4 s[4:7], s[0:1], 0
    s_load_dwordx2 s[8:9], s[0:1], 32
    s_load_dwordx2 s[10:11], s[0:1], 72
    """)
    if 'noct' not in EXP:
        code_touch(a, 31, 30, 52, "K1_CT0", "attn_kernel", lane="v0")
        a.label("K1_CT0")
    a("""
    v_lshrrev_b32 v2, 6, v0
    v_and_b32 v1, 63, v0
    s_and_b32 s12, s2, 7
    v_readfirstlane_b32 s19, v2
    s_cmp_ge_u32 s2, 240
    s_cbranch_scc1 K1_SIDE
    s_lshr_b32 s13, s2, 3
    s_mul_i32 s12, s12, 30
    s_add_u32 s12, s12, s13
    s_cmp_ge_u32 s12, 120
    s_cselect_b32 s14, 1, 0
    s_cselect_b32 s13, 120, 0
    s_sub_u32 s12, s12, s13
    s_and_b32 s15, s12, 7
    s_lshr_b32 s16, s12, 3
    v_and_b32 v3, 15, v1
    v_lshrrev_b32 v4, 4, v1
    """)
    a(f"""
    s_cmp_ge_u32 s{sWave}, 4
    s_cselect_b32 s12, 1, 0
    s_lshr_b32 s12, s{sWave}, s12
    s_and_b32 s12, s12, 1
    s_lshl_b32 s17, s16, 1
    s_add_u32 s17, s17, s12
    s_cmp_ge_u32 s17, 15
    s_cselect_b32 s18, 1, 0
    s_cselect_b32 s13, 15, 0
    s_sub_u32 s17, s17, s13
    s_movk_i32 s60, 3840
    s_mov_b32 s62, 2621440
    s_movk_i32 s63, 128
    s_cmp_ge_u32 s{sWave}, 4
    s_cbranch_scc0 K1_COMPUTE
    """)
    vW, vXg = 8, 12
    sWo, sXo, sWl, sXl, sWc, sXc, sOrd = 32, 33, 34, 35, 36, 37, 38
    K1_D = int(os.environ.get('K1D', '2'))
    ORD = []
    for g in range(4):
        o = list(range(10))
        for b in range(10):
            if b % 4 == g and K1_D:
                p = o.index(b)
                o.pop(p)
                o.insert(max(0, p - K1_D), b)
        ORD.append(sum(b << (4 * i) for i, b in enumerate(o)))
    a(f"""
    v_lshrrev_b32 v5, 1, v4
    v_and_b32 v6, 1, v4
    v_lshlrev_b32 v5, 4, v5
    v_lshl_add_u32 v5, v6, 2, v5
    v_mul_u32_u24 v5, 3840, v5
    v_lshl_add_u32 v{vW}, v3, 4, v5
    v_add_u32 v{vW+1}, 2784, v{vW}
    v_add_u32 v{vW+2}, {2*2784}, v{vW}
    v_add_u32 v{vW+3}, {3*2784}, v{vW}
    v_lshrrev_b32 v5, 3, v1
    v_and_b32 v6, 7, v1
    v_xor_b32 v6, v6, v5
    v_mul_u32_u24 v5, 2560, v5
    v_lshl_add_u32 v{vXg}, v6, 4, v5
    v_add_u32 v{vXg+1}, 19456, v{vXg}
    v_add_u32 v{vXg+2}, {2*19456}, v{vXg}
    v_add_u32 v{vXg+3}, {3*19456}, v{vXg}
    s_and_b32 s13, s{sWave}, 1
    s_mul_i32 s{sWo}, s13, {8*3840}
    s_lshl_b32 s3, s17, 8
    s_add_u32 s{sWo}, s{sWo}, s3
    s_and_b32 s3, s{sWave}, 3
    s_mul_i32 s{sWl}, s3, {4*1056}
    s_lshl_b32 s{sXl}, s3, 12
    s_add_u32 s{sXl}, s{sXl}, {K1_XB}
    s_lshl_b32 s13, s15, 2
    s_add_u32 s13, s13, s3
    s_mul_i32 s{sXo}, s13, {32*2560}
    s_mul_i32 s13, s14, 1280
    s_add_u32 s{sXo}, s{sXo}, s13
    s_add_u32 s3, s15, s16
    s_and_b32 s3, s3, 3
    s_mov_b32 s{sOrd}, {ORD[0] & 0xffffffff}
    s_mov_b32 s{sOrd+1}, {ORD[0] >> 32}
    s_cmp_eq_u32 s3, 1
    s_cselect_b32 s{sOrd}, {ORD[1] & 0xffffffff}, s{sOrd}
    s_cselect_b32 s{sOrd+1}, {ORD[1] >> 32}, s{sOrd+1}
    s_cmp_eq_u32 s3, 2
    s_cselect_b32 s{sOrd}, {ORD[2] & 0xffffffff}, s{sOrd}
    s_cselect_b32 s{sOrd+1}, {ORD[2] >> 32}, s{sOrd+1}
    s_cmp_eq_u32 s3, 3
    s_cselect_b32 s{sOrd}, {ORD[3] & 0xffffffff}, s{sOrd}
    s_cselect_b32 s{sOrd+1}, {ORD[3] >> 32}, s{sOrd+1}
    s_cmp_eq_u32 s18, 0
    s_waitcnt lgkmcnt(0)
    s_cselect_b64 s[6:7], s[6:7], s[8:9]
    """)
    srd(a, SX, 4, 2621440)
    srd(a, SW, 6, 2457600)
    if STAMP:
        srd(a, SR, 10, WS_BYTES)
    hist = []

    def blk(j, dst):
        r = sOrd + (j // 8)
        a(f"s_bfe_u32 s{dst}, s{r}, {(4 << 16) | (4 * (j % 8))}")

    def wl(k):
        a(f"s_add_u32 m0, s{sWl}, {(k % K1_NSW) * K1_WST}")
        if k % 2 == 0:
            blk(k // 2, sWc)
            a(f"s_mul_i32 s{sWc}, s{sWc}, {2*122880}")
            a(f"s_add_u32 s{sWc}, s{sWc}, s{sWo}")
        else:
            a(f"s_add_u32 s{sWc}, s{sWc}, 122880")
        for i in range(4):
            a(f"buffer_load_dwordx4 v{vW+i}, {sr(SW,4)}, s{sWc} offen offset:{1056*i} lds")
        hist.append(("W", k))

    def xl(j):
        a(f"s_add_u32 m0, s{sXl}, {(j % K1_NSX) * 16384}")
        blk(j, sXc)
        a(f"s_lshl_b32 s{sXc}, s{sXc}, 7")
        a(f"s_add_u32 s{sXc}, s{sXc}, s{sXo}")
        for q in range(4):
            a(f"buffer_load_dwordx4 v{vXg+q}, {sr(SX,4)}, s{sXc} offen offset:{1024*q} lds")
        hist.append(("X", j))

    def need(ks):
        req = [("W", ks), ("X", ks // 2)]
        last = max(hist.index(r) for r in req)
        a(f"s_waitcnt vmcnt({4 * (len(hist) - 1 - last)})")
        a("s_barrier")

    seq = []
    for j in range(10):
        seq += [("X", j), ("W", 2 * j), ("W", 2 * j + 1)]
    pos = [0]

    def free_at(it):
        t, i = it
        if t == "W":
            return i - K1_NSW
        return 2 * (i - K1_NSX) + 1

    def issue(step, nmax):
        n = 0
        while pos[0] < len(seq) and n < nmax and free_at(seq[pos[0]]) <= step:
            t, i = seq[pos[0]]
            (wl if t == "W" else xl)(i)
            pos[0] += 1
            n += 1
    RAMP = [int(c) for c in os.environ.get('K1RAMP', '32222')]
    issue(-2, RAMP[0])
    stamp(a, 2)
    need(0)
    stamp(a, 3)
    issue(-1, RAMP[1])
    for ks in range(19):
        need(ks + 1)
        if ks % 2 == 1 and ks <= 15: stamp(a, 8 + ks // 2)
        issue(ks, RAMP[ks + 2] if ks + 2 < len(RAMP) else RAMP[-1])
    assert pos[0] == len(seq)
    a("s_barrier")
    stamp(a, 4); stamp(a, 5); stamp(a, 6); stamp_rt(a, 7)
    stamp_flush(a, 0, SR, sWave, 16, 2)
    a("s_endpgm")

    a.label("K1_COMPUTE")
    ACC = 32
    WFR = [0, 32]
    XFR = [64, 80]
    vTr0, vTr, vXr0, vXr, vSt = 8, 9, 10, 12, 14
    sRd, sXr, sIt, sSt, sSeg = 32, 33, 34, 36, 35
    TOUCH = 'k1_touch' in EXP
    ST, sTo, sTs = 44, 42, 43
    TD = 5
    if TOUCH:
        a(f"""
        v_lshrrev_b32 v5, 1, v1
        v_and_b32 v6, 1, v1
        v_lshlrev_b32 v6, 7, v6
        v_mad_u32_u24 v16, v5, s60, v6
        v_mul_u32_u24 v17, 2560, v1
        s_mul_i32 s{sTo}, s15, {8*3840}
        s_lshl_b32 s3, s17, 8
        s_add_u32 s{sTo}, s{sTo}, s3
        s_add_u32 s{sTo}, s{sTo}, {3*64*3840}
        s_lshl_b32 s3, s15, 3
        s_and_b32 s13, s16, 3
        s_lshl_b32 s13, s13, 1
        s_add_u32 s3, s3, s13
        s_and_b32 s13, s{sWave}, 1
        s_add_u32 s3, s3, s13
        s_mul_i32 s3, s3, {16*2560}
        s_mul_i32 s13, s14, 1280
        s_add_u32 s3, s3, s13
        s_add_u32 s3, s3, {3*128}
        s_cmp_eq_u32 s18, 0
        s_waitcnt lgkmcnt(0)
        s_cselect_b64 s[6:7], s[6:7], s[8:9]
        s_cmp_lt_u32 s{sWave}, 2
        s_cselect_b64 s[{ST}:{ST+1}], s[6:7], s[4:5]
        s_cselect_b32 s{ST+2}, 2457600, s62
        s_mov_b32 s{ST+3}, 0x00020000
        s_cselect_b32 s{sTo}, s{sTo}, s3
        s_cselect_b32 s{sTs}, {64*3840}, s63
        s_cselect_b64 s[50:51], -1, 0
        v_cndmask_b32 v16, v17, v16, s[50:51]
        v_cmp_gt_u32 s[50:51], 16, v1
        v_mov_b32 v17, 0x40000000
        s_nop 0
        v_cndmask_b32 v16, v17, v16, s[50:51]
        """)
        for b in range(3, TD):
            a(f"buffer_load_dword v18, v16, {sr(ST,4)}, s{sTo} offen")
            a(f"s_add_u32 s{sTo}, s{sTo}, s{sTs}")
    a(f"""
    v_and_b32 v5, 1, v4
    v_lshrrev_b32 v6, 2, v3
    v_lshl_add_u32 v5, v5, 2, v6
    v_mul_u32_u24 v5, 1056, v5
    v_lshrrev_b32 v6, 1, v4
    v_lshlrev_b32 v6, 9, v6
    v_and_b32 v7, 3, v3
    v_lshlrev_b32 v7, 3, v7
    v_add3_u32 v5, v5, v6, v7
    s_mul_i32 s3, s12, 8448
    v_add_u32 v{vTr0}, s3, v5
    v_and_b32 v5, 3, v3
    v_bfe_u32 v6, v3, 2, 1
    v_lshl_or_b32 v5, v6, 3, v5
    v_bfe_u32 v6, v3, 3, 1
    v_lshl_or_b32 v5, v6, 2, v5
    v_and_b32 v6, 7, v5
    v_xor_b32 v6, v6, v4
    v_lshlrev_b32 v6, 4, v6
    v_lshl_add_u32 v5, v5, 7, v6
    s_lshr_b32 s13, s{sWave}, 1
    s_lshl_b32 s3, s13, 13
    s_add_u32 s3, s3, {K1_XB}
    v_add_u32 v{vXr0}, s3, v5
    v_xor_b32 v{vXr0+1}, 64, v{vXr0}
    v_mov_b32 v{vXr}, v{vXr0}
    v_mov_b32 v{vXr+1}, v{vXr0+1}
    v_mov_b32 v{vTr}, v{vTr0}
    s_mov_b32 s{sRd}, {K1_WST}
    s_mov_b32 s{sXr}, 16384
    s_mov_b32 s{sIt}, 0
    s_mul_i32 s{sSeg}, s17, 52
    s_lshr_b32 s{sSeg}, s{sSeg}, 8
    s_mul_i32 s3, s{sSeg}, 5
    s_sub_u32 s17, s17, s3
    s_mul_i32 s3, s18, 3
    s_add_u32 s3, s3, s{sSeg}
    s_mul_i32 s{sSt}, s3, {SEGB}
    s_lshl_b32 s3, s14, 4
    s_lshl_b32 s16, s15, 1
    s_add_u32 s3, s3, s16
    s_add_u32 s3, s3, s13
    s_mul_i32 s3, s3, {2*TB}
    s_add_u32 s{sSt}, s{sSt}, s3
    s_waitcnt lgkmcnt(0)
    """)
    srd(a, SR, 10, WS_BYTES)
    for i in range(128):
        a(f"v_mov_b32 v{ACC+i}, 0")

    def reads(fset, kk):
        L = [f"ds_read_b128 {ar(XFR[fset]+4*mt,4)}, v{vXr+kk} offset:{2048*mt}" for mt in range(4)]
        for t in range(8):
            for s in range(2):
                L.append(f"ds_read_b64_tr_b16 {ar(WFR[fset]+4*t+2*s,2)}, v{vTr} offset:{s*256 + t*32}")
        return L

    stamp(a, 2)
    a("s_barrier")
    stamp(a, 3)
    for l in reads(0, 0):
        a(l)
    a(f"s_cmp_eq_u32 s{sSeg}, 2")
    a("s_cbranch_scc1 K1_LOOP_N")
    for ori in ("T", "N"):
        a.raw(".p2align 3")
        a.label(f"K1_LOOP_{ori}")
        for s in range(2):
            fs = s
            rd = reads(1 - fs, 1 - s)
            mf = []
            for t in range(8):
                for mt in range(4):
                    acc = vr(ACC + (t * 4 + mt) * 4, 4)
                    w = ar(WFR[fs] + 4 * t, 4)
                    x = ar(XFR[fs] + 4 * mt, 4)
                    if ori == "T":
                        mf.append(f"v_mfma_f32_16x16x32_bf16 {acc}, {w}, {x}, {acc}")
                    else:
                        mf.append(f"v_mfma_f32_16x16x32_bf16 {acc}, {x}, {w}, {acc}")
            a(f"v_add_u32 v{vTr}, s{sRd}, v{vTr0}")
            rest = [f"s_add_u32 s{sRd}, s{sRd}, {K1_WST}",
                    f"s_cmp_ge_u32 s{sRd}, {K1_XB}",
                    f"s_cselect_b32 s{sRd}, 0, s{sRd}"]
            if s == 0 and TOUCH:
                rest += [f"s_cmp_lt_u32 s{sIt}, {10-TD}",
                         f"s_cselect_b32 s{sTo}, s{sTo}, 0x40000000",
                         f"buffer_load_dword v18, v16, {sr(ST,4)}, s{sTo} offen",
                         f"s_add_u32 s{sTo}, s{sTo}, s{sTs}"]
            if s == 1:
                a(f"v_add_u32 v{vXr}, s{sXr}, v{vXr0}")
                rest += [f"v_add_u32 v{vXr+1}, s{sXr}, v{vXr0+1}",
                         f"s_add_u32 s{sXr}, s{sXr}, 16384",
                         f"s_cmp_ge_u32 s{sXr}, {K1_NSX*16384}",
                         f"s_cselect_b32 s{sXr}, 0, s{sXr}",
                         f"s_add_u32 s{sIt}, s{sIt}, 1",
                         f"s_cmp_lt_u32 s{sIt}, 10"]
            a("s_waitcnt lgkmcnt(0)")
            a("s_barrier")
            fill = rd + rest
            for i in range(32):
                a(mf[i])
                if i < len(fill):
                    a(fill[i])
        a(f"s_cbranch_scc1 K1_LOOP_{ori}")
        stamp(a, 4)
        if ori == "T":
            a(f"""
            s_lshl_b32 s3, s17, 13
            s_add_u32 s{sSt}, s{sSt}, s3
            s_add_u32 s{sSt+1}, s{sSt}, 4096
            s_add_u32 s{sSt+2}, s{sSt}, {TB}
            s_add_u32 s{sSt+3}, s{sSt+1}, {TB}
            s_cmp_eq_u32 s{sSeg}, 0
            s_cselect_b32 s40, {f32(QSCALE)}, 1.0
            s_mov_b32 s41, s40
            v_lshlrev_b32 v{vSt}, 4, v1
            s_nop 3
            """)
        else:
            a(f"""
            s_lshl_b32 s3, s17, 11
            s_add_u32 s{sSt}, s{sSt}, s3
            s_add_u32 s{sSt+2}, s{sSt}, {TB}
            v_mul_u32_u24 v5, 10240, v4
            v_lshl_add_u32 v{vSt}, v3, 4, v5
            s_nop 7
            """)
        for t in range(8):
            for mp in range(2):
                b0 = ACC + (t * 4 + 2 * mp) * 4
                b1 = b0 + 4
                if ori == "T":
                    for i in range(4):
                        a(f"v_pk_mul_f32 {vr(b0+2*i,2)}, {vr(b0+2*i,2)}, s[40:41]")
                a(f"v_cvt_pk_bf16_f32 v{b0}, v{b0}, v{b0+1}")
                a(f"v_cvt_pk_bf16_f32 v{b0+1}, v{b0+2}, v{b0+3}")
                a(f"v_cvt_pk_bf16_f32 v{b0+2}, v{b1}, v{b1+1}")
                a(f"v_cvt_pk_bf16_f32 v{b0+3}, v{b1+2}, v{b1+3}")
                a("s_nop 1")
                sw = "v_permlane16_swap_b32" if ori == "T" else "v_permlane32_swap_b32"
                a(f"{sw} v{b0}, v{b0+2}")
                a(f"{sw} v{b0+1}, v{b0+3}")
                a("s_nop 0")
                if ori == "T":
                    a(f"buffer_store_dwordx4 {vr(b0,4)}, v{vSt}, {sr(SR,4)}, s{sSt + 2*mp + t//4} offen offset:{(t%4)*1024}{STF}")
                else:
                    a(f"buffer_store_dwordx4 {vr(b0,4)}, v{vSt}, {sr(SR,4)}, s{sSt + 2*mp} offen offset:{t*256}{STF}")
        stamp(a, 5)
        if STAMP: a("s_waitcnt vmcnt(0)")
        stamp(a, 6); stamp_rt(a, 7)
        stamp_flush(a, 0, SR, sWave, 8, 2)
        a("s_endpgm")

    a.label("K1_SIDE")
    SGW, SWO = 32, 36
    a(f"""
    s_load_dwordx2 s[46:47], s[0:1], 16
    s_load_dwordx4 s[12:15], s[0:1], 40
    s_sub_u32 s16, s2, 240
    s_lshl_b32 s16, s16, 3
    s_add_u32 s16, s16, s{sWave}
    v_lshlrev_b32 v2, 2, v1
    v_lshlrev_b32 v5, 4, v1
    v_lshrrev_b32 v3, 3, v1
    v_and_b32 v4, 7, v1
    v_mul_u32_u24 v3, 1280, v3
    v_lshl_add_u32 v3, v4, 4, v3
    v_lshrrev_b32 v4, 4, v1
    v_bfe_u32 v6, v1, 2, 2
    v_lshl_add_u32 v4, v4, 3, v6
    v_and_b32 v6, 3, v1
    v_lshlrev_b32 v6, 3, v6
    v_lshl_add_u32 v6, v4, 7, v6
    s_lshl_b32 s40, s{sWave}, 14
    v_add_u32 v6, s40, v6
    v_mov_b32 v4, 0
    s_waitcnt lgkmcnt(0)
    """)
    srd(a, SX, 4, 2621440)
    srd(a, SR, 10, WS_BYTES)
    srd(a, SGW, 14, 1280)
    a(f"s_mov_b32 s{SWO+2}, 819200")
    a(f"s_mov_b32 s{SWO+3}, 0x00020000")
    for i in range(4):
        a(f"""
        s_add_u32 s41, s16, {128*i}
        s_cmp_ge_u32 s41, 200
        s_cselect_b32 s{SWO}, s12, s46
        s_cselect_b32 s{SWO+1}, s13, s47
        s_cselect_b32 s3, 200, 0
        s_cselect_b32 s{42+i}, {WOF_BR}, 0
        s_add_u32 s{42+i}, s{42+i}, {WOF_OFF}
        s_sub_u32 s3, s41, s3
        s_mul_i32 s17, s3, 6554
        s_lshr_b32 s17, s17, 16
        s_mul_i32 s18, s17, 10
        s_sub_u32 s18, s3, s18
        s_lshl_b32 s3, s17, 10
        s_add_u32 s{42+i}, s{42+i}, s3
        s_mul_i32 s3, s18, {4*20480}
        s_add_u32 s{42+i}, s{42+i}, s3
        s_mul_i32 s17, s17, {32*1280}
        s_lshl_b32 s18, s18, 7
        s_add_u32 s17, s17, s18
        s_cmp_ge_u32 s41, 400
        s_cselect_b32 s{42+i}, 0x7f000000, s{42+i}
        s_cselect_b32 s17, 0x7f000000, s17
        """)
        for q in range(4):
            a(f"s_add_u32 m0, s40, {4096*i + 1024*q}")
            a("s_nop 0")
            a(f"buffer_load_dwordx4 v3, {sr(SWO,4)}, s17 offen lds")
            a(f"s_add_u32 s17, s17, {8*1280}")
    GW, GX = 8, 16
    for i in range(5):
        a(f"buffer_load_dword v{GW+i}, v2, {sr(SGW,4)}, 0 offen offset:{256*i}")
    a(f"""
    s_and_b32 s3, s16, 63
    s_mul_i32 s17, s3, {16*2560}
    s_lshr_b32 s3, s16, 6
    s_mul_i32 s3, s3, 1280
    s_add_u32 s17, s17, s3
    s_lshl_b32 s18, s16, 6
    s_add_u32 s18, s18, {G_OFF}
    """)
    for half in range(2):
        for r in range(8):
            for i in range(5):
                a(f"buffer_load_dword v{GX+5*r+i}, v2, {sr(SX,4)}, s17 offen offset:{256*i}")
            a("s_add_u32 s17, s17, 2560")
        if half == 0:
            a("s_waitcnt vmcnt(45)")
            for i in range(4):
                for nt in range(4):
                    b = 72 + (4 * i + nt) * 4
                    a(f"ds_read_b64_tr_b16 {vr(b,2)}, v6 offset:{4096*i + 32*nt}")
                    a(f"ds_read_b64_tr_b16 {vr(b+2,2)}, v6 offset:{4096*i + 32*nt + 512}")
                a("s_waitcnt lgkmcnt(0)")
            a("s_waitcnt vmcnt(0)")
            for i in range(4):
                for nt in range(4):
                    b = 72 + (4 * i + nt) * 4
                    a(f"buffer_store_dwordx4 {vr(b,4)}, v5, {sr(SR,4)}, s{42+i} offen")
                    a(f"s_add_u32 s{42+i}, s{42+i}, 20480")
        else:
            a("s_waitcnt vmcnt(0)")
        for r in range(8):
            a(f"v_dot2_f32_bf16 v{60+r}, v{GX+5*r}, v{GW}, 0")
        for i in range(1, 5):
            for r in range(8):
                a(f"v_dot2_f32_bf16 v{60+r}, v{GX+5*r+i}, v{GW+i}, v{60+r}")
        a("s_nop 3")
        for sh in ("row_shr:1 row_mask:0xf bank_mask:0xf bound_ctrl:0", "row_shr:2 row_mask:0xf bank_mask:0xf bound_ctrl:0",
                   "row_shr:4 row_mask:0xf bank_mask:0xf bound_ctrl:0", "row_shr:8 row_mask:0xf bank_mask:0xf bound_ctrl:0",
                   "row_bcast:15 row_mask:0xa bank_mask:0xf", "row_bcast:31 row_mask:0xc bank_mask:0xf"):
            for r in range(8):
                a(f"v_add_f32_dpp v{60+r}, v{60+r}, v{60+r} {sh}")
        for r in range(8):
            a(f"v_mul_f32 v{60+r}, {f32(-math.log2(math.e))}, v{60+r}")
        for r in range(8):
            a(f"v_exp_f32 v{60+r}, v{60+r}")
        for r in range(8):
            a(f"v_add_f32 v{60+r}, 1.0, v{60+r}")
        for r in range(8):
            a(f"v_rcp_f32 v{60+r}, v{60+r}")
        a("s_mov_b32 exec_lo, 0")
        a("s_mov_b32 exec_hi, 0x80000000")
        a(f"buffer_store_dwordx4 v[60:63], v4, {sr(SR,4)}, s18 offen offset:{32*half}")
        a(f"buffer_store_dwordx4 v[64:67], v4, {sr(SR,4)}, s18 offen offset:{32*half+16}")
        a("s_mov_b64 exec, -1")
        a("s_nop 1")
    if 'noct' not in EXP:
        code_touch(a, 31, 30, 52, "attn_kernel", "CODE_END", lane="v0")
    if STAMP:
        a("s_waitcnt vmcnt(0)")
        for i in range(2, 7):
            stamp(a, i)
        stamp_rt(a, 7)
        stamp_flush(a, 0, SR, sWave, 8, 2)
    a.label("K1_END")
    a("s_endpgm")
    return kernel_desc(name, 256, 160, 64)


K2_TILE = 2880
K2_SLOT = 16 * K2_TILE
K2_R = 3
FUSE = 'nofuse' not in EXP
K2_LDS = 163840
K2_MASK = K2_LDS - 6 * 1024
K2_FLAG = K2_MASK - 256
K2_XCH = 3 * 40960


def code_touch(a, vdst, vaddr, stmp, first, last, lane="v1"):
    lab = f"CT_{len(a.L)}"
    a(f"s_getpc_b64 s[{stmp}:{stmp+1}]")
    a.label(lab)
    a(f"s_add_u32 s{stmp}, s{stmp}, {first}-{lab}")
    a(f"s_addc_u32 s{stmp+1}, s{stmp+1}, 0")
    a(f"v_lshlrev_b32 v{vaddr}, 7, {lane}")
    a(f"v_min_u32 v{vaddr}, {last}-{first}-4, v{vaddr}")
    a(f"global_load_dword v{vdst}, v{vaddr}, s[{stmp}:{stmp+1}]")


def gen_pphase(a, L):
    SWS, sWave, sKh, O, SB, P, vL16, sTmp = L["SWS"], L["sWave"], L["sKh"], L["O"], L["SB"], L["P"], L["vL16"], L["sTmp"]
    SOUT, SDBG = 52, 56
    sNb, sMt, sWb, sRow, sOb, sKs, sWq, sLq, sOut = 60, 61, 62, 63, 64, 65, 66, 67, 34
    ACC, OF, WF = 16, 36, 76
    vLn, vW, vG, vOut, vOut2, vR = 2, 3, 4, 5, 6, 7

    def wrow(extra=0):
        a(f"""
        s_add_u32 s3, s{sRow}, {extra}
        s_lshr_b32 s4, s3, 4
        s_mul_i32 s4, s4, {WOF_BR}
        s_bfe_u32 s5, s3, {(1 << 16) | 3}
        s_mul_i32 s5, s5, 10
        s_and_b32 s6, s3, 7
        s_add_u32 s5, s5, s6
        s_lshl_b32 s5, s5, 10
        s_add_u32 s4, s4, s5
        s_add_u32 s4, s4, s{sWb}
        s_mul_i32 s5, s3, 5120
        """)
        for nt in range(5):
            a(f"s_add_u32 m0, s5, {1024*nt}")
            a(f"s_add_u32 s4, s4, 20480" if nt else "s_nop 0")
            a(f"buffer_load_dwordx4 v{vL16}, {sr(SWS,4)}, s4 offen lds")

    if 'p_late' in EXP:
        a(f"""
        s_lshr_b32 s{sNb}, s15, 2
        s_mul_i32 s{sWb}, s{sNb}, {5*20480}
        s_add_u32 s{sWb}, s{sWb}, {WOF_OFF}
        s_lshl_b32 s{sRow}, s{sWave}, 1
        s_waitcnt vmcnt(0)
        """)
        stamp(a, 12)
        srd(a, SDBG, 50, 256)
        a(f"""
        v_mov_b32 v8, 0
        v_mov_b32 v9, 1
        s_lshl_b32 s7, s9, 2
        s_barrier
        s_cmp_eq_u32 s{sWave}, 0
        s_cbranch_scc0 K2_NOSIG
        s_mov_b64 exec, 1
        buffer_atomic_add v9, v8, {sr(SDBG,4)}, s7 offen sc1
        s_mov_b64 exec, -1
        """)
        a.label("K2_NOSIG")
        stamp(a, 8)
        wrow(0)
        wrow(1)
    else:
        a(f"""
        s_lshr_b32 s{sNb}, s15, 2
        s_mul_i32 s{sWb}, s{sNb}, {5*20480}
        s_add_u32 s{sWb}, s{sWb}, {WOF_OFF}
        s_cmp_eq_u32 s{sKh}, 0
        s_cbranch_scc1 K2_PA
        s_sub_u32 s{sRow}, s{sWave}, 8
        """)
        wrow(0)
        a(f"""
        s_add_u32 s{sRow}, s{sWave}, 10
        s_cmp_ge_u32 s{sRow}, 24
        s_cselect_b32 s{sRow}, 8, s{sRow}
        """)
        wrow(0)
        a(f"s_add_u32 s{sRow}, s{sWave}, 16")
        a("s_waitcnt vmcnt(10)")
        a("s_branch K2_P1")
        a.label("K2_PA")
        a(f"s_add_u32 s{sRow}, s{sWave}, 9")
        a("s_waitcnt vmcnt(0)")
        a.label("K2_P1")
        srd(a, SDBG, 50, 256)
        a(f"""
        v_mov_b32 v8, 0
        v_mov_b32 v9, 1
        s_lshl_b32 s7, s9, 2
        s_barrier
        s_cmp_eq_u32 s{sWave}, 0
        s_cbranch_scc0 K2_NOSIG
        s_mov_b64 exec, 1
        buffer_atomic_add v9, v8, {sr(SDBG,4)}, s7 offen sc1
        s_mov_b64 exec, -1
        """)
        wrow(8)
        a.label("K2_NOSIG")
        stamp(a, 8)
        wrow(0)
    srd(a, SOUT, 48, 2621440)
    a(f"""
    v_mov_b32 v{vLn}, v{vL16}
    s_and_b32 s14, s2, 7
    s_lshl_b32 s{sMt}, s14, 2
    s_and_b32 s3, s15, 3
    s_add_u32 s{sMt}, s{sMt}, s3
    s_lshl_b32 s{sMt}, s{sMt}, 2
    s_and_b32 s3, s{sWave}, 3
    s_add_u32 s{sMt}, s{sMt}, s3
    s_lshr_b32 s4, s{sWave}, 2
    s_mul_i32 s{sLq}, s4, 40960
    s_and_b32 s5, s4, 1
    s_mul_i32 s5, s5, 10240
    s_mul_i32 s{sOb}, s{sKh}, {O_BR}
    s_add_u32 s{sOb}, s{sOb}, s5
    s_mul_i32 s6, s{sMt}, 20480
    s_add_u32 s{sOb}, s{sOb}, s6
    s_add_u32 s{sOb}, s{sOb}, {O_OFF}
    s_mul_i32 s{sWq}, s{sKh}, {WOF_BR}
    s_add_u32 s{sWq}, s{sWq}, s5
    s_add_u32 s{sWq}, s{sWq}, s{sWb}
    v_and_b32 v9, 15, v1
    v_lshlrev_b32 v10, 2, v9
    s_lshl_b32 s6, s{sMt}, 6
    s_add_u32 s6, s6, {G_OFF}
    buffer_load_dword v{vG}, v10, {sr(SWS,4)}, s6 offen
    v_lshrrev_b32 v11, 4, v1
    v_mul_u32_u24 v12, 2560, v9
    v_and_b32 v13, 1, v11
    v_lshlrev_b32 v13, 5, v13
    v_lshrrev_b32 v14, 1, v11
    v_lshlrev_b32 v14, 4, v14
    v_add3_u32 v{vOut}, v12, v13, v14
    v_lshl_add_u32 v{vOut2}, v11, 3, v12
    s_and_b32 s6, s{sMt}, 63
    s_mul_i32 s6, s6, {16*2560}
    s_lshr_b32 s7, s{sMt}, 6
    s_mul_i32 s7, s7, 1280
    s_add_u32 s{sOut}, s6, s7
    s_mul_i32 s7, s{sNb}, 160
    s_add_u32 s{sOut}, s{sOut}, s7
    s_cmp_eq_u32 s{sWave}, 15
    s_cbranch_scc0 K2_P2
    s_lshl_b32 s7, s14, 5
    s_movk_i32 s6, 8192
    """)
    a.label("K2_POLL")
    a(f"""
    buffer_load_dword v9, v8, {sr(SDBG,4)}, s7 offen sc1
    s_waitcnt vmcnt(0)
    v_readfirstlane_b32 s3, v9
    s_sub_u32 s6, s6, 1
    s_cmp_ge_u32 s3, 32
    s_cbranch_scc1 K2_P2
    s_sleep 2
    s_cmp_lg_u32 s6, 0
    s_cbranch_scc1 K2_POLL
    """)
    a.label("K2_P2")
    a("s_waitcnt vmcnt(0)")
    stamp(a, 13)
    a("s_barrier")
    stamp(a, 9)
    hist = []

    def oload(i):
        if i < 8:
            a(f"s_add_u32 s3, s{sNb}, {i}")
            a("s_and_b32 s3, s3, 7")
            a("s_lshl_b32 s3, s3, 10")
            a(f"s_add_u32 s3, s3, s{sOb}")
        else:
            a(f"s_add_u32 s3, s{sOb}, {1024*i}")
        a(f"buffer_load_dwordx4 {vr(OF+4*i,4)}, v{vLn}, {sr(SWS,4)}, s3 offen sc1")
        hist.append(("O", i))

    def slot_addr(i, dst):
        a(f"s_add_u32 s{dst}, s{sNb}, {i % 8}")
        a(f"s_and_b32 s{dst}, s{dst}, 7")
        a(f"s_mul_i32 s{dst}, s{dst}, 5120")
        a(f"s_add_u32 s{dst}, s{dst}, s{sLq}")

    def wreads(i):
        slot_addr(i, sKs)
        a(f"v_add_u32 v{vW}, s{sKs}, v{vLn}")
        for nt in range(5):
            a(f"ds_read_b128 {vr(WF + (i % 2) * 20 + 4 * nt, 4)}, v{vW} offset:{1024*nt}")

    PD = 4
    for i in range(PD):
        oload(i)
    wreads(0)
    for i in range(10):
        if i == 2:
            a("s_barrier")
            for j in range(3):
                a(f"""
                s_and_b32 s3, s{sWave}, 3
                s_mul_i32 s3, s3, 3
                s_add_u32 s3, s3, {j}
                s_cmp_ge_u32 s3, 5
                s_cselect_b32 s4, 1, 0
                s_mul_i32 s5, s4, 5
                s_sub_u32 s5, s3, s5
                s_add_u32 s6, s{sNb}, s4
                s_and_b32 s6, s6, 7
                s_mul_i32 s6, s6, 5120
                s_add_u32 s6, s6, s{sLq}
                s_lshl_b32 s7, s5, 10
                s_add_u32 m0, s6, s7
                s_add_u32 s4, s4, 8
                s_lshl_b32 s4, s4, 10
                s_mul_i32 s5, s5, 20480
                s_add_u32 s4, s4, s5
                s_add_u32 s4, s4, s{sWq}
                s_cmp_ge_u32 s3, 10
                s_cselect_b64 exec, 0, -1
                s_cbranch_scc1 K2_PSKIP{j}
                buffer_load_dwordx4 v{vLn}, {sr(SWS,4)}, s4 offen lds
                """)
                a.label(f"K2_PSKIP{j}")
                a("s_mov_b64 exec, -1")
        if i + 1 == 8:
            a("s_waitcnt vmcnt(2)")
            a("s_waitcnt lgkmcnt(0)")
            a("s_barrier")
        if i + 1 < 10:
            wreads(i + 1)
        n = len(hist) - 1 - hist.index(("O", i))
        a(f"s_waitcnt vmcnt({n}) lgkmcnt({5 if i + 1 < 10 else 0})")
        for nt in range(5):
            d = vr(ACC + 4 * nt, 4)
            a(f"v_mfma_f32_16x16x32_bf16 {d}, {vr(WF + (i % 2) * 20 + 4 * nt, 4)}, {vr(OF+4*i,4)}, {'0' if i == 0 else d}")
        if i + PD < 10:
            oload(i + PD)
    stamp(a, 10)
    a(f"""
    v_sub_f32 v10, 1.0, v{vG}
    s_cmp_eq_u32 s{sKh}, 0
    s_cselect_b64 s[{sTmp}:{sTmp+1}], -1, 0
    s_and_b32 s3, s{sWave}, 3
    s_add_u32 s3, s3, s{sNb}
    s_add_u32 s3, s3, 2
    s_and_b32 s3, s3, 7
    s_mul_i32 s3, s3, 5120
    v_cndmask_b32 v10, v10, v{vG}, s[{sTmp}:{sTmp+1}]
    v_add_u32 v{vR}, s3, v{vLn}
    v_add_u32 v{vW}, s{sLq}, v{vR}
    """)
    for i in range(20):
        a(f"v_mul_f32 v{ACC+i}, v{ACC+i}, v10")
    a(f"s_cmp_lt_u32 s{sWave}, 4")
    a("s_cbranch_scc1 K2_PSUM")
    for nt in range(5):
        a(f"ds_write_b128 v{vW}, {vr(ACC+4*nt,4)} offset:{1024*nt}")
    a("s_waitcnt lgkmcnt(0)")
    a("s_barrier")
    a("s_branch K2_PDONE")
    a.label("K2_PSUM")
    a(f"v_add_u32 v{vW}, 81920, v{vR}")
    a("s_barrier")
    for k in range(3):
        for nt in range(5):
            base, off = (vR, 40960) if k == 0 else (vW, 40960 * (k - 1))
            a(f"ds_read_b128 {vr(OF + 20*k + 4*nt, 4)}, v{base} offset:{off + 1024*nt}")
    for k in range(3):
        a(f"s_waitcnt lgkmcnt({5 * (2 - k)})")
        for i in range(20):
            a(f"v_add_f32 v{ACC+i}, v{ACC+i}, v{OF+20*k+i}")
    for pr in range(2):
        b0 = ACC + pr * 8
        b1 = b0 + 4
        a(f"v_cvt_pk_bf16_f32 v{b0}, v{b0}, v{b0+1}")
        a(f"v_cvt_pk_bf16_f32 v{b0+1}, v{b0+2}, v{b0+3}")
        a(f"v_cvt_pk_bf16_f32 v{b0+2}, v{b1}, v{b1+1}")
        a(f"v_cvt_pk_bf16_f32 v{b0+3}, v{b1+2}, v{b1+3}")
        a("s_nop 1")
        a(f"v_permlane16_swap_b32 v{b0}, v{b0+2}")
        a(f"v_permlane16_swap_b32 v{b0+1}, v{b0+3}")
        a("s_nop 0")
        a(f"buffer_store_dwordx4 {vr(b0,4)}, v{vOut}, {sr(SOUT,4)}, s{sOut} offen offset:{pr*64}")
    b0 = ACC + 16
    a(f"v_cvt_pk_bf16_f32 v{b0}, v{b0}, v{b0+1}")
    a(f"v_cvt_pk_bf16_f32 v{b0+1}, v{b0+2}, v{b0+3}")
    a(f"buffer_store_dwordx2 {vr(b0,2)}, v{vOut2}, {sr(SOUT,4)}, s{sOut} offen offset:128")
    a.label("K2_PDONE")


def gen_k2(a):
    name = "attn_kernel"
    kernel_head(a, name)
    SWS = 20
    sWave, sHead, sT, sKh = 16, 17, 18, 19
    sDma, sM0, sSlot, sC, sRedo = 24, 25, 26, 27, 28
    sTA, sO, sTouch, sAD = 29, 31, 33, 30
    sTmp = 36
    vK10, vK20, vLV, vK1, vK2, vV, vO = 2, 3, 4, 5, 6, 7, 15
    vt = 8
    Q1, Q2 = 16, 20
    KF1, KF2 = 24, 28
    vD = 22
    vD2 = 30
    vGK1, vGK2 = 31, 112
    vL16, vX, vO2 = 113, 114, 115
    VF = 32
    P = 40
    NEGM = 48
    SB = [64, 80]
    O = 96
    AQ1, AQ2 = 116, 120
    AKP1, AKP2 = 124, 122
    NV = 128
    a("s_cmp_ge_u32 s2, 256")
    a("s_cbranch_scc1 K2_END")
    stamp(a, 0); stamp_rt(a, 1)
    a("""
    s_load_dwordx2 s[12:13], s[0:1], 72
    s_load_dwordx4 s[48:51], s[0:1], 56
    v_lshrrev_b32 v8, 6, v0
    v_and_b32 v1, 63, v0
    s_and_b32 s14, s2, 7
    v_readfirstlane_b32 s16, v8
    s_lshr_b32 s15, s2, 3
    s_lshl_b32 s17, s14, 2
    s_lshr_b32 s3, s15, 3
    s_add_u32 s17, s17, s3
    s_and_b32 s9, s15, 7
    s_lshl_b32 s9, s9, 3
    s_and_b32 s3, s16, 7
    s_add_u32 s18, s9, s3
    s_lshr_b32 s19, s16, 3
    """)
    a(f"""
    v_and_b32 v8, 31, v1
    v_lshrrev_b32 v9, 5, v1
    v_lshlrev_b32 v{vL16}, 4, v1
    s_and_b32 s4, s{sHead}, 1
    s_mul_i32 s5, s{sHead}, 5
    s_lshr_b32 s5, s5, 1
    s_lshl_b32 s5, s5, 9
    s_lshl_b32 s6, s4, 9
    s_cmp_eq_u32 s4, 0
    s_cselect_b32 s7, 1024, 8
    v_add_u32 v{vK1}, s6, v{vL16}
    v_lshl_add_u32 v{vK2}, v8, 4, s7
    v_add_u32 v{vGK1}, s5, v{vK1}
    v_add_u32 v{vGK2}, s5, v{vK2}
    s_add_u32 s5, s5, {SEGB}
    v_add_u32 v{vD}, s5, v{vL16}
    s_mul_i32 s6, s{sHead}, 320
    s_add_u32 s7, s6, {2*SEGB - 1024 - 512}
    v_cmp_le_u32 s[{sTmp}:{sTmp+1}], 53, v1
    v_mov_b32 v12, {10240-336}
    v_add_u32 v13, s7, v{vL16}
    v_cndmask_b32 v12, 0, v12, s[{sTmp}:{sTmp+1}]
    v_add_u32 v13, v13, v12
    v_cmp_le_u32 s[{sTmp}:{sTmp+1}], 32, v1
    v_add_u32 v11, 32, v1
    v_mul_u32_u24 v11, 49, v11
    v_cndmask_b32 v{vD+1}, v{vD}, v13, s[{sTmp}:{sTmp+1}]
    v_lshrrev_b32 v11, 10, v11
    v_mul_u32_u24 v11, {10240-336}, v11
    s_add_u32 s7, s6, {2*SEGB - 2048 + 512}
    v_add3_u32 v{vD2}, v11, v{vL16}, s7
    s_mul_i32 s{sTA}, s{sT}, {TB}
    s_add_u32 s8, s{sTA}, {3*SEGB}
    s_mul_i32 s{sDma}, s{sWave}, {TB}
    s_add_u32 s{sDma}, s{sDma}, {3*SEGB}
    s_mul_i32 s{sM0}, s{sWave}, {K2_TILE}
    s_waitcnt lgkmcnt(0)
    """)
    srd(a, SWS, 12, WS_BYTES)

    m1 = ((1 << 64) - 1) & ~(1 << 52)
    m2 = ((1 << 52) - 1) & ~(1 << 9) & ~(1 << 30) & ~(1 << 51)

    def dma_tile(slot, soff):
        a(f"""
        s_add_u32 m0, s{sM0}, {slot * K2_SLOT}
        {soff}
        buffer_load_dwordx4 v{vD}, {sr(SWS,4)}, s{sTmp} offen lds
        s_mov_b32 exec_hi, 0x{m1 >> 32:08x}
        buffer_load_dwordx4 v{vD+1}, {sr(SWS,4)}, s{sTmp} offen offset:1024 lds
        s_mov_b32 exec_lo, 0x{m2 & 0xffffffff:08x}
        s_mov_b32 exec_hi, 0x{m2 >> 32:08x}
        buffer_load_dwordx4 v{vD2}, {sr(SWS,4)}, s{sTmp} offen offset:2048 lds
        s_mov_b64 exec, -1
        """)

    def dma_chunk(c):
        dma_tile(c % K2_R, f"s_add_u32 s{sTmp}, s{sDma}, {c * 16 * TB}")

    def ones_rows():
        a(f"""
        v_mov_b32 v{VF}, 0x3f803f80
        v_mov_b32 v{VF+1}, 0x3f803f80
        v_mov_b32 v{VF+2}, 0x3f803f80
        v_mov_b32 v{VF+3}, 0x3f803f80
        v_bfe_u32 v11, v1, 2, 2
        v_min_u32 v11, 2, v11
        v_mul_u32_u24 v11, {K2_SLOT}, v11
        v_and_b32 v12, 3, v1
        v_mul_u32_u24 v12, 336, v12
        v_add3_u32 v11, v11, v12, s{sM0}
        ds_write_b128 v11, {vr(VF,4)} offset:{1536+320}
        """)

    def zero_state():
        for r in range(16):
            a(f"v_mov_b32 v{O+r}, 0")
        for r in range(4):
            a(f"v_mov_b32 v{P+4+r}, 0")
            a(f"v_mov_b32 v{VF+4+r}, 0")
        a(f"""
        v_mov_b32 v{vV}, v{vLV}
        s_mov_b32 s{sSlot}, {K2_SLOT}
        s_mov_b32 s{sC}, 0
        """)

    dma_chunk(0)
    a(f"buffer_load_dwordx4 {vr(Q1,4)}, v{vGK1}, {sr(SWS,4)}, s8 offen")
    a(f"buffer_load_dwordx2 {vr(Q2,2)}, v{vGK2}, {sr(SWS,4)}, s8 offen")
    a(f"s_mov_b32 s{sRedo}, 0")
    ones_rows()
    a(f"""
    v_mov_b32 v11, {K2_FLAG}
    v_mov_b32 v12, 0
    ds_write_b32 v11, v12
    s_mul_i32 s3, s{sKh}, {8*K2_TILE}
    v_add_u32 v{vK10}, s3, v{vK1}
    v_add_u32 v{vK20}, s3, v{vK2}
    s_and_b32 s4, s{sHead}, 1
    s_lshl_b32 s5, s4, 2
    v_add_u32 v12, s5, v8
    v_subrev_u32 v13, 20, v12
    v_cmp_gt_u32 s[{sTmp}:{sTmp+1}], 20, v12
    v_cmp_gt_u32 s[{sTmp+2}:{sTmp+3}], 20, v8
    v_mul_u32_u24 v11, 336, v9
    v_cndmask_b32 v12, v13, v12, s[{sTmp}:{sTmp+1}]
    v_cndmask_b32 v12, v8, v12, s[{sTmp+2}:{sTmp+3}]
    v_lshl_add_u32 v11, v12, 4, v11
    s_add_u32 s3, s3, 1536
    v_add_u32 v{vLV}, s3, v11
    """)
    a(f"""
    v_and_b32 v10, 3, v8
    v_bfe_u32 v11, v8, 2, 1
    v_lshl_or_b32 v10, v11, 3, v10
    v_bfe_u32 v11, v8, 3, 1
    v_lshl_or_b32 v10, v11, 2, v10
    v_lshrrev_b32 v11, 4, v8
    v_lshl_or_b32 v14, v11, 4, v10
    v_lshlrev_b32 v10, 4, v10
    v_mul_u32_u24 v11, 20480, v11
    s_mul_i32 s3, s{sHead}, 5
    s_add_u32 s3, s3, 1
    s_lshr_b32 s3, s3, 1
    s_lshl_b32 s3, s3, 8
    v_add3_u32 v10, v10, v11, s3
    v_lshl_add_u32 v{vO}, v9, 8, v10
    s_mul_i32 s5, s4, 760
    s_sub_u32 s5, 512, s5
    v_add_u32 v{vO2}, s5, v10
    s_mul_i32 s3, s{sKh}, {O_BR}
    s_add_u32 s{sO}, s{sTA}, {O_OFF}
    s_add_u32 s{sO}, s{sO}, s3
    s_lshl_b32 s{sTouch}, s15, 4
    s_add_u32 s{sTouch}, s{sTouch}, s{sWave}
    s_mul_i32 s{sTouch}, s{sTouch}, 3200
    s_add_u32 s{sTouch}, s{sTouch}, {WOF_OFF}
    s_and_b32 s3, s{sWave}, 7
    s_mul_i32 s3, s3, 3072
    s_add_u32 s3, s3, {K2_XCH}
    v_add_u32 v{vX}, s3, v{vL16}
    s_add_u32 s3, s9, s{sWave}
    s_max_u32 s3, s3, 1
    s_sub_u32 s3, s3, 1
    s_mul_i32 s{sAD}, s3, {TB}
    s_cmp_gt_u32 s{sWave}, 8
    s_cselect_b32 s{sAD}, 0x40000000, s{sAD}
    """)
    a(f"""
    s_and_b32 s3, s{sWave}, 7
    s_min_u32 s3, s3, 5
    s_lshr_b32 s4, s3, 1
    s_lshl_b32 s4, s4, 4
    s_and_b32 s5, s3, 1
    s_lshl_b32 s5, s5, 2
    s_add_u32 s4, s4, s5
    s_cmp_ge_u32 s3, 4
    s_cselect_b32 s5, 48, 0
    s_sub_u32 s4, s4, s5
    v_lshlrev_b32 v11, 3, v9
    v_sub_u32 v11, v14, v11
    v_subrev_u32 v11, s4, v11
    v_mov_b32 v12, {f32(-1e30)}
    s_lshl_b32 s3, s3, 10
    v_add_u32 v13, s3, v{vL16}
    """)
    for i in range(4):
        a(f"v_subrev_u32 v10, {i}, v11")
        a(f"v_cmp_gt_u32 s[{sTmp+2*i}:{sTmp+2*i+1}], 8, v10")
    a("s_nop 0")
    for i in range(4):
        a(f"v_cndmask_b32 v{P+i}, v12, 0, s[{sTmp+2*i}:{sTmp+2*i+1}]")
    a(f"ds_write_b128 v13, {vr(P,4)} offset:{K2_MASK - 65536*(K2_MASK//65536)}" if K2_MASK < 65536 else
      f"v_add_u32 v13, {K2_MASK}, v13\nds_write_b128 v13, {vr(P,4)}")
    zero_state()
    a("s_waitcnt vmcnt(0) lgkmcnt(0)")
    stamp(a, 2)
    a("s_barrier")

    def maxtree(regs, dst):
        a(f"v_max3_f32 v{dst}, v{regs[0]}, v{regs[1]}, v{regs[2]}")
        i = 3
        while i + 1 < len(regs):
            a(f"v_max3_f32 v{dst}, v{dst}, v{regs[i]}, v{regs[i+1]}")
            i += 2
        if i < len(regs):
            a(f"v_max_f32 v{dst}, v{dst}, v{regs[i]}")
        a(f"v_mov_b32 v{dst+1}, v{dst}")
        a("s_nop 1")
        a(f"v_permlane32_swap_b32 v{dst}, v{dst+1}")
        a("s_nop 1")
        a(f"v_max_f32 v{dst}, v{dst}, v{dst+1}")

    def store_o(D):
        a(f"""
        v_mov_b32 v{vt}, v{O+8}
        v_mov_b32 v{vt+1}, v{O+8}
        s_nop 1
        v_permlane32_swap_b32 v{vt}, v{vt+1}
        s_nop 1
        v_rcp_f32 v{vt}, v{vt+1}
        s_nop 0
        """)
        for r in range(12):
            a(f"v_mul_f32 v{O+r}, v{O+r}, v{vt}")
        for i in range(6):
            a(f"v_cvt_pk_bf16_f32 v{D+i}, v{O+2*i}, v{O+2*i+1}")
        stf = " sc1" if FUSE else K2STF
        a(f"v_permlane32_swap_b32 v{D}, v{D+2}")
        a(f"v_permlane32_swap_b32 v{D+1}, v{D+3}")
        a("s_mov_b32 exec_hi, 0")
        a(f"buffer_store_dwordx2 {vr(D+4,2)}, v{vO2}, {sr(SWS,4)}, s{sO} offen{stf}")
        a("s_mov_b32 exec_hi, -1")
        a(f"buffer_store_dwordx4 {vr(D,4)}, v{vO}, {sr(SWS,4)}, s{sO} offen{stf}")

    def kreads(tile, k1=vK1, k2=vK2):
        o = tile * K2_TILE
        return [f"ds_read_b128 {vr(KF1,4)}, v{k1} offset:{o}",
                f"ds_read_b64 {vr(KF2,2)}, v{k2} offset:{o}"]

    def vread(tile, j):
        return f"ds_read_b128 {vr(VF+4*j,4)}, v{vV} offset:{tile * K2_TILE + 672*j}"

    def qk(sb, c):
        return [f"v_mfma_f32_32x32x16_bf16 {vr(sb,16)}, {vr(KF1,4)}, {vr(Q1,4)}, {c}",
                f"v_mfma_f32_32x32x8_bf16 {vr(sb,16)}, {vr(KF2,2)}, {vr(Q2,2)}, {vr(sb,16)}"]

    stamp(a, 3)
    for l in kreads(0):
        a(l)
    a(f"""
    s_mov_b32 exec_lo, 0
    v_mov_b32 v{Q2}, 0
    v_mov_b32 v{Q2+1}, 0
    s_mov_b32 exec_lo, -1
    s_waitcnt lgkmcnt(0)
    """)
    for l in qk(SB[0], "0"):
        a(l)
    for l in kreads(0, vK10, vK20):
        a(l)
    dma_chunk(1)
    dma_chunk(2)
    maxtree([SB[0] + r for r in range(16)], vt)
    for r in range(16):
        a(f"v_sub_f32 v{NEGM+r}, 0, v{vt}")
    a.label("K2_HAVE_M")
    a(f"""
    v_mov_b32 v{vK1}, v{vK10}
    v_mov_b32 v{vK2}, v{vK20}
    s_waitcnt lgkmcnt(0)
    """)
    for l in qk(SB[0], vr(NEGM, 16)):
        a(l)
    for l in kreads(1):
        a(l)
    a(vread(0, 0))
    a("s_nop 9")
    stamp(a, 4)
    a.raw(".p2align 3")
    a.label("K2_LOOP")
    prio = {0: 3, 3: 2, 5: 1, 7: 0} if 'k2_noprio' not in EXP else {}
    for i in range(8):
        cur, nxt = SB[i % 2], SB[1 - i % 2]
        e = [f"v_exp_f32 v{cur+r}, v{cur+r}" for r in range(16)]
        c = [f"v_cvt_pk_bf16_f32 v{P+j}, v{cur+2*j}, v{cur+2*j+1}" for j in range(8)]
        q = qk(nxt, vr(NEGM, 16))
        pv = [f"v_mfma_f32_32x32x16_bf16 {vr(O,16)}, {vr(VF+4*j,4)}, {vr(P+4*j,4)}, {vr(O,16)}" for j in range(2)]
        kr = kreads((i + 2) % 8)
        if i == 6:
            if STAMP and not FUSE:
                a("s_memtime s[86:87]")
                a("s_waitcnt lgkmcnt(0)")
                for cc in range(4):
                    a(f"s_cmp_eq_u32 s{sC}, {cc}")
                    a(f"s_cselect_b32 s{78+cc}, s86, s{78+cc}")
            a("s_waitcnt vmcnt(0)")
            a("s_barrier")
            if STAMP and not FUSE:
                a("s_memtime s[86:87]")
                a("s_waitcnt lgkmcnt(0)")
                for cc in range(4):
                    a(f"s_cmp_eq_u32 s{sC}, {cc}")
                    a(f"s_cselect_b32 s{82+cc}, s86, s{82+cc}")
            a(f"s_sub_u32 s3, s{sC}, 1")
            a(f"s_cmp_lt_u32 s3, 2")
            a("s_cbranch_scc1 K2_SIDE")
            a.label("K2_SIDE_RET")
            a(f"v_add_u32 v{vK1}, s{sSlot}, v{vK10}")
            a(f"v_add_u32 v{vK2}, s{sSlot}, v{vK20}")
        if (i - 6) % 8 in prio:
            a(f"s_setprio {prio[(i - 6) % 8]}")
        a(e[0]); a(e[1])
        a(pv[1])
        a(vread(i, 1))
        a(e[2]); a(e[3]); a(c[0]); a(e[4]); a(c[1])
        a("s_waitcnt lgkmcnt(1)")
        a(q[0])
        a(e[5]); a(e[6]); a(e[7]); a(c[2]); a(e[8]); a(c[3])
        a(q[1])
        for l in kr:
            a(l)
        a(e[9]); a(e[10]); a(e[11]); a(c[4]); a(e[12]); a(c[5])
        if i == 7:
            a(f"v_add_u32 v{vV}, s{sSlot}, v{vLV}")
        a(pv[0])
        a(vread((i + 1) % 8, 0))
        a(e[13]); a(e[14]); a(e[15]); a(c[6])
        a("s_waitcnt lgkmcnt(3)")
        a(c[7])
        if i == 7:
            a(f"s_add_u32 s{sSlot}, s{sSlot}, {K2_SLOT}")
            a(f"s_cmp_ge_u32 s{sSlot}, {K2_SLOT*K2_R}")
            a(f"s_cselect_b32 s{sSlot}, 0, s{sSlot}")
    a(f"""
    s_add_u32 s{sC}, s{sC}, 1
    s_cmp_lt_u32 s{sC}, 4
    s_cbranch_scc1 K2_LOOP
    v_mfma_f32_32x32x16_bf16 {vr(O,16)}, {vr(VF+4,4)}, {vr(P+4,4)}, {vr(O,16)}
    v_mov_b32 v{vt+3}, {K2_FLAG}
    v_mov_b32 v{vt+4}, 1
    s_mov_b32 s3, {f32(2.0**100)}
    s_add_u32 s4, s{sM0}, {K2_SLOT}
    v_add_u32 v{vK1}, s4, v{vK10}
    v_add_u32 v{vK2}, s4, v{vK20}
    v_add_u32 v{vV}, s4, v{vLV}
    v_add_u32 v{vt+5}, {K2_MASK}, v{vL16}
    s_waitcnt lgkmcnt(0)
    s_nop 4
    """)
    stamp(a, 5)
    a(f"v_mov_b32 v{vt+2}, v{O+8}")
    a("s_mov_b32 exec_hi, 0")
    a(f"v_mul_f32 v{vt+2}, 0, v{O+8}")
    for r in range(9, 12):
        a(f"v_fma_f32 v{vt+2}, v{O+r}, 0, v{vt+2}")
    a("s_mov_b32 exec_hi, -1")
    for r in range(8):
        a(f"v_fma_f32 v{vt+2}, v{O+r}, 0, v{vt+2}")
    a(f"""
    v_cmp_nlt_f32 s[{sTmp}:{sTmp+1}], v{vt+2}, s3
    s_nop 3
    s_cmp_eq_u64 s[{sTmp}:{sTmp+1}], 0
    s_cbranch_scc1 K2_NOFLAG
    ds_write_b32 v{vt+3}, v{vt+4}
    """)
    a.label("K2_NOFLAG")
    a(f"""
    s_cmp_eq_u32 s{sKh}, 0
    s_cbranch_scc0 K2_JOIN
    ds_write_b128 v{vX}, {vr(O,4)}
    ds_write_b128 v{vX}, {vr(O+4,4)} offset:1024
    ds_write_b128 v{vX}, {vr(O+8,4)} offset:2048
    """)
    a.label("K2_JOIN")
    a(f"""
    s_setprio 0
    s_waitcnt lgkmcnt(0)
    s_barrier
    ds_read_b32 v{vt+4}, v{vt+3}
    ds_read_b128 {vr(NEGM,4)}, v{vX}
    ds_read_b128 {vr(NEGM+4,4)}, v{vX} offset:1024
    ds_read_b128 {vr(NEGM+8,4)}, v{vX} offset:2048
    s_waitcnt lgkmcnt(0)
    v_readfirstlane_b32 s3, v{vt+4}
    s_nop 3
    s_cmp_gt_u32 s3, s{sRedo}
    s_cbranch_scc1 K2_FALLBACK
    s_cmp_eq_u32 s{sKh}, 0
    s_cbranch_scc1 K2_ABR
    s_setprio 1
    """)
    stamp(a, 11)
    for r in range(12):
        a(f"v_add_f32 v{O+r}, v{O+r}, v{NEGM+r}")
    a("s_branch K2_STORE")
    a.label("K2_ABR")
    AC = SB
    for g in range(4):
        a(f"ds_read_b128 {vr(AC[0]+4*g,4)}, v{vt+5} offset:{1024*g}")
    for g in range(2):
        a(f"ds_read_b128 {vr(AC[1]+8+4*g,4)}, v{vt+5} offset:{4096+1024*g}")
    for l in kreads(1):
        a(l)
    a(f"""
    ds_read_b128 {vr(AKP1,4)}, v{vK1}
    ds_read_b64 {vr(AKP2,2)}, v{vK2}
    {vread(1, 0)}
    {vread(1, 1)}
    ds_read_b128 {vr(P,4)}, v{vV} offset:672
    s_mov_b32 exec_lo, 0
    v_mov_b32 v{AQ2}, 0
    v_mov_b32 v{AQ2+1}, 0
    s_mov_b32 exec_lo, -1
    s_and_b32 s3, s{sT}, 31
    s_cmp_lg_u32 s3, 0
    s_waitcnt lgkmcnt(3)
    s_cbranch_scc1 K2_HASPREV
    """)
    for r in range(8, 16):
        a(f"v_mov_b32 v{AC[1]+r}, {f32(-1e30)}")
    a("s_nop 1")
    a.label("K2_HASPREV")
    a(f"""
    v_mfma_f32_32x32x16_bf16 {vr(AC[0],16)}, {vr(KF1,4)}, {vr(AQ1,4)}, {vr(AC[0],16)}
    v_mfma_f32_32x32x8_bf16 {vr(AC[0],16)}, {vr(KF2,2)}, {vr(AQ2,2)}, {vr(AC[0],16)}
    v_mfma_f32_32x32x16_bf16 {vr(AC[1],16)}, {vr(AKP1,4)}, {vr(AQ1,4)}, {vr(AC[1],16)}
    v_mfma_f32_32x32x8_bf16 {vr(AC[1],16)}, {vr(AKP2,2)}, {vr(AQ2,2)}, {vr(AC[1],16)}
    s_nop 11
    """)
    aregs = [AC[0] + r for r in range(16)] + [AC[1] + r for r in range(8, 16)]
    maxtree(aregs, vt)
    for r in aregs:
        a(f"v_sub_f32 v{r}, v{r}, v{vt}")
    for r in aregs:
        a(f"v_exp_f32 v{r}, v{r}")
    a("s_waitcnt lgkmcnt(0)")
    AP = NEGM
    for i in range(12):
        a(f"v_cvt_pk_bf16_f32 v{AP+i}, v{aregs[2*i]}, v{aregs[2*i+1]}")
    a(f"""
    s_nop 1
    v_mfma_f32_32x32x16_bf16 {vr(O,16)}, {vr(VF,4)}, {vr(AP,4)}, 0
    v_mfma_f32_32x32x16_bf16 {vr(O,16)}, {vr(VF+4,4)}, {vr(AP+4,4)}, {vr(O,16)}
    v_mfma_f32_32x32x16_bf16 {vr(O,16)}, {vr(P,4)}, {vr(AP+8,4)}, {vr(O,16)}
    s_nop 11
    """)
    stamp(a, 11)
    a.label("K2_STORE")
    store_o(AQ1)
    if FUSE:
        gen_pphase(a, locals())
    if STAMP: a("s_waitcnt vmcnt(0)")
    stamp(a, 6); stamp_rt(a, 7)
    stamp_flush(a, 1, SWS, sWave, 16, 8)
    a.label("K2_END")
    a("s_endpgm")

    a.label("K2_SIDE")
    a("s_cmp_eq_u32 s3, 0")
    a("s_cbranch_scc0 K2_SIDE2")
    dma_chunk(3)
    a("s_branch K2_SIDE_RET")
    a.label("K2_SIDE2")
    dma_tile(1, f"s_mov_b32 s{sTmp}, s{sAD}")
    a(f"""
    buffer_load_dwordx4 {vr(AQ1,4)}, v{vGK1}, {sr(SWS,4)}, s{sTA} offen
    buffer_load_dwordx2 {vr(AQ2,2)}, v{vGK2}, {sr(SWS,4)}, s{sTA} offen
    v_lshlrev_b32 v{vt}, 7, v1
    s_mov_b32 exec_lo, 0x1ffffff
    s_mov_b32 exec_hi, 0
    buffer_load_dword v{vt+1}, v{vt}, {sr(SWS,4)}, s{sTouch} offen
    s_mov_b64 exec, -1
    """)
    if not FUSE:
        a(f"s_cmp_eq_u32 s{sWave}, 15")
        a("s_cbranch_scc0 K2_SIDE_RET")
        code_touch(a, vt + 2, vt, sTmp, "proj_kernel", "CODE_END")
    a("s_branch K2_SIDE_RET")
    a.label("K2_FALLBACK")
    a(f"""
    s_mov_b32 s{sRedo}, 1
    s_mov_b32 s3, {4*SEGB}
    v_mov_b32 v{vt+2}, 0xff800000
    s_barrier
    """)
    ones_rows()
    for c in range(3):
        dma_chunk(c)
    a.label("K2_MAXLOOP")
    a(f"""
    buffer_load_dwordx4 {vr(KF1,4)}, v{vGK1}, {sr(SWS,4)}, s3 offen
    buffer_load_dwordx2 {vr(KF2,2)}, v{vGK2}, {sr(SWS,4)}, s3 offen
    s_waitcnt vmcnt(0)
    """)
    for l in qk(SB[0], "0"):
        a(l)
    a("s_nop 15")
    for r in range(0, 16, 2):
        a(f"v_max3_f32 v{vt+2}, v{vt+2}, v{SB[0]+r}, v{SB[0]+r+1}")
    a(f"""
    s_add_u32 s3, s3, {TB}
    s_cmp_lt_u32 s3, {5*SEGB}
    s_cbranch_scc1 K2_MAXLOOP
    v_mov_b32 v{vt+3}, v{vt+2}
    s_nop 1
    v_permlane32_swap_b32 v{vt+2}, v{vt+3}
    s_nop 1
    v_max_f32 v{vt+2}, v{vt+2}, v{vt+3}
    """)
    for r in range(16):
        a(f"v_sub_f32 v{NEGM+r}, 0, v{vt+2}")
    zero_state()
    a("s_waitcnt lgkmcnt(0)")
    a("s_barrier")
    for l in kreads(0, vK10, vK20):
        a(l)
    a("s_branch K2_HAVE_M")
    if FUSE:
        a.label("CODE_END")
    return kernel_desc(name, NV, NV, 68)


K3_DIST = int(os.environ.get('K3D', '2'))
K3_NS = K3_DIST + 2
K3_LDS = K3_NS * 20480


def gen_k3(a):
    name = "proj_kernel"
    kernel_head(a, name)
    SWS, SOUT = 20, 24
    sWave, sMb, sNb = 16, 17, 18
    sO, sW, sRot, sM0, sOc, sWc = 28, 29, 31, 32, 33, 34
    vL16, vWj, vG, vOut, vOut2 = 2, 3, 7, 8, 9
    ACC = [16, 36]
    OF = 56
    WF = 56 + 16 * (K3_DIST + 1)
    NV = WF + 40
    DIST = K3_DIST
    NO = DIST + 1
    a("s_cmp_ge_u32 s2, 256")
    a("s_cbranch_scc1 K3_END")
    stamp(a, 0); stamp_rt(a, 1)
    a("""
    s_load_dwordx2 s[4:5], s[0:1], 56
    s_load_dwordx2 s[6:7], s[0:1], 72
    v_lshrrev_b32 v9, 6, v0
    v_and_b32 v1, 63, v0
    s_and_b32 s14, s2, 7
    v_readfirstlane_b32 s16, v9
    s_lshr_b32 s15, s2, 3
    s_lshl_b32 s17, s14, 2
    s_and_b32 s3, s15, 3
    s_add_u32 s17, s17, s3
    s_lshr_b32 s18, s15, 2
    v_lshlrev_b32 v2, 4, v1
    """)
    a(f"""
    s_and_b32 s19, s{sNb}, 1
    s_lshr_b32 s{sRot}, s{sNb}, 1
    s_lshl_b32 s3, s{sMb}, 2
    s_add_u32 s3, s3, s{sWave}
    s_mul_i32 s{sO}, s3, 20480
    s_add_u32 s{sO}, s{sO}, {O_OFF}
    s_mul_i32 s{sW}, s{sNb}, {5*20480}
    s_lshl_b32 s14, s{sWave}, 10
    s_add_u32 s{sW}, s{sW}, s14
    s_add_u32 s{sW}, s{sW}, {WOF_OFF}
    s_mov_b32 s{sM0}, s14
    s_mul_i32 s14, s19, {O_BR}
    s_mul_i32 s15, s19, {WOF_BR}
    s_sub_u32 s36, {O_BR}, s14
    s_sub_u32 s37, {WOF_BR}, s15
    s_add_u32 s36, s36, s{sO}
    s_add_u32 s37, s37, s{sW}
    s_add_u32 s{sO}, s{sO}, s14
    s_add_u32 s{sW}, s{sW}, s15
    s_waitcnt lgkmcnt(0)
    """)
    srd(a, SWS, 6, WS_BYTES)
    srd(a, SOUT, 4, 2621440)

    def load_items(g):
        pre = []
        if g == 5:
            pre += [f"s_mov_b32 s{sO}, s36", f"s_mov_b32 s{sW}, s37"]
        pre += [f"s_lshl_b32 s14, s{sRot}, 12",
                f"s_add_u32 s{sOc}, s{sO}, s14",
                f"s_add_u32 s{sWc}, s{sW}, s14",
                f"s_add_u32 s{sRot}, s{sRot}, 1",
                f"s_cmp_ge_u32 s{sRot}, 5",
                f"s_cselect_b32 s{sRot}, 0, s{sRot}"]
        items = []
        for k in range(4):
            items.append([f"buffer_load_dwordx4 {vr(OF + (g % NO) * 16 + 4 * k, 4)}, v{vL16}, {sr(SWS,4)}, s{sOc} offen offset:{1024*k}"])
        for nt in range(5):
            items.append([f"s_add_u32 m0, s{sM0}, {(g % K3_NS) * 20480 + nt * 4096}",
                          f"s_add_u32 s{sWc}, s{sWc}, 20480" if nt else "s_nop 0",
                          f"buffer_load_dwordx4 v{vL16}, {sr(SWS,4)}, s{sWc} offen lds"])
        items[0] = pre + items[0]
        return items

    def loads(g):
        for it in load_items(g):
            for l in it:
                a(l)

    for g in range(DIST):
        loads(g)
    a(f"""
    v_and_b32 v9, 15, v1
    v_lshlrev_b32 v10, 2, v9
    s_lshl_b32 s14, s3, 6
    s_add_u32 s35, s14, {G_OFF}
    v_lshrrev_b32 v11, 4, v1
    v_mul_u32_u24 v12, 2560, v9
    v_and_b32 v13, 1, v11
    v_lshlrev_b32 v13, 5, v13
    v_lshrrev_b32 v14, 1, v11
    v_lshlrev_b32 v14, 4, v14
    v_add3_u32 v{vOut}, v12, v13, v14
    v_lshl_add_u32 v{vOut2}, v11, 3, v12
    v_add_u32 v{vWj}, 40960, v{vL16}
    v_add_u32 v{vWj+1}, 81920, v{vL16}
    s_and_b32 s14, s3, 63
    s_mul_i32 s14, s14, {16*2560}
    s_lshr_b32 s15, s3, 6
    s_mul_i32 s15, s15, 1280
    s_add_u32 s30, s14, s15
    s_mul_i32 s15, s{sNb}, 160
    s_add_u32 s30, s30, s15
    """)

    def wread(g, k):
        slot = g % K3_NS
        base, off = ((vL16, vWj, vWj + 1)[slot // 2], (slot % 2) * 20480)
        return [f"ds_read_b128 {vr(WF + (k % 2) * 20 + 4 * nt, 4)}, v{base} offset:{off + nt*4096 + k*1024}" for nt in range(5)]

    for g in range(10):
        if g == 0: stamp(a, 2)
        n_after = 9 * (min(10, g + DIST) - 1 - g) + (1 if g == 9 else 0)
        a(f"s_waitcnt vmcnt({n_after})")
        a("s_barrier")
        if g == 0: stamp(a, 3)
        for l in wread(g, 0):
            a(l)
        items = load_items(g + DIST) if g + DIST < 10 else []
        if g == 8:
            items = [[f"buffer_load_dword v{vG}, v10, {sr(SWS,4)}, s35 offen"]]
        if items:
            for l in items.pop(0):
                a(l)
        acc = ACC[g // 5]
        for k in range(4):
            if k < 3:
                for l in wread(g, k + 1):
                    a(l)
                a("s_waitcnt lgkmcnt(5)")
            else:
                a("s_waitcnt lgkmcnt(0)")
            for nt in range(5):
                d = vr(acc + 4 * nt, 4)
                c = "0" if (g % 5 == 0 and k == 0) else d
                a(f"v_mfma_f32_16x16x32_bf16 {d}, {vr(WF + (k % 2) * 20 + 4 * nt, 4)}, {vr(OF + (g % NO) * 16 + 4 * k, 4)}, {c}")
                if nt in (1, 3) and items:
                    for l in items.pop(0):
                        a(l)
        assert not items
    stamp(a, 4)
    a(f"""
    s_waitcnt vmcnt(0)
    v_sub_f32 v10, 1.0, v{vG}
    s_cmp_eq_u32 s19, 0
    s_cselect_b64 s[38:39], -1, 0
    v_cndmask_b32 v11, v10, v{vG}, s[38:39]
    v_cndmask_b32 v10, v{vG}, v10, s[38:39]
    """)
    A0, A1 = ACC
    for i in range(20):
        a(f"v_mul_f32 v{A0+i}, v{A0+i}, v11")
    for i in range(20):
        a(f"v_fma_f32 v{A0+i}, v{A1+i}, v10, v{A0+i}")
    for pr in range(2):
        b0 = A0 + pr * 8
        b1 = b0 + 4
        a(f"v_cvt_pk_bf16_f32 v{b0}, v{b0}, v{b0+1}")
        a(f"v_cvt_pk_bf16_f32 v{b0+1}, v{b0+2}, v{b0+3}")
        a(f"v_cvt_pk_bf16_f32 v{b0+2}, v{b1}, v{b1+1}")
        a(f"v_cvt_pk_bf16_f32 v{b0+3}, v{b1+2}, v{b1+3}")
        a("s_nop 1")
        a(f"v_permlane16_swap_b32 v{b0}, v{b0+2}")
        a(f"v_permlane16_swap_b32 v{b0+1}, v{b0+3}")
        a("s_nop 0")
        a(f"buffer_store_dwordx4 {vr(b0,4)}, v{vOut}, {sr(SOUT,4)}, s30 offen offset:{pr*64}")
    b0 = A0 + 16
    a(f"v_cvt_pk_bf16_f32 v{b0}, v{b0}, v{b0+1}")
    a(f"v_cvt_pk_bf16_f32 v{b0+1}, v{b0+2}, v{b0+3}")
    a(f"buffer_store_dwordx2 {vr(b0,2)}, v{vOut2}, {sr(SOUT,4)}, s30 offen offset:128")
    stamp(a, 5)
    if STAMP: a("s_waitcnt vmcnt(0)")
    stamp(a, 6); stamp_rt(a, 7)
    stamp_flush(a, 2, SWS, sWave, 8, 10)
    a.label("K3_END")
    a("s_endpgm")
    a.label("CODE_END")
    return kernel_desc(name, NV, NV, 44)


def main():
    global STAMP
    if "--stamp" in sys.argv:
        STAMP = True
        sys.argv.remove("--stamp")
    ref = open(OUT + ".ref").read().split("\n")
    head = [l for l in ref if l.startswith(";") and "@launch" not in l]
    a = Asm()
    for l in head:
        a.raw(l)
    a.raw(f"; @launch kernel=qkv_kernel grid=(256,1,1) block=(512,1,1) lds={K1_LDS}")
    a.raw(f"; @launch kernel=attn_kernel grid=(256,1,1) block=(1024,1,1) lds={K2_LDS}")
    if not FUSE:
        a.raw(f"; @launch kernel=proj_kernel grid=(256,1,1) block=(256,1,1) lds={K3_LDS}")
    a.raw('.amdgcn_target "amdgcn-amd-amdhsa--gfx950"')
    a.raw(".text")
    d = [gen_k1(a), gen_k2(a)] + ([] if FUSE else [gen_k3(a)])
    a.raw('.section .rodata,"a"')
    for x in d:
        a.raw(".p2align 6")
        a.raw(x.rstrip("\n"))
    out = sys.argv[1] if len(sys.argv) > 1 else OUT
    open(out, "w").write(a.text())
    print("wrote", out, len(a.L), "lines")


if __name__ == "__main__":
    main()
```

```python
import sys, math, struct, os
EXP = os.environ.get('EXP', '').split(',')

NAME = "gated_mix__sliding_local_dilated__mha_block__prompt"
OUT = f"cdna_kernels/{NAME}.s"

SEGB = 2621440
TB = 40960
O_OFF = 16 << 20
O_BR = 2621440
WOF_OFF = 24 << 20
WOF_BR = 819200
G_OFF = 28 << 20
WS_BYTES = 32 << 20
QSCALE = (20 ** -0.5) * math.log2(math.e)


def f32(x):
    return "0x%08x" % struct.unpack("<I", struct.pack("<f", x))[0]


def pi5(i):
    return (i & ~12) | ((i & 4) << 1) | ((i & 8) >> 1)


class Asm:
    def __init__(self):
        self.L = []

    def __call__(self, s):
        for l in s.strip("\n").split("\n"):
            self.L.append("    " + l.strip())

    def label(self, l):
        self.L.append(l + ":")

    def raw(self, s):
        self.L.append(s)

    def text(self):
        return "\n".join(self.L) + "\n"


def vr(b, n=1, p="v"):
    return f"{p}{b}" if n == 1 else f"{p}[{b}:{b+n-1}]"


def ar(b, n=1):
    return vr(b, n, "a")


def sr(b, n=1):
    return vr(b, n, "s")


STAMP = False
K2STF = ' sc1' if 'k2_sc1' in EXP else ''
DBG_OFF = 30 << 20


def stamp(a, idx, sbase=70):
    if not STAMP:
        return
    a(f"s_memtime s[{sbase+16}:{sbase+17}]")
    a("s_waitcnt lgkmcnt(0)")
    a(f"s_mov_b32 s{sbase+idx}, s{sbase+16}")


def stamp_rt(a, idx, sbase=70):
    if not STAMP:
        return
    a(f"s_memrealtime s[{sbase+16}:{sbase+17}]")
    a("s_waitcnt lgkmcnt(0)")
    a(f"s_mov_b32 s{sbase+idx}, s{sbase+16}")


def stamp_flush(a, kidx, srd_ws, swave, n, vtmp, sbase=70, shift=4):
    if not STAMP:
        return
    a("s_mov_b64 exec, -1")
    a(f"s_lshl_b32 s{sbase+16}, s2, 4")
    a(f"s_add_u32 s{sbase+16}, s{sbase+16}, s{swave}")
    a(f"s_lshl_b32 s{sbase+16}, s{sbase+16}, 6")
    a(f"s_add_u32 s{sbase+16}, s{sbase+16}, {DBG_OFF + kidx*(1<<18)}")
    a(f"v_mov_b32 v{vtmp+1}, 0")
    for i in range(n):
        a(f"v_mov_b32 v{vtmp}, s{sbase+i}")
        a(f"buffer_store_dword v{vtmp}, v{vtmp+1}, s[{srd_ws}:{srd_ws+3}], s{sbase+16} offen offset:{4*i}")


def kernel_head(a, name):
    a.raw(f".globl {name}")
    a.raw(".p2align 8")
    a.raw(f".type {name},@function")
    a.label(name)


def kernel_desc(name, vgpr_total, accum, sgpr):
    return f""".amdhsa_kernel {name}
  .amdhsa_next_free_vgpr {vgpr_total}
  .amdhsa_next_free_sgpr {96 if STAMP else sgpr}
  .amdhsa_accum_offset {accum}
  .amdhsa_group_segment_fixed_size 0
  .amdhsa_kernarg_size 80
  .amdhsa_user_sgpr_count 2
  .amdhsa_user_sgpr_kernarg_segment_ptr 1
  .amdhsa_system_sgpr_workgroup_id_x 1
.end_amdhsa_kernel
"""


def srd(a, d, base, nbytes):
    a(f"s_mov_b32 s{d}, s{base}")
    a(f"s_mov_b32 s{d+1}, s{base+1}")
    a(f"s_mov_b32 s{d+2}, {nbytes}")
    a(f"s_mov_b32 s{d+3}, 0x00020000")


K1_WST = 16896
K1_NSW = 6 if 'k1_nsw6' in EXP else 5
K1_NSX = 3
K1_XB = K1_WST * K1_NSW
K1_LDS = K1_XB + K1_NSX * 16384


STF = '' if 'k1_plain' in EXP else (' nt' if 'k1_nt' in EXP else (' sc1 nt' if 'k1_sc1nt' in EXP else (' sc0 sc1 nt' if 'k1_all' in EXP else ' sc1')))


def gen_k1(a):
    name = "qkv_kernel"
    kernel_head(a, name)
    SX, SW, SR = 20, 24, 28
    sWave = 19
    a("s_cmp_ge_u32 s2, 256")
    a("s_cbranch_scc1 K1_END")
    stamp(a, 0); stamp_rt(a, 1)
    a("""
    s_load_dwordx4 s[4:7], s[0:1], 0
    s_load_dwordx2 s[8:9], s[0:1], 32
    s_load_dwordx2 s[10:11], s[0:1], 72
    """)
    if 'noct' not in EXP:
        code_touch(a, 31, 30, 52, "K1_CT0", "attn_kernel", lane="v0")
        a.label("K1_CT0")
    a("""
    v_lshrrev_b32 v2, 6, v0
    v_and_b32 v1, 63, v0
    s_and_b32 s12, s2, 7
    v_readfirstlane_b32 s19, v2
    s_cmp_ge_u32 s2, 240
    s_cbranch_scc1 K1_SIDE
    s_lshr_b32 s13, s2, 3
    s_mul_i32 s12, s12, 30
    s_add_u32 s12, s12, s13
    s_cmp_ge_u32 s12, 120
    s_cselect_b32 s14, 1, 0
    s_cselect_b32 s13, 120, 0
    s_sub_u32 s12, s12, s13
    s_and_b32 s15, s12, 7
    s_lshr_b32 s16, s12, 3
    v_and_b32 v3, 15, v1
    v_lshrrev_b32 v4, 4, v1
    """)
    a(f"""
    s_cmp_ge_u32 s{sWave}, 4
    s_cselect_b32 s12, 1, 0
    s_lshr_b32 s12, s{sWave}, s12
    s_and_b32 s12, s12, 1
    s_lshl_b32 s17, s16, 1
    s_add_u32 s17, s17, s12
    s_cmp_ge_u32 s17, 15
    s_cselect_b32 s18, 1, 0
    s_cselect_b32 s13, 15, 0
    s_sub_u32 s17, s17, s13
    s_movk_i32 s60, 3840
    s_mov_b32 s62, 2621440
    s_movk_i32 s63, 128
    s_cmp_ge_u32 s{sWave}, 4
    s_cbranch_scc0 K1_COMPUTE
    """)
    vW, vXg = 8, 12
    sWo, sXo, sWl, sXl, sWc, sXc, sOrd = 32, 33, 34, 35, 36, 37, 38
    K1_D = int(os.environ.get('K1D', '2'))
    ORD = []
    for g in range(4):
        o = list(range(10))
        for b in range(10):
            if b % 4 == g and K1_D:
                p = o.index(b)
                o.pop(p)
                o.insert(max(0, p - K1_D), b)
        ORD.append(sum(b << (4 * i) for i, b in enumerate(o)))
    a(f"""
    v_lshrrev_b32 v5, 1, v4
    v_and_b32 v6, 1, v4
    v_lshlrev_b32 v5, 4, v5
    v_lshl_add_u32 v5, v6, 2, v5
    v_mul_u32_u24 v5, 3840, v5
    v_lshl_add_u32 v{vW}, v3, 4, v5
    v_add_u32 v{vW+1}, 2784, v{vW}
    v_add_u32 v{vW+2}, {2*2784}, v{vW}
    v_add_u32 v{vW+3}, {3*2784}, v{vW}
    v_lshrrev_b32 v5, 3, v1
    v_and_b32 v6, 7, v1
    v_xor_b32 v6, v6, v5
    v_mul_u32_u24 v5, 2560, v5
    v_lshl_add_u32 v{vXg}, v6, 4, v5
    v_add_u32 v{vXg+1}, 19456, v{vXg}
    v_add_u32 v{vXg+2}, {2*19456}, v{vXg}
    v_add_u32 v{vXg+3}, {3*19456}, v{vXg}
    s_and_b32 s13, s{sWave}, 1
    s_mul_i32 s{sWo}, s13, {8*3840}
    s_lshl_b32 s3, s17, 8
    s_add_u32 s{sWo}, s{sWo}, s3
    s_and_b32 s3, s{sWave}, 3
    s_mul_i32 s{sWl}, s3, {4*1056}
    s_lshl_b32 s{sXl}, s3, 12
    s_add_u32 s{sXl}, s{sXl}, {K1_XB}
    s_lshl_b32 s13, s15, 2
    s_add_u32 s13, s13, s3
    s_mul_i32 s{sXo}, s13, {32*2560}
    s_mul_i32 s13, s14, 1280
    s_add_u32 s{sXo}, s{sXo}, s13
    s_add_u32 s3, s15, s16
    s_and_b32 s3, s3, 3
    s_mov_b32 s{sOrd}, {ORD[0] & 0xffffffff}
    s_mov_b32 s{sOrd+1}, {ORD[0] >> 32}
    s_cmp_eq_u32 s3, 1
    s_cselect_b32 s{sOrd}, {ORD[1] & 0xffffffff}, s{sOrd}
    s_cselect_b32 s{sOrd+1}, {ORD[1] >> 32}, s{sOrd+1}
    s_cmp_eq_u32 s3, 2
    s_cselect_b32 s{sOrd}, {ORD[2] & 0xffffffff}, s{sOrd}
    s_cselect_b32 s{sOrd+1}, {ORD[2] >> 32}, s{sOrd+1}
    s_cmp_eq_u32 s3, 3
    s_cselect_b32 s{sOrd}, {ORD[3] & 0xffffffff}, s{sOrd}
    s_cselect_b32 s{sOrd+1}, {ORD[3] >> 32}, s{sOrd+1}
    s_cmp_eq_u32 s18, 0
    s_waitcnt lgkmcnt(0)
    s_cselect_b64 s[6:7], s[6:7], s[8:9]
    """)
    srd(a, SX, 4, 2621440)
    srd(a, SW, 6, 2457600)
    if STAMP:
        srd(a, SR, 10, WS_BYTES)
    hist = []

    def blk(j, dst):
        r = sOrd + (j // 8)
        a(f"s_bfe_u32 s{dst}, s{r}, {(4 << 16) | (4 * (j % 8))}")

    def wl(k):
        a(f"s_add_u32 m0, s{sWl}, {(k % K1_NSW) * K1_WST}")
        if k % 2 == 0:
            blk(k // 2, sWc)
            a(f"s_mul_i32 s{sWc}, s{sWc}, {2*122880}")
            a(f"s_add_u32 s{sWc}, s{sWc}, s{sWo}")
        else:
            a(f"s_add_u32 s{sWc}, s{sWc}, 122880")
        for i in range(4):
            a(f"buffer_load_dwordx4 v{vW+i}, {sr(SW,4)}, s{sWc} offen offset:{1056*i} lds")
        hist.append(("W", k))

    def xl(j):
        a(f"s_add_u32 m0, s{sXl}, {(j % K1_NSX) * 16384}")
        blk(j, sXc)
        a(f"s_lshl_b32 s{sXc}, s{sXc}, 7")
        a(f"s_add_u32 s{sXc}, s{sXc}, s{sXo}")
        for q in range(4):
            a(f"buffer_load_dwordx4 v{vXg+q}, {sr(SX,4)}, s{sXc} offen offset:{1024*q} lds")
        hist.append(("X", j))

    def need(ks):
        req = [("W", ks), ("X", ks // 2)]
        last = max(hist.index(r) for r in req)
        a(f"s_waitcnt vmcnt({4 * (len(hist) - 1 - last)})")
        a("s_barrier")

    seq = []
    for j in range(10):
        seq += [("X", j), ("W", 2 * j), ("W", 2 * j + 1)]
    pos = [0]

    def free_at(it):
        t, i = it
        if t == "W":
            return i - K1_NSW
        return 2 * (i - K1_NSX) + 1

    def issue(step, nmax):
        n = 0
        while pos[0] < len(seq) and n < nmax and free_at(seq[pos[0]]) <= step:
            t, i = seq[pos[0]]
            (wl if t == "W" else xl)(i)
            pos[0] += 1
            n += 1
    RAMP = [int(c) for c in os.environ.get('K1RAMP', '32222')]
    issue(-2, RAMP[0])
    stamp(a, 2)
    need(0)
    stamp(a, 3)
    issue(-1, RAMP[1])
    for ks in range(19):
        need(ks + 1)
        if ks % 2 == 1 and ks <= 15: stamp(a, 8 + ks // 2)
        issue(ks, RAMP[ks + 2] if ks + 2 < len(RAMP) else RAMP[-1])
    assert pos[0] == len(seq)
    a("s_barrier")
    stamp(a, 4); stamp(a, 5); stamp(a, 6); stamp_rt(a, 7)
    stamp_flush(a, 0, SR, sWave, 16, 2)
    a("s_endpgm")

    a.label("K1_COMPUTE")
    ACC = 32
    WFR = [0, 32]
    XFR = [64, 80]
    vTr0, vTr, vXr0, vXr, vSt = 8, 9, 10, 12, 14
    sRd, sXr, sIt, sSt, sSeg = 32, 33, 34, 36, 35
    TOUCH = 'k1_touch' in EXP
    ST, sTo, sTs = 44, 42, 43
    TD = 5
    if TOUCH:
        a(f"""
        v_lshrrev_b32 v5, 1, v1
        v_and_b32 v6, 1, v1
        v_lshlrev_b32 v6, 7, v6
        v_mad_u32_u24 v16, v5, s60, v6
        v_mul_u32_u24 v17, 2560, v1
        s_mul_i32 s{sTo}, s15, {8*3840}
        s_lshl_b32 s3, s17, 8
        s_add_u32 s{sTo}, s{sTo}, s3
        s_add_u32 s{sTo}, s{sTo}, {3*64*3840}
        s_lshl_b32 s3, s15, 3
        s_and_b32 s13, s16, 3
        s_lshl_b32 s13, s13, 1
        s_add_u32 s3, s3, s13
        s_and_b32 s13, s{sWave}, 1
        s_add_u32 s3, s3, s13
        s_mul_i32 s3, s3, {16*2560}
        s_mul_i32 s13, s14, 1280
        s_add_u32 s3, s3, s13
        s_add_u32 s3, s3, {3*128}
        s_cmp_eq_u32 s18, 0
        s_waitcnt lgkmcnt(0)
        s_cselect_b64 s[6:7], s[6:7], s[8:9]
        s_cmp_lt_u32 s{sWave}, 2
        s_cselect_b64 s[{ST}:{ST+1}], s[6:7], s[4:5]
        s_cselect_b32 s{ST+2}, 2457600, s62
        s_mov_b32 s{ST+3}, 0x00020000
        s_cselect_b32 s{sTo}, s{sTo}, s3
        s_cselect_b32 s{sTs}, {64*3840}, s63
        s_cselect_b64 s[50:51], -1, 0
        v_cndmask_b32 v16, v17, v16, s[50:51]
        v_cmp_gt_u32 s[50:51], 16, v1
        v_mov_b32 v17, 0x40000000
        s_nop 0
        v_cndmask_b32 v16, v17, v16, s[50:51]
        """)
        for b in range(3, TD):
            a(f"buffer_load_dword v18, v16, {sr(ST,4)}, s{sTo} offen")
            a(f"s_add_u32 s{sTo}, s{sTo}, s{sTs}")
    a(f"""
    v_and_b32 v5, 1, v4
    v_lshrrev_b32 v6, 2, v3
    v_lshl_add_u32 v5, v5, 2, v6
    v_mul_u32_u24 v5, 1056, v5
    v_lshrrev_b32 v6, 1, v4
    v_lshlrev_b32 v6, 9, v6
    v_and_b32 v7, 3, v3
    v_lshlrev_b32 v7, 3, v7
    v_add3_u32 v5, v5, v6, v7
    s_mul_i32 s3, s12, 8448
    v_add_u32 v{vTr0}, s3, v5
    v_and_b32 v5, 3, v3
    v_bfe_u32 v6, v3, 2, 1
    v_lshl_or_b32 v5, v6, 3, v5
    v_bfe_u32 v6, v3, 3, 1
    v_lshl_or_b32 v5, v6, 2, v5
    v_and_b32 v6, 7, v5
    v_xor_b32 v6, v6, v4
    v_lshlrev_b32 v6, 4, v6
    v_lshl_add_u32 v5, v5, 7, v6
    s_lshr_b32 s13, s{sWave}, 1
    s_lshl_b32 s3, s13, 13
    s_add_u32 s3, s3, {K1_XB}
    v_add_u32 v{vXr0}, s3, v5
    v_xor_b32 v{vXr0+1}, 64, v{vXr0}
    v_mov_b32 v{vXr}, v{vXr0}
    v_mov_b32 v{vXr+1}, v{vXr0+1}
    v_mov_b32 v{vTr}, v{vTr0}
    s_mov_b32 s{sRd}, {K1_WST}
    s_mov_b32 s{sXr}, 16384
    s_mov_b32 s{sIt}, 0
    s_mul_i32 s{sSeg}, s17, 52
    s_lshr_b32 s{sSeg}, s{sSeg}, 8
    s_mul_i32 s3, s{sSeg}, 5
    s_sub_u32 s17, s17, s3
    s_mul_i32 s3, s18, 3
    s_add_u32 s3, s3, s{sSeg}
    s_mul_i32 s{sSt}, s3, {SEGB}
    s_lshl_b32 s3, s14, 4
    s_lshl_b32 s16, s15, 1
    s_add_u32 s3, s3, s16
    s_add_u32 s3, s3, s13
    s_mul_i32 s3, s3, {2*TB}
    s_add_u32 s{sSt}, s{sSt}, s3
    s_waitcnt lgkmcnt(0)
    """)
    srd(a, SR, 10, WS_BYTES)
    for i in range(128):
        a(f"v_mov_b32 v{ACC+i}, 0")

    def reads(fset, kk):
        L = [f"ds_read_b128 {ar(XFR[fset]+4*mt,4)}, v{vXr+kk} offset:{2048*mt}" for mt in range(4)]
        for t in range(8):
            for s in range(2):
                L.append(f"ds_read_b64_tr_b16 {ar(WFR[fset]+4*t+2*s,2)}, v{vTr} offset:{s*256 + t*32}")
        return L

    stamp(a, 2)
    a("s_barrier")
    stamp(a, 3)
    for l in reads(0, 0):
        a(l)
    a(f"s_cmp_eq_u32 s{sSeg}, 2")
    a("s_cbranch_scc1 K1_LOOP_N")
    for ori in ("T", "N"):
        a.raw(".p2align 3")
        a.label(f"K1_LOOP_{ori}")
        for s in range(2):
            fs = s
            rd = reads(1 - fs, 1 - s)
            mf = []
            for t in range(8):
                for mt in range(4):
                    acc = vr(ACC + (t * 4 + mt) * 4, 4)
                    w = ar(WFR[fs] + 4 * t, 4)
                    x = ar(XFR[fs] + 4 * mt, 4)
                    if ori == "T":
                        mf.append(f"v_mfma_f32_16x16x32_bf16 {acc}, {w}, {x}, {acc}")
                    else:
                        mf.append(f"v_mfma_f32_16x16x32_bf16 {acc}, {x}, {w}, {acc}")
            a(f"v_add_u32 v{vTr}, s{sRd}, v{vTr0}")
            rest = [f"s_add_u32 s{sRd}, s{sRd}, {K1_WST}",
                    f"s_cmp_ge_u32 s{sRd}, {K1_XB}",
                    f"s_cselect_b32 s{sRd}, 0, s{sRd}"]
            if s == 0 and TOUCH:
                rest += [f"s_cmp_lt_u32 s{sIt}, {10-TD}",
                         f"s_cselect_b32 s{sTo}, s{sTo}, 0x40000000",
                         f"buffer_load_dword v18, v16, {sr(ST,4)}, s{sTo} offen",
                         f"s_add_u32 s{sTo}, s{sTo}, s{sTs}"]
            if s == 1:
                a(f"v_add_u32 v{vXr}, s{sXr}, v{vXr0}")
                rest += [f"v_add_u32 v{vXr+1}, s{sXr}, v{vXr0+1}",
                         f"s_add_u32 s{sXr}, s{sXr}, 16384",
                         f"s_cmp_ge_u32 s{sXr}, {K1_NSX*16384}",
                         f"s_cselect_b32 s{sXr}, 0, s{sXr}",
                         f"s_add_u32 s{sIt}, s{sIt}, 1",
                         f"s_cmp_lt_u32 s{sIt}, 10"]
            a("s_waitcnt lgkmcnt(0)")
            a("s_barrier")
            fill = rd + rest
            for i in range(32):
                a(mf[i])
                if i < len(fill):
                    a(fill[i])
        a(f"s_cbranch_scc1 K1_LOOP_{ori}")
        stamp(a, 4)
        if ori == "T":
            a(f"""
            s_lshl_b32 s3, s17, 13
            s_add_u32 s{sSt}, s{sSt}, s3
            s_add_u32 s{sSt+1}, s{sSt}, 4096
            s_add_u32 s{sSt+2}, s{sSt}, {TB}
            s_add_u32 s{sSt+3}, s{sSt+1}, {TB}
            s_cmp_eq_u32 s{sSeg}, 0
            s_cselect_b32 s40, {f32(QSCALE)}, 1.0
            s_mov_b32 s41, s40
            v_lshlrev_b32 v{vSt}, 4, v1
            s_nop 3
            """)
        else:
            a(f"""
            s_lshl_b32 s3, s17, 11
            s_add_u32 s{sSt}, s{sSt}, s3
            s_add_u32 s{sSt+2}, s{sSt}, {TB}
            v_mul_u32_u24 v5, 10240, v4
            v_lshl_add_u32 v{vSt}, v3, 4, v5
            s_nop 7
            """)
        for t in range(8):
            for mp in range(2):
                b0 = ACC + (t * 4 + 2 * mp) * 4
                b1 = b0 + 4
                if ori == "T":
                    for i in range(4):
                        a(f"v_pk_mul_f32 {vr(b0+2*i,2)}, {vr(b0+2*i,2)}, s[40:41]")
                a(f"v_cvt_pk_bf16_f32 v{b0}, v{b0}, v{b0+1}")
                a(f"v_cvt_pk_bf16_f32 v{b0+1}, v{b0+2}, v{b0+3}")
                a(f"v_cvt_pk_bf16_f32 v{b0+2}, v{b1}, v{b1+1}")
                a(f"v_cvt_pk_bf16_f32 v{b0+3}, v{b1+2}, v{b1+3}")
                a("s_nop 1")
                sw = "v_permlane16_swap_b32" if ori == "T" else "v_permlane32_swap_b32"
                a(f"{sw} v{b0}, v{b0+2}")
                a(f"{sw} v{b0+1}, v{b0+3}")
                a("s_nop 0")
                if ori == "T":
                    a(f"buffer_store_dwordx4 {vr(b0,4)}, v{vSt}, {sr(SR,4)}, s{sSt + 2*mp + t//4} offen offset:{(t%4)*1024}{STF}")
                else:
                    a(f"buffer_store_dwordx4 {vr(b0,4)}, v{vSt}, {sr(SR,4)}, s{sSt + 2*mp} offen offset:{t*256}{STF}")
        stamp(a, 5)
        if STAMP: a("s_waitcnt vmcnt(0)")
        stamp(a, 6); stamp_rt(a, 7)
        stamp_flush(a, 0, SR, sWave, 8, 2)
        a("s_endpgm")

    a.label("K1_SIDE")
    SGW, SWO = 32, 36
    a(f"""
    s_load_dwordx2 s[46:47], s[0:1], 16
    s_load_dwordx4 s[12:15], s[0:1], 40
    s_sub_u32 s16, s2, 240
    s_lshl_b32 s16, s16, 3
    s_add_u32 s16, s16, s{sWave}
    v_lshlrev_b32 v2, 2, v1
    v_lshlrev_b32 v5, 4, v1
    v_lshrrev_b32 v3, 3, v1
    v_and_b32 v4, 7, v1
    v_mul_u32_u24 v3, 1280, v3
    v_lshl_add_u32 v3, v4, 4, v3
    v_lshrrev_b32 v4, 4, v1
    v_bfe_u32 v6, v1, 2, 2
    v_lshl_add_u32 v4, v4, 3, v6
    v_and_b32 v6, 3, v1
    v_lshlrev_b32 v6, 3, v6
    v_lshl_add_u32 v6, v4, 7, v6
    s_lshl_b32 s40, s{sWave}, 14
    v_add_u32 v6, s40, v6
    v_mov_b32 v4, 0
    s_waitcnt lgkmcnt(0)
    """)
    srd(a, SX, 4, 2621440)
    srd(a, SR, 10, WS_BYTES)
    srd(a, SGW, 14, 1280)
    a(f"s_mov_b32 s{SWO+2}, 819200")
    a(f"s_mov_b32 s{SWO+3}, 0x00020000")
    for i in range(4):
        a(f"""
        s_add_u32 s41, s16, {128*i}
        s_cmp_ge_u32 s41, 200
        s_cselect_b32 s{SWO}, s12, s46
        s_cselect_b32 s{SWO+1}, s13, s47
        s_cselect_b32 s3, 200, 0
        s_cselect_b32 s{42+i}, {WOF_BR}, 0
        s_add_u32 s{42+i}, s{42+i}, {WOF_OFF}
        s_sub_u32 s3, s41, s3
        s_mul_i32 s17, s3, 6554
        s_lshr_b32 s17, s17, 16
        s_mul_i32 s18, s17, 10
        s_sub_u32 s18, s3, s18
        s_lshl_b32 s3, s17, 10
        s_add_u32 s{42+i}, s{42+i}, s3
        s_mul_i32 s3, s18, {4*20480}
        s_add_u32 s{42+i}, s{42+i}, s3
        s_mul_i32 s17, s17, {32*1280}
        s_lshl_b32 s18, s18, 7
        s_add_u32 s17, s17, s18
        s_cmp_ge_u32 s41, 400
        s_cselect_b32 s{42+i}, 0x7f000000, s{42+i}
        s_cselect_b32 s17, 0x7f000000, s17
        """)
        for q in range(4):
            a(f"s_add_u32 m0, s40, {4096*i + 1024*q}")
            a("s_nop 0")
            a(f"buffer_load_dwordx4 v3, {sr(SWO,4)}, s17 offen lds")
            a(f"s_add_u32 s17, s17, {8*1280}")
    GW, GX = 8, 16
    for i in range(5):
        a(f"buffer_load_dword v{GW+i}, v2, {sr(SGW,4)}, 0 offen offset:{256*i}")
    a(f"""
    s_and_b32 s3, s16, 63
    s_mul_i32 s17, s3, {16*2560}
    s_lshr_b32 s3, s16, 6
    s_mul_i32 s3, s3, 1280
    s_add_u32 s17, s17, s3
    s_lshl_b32 s18, s16, 6
    s_add_u32 s18, s18, {G_OFF}
    """)
    for half in range(2):
        for r in range(8):
            for i in range(5):
                a(f"buffer_load_dword v{GX+5*r+i}, v2, {sr(SX,4)}, s17 offen offset:{256*i}")
            a("s_add_u32 s17, s17, 2560")
        if half == 0:
            a("s_waitcnt vmcnt(45)")
            for i in range(4):
                for nt in range(4):
                    b = 72 + (4 * i + nt) * 4
                    a(f"ds_read_b64_tr_b16 {vr(b,2)}, v6 offset:{4096*i + 32*nt}")
                    a(f"ds_read_b64_tr_b16 {vr(b+2,2)}, v6 offset:{4096*i + 32*nt + 512}")
                a("s_waitcnt lgkmcnt(0)")
            a("s_waitcnt vmcnt(0)")
            for i in range(4):
                for nt in range(4):
                    b = 72 + (4 * i + nt) * 4
                    a(f"buffer_store_dwordx4 {vr(b,4)}, v5, {sr(SR,4)}, s{42+i} offen")
                    a(f"s_add_u32 s{42+i}, s{42+i}, 20480")
        else:
            a("s_waitcnt vmcnt(0)")
        for r in range(8):
            a(f"v_dot2_f32_bf16 v{60+r}, v{GX+5*r}, v{GW}, 0")
        for i in range(1, 5):
            for r in range(8):
                a(f"v_dot2_f32_bf16 v{60+r}, v{GX+5*r+i}, v{GW+i}, v{60+r}")
        a("s_nop 3")
        for sh in ("row_shr:1 row_mask:0xf bank_mask:0xf bound_ctrl:0", "row_shr:2 row_mask:0xf bank_mask:0xf bound_ctrl:0",
                   "row_shr:4 row_mask:0xf bank_mask:0xf bound_ctrl:0", "row_shr:8 row_mask:0xf bank_mask:0xf bound_ctrl:0",
                   "row_bcast:15 row_mask:0xa bank_mask:0xf", "row_bcast:31 row_mask:0xc bank_mask:0xf"):
            for r in range(8):
                a(f"v_add_f32_dpp v{60+r}, v{60+r}, v{60+r} {sh}")
        for r in range(8):
            a(f"v_mul_f32 v{60+r}, {f32(-math.log2(math.e))}, v{60+r}")
        for r in range(8):
            a(f"v_exp_f32 v{60+r}, v{60+r}")
        for r in range(8):
            a(f"v_add_f32 v{60+r}, 1.0, v{60+r}")
        for r in range(8):
            a(f"v_rcp_f32 v{60+r}, v{60+r}")
        a("s_mov_b32 exec_lo, 0")
        a("s_mov_b32 exec_hi, 0x80000000")
        a(f"buffer_store_dwordx4 v[60:63], v4, {sr(SR,4)}, s18 offen offset:{32*half}")
        a(f"buffer_store_dwordx4 v[64:67], v4, {sr(SR,4)}, s18 offen offset:{32*half+16}")
        a("s_mov_b64 exec, -1")
        a("s_nop 1")
    if 'noct' not in EXP:
        code_touch(a, 31, 30, 52, "attn_kernel", "CODE_END", lane="v0")
    if STAMP:
        a("s_waitcnt vmcnt(0)")
        for i in range(2, 7):
            stamp(a, i)
        stamp_rt(a, 7)
        stamp_flush(a, 0, SR, sWave, 8, 2)
    a.label("K1_END")
    a("s_endpgm")
    return kernel_desc(name, 256, 160, 64)


K2_TILE = 2880
K2_SLOT = 16 * K2_TILE
K2_R = 3
FUSE = 'nofuse' not in EXP
K2_LDS = 163840
K2_MASK = K2_LDS - 6 * 1024
K2_FLAG = K2_MASK - 256
K2_XCH = 3 * 40960


def code_touch(a, vdst, vaddr, stmp, first, last, lane="v1"):
    lab = f"CT_{len(a.L)}"
    a(f"s_getpc_b64 s[{stmp}:{stmp+1}]")
    a.label(lab)
    a(f"s_add_u32 s{stmp}, s{stmp}, {first}-{lab}")
    a(f"s_addc_u32 s{stmp+1}, s{stmp+1}, 0")
    a(f"v_lshlrev_b32 v{vaddr}, 7, {lane}")
    a(f"v_min_u32 v{vaddr}, {last}-{first}-4, v{vaddr}")
    a(f"global_load_dword v{vdst}, v{vaddr}, s[{stmp}:{stmp+1}]")


def gen_pphase(a, L):
    SWS, sWave, sKh, O, SB, P, vL16, sTmp = L["SWS"], L["sWave"], L["sKh"], L["O"], L["SB"], L["P"], L["vL16"], L["sTmp"]
    SOUT, SDBG = 52, 56
    sNb, sMt, sWb, sRow, sOb, sKs, sWq, sLq, sOut = 60, 61, 62, 63, 64, 65, 66, 67, 34
    ACC, OF, WF = 16, 36, 76
    vLn, vW, vG, vOut, vOut2, vR = 2, 3, 4, 5, 6, 7

    def wrow(extra=0):
        a(f"""
        s_add_u32 s3, s{sRow}, {extra}
        s_lshr_b32 s4, s3, 4
        s_mul_i32 s4, s4, {WOF_BR}
        s_bfe_u32 s5, s3, {(1 << 16) | 3}
        s_mul_i32 s5, s5, 10
        s_and_b32 s6, s3, 7
        s_add_u32 s5, s5, s6
        s_lshl_b32 s5, s5, 10
        s_add_u32 s4, s4, s5
        s_add_u32 s4, s4, s{sWb}
        s_mul_i32 s5, s3, 5120
        """)
        for nt in range(5):
            a(f"s_add_u32 m0, s5, {1024*nt}")
            a(f"s_add_u32 s4, s4, 20480" if nt else "s_nop 0")
            a(f"buffer_load_dwordx4 v{vL16}, {sr(SWS,4)}, s4 offen lds")

    if 'p_late' in EXP:
        a(f"""
        s_lshr_b32 s{sNb}, s15, 2
        s_mul_i32 s{sWb}, s{sNb}, {5*20480}
        s_add_u32 s{sWb}, s{sWb}, {WOF_OFF}
        s_lshl_b32 s{sRow}, s{sWave}, 1
        s_waitcnt vmcnt(0)
        """)
        stamp(a, 12)
        srd(a, SDBG, 50, 256)
        a(f"""
        v_mov_b32 v8, 0
        v_mov_b32 v9, 1
        s_lshl_b32 s7, s9, 2
        s_barrier
        s_cmp_eq_u32 s{sWave}, 0
        s_cbranch_scc0 K2_NOSIG
        s_mov_b64 exec, 1
        buffer_atomic_add v9, v8, {sr(SDBG,4)}, s7 offen sc1
        s_mov_b64 exec, -1
        """)
        a.label("K2_NOSIG")
        stamp(a, 8)
        wrow(0)
        wrow(1)
    else:
        a(f"""
        s_lshr_b32 s{sNb}, s15, 2
        s_mul_i32 s{sWb}, s{sNb}, {5*20480}
        s_add_u32 s{sWb}, s{sWb}, {WOF_OFF}
        s_cmp_eq_u32 s{sKh}, 0
        s_cbranch_scc1 K2_PA
        s_sub_u32 s{sRow}, s{sWave}, 8
        """)
        wrow(0)
        a(f"""
        s_add_u32 s{sRow}, s{sWave}, 10
        s_cmp_ge_u32 s{sRow}, 24
        s_cselect_b32 s{sRow}, 8, s{sRow}
        """)
        wrow(0)
        a(f"s_add_u32 s{sRow}, s{sWave}, 16")
        a("s_waitcnt vmcnt(10)")
        a("s_branch K2_P1")
        a.label("K2_PA")
        a(f"s_add_u32 s{sRow}, s{sWave}, 9")
        a("s_waitcnt vmcnt(0)")
        a.label("K2_P1")
        srd(a, SDBG, 50, 256)
        a(f"""
        v_mov_b32 v8, 0
        v_mov_b32 v9, 1
        s_lshl_b32 s7, s9, 2
        s_barrier
        s_cmp_eq_u32 s{sWave}, 0
        s_cbranch_scc0 K2_NOSIG
        s_mov_b64 exec, 1
        buffer_atomic_add v9, v8, {sr(SDBG,4)}, s7 offen sc1
        s_mov_b64 exec, -1
        """)
        wrow(8)
        a.label("K2_NOSIG")
        stamp(a, 8)
        wrow(0)
    srd(a, SOUT, 48, 2621440)
    a(f"""
    v_mov_b32 v{vLn}, v{vL16}
    s_and_b32 s14, s2, 7
    s_lshl_b32 s{sMt}, s14, 2
    s_and_b32 s3, s15, 3
    s_add_u32 s{sMt}, s{sMt}, s3
    s_lshl_b32 s{sMt}, s{sMt}, 2
    s_and_b32 s3, s{sWave}, 3
    s_add_u32 s{sMt}, s{sMt}, s3
    s_lshr_b32 s4, s{sWave}, 2
    s_mul_i32 s{sLq}, s4, 40960
    s_and_b32 s5, s4, 1
    s_mul_i32 s5, s5, 10240
    s_mul_i32 s{sOb}, s{sKh}, {O_BR}
    s_add_u32 s{sOb}, s{sOb}, s5
    s_mul_i32 s6, s{sMt}, 20480
    s_add_u32 s{sOb}, s{sOb}, s6
    s_add_u32 s{sOb}, s{sOb}, {O_OFF}
    s_mul_i32 s{sWq}, s{sKh}, {WOF_BR}
    s_add_u32 s{sWq}, s{sWq}, s5
    s_add_u32 s{sWq}, s{sWq}, s{sWb}
    v_and_b32 v9, 15, v1
    v_lshlrev_b32 v10, 2, v9
    s_lshl_b32 s6, s{sMt}, 6
    s_add_u32 s6, s6, {G_OFF}
    buffer_load_dword v{vG}, v10, {sr(SWS,4)}, s6 offen
    v_lshrrev_b32 v11, 4, v1
    v_mul_u32_u24 v12, 2560, v9
    v_and_b32 v13, 1, v11
    v_lshlrev_b32 v13, 5, v13
    v_lshrrev_b32 v14, 1, v11
    v_lshlrev_b32 v14, 4, v14
    v_add3_u32 v{vOut}, v12, v13, v14
    v_lshl_add_u32 v{vOut2}, v11, 3, v12
    s_and_b32 s6, s{sMt}, 63
    s_mul_i32 s6, s6, {16*2560}
    s_lshr_b32 s7, s{sMt}, 6
    s_mul_i32 s7, s7, 1280
    s_add_u32 s{sOut}, s6, s7
    s_mul_i32 s7, s{sNb}, 160
    s_add_u32 s{sOut}, s{sOut}, s7
    s_cmp_eq_u32 s{sWave}, 15
    s_cbranch_scc0 K2_P2
    s_lshl_b32 s7, s14, 5
    s_movk_i32 s6, 8192
    """)
    a.label("K2_POLL")
    a(f"""
    buffer_load_dword v9, v8, {sr(SDBG,4)}, s7 offen sc1
    s_waitcnt vmcnt(0)
    v_readfirstlane_b32 s3, v9
    s_sub_u32 s6, s6, 1
    s_cmp_ge_u32 s3, 32
    s_cbranch_scc1 K2_P2
    s_sleep 2
    s_cmp_lg_u32 s6, 0
    s_cbranch_scc1 K2_POLL
    """)
    a.label("K2_P2")
    a("s_waitcnt vmcnt(0)")
    stamp(a, 13)
    a("s_barrier")
    stamp(a, 9)
    hist = []

    def oload(i):
        if i < 8:
            a(f"s_add_u32 s3, s{sNb}, {i}")
            a("s_and_b32 s3, s3, 7")
            a("s_lshl_b32 s3, s3, 10")
            a(f"s_add_u32 s3, s3, s{sOb}")
        else:
            a(f"s_add_u32 s3, s{sOb}, {1024*i}")
        a(f"buffer_load_dwordx4 {vr(OF+4*i,4)}, v{vLn}, {sr(SWS,4)}, s3 offen sc1")
        hist.append(("O", i))

    def slot_addr(i, dst):
        a(f"s_add_u32 s{dst}, s{sNb}, {i % 8}")
        a(f"s_and_b32 s{dst}, s{dst}, 7")
        a(f"s_mul_i32 s{dst}, s{dst}, 5120")
        a(f"s_add_u32 s{dst}, s{dst}, s{sLq}")

    def wreads(i):
        slot_addr(i, sKs)
        a(f"v_add_u32 v{vW}, s{sKs}, v{vLn}")
        for nt in range(5):
            a(f"ds_read_b128 {vr(WF + (i % 2) * 20 + 4 * nt, 4)}, v{vW} offset:{1024*nt}")

    PD = 4
    for i in range(PD):
        oload(i)
    wreads(0)
    for i in range(10):
        if i == 2:
            a("s_barrier")
            for j in range(3):
                a(f"""
                s_and_b32 s3, s{sWave}, 3
                s_mul_i32 s3, s3, 3
                s_add_u32 s3, s3, {j}
                s_cmp_ge_u32 s3, 5
                s_cselect_b32 s4, 1, 0
                s_mul_i32 s5, s4, 5
                s_sub_u32 s5, s3, s5
                s_add_u32 s6, s{sNb}, s4
                s_and_b32 s6, s6, 7
                s_mul_i32 s6, s6, 5120
                s_add_u32 s6, s6, s{sLq}
                s_lshl_b32 s7, s5, 10
                s_add_u32 m0, s6, s7
                s_add_u32 s4, s4, 8
                s_lshl_b32 s4, s4, 10
                s_mul_i32 s5, s5, 20480
                s_add_u32 s4, s4, s5
                s_add_u32 s4, s4, s{sWq}
                s_cmp_ge_u32 s3, 10
                s_cselect_b64 exec, 0, -1
                s_cbranch_scc1 K2_PSKIP{j}
                buffer_load_dwordx4 v{vLn}, {sr(SWS,4)}, s4 offen lds
                """)
                a.label(f"K2_PSKIP{j}")
                a("s_mov_b64 exec, -1")
        if i + 1 == 8:
            a("s_waitcnt vmcnt(2)")
            a("s_waitcnt lgkmcnt(0)")
            a("s_barrier")
        if i + 1 < 10:
            wreads(i + 1)
        n = len(hist) - 1 - hist.index(("O", i))
        a(f"s_waitcnt vmcnt({n}) lgkmcnt({5 if i + 1 < 10 else 0})")
        for nt in range(5):
            d = vr(ACC + 4 * nt, 4)
            a(f"v_mfma_f32_16x16x32_bf16 {d}, {vr(WF + (i % 2) * 20 + 4 * nt, 4)}, {vr(OF+4*i,4)}, {'0' if i == 0 else d}")
        if i + PD < 10:
            oload(i + PD)
    stamp(a, 10)
    a(f"""
    v_sub_f32 v10, 1.0, v{vG}
    s_cmp_eq_u32 s{sKh}, 0
    s_cselect_b64 s[{sTmp}:{sTmp+1}], -1, 0
    s_and_b32 s3, s{sWave}, 3
    s_add_u32 s3, s3, s{sNb}
    s_add_u32 s3, s3, 2
    s_and_b32 s3, s3, 7
    s_mul_i32 s3, s3, 5120
    v_cndmask_b32 v10, v10, v{vG}, s[{sTmp}:{sTmp+1}]
    v_add_u32 v{vR}, s3, v{vLn}
    v_add_u32 v{vW}, s{sLq}, v{vR}
    """)
    for i in range(20):
        a(f"v_mul_f32 v{ACC+i}, v{ACC+i}, v10")
    a(f"s_cmp_lt_u32 s{sWave}, 4")
    a("s_cbranch_scc1 K2_PSUM")
    for nt in range(5):
        a(f"ds_write_b128 v{vW}, {vr(ACC+4*nt,4)} offset:{1024*nt}")
    a("s_waitcnt lgkmcnt(0)")
    a("s_barrier")
    a("s_branch K2_PDONE")
    a.label("K2_PSUM")
    a(f"v_add_u32 v{vW}, 81920, v{vR}")
    a("s_barrier")
    for k in range(3):
        for nt in range(5):
            base, off = (vR, 40960) if k == 0 else (vW, 40960 * (k - 1))
            a(f"ds_read_b128 {vr(OF + 20*k + 4*nt, 4)}, v{base} offset:{off + 1024*nt}")
    for k in range(3):
        a(f"s_waitcnt lgkmcnt({5 * (2 - k)})")
        for i in range(20):
            a(f"v_add_f32 v{ACC+i}, v{ACC+i}, v{OF+20*k+i}")
    for pr in range(2):
        b0 = ACC + pr * 8
        b1 = b0 + 4
        a(f"v_cvt_pk_bf16_f32 v{b0}, v{b0}, v{b0+1}")
        a(f"v_cvt_pk_bf16_f32 v{b0+1}, v{b0+2}, v{b0+3}")
        a(f"v_cvt_pk_bf16_f32 v{b0+2}, v{b1}, v{b1+1}")
        a(f"v_cvt_pk_bf16_f32 v{b0+3}, v{b1+2}, v{b1+3}")
        a("s_nop 1")
        a(f"v_permlane16_swap_b32 v{b0}, v{b0+2}")
        a(f"v_permlane16_swap_b32 v{b0+1}, v{b0+3}")
        a("s_nop 0")
        a(f"buffer_store_dwordx4 {vr(b0,4)}, v{vOut}, {sr(SOUT,4)}, s{sOut} offen offset:{pr*64}")
    b0 = ACC + 16
    a(f"v_cvt_pk_bf16_f32 v{b0}, v{b0}, v{b0+1}")
    a(f"v_cvt_pk_bf16_f32 v{b0+1}, v{b0+2}, v{b0+3}")
    a(f"buffer_store_dwordx2 {vr(b0,2)}, v{vOut2}, {sr(SOUT,4)}, s{sOut} offen offset:128")
    a.label("K2_PDONE")


def gen_k2(a):
    name = "attn_kernel"
    kernel_head(a, name)
    SWS = 20
    sWave, sHead, sT, sKh = 16, 17, 18, 19
    sDma, sM0, sSlot, sC, sRedo = 24, 25, 26, 27, 28
    sTA, sO, sTouch, sAD = 29, 31, 33, 30
    sTmp = 36
    vK10, vK20, vLV, vK1, vK2, vV, vO = 2, 3, 4, 5, 6, 7, 15
    vt = 8
    Q1, Q2 = 16, 20
    KF1, KF2 = 24, 28
    vD = 22
    vD2 = 30
    vGK1, vGK2 = 31, 112
    vL16, vX, vO2 = 113, 114, 115
    VF = 32
    P = 40
    NEGM = 48
    SB = [64, 80]
    O = 96
    AQ1, AQ2 = 116, 120
    AKP1, AKP2 = 124, 122
    NV = 128
    a("s_cmp_ge_u32 s2, 256")
    a("s_cbranch_scc1 K2_END")
    stamp(a, 0); stamp_rt(a, 1)
    a("""
    s_load_dwordx2 s[12:13], s[0:1], 72
    s_load_dwordx4 s[48:51], s[0:1], 56
    v_lshrrev_b32 v8, 6, v0
    v_and_b32 v1, 63, v0
    s_and_b32 s14, s2, 7
    v_readfirstlane_b32 s16, v8
    s_lshr_b32 s15, s2, 3
    s_lshl_b32 s17, s14, 2
    s_lshr_b32 s3, s15, 3
    s_add_u32 s17, s17, s3
    s_and_b32 s9, s15, 7
    s_lshl_b32 s9, s9, 3
    s_and_b32 s3, s16, 7
    s_add_u32 s18, s9, s3
    s_lshr_b32 s19, s16, 3
    """)
    a(f"""
    v_and_b32 v8, 31, v1
    v_lshrrev_b32 v9, 5, v1
    v_lshlrev_b32 v{vL16}, 4, v1
    s_and_b32 s4, s{sHead}, 1
    s_mul_i32 s5, s{sHead}, 5
    s_lshr_b32 s5, s5, 1
    s_lshl_b32 s5, s5, 9
    s_lshl_b32 s6, s4, 9
    s_cmp_eq_u32 s4, 0
    s_cselect_b32 s7, 1024, 8
    v_add_u32 v{vK1}, s6, v{vL16}
    v_lshl_add_u32 v{vK2}, v8, 4, s7
    v_add_u32 v{vGK1}, s5, v{vK1}
    v_add_u32 v{vGK2}, s5, v{vK2}
    s_add_u32 s5, s5, {SEGB}
    v_add_u32 v{vD}, s5, v{vL16}
    s_mul_i32 s6, s{sHead}, 320
    s_add_u32 s7, s6, {2*SEGB - 1024 - 512}
    v_cmp_le_u32 s[{sTmp}:{sTmp+1}], 53, v1
    v_mov_b32 v12, {10240-336}
    v_add_u32 v13, s7, v{vL16}
    v_cndmask_b32 v12, 0, v12, s[{sTmp}:{sTmp+1}]
    v_add_u32 v13, v13, v12
    v_cmp_le_u32 s[{sTmp}:{sTmp+1}], 32, v1
    v_add_u32 v11, 32, v1
    v_mul_u32_u24 v11, 49, v11
    v_cndmask_b32 v{vD+1}, v{vD}, v13, s[{sTmp}:{sTmp+1}]
    v_lshrrev_b32 v11, 10, v11
    v_mul_u32_u24 v11, {10240-336}, v11
    s_add_u32 s7, s6, {2*SEGB - 2048 + 512}
    v_add3_u32 v{vD2}, v11, v{vL16}, s7
    s_mul_i32 s{sTA}, s{sT}, {TB}
    s_add_u32 s8, s{sTA}, {3*SEGB}
    s_mul_i32 s{sDma}, s{sWave}, {TB}
    s_add_u32 s{sDma}, s{sDma}, {3*SEGB}
    s_mul_i32 s{sM0}, s{sWave}, {K2_TILE}
    s_waitcnt lgkmcnt(0)
    """)
    srd(a, SWS, 12, WS_BYTES)

    m1 = ((1 << 64) - 1) & ~(1 << 52)
    m2 = ((1 << 52) - 1) & ~(1 << 9) & ~(1 << 30) & ~(1 << 51)

    def dma_tile(slot, soff):
        a(f"""
        s_add_u32 m0, s{sM0}, {slot * K2_SLOT}
        {soff}
        buffer_load_dwordx4 v{vD}, {sr(SWS,4)}, s{sTmp} offen lds
        s_mov_b32 exec_hi, 0x{m1 >> 32:08x}
        buffer_load_dwordx4 v{vD+1}, {sr(SWS,4)}, s{sTmp} offen offset:1024 lds
        s_mov_b32 exec_lo, 0x{m2 & 0xffffffff:08x}
        s_mov_b32 exec_hi, 0x{m2 >> 32:08x}
        buffer_load_dwordx4 v{vD2}, {sr(SWS,4)}, s{sTmp} offen offset:2048 lds
        s_mov_b64 exec, -1
        """)

    def dma_chunk(c):
        dma_tile(c % K2_R, f"s_add_u32 s{sTmp}, s{sDma}, {c * 16 * TB}")

    def ones_rows():
        a(f"""
        v_mov_b32 v{VF}, 0x3f803f80
        v_mov_b32 v{VF+1}, 0x3f803f80
        v_mov_b32 v{VF+2}, 0x3f803f80
        v_mov_b32 v{VF+3}, 0x3f803f80
        v_bfe_u32 v11, v1, 2, 2
        v_min_u32 v11, 2, v11
        v_mul_u32_u24 v11, {K2_SLOT}, v11
        v_and_b32 v12, 3, v1
        v_mul_u32_u24 v12, 336, v12
        v_add3_u32 v11, v11, v12, s{sM0}
        ds_write_b128 v11, {vr(VF,4)} offset:{1536+320}
        """)

    def zero_state():
        for r in range(16):
            a(f"v_mov_b32 v{O+r}, 0")
        for r in range(4):
            a(f"v_mov_b32 v{P+4+r}, 0")
            a(f"v_mov_b32 v{VF+4+r}, 0")
        a(f"""
        v_mov_b32 v{vV}, v{vLV}
        s_mov_b32 s{sSlot}, {K2_SLOT}
        s_mov_b32 s{sC}, 0
        """)

    dma_chunk(0)
    a(f"buffer_load_dwordx4 {vr(Q1,4)}, v{vGK1}, {sr(SWS,4)}, s8 offen")
    a(f"buffer_load_dwordx2 {vr(Q2,2)}, v{vGK2}, {sr(SWS,4)}, s8 offen")
    a(f"s_mov_b32 s{sRedo}, 0")
    ones_rows()
    a(f"""
    v_mov_b32 v11, {K2_FLAG}
    v_mov_b32 v12, 0
    ds_write_b32 v11, v12
    s_mul_i32 s3, s{sKh}, {8*K2_TILE}
    v_add_u32 v{vK10}, s3, v{vK1}
    v_add_u32 v{vK20}, s3, v{vK2}
    s_and_b32 s4, s{sHead}, 1
    s_lshl_b32 s5, s4, 2
    v_add_u32 v12, s5, v8
    v_subrev_u32 v13, 20, v12
    v_cmp_gt_u32 s[{sTmp}:{sTmp+1}], 20, v12
    v_cmp_gt_u32 s[{sTmp+2}:{sTmp+3}], 20, v8
    v_mul_u32_u24 v11, 336, v9
    v_cndmask_b32 v12, v13, v12, s[{sTmp}:{sTmp+1}]
    v_cndmask_b32 v12, v8, v12, s[{sTmp+2}:{sTmp+3}]
    v_lshl_add_u32 v11, v12, 4, v11
    s_add_u32 s3, s3, 1536
    v_add_u32 v{vLV}, s3, v11
    """)
    a(f"""
    v_and_b32 v10, 3, v8
    v_bfe_u32 v11, v8, 2, 1
    v_lshl_or_b32 v10, v11, 3, v10
    v_bfe_u32 v11, v8, 3, 1
    v_lshl_or_b32 v10, v11, 2, v10
    v_lshrrev_b32 v11, 4, v8
    v_lshl_or_b32 v14, v11, 4, v10
    v_lshlrev_b32 v10, 4, v10
    v_mul_u32_u24 v11, 20480, v11
    s_mul_i32 s3, s{sHead}, 5
    s_add_u32 s3, s3, 1
    s_lshr_b32 s3, s3, 1
    s_lshl_b32 s3, s3, 8
    v_add3_u32 v10, v10, v11, s3
    v_lshl_add_u32 v{vO}, v9, 8, v10
    s_mul_i32 s5, s4, 760
    s_sub_u32 s5, 512, s5
    v_add_u32 v{vO2}, s5, v10
    s_mul_i32 s3, s{sKh}, {O_BR}
    s_add_u32 s{sO}, s{sTA}, {O_OFF}
    s_add_u32 s{sO}, s{sO}, s3
    s_lshl_b32 s{sTouch}, s15, 4
    s_add_u32 s{sTouch}, s{sTouch}, s{sWave}
    s_mul_i32 s{sTouch}, s{sTouch}, 3200
    s_add_u32 s{sTouch}, s{sTouch}, {WOF_OFF}
    s_and_b32 s3, s{sWave}, 7
    s_mul_i32 s3, s3, 3072
    s_add_u32 s3, s3, {K2_XCH}
    v_add_u32 v{vX}, s3, v{vL16}
    s_add_u32 s3, s9, s{sWave}
    s_max_u32 s3, s3, 1
    s_sub_u32 s3, s3, 1
    s_mul_i32 s{sAD}, s3, {TB}
    s_cmp_gt_u32 s{sWave}, 8
    s_cselect_b32 s{sAD}, 0x40000000, s{sAD}
    """)
    a(f"""
    s_and_b32 s3, s{sWave}, 7
    s_min_u32 s3, s3, 5
    s_lshr_b32 s4, s3, 1
    s_lshl_b32 s4, s4, 4
    s_and_b32 s5, s3, 1
    s_lshl_b32 s5, s5, 2
    s_add_u32 s4, s4, s5
    s_cmp_ge_u32 s3, 4
    s_cselect_b32 s5, 48, 0
    s_sub_u32 s4, s4, s5
    v_lshlrev_b32 v11, 3, v9
    v_sub_u32 v11, v14, v11
    v_subrev_u32 v11, s4, v11
    v_mov_b32 v12, {f32(-1e30)}
    s_lshl_b32 s3, s3, 10
    v_add_u32 v13, s3, v{vL16}
    """)
    for i in range(4):
        a(f"v_subrev_u32 v10, {i}, v11")
        a(f"v_cmp_gt_u32 s[{sTmp+2*i}:{sTmp+2*i+1}], 8, v10")
    a("s_nop 0")
    for i in range(4):
        a(f"v_cndmask_b32 v{P+i}, v12, 0, s[{sTmp+2*i}:{sTmp+2*i+1}]")
    a(f"ds_write_b128 v13, {vr(P,4)} offset:{K2_MASK - 65536*(K2_MASK//65536)}" if K2_MASK < 65536 else
      f"v_add_u32 v13, {K2_MASK}, v13\nds_write_b128 v13, {vr(P,4)}")
    zero_state()
    a("s_waitcnt vmcnt(0) lgkmcnt(0)")
    stamp(a, 2)
    a("s_barrier")

    def maxtree(regs, dst):
        a(f"v_max3_f32 v{dst}, v{regs[0]}, v{regs[1]}, v{regs[2]}")
        i = 3
        while i + 1 < len(regs):
            a(f"v_max3_f32 v{dst}, v{dst}, v{regs[i]}, v{regs[i+1]}")
            i += 2
        if i < len(regs):
            a(f"v_max_f32 v{dst}, v{dst}, v{regs[i]}")
        a(f"v_mov_b32 v{dst+1}, v{dst}")
        a("s_nop 1")
        a(f"v_permlane32_swap_b32 v{dst}, v{dst+1}")
        a("s_nop 1")
        a(f"v_max_f32 v{dst}, v{dst}, v{dst+1}")

    def store_o(D):
        a(f"""
        v_mov_b32 v{vt}, v{O+8}
        v_mov_b32 v{vt+1}, v{O+8}
        s_nop 1
        v_permlane32_swap_b32 v{vt}, v{vt+1}
        s_nop 1
        v_rcp_f32 v{vt}, v{vt+1}
        s_nop 0
        """)
        for r in range(12):
            a(f"v_mul_f32 v{O+r}, v{O+r}, v{vt}")
        for i in range(6):
            a(f"v_cvt_pk_bf16_f32 v{D+i}, v{O+2*i}, v{O+2*i+1}")
        stf = " sc1" if FUSE else K2STF
        a(f"v_permlane32_swap_b32 v{D}, v{D+2}")
        a(f"v_permlane32_swap_b32 v{D+1}, v{D+3}")
        a("s_mov_b32 exec_hi, 0")
        a(f"buffer_store_dwordx2 {vr(D+4,2)}, v{vO2}, {sr(SWS,4)}, s{sO} offen{stf}")
        a("s_mov_b32 exec_hi, -1")
        a(f"buffer_store_dwordx4 {vr(D,4)}, v{vO}, {sr(SWS,4)}, s{sO} offen{stf}")

    def kreads(tile, k1=vK1, k2=vK2):
        o = tile * K2_TILE
        return [f"ds_read_b128 {vr(KF1,4)}, v{k1} offset:{o}",
                f"ds_read_b64 {vr(KF2,2)}, v{k2} offset:{o}"]

    def vread(tile, j):
        return f"ds_read_b128 {vr(VF+4*j,4)}, v{vV} offset:{tile * K2_TILE + 672*j}"

    def qk(sb, c):
        return [f"v_mfma_f32_32x32x16_bf16 {vr(sb,16)}, {vr(KF1,4)}, {vr(Q1,4)}, {c}",
                f"v_mfma_f32_32x32x8_bf16 {vr(sb,16)}, {vr(KF2,2)}, {vr(Q2,2)}, {vr(sb,16)}"]

    stamp(a, 3)
    for l in kreads(0):
        a(l)
    a(f"""
    s_mov_b32 exec_lo, 0
    v_mov_b32 v{Q2}, 0
    v_mov_b32 v{Q2+1}, 0
    s_mov_b32 exec_lo, -1
    s_waitcnt lgkmcnt(0)
    """)
    for l in qk(SB[0], "0"):
        a(l)
    for l in kreads(0, vK10, vK20):
        a(l)
    dma_chunk(1)
    dma_chunk(2)
    maxtree([SB[0] + r for r in range(16)], vt)
    for r in range(16):
        a(f"v_sub_f32 v{NEGM+r}, 0, v{vt}")
    a.label("K2_HAVE_M")
    a(f"""
    v_mov_b32 v{vK1}, v{vK10}
    v_mov_b32 v{vK2}, v{vK20}
    s_waitcnt lgkmcnt(0)
    """)
    for l in qk(SB[0], vr(NEGM, 16)):
        a(l)
    for l in kreads(1):
        a(l)
    a(vread(0, 0))
    a("s_nop 9")
    stamp(a, 4)
    a.raw(".p2align 3")
    a.label("K2_LOOP")
    prio = {0: 3, 3: 2, 5: 1, 7: 0} if 'k2_noprio' not in EXP else {}
    for i in range(8):
        cur, nxt = SB[i % 2], SB[1 - i % 2]
        e = [f"v_exp_f32 v{cur+r}, v{cur+r}" for r in range(16)]
        c = [f"v_cvt_pk_bf16_f32 v{P+j}, v{cur+2*j}, v{cur+2*j+1}" for j in range(8)]
        q = qk(nxt, vr(NEGM, 16))
        pv = [f"v_mfma_f32_32x32x16_bf16 {vr(O,16)}, {vr(VF+4*j,4)}, {vr(P+4*j,4)}, {vr(O,16)}" for j in range(2)]
        kr = kreads((i + 2) % 8)
        if i == 6:
            if STAMP and not FUSE:
                a("s_memtime s[86:87]")
                a("s_waitcnt lgkmcnt(0)")
                for cc in range(4):
                    a(f"s_cmp_eq_u32 s{sC}, {cc}")
                    a(f"s_cselect_b32 s{78+cc}, s86, s{78+cc}")
            a("s_waitcnt vmcnt(0)")
            a("s_barrier")
            if STAMP and not FUSE:
                a("s_memtime s[86:87]")
                a("s_waitcnt lgkmcnt(0)")
                for cc in range(4):
                    a(f"s_cmp_eq_u32 s{sC}, {cc}")
                    a(f"s_cselect_b32 s{82+cc}, s86, s{82+cc}")
            a(f"s_sub_u32 s3, s{sC}, 1")
            a(f"s_cmp_lt_u32 s3, 2")
            a("s_cbranch_scc1 K2_SIDE")
            a.label("K2_SIDE_RET")
            a(f"v_add_u32 v{vK1}, s{sSlot}, v{vK10}")
            a(f"v_add_u32 v{vK2}, s{sSlot}, v{vK20}")
        if (i - 6) % 8 in prio:
            a(f"s_setprio {prio[(i - 6) % 8]}")
        a(e[0]); a(e[1])
        a(pv[1])
        a(vread(i, 1))
        a(e[2]); a(e[3]); a(c[0]); a(e[4]); a(c[1])
        a("s_waitcnt lgkmcnt(1)")
        a(q[0])
        a(e[5]); a(e[6]); a(e[7]); a(c[2]); a(e[8]); a(c[3])
        a(q[1])
        for l in kr:
            a(l)
        a(e[9]); a(e[10]); a(e[11]); a(c[4]); a(e[12]); a(c[5])
        if i == 7:
            a(f"v_add_u32 v{vV}, s{sSlot}, v{vLV}")
        a(pv[0])
        a(vread((i + 1) % 8, 0))
        a(e[13]); a(e[14]); a(e[15]); a(c[6])
        a("s_waitcnt lgkmcnt(3)")
        a(c[7])
        if i == 7:
            a(f"s_add_u32 s{sSlot}, s{sSlot}, {K2_SLOT}")
            a(f"s_cmp_ge_u32 s{sSlot}, {K2_SLOT*K2_R}")
            a(f"s_cselect_b32 s{sSlot}, 0, s{sSlot}")
    a(f"""
    s_add_u32 s{sC}, s{sC}, 1
    s_cmp_lt_u32 s{sC}, 4
    s_cbranch_scc1 K2_LOOP
    v_mfma_f32_32x32x16_bf16 {vr(O,16)}, {vr(VF+4,4)}, {vr(P+4,4)}, {vr(O,16)}
    v_mov_b32 v{vt+3}, {K2_FLAG}
    v_mov_b32 v{vt+4}, 1
    s_mov_b32 s3, {f32(2.0**100)}
    s_add_u32 s4, s{sM0}, {K2_SLOT}
    v_add_u32 v{vK1}, s4, v{vK10}
    v_add_u32 v{vK2}, s4, v{vK20}
    v_add_u32 v{vV}, s4, v{vLV}
    v_add_u32 v{vt+5}, {K2_MASK}, v{vL16}
    s_waitcnt lgkmcnt(0)
    s_nop 4
    """)
    stamp(a, 5)
    a(f"v_mov_b32 v{vt+2}, v{O+8}")
    a("s_mov_b32 exec_hi, 0")
    a(f"v_mul_f32 v{vt+2}, 0, v{O+8}")
    for r in range(9, 12):
        a(f"v_fma_f32 v{vt+2}, v{O+r}, 0, v{vt+2}")
    a("s_mov_b32 exec_hi, -1")
    for r in range(8):
        a(f"v_fma_f32 v{vt+2}, v{O+r}, 0, v{vt+2}")
    a(f"""
    v_cmp_nlt_f32 s[{sTmp}:{sTmp+1}], v{vt+2}, s3
    s_nop 3
    s_cmp_eq_u64 s[{sTmp}:{sTmp+1}], 0
    s_cbranch_scc1 K2_NOFLAG
    ds_write_b32 v{vt+3}, v{vt+4}
    """)
    a.label("K2_NOFLAG")
    a(f"""
    s_cmp_eq_u32 s{sKh}, 0
    s_cbranch_scc0 K2_JOIN
    ds_write_b128 v{vX}, {vr(O,4)}
    ds_write_b128 v{vX}, {vr(O+4,4)} offset:1024
    ds_write_b128 v{vX}, {vr(O+8,4)} offset:2048
    """)
    a.label("K2_JOIN")
    a(f"""
    s_setprio 0
    s_waitcnt lgkmcnt(0)
    s_barrier
    ds_read_b32 v{vt+4}, v{vt+3}
    ds_read_b128 {vr(NEGM,4)}, v{vX}
    ds_read_b128 {vr(NEGM+4,4)}, v{vX} offset:1024
    ds_read_b128 {vr(NEGM+8,4)}, v{vX} offset:2048
    s_waitcnt lgkmcnt(0)
    v_readfirstlane_b32 s3, v{vt+4}
    s_nop 3
    s_cmp_gt_u32 s3, s{sRedo}
    s_cbranch_scc1 K2_FALLBACK
    s_cmp_eq_u32 s{sKh}, 0
    s_cbranch_scc1 K2_ABR
    s_setprio 1
    """)
    stamp(a, 11)
    for r in range(12):
        a(f"v_add_f32 v{O+r}, v{O+r}, v{NEGM+r}")
    a("s_branch K2_STORE")
    a.label("K2_ABR")
    AC = SB
    for g in range(4):
        a(f"ds_read_b128 {vr(AC[0]+4*g,4)}, v{vt+5} offset:{1024*g}")
    for g in range(2):
        a(f"ds_read_b128 {vr(AC[1]+8+4*g,4)}, v{vt+5} offset:{4096+1024*g}")
    for l in kreads(1):
        a(l)
    a(f"""
    ds_read_b128 {vr(AKP1,4)}, v{vK1}
    ds_read_b64 {vr(AKP2,2)}, v{vK2}
    {vread(1, 0)}
    {vread(1, 1)}
    ds_read_b128 {vr(P,4)}, v{vV} offset:672
    s_mov_b32 exec_lo, 0
    v_mov_b32 v{AQ2}, 0
    v_mov_b32 v{AQ2+1}, 0
    s_mov_b32 exec_lo, -1
    s_and_b32 s3, s{sT}, 31
    s_cmp_lg_u32 s3, 0
    s_waitcnt lgkmcnt(3)
    s_cbranch_scc1 K2_HASPREV
    """)
    for r in range(8, 16):
        a(f"v_mov_b32 v{AC[1]+r}, {f32(-1e30)}")
    a("s_nop 1")
    a.label("K2_HASPREV")
    a(f"""
    v_mfma_f32_32x32x16_bf16 {vr(AC[0],16)}, {vr(KF1,4)}, {vr(AQ1,4)}, {vr(AC[0],16)}
    v_mfma_f32_32x32x8_bf16 {vr(AC[0],16)}, {vr(KF2,2)}, {vr(AQ2,2)}, {vr(AC[0],16)}
    v_mfma_f32_32x32x16_bf16 {vr(AC[1],16)}, {vr(AKP1,4)}, {vr(AQ1,4)}, {vr(AC[1],16)}
    v_mfma_f32_32x32x8_bf16 {vr(AC[1],16)}, {vr(AKP2,2)}, {vr(AQ2,2)}, {vr(AC[1],16)}
    s_nop 11
    """)
    aregs = [AC[0] + r for r in range(16)] + [AC[1] + r for r in range(8, 16)]
    maxtree(aregs, vt)
    for r in aregs:
        a(f"v_sub_f32 v{r}, v{r}, v{vt}")
    for r in aregs:
        a(f"v_exp_f32 v{r}, v{r}")
    a("s_waitcnt lgkmcnt(0)")
    AP = NEGM
    for i in range(12):
        a(f"v_cvt_pk_bf16_f32 v{AP+i}, v{aregs[2*i]}, v{aregs[2*i+1]}")
    a(f"""
    s_nop 1
    v_mfma_f32_32x32x16_bf16 {vr(O,16)}, {vr(VF,4)}, {vr(AP,4)}, 0
    v_mfma_f32_32x32x16_bf16 {vr(O,16)}, {vr(VF+4,4)}, {vr(AP+4,4)}, {vr(O,16)}
    v_mfma_f32_32x32x16_bf16 {vr(O,16)}, {vr(P,4)}, {vr(AP+8,4)}, {vr(O,16)}
    s_nop 11
    """)
    stamp(a, 11)
    a.label("K2_STORE")
    store_o(AQ1)
    if FUSE:
        gen_pphase(a, locals())
    if STAMP: a("s_waitcnt vmcnt(0)")
    stamp(a, 6); stamp_rt(a, 7)
    stamp_flush(a, 1, SWS, sWave, 16, 8)
    a.label("K2_END")
    a("s_endpgm")

    a.label("K2_SIDE")
    a("s_cmp_eq_u32 s3, 0")
    a("s_cbranch_scc0 K2_SIDE2")
    dma_chunk(3)
    a("s_branch K2_SIDE_RET")
    a.label("K2_SIDE2")
    dma_tile(1, f"s_mov_b32 s{sTmp}, s{sAD}")
    a(f"""
    buffer_load_dwordx4 {vr(AQ1,4)}, v{vGK1}, {sr(SWS,4)}, s{sTA} offen
    buffer_load_dwordx2 {vr(AQ2,2)}, v{vGK2}, {sr(SWS,4)}, s{sTA} offen
    v_lshlrev_b32 v{vt}, 7, v1
    s_mov_b32 exec_lo, 0x1ffffff
    s_mov_b32 exec_hi, 0
    buffer_load_dword v{vt+1}, v{vt}, {sr(SWS,4)}, s{sTouch} offen
    s_mov_b64 exec, -1
    """)
    if not FUSE:
        a(f"s_cmp_eq_u32 s{sWave}, 15")
        a("s_cbranch_scc0 K2_SIDE_RET")
        code_touch(a, vt + 2, vt, sTmp, "proj_kernel", "CODE_END")
    a("s_branch K2_SIDE_RET")
    a.label("K2_FALLBACK")
    a(f"""
    s_mov_b32 s{sRedo}, 1
    s_mov_b32 s3, {4*SEGB}
    v_mov_b32 v{vt+2}, 0xff800000
    s_barrier
    """)
    ones_rows()
    for c in range(3):
        dma_chunk(c)
    a.label("K2_MAXLOOP")
    a(f"""
    buffer_load_dwordx4 {vr(KF1,4)}, v{vGK1}, {sr(SWS,4)}, s3 offen
    buffer_load_dwordx2 {vr(KF2,2)}, v{vGK2}, {sr(SWS,4)}, s3 offen
    s_waitcnt vmcnt(0)
    """)
    for l in qk(SB[0], "0"):
        a(l)
    a("s_nop 15")
    for r in range(0, 16, 2):
        a(f"v_max3_f32 v{vt+2}, v{vt+2}, v{SB[0]+r}, v{SB[0]+r+1}")
    a(f"""
    s_add_u32 s3, s3, {TB}
    s_cmp_lt_u32 s3, {5*SEGB}
    s_cbranch_scc1 K2_MAXLOOP
    v_mov_b32 v{vt+3}, v{vt+2}
    s_nop 1
    v_permlane32_swap_b32 v{vt+2}, v{vt+3}
    s_nop 1
    v_max_f32 v{vt+2}, v{vt+2}, v{vt+3}
    """)
    for r in range(16):
        a(f"v_sub_f32 v{NEGM+r}, 0, v{vt+2}")
    zero_state()
    a("s_waitcnt lgkmcnt(0)")
    a("s_barrier")
    for l in kreads(0, vK10, vK20):
        a(l)
    a("s_branch K2_HAVE_M")
    if FUSE:
        a.label("CODE_END")
    return kernel_desc(name, NV, NV, 68)


K3_DIST = int(os.environ.get('K3D', '2'))
K3_NS = K3_DIST + 2
K3_LDS = K3_NS * 20480


def gen_k3(a):
    name = "proj_kernel"
    kernel_head(a, name)
    SWS, SOUT = 20, 24
    sWave, sMb, sNb = 16, 17, 18
    sO, sW, sRot, sM0, sOc, sWc = 28, 29, 31, 32, 33, 34
    vL16, vWj, vG, vOut, vOut2 = 2, 3, 7, 8, 9
    ACC = [16, 36]
    OF = 56
    WF = 56 + 16 * (K3_DIST + 1)
    NV = WF + 40
    DIST = K3_DIST
    NO = DIST + 1
    a("s_cmp_ge_u32 s2, 256")
    a("s_cbranch_scc1 K3_END")
    stamp(a, 0); stamp_rt(a, 1)
    a("""
    s_load_dwordx2 s[4:5], s[0:1], 56
    s_load_dwordx2 s[6:7], s[0:1], 72
    v_lshrrev_b32 v9, 6, v0
    v_and_b32 v1, 63, v0
    s_and_b32 s14, s2, 7
    v_readfirstlane_b32 s16, v9
    s_lshr_b32 s15, s2, 3
    s_lshl_b32 s17, s14, 2
    s_and_b32 s3, s15, 3
    s_add_u32 s17, s17, s3
    s_lshr_b32 s18, s15, 2
    v_lshlrev_b32 v2, 4, v1
    """)
    a(f"""
    s_and_b32 s19, s{sNb}, 1
    s_lshr_b32 s{sRot}, s{sNb}, 1
    s_lshl_b32 s3, s{sMb}, 2
    s_add_u32 s3, s3, s{sWave}
    s_mul_i32 s{sO}, s3, 20480
    s_add_u32 s{sO}, s{sO}, {O_OFF}
    s_mul_i32 s{sW}, s{sNb}, {5*20480}
    s_lshl_b32 s14, s{sWave}, 10
    s_add_u32 s{sW}, s{sW}, s14
    s_add_u32 s{sW}, s{sW}, {WOF_OFF}
    s_mov_b32 s{sM0}, s14
    s_mul_i32 s14, s19, {O_BR}
    s_mul_i32 s15, s19, {WOF_BR}
    s_sub_u32 s36, {O_BR}, s14
    s_sub_u32 s37, {WOF_BR}, s15
    s_add_u32 s36, s36, s{sO}
    s_add_u32 s37, s37, s{sW}
    s_add_u32 s{sO}, s{sO}, s14
    s_add_u32 s{sW}, s{sW}, s15
    s_waitcnt lgkmcnt(0)
    """)
    srd(a, SWS, 6, WS_BYTES)
    srd(a, SOUT, 4, 2621440)

    def load_items(g):
        pre = []
        if g == 5:
            pre += [f"s_mov_b32 s{sO}, s36", f"s_mov_b32 s{sW}, s37"]
        pre += [f"s_lshl_b32 s14, s{sRot}, 12",
                f"s_add_u32 s{sOc}, s{sO}, s14",
                f"s_add_u32 s{sWc}, s{sW}, s14",
                f"s_add_u32 s{sRot}, s{sRot}, 1",
                f"s_cmp_ge_u32 s{sRot}, 5",
                f"s_cselect_b32 s{sRot}, 0, s{sRot}"]
        items = []
        for k in range(4):
            items.append([f"buffer_load_dwordx4 {vr(OF + (g % NO) * 16 + 4 * k, 4)}, v{vL16}, {sr(SWS,4)}, s{sOc} offen offset:{1024*k}"])
        for nt in range(5):
            items.append([f"s_add_u32 m0, s{sM0}, {(g % K3_NS) * 20480 + nt * 4096}",
                          f"s_add_u32 s{sWc}, s{sWc}, 20480" if nt else "s_nop 0",
                          f"buffer_load_dwordx4 v{vL16}, {sr(SWS,4)}, s{sWc} offen lds"])
        items[0] = pre + items[0]
        return items

    def loads(g):
        for it in load_items(g):
            for l in it:
                a(l)

    for g in range(DIST):
        loads(g)
    a(f"""
    v_and_b32 v9, 15, v1
    v_lshlrev_b32 v10, 2, v9
    s_lshl_b32 s14, s3, 6
    s_add_u32 s35, s14, {G_OFF}
    v_lshrrev_b32 v11, 4, v1
    v_mul_u32_u24 v12, 2560, v9
    v_and_b32 v13, 1, v11
    v_lshlrev_b32 v13, 5, v13
    v_lshrrev_b32 v14, 1, v11
    v_lshlrev_b32 v14, 4, v14
    v_add3_u32 v{vOut}, v12, v13, v14
    v_lshl_add_u32 v{vOut2}, v11, 3, v12
    v_add_u32 v{vWj}, 40960, v{vL16}
    v_add_u32 v{vWj+1}, 81920, v{vL16}
    s_and_b32 s14, s3, 63
    s_mul_i32 s14, s14, {16*2560}
    s_lshr_b32 s15, s3, 6
    s_mul_i32 s15, s15, 1280
    s_add_u32 s30, s14, s15
    s_mul_i32 s15, s{sNb}, 160
    s_add_u32 s30, s30, s15
    """)

    def wread(g, k):
        slot = g % K3_NS
        base, off = ((vL16, vWj, vWj + 1)[slot // 2], (slot % 2) * 20480)
        return [f"ds_read_b128 {vr(WF + (k % 2) * 20 + 4 * nt, 4)}, v{base} offset:{off + nt*4096 + k*1024}" for nt in range(5)]

    for g in range(10):
        if g == 0: stamp(a, 2)
        n_after = 9 * (min(10, g + DIST) - 1 - g) + (1 if g == 9 else 0)
        a(f"s_waitcnt vmcnt({n_after})")
        a("s_barrier")
        if g == 0: stamp(a, 3)
        for l in wread(g, 0):
            a(l)
        items = load_items(g + DIST) if g + DIST < 10 else []
        if g == 8:
            items = [[f"buffer_load_dword v{vG}, v10, {sr(SWS,4)}, s35 offen"]]
        if items:
            for l in items.pop(0):
                a(l)
        acc = ACC[g // 5]
        for k in range(4):
            if k < 3:
                for l in wread(g, k + 1):
                    a(l)
                a("s_waitcnt lgkmcnt(5)")
            else:
                a("s_waitcnt lgkmcnt(0)")
            for nt in range(5):
                d = vr(acc + 4 * nt, 4)
                c = "0" if (g % 5 == 0 and k == 0) else d
                a(f"v_mfma_f32_16x16x32_bf16 {d}, {vr(WF + (k % 2) * 20 + 4 * nt, 4)}, {vr(OF + (g % NO) * 16 + 4 * k, 4)}, {c}")
                if nt in (1, 3) and items:
                    for l in items.pop(0):
                        a(l)
        assert not items
    stamp(a, 4)
    a(f"""
    s_waitcnt vmcnt(0)
    v_sub_f32 v10, 1.0, v{vG}
    s_cmp_eq_u32 s19, 0
    s_cselect_b64 s[38:39], -1, 0
    v_cndmask_b32 v11, v10, v{vG}, s[38:39]
    v_cndmask_b32 v10, v{vG}, v10, s[38:39]
    """)
    A0, A1 = ACC
    for i in range(20):
        a(f"v_mul_f32 v{A0+i}, v{A0+i}, v11")
    for i in range(20):
        a(f"v_fma_f32 v{A0+i}, v{A1+i}, v10, v{A0+i}")
    for pr in range(2):
        b0 = A0 + pr * 8
        b1 = b0 + 4
        a(f"v_cvt_pk_bf16_f32 v{b0}, v{b0}, v{b0+1}")
        a(f"v_cvt_pk_bf16_f32 v{b0+1}, v{b0+2}, v{b0+3}")
        a(f"v_cvt_pk_bf16_f32 v{b0+2}, v{b1}, v{b1+1}")
        a(f"v_cvt_pk_bf16_f32 v{b0+3}, v{b1+2}, v{b1+3}")
        a("s_nop 1")
        a(f"v_permlane16_swap_b32 v{b0}, v{b0+2}")
        a(f"v_permlane16_swap_b32 v{b0+1}, v{b0+3}")
        a("s_nop 0")
        a(f"buffer_store_dwordx4 {vr(b0,4)}, v{vOut}, {sr(SOUT,4)}, s30 offen offset:{pr*64}")
    b0 = A0 + 16
    a(f"v_cvt_pk_bf16_f32 v{b0}, v{b0}, v{b0+1}")
    a(f"v_cvt_pk_bf16_f32 v{b0+1}, v{b0+2}, v{b0+3}")
    a(f"buffer_store_dwordx2 {vr(b0,2)}, v{vOut2}, {sr(SOUT,4)}, s30 offen offset:128")
    stamp(a, 5)
    if STAMP: a("s_waitcnt vmcnt(0)")
    stamp(a, 6); stamp_rt(a, 7)
    stamp_flush(a, 2, SWS, sWave, 8, 10)
    a.label("K3_END")
    a("s_endpgm")
    a.label("CODE_END")
    return kernel_desc(name, NV, NV, 44)


def gen_diag(a):
    name = "diag_kernel"
    kernel_head(a, name)
    a("""
    s_cmp_ge_u32 s2, 1
    s_cbranch_scc1 KD_END
    s_load_dwordx4 s[4:7], s[0:1], 64
    s_waitcnt lgkmcnt(0)
    """)
    srd(a, 8, 6, WS_BYTES)
    srd(a, 12, 4, 256)
    a("v_lshlrev_b32 v1, 10, v0")
    a("v_mov_b32 v2, 0")
    for k, waves, idx in ((0, (0, 3), (3, 4)), (1, (0, 15), (3, 5)), (2, (0, 3), (3, 4))):
        for wi, w in enumerate(waves):
            a(f"s_mov_b32 s16, {DBG_OFF + k*(1<<18) + w*64}")
            a("buffer_load_dwordx4 v[4:7], v1, s[8:11], s16 offen")
            a("buffer_load_dwordx4 v[8:11], v1, s[8:11], s16 offen offset:16")
            a("s_waitcnt vmcnt(0)")
            a("v_not_b32 v12, v5")
            a(f"buffer_atomic_umax v12, v2, s[12:15], 0 offen offset:{k*20}")
            a(f"buffer_atomic_umax v11, v2, s[12:15], 0 offen offset:{k*20+4}")
            if wi == 0:
                a(f"v_sub_u32 v12, v{4+idx[0]}, v4")
                a(f"buffer_atomic_add v12, v2, s[12:15], 0 offen offset:{k*20+8}")
                a(f"v_sub_u32 v13, v{4+idx[1]}, v4")
                a(f"buffer_atomic_add v13, v2, s[12:15], 0 offen offset:{k*20+12}")
                a(f"v_sub_u32 v14, v10, v4")
                a(f"buffer_atomic_add v14, v2, s[12:15], 0 offen offset:{k*20+16}")
            a("s_waitcnt vmcnt(0)")
    a.label("KD_END")
    a("s_endpgm")
    return kernel_desc(name, 16, 16, 24)


def main():
    global STAMP
    if "--stamp" in sys.argv:
        STAMP = True
        sys.argv.remove("--stamp")
    ref = open(OUT + ".ref").read().split("\n")
    head = [l for l in ref if l.startswith(";") and "@launch" not in l]
    a = Asm()
    for l in head:
        a.raw(l)
    a.raw(f"; @launch kernel=qkv_kernel grid=(256,1,1) block=(512,1,1) lds={K1_LDS}")
    a.raw(f"; @launch kernel=attn_kernel grid=(256,1,1) block=(1024,1,1) lds={K2_LDS}")
    if not FUSE:
        a.raw(f"; @launch kernel=proj_kernel grid=(256,1,1) block=(256,1,1) lds={K3_LDS}")
    if 'diag' in EXP:
        a.raw("; @launch kernel=diag_kernel grid=(1,1,1) block=(256,1,1) lds=0")
    a.raw('.amdgcn_target "amdgcn-amd-amdhsa--gfx950"')
    a.raw(".text")
    d = [gen_k1(a), gen_k2(a)] + ([] if FUSE else [gen_k3(a)]) + ([gen_diag(a)] if 'diag' in EXP else [])
    a.raw('.section .rodata,"a"')
    for x in d:
        a.raw(".p2align 6")
        a.raw(x.rstrip("\n"))
    out = sys.argv[1] if len(sys.argv) > 1 else OUT
    open(out, "w").write(a.text())
    print("wrote", out, len(a.L), "lines")


if __name__ == "__main__":
    main()
```

```python
import sys, math, struct, os
EXP = os.environ.get('EXP', '').split(',')

NAME = "gated_mix__sliding_local_dilated__mha_block__prompt"
OUT = f"cdna_kernels/{NAME}.s"

SEGB = 2621440
TB = 40960
O_OFF = 16 << 20
O_BR = 2621440
WOF_OFF = 24 << 20
WOF_BR = 819200
G_OFF = 28 << 20
WS_BYTES = 32 << 20
QSCALE = (20 ** -0.5) * math.log2(math.e)


def f32(x):
    return "0x%08x" % struct.unpack("<I", struct.pack("<f", x))[0]


def pi5(i):
    return (i & ~12) | ((i & 4) << 1) | ((i & 8) >> 1)


class Asm:
    def __init__(self):
        self.L = []

    def __call__(self, s):
        for l in s.strip("\n").split("\n"):
            self.L.append("    " + l.strip())

    def label(self, l):
        self.L.append(l + ":")

    def raw(self, s):
        self.L.append(s)

    def text(self):
        return "\n".join(self.L) + "\n"


def vr(b, n=1, p="v"):
    return f"{p}{b}" if n == 1 else f"{p}[{b}:{b+n-1}]"


def ar(b, n=1):
    return vr(b, n, "a")


def sr(b, n=1):
    return vr(b, n, "s")


STAMP = False
K2STF = ' sc1' if 'k2_sc1' in EXP else ''
DBG_OFF = 30 << 20


def stamp(a, idx, sbase=70):
    if not STAMP:
        return
    a(f"s_memtime s[{sbase+16}:{sbase+17}]")
    a("s_waitcnt lgkmcnt(0)")
    a(f"s_mov_b32 s{sbase+idx}, s{sbase+16}")


def stamp_rt(a, idx, sbase=70):
    if not STAMP:
        return
    a(f"s_memrealtime s[{sbase+16}:{sbase+17}]")
    a("s_waitcnt lgkmcnt(0)")
    a(f"s_mov_b32 s{sbase+idx}, s{sbase+16}")


def stamp_flush(a, kidx, srd_ws, swave, n, vtmp, sbase=70, shift=4):
    if not STAMP:
        return
    a("s_mov_b64 exec, -1")
    a(f"s_lshl_b32 s{sbase+16}, s2, 4")
    a(f"s_add_u32 s{sbase+16}, s{sbase+16}, s{swave}")
    a(f"s_lshl_b32 s{sbase+16}, s{sbase+16}, 6")
    a(f"s_add_u32 s{sbase+16}, s{sbase+16}, {DBG_OFF + kidx*(1<<18)}")
    a(f"v_mov_b32 v{vtmp+1}, 0")
    for i in range(n):
        a(f"v_mov_b32 v{vtmp}, s{sbase+i}")
        a(f"buffer_store_dword v{vtmp}, v{vtmp+1}, s[{srd_ws}:{srd_ws+3}], s{sbase+16} offen offset:{4*i}")


def kernel_head(a, name):
    a.raw(f".globl {name}")
    a.raw(".p2align 8")
    a.raw(f".type {name},@function")
    a.label(name)


def kernel_desc(name, vgpr_total, accum, sgpr):
    return f""".amdhsa_kernel {name}
  .amdhsa_next_free_vgpr {vgpr_total}
  .amdhsa_next_free_sgpr {96 if STAMP else sgpr}
  .amdhsa_accum_offset {accum}
  .amdhsa_group_segment_fixed_size 0
  .amdhsa_kernarg_size 80
  .amdhsa_user_sgpr_count 2
  .amdhsa_user_sgpr_kernarg_segment_ptr 1
  .amdhsa_system_sgpr_workgroup_id_x 1
.end_amdhsa_kernel
"""


def srd(a, d, base, nbytes):
    a(f"s_mov_b32 s{d}, s{base}")
    a(f"s_mov_b32 s{d+1}, s{base+1}")
    a(f"s_mov_b32 s{d+2}, {nbytes}")
    a(f"s_mov_b32 s{d+3}, 0x00020000")


K1_WST = 16896
K1_NSW = 6 if 'k1_nsw6' in EXP else 5
K1_NSX = 3
K1_XB = K1_WST * K1_NSW
K1_LDS = K1_XB + K1_NSX * 16384


STF = '' if 'k1_plain' in EXP else (' nt' if 'k1_nt' in EXP else (' sc1 nt' if 'k1_sc1nt' in EXP else (' sc0 sc1 nt' if 'k1_all' in EXP else ' sc1')))


def gen_k1(a):
    name = "qkv_kernel"
    kernel_head(a, name)
    SX, SW, SR = 20, 24, 28
    sWave = 19
    a("s_cmp_ge_u32 s2, 256")
    a("s_cbranch_scc1 K1_END")
    stamp(a, 0); stamp_rt(a, 1)
    a("""
    s_load_dwordx4 s[4:7], s[0:1], 0
    s_load_dwordx2 s[8:9], s[0:1], 32
    s_load_dwordx2 s[10:11], s[0:1], 72
    """)
    if 'noct' not in EXP:
        code_touch(a, 31, 30, 52, "K1_CT0", "attn_kernel", lane="v0")
        a.label("K1_CT0")
    a("""
    v_lshrrev_b32 v2, 6, v0
    v_and_b32 v1, 63, v0
    s_and_b32 s12, s2, 7
    v_readfirstlane_b32 s19, v2
    s_cmp_ge_u32 s2, 240
    s_cbranch_scc1 K1_SIDE
    s_lshr_b32 s13, s2, 3
    s_mul_i32 s12, s12, 30
    s_add_u32 s12, s12, s13
    s_cmp_ge_u32 s12, 120
    s_cselect_b32 s14, 1, 0
    s_cselect_b32 s13, 120, 0
    s_sub_u32 s12, s12, s13
    s_and_b32 s15, s12, 7
    s_lshr_b32 s16, s12, 3
    v_and_b32 v3, 15, v1
    v_lshrrev_b32 v4, 4, v1
    """)
    a(f"""
    s_cmp_ge_u32 s{sWave}, 4
    s_cselect_b32 s12, 1, 0
    s_lshr_b32 s12, s{sWave}, s12
    s_and_b32 s12, s12, 1
    s_lshl_b32 s17, s16, 1
    s_add_u32 s17, s17, s12
    s_cmp_ge_u32 s17, 15
    s_cselect_b32 s18, 1, 0
    s_cselect_b32 s13, 15, 0
    s_sub_u32 s17, s17, s13
    s_movk_i32 s60, 3840
    s_mov_b32 s62, 2621440
    s_movk_i32 s63, 128
    s_cmp_ge_u32 s{sWave}, 4
    s_cbranch_scc0 K1_COMPUTE
    """)
    vW, vXg = 8, 12
    sWo, sXo, sWl, sXl, sWc, sXc, sOrd = 32, 33, 34, 35, 36, 37, 38
    K1_D = int(os.environ.get('K1D', '2'))
    ORD = []
    for g in range(4):
        o = list(range(10))
        for b in range(10):
            if b % 4 == g and K1_D:
                p = o.index(b)
                o.pop(p)
                o.insert(max(0, p - K1_D), b)
        ORD.append(sum(b << (4 * i) for i, b in enumerate(o)))
    a(f"""
    v_lshrrev_b32 v5, 1, v4
    v_and_b32 v6, 1, v4
    v_lshlrev_b32 v5, 4, v5
    v_lshl_add_u32 v5, v6, 2, v5
    v_mul_u32_u24 v5, 3840, v5
    v_lshl_add_u32 v{vW}, v3, 4, v5
    v_add_u32 v{vW+1}, 2784, v{vW}
    v_add_u32 v{vW+2}, {2*2784}, v{vW}
    v_add_u32 v{vW+3}, {3*2784}, v{vW}
    v_lshrrev_b32 v5, 3, v1
    v_and_b32 v6, 7, v1
    v_xor_b32 v6, v6, v5
    v_mul_u32_u24 v5, 2560, v5
    v_lshl_add_u32 v{vXg}, v6, 4, v5
    v_add_u32 v{vXg+1}, 19456, v{vXg}
    v_add_u32 v{vXg+2}, {2*19456}, v{vXg}
    v_add_u32 v{vXg+3}, {3*19456}, v{vXg}
    s_and_b32 s13, s{sWave}, 1
    s_mul_i32 s{sWo}, s13, {8*3840}
    s_lshl_b32 s3, s17, 8
    s_add_u32 s{sWo}, s{sWo}, s3
    s_and_b32 s3, s{sWave}, 3
    s_mul_i32 s{sWl}, s3, {4*1056}
    s_lshl_b32 s{sXl}, s3, 12
    s_add_u32 s{sXl}, s{sXl}, {K1_XB}
    s_lshl_b32 s13, s15, 2
    s_add_u32 s13, s13, s3
    s_mul_i32 s{sXo}, s13, {32*2560}
    s_mul_i32 s13, s14, 1280
    s_add_u32 s{sXo}, s{sXo}, s13
    s_add_u32 s3, s15, s16
    s_and_b32 s3, s3, 3
    s_mov_b32 s{sOrd}, {ORD[0] & 0xffffffff}
    s_mov_b32 s{sOrd+1}, {ORD[0] >> 32}
    s_cmp_eq_u32 s3, 1
    s_cselect_b32 s{sOrd}, {ORD[1] & 0xffffffff}, s{sOrd}
    s_cselect_b32 s{sOrd+1}, {ORD[1] >> 32}, s{sOrd+1}
    s_cmp_eq_u32 s3, 2
    s_cselect_b32 s{sOrd}, {ORD[2] & 0xffffffff}, s{sOrd}
    s_cselect_b32 s{sOrd+1}, {ORD[2] >> 32}, s{sOrd+1}
    s_cmp_eq_u32 s3, 3
    s_cselect_b32 s{sOrd}, {ORD[3] & 0xffffffff}, s{sOrd}
    s_cselect_b32 s{sOrd+1}, {ORD[3] >> 32}, s{sOrd+1}
    s_cmp_eq_u32 s18, 0
    s_waitcnt lgkmcnt(0)
    s_cselect_b64 s[6:7], s[6:7], s[8:9]
    """)
    srd(a, SX, 4, 2621440)
    srd(a, SW, 6, 2457600)
    if STAMP:
        srd(a, SR, 10, WS_BYTES)
    hist = []

    def blk(j, dst):
        r = sOrd + (j // 8)
        a(f"s_bfe_u32 s{dst}, s{r}, {(4 << 16) | (4 * (j % 8))}")

    def wl(k):
        a(f"s_add_u32 m0, s{sWl}, {(k % K1_NSW) * K1_WST}")
        if k % 2 == 0:
            blk(k // 2, sWc)
            a(f"s_mul_i32 s{sWc}, s{sWc}, {2*122880}")
            a(f"s_add_u32 s{sWc}, s{sWc}, s{sWo}")
        else:
            a(f"s_add_u32 s{sWc}, s{sWc}, 122880")
        for i in range(4):
            a(f"buffer_load_dwordx4 v{vW+i}, {sr(SW,4)}, s{sWc} offen offset:{1056*i} lds")
        hist.append(("W", k))

    def xl(j):
        a(f"s_add_u32 m0, s{sXl}, {(j % K1_NSX) * 16384}")
        blk(j, sXc)
        a(f"s_lshl_b32 s{sXc}, s{sXc}, 7")
        a(f"s_add_u32 s{sXc}, s{sXc}, s{sXo}")
        for q in range(4):
            a(f"buffer_load_dwordx4 v{vXg+q}, {sr(SX,4)}, s{sXc} offen offset:{1024*q} lds")
        hist.append(("X", j))

    def need(ks):
        req = [("W", ks), ("X", ks // 2)]
        last = max(hist.index(r) for r in req)
        a(f"s_waitcnt vmcnt({4 * (len(hist) - 1 - last)})")
        a("s_barrier")

    seq = []
    for j in range(10):
        seq += [("X", j), ("W", 2 * j), ("W", 2 * j + 1)]
    pos = [0]

    def free_at(it):
        t, i = it
        if t == "W":
            return i - K1_NSW
        return 2 * (i - K1_NSX) + 1

    def issue(step, nmax):
        n = 0
        while pos[0] < len(seq) and n < nmax and free_at(seq[pos[0]]) <= step:
            t, i = seq[pos[0]]
            (wl if t == "W" else xl)(i)
            pos[0] += 1
            n += 1
    RAMP = [int(c) for c in os.environ.get('K1RAMP', '32222')]
    issue(-2, RAMP[0])
    stamp(a, 2)
    need(0)
    stamp(a, 3)
    issue(-1, RAMP[1])
    for ks in range(19):
        need(ks + 1)
        if ks % 2 == 1 and ks <= 15: stamp(a, 8 + ks // 2)
        issue(ks, RAMP[ks + 2] if ks + 2 < len(RAMP) else RAMP[-1])
    assert pos[0] == len(seq)
    a("s_barrier")
    stamp(a, 4); stamp(a, 5); stamp(a, 6); stamp_rt(a, 7)
    stamp_flush(a, 0, SR, sWave, 16, 2)
    a("s_endpgm")

    a.label("K1_COMPUTE")
    ACC = 32
    WFR = [0, 32]
    XFR = [64, 80]
    vTr0, vTr, vXr0, vXr, vSt = 8, 9, 10, 12, 14
    sRd, sXr, sIt, sSt, sSeg = 32, 33, 34, 36, 35
    TOUCH = 'k1_touch' in EXP
    ST, sTo, sTs = 44, 42, 43
    TD = 5
    if TOUCH:
        a(f"""
        v_lshrrev_b32 v5, 1, v1
        v_and_b32 v6, 1, v1
        v_lshlrev_b32 v6, 7, v6
        v_mad_u32_u24 v16, v5, s60, v6
        v_mul_u32_u24 v17, 2560, v1
        s_mul_i32 s{sTo}, s15, {8*3840}
        s_lshl_b32 s3, s17, 8
        s_add_u32 s{sTo}, s{sTo}, s3
        s_add_u32 s{sTo}, s{sTo}, {3*64*3840}
        s_lshl_b32 s3, s15, 3
        s_and_b32 s13, s16, 3
        s_lshl_b32 s13, s13, 1
        s_add_u32 s3, s3, s13
        s_and_b32 s13, s{sWave}, 1
        s_add_u32 s3, s3, s13
        s_mul_i32 s3, s3, {16*2560}
        s_mul_i32 s13, s14, 1280
        s_add_u32 s3, s3, s13
        s_add_u32 s3, s3, {3*128}
        s_cmp_eq_u32 s18, 0
        s_waitcnt lgkmcnt(0)
        s_cselect_b64 s[6:7], s[6:7], s[8:9]
        s_cmp_lt_u32 s{sWave}, 2
        s_cselect_b64 s[{ST}:{ST+1}], s[6:7], s[4:5]
        s_cselect_b32 s{ST+2}, 2457600, s62
        s_mov_b32 s{ST+3}, 0x00020000
        s_cselect_b32 s{sTo}, s{sTo}, s3
        s_cselect_b32 s{sTs}, {64*3840}, s63
        s_cselect_b64 s[50:51], -1, 0
        v_cndmask_b32 v16, v17, v16, s[50:51]
        v_cmp_gt_u32 s[50:51], 16, v1
        v_mov_b32 v17, 0x40000000
        s_nop 0
        v_cndmask_b32 v16, v17, v16, s[50:51]
        """)
        for b in range(3, TD):
            a(f"buffer_load_dword v18, v16, {sr(ST,4)}, s{sTo} offen")
            a(f"s_add_u32 s{sTo}, s{sTo}, s{sTs}")
    a(f"""
    v_and_b32 v5, 1, v4
    v_lshrrev_b32 v6, 2, v3
    v_lshl_add_u32 v5, v5, 2, v6
    v_mul_u32_u24 v5, 1056, v5
    v_lshrrev_b32 v6, 1, v4
    v_lshlrev_b32 v6, 9, v6
    v_and_b32 v7, 3, v3
    v_lshlrev_b32 v7, 3, v7
    v_add3_u32 v5, v5, v6, v7
    s_mul_i32 s3, s12, 8448
    v_add_u32 v{vTr0}, s3, v5
    v_and_b32 v5, 3, v3
    v_bfe_u32 v6, v3, 2, 1
    v_lshl_or_b32 v5, v6, 3, v5
    v_bfe_u32 v6, v3, 3, 1
    v_lshl_or_b32 v5, v6, 2, v5
    v_and_b32 v6, 7, v5
    v_xor_b32 v6, v6, v4
    v_lshlrev_b32 v6, 4, v6
    v_lshl_add_u32 v5, v5, 7, v6
    s_lshr_b32 s13, s{sWave}, 1
    s_lshl_b32 s3, s13, 13
    s_add_u32 s3, s3, {K1_XB}
    v_add_u32 v{vXr0}, s3, v5
    v_xor_b32 v{vXr0+1}, 64, v{vXr0}
    v_mov_b32 v{vXr}, v{vXr0}
    v_mov_b32 v{vXr+1}, v{vXr0+1}
    v_mov_b32 v{vTr}, v{vTr0}
    s_mov_b32 s{sRd}, {K1_WST}
    s_mov_b32 s{sXr}, 16384
    s_mov_b32 s{sIt}, 0
    s_mul_i32 s{sSeg}, s17, 52
    s_lshr_b32 s{sSeg}, s{sSeg}, 8
    s_mul_i32 s3, s{sSeg}, 5
    s_sub_u32 s17, s17, s3
    s_mul_i32 s3, s18, 3
    s_add_u32 s3, s3, s{sSeg}
    s_mul_i32 s{sSt}, s3, {SEGB}
    s_lshl_b32 s3, s14, 4
    s_lshl_b32 s16, s15, 1
    s_add_u32 s3, s3, s16
    s_add_u32 s3, s3, s13
    s_mul_i32 s3, s3, {2*TB}
    s_add_u32 s{sSt}, s{sSt}, s3
    s_waitcnt lgkmcnt(0)
    """)
    srd(a, SR, 10, WS_BYTES)
    for i in range(128):
        a(f"v_mov_b32 v{ACC+i}, 0")

    def reads(fset, kk):
        L = [f"ds_read_b128 {ar(XFR[fset]+4*mt,4)}, v{vXr+kk} offset:{2048*mt}" for mt in range(4)]
        for t in range(8):
            for s in range(2):
                L.append(f"ds_read_b64_tr_b16 {ar(WFR[fset]+4*t+2*s,2)}, v{vTr} offset:{s*256 + t*32}")
        return L

    stamp(a, 2)
    a("s_barrier")
    stamp(a, 3)
    for l in reads(0, 0):
        a(l)
    a(f"s_cmp_eq_u32 s{sSeg}, 2")
    a("s_cbranch_scc1 K1_LOOP_N")
    for ori in ("T", "N"):
        a.raw(".p2align 3")
        a.label(f"K1_LOOP_{ori}")
        for s in range(2):
            fs = s
            rd = reads(1 - fs, 1 - s)
            mf = []
            for t in range(8):
                for mt in range(4):
                    acc = vr(ACC + (t * 4 + mt) * 4, 4)
                    w = ar(WFR[fs] + 4 * t, 4)
                    x = ar(XFR[fs] + 4 * mt, 4)
                    if ori == "T":
                        mf.append(f"v_mfma_f32_16x16x32_bf16 {acc}, {w}, {x}, {acc}")
                    else:
                        mf.append(f"v_mfma_f32_16x16x32_bf16 {acc}, {x}, {w}, {acc}")
            a(f"v_add_u32 v{vTr}, s{sRd}, v{vTr0}")
            rest = [f"s_add_u32 s{sRd}, s{sRd}, {K1_WST}",
                    f"s_cmp_ge_u32 s{sRd}, {K1_XB}",
                    f"s_cselect_b32 s{sRd}, 0, s{sRd}"]
            if s == 0 and TOUCH:
                rest += [f"s_cmp_lt_u32 s{sIt}, {10-TD}",
                         f"s_cselect_b32 s{sTo}, s{sTo}, 0x40000000",
                         f"buffer_load_dword v18, v16, {sr(ST,4)}, s{sTo} offen",
                         f"s_add_u32 s{sTo}, s{sTo}, s{sTs}"]
            if s == 1:
                a(f"v_add_u32 v{vXr}, s{sXr}, v{vXr0}")
                rest += [f"v_add_u32 v{vXr+1}, s{sXr}, v{vXr0+1}",
                         f"s_add_u32 s{sXr}, s{sXr}, 16384",
                         f"s_cmp_ge_u32 s{sXr}, {K1_NSX*16384}",
                         f"s_cselect_b32 s{sXr}, 0, s{sXr}",
                         f"s_add_u32 s{sIt}, s{sIt}, 1",
                         f"s_cmp_lt_u32 s{sIt}, 10"]
            a("s_waitcnt lgkmcnt(0)")
            a("s_barrier")
            fill = rd + rest
            for i in range(32):
                a(mf[i])
                if i < len(fill):
                    a(fill[i])
        a(f"s_cbranch_scc1 K1_LOOP_{ori}")
        stamp(a, 4)
        if ori == "T":
            a(f"""
            s_lshl_b32 s3, s17, 13
            s_add_u32 s{sSt}, s{sSt}, s3
            s_add_u32 s{sSt+1}, s{sSt}, 4096
            s_add_u32 s{sSt+2}, s{sSt}, {TB}
            s_add_u32 s{sSt+3}, s{sSt+1}, {TB}
            s_cmp_eq_u32 s{sSeg}, 0
            s_cselect_b32 s40, {f32(QSCALE)}, 1.0
            s_mov_b32 s41, s40
            v_lshlrev_b32 v{vSt}, 4, v1
            s_nop 3
            """)
        else:
            a(f"""
            s_lshl_b32 s3, s17, 11
            s_add_u32 s{sSt}, s{sSt}, s3
            s_add_u32 s{sSt+2}, s{sSt}, {TB}
            v_mul_u32_u24 v5, 10240, v4
            v_lshl_add_u32 v{vSt}, v3, 4, v5
            s_nop 7
            """)
        for t in range(8):
            for mp in range(2):
                b0 = ACC + (t * 4 + 2 * mp) * 4
                b1 = b0 + 4
                if ori == "T":
                    for i in range(4):
                        a(f"v_pk_mul_f32 {vr(b0+2*i,2)}, {vr(b0+2*i,2)}, s[40:41]")
                a(f"v_cvt_pk_bf16_f32 v{b0}, v{b0}, v{b0+1}")
                a(f"v_cvt_pk_bf16_f32 v{b0+1}, v{b0+2}, v{b0+3}")
                a(f"v_cvt_pk_bf16_f32 v{b0+2}, v{b1}, v{b1+1}")
                a(f"v_cvt_pk_bf16_f32 v{b0+3}, v{b1+2}, v{b1+3}")
                a("s_nop 1")
                sw = "v_permlane16_swap_b32" if ori == "T" else "v_permlane32_swap_b32"
                a(f"{sw} v{b0}, v{b0+2}")
                a(f"{sw} v{b0+1}, v{b0+3}")
                a("s_nop 0")
                if ori == "T":
                    a(f"buffer_store_dwordx4 {vr(b0,4)}, v{vSt}, {sr(SR,4)}, s{sSt + 2*mp + t//4} offen offset:{(t%4)*1024}{STF}")
                else:
                    a(f"buffer_store_dwordx4 {vr(b0,4)}, v{vSt}, {sr(SR,4)}, s{sSt + 2*mp} offen offset:{t*256}{STF}")
        stamp(a, 5)
        if STAMP: a("s_waitcnt vmcnt(0)")
        stamp(a, 6); stamp_rt(a, 7)
        stamp_flush(a, 0, SR, sWave, 8, 2)
        a("s_endpgm")

    a.label("K1_SIDE")
    SGW, SWO = 32, 36
    a(f"""
    s_load_dwordx2 s[46:47], s[0:1], 16
    s_load_dwordx4 s[12:15], s[0:1], 40
    s_sub_u32 s16, s2, 240
    s_lshl_b32 s16, s16, 3
    s_add_u32 s16, s16, s{sWave}
    v_lshlrev_b32 v2, 2, v1
    v_lshlrev_b32 v5, 4, v1
    v_lshrrev_b32 v3, 3, v1
    v_and_b32 v4, 7, v1
    v_mul_u32_u24 v3, 1280, v3
    v_lshl_add_u32 v3, v4, 4, v3
    v_lshrrev_b32 v4, 4, v1
    v_bfe_u32 v6, v1, 2, 2
    v_lshl_add_u32 v4, v4, 3, v6
    v_and_b32 v6, 3, v1
    v_lshlrev_b32 v6, 3, v6
    v_lshl_add_u32 v6, v4, 7, v6
    s_lshl_b32 s40, s{sWave}, 14
    v_add_u32 v6, s40, v6
    v_mov_b32 v4, 0
    s_waitcnt lgkmcnt(0)
    """)
    srd(a, SX, 4, 2621440)
    srd(a, SR, 10, WS_BYTES)
    srd(a, SGW, 14, 1280)
    a(f"s_mov_b32 s{SWO+2}, 819200")
    a(f"s_mov_b32 s{SWO+3}, 0x00020000")
    for i in range(4):
        a(f"""
        s_add_u32 s41, s16, {128*i}
        s_cmp_ge_u32 s41, 200
        s_cselect_b32 s{SWO}, s12, s46
        s_cselect_b32 s{SWO+1}, s13, s47
        s_cselect_b32 s3, 200, 0
        s_cselect_b32 s{42+i}, {WOF_BR}, 0
        s_add_u32 s{42+i}, s{42+i}, {WOF_OFF}
        s_sub_u32 s3, s41, s3
        s_mul_i32 s17, s3, 6554
        s_lshr_b32 s17, s17, 16
        s_mul_i32 s18, s17, 10
        s_sub_u32 s18, s3, s18
        s_lshl_b32 s3, s17, 10
        s_add_u32 s{42+i}, s{42+i}, s3
        s_mul_i32 s3, s18, {4*20480}
        s_add_u32 s{42+i}, s{42+i}, s3
        s_mul_i32 s17, s17, {32*1280}
        s_lshl_b32 s18, s18, 7
        s_add_u32 s17, s17, s18
        s_cmp_ge_u32 s41, 400
        s_cselect_b32 s{42+i}, 0x7f000000, s{42+i}
        s_cselect_b32 s17, 0x7f000000, s17
        """)
        for q in range(4):
            a(f"s_add_u32 m0, s40, {4096*i + 1024*q}")
            a("s_nop 0")
            a(f"buffer_load_dwordx4 v3, {sr(SWO,4)}, s17 offen lds")
            a(f"s_add_u32 s17, s17, {8*1280}")
    GW, GX = 8, 16
    for i in range(5):
        a(f"buffer_load_dword v{GW+i}, v2, {sr(SGW,4)}, 0 offen offset:{256*i}")
    a(f"""
    s_and_b32 s3, s16, 63
    s_mul_i32 s17, s3, {16*2560}
    s_lshr_b32 s3, s16, 6
    s_mul_i32 s3, s3, 1280
    s_add_u32 s17, s17, s3
    s_lshl_b32 s18, s16, 6
    s_add_u32 s18, s18, {G_OFF}
    """)
    for half in range(2):
        for r in range(8):
            for i in range(5):
                a(f"buffer_load_dword v{GX+5*r+i}, v2, {sr(SX,4)}, s17 offen offset:{256*i}")
            a("s_add_u32 s17, s17, 2560")
        if half == 0:
            a("s_waitcnt vmcnt(45)")
            for i in range(4):
                for nt in range(4):
                    b = 72 + (4 * i + nt) * 4
                    a(f"ds_read_b64_tr_b16 {vr(b,2)}, v6 offset:{4096*i + 32*nt}")
                    a(f"ds_read_b64_tr_b16 {vr(b+2,2)}, v6 offset:{4096*i + 32*nt + 512}")
                a("s_waitcnt lgkmcnt(0)")
            a("s_waitcnt vmcnt(0)")
            for i in range(4):
                for nt in range(4):
                    b = 72 + (4 * i + nt) * 4
                    a(f"buffer_store_dwordx4 {vr(b,4)}, v5, {sr(SR,4)}, s{42+i} offen")
                    a(f"s_add_u32 s{42+i}, s{42+i}, 20480")
        else:
            a("s_waitcnt vmcnt(0)")
        for r in range(8):
            a(f"v_dot2_f32_bf16 v{60+r}, v{GX+5*r}, v{GW}, 0")
        for i in range(1, 5):
            for r in range(8):
                a(f"v_dot2_f32_bf16 v{60+r}, v{GX+5*r+i}, v{GW+i}, v{60+r}")
        a("s_nop 3")
        for sh in ("row_shr:1 row_mask:0xf bank_mask:0xf bound_ctrl:0", "row_shr:2 row_mask:0xf bank_mask:0xf bound_ctrl:0",
                   "row_shr:4 row_mask:0xf bank_mask:0xf bound_ctrl:0", "row_shr:8 row_mask:0xf bank_mask:0xf bound_ctrl:0",
                   "row_bcast:15 row_mask:0xa bank_mask:0xf", "row_bcast:31 row_mask:0xc bank_mask:0xf"):
            for r in range(8):
                a(f"v_add_f32_dpp v{60+r}, v{60+r}, v{60+r} {sh}")
        for r in range(8):
            a(f"v_mul_f32 v{60+r}, {f32(-math.log2(math.e))}, v{60+r}")
        for r in range(8):
            a(f"v_exp_f32 v{60+r}, v{60+r}")
        for r in range(8):
            a(f"v_add_f32 v{60+r}, 1.0, v{60+r}")
        for r in range(8):
            a(f"v_rcp_f32 v{60+r}, v{60+r}")
        a("s_mov_b32 exec_lo, 0")
        a("s_mov_b32 exec_hi, 0x80000000")
        a(f"buffer_store_dwordx4 v[60:63], v4, {sr(SR,4)}, s18 offen offset:{32*half}")
        a(f"buffer_store_dwordx4 v[64:67], v4, {sr(SR,4)}, s18 offen offset:{32*half+16}")
        a("s_mov_b64 exec, -1")
        a("s_nop 1")
    if 'noct' not in EXP:
        code_touch(a, 31, 30, 52, "attn_kernel", "CODE_END", lane="v0")
    if STAMP:
        a("s_waitcnt vmcnt(0)")
        for i in range(2, 7):
            stamp(a, i)
        stamp_rt(a, 7)
        stamp_flush(a, 0, SR, sWave, 8, 2)
    a.label("K1_END")
    a("s_endpgm")
    return kernel_desc(name, 256, 160, 64)


K2_TILE = 2880
K2_SLOT = 16 * K2_TILE
K2_R = 3
FUSE = 'fuse' in EXP
K2_LDS = 163840
K2_MASK = K2_LDS - 6 * 1024
K2_FLAG = K2_MASK - 256
K2_XCH = 3 * 40960


def code_touch(a, vdst, vaddr, stmp, first, last, lane="v1"):
    lab = f"CT_{len(a.L)}"
    a(f"s_getpc_b64 s[{stmp}:{stmp+1}]")
    a.label(lab)
    a(f"s_add_u32 s{stmp}, s{stmp}, {first}-{lab}")
    a(f"s_addc_u32 s{stmp+1}, s{stmp+1}, 0")
    a(f"v_lshlrev_b32 v{vaddr}, 7, {lane}")
    a(f"v_min_u32 v{vaddr}, {last}-{first}-4, v{vaddr}")
    a(f"global_load_dword v{vdst}, v{vaddr}, s[{stmp}:{stmp+1}]")


def gen_pphase(a, L):
    SWS, sWave, sKh, O, SB, P, vL16, sTmp = L["SWS"], L["sWave"], L["sKh"], L["O"], L["SB"], L["P"], L["vL16"], L["sTmp"]
    SOUT, SDBG = 52, 56
    sNb, sMt, sWb, sRow, sOb, sKs, sWq, sLq, sOut = 60, 61, 62, 63, 64, 65, 66, 67, 34
    ACC, OF, WF = 16, 36, 76
    vLn, vW, vG, vOut, vOut2, vR = 2, 3, 4, 5, 6, 7

    def wrow(extra=0):
        a(f"""
        s_add_u32 s3, s{sRow}, {extra}
        s_lshr_b32 s4, s3, 4
        s_mul_i32 s4, s4, {WOF_BR}
        s_bfe_u32 s5, s3, {(1 << 16) | 3}
        s_mul_i32 s5, s5, 10
        s_and_b32 s6, s3, 7
        s_add_u32 s5, s5, s6
        s_lshl_b32 s5, s5, 10
        s_add_u32 s4, s4, s5
        s_add_u32 s4, s4, s{sWb}
        s_mul_i32 s5, s3, 5120
        """)
        for nt in range(5):
            a(f"s_add_u32 m0, s5, {1024*nt}")
            a(f"s_add_u32 s4, s4, 20480" if nt else "s_nop 0")
            a(f"buffer_load_dwordx4 v{vL16}, {sr(SWS,4)}, s4 offen lds")

    if 'p_late' in EXP:
        a(f"""
        s_lshr_b32 s{sNb}, s15, 2
        s_mul_i32 s{sWb}, s{sNb}, {5*20480}
        s_add_u32 s{sWb}, s{sWb}, {WOF_OFF}
        s_lshl_b32 s{sRow}, s{sWave}, 1
        s_waitcnt vmcnt(0)
        """)
        stamp(a, 12)
        srd(a, SDBG, 50, 256)
        a(f"""
        v_mov_b32 v8, 0
        v_mov_b32 v9, 1
        s_lshl_b32 s7, s9, 2
        s_barrier
        s_cmp_eq_u32 s{sWave}, 0
        s_cbranch_scc0 K2_NOSIG
        s_mov_b64 exec, 1
        buffer_atomic_add v9, v8, {sr(SDBG,4)}, s7 offen sc1
        s_mov_b64 exec, -1
        """)
        a.label("K2_NOSIG")
        stamp(a, 8)
        wrow(0)
        wrow(1)
    else:
        a(f"""
        s_lshr_b32 s{sNb}, s15, 2
        s_mul_i32 s{sWb}, s{sNb}, {5*20480}
        s_add_u32 s{sWb}, s{sWb}, {WOF_OFF}
        s_cmp_eq_u32 s{sKh}, 0
        s_cbranch_scc1 K2_PA
        s_sub_u32 s{sRow}, s{sWave}, 8
        """)
        wrow(0)
        a(f"""
        s_add_u32 s{sRow}, s{sWave}, 10
        s_cmp_ge_u32 s{sRow}, 24
        s_cselect_b32 s{sRow}, 8, s{sRow}
        """)
        wrow(0)
        a(f"s_add_u32 s{sRow}, s{sWave}, 16")
        a("s_waitcnt vmcnt(10)")
        a("s_branch K2_P1")
        a.label("K2_PA")
        a(f"s_add_u32 s{sRow}, s{sWave}, 9")
        a("s_waitcnt vmcnt(0)")
        a.label("K2_P1")
        srd(a, SDBG, 50, 256)
        a(f"""
        v_mov_b32 v8, 0
        v_mov_b32 v9, 1
        s_lshl_b32 s7, s9, 2
        s_barrier
        s_cmp_eq_u32 s{sWave}, 0
        s_cbranch_scc0 K2_NOSIG
        s_mov_b64 exec, 1
        buffer_atomic_add v9, v8, {sr(SDBG,4)}, s7 offen sc1
        s_mov_b64 exec, -1
        """)
        wrow(8)
        a.label("K2_NOSIG")
        stamp(a, 8)
        wrow(0)
    srd(a, SOUT, 48, 2621440)
    a(f"""
    v_mov_b32 v{vLn}, v{vL16}
    s_and_b32 s14, s2, 7
    s_lshl_b32 s{sMt}, s14, 2
    s_and_b32 s3, s15, 3
    s_add_u32 s{sMt}, s{sMt}, s3
    s_lshl_b32 s{sMt}, s{sMt}, 2
    s_and_b32 s3, s{sWave}, 3
    s_add_u32 s{sMt}, s{sMt}, s3
    s_lshr_b32 s4, s{sWave}, 2
    s_mul_i32 s{sLq}, s4, 40960
    s_and_b32 s5, s4, 1
    s_mul_i32 s5, s5, 10240
    s_mul_i32 s{sOb}, s{sKh}, {O_BR}
    s_add_u32 s{sOb}, s{sOb}, s5
    s_mul_i32 s6, s{sMt}, 20480
    s_add_u32 s{sOb}, s{sOb}, s6
    s_add_u32 s{sOb}, s{sOb}, {O_OFF}
    s_mul_i32 s{sWq}, s{sKh}, {WOF_BR}
    s_add_u32 s{sWq}, s{sWq}, s5
    s_add_u32 s{sWq}, s{sWq}, s{sWb}
    v_and_b32 v9, 15, v1
    v_lshlrev_b32 v10, 2, v9
    s_lshl_b32 s6, s{sMt}, 6
    s_add_u32 s6, s6, {G_OFF}
    buffer_load_dword v{vG}, v10, {sr(SWS,4)}, s6 offen
    v_lshrrev_b32 v11, 4, v1
    v_mul_u32_u24 v12, 2560, v9
    v_and_b32 v13, 1, v11
    v_lshlrev_b32 v13, 5, v13
    v_lshrrev_b32 v14, 1, v11
    v_lshlrev_b32 v14, 4, v14
    v_add3_u32 v{vOut}, v12, v13, v14
    v_lshl_add_u32 v{vOut2}, v11, 3, v12
    s_and_b32 s6, s{sMt}, 63
    s_mul_i32 s6, s6, {16*2560}
    s_lshr_b32 s7, s{sMt}, 6
    s_mul_i32 s7, s7, 1280
    s_add_u32 s{sOut}, s6, s7
    s_mul_i32 s7, s{sNb}, 160
    s_add_u32 s{sOut}, s{sOut}, s7
    s_cmp_eq_u32 s{sWave}, 15
    s_cbranch_scc0 K2_P2
    s_lshl_b32 s7, s14, 5
    s_movk_i32 s6, 8192
    """)
    a.label("K2_POLL")
    a(f"""
    buffer_load_dword v9, v8, {sr(SDBG,4)}, s7 offen sc1
    s_waitcnt vmcnt(0)
    v_readfirstlane_b32 s3, v9
    s_sub_u32 s6, s6, 1
    s_cmp_ge_u32 s3, 32
    s_cbranch_scc1 K2_P2
    s_sleep 2
    s_cmp_lg_u32 s6, 0
    s_cbranch_scc1 K2_POLL
    """)
    a.label("K2_P2")
    a("s_waitcnt vmcnt(0)")
    stamp(a, 13)
    a("s_barrier")
    stamp(a, 9)
    hist = []

    def oload(i):
        if i < 8:
            a(f"s_add_u32 s3, s{sNb}, {i}")
            a("s_and_b32 s3, s3, 7" if 'p_hot' not in EXP else "s_mov_b32 s3, 0")
            a("s_lshl_b32 s3, s3, 10")
            a(f"s_add_u32 s3, s3, s{sOb}")
        else:
            a(f"s_add_u32 s3, s{sOb}, {1024*i}")
        a(f"buffer_load_dwordx4 {vr(OF+4*i,4)}, v{vLn}, {sr(SWS,4)}, s3 offen{'' if 'p_nosc1' in EXP else ' sc1'}")
        hist.append(("O", i))

    def slot_addr(i, dst):
        a(f"s_add_u32 s{dst}, s{sNb}, {i % 8}")
        a(f"s_and_b32 s{dst}, s{dst}, 7")
        a(f"s_mul_i32 s{dst}, s{dst}, 5120")
        a(f"s_add_u32 s{dst}, s{dst}, s{sLq}")

    def wreads(i):
        slot_addr(i, sKs)
        a(f"v_add_u32 v{vW}, s{sKs}, v{vLn}")
        for nt in range(5):
            a(f"ds_read_b128 {vr(WF + (i % 2) * 20 + 4 * nt, 4)}, v{vW} offset:{1024*nt}")

    PD = int(os.environ.get('PD', '4'))
    for i in range(PD):
        oload(i)
    wreads(0)
    for i in range(10):
        if i == 2:
            a("s_barrier")
            for j in range(3):
                a(f"""
                s_and_b32 s3, s{sWave}, 3
                s_mul_i32 s3, s3, 3
                s_add_u32 s3, s3, {j}
                s_cmp_ge_u32 s3, 5
                s_cselect_b32 s4, 1, 0
                s_mul_i32 s5, s4, 5
                s_sub_u32 s5, s3, s5
                s_add_u32 s6, s{sNb}, s4
                s_and_b32 s6, s6, 7
                s_mul_i32 s6, s6, 5120
                s_add_u32 s6, s6, s{sLq}
                s_lshl_b32 s7, s5, 10
                s_add_u32 m0, s6, s7
                s_add_u32 s4, s4, 8
                s_lshl_b32 s4, s4, 10
                s_mul_i32 s5, s5, 20480
                s_add_u32 s4, s4, s5
                s_add_u32 s4, s4, s{sWq}
                s_cmp_ge_u32 s3, 10
                s_cselect_b64 exec, 0, -1
                s_cbranch_scc1 K2_PSKIP{j}
                buffer_load_dwordx4 v{vLn}, {sr(SWS,4)}, s4 offen lds
                """)
                a.label(f"K2_PSKIP{j}")
                a("s_mov_b64 exec, -1")
        if i + 1 == 8:
            a("s_waitcnt vmcnt(2)")
            a("s_waitcnt lgkmcnt(0)")
            a("s_barrier")
        if i + 1 < 10:
            wreads(i + 1)
        n = len(hist) - 1 - hist.index(("O", i))
        a(f"s_waitcnt vmcnt({n}) lgkmcnt({5 if i + 1 < 10 else 0})")
        for nt in range(5):
            d = vr(ACC + 4 * nt, 4)
            a(f"v_mfma_f32_16x16x32_bf16 {d}, {vr(WF + (i % 2) * 20 + 4 * nt, 4)}, {vr(OF+4*i,4)}, {'0' if i == 0 else d}")
        if i + PD < 10:
            oload(i + PD)
    stamp(a, 10)
    a(f"""
    v_sub_f32 v10, 1.0, v{vG}
    s_cmp_eq_u32 s{sKh}, 0
    s_cselect_b64 s[{sTmp}:{sTmp+1}], -1, 0
    s_and_b32 s3, s{sWave}, 3
    s_add_u32 s3, s3, s{sNb}
    s_add_u32 s3, s3, 2
    s_and_b32 s3, s3, 7
    s_mul_i32 s3, s3, 5120
    v_cndmask_b32 v10, v10, v{vG}, s[{sTmp}:{sTmp+1}]
    v_add_u32 v{vR}, s3, v{vLn}
    v_add_u32 v{vW}, s{sLq}, v{vR}
    """)
    for i in range(20):
        a(f"v_mul_f32 v{ACC+i}, v{ACC+i}, v10")
    a(f"s_cmp_lt_u32 s{sWave}, 4")
    a("s_cbranch_scc1 K2_PSUM")
    for nt in range(5):
        a(f"ds_write_b128 v{vW}, {vr(ACC+4*nt,4)} offset:{1024*nt}")
    a("s_waitcnt lgkmcnt(0)")
    a("s_barrier")
    a("s_branch K2_PDONE")
    a.label("K2_PSUM")
    a(f"v_add_u32 v{vW}, 81920, v{vR}")
    a("s_barrier")
    for k in range(3):
        for nt in range(5):
            base, off = (vR, 40960) if k == 0 else (vW, 40960 * (k - 1))
            a(f"ds_read_b128 {vr(OF + 20*k + 4*nt, 4)}, v{base} offset:{off + 1024*nt}")
    for k in range(3):
        a(f"s_waitcnt lgkmcnt({5 * (2 - k)})")
        for i in range(20):
            a(f"v_add_f32 v{ACC+i}, v{ACC+i}, v{OF+20*k+i}")
    for pr in range(2):
        b0 = ACC + pr * 8
        b1 = b0 + 4
        a(f"v_cvt_pk_bf16_f32 v{b0}, v{b0}, v{b0+1}")
        a(f"v_cvt_pk_bf16_f32 v{b0+1}, v{b0+2}, v{b0+3}")
        a(f"v_cvt_pk_bf16_f32 v{b0+2}, v{b1}, v{b1+1}")
        a(f"v_cvt_pk_bf16_f32 v{b0+3}, v{b1+2}, v{b1+3}")
        a("s_nop 1")
        a(f"v_permlane16_swap_b32 v{b0}, v{b0+2}")
        a(f"v_permlane16_swap_b32 v{b0+1}, v{b0+3}")
        a("s_nop 0")
        a(f"buffer_store_dwordx4 {vr(b0,4)}, v{vOut}, {sr(SOUT,4)}, s{sOut} offen offset:{pr*64}")
    b0 = ACC + 16
    a(f"v_cvt_pk_bf16_f32 v{b0}, v{b0}, v{b0+1}")
    a(f"v_cvt_pk_bf16_f32 v{b0+1}, v{b0+2}, v{b0+3}")
    a(f"buffer_store_dwordx2 {vr(b0,2)}, v{vOut2}, {sr(SOUT,4)}, s{sOut} offen offset:128")
    a.label("K2_PDONE")


def gen_k2(a):
    name = "attn_kernel"
    kernel_head(a, name)
    SWS = 20
    sWave, sHead, sT, sKh = 16, 17, 18, 19
    sDma, sM0, sSlot, sC, sRedo = 24, 25, 26, 27, 28
    sTA, sO, sTouch, sAD = 29, 31, 33, 30
    sTmp = 36
    vK10, vK20, vLV, vK1, vK2, vV, vO = 2, 3, 4, 5, 6, 7, 15
    vt = 8
    Q1, Q2 = 16, 20
    KF1, KF2 = 24, 28
    vD = 22
    vD2 = 30
    vGK1, vGK2 = 31, 112
    vL16, vX, vO2 = 113, 114, 115
    VF = 32
    P = 40
    NEGM = 48
    SB = [64, 80]
    O = 96
    AQ1, AQ2 = 116, 120
    AKP1, AKP2 = 124, 122
    NV = 128
    a("s_cmp_ge_u32 s2, 256")
    a("s_cbranch_scc1 K2_END")
    stamp(a, 0); stamp_rt(a, 1)
    a("""
    s_load_dwordx2 s[12:13], s[0:1], 72
    s_load_dwordx4 s[48:51], s[0:1], 56
    v_lshrrev_b32 v8, 6, v0
    v_and_b32 v1, 63, v0
    s_and_b32 s14, s2, 7
    v_readfirstlane_b32 s16, v8
    s_lshr_b32 s15, s2, 3
    s_lshl_b32 s17, s14, 2
    s_lshr_b32 s3, s15, 3
    s_add_u32 s17, s17, s3
    s_and_b32 s9, s15, 7
    s_lshl_b32 s9, s9, 3
    s_and_b32 s3, s16, 7
    s_add_u32 s18, s9, s3
    s_lshr_b32 s19, s16, 3
    """)
    a(f"""
    v_and_b32 v8, 31, v1
    v_lshrrev_b32 v9, 5, v1
    v_lshlrev_b32 v{vL16}, 4, v1
    s_and_b32 s4, s{sHead}, 1
    s_mul_i32 s5, s{sHead}, 5
    s_lshr_b32 s5, s5, 1
    s_lshl_b32 s5, s5, 9
    s_lshl_b32 s6, s4, 9
    s_cmp_eq_u32 s4, 0
    s_cselect_b32 s7, 1024, 8
    v_add_u32 v{vK1}, s6, v{vL16}
    v_lshl_add_u32 v{vK2}, v8, 4, s7
    v_add_u32 v{vGK1}, s5, v{vK1}
    v_add_u32 v{vGK2}, s5, v{vK2}
    s_add_u32 s5, s5, {SEGB}
    v_add_u32 v{vD}, s5, v{vL16}
    s_mul_i32 s6, s{sHead}, 320
    s_add_u32 s7, s6, {2*SEGB - 1024 - 512}
    v_cmp_le_u32 s[{sTmp}:{sTmp+1}], 53, v1
    v_mov_b32 v12, {10240-336}
    v_add_u32 v13, s7, v{vL16}
    v_cndmask_b32 v12, 0, v12, s[{sTmp}:{sTmp+1}]
    v_add_u32 v13, v13, v12
    v_cmp_le_u32 s[{sTmp}:{sTmp+1}], 32, v1
    v_add_u32 v11, 32, v1
    v_mul_u32_u24 v11, 49, v11
    v_cndmask_b32 v{vD+1}, v{vD}, v13, s[{sTmp}:{sTmp+1}]
    v_lshrrev_b32 v11, 10, v11
    v_mul_u32_u24 v11, {10240-336}, v11
    s_add_u32 s7, s6, {2*SEGB - 2048 + 512}
    v_add3_u32 v{vD2}, v11, v{vL16}, s7
    s_mul_i32 s{sTA}, s{sT}, {TB}
    s_add_u32 s8, s{sTA}, {3*SEGB}
    s_mul_i32 s{sDma}, s{sWave}, {TB}
    s_add_u32 s{sDma}, s{sDma}, {3*SEGB}
    s_mul_i32 s{sM0}, s{sWave}, {K2_TILE}
    s_waitcnt lgkmcnt(0)
    """)
    srd(a, SWS, 12, WS_BYTES)

    m1 = ((1 << 64) - 1) & ~(1 << 52)
    m2 = ((1 << 52) - 1) & ~(1 << 9) & ~(1 << 30) & ~(1 << 51)

    def dma_tile(slot, soff):
        a(f"""
        s_add_u32 m0, s{sM0}, {slot * K2_SLOT}
        {soff}
        buffer_load_dwordx4 v{vD}, {sr(SWS,4)}, s{sTmp} offen lds
        s_mov_b32 exec_hi, 0x{m1 >> 32:08x}
        buffer_load_dwordx4 v{vD+1}, {sr(SWS,4)}, s{sTmp} offen offset:1024 lds
        s_mov_b32 exec_lo, 0x{m2 & 0xffffffff:08x}
        s_mov_b32 exec_hi, 0x{m2 >> 32:08x}
        buffer_load_dwordx4 v{vD2}, {sr(SWS,4)}, s{sTmp} offen offset:2048 lds
        s_mov_b64 exec, -1
        """)

    def dma_chunk(c):
        dma_tile(c % K2_R, f"s_add_u32 s{sTmp}, s{sDma}, {c * 16 * TB}")

    def ones_rows():
        a(f"""
        v_mov_b32 v{VF}, 0x3f803f80
        v_mov_b32 v{VF+1}, 0x3f803f80
        v_mov_b32 v{VF+2}, 0x3f803f80
        v_mov_b32 v{VF+3}, 0x3f803f80
        v_bfe_u32 v11, v1, 2, 2
        v_min_u32 v11, 2, v11
        v_mul_u32_u24 v11, {K2_SLOT}, v11
        v_and_b32 v12, 3, v1
        v_mul_u32_u24 v12, 336, v12
        v_add3_u32 v11, v11, v12, s{sM0}
        ds_write_b128 v11, {vr(VF,4)} offset:{1536+320}
        """)

    def zero_state():
        for r in range(16):
            a(f"v_mov_b32 v{O+r}, 0")
        for r in range(4):
            a(f"v_mov_b32 v{P+4+r}, 0")
            a(f"v_mov_b32 v{VF+4+r}, 0")
        a(f"""
        v_mov_b32 v{vV}, v{vLV}
        s_mov_b32 s{sSlot}, {K2_SLOT}
        s_mov_b32 s{sC}, 0
        """)

    dma_chunk(0)
    a(f"buffer_load_dwordx4 {vr(Q1,4)}, v{vGK1}, {sr(SWS,4)}, s8 offen")
    a(f"buffer_load_dwordx2 {vr(Q2,2)}, v{vGK2}, {sr(SWS,4)}, s8 offen")
    a(f"s_mov_b32 s{sRedo}, 0")
    ones_rows()
    a(f"""
    v_mov_b32 v11, {K2_FLAG}
    v_mov_b32 v12, 0
    ds_write_b32 v11, v12
    s_mul_i32 s3, s{sKh}, {8*K2_TILE}
    v_add_u32 v{vK10}, s3, v{vK1}
    v_add_u32 v{vK20}, s3, v{vK2}
    s_and_b32 s4, s{sHead}, 1
    s_lshl_b32 s5, s4, 2
    v_add_u32 v12, s5, v8
    v_subrev_u32 v13, 20, v12
    v_cmp_gt_u32 s[{sTmp}:{sTmp+1}], 20, v12
    v_cmp_gt_u32 s[{sTmp+2}:{sTmp+3}], 20, v8
    v_mul_u32_u24 v11, 336, v9
    v_cndmask_b32 v12, v13, v12, s[{sTmp}:{sTmp+1}]
    v_cndmask_b32 v12, v8, v12, s[{sTmp+2}:{sTmp+3}]
    v_lshl_add_u32 v11, v12, 4, v11
    s_add_u32 s3, s3, 1536
    v_add_u32 v{vLV}, s3, v11
    """)
    a(f"""
    v_and_b32 v10, 3, v8
    v_bfe_u32 v11, v8, 2, 1
    v_lshl_or_b32 v10, v11, 3, v10
    v_bfe_u32 v11, v8, 3, 1
    v_lshl_or_b32 v10, v11, 2, v10
    v_lshrrev_b32 v11, 4, v8
    v_lshl_or_b32 v14, v11, 4, v10
    v_lshlrev_b32 v10, 4, v10
    v_mul_u32_u24 v11, 20480, v11
    s_mul_i32 s3, s{sHead}, 5
    s_add_u32 s3, s3, 1
    s_lshr_b32 s3, s3, 1
    s_lshl_b32 s3, s3, 8
    v_add3_u32 v10, v10, v11, s3
    v_lshl_add_u32 v{vO}, v9, 8, v10
    s_mul_i32 s5, s4, 760
    s_sub_u32 s5, 512, s5
    v_add_u32 v{vO2}, s5, v10
    s_mul_i32 s3, s{sKh}, {O_BR}
    s_add_u32 s{sO}, s{sTA}, {O_OFF}
    s_add_u32 s{sO}, s{sO}, s3
    s_lshl_b32 s{sTouch}, s15, 4
    s_add_u32 s{sTouch}, s{sTouch}, s{sWave}
    s_mul_i32 s{sTouch}, s{sTouch}, 3200
    s_add_u32 s{sTouch}, s{sTouch}, {WOF_OFF}
    s_and_b32 s3, s{sWave}, 7
    s_mul_i32 s3, s3, 3072
    s_add_u32 s3, s3, {K2_XCH}
    v_add_u32 v{vX}, s3, v{vL16}
    s_add_u32 s3, s9, s{sWave}
    s_max_u32 s3, s3, 1
    s_sub_u32 s3, s3, 1
    s_mul_i32 s{sAD}, s3, {TB}
    s_cmp_gt_u32 s{sWave}, 8
    s_cselect_b32 s{sAD}, 0x40000000, s{sAD}
    """)
    a(f"""
    s_and_b32 s3, s{sWave}, 7
    s_min_u32 s3, s3, 5
    s_lshr_b32 s4, s3, 1
    s_lshl_b32 s4, s4, 4
    s_and_b32 s5, s3, 1
    s_lshl_b32 s5, s5, 2
    s_add_u32 s4, s4, s5
    s_cmp_ge_u32 s3, 4
    s_cselect_b32 s5, 48, 0
    s_sub_u32 s4, s4, s5
    v_lshlrev_b32 v11, 3, v9
    v_sub_u32 v11, v14, v11
    v_subrev_u32 v11, s4, v11
    v_mov_b32 v12, {f32(-1e30)}
    s_lshl_b32 s3, s3, 10
    v_add_u32 v13, s3, v{vL16}
    """)
    for i in range(4):
        a(f"v_subrev_u32 v10, {i}, v11")
        a(f"v_cmp_gt_u32 s[{sTmp+2*i}:{sTmp+2*i+1}], 8, v10")
    a("s_nop 0")
    for i in range(4):
        a(f"v_cndmask_b32 v{P+i}, v12, 0, s[{sTmp+2*i}:{sTmp+2*i+1}]")
    a(f"ds_write_b128 v13, {vr(P,4)} offset:{K2_MASK - 65536*(K2_MASK//65536)}" if K2_MASK < 65536 else
      f"v_add_u32 v13, {K2_MASK}, v13\nds_write_b128 v13, {vr(P,4)}")
    zero_state()
    a("s_waitcnt vmcnt(0) lgkmcnt(0)")
    stamp(a, 2)
    a("s_barrier")

    def maxtree(regs, dst):
        a(f"v_max3_f32 v{dst}, v{regs[0]}, v{regs[1]}, v{regs[2]}")
        i = 3
        while i + 1 < len(regs):
            a(f"v_max3_f32 v{dst}, v{dst}, v{regs[i]}, v{regs[i+1]}")
            i += 2
        if i < len(regs):
            a(f"v_max_f32 v{dst}, v{dst}, v{regs[i]}")
        a(f"v_mov_b32 v{dst+1}, v{dst}")
        a("s_nop 1")
        a(f"v_permlane32_swap_b32 v{dst}, v{dst+1}")
        a("s_nop 1")
        a(f"v_max_f32 v{dst}, v{dst}, v{dst+1}")

    def store_o(D):
        a(f"""
        v_mov_b32 v{vt}, v{O+8}
        v_mov_b32 v{vt+1}, v{O+8}
        s_nop 1
        v_permlane32_swap_b32 v{vt}, v{vt+1}
        s_nop 1
        v_rcp_f32 v{vt}, v{vt+1}
        s_nop 0
        """)
        for r in range(12):
            a(f"v_mul_f32 v{O+r}, v{O+r}, v{vt}")
        for i in range(6):
            a(f"v_cvt_pk_bf16_f32 v{D+i}, v{O+2*i}, v{O+2*i+1}")
        stf = " sc1" if FUSE else K2STF
        a(f"v_permlane32_swap_b32 v{D}, v{D+2}")
        a(f"v_permlane32_swap_b32 v{D+1}, v{D+3}")
        a("s_mov_b32 exec_hi, 0")
        a(f"buffer_store_dwordx2 {vr(D+4,2)}, v{vO2}, {sr(SWS,4)}, s{sO} offen{stf}")
        a("s_mov_b32 exec_hi, -1")
        a(f"buffer_store_dwordx4 {vr(D,4)}, v{vO}, {sr(SWS,4)}, s{sO} offen{stf}")

    def kreads(tile, k1=vK1, k2=vK2):
        o = tile * K2_TILE
        return [f"ds_read_b128 {vr(KF1,4)}, v{k1} offset:{o}",
                f"ds_read_b64 {vr(KF2,2)}, v{k2} offset:{o}"]

    def vread(tile, j):
        return f"ds_read_b128 {vr(VF+4*j,4)}, v{vV} offset:{tile * K2_TILE + 672*j}"

    def qk(sb, c):
        return [f"v_mfma_f32_32x32x16_bf16 {vr(sb,16)}, {vr(KF1,4)}, {vr(Q1,4)}, {c}",
                f"v_mfma_f32_32x32x8_bf16 {vr(sb,16)}, {vr(KF2,2)}, {vr(Q2,2)}, {vr(sb,16)}"]

    stamp(a, 3)
    for l in kreads(0):
        a(l)
    a(f"""
    s_mov_b32 exec_lo, 0
    v_mov_b32 v{Q2}, 0
    v_mov_b32 v{Q2+1}, 0
    s_mov_b32 exec_lo, -1
    s_waitcnt lgkmcnt(0)
    """)
    for l in qk(SB[0], "0"):
        a(l)
    for l in kreads(0, vK10, vK20):
        a(l)
    dma_chunk(1)
    dma_chunk(2)
    maxtree([SB[0] + r for r in range(16)], vt)
    for r in range(16):
        a(f"v_sub_f32 v{NEGM+r}, 0, v{vt}")
    a.label("K2_HAVE_M")
    a(f"""
    v_mov_b32 v{vK1}, v{vK10}
    v_mov_b32 v{vK2}, v{vK20}
    s_waitcnt lgkmcnt(0)
    """)
    for l in qk(SB[0], vr(NEGM, 16)):
        a(l)
    for l in kreads(1):
        a(l)
    a(vread(0, 0))
    a("s_nop 9")
    stamp(a, 4)
    a.raw(".p2align 3")
    a.label("K2_LOOP")
    prio = {0: 3, 3: 2, 5: 1, 7: 0} if 'k2_noprio' not in EXP else {}
    for i in range(8):
        cur, nxt = SB[i % 2], SB[1 - i % 2]
        e = [f"v_exp_f32 v{cur+r}, v{cur+r}" for r in range(16)]
        c = [f"v_cvt_pk_bf16_f32 v{P+j}, v{cur+2*j}, v{cur+2*j+1}" for j in range(8)]
        q = qk(nxt, vr(NEGM, 16))
        pv = [f"v_mfma_f32_32x32x16_bf16 {vr(O,16)}, {vr(VF+4*j,4)}, {vr(P+4*j,4)}, {vr(O,16)}" for j in range(2)]
        kr = kreads((i + 2) % 8)
        if i == 6:
            if STAMP and not FUSE:
                a("s_memtime s[86:87]")
                a("s_waitcnt lgkmcnt(0)")
                for cc in range(4):
                    a(f"s_cmp_eq_u32 s{sC}, {cc}")
                    a(f"s_cselect_b32 s{78+cc}, s86, s{78+cc}")
            a("s_waitcnt vmcnt(0)")
            a("s_barrier")
            if STAMP and not FUSE:
                a("s_memtime s[86:87]")
                a("s_waitcnt lgkmcnt(0)")
                for cc in range(4):
                    a(f"s_cmp_eq_u32 s{sC}, {cc}")
                    a(f"s_cselect_b32 s{82+cc}, s86, s{82+cc}")
            a(f"s_sub_u32 s3, s{sC}, 1")
            a(f"s_cmp_lt_u32 s3, 2")
            a("s_cbranch_scc1 K2_SIDE")
            a.label("K2_SIDE_RET")
            a(f"v_add_u32 v{vK1}, s{sSlot}, v{vK10}")
            a(f"v_add_u32 v{vK2}, s{sSlot}, v{vK20}")
        if (i - 6) % 8 in prio:
            a(f"s_setprio {prio[(i - 6) % 8]}")
        a(e[0]); a(e[1])
        a(pv[1])
        a(vread(i, 1))
        a(e[2]); a(e[3]); a(c[0]); a(e[4]); a(c[1])
        a("s_waitcnt lgkmcnt(1)")
        a(q[0])
        a(e[5]); a(e[6]); a(e[7]); a(c[2]); a(e[8]); a(c[3])
        a(q[1])
        for l in kr:
            a(l)
        a(e[9]); a(e[10]); a(e[11]); a(c[4]); a(e[12]); a(c[5])
        if i == 7:
            a(f"v_add_u32 v{vV}, s{sSlot}, v{vLV}")
        a(pv[0])
        a(vread((i + 1) % 8, 0))
        a(e[13]); a(e[14]); a(e[15]); a(c[6])
        a("s_waitcnt lgkmcnt(3)")
        a(c[7])
        if i == 7:
            a(f"s_add_u32 s{sSlot}, s{sSlot}, {K2_SLOT}")
            a(f"s_cmp_ge_u32 s{sSlot}, {K2_SLOT*K2_R}")
            a(f"s_cselect_b32 s{sSlot}, 0, s{sSlot}")
    a(f"""
    s_add_u32 s{sC}, s{sC}, 1
    s_cmp_lt_u32 s{sC}, 4
    s_cbranch_scc1 K2_LOOP
    v_mfma_f32_32x32x16_bf16 {vr(O,16)}, {vr(VF+4,4)}, {vr(P+4,4)}, {vr(O,16)}
    v_mov_b32 v{vt+3}, {K2_FLAG}
    v_mov_b32 v{vt+4}, 1
    s_mov_b32 s3, {f32(2.0**100)}
    s_add_u32 s4, s{sM0}, {K2_SLOT}
    v_add_u32 v{vK1}, s4, v{vK10}
    v_add_u32 v{vK2}, s4, v{vK20}
    v_add_u32 v{vV}, s4, v{vLV}
    v_add_u32 v{vt+5}, {K2_MASK}, v{vL16}
    s_waitcnt lgkmcnt(0)
    s_nop 4
    """)
    stamp(a, 5)
    a(f"v_mov_b32 v{vt+2}, v{O+8}")
    a("s_mov_b32 exec_hi, 0")
    a(f"v_mul_f32 v{vt+2}, 0, v{O+8}")
    for r in range(9, 12):
        a(f"v_fma_f32 v{vt+2}, v{O+r}, 0, v{vt+2}")
    a("s_mov_b32 exec_hi, -1")
    for r in range(8):
        a(f"v_fma_f32 v{vt+2}, v{O+r}, 0, v{vt+2}")
    a(f"""
    v_cmp_nlt_f32 s[{sTmp}:{sTmp+1}], v{vt+2}, s3
    s_nop 3
    s_cmp_eq_u64 s[{sTmp}:{sTmp+1}], 0
    s_cbranch_scc1 K2_NOFLAG
    ds_write_b32 v{vt+3}, v{vt+4}
    """)
    a.label("K2_NOFLAG")
    a(f"""
    s_cmp_eq_u32 s{sKh}, 0
    s_cbranch_scc0 K2_JOIN
    ds_write_b128 v{vX}, {vr(O,4)}
    ds_write_b128 v{vX}, {vr(O+4,4)} offset:1024
    ds_write_b128 v{vX}, {vr(O+8,4)} offset:2048
    """)
    a.label("K2_JOIN")
    a(f"""
    s_setprio 0
    s_waitcnt lgkmcnt(0)
    s_barrier
    ds_read_b32 v{vt+4}, v{vt+3}
    ds_read_b128 {vr(NEGM,4)}, v{vX}
    ds_read_b128 {vr(NEGM+4,4)}, v{vX} offset:1024
    ds_read_b128 {vr(NEGM+8,4)}, v{vX} offset:2048
    s_waitcnt lgkmcnt(0)
    v_readfirstlane_b32 s3, v{vt+4}
    s_nop 3
    s_cmp_gt_u32 s3, s{sRedo}
    s_cbranch_scc1 K2_FALLBACK
    s_cmp_eq_u32 s{sKh}, 0
    s_cbranch_scc1 K2_ABR
    s_setprio 1
    """)
    stamp(a, 11)
    for r in range(12):
        a(f"v_add_f32 v{O+r}, v{O+r}, v{NEGM+r}")
    a("s_branch K2_STORE")
    a.label("K2_ABR")
    AC = SB
    for g in range(4):
        a(f"ds_read_b128 {vr(AC[0]+4*g,4)}, v{vt+5} offset:{1024*g}")
    for g in range(2):
        a(f"ds_read_b128 {vr(AC[1]+8+4*g,4)}, v{vt+5} offset:{4096+1024*g}")
    for l in kreads(1):
        a(l)
    a(f"""
    ds_read_b128 {vr(AKP1,4)}, v{vK1}
    ds_read_b64 {vr(AKP2,2)}, v{vK2}
    {vread(1, 0)}
    {vread(1, 1)}
    ds_read_b128 {vr(P,4)}, v{vV} offset:672
    s_mov_b32 exec_lo, 0
    v_mov_b32 v{AQ2}, 0
    v_mov_b32 v{AQ2+1}, 0
    s_mov_b32 exec_lo, -1
    s_and_b32 s3, s{sT}, 31
    s_cmp_lg_u32 s3, 0
    s_waitcnt lgkmcnt(3)
    s_cbranch_scc1 K2_HASPREV
    """)
    for r in range(8, 16):
        a(f"v_mov_b32 v{AC[1]+r}, {f32(-1e30)}")
    a("s_nop 1")
    a.label("K2_HASPREV")
    a(f"""
    v_mfma_f32_32x32x16_bf16 {vr(AC[0],16)}, {vr(KF1,4)}, {vr(AQ1,4)}, {vr(AC[0],16)}
    v_mfma_f32_32x32x8_bf16 {vr(AC[0],16)}, {vr(KF2,2)}, {vr(AQ2,2)}, {vr(AC[0],16)}
    v_mfma_f32_32x32x16_bf16 {vr(AC[1],16)}, {vr(AKP1,4)}, {vr(AQ1,4)}, {vr(AC[1],16)}
    v_mfma_f32_32x32x8_bf16 {vr(AC[1],16)}, {vr(AKP2,2)}, {vr(AQ2,2)}, {vr(AC[1],16)}
    s_nop 11
    """)
    aregs = [AC[0] + r for r in range(16)] + [AC[1] + r for r in range(8, 16)]
    maxtree(aregs, vt)
    for r in aregs:
        a(f"v_sub_f32 v{r}, v{r}, v{vt}")
    for r in aregs:
        a(f"v_exp_f32 v{r}, v{r}")
    a("s_waitcnt lgkmcnt(0)")
    AP = NEGM
    for i in range(12):
        a(f"v_cvt_pk_bf16_f32 v{AP+i}, v{aregs[2*i]}, v{aregs[2*i+1]}")
    a(f"""
    s_nop 1
    v_mfma_f32_32x32x16_bf16 {vr(O,16)}, {vr(VF,4)}, {vr(AP,4)}, 0
    v_mfma_f32_32x32x16_bf16 {vr(O,16)}, {vr(VF+4,4)}, {vr(AP+4,4)}, {vr(O,16)}
    v_mfma_f32_32x32x16_bf16 {vr(O,16)}, {vr(P,4)}, {vr(AP+8,4)}, {vr(O,16)}
    s_nop 11
    """)
    stamp(a, 11)
    a.label("K2_STORE")
    store_o(AQ1)
    if FUSE:
        gen_pphase(a, locals())
    if STAMP: a("s_waitcnt vmcnt(0)")
    stamp(a, 6); stamp_rt(a, 7)
    stamp_flush(a, 1, SWS, sWave, 16, 8)
    a.label("K2_END")
    a("s_endpgm")

    a.label("K2_SIDE")
    a("s_cmp_eq_u32 s3, 0")
    a("s_cbranch_scc0 K2_SIDE2")
    dma_chunk(3)
    a("s_branch K2_SIDE_RET")
    a.label("K2_SIDE2")
    dma_tile(1, f"s_mov_b32 s{sTmp}, s{sAD}")
    a(f"""
    buffer_load_dwordx4 {vr(AQ1,4)}, v{vGK1}, {sr(SWS,4)}, s{sTA} offen
    buffer_load_dwordx2 {vr(AQ2,2)}, v{vGK2}, {sr(SWS,4)}, s{sTA} offen
    v_lshlrev_b32 v{vt}, 7, v1
    s_mov_b32 exec_lo, 0x1ffffff
    s_mov_b32 exec_hi, 0
    buffer_load_dword v{vt+1}, v{vt}, {sr(SWS,4)}, s{sTouch} offen
    s_mov_b64 exec, -1
    """)
    if not FUSE:
        a(f"s_cmp_eq_u32 s{sWave}, 15")
        a("s_cbranch_scc0 K2_SIDE_RET")
        code_touch(a, vt + 2, vt, sTmp, "proj_kernel", "CODE_END")
    a("s_branch K2_SIDE_RET")
    a.label("K2_FALLBACK")
    a(f"""
    s_mov_b32 s{sRedo}, 1
    s_mov_b32 s3, {4*SEGB}
    v_mov_b32 v{vt+2}, 0xff800000
    s_barrier
    """)
    ones_rows()
    for c in range(3):
        dma_chunk(c)
    a.label("K2_MAXLOOP")
    a(f"""
    buffer_load_dwordx4 {vr(KF1,4)}, v{vGK1}, {sr(SWS,4)}, s3 offen
    buffer_load_dwordx2 {vr(KF2,2)}, v{vGK2}, {sr(SWS,4)}, s3 offen
    s_waitcnt vmcnt(0)
    """)
    for l in qk(SB[0], "0"):
        a(l)
    a("s_nop 15")
    for r in range(0, 16, 2):
        a(f"v_max3_f32 v{vt+2}, v{vt+2}, v{SB[0]+r}, v{SB[0]+r+1}")
    a(f"""
    s_add_u32 s3, s3, {TB}
    s_cmp_lt_u32 s3, {5*SEGB}
    s_cbranch_scc1 K2_MAXLOOP
    v_mov_b32 v{vt+3}, v{vt+2}
    s_nop 1
    v_permlane32_swap_b32 v{vt+2}, v{vt+3}
    s_nop 1
    v_max_f32 v{vt+2}, v{vt+2}, v{vt+3}
    """)
    for r in range(16):
        a(f"v_sub_f32 v{NEGM+r}, 0, v{vt+2}")
    zero_state()
    a("s_waitcnt lgkmcnt(0)")
    a("s_barrier")
    for l in kreads(0, vK10, vK20):
        a(l)
    a("s_branch K2_HAVE_M")
    if FUSE:
        a.label("CODE_END")
    return kernel_desc(name, NV, NV, 68)


K3_DIST = int(os.environ.get('K3D', '2'))
K3_NS = K3_DIST + 2
K3_LDS = K3_NS * 20480


def gen_k3(a):
    name = "proj_kernel"
    kernel_head(a, name)
    SWS, SOUT = 20, 24
    sWave, sMb, sNb = 16, 17, 18
    sO, sW, sRot, sM0, sOc, sWc = 28, 29, 31, 32, 33, 34
    vL16, vWj, vG, vOut, vOut2 = 2, 3, 7, 8, 9
    ACC = [16, 36]
    OF = 56
    WF = 56 + 16 * (K3_DIST + 1)
    NV = WF + 40
    DIST = K3_DIST
    NO = DIST + 1
    a("s_cmp_ge_u32 s2, 256")
    a("s_cbranch_scc1 K3_END")
    stamp(a, 0); stamp_rt(a, 1)
    a("""
    s_load_dwordx2 s[4:5], s[0:1], 56
    s_load_dwordx2 s[6:7], s[0:1], 72
    v_lshrrev_b32 v9, 6, v0
    v_and_b32 v1, 63, v0
    s_and_b32 s14, s2, 7
    v_readfirstlane_b32 s16, v9
    s_lshr_b32 s15, s2, 3
    s_lshl_b32 s17, s14, 2
    s_and_b32 s3, s15, 3
    s_add_u32 s17, s17, s3
    s_lshr_b32 s18, s15, 2
    v_lshlrev_b32 v2, 4, v1
    """)
    a(f"""
    s_and_b32 s19, s{sNb}, 1
    s_lshr_b32 s{sRot}, s{sNb}, 1
    s_lshl_b32 s3, s{sMb}, 2
    s_add_u32 s3, s3, s{sWave}
    s_mul_i32 s{sO}, s3, 20480
    s_add_u32 s{sO}, s{sO}, {O_OFF}
    s_mul_i32 s{sW}, s{sNb}, {5*20480}
    s_lshl_b32 s14, s{sWave}, 10
    s_add_u32 s{sW}, s{sW}, s14
    s_add_u32 s{sW}, s{sW}, {WOF_OFF}
    s_mov_b32 s{sM0}, s14
    s_mul_i32 s14, s19, {O_BR}
    s_mul_i32 s15, s19, {WOF_BR}
    s_sub_u32 s36, {O_BR}, s14
    s_sub_u32 s37, {WOF_BR}, s15
    s_add_u32 s36, s36, s{sO}
    s_add_u32 s37, s37, s{sW}
    s_add_u32 s{sO}, s{sO}, s14
    s_add_u32 s{sW}, s{sW}, s15
    s_waitcnt lgkmcnt(0)
    """)
    srd(a, SWS, 6, WS_BYTES)
    srd(a, SOUT, 4, 2621440)

    def load_items(g):
        pre = []
        if g == 5:
            pre += [f"s_mov_b32 s{sO}, s36", f"s_mov_b32 s{sW}, s37"]
        pre += [f"s_lshl_b32 s14, s{sRot}, 12",
                f"s_add_u32 s{sOc}, s{sO}, s14",
                f"s_add_u32 s{sWc}, s{sW}, s14",
                f"s_add_u32 s{sRot}, s{sRot}, 1",
                f"s_cmp_ge_u32 s{sRot}, 5",
                f"s_cselect_b32 s{sRot}, 0, s{sRot}"]
        items = []
        for k in range(4):
            items.append([f"buffer_load_dwordx4 {vr(OF + (g % NO) * 16 + 4 * k, 4)}, v{vL16}, {sr(SWS,4)}, s{sOc} offen offset:{1024*k}"])
        for nt in range(5):
            items.append([f"s_add_u32 m0, s{sM0}, {(g % K3_NS) * 20480 + nt * 4096}",
                          f"s_add_u32 s{sWc}, s{sWc}, 20480" if nt else "s_nop 0",
                          f"buffer_load_dwordx4 v{vL16}, {sr(SWS,4)}, s{sWc} offen lds"])
        items[0] = pre + items[0]
        return items

    def loads(g):
        for it in load_items(g):
            for l in it:
                a(l)

    if 'k3_wfirst' in EXP and DIST == 2:
        i0 = load_items(0)
        pre0, o0first = i0[0][:-1], i0[0][-1]
        for l in pre0: a(l)
        a(f"s_mov_b32 s40, s{sOc}")
        for it in i0[4:]:
            for l in it: a(l)
        for l in [o0first] + [it[0] for it in i0[1:4]]:
            a(l)
        i1 = load_items(1)
        for it in i1:
            for l in it: a(l)
    else:
        for g in range(DIST):
            loads(g)
    a(f"""
    v_and_b32 v9, 15, v1
    v_lshlrev_b32 v10, 2, v9
    s_lshl_b32 s14, s3, 6
    s_add_u32 s35, s14, {G_OFF}
    v_lshrrev_b32 v11, 4, v1
    v_mul_u32_u24 v12, 2560, v9
    v_and_b32 v13, 1, v11
    v_lshlrev_b32 v13, 5, v13
    v_lshrrev_b32 v14, 1, v11
    v_lshlrev_b32 v14, 4, v14
    v_add3_u32 v{vOut}, v12, v13, v14
    v_lshl_add_u32 v{vOut2}, v11, 3, v12
    v_add_u32 v{vWj}, 40960, v{vL16}
    v_add_u32 v{vWj+1}, 81920, v{vL16}
    s_and_b32 s14, s3, 63
    s_mul_i32 s14, s14, {16*2560}
    s_lshr_b32 s15, s3, 6
    s_mul_i32 s15, s15, 1280
    s_add_u32 s30, s14, s15
    s_mul_i32 s15, s{sNb}, 160
    s_add_u32 s30, s30, s15
    """)

    def wread(g, k):
        slot = g % K3_NS
        base, off = ((vL16, vWj, vWj + 1)[slot // 2], (slot % 2) * 20480)
        return [f"ds_read_b128 {vr(WF + (k % 2) * 20 + 4 * nt, 4)}, v{base} offset:{off + nt*4096 + k*1024}" for nt in range(5)]

    for g in range(10):
        if g == 0: stamp(a, 2)
        n_after = 9 * (min(10, g + DIST) - 1 - g) + (1 if g == 9 else 0)
        a(f"s_waitcnt vmcnt({n_after})")
        a("s_barrier")
        if g == 0: stamp(a, 3)
        for l in wread(g, 0):
            a(l)
        items = load_items(g + DIST) if g + DIST < 10 else []
        if g == 8:
            items = [[f"buffer_load_dword v{vG}, v10, {sr(SWS,4)}, s35 offen"]]
        if items:
            for l in items.pop(0):
                a(l)
        acc = ACC[g // 5]
        for k in range(4):
            if k < 3:
                for l in wread(g, k + 1):
                    a(l)
                a("s_waitcnt lgkmcnt(5)")
            else:
                a("s_waitcnt lgkmcnt(0)")
            for nt in range(5):
                d = vr(acc + 4 * nt, 4)
                c = "0" if (g % 5 == 0 and k == 0) else d
                a(f"v_mfma_f32_16x16x32_bf16 {d}, {vr(WF + (k % 2) * 20 + 4 * nt, 4)}, {vr(OF + (g % NO) * 16 + 4 * k, 4)}, {c}")
                if nt in (1, 3) and items:
                    for l in items.pop(0):
                        a(l)
        assert not items
    stamp(a, 4)
    a(f"""
    s_waitcnt vmcnt(0)
    v_sub_f32 v10, 1.0, v{vG}
    s_cmp_eq_u32 s19, 0
    s_cselect_b64 s[38:39], -1, 0
    v_cndmask_b32 v11, v10, v{vG}, s[38:39]
    v_cndmask_b32 v10, v{vG}, v10, s[38:39]
    """)
    A0, A1 = ACC
    for i in range(20):
        a(f"v_mul_f32 v{A0+i}, v{A0+i}, v11")
    for i in range(20):
        a(f"v_fma_f32 v{A0+i}, v{A1+i}, v10, v{A0+i}")
    for pr in range(2):
        b0 = A0 + pr * 8
        b1 = b0 + 4
        a(f"v_cvt_pk_bf16_f32 v{b0}, v{b0}, v{b0+1}")
        a(f"v_cvt_pk_bf16_f32 v{b0+1}, v{b0+2}, v{b0+3}")
        a(f"v_cvt_pk_bf16_f32 v{b0+2}, v{b1}, v{b1+1}")
        a(f"v_cvt_pk_bf16_f32 v{b0+3}, v{b1+2}, v{b1+3}")
        a("s_nop 1")
        a(f"v_permlane16_swap_b32 v{b0}, v{b0+2}")
        a(f"v_permlane16_swap_b32 v{b0+1}, v{b0+3}")
        a("s_nop 0")
        a(f"buffer_store_dwordx4 {vr(b0,4)}, v{vOut}, {sr(SOUT,4)}, s30 offen offset:{pr*64}")
    b0 = A0 + 16
    a(f"v_cvt_pk_bf16_f32 v{b0}, v{b0}, v{b0+1}")
    a(f"v_cvt_pk_bf16_f32 v{b0+1}, v{b0+2}, v{b0+3}")
    a(f"buffer_store_dwordx2 {vr(b0,2)}, v{vOut2}, {sr(SOUT,4)}, s30 offen offset:128")
    stamp(a, 5)
    if STAMP: a("s_waitcnt vmcnt(0)")
    stamp(a, 6); stamp_rt(a, 7)
    stamp_flush(a, 2, SWS, sWave, 8, 10)
    a.label("K3_END")
    a("s_endpgm")
    a.label("CODE_END")
    return kernel_desc(name, NV, NV, 44)


def gen_diag(a):
    name = "diag_kernel"
    kernel_head(a, name)
    a("""
    s_cmp_ge_u32 s2, 1
    s_cbranch_scc1 KD_END
    s_load_dwordx4 s[4:7], s[0:1], 64
    s_waitcnt lgkmcnt(0)
    """)
    srd(a, 8, 6, WS_BYTES)
    srd(a, 12, 4, 256)
    a("v_lshlrev_b32 v1, 10, v0")
    a("v_mov_b32 v2, 0")
    for k, waves, idx in ((0, (0, 3), (3, 4)), (1, (0, 15), (3, 5)), (2, (0, 3), (3, 4))):
        for wi, w in enumerate(waves):
            a(f"s_mov_b32 s16, {DBG_OFF + k*(1<<18) + w*64}")
            a("buffer_load_dwordx4 v[4:7], v1, s[8:11], s16 offen")
            a("buffer_load_dwordx4 v[8:11], v1, s[8:11], s16 offen offset:16")
            a("s_waitcnt vmcnt(0)")
            a("v_not_b32 v12, v5")
            a(f"buffer_atomic_umax v12, v2, s[12:15], 0 offen offset:{k*20}")
            a(f"buffer_atomic_umax v11, v2, s[12:15], 0 offen offset:{k*20+4}")
            if wi == 0:
                a(f"v_sub_u32 v12, v{4+idx[0]}, v4")
                a(f"buffer_atomic_add v12, v2, s[12:15], 0 offen offset:{k*20+8}")
                a(f"v_sub_u32 v13, v{4+idx[1]}, v4")
                a(f"buffer_atomic_add v13, v2, s[12:15], 0 offen offset:{k*20+12}")
                a(f"v_sub_u32 v14, v10, v4")
                a(f"buffer_atomic_add v14, v2, s[12:15], 0 offen offset:{k*20+16}")
            a("s_waitcnt vmcnt(0)")
    a.label("KD_END")
    a("s_endpgm")
    return kernel_desc(name, 16, 16, 24)


def main():
    global STAMP
    if "--stamp" in sys.argv:
        STAMP = True
        sys.argv.remove("--stamp")
    ref = open(OUT + ".ref").read().split("\n")
    head = [l for l in ref if l.startswith(";") and "@launch" not in l]
    a = Asm()
    for l in head:
        a.raw(l)
    a.raw(f"; @launch kernel=qkv_kernel grid=(256,1,1) block=(512,1,1) lds={K1_LDS}")
    a.raw(f"; @launch kernel=attn_kernel grid=(256,1,1) block=(1024,1,1) lds={K2_LDS}")
    if not FUSE:
        a.raw(f"; @launch kernel=proj_kernel grid=(256,1,1) block=(256,1,1) lds={K3_LDS}")
    if 'diag' in EXP:
        a.raw("; @launch kernel=diag_kernel grid=(1,1,1) block=(256,1,1) lds=0")
    a.raw('.amdgcn_target "amdgcn-amd-amdhsa--gfx950"')
    a.raw(".text")
    d = [gen_k1(a), gen_k2(a)] + ([] if FUSE else [gen_k3(a)]) + ([gen_diag(a)] if 'diag' in EXP else [])
    a.raw('.section .rodata,"a"')
    for x in d:
        a.raw(".p2align 6")
        a.raw(x.rstrip("\n"))
    out = sys.argv[1] if len(sys.argv) > 1 else OUT
    open(out, "w").write(a.text())
    print("wrote", out, len(a.L), "lines")


if __name__ == "__main__":
    main()
```

```python
import sys, math, struct, os
EXP = os.environ.get('EXP', '').split(',')

NAME = "gated_mix__sliding_local_dilated__mha_block__prompt"
OUT = f"cdna_kernels/{NAME}.s"

SEGB = 2621440
TB = 40960
O_OFF = 16 << 20
O_BR = 2621440
WOF_OFF = 24 << 20
WOF_BR = 819200
G_OFF = 28 << 20
WS_BYTES = 32 << 20
QSCALE = (20 ** -0.5) * math.log2(math.e)


def f32(x):
    return "0x%08x" % struct.unpack("<I", struct.pack("<f", x))[0]


def pi5(i):
    return (i & ~12) | ((i & 4) << 1) | ((i & 8) >> 1)


class Asm:
    def __init__(self):
        self.L = []

    def __call__(self, s):
        for l in s.strip("\n").split("\n"):
            self.L.append("    " + l.strip())

    def label(self, l):
        self.L.append(l + ":")

    def raw(self, s):
        self.L.append(s)

    def text(self):
        return "\n".join(self.L) + "\n"


def vr(b, n=1, p="v"):
    return f"{p}{b}" if n == 1 else f"{p}[{b}:{b+n-1}]"


def ar(b, n=1):
    return vr(b, n, "a")


def sr(b, n=1):
    return vr(b, n, "s")


STAMP = False
K2STF = ' sc1' if 'k2_sc1' in EXP else ''
DBG_OFF = 30 << 20


def stamp(a, idx, sbase=70):
    if not STAMP:
        return
    a(f"s_memtime s[{sbase+16}:{sbase+17}]")
    a("s_waitcnt lgkmcnt(0)")
    a(f"s_mov_b32 s{sbase+idx}, s{sbase+16}")


def stamp_rt(a, idx, sbase=70):
    if not STAMP:
        return
    a(f"s_memrealtime s[{sbase+16}:{sbase+17}]")
    a("s_waitcnt lgkmcnt(0)")
    a(f"s_mov_b32 s{sbase+idx}, s{sbase+16}")


def stamp_flush(a, kidx, srd_ws, swave, n, vtmp, sbase=70, shift=4):
    if not STAMP:
        return
    a("s_mov_b64 exec, -1")
    a(f"s_lshl_b32 s{sbase+16}, s2, 4")
    a(f"s_add_u32 s{sbase+16}, s{sbase+16}, s{swave}")
    a(f"s_lshl_b32 s{sbase+16}, s{sbase+16}, 6")
    a(f"s_add_u32 s{sbase+16}, s{sbase+16}, {DBG_OFF + kidx*(1<<18)}")
    a(f"v_mov_b32 v{vtmp+1}, 0")
    for i in range(n):
        a(f"v_mov_b32 v{vtmp}, s{sbase+i}")
        a(f"buffer_store_dword v{vtmp}, v{vtmp+1}, s[{srd_ws}:{srd_ws+3}], s{sbase+16} offen offset:{4*i}")


def kernel_head(a, name):
    a.raw(f".globl {name}")
    a.raw(".p2align 8")
    a.raw(f".type {name},@function")
    a.label(name)


def kernel_desc(name, vgpr_total, accum, sgpr):
    return f""".amdhsa_kernel {name}
  .amdhsa_next_free_vgpr {vgpr_total}
  .amdhsa_next_free_sgpr {96 if STAMP else sgpr}
  .amdhsa_accum_offset {accum}
  .amdhsa_group_segment_fixed_size 0
  .amdhsa_kernarg_size 80
  .amdhsa_user_sgpr_count 2
  .amdhsa_user_sgpr_kernarg_segment_ptr 1
  .amdhsa_system_sgpr_workgroup_id_x 1
.end_amdhsa_kernel
"""


def srd(a, d, base, nbytes):
    a(f"s_mov_b32 s{d}, s{base}")
    a(f"s_mov_b32 s{d+1}, s{base+1}")
    a(f"s_mov_b32 s{d+2}, {nbytes}")
    a(f"s_mov_b32 s{d+3}, 0x00020000")


K1_WST = 16896
K1_NSW = 6 if 'k1_nsw6' in EXP else 5
K1_NSX = 3
K1_XB = K1_WST * K1_NSW
K1_LDS = K1_XB + K1_NSX * 16384


STF = '' if 'k1_plain' in EXP else (' nt' if 'k1_nt' in EXP else (' sc1 nt' if 'k1_sc1nt' in EXP else (' sc0 sc1 nt' if 'k1_all' in EXP else ' sc1')))


def gen_k1(a):
    name = "qkv_kernel"
    kernel_head(a, name)
    SX, SW, SR = 20, 24, 28
    sWave = 19
    a("s_cmp_ge_u32 s2, 256")
    a("s_cbranch_scc1 K1_END")
    stamp(a, 0); stamp_rt(a, 1)
    a("""
    s_load_dwordx4 s[4:7], s[0:1], 0
    s_load_dwordx2 s[8:9], s[0:1], 32
    s_load_dwordx2 s[10:11], s[0:1], 72
    """)
    if 'noct' not in EXP:
        code_touch(a, 31, 30, 52, "K1_CT0", "attn_kernel", lane="v0")
        a.label("K1_CT0")
    a("""
    v_lshrrev_b32 v2, 6, v0
    v_and_b32 v1, 63, v0
    s_and_b32 s12, s2, 7
    v_readfirstlane_b32 s19, v2
    s_cmp_ge_u32 s2, 240
    s_cbranch_scc1 K1_SIDE
    s_lshr_b32 s13, s2, 3
    s_mul_i32 s12, s12, 30
    s_add_u32 s12, s12, s13
    s_cmp_ge_u32 s12, 120
    s_cselect_b32 s14, 1, 0
    s_cselect_b32 s13, 120, 0
    s_sub_u32 s12, s12, s13
    s_and_b32 s15, s12, 7
    s_lshr_b32 s16, s12, 3
    v_and_b32 v3, 15, v1
    v_lshrrev_b32 v4, 4, v1
    """)
    a(f"""
    s_cmp_ge_u32 s{sWave}, 4
    s_cselect_b32 s12, 1, 0
    s_lshr_b32 s12, s{sWave}, s12
    s_and_b32 s12, s12, 1
    s_lshl_b32 s17, s16, 1
    s_add_u32 s17, s17, s12
    s_cmp_ge_u32 s17, 15
    s_cselect_b32 s18, 1, 0
    s_cselect_b32 s13, 15, 0
    s_sub_u32 s17, s17, s13
    s_movk_i32 s60, 3840
    s_mov_b32 s62, 2621440
    s_movk_i32 s63, 128
    s_cmp_ge_u32 s{sWave}, 4
    s_cbranch_scc0 K1_COMPUTE
    """)
    vW, vXg = 8, 12
    sWo, sXo, sWl, sXl, sWc, sXc, sOrd = 32, 33, 34, 35, 36, 37, 38
    K1_D = int(os.environ.get('K1D', '2'))
    ORD = []
    for g in range(4):
        o = list(range(10))
        for b in range(10):
            if b % 4 == g and K1_D:
                p = o.index(b)
                o.pop(p)
                o.insert(max(0, p - K1_D), b)
        ORD.append(sum(b << (4 * i) for i, b in enumerate(o)))
    a(f"""
    v_lshrrev_b32 v5, 1, v4
    v_and_b32 v6, 1, v4
    v_lshlrev_b32 v5, 4, v5
    v_lshl_add_u32 v5, v6, 2, v5
    v_mul_u32_u24 v5, 3840, v5
    v_lshl_add_u32 v{vW}, v3, 4, v5
    v_add_u32 v{vW+1}, 2784, v{vW}
    v_add_u32 v{vW+2}, {2*2784}, v{vW}
    v_add_u32 v{vW+3}, {3*2784}, v{vW}
    v_lshrrev_b32 v5, 3, v1
    v_and_b32 v6, 7, v1
    v_xor_b32 v6, v6, v5
    v_mul_u32_u24 v5, 2560, v5
    v_lshl_add_u32 v{vXg}, v6, 4, v5
    v_add_u32 v{vXg+1}, 19456, v{vXg}
    v_add_u32 v{vXg+2}, {2*19456}, v{vXg}
    v_add_u32 v{vXg+3}, {3*19456}, v{vXg}
    s_and_b32 s13, s{sWave}, 1
    s_mul_i32 s{sWo}, s13, {8*3840}
    s_lshl_b32 s3, s17, 8
    s_add_u32 s{sWo}, s{sWo}, s3
    s_and_b32 s3, s{sWave}, 3
    s_mul_i32 s{sWl}, s3, {4*1056}
    s_lshl_b32 s{sXl}, s3, 12
    s_add_u32 s{sXl}, s{sXl}, {K1_XB}
    s_lshl_b32 s13, s15, 2
    s_add_u32 s13, s13, s3
    s_mul_i32 s{sXo}, s13, {32*2560}
    s_mul_i32 s13, s14, 1280
    s_add_u32 s{sXo}, s{sXo}, s13
    s_add_u32 s3, s15, s16
    s_and_b32 s3, s3, 3
    s_mov_b32 s{sOrd}, {ORD[0] & 0xffffffff}
    s_mov_b32 s{sOrd+1}, {ORD[0] >> 32}
    s_cmp_eq_u32 s3, 1
    s_cselect_b32 s{sOrd}, {ORD[1] & 0xffffffff}, s{sOrd}
    s_cselect_b32 s{sOrd+1}, {ORD[1] >> 32}, s{sOrd+1}
    s_cmp_eq_u32 s3, 2
    s_cselect_b32 s{sOrd}, {ORD[2] & 0xffffffff}, s{sOrd}
    s_cselect_b32 s{sOrd+1}, {ORD[2] >> 32}, s{sOrd+1}
    s_cmp_eq_u32 s3, 3
    s_cselect_b32 s{sOrd}, {ORD[3] & 0xffffffff}, s{sOrd}
    s_cselect_b32 s{sOrd+1}, {ORD[3] >> 32}, s{sOrd+1}
    s_cmp_eq_u32 s18, 0
    s_waitcnt lgkmcnt(0)
    s_cselect_b64 s[6:7], s[6:7], s[8:9]
    """)
    srd(a, SX, 4, 2621440)
    srd(a, SW, 6, 2457600)
    if STAMP:
        srd(a, SR, 10, WS_BYTES)
    hist = []

    def blk(j, dst):
        r = sOrd + (j // 8)
        a(f"s_bfe_u32 s{dst}, s{r}, {(4 << 16) | (4 * (j % 8))}")

    def wl(k):
        a(f"s_add_u32 m0, s{sWl}, {(k % K1_NSW) * K1_WST}")
        if k % 2 == 0:
            blk(k // 2, sWc)
            a(f"s_mul_i32 s{sWc}, s{sWc}, {2*122880}")
            a(f"s_add_u32 s{sWc}, s{sWc}, s{sWo}")
        else:
            a(f"s_add_u32 s{sWc}, s{sWc}, 122880")
        for i in range(4):
            a(f"buffer_load_dwordx4 v{vW+i}, {sr(SW,4)}, s{sWc} offen offset:{1056*i} lds")
        hist.append(("W", k))

    def xl(j):
        a(f"s_add_u32 m0, s{sXl}, {(j % K1_NSX) * 16384}")
        blk(j, sXc)
        a(f"s_lshl_b32 s{sXc}, s{sXc}, 7")
        a(f"s_add_u32 s{sXc}, s{sXc}, s{sXo}")
        for q in range(4):
            a(f"buffer_load_dwordx4 v{vXg+q}, {sr(SX,4)}, s{sXc} offen offset:{1024*q} lds")
        hist.append(("X", j))

    def need(ks):
        req = [("W", ks), ("X", ks // 2)]
        last = max(hist.index(r) for r in req)
        a(f"s_waitcnt vmcnt({4 * (len(hist) - 1 - last)})")
        a("s_barrier")

    seq = []
    for j in range(10):
        seq += [("X", j), ("W", 2 * j), ("W", 2 * j + 1)]
    pos = [0]

    def free_at(it):
        t, i = it
        if t == "W":
            return i - K1_NSW
        return 2 * (i - K1_NSX) + 1

    def issue(step, nmax):
        n = 0
        while pos[0] < len(seq) and n < nmax and free_at(seq[pos[0]]) <= step:
            t, i = seq[pos[0]]
            (wl if t == "W" else xl)(i)
            pos[0] += 1
            n += 1
    RAMP = [int(c) for c in os.environ.get('K1RAMP', '32222')]
    issue(-2, RAMP[0])
    stamp(a, 2)
    need(0)
    stamp(a, 3)
    issue(-1, RAMP[1])
    for ks in range(19):
        need(ks + 1)
        if ks % 2 == 1 and ks <= 15: stamp(a, 8 + ks // 2)
        issue(ks, RAMP[ks + 2] if ks + 2 < len(RAMP) else RAMP[-1])
    assert pos[0] == len(seq)
    a("s_barrier")
    stamp(a, 4); stamp(a, 5); stamp(a, 6); stamp_rt(a, 7)
    stamp_flush(a, 0, SR, sWave, 16, 2)
    a("s_endpgm")

    a.label("K1_COMPUTE")
    ACC = 32
    WFR = [0, 32]
    XFR = [64, 80]
    vTr0, vTr, vXr0, vXr, vSt = 8, 9, 10, 12, 14
    sRd, sXr, sIt, sSt, sSeg = 32, 33, 34, 36, 35
    TOUCH = 'k1_touch' in EXP
    ST, sTo, sTs = 44, 42, 43
    TD = 5
    if TOUCH:
        a(f"""
        v_lshrrev_b32 v5, 1, v1
        v_and_b32 v6, 1, v1
        v_lshlrev_b32 v6, 7, v6
        v_mad_u32_u24 v16, v5, s60, v6
        v_mul_u32_u24 v17, 2560, v1
        s_mul_i32 s{sTo}, s15, {8*3840}
        s_lshl_b32 s3, s17, 8
        s_add_u32 s{sTo}, s{sTo}, s3
        s_add_u32 s{sTo}, s{sTo}, {3*64*3840}
        s_lshl_b32 s3, s15, 3
        s_and_b32 s13, s16, 3
        s_lshl_b32 s13, s13, 1
        s_add_u32 s3, s3, s13
        s_and_b32 s13, s{sWave}, 1
        s_add_u32 s3, s3, s13
        s_mul_i32 s3, s3, {16*2560}
        s_mul_i32 s13, s14, 1280
        s_add_u32 s3, s3, s13
        s_add_u32 s3, s3, {3*128}
        s_cmp_eq_u32 s18, 0
        s_waitcnt lgkmcnt(0)
        s_cselect_b64 s[6:7], s[6:7], s[8:9]
        s_cmp_lt_u32 s{sWave}, 2
        s_cselect_b64 s[{ST}:{ST+1}], s[6:7], s[4:5]
        s_cselect_b32 s{ST+2}, 2457600, s62
        s_mov_b32 s{ST+3}, 0x00020000
        s_cselect_b32 s{sTo}, s{sTo}, s3
        s_cselect_b32 s{sTs}, {64*3840}, s63
        s_cselect_b64 s[50:51], -1, 0
        v_cndmask_b32 v16, v17, v16, s[50:51]
        v_cmp_gt_u32 s[50:51], 16, v1
        v_mov_b32 v17, 0x40000000
        s_nop 0
        v_cndmask_b32 v16, v17, v16, s[50:51]
        """)
        for b in range(3, TD):
            a(f"buffer_load_dword v18, v16, {sr(ST,4)}, s{sTo} offen")
            a(f"s_add_u32 s{sTo}, s{sTo}, s{sTs}")
    a(f"""
    v_and_b32 v5, 1, v4
    v_lshrrev_b32 v6, 2, v3
    v_lshl_add_u32 v5, v5, 2, v6
    v_mul_u32_u24 v5, 1056, v5
    v_lshrrev_b32 v6, 1, v4
    v_lshlrev_b32 v6, 9, v6
    v_and_b32 v7, 3, v3
    v_lshlrev_b32 v7, 3, v7
    v_add3_u32 v5, v5, v6, v7
    s_mul_i32 s3, s12, 8448
    v_add_u32 v{vTr0}, s3, v5
    v_and_b32 v5, 3, v3
    v_bfe_u32 v6, v3, 2, 1
    v_lshl_or_b32 v5, v6, 3, v5
    v_bfe_u32 v6, v3, 3, 1
    v_lshl_or_b32 v5, v6, 2, v5
    v_and_b32 v6, 7, v5
    v_xor_b32 v6, v6, v4
    v_lshlrev_b32 v6, 4, v6
    v_lshl_add_u32 v5, v5, 7, v6
    s_lshr_b32 s13, s{sWave}, 1
    s_lshl_b32 s3, s13, 13
    s_add_u32 s3, s3, {K1_XB}
    v_add_u32 v{vXr0}, s3, v5
    v_xor_b32 v{vXr0+1}, 64, v{vXr0}
    v_mov_b32 v{vXr}, v{vXr0}
    v_mov_b32 v{vXr+1}, v{vXr0+1}
    v_mov_b32 v{vTr}, v{vTr0}
    s_mov_b32 s{sRd}, {K1_WST}
    s_mov_b32 s{sXr}, 16384
    s_mov_b32 s{sIt}, 0
    s_mul_i32 s{sSeg}, s17, 52
    s_lshr_b32 s{sSeg}, s{sSeg}, 8
    s_mul_i32 s3, s{sSeg}, 5
    s_sub_u32 s17, s17, s3
    s_mul_i32 s3, s18, 3
    s_add_u32 s3, s3, s{sSeg}
    s_mul_i32 s{sSt}, s3, {SEGB}
    s_lshl_b32 s3, s14, 4
    s_lshl_b32 s16, s15, 1
    s_add_u32 s3, s3, s16
    s_add_u32 s3, s3, s13
    s_mul_i32 s3, s3, {2*TB}
    s_add_u32 s{sSt}, s{sSt}, s3
    s_waitcnt lgkmcnt(0)
    """)
    srd(a, SR, 10, WS_BYTES)
    for i in range(128):
        a(f"v_mov_b32 v{ACC+i}, 0")

    def reads(fset, kk):
        L = [f"ds_read_b128 {ar(XFR[fset]+4*mt,4)}, v{vXr+kk} offset:{2048*mt}" for mt in range(4)]
        for t in range(8):
            for s in range(2):
                L.append(f"ds_read_b64_tr_b16 {ar(WFR[fset]+4*t+2*s,2)}, v{vTr} offset:{s*256 + t*32}")
        return L

    stamp(a, 2)
    a("s_barrier")
    stamp(a, 3)
    for l in reads(0, 0):
        a(l)
    a(f"s_cmp_eq_u32 s{sSeg}, 2")
    a("s_cbranch_scc1 K1_LOOP_N")
    for ori in ("T", "N"):
        a.raw(".p2align 3")
        a.label(f"K1_LOOP_{ori}")
        for s in range(2):
            fs = s
            rd = reads(1 - fs, 1 - s)
            mf = []
            for t in range(8):
                for mt in range(4):
                    acc = vr(ACC + (t * 4 + mt) * 4, 4)
                    w = ar(WFR[fs] + 4 * t, 4)
                    x = ar(XFR[fs] + 4 * mt, 4)
                    if ori == "T":
                        mf.append(f"v_mfma_f32_16x16x32_bf16 {acc}, {w}, {x}, {acc}")
                    else:
                        mf.append(f"v_mfma_f32_16x16x32_bf16 {acc}, {x}, {w}, {acc}")
            a(f"v_add_u32 v{vTr}, s{sRd}, v{vTr0}")
            rest = [f"s_add_u32 s{sRd}, s{sRd}, {K1_WST}",
                    f"s_cmp_ge_u32 s{sRd}, {K1_XB}",
                    f"s_cselect_b32 s{sRd}, 0, s{sRd}"]
            if s == 0 and TOUCH:
                rest += [f"s_cmp_lt_u32 s{sIt}, {10-TD}",
                         f"s_cselect_b32 s{sTo}, s{sTo}, 0x40000000",
                         f"buffer_load_dword v18, v16, {sr(ST,4)}, s{sTo} offen",
                         f"s_add_u32 s{sTo}, s{sTo}, s{sTs}"]
            if s == 1:
                a(f"v_add_u32 v{vXr}, s{sXr}, v{vXr0}")
                rest += [f"v_add_u32 v{vXr+1}, s{sXr}, v{vXr0+1}",
                         f"s_add_u32 s{sXr}, s{sXr}, 16384",
                         f"s_cmp_ge_u32 s{sXr}, {K1_NSX*16384}",
                         f"s_cselect_b32 s{sXr}, 0, s{sXr}",
                         f"s_add_u32 s{sIt}, s{sIt}, 1",
                         f"s_cmp_lt_u32 s{sIt}, 10"]
            a("s_waitcnt lgkmcnt(0)")
            a("s_barrier")
            fill = rd + rest
            for i in range(32):
                a(mf[i])
                if i < len(fill):
                    a(fill[i])
        a(f"s_cbranch_scc1 K1_LOOP_{ori}")
        stamp(a, 4)
        if ori == "T":
            a(f"""
            s_lshl_b32 s3, s17, 13
            s_add_u32 s{sSt}, s{sSt}, s3
            s_add_u32 s{sSt+1}, s{sSt}, 4096
            s_add_u32 s{sSt+2}, s{sSt}, {TB}
            s_add_u32 s{sSt+3}, s{sSt+1}, {TB}
            s_cmp_eq_u32 s{sSeg}, 0
            s_cselect_b32 s40, {f32(QSCALE)}, 1.0
            s_mov_b32 s41, s40
            v_lshlrev_b32 v{vSt}, 4, v1
            s_nop 3
            """)
        else:
            a(f"""
            s_lshl_b32 s3, s17, 11
            s_add_u32 s{sSt}, s{sSt}, s3
            s_add_u32 s{sSt+2}, s{sSt}, {TB}
            v_mul_u32_u24 v5, 10240, v4
            v_lshl_add_u32 v{vSt}, v3, 4, v5
            s_nop 7
            """)
        for t in range(8):
            for mp in range(2):
                b0 = ACC + (t * 4 + 2 * mp) * 4
                b1 = b0 + 4
                if ori == "T":
                    for i in range(4):
                        a(f"v_pk_mul_f32 {vr(b0+2*i,2)}, {vr(b0+2*i,2)}, s[40:41]")
                a(f"v_cvt_pk_bf16_f32 v{b0}, v{b0}, v{b0+1}")
                a(f"v_cvt_pk_bf16_f32 v{b0+1}, v{b0+2}, v{b0+3}")
                a(f"v_cvt_pk_bf16_f32 v{b0+2}, v{b1}, v{b1+1}")
                a(f"v_cvt_pk_bf16_f32 v{b0+3}, v{b1+2}, v{b1+3}")
                a("s_nop 1")
                sw = "v_permlane16_swap_b32" if ori == "T" else "v_permlane32_swap_b32"
                a(f"{sw} v{b0}, v{b0+2}")
                a(f"{sw} v{b0+1}, v{b0+3}")
                a("s_nop 0")
                if ori == "T":
                    a(f"buffer_store_dwordx4 {vr(b0,4)}, v{vSt}, {sr(SR,4)}, s{sSt + 2*mp + t//4} offen offset:{(t%4)*1024}{STF}")
                else:
                    a(f"buffer_store_dwordx4 {vr(b0,4)}, v{vSt}, {sr(SR,4)}, s{sSt + 2*mp} offen offset:{t*256}{STF}")
        stamp(a, 5)
        if STAMP: a("s_waitcnt vmcnt(0)")
        stamp(a, 6); stamp_rt(a, 7)
        stamp_flush(a, 0, SR, sWave, 8, 2)
        a("s_endpgm")

    a.label("K1_SIDE")
    SGW, SWO = 32, 36
    a(f"""
    s_load_dwordx2 s[46:47], s[0:1], 16
    s_load_dwordx4 s[12:15], s[0:1], 40
    s_sub_u32 s16, s2, 240
    s_lshl_b32 s16, s16, 3
    s_add_u32 s16, s16, s{sWave}
    v_lshlrev_b32 v2, 2, v1
    v_lshlrev_b32 v5, 4, v1
    v_lshrrev_b32 v3, 3, v1
    v_and_b32 v4, 7, v1
    v_mul_u32_u24 v3, 1280, v3
    v_lshl_add_u32 v3, v4, 4, v3
    v_lshrrev_b32 v4, 4, v1
    v_bfe_u32 v6, v1, 2, 2
    v_lshl_add_u32 v4, v4, 3, v6
    v_and_b32 v6, 3, v1
    v_lshlrev_b32 v6, 3, v6
    v_lshl_add_u32 v6, v4, 7, v6
    s_lshl_b32 s40, s{sWave}, 14
    v_add_u32 v6, s40, v6
    v_mov_b32 v4, 0
    s_waitcnt lgkmcnt(0)
    """)
    srd(a, SX, 4, 2621440)
    srd(a, SR, 10, WS_BYTES)
    srd(a, SGW, 14, 1280)
    a(f"s_mov_b32 s{SWO+2}, 819200")
    a(f"s_mov_b32 s{SWO+3}, 0x00020000")
    if 'tlb' in EXP:
        a("s_load_dwordx2 s[50:51], s[0:1], 56")
        a("v_lshlrev_b32 v29, 16, v0")
        a(f"buffer_load_dword v28, v29, {sr(SR,4)}, 0 offen")
        a("s_waitcnt lgkmcnt(0)")
        srd(a, 56, 50, 2621440)
        a("buffer_load_dword v28, v29, s[56:59], 0 offen")
    for i in range(4):
        a(f"""
        s_add_u32 s41, s16, {128*i}
        s_cmp_ge_u32 s41, 200
        s_cselect_b32 s{SWO}, s12, s46
        s_cselect_b32 s{SWO+1}, s13, s47
        s_cselect_b32 s3, 200, 0
        s_cselect_b32 s{42+i}, {WOF_BR}, 0
        s_add_u32 s{42+i}, s{42+i}, {WOF_OFF}
        s_sub_u32 s3, s41, s3
        s_mul_i32 s17, s3, 6554
        s_lshr_b32 s17, s17, 16
        s_mul_i32 s18, s17, 10
        s_sub_u32 s18, s3, s18
        s_lshl_b32 s3, s17, 10
        s_add_u32 s{42+i}, s{42+i}, s3
        s_mul_i32 s3, s18, {4*20480}
        s_add_u32 s{42+i}, s{42+i}, s3
        s_mul_i32 s17, s17, {32*1280}
        s_lshl_b32 s18, s18, 7
        s_add_u32 s17, s17, s18
        s_cmp_ge_u32 s41, 400
        s_cselect_b32 s{42+i}, 0x7f000000, s{42+i}
        s_cselect_b32 s17, 0x7f000000, s17
        """)
        for q in range(4):
            a(f"s_add_u32 m0, s40, {4096*i + 1024*q}")
            a("s_nop 0")
            a(f"buffer_load_dwordx4 v3, {sr(SWO,4)}, s17 offen lds")
            a(f"s_add_u32 s17, s17, {8*1280}")
    GW, GX = 8, 16
    for i in range(5):
        a(f"buffer_load_dword v{GW+i}, v2, {sr(SGW,4)}, 0 offen offset:{256*i}")
    a(f"""
    s_and_b32 s3, s16, 63
    s_mul_i32 s17, s3, {16*2560}
    s_lshr_b32 s3, s16, 6
    s_mul_i32 s3, s3, 1280
    s_add_u32 s17, s17, s3
    s_lshl_b32 s18, s16, 6
    s_add_u32 s18, s18, {G_OFF}
    """)
    for half in range(2):
        for r in range(8):
            for i in range(5):
                a(f"buffer_load_dword v{GX+5*r+i}, v2, {sr(SX,4)}, s17 offen offset:{256*i}")
            a("s_add_u32 s17, s17, 2560")
        if half == 0:
            a("s_waitcnt vmcnt(45)")
            for i in range(4):
                for nt in range(4):
                    b = 72 + (4 * i + nt) * 4
                    a(f"ds_read_b64_tr_b16 {vr(b,2)}, v6 offset:{4096*i + 32*nt}")
                    a(f"ds_read_b64_tr_b16 {vr(b+2,2)}, v6 offset:{4096*i + 32*nt + 512}")
                a("s_waitcnt lgkmcnt(0)")
            a("s_waitcnt vmcnt(0)")
            for i in range(4):
                for nt in range(4):
                    b = 72 + (4 * i + nt) * 4
                    a(f"buffer_store_dwordx4 {vr(b,4)}, v5, {sr(SR,4)}, s{42+i} offen")
                    a(f"s_add_u32 s{42+i}, s{42+i}, 20480")
        else:
            a("s_waitcnt vmcnt(0)")
        for r in range(8):
            a(f"v_dot2_f32_bf16 v{60+r}, v{GX+5*r}, v{GW}, 0")
        for i in range(1, 5):
            for r in range(8):
                a(f"v_dot2_f32_bf16 v{60+r}, v{GX+5*r+i}, v{GW+i}, v{60+r}")
        a("s_nop 3")
        for sh in ("row_shr:1 row_mask:0xf bank_mask:0xf bound_ctrl:0", "row_shr:2 row_mask:0xf bank_mask:0xf bound_ctrl:0",
                   "row_shr:4 row_mask:0xf bank_mask:0xf bound_ctrl:0", "row_shr:8 row_mask:0xf bank_mask:0xf bound_ctrl:0",
                   "row_bcast:15 row_mask:0xa bank_mask:0xf", "row_bcast:31 row_mask:0xc bank_mask:0xf"):
            for r in range(8):
                a(f"v_add_f32_dpp v{60+r}, v{60+r}, v{60+r} {sh}")
        for r in range(8):
            a(f"v_mul_f32 v{60+r}, {f32(-math.log2(math.e))}, v{60+r}")
        for r in range(8):
            a(f"v_exp_f32 v{60+r}, v{60+r}")
        for r in range(8):
            a(f"v_add_f32 v{60+r}, 1.0, v{60+r}")
        for r in range(8):
            a(f"v_rcp_f32 v{60+r}, v{60+r}")
        a("s_mov_b32 exec_lo, 0")
        a("s_mov_b32 exec_hi, 0x80000000")
        a(f"buffer_store_dwordx4 v[60:63], v4, {sr(SR,4)}, s18 offen offset:{32*half}")
        a(f"buffer_store_dwordx4 v[64:67], v4, {sr(SR,4)}, s18 offen offset:{32*half+16}")
        a("s_mov_b64 exec, -1")
        a("s_nop 1")
    if 'noct' not in EXP:
        code_touch(a, 31, 30, 52, "attn_kernel", "CODE_END", lane="v0")
    if STAMP:
        a("s_waitcnt vmcnt(0)")
        for i in range(2, 7):
            stamp(a, i)
        stamp_rt(a, 7)
        stamp_flush(a, 0, SR, sWave, 8, 2)
    a.label("K1_END")
    a("s_endpgm")
    return kernel_desc(name, 256, 160, 64)


K2_TILE = 2880
K2_SLOT = 16 * K2_TILE
K2_R = 3
FUSE = 'fuse' in EXP
K2_LDS = 163840
K2_MASK = K2_LDS - 6 * 1024
K2_FLAG = K2_MASK - 256
K2_XCH = 3 * 40960


def code_touch(a, vdst, vaddr, stmp, first, last, lane="v1"):
    lab = f"CT_{len(a.L)}"
    a(f"s_getpc_b64 s[{stmp}:{stmp+1}]")
    a.label(lab)
    a(f"s_add_u32 s{stmp}, s{stmp}, {first}-{lab}")
    a(f"s_addc_u32 s{stmp+1}, s{stmp+1}, 0")
    a(f"v_lshlrev_b32 v{vaddr}, 7, {lane}")
    a(f"v_min_u32 v{vaddr}, {last}-{first}-4, v{vaddr}")
    a(f"global_load_dword v{vdst}, v{vaddr}, s[{stmp}:{stmp+1}]")


def gen_pphase(a, L):
    SWS, sWave, sKh, O, SB, P, vL16, sTmp = L["SWS"], L["sWave"], L["sKh"], L["O"], L["SB"], L["P"], L["vL16"], L["sTmp"]
    SOUT, SDBG = 52, 56
    sNb, sMt, sWb, sRow, sOb, sKs, sWq, sLq, sOut = 60, 61, 62, 63, 64, 65, 66, 67, 34
    ACC, OF, WF = 16, 36, 76
    vLn, vW, vG, vOut, vOut2, vR = 2, 3, 4, 5, 6, 7

    def wrow(extra=0):
        a(f"""
        s_add_u32 s3, s{sRow}, {extra}
        s_lshr_b32 s4, s3, 4
        s_mul_i32 s4, s4, {WOF_BR}
        s_bfe_u32 s5, s3, {(1 << 16) | 3}
        s_mul_i32 s5, s5, 10
        s_and_b32 s6, s3, 7
        s_add_u32 s5, s5, s6
        s_lshl_b32 s5, s5, 10
        s_add_u32 s4, s4, s5
        s_add_u32 s4, s4, s{sWb}
        s_mul_i32 s5, s3, 5120
        """)
        for nt in range(5):
            a(f"s_add_u32 m0, s5, {1024*nt}")
            a(f"s_add_u32 s4, s4, 20480" if nt else "s_nop 0")
            a(f"buffer_load_dwordx4 v{vL16}, {sr(SWS,4)}, s4 offen lds")

    if 'p_late' in EXP:
        a(f"""
        s_lshr_b32 s{sNb}, s15, 2
        s_mul_i32 s{sWb}, s{sNb}, {5*20480}
        s_add_u32 s{sWb}, s{sWb}, {WOF_OFF}
        s_lshl_b32 s{sRow}, s{sWave}, 1
        s_waitcnt vmcnt(0)
        """)
        stamp(a, 12)
        srd(a, SDBG, 50, 256)
        a(f"""
        v_mov_b32 v8, 0
        v_mov_b32 v9, 1
        s_lshl_b32 s7, s9, 2
        s_barrier
        s_cmp_eq_u32 s{sWave}, 0
        s_cbranch_scc0 K2_NOSIG
        s_mov_b64 exec, 1
        buffer_atomic_add v9, v8, {sr(SDBG,4)}, s7 offen sc1
        s_mov_b64 exec, -1
        """)
        a.label("K2_NOSIG")
        stamp(a, 8)
        wrow(0)
        wrow(1)
    else:
        a(f"""
        s_lshr_b32 s{sNb}, s15, 2
        s_mul_i32 s{sWb}, s{sNb}, {5*20480}
        s_add_u32 s{sWb}, s{sWb}, {WOF_OFF}
        s_cmp_eq_u32 s{sKh}, 0
        s_cbranch_scc1 K2_PA
        s_sub_u32 s{sRow}, s{sWave}, 8
        """)
        wrow(0)
        a(f"""
        s_add_u32 s{sRow}, s{sWave}, 10
        s_cmp_ge_u32 s{sRow}, 24
        s_cselect_b32 s{sRow}, 8, s{sRow}
        """)
        wrow(0)
        a(f"s_add_u32 s{sRow}, s{sWave}, 16")
        a("s_waitcnt vmcnt(10)")
        a("s_branch K2_P1")
        a.label("K2_PA")
        a(f"s_add_u32 s{sRow}, s{sWave}, 9")
        a("s_waitcnt vmcnt(0)")
        a.label("K2_P1")
        srd(a, SDBG, 50, 256)
        a(f"""
        v_mov_b32 v8, 0
        v_mov_b32 v9, 1
        s_lshl_b32 s7, s9, 2
        s_barrier
        s_cmp_eq_u32 s{sWave}, 0
        s_cbranch_scc0 K2_NOSIG
        s_mov_b64 exec, 1
        buffer_atomic_add v9, v8, {sr(SDBG,4)}, s7 offen sc1
        s_mov_b64 exec, -1
        """)
        wrow(8)
        a.label("K2_NOSIG")
        stamp(a, 8)
        wrow(0)
    srd(a, SOUT, 48, 2621440)
    a(f"""
    v_mov_b32 v{vLn}, v{vL16}
    s_and_b32 s14, s2, 7
    s_lshl_b32 s{sMt}, s14, 2
    s_and_b32 s3, s15, 3
    s_add_u32 s{sMt}, s{sMt}, s3
    s_lshl_b32 s{sMt}, s{sMt}, 2
    s_and_b32 s3, s{sWave}, 3
    s_add_u32 s{sMt}, s{sMt}, s3
    s_lshr_b32 s4, s{sWave}, 2
    s_mul_i32 s{sLq}, s4, 40960
    s_and_b32 s5, s4, 1
    s_mul_i32 s5, s5, 10240
    s_mul_i32 s{sOb}, s{sKh}, {O_BR}
    s_add_u32 s{sOb}, s{sOb}, s5
    s_mul_i32 s6, s{sMt}, 20480
    s_add_u32 s{sOb}, s{sOb}, s6
    s_add_u32 s{sOb}, s{sOb}, {O_OFF}
    s_mul_i32 s{sWq}, s{sKh}, {WOF_BR}
    s_add_u32 s{sWq}, s{sWq}, s5
    s_add_u32 s{sWq}, s{sWq}, s{sWb}
    v_and_b32 v9, 15, v1
    v_lshlrev_b32 v10, 2, v9
    s_lshl_b32 s6, s{sMt}, 6
    s_add_u32 s6, s6, {G_OFF}
    buffer_load_dword v{vG}, v10, {sr(SWS,4)}, s6 offen
    v_lshrrev_b32 v11, 4, v1
    v_mul_u32_u24 v12, 2560, v9
    v_and_b32 v13, 1, v11
    v_lshlrev_b32 v13, 5, v13
    v_lshrrev_b32 v14, 1, v11
    v_lshlrev_b32 v14, 4, v14
    v_add3_u32 v{vOut}, v12, v13, v14
    v_lshl_add_u32 v{vOut2}, v11, 3, v12
    s_and_b32 s6, s{sMt}, 63
    s_mul_i32 s6, s6, {16*2560}
    s_lshr_b32 s7, s{sMt}, 6
    s_mul_i32 s7, s7, 1280
    s_add_u32 s{sOut}, s6, s7
    s_mul_i32 s7, s{sNb}, 160
    s_add_u32 s{sOut}, s{sOut}, s7
    s_cmp_eq_u32 s{sWave}, 15
    s_cbranch_scc0 K2_P2
    s_lshl_b32 s7, s14, 5
    s_movk_i32 s6, 8192
    """)
    a.label("K2_POLL")
    a(f"""
    buffer_load_dword v9, v8, {sr(SDBG,4)}, s7 offen sc1
    s_waitcnt vmcnt(0)
    v_readfirstlane_b32 s3, v9
    s_sub_u32 s6, s6, 1
    s_cmp_ge_u32 s3, 32
    s_cbranch_scc1 K2_P2
    s_sleep 2
    s_cmp_lg_u32 s6, 0
    s_cbranch_scc1 K2_POLL
    """)
    a.label("K2_P2")
    a("s_waitcnt vmcnt(0)")
    stamp(a, 13)
    a("s_barrier")
    stamp(a, 9)
    hist = []

    def oload(i):
        if i < 8:
            a(f"s_add_u32 s3, s{sNb}, {i}")
            a("s_and_b32 s3, s3, 7" if 'p_hot' not in EXP else "s_mov_b32 s3, 0")
            a("s_lshl_b32 s3, s3, 10")
            a(f"s_add_u32 s3, s3, s{sOb}")
        else:
            a(f"s_add_u32 s3, s{sOb}, {1024*i}")
        a(f"buffer_load_dwordx4 {vr(OF+4*i,4)}, v{vLn}, {sr(SWS,4)}, s3 offen{'' if 'p_nosc1' in EXP else ' sc1'}")
        hist.append(("O", i))

    def slot_addr(i, dst):
        a(f"s_add_u32 s{dst}, s{sNb}, {i % 8}")
        a(f"s_and_b32 s{dst}, s{dst}, 7")
        a(f"s_mul_i32 s{dst}, s{dst}, 5120")
        a(f"s_add_u32 s{dst}, s{dst}, s{sLq}")

    def wreads(i):
        slot_addr(i, sKs)
        a(f"v_add_u32 v{vW}, s{sKs}, v{vLn}")
        for nt in range(5):
            a(f"ds_read_b128 {vr(WF + (i % 2) * 20 + 4 * nt, 4)}, v{vW} offset:{1024*nt}")

    PD = int(os.environ.get('PD', '4'))
    for i in range(PD):
        oload(i)
    wreads(0)
    for i in range(10):
        if i == 2:
            a("s_barrier")
            for j in range(3):
                a(f"""
                s_and_b32 s3, s{sWave}, 3
                s_mul_i32 s3, s3, 3
                s_add_u32 s3, s3, {j}
                s_cmp_ge_u32 s3, 5
                s_cselect_b32 s4, 1, 0
                s_mul_i32 s5, s4, 5
                s_sub_u32 s5, s3, s5
                s_add_u32 s6, s{sNb}, s4
                s_and_b32 s6, s6, 7
                s_mul_i32 s6, s6, 5120
                s_add_u32 s6, s6, s{sLq}
                s_lshl_b32 s7, s5, 10
                s_add_u32 m0, s6, s7
                s_add_u32 s4, s4, 8
                s_lshl_b32 s4, s4, 10
                s_mul_i32 s5, s5, 20480
                s_add_u32 s4, s4, s5
                s_add_u32 s4, s4, s{sWq}
                s_cmp_ge_u32 s3, 10
                s_cselect_b64 exec, 0, -1
                s_cbranch_scc1 K2_PSKIP{j}
                buffer_load_dwordx4 v{vLn}, {sr(SWS,4)}, s4 offen lds
                """)
                a.label(f"K2_PSKIP{j}")
                a("s_mov_b64 exec, -1")
        if i + 1 == 8:
            a("s_waitcnt vmcnt(2)")
            a("s_waitcnt lgkmcnt(0)")
            a("s_barrier")
        if i + 1 < 10:
            wreads(i + 1)
        n = len(hist) - 1 - hist.index(("O", i))
        a(f"s_waitcnt vmcnt({n}) lgkmcnt({5 if i + 1 < 10 else 0})")
        for nt in range(5):
            d = vr(ACC + 4 * nt, 4)
            a(f"v_mfma_f32_16x16x32_bf16 {d}, {vr(WF + (i % 2) * 20 + 4 * nt, 4)}, {vr(OF+4*i,4)}, {'0' if i == 0 else d}")
        if i + PD < 10:
            oload(i + PD)
    stamp(a, 10)
    a(f"""
    v_sub_f32 v10, 1.0, v{vG}
    s_cmp_eq_u32 s{sKh}, 0
    s_cselect_b64 s[{sTmp}:{sTmp+1}], -1, 0
    s_and_b32 s3, s{sWave}, 3
    s_add_u32 s3, s3, s{sNb}
    s_add_u32 s3, s3, 2
    s_and_b32 s3, s3, 7
    s_mul_i32 s3, s3, 5120
    v_cndmask_b32 v10, v10, v{vG}, s[{sTmp}:{sTmp+1}]
    v_add_u32 v{vR}, s3, v{vLn}
    v_add_u32 v{vW}, s{sLq}, v{vR}
    """)
    for i in range(20):
        a(f"v_mul_f32 v{ACC+i}, v{ACC+i}, v10")
    a(f"s_cmp_lt_u32 s{sWave}, 4")
    a("s_cbranch_scc1 K2_PSUM")
    for nt in range(5):
        a(f"ds_write_b128 v{vW}, {vr(ACC+4*nt,4)} offset:{1024*nt}")
    a("s_waitcnt lgkmcnt(0)")
    a("s_barrier")
    a("s_branch K2_PDONE")
    a.label("K2_PSUM")
    a(f"v_add_u32 v{vW}, 81920, v{vR}")
    a("s_barrier")
    for k in range(3):
        for nt in range(5):
            base, off = (vR, 40960) if k == 0 else (vW, 40960 * (k - 1))
            a(f"ds_read_b128 {vr(OF + 20*k + 4*nt, 4)}, v{base} offset:{off + 1024*nt}")
    for k in range(3):
        a(f"s_waitcnt lgkmcnt({5 * (2 - k)})")
        for i in range(20):
            a(f"v_add_f32 v{ACC+i}, v{ACC+i}, v{OF+20*k+i}")
    for pr in range(2):
        b0 = ACC + pr * 8
        b1 = b0 + 4
        a(f"v_cvt_pk_bf16_f32 v{b0}, v{b0}, v{b0+1}")
        a(f"v_cvt_pk_bf16_f32 v{b0+1}, v{b0+2}, v{b0+3}")
        a(f"v_cvt_pk_bf16_f32 v{b0+2}, v{b1}, v{b1+1}")
        a(f"v_cvt_pk_bf16_f32 v{b0+3}, v{b1+2}, v{b1+3}")
        a("s_nop 1")
        a(f"v_permlane16_swap_b32 v{b0}, v{b0+2}")
        a(f"v_permlane16_swap_b32 v{b0+1}, v{b0+3}")
        a("s_nop 0")
        a(f"buffer_store_dwordx4 {vr(b0,4)}, v{vOut}, {sr(SOUT,4)}, s{sOut} offen offset:{pr*64}")
    b0 = ACC + 16
    a(f"v_cvt_pk_bf16_f32 v{b0}, v{b0}, v{b0+1}")
    a(f"v_cvt_pk_bf16_f32 v{b0+1}, v{b0+2}, v{b0+3}")
    a(f"buffer_store_dwordx2 {vr(b0,2)}, v{vOut2}, {sr(SOUT,4)}, s{sOut} offen offset:128")
    a.label("K2_PDONE")


def gen_k2(a):
    name = "attn_kernel"
    kernel_head(a, name)
    SWS = 20
    sWave, sHead, sT, sKh = 16, 17, 18, 19
    sDma, sM0, sSlot, sC, sRedo = 24, 25, 26, 27, 28
    sTA, sO, sTouch, sAD = 29, 31, 33, 30
    sTmp = 36
    vK10, vK20, vLV, vK1, vK2, vV, vO = 2, 3, 4, 5, 6, 7, 15
    vt = 8
    Q1, Q2 = 16, 20
    KF1, KF2 = 24, 28
    vD = 22
    vD2 = 30
    vGK1, vGK2 = 31, 112
    vL16, vX, vO2 = 113, 114, 115
    VF = 32
    P = 40
    NEGM = 48
    SB = [64, 80]
    O = 96
    AQ1, AQ2 = 116, 120
    AKP1, AKP2 = 124, 122
    NV = 128
    a("s_cmp_ge_u32 s2, 256")
    a("s_cbranch_scc1 K2_END")
    stamp(a, 0); stamp_rt(a, 1)
    a("""
    s_load_dwordx2 s[12:13], s[0:1], 72
    s_load_dwordx4 s[48:51], s[0:1], 56
    v_lshrrev_b32 v8, 6, v0
    v_and_b32 v1, 63, v0
    s_and_b32 s14, s2, 7
    v_readfirstlane_b32 s16, v8
    s_lshr_b32 s15, s2, 3
    s_lshl_b32 s17, s14, 2
    s_lshr_b32 s3, s15, 3
    s_add_u32 s17, s17, s3
    s_and_b32 s9, s15, 7
    s_lshl_b32 s9, s9, 3
    s_and_b32 s3, s16, 7
    s_add_u32 s18, s9, s3
    s_lshr_b32 s19, s16, 3
    """)
    a(f"""
    v_and_b32 v8, 31, v1
    v_lshrrev_b32 v9, 5, v1
    v_lshlrev_b32 v{vL16}, 4, v1
    s_and_b32 s4, s{sHead}, 1
    s_mul_i32 s5, s{sHead}, 5
    s_lshr_b32 s5, s5, 1
    s_lshl_b32 s5, s5, 9
    s_lshl_b32 s6, s4, 9
    s_cmp_eq_u32 s4, 0
    s_cselect_b32 s7, 1024, 8
    v_add_u32 v{vK1}, s6, v{vL16}
    v_lshl_add_u32 v{vK2}, v8, 4, s7
    v_add_u32 v{vGK1}, s5, v{vK1}
    v_add_u32 v{vGK2}, s5, v{vK2}
    s_add_u32 s5, s5, {SEGB}
    v_add_u32 v{vD}, s5, v{vL16}
    s_mul_i32 s6, s{sHead}, 320
    s_add_u32 s7, s6, {2*SEGB - 1024 - 512}
    v_cmp_le_u32 s[{sTmp}:{sTmp+1}], 53, v1
    v_mov_b32 v12, {10240-336}
    v_add_u32 v13, s7, v{vL16}
    v_cndmask_b32 v12, 0, v12, s[{sTmp}:{sTmp+1}]
    v_add_u32 v13, v13, v12
    v_cmp_le_u32 s[{sTmp}:{sTmp+1}], 32, v1
    v_add_u32 v11, 32, v1
    v_mul_u32_u24 v11, 49, v11
    v_cndmask_b32 v{vD+1}, v{vD}, v13, s[{sTmp}:{sTmp+1}]
    v_lshrrev_b32 v11, 10, v11
    v_mul_u32_u24 v11, {10240-336}, v11
    s_add_u32 s7, s6, {2*SEGB - 2048 + 512}
    v_add3_u32 v{vD2}, v11, v{vL16}, s7
    s_mul_i32 s{sTA}, s{sT}, {TB}
    s_add_u32 s8, s{sTA}, {3*SEGB}
    s_mul_i32 s{sDma}, s{sWave}, {TB}
    s_add_u32 s{sDma}, s{sDma}, {3*SEGB}
    s_mul_i32 s{sM0}, s{sWave}, {K2_TILE}
    s_waitcnt lgkmcnt(0)
    """)
    srd(a, SWS, 12, WS_BYTES)

    m1 = ((1 << 64) - 1) & ~(1 << 52)
    m2 = ((1 << 52) - 1) & ~(1 << 9) & ~(1 << 30) & ~(1 << 51)

    def dma_tile(slot, soff):
        a(f"""
        s_add_u32 m0, s{sM0}, {slot * K2_SLOT}
        {soff}
        buffer_load_dwordx4 v{vD}, {sr(SWS,4)}, s{sTmp} offen lds
        s_mov_b32 exec_hi, 0x{m1 >> 32:08x}
        buffer_load_dwordx4 v{vD+1}, {sr(SWS,4)}, s{sTmp} offen offset:1024 lds
        s_mov_b32 exec_lo, 0x{m2 & 0xffffffff:08x}
        s_mov_b32 exec_hi, 0x{m2 >> 32:08x}
        buffer_load_dwordx4 v{vD2}, {sr(SWS,4)}, s{sTmp} offen offset:2048 lds
        s_mov_b64 exec, -1
        """)

    def dma_chunk(c):
        dma_tile(c % K2_R, f"s_add_u32 s{sTmp}, s{sDma}, {c * 16 * TB}")

    def ones_rows():
        a(f"""
        v_mov_b32 v{VF}, 0x3f803f80
        v_mov_b32 v{VF+1}, 0x3f803f80
        v_mov_b32 v{VF+2}, 0x3f803f80
        v_mov_b32 v{VF+3}, 0x3f803f80
        v_bfe_u32 v11, v1, 2, 2
        v_min_u32 v11, 2, v11
        v_mul_u32_u24 v11, {K2_SLOT}, v11
        v_and_b32 v12, 3, v1
        v_mul_u32_u24 v12, 336, v12
        v_add3_u32 v11, v11, v12, s{sM0}
        ds_write_b128 v11, {vr(VF,4)} offset:{1536+320}
        """)

    def zero_state():
        for r in range(16):
            a(f"v_mov_b32 v{O+r}, 0")
        for r in range(4):
            a(f"v_mov_b32 v{P+4+r}, 0")
            a(f"v_mov_b32 v{VF+4+r}, 0")
        a(f"""
        v_mov_b32 v{vV}, v{vLV}
        s_mov_b32 s{sSlot}, {K2_SLOT}
        s_mov_b32 s{sC}, 0
        """)

    dma_chunk(0)
    a(f"buffer_load_dwordx4 {vr(Q1,4)}, v{vGK1}, {sr(SWS,4)}, s8 offen")
    a(f"buffer_load_dwordx2 {vr(Q2,2)}, v{vGK2}, {sr(SWS,4)}, s8 offen")
    a(f"s_mov_b32 s{sRedo}, 0")
    ones_rows()
    a(f"""
    v_mov_b32 v11, {K2_FLAG}
    v_mov_b32 v12, 0
    ds_write_b32 v11, v12
    s_mul_i32 s3, s{sKh}, {8*K2_TILE}
    v_add_u32 v{vK10}, s3, v{vK1}
    v_add_u32 v{vK20}, s3, v{vK2}
    s_and_b32 s4, s{sHead}, 1
    s_lshl_b32 s5, s4, 2
    v_add_u32 v12, s5, v8
    v_subrev_u32 v13, 20, v12
    v_cmp_gt_u32 s[{sTmp}:{sTmp+1}], 20, v12
    v_cmp_gt_u32 s[{sTmp+2}:{sTmp+3}], 20, v8
    v_mul_u32_u24 v11, 336, v9
    v_cndmask_b32 v12, v13, v12, s[{sTmp}:{sTmp+1}]
    v_cndmask_b32 v12, v8, v12, s[{sTmp+2}:{sTmp+3}]
    v_lshl_add_u32 v11, v12, 4, v11
    s_add_u32 s3, s3, 1536
    v_add_u32 v{vLV}, s3, v11
    """)
    a(f"""
    v_and_b32 v10, 3, v8
    v_bfe_u32 v11, v8, 2, 1
    v_lshl_or_b32 v10, v11, 3, v10
    v_bfe_u32 v11, v8, 3, 1
    v_lshl_or_b32 v10, v11, 2, v10
    v_lshrrev_b32 v11, 4, v8
    v_lshl_or_b32 v14, v11, 4, v10
    v_lshlrev_b32 v10, 4, v10
    v_mul_u32_u24 v11, 20480, v11
    s_mul_i32 s3, s{sHead}, 5
    s_add_u32 s3, s3, 1
    s_lshr_b32 s3, s3, 1
    s_lshl_b32 s3, s3, 8
    v_add3_u32 v10, v10, v11, s3
    v_lshl_add_u32 v{vO}, v9, 8, v10
    s_mul_i32 s5, s4, 760
    s_sub_u32 s5, 512, s5
    v_add_u32 v{vO2}, s5, v10
    s_mul_i32 s3, s{sKh}, {O_BR}
    s_add_u32 s{sO}, s{sTA}, {O_OFF}
    s_add_u32 s{sO}, s{sO}, s3
    s_lshl_b32 s{sTouch}, s15, 4
    s_add_u32 s{sTouch}, s{sTouch}, s{sWave}
    s_mul_i32 s{sTouch}, s{sTouch}, 3200
    s_add_u32 s{sTouch}, s{sTouch}, {WOF_OFF}
    s_and_b32 s3, s{sWave}, 7
    s_mul_i32 s3, s3, 3072
    s_add_u32 s3, s3, {K2_XCH}
    v_add_u32 v{vX}, s3, v{vL16}
    s_add_u32 s3, s9, s{sWave}
    s_max_u32 s3, s3, 1
    s_sub_u32 s3, s3, 1
    s_mul_i32 s{sAD}, s3, {TB}
    s_cmp_gt_u32 s{sWave}, 8
    s_cselect_b32 s{sAD}, 0x40000000, s{sAD}
    """)
    a(f"""
    s_and_b32 s3, s{sWave}, 7
    s_min_u32 s3, s3, 5
    s_lshr_b32 s4, s3, 1
    s_lshl_b32 s4, s4, 4
    s_and_b32 s5, s3, 1
    s_lshl_b32 s5, s5, 2
    s_add_u32 s4, s4, s5
    s_cmp_ge_u32 s3, 4
    s_cselect_b32 s5, 48, 0
    s_sub_u32 s4, s4, s5
    v_lshlrev_b32 v11, 3, v9
    v_sub_u32 v11, v14, v11
    v_subrev_u32 v11, s4, v11
    v_mov_b32 v12, {f32(-1e30)}
    s_lshl_b32 s3, s3, 10
    v_add_u32 v13, s3, v{vL16}
    """)
    for i in range(4):
        a(f"v_subrev_u32 v10, {i}, v11")
        a(f"v_cmp_gt_u32 s[{sTmp+2*i}:{sTmp+2*i+1}], 8, v10")
    a("s_nop 0")
    for i in range(4):
        a(f"v_cndmask_b32 v{P+i}, v12, 0, s[{sTmp+2*i}:{sTmp+2*i+1}]")
    a(f"ds_write_b128 v13, {vr(P,4)} offset:{K2_MASK - 65536*(K2_MASK//65536)}" if K2_MASK < 65536 else
      f"v_add_u32 v13, {K2_MASK}, v13\nds_write_b128 v13, {vr(P,4)}")
    zero_state()
    a("s_waitcnt vmcnt(0) lgkmcnt(0)")
    stamp(a, 2)
    a("s_barrier")

    def maxtree(regs, dst):
        a(f"v_max3_f32 v{dst}, v{regs[0]}, v{regs[1]}, v{regs[2]}")
        i = 3
        while i + 1 < len(regs):
            a(f"v_max3_f32 v{dst}, v{dst}, v{regs[i]}, v{regs[i+1]}")
            i += 2
        if i < len(regs):
            a(f"v_max_f32 v{dst}, v{dst}, v{regs[i]}")
        a(f"v_mov_b32 v{dst+1}, v{dst}")
        a("s_nop 1")
        a(f"v_permlane32_swap_b32 v{dst}, v{dst+1}")
        a("s_nop 1")
        a(f"v_max_f32 v{dst}, v{dst}, v{dst+1}")

    def store_o(D):
        a(f"""
        v_mov_b32 v{vt}, v{O+8}
        v_mov_b32 v{vt+1}, v{O+8}
        s_nop 1
        v_permlane32_swap_b32 v{vt}, v{vt+1}
        s_nop 1
        v_rcp_f32 v{vt}, v{vt+1}
        s_nop 0
        """)
        for r in range(12):
            a(f"v_mul_f32 v{O+r}, v{O+r}, v{vt}")
        for i in range(6):
            a(f"v_cvt_pk_bf16_f32 v{D+i}, v{O+2*i}, v{O+2*i+1}")
        stf = " sc1" if FUSE else K2STF
        a(f"v_permlane32_swap_b32 v{D}, v{D+2}")
        a(f"v_permlane32_swap_b32 v{D+1}, v{D+3}")
        a("s_mov_b32 exec_hi, 0")
        a(f"buffer_store_dwordx2 {vr(D+4,2)}, v{vO2}, {sr(SWS,4)}, s{sO} offen{stf}")
        a("s_mov_b32 exec_hi, -1")
        a(f"buffer_store_dwordx4 {vr(D,4)}, v{vO}, {sr(SWS,4)}, s{sO} offen{stf}")

    def kreads(tile, k1=vK1, k2=vK2):
        o = tile * K2_TILE
        return [f"ds_read_b128 {vr(KF1,4)}, v{k1} offset:{o}",
                f"ds_read_b64 {vr(KF2,2)}, v{k2} offset:{o}"]

    def vread(tile, j):
        return f"ds_read_b128 {vr(VF+4*j,4)}, v{vV} offset:{tile * K2_TILE + 672*j}"

    def qk(sb, c):
        return [f"v_mfma_f32_32x32x16_bf16 {vr(sb,16)}, {vr(KF1,4)}, {vr(Q1,4)}, {c}",
                f"v_mfma_f32_32x32x8_bf16 {vr(sb,16)}, {vr(KF2,2)}, {vr(Q2,2)}, {vr(sb,16)}"]

    stamp(a, 3)
    for l in kreads(0):
        a(l)
    a(f"""
    s_mov_b32 exec_lo, 0
    v_mov_b32 v{Q2}, 0
    v_mov_b32 v{Q2+1}, 0
    s_mov_b32 exec_lo, -1
    s_waitcnt lgkmcnt(0)
    """)
    for l in qk(SB[0], "0"):
        a(l)
    for l in kreads(0, vK10, vK20):
        a(l)
    dma_chunk(1)
    dma_chunk(2)
    maxtree([SB[0] + r for r in range(16)], vt)
    for r in range(16):
        a(f"v_sub_f32 v{NEGM+r}, 0, v{vt}")
    a.label("K2_HAVE_M")
    a(f"""
    v_mov_b32 v{vK1}, v{vK10}
    v_mov_b32 v{vK2}, v{vK20}
    s_waitcnt lgkmcnt(0)
    """)
    for l in qk(SB[0], vr(NEGM, 16)):
        a(l)
    for l in kreads(1):
        a(l)
    a(vread(0, 0))
    a("s_nop 9")
    stamp(a, 4)
    a.raw(".p2align 3")
    a.label("K2_LOOP")
    prio = {0: 3, 3: 2, 5: 1, 7: 0} if 'k2_noprio' not in EXP else {}
    for i in range(8):
        cur, nxt = SB[i % 2], SB[1 - i % 2]
        e = [f"v_exp_f32 v{cur+r}, v{cur+r}" for r in range(16)]
        c = [f"v_cvt_pk_bf16_f32 v{P+j}, v{cur+2*j}, v{cur+2*j+1}" for j in range(8)]
        q = qk(nxt, vr(NEGM, 16))
        pv = [f"v_mfma_f32_32x32x16_bf16 {vr(O,16)}, {vr(VF+4*j,4)}, {vr(P+4*j,4)}, {vr(O,16)}" for j in range(2)]
        kr = kreads((i + 2) % 8)
        if i == 6:
            if STAMP and not FUSE:
                a("s_memtime s[86:87]")
                a("s_waitcnt lgkmcnt(0)")
                for cc in range(4):
                    a(f"s_cmp_eq_u32 s{sC}, {cc}")
                    a(f"s_cselect_b32 s{78+cc}, s86, s{78+cc}")
            a("s_waitcnt vmcnt(0)")
            a("s_barrier")
            if STAMP and not FUSE:
                a("s_memtime s[86:87]")
                a("s_waitcnt lgkmcnt(0)")
                for cc in range(4):
                    a(f"s_cmp_eq_u32 s{sC}, {cc}")
                    a(f"s_cselect_b32 s{82+cc}, s86, s{82+cc}")
            a(f"s_sub_u32 s3, s{sC}, 1")
            a(f"s_cmp_lt_u32 s3, 2")
            a("s_cbranch_scc1 K2_SIDE")
            a.label("K2_SIDE_RET")
            a(f"v_add_u32 v{vK1}, s{sSlot}, v{vK10}")
            a(f"v_add_u32 v{vK2}, s{sSlot}, v{vK20}")
        if (i - 6) % 8 in prio:
            a(f"s_setprio {prio[(i - 6) % 8]}")
        a(e[0]); a(e[1])
        a(pv[1])
        a(vread(i, 1))
        a(e[2]); a(e[3]); a(c[0]); a(e[4]); a(c[1])
        a("s_waitcnt lgkmcnt(1)")
        a(q[0])
        a(e[5]); a(e[6]); a(e[7]); a(c[2]); a(e[8]); a(c[3])
        a(q[1])
        for l in kr:
            a(l)
        a(e[9]); a(e[10]); a(e[11]); a(c[4]); a(e[12]); a(c[5])
        if i == 7:
            a(f"v_add_u32 v{vV}, s{sSlot}, v{vLV}")
        a(pv[0])
        a(vread((i + 1) % 8, 0))
        a(e[13]); a(e[14]); a(e[15]); a(c[6])
        a("s_waitcnt lgkmcnt(3)")
        a(c[7])
        if i == 7:
            a(f"s_add_u32 s{sSlot}, s{sSlot}, {K2_SLOT}")
            a(f"s_cmp_ge_u32 s{sSlot}, {K2_SLOT*K2_R}")
            a(f"s_cselect_b32 s{sSlot}, 0, s{sSlot}")
    a(f"""
    s_add_u32 s{sC}, s{sC}, 1
    s_cmp_lt_u32 s{sC}, 4
    s_cbranch_scc1 K2_LOOP
    v_mfma_f32_32x32x16_bf16 {vr(O,16)}, {vr(VF+4,4)}, {vr(P+4,4)}, {vr(O,16)}
    v_mov_b32 v{vt+3}, {K2_FLAG}
    v_mov_b32 v{vt+4}, 1
    s_mov_b32 s3, {f32(2.0**100)}
    s_add_u32 s4, s{sM0}, {K2_SLOT}
    v_add_u32 v{vK1}, s4, v{vK10}
    v_add_u32 v{vK2}, s4, v{vK20}
    v_add_u32 v{vV}, s4, v{vLV}
    v_add_u32 v{vt+5}, {K2_MASK}, v{vL16}
    s_waitcnt lgkmcnt(0)
    s_nop 4
    """)
    stamp(a, 5)
    a(f"v_mov_b32 v{vt+2}, v{O+8}")
    a("s_mov_b32 exec_hi, 0")
    a(f"v_mul_f32 v{vt+2}, 0, v{O+8}")
    for r in range(9, 12):
        a(f"v_fma_f32 v{vt+2}, v{O+r}, 0, v{vt+2}")
    a("s_mov_b32 exec_hi, -1")
    for r in range(8):
        a(f"v_fma_f32 v{vt+2}, v{O+r}, 0, v{vt+2}")
    a(f"""
    v_cmp_nlt_f32 s[{sTmp}:{sTmp+1}], v{vt+2}, s3
    s_nop 3
    s_cmp_eq_u64 s[{sTmp}:{sTmp+1}], 0
    s_cbranch_scc1 K2_NOFLAG
    ds_write_b32 v{vt+3}, v{vt+4}
    """)
    a.label("K2_NOFLAG")
    a(f"""
    s_cmp_eq_u32 s{sKh}, 0
    s_cbranch_scc0 K2_JOIN
    ds_write_b128 v{vX}, {vr(O,4)}
    ds_write_b128 v{vX}, {vr(O+4,4)} offset:1024
    ds_write_b128 v{vX}, {vr(O+8,4)} offset:2048
    """)
    a.label("K2_JOIN")
    a(f"""
    s_setprio 0
    s_waitcnt lgkmcnt(0)
    s_barrier
    ds_read_b32 v{vt+4}, v{vt+3}
    ds_read_b128 {vr(NEGM,4)}, v{vX}
    ds_read_b128 {vr(NEGM+4,4)}, v{vX} offset:1024
    ds_read_b128 {vr(NEGM+8,4)}, v{vX} offset:2048
    s_waitcnt lgkmcnt(0)
    v_readfirstlane_b32 s3, v{vt+4}
    s_nop 3
    s_cmp_gt_u32 s3, s{sRedo}
    s_cbranch_scc1 K2_FALLBACK
    s_cmp_eq_u32 s{sKh}, 0
    s_cbranch_scc1 K2_ABR
    s_setprio 1
    """)
    stamp(a, 11)
    for r in range(12):
        a(f"v_add_f32 v{O+r}, v{O+r}, v{NEGM+r}")
    a("s_branch K2_STORE")
    a.label("K2_ABR")
    AC = SB
    for g in range(4):
        a(f"ds_read_b128 {vr(AC[0]+4*g,4)}, v{vt+5} offset:{1024*g}")
    for g in range(2):
        a(f"ds_read_b128 {vr(AC[1]+8+4*g,4)}, v{vt+5} offset:{4096+1024*g}")
    for l in kreads(1):
        a(l)
    a(f"""
    ds_read_b128 {vr(AKP1,4)}, v{vK1}
    ds_read_b64 {vr(AKP2,2)}, v{vK2}
    {vread(1, 0)}
    {vread(1, 1)}
    ds_read_b128 {vr(P,4)}, v{vV} offset:672
    s_mov_b32 exec_lo, 0
    v_mov_b32 v{AQ2}, 0
    v_mov_b32 v{AQ2+1}, 0
    s_mov_b32 exec_lo, -1
    s_and_b32 s3, s{sT}, 31
    s_cmp_lg_u32 s3, 0
    s_waitcnt lgkmcnt(3)
    s_cbranch_scc1 K2_HASPREV
    """)
    for r in range(8, 16):
        a(f"v_mov_b32 v{AC[1]+r}, {f32(-1e30)}")
    a("s_nop 1")
    a.label("K2_HASPREV")
    a(f"""
    v_mfma_f32_32x32x16_bf16 {vr(AC[0],16)}, {vr(KF1,4)}, {vr(AQ1,4)}, {vr(AC[0],16)}
    v_mfma_f32_32x32x8_bf16 {vr(AC[0],16)}, {vr(KF2,2)}, {vr(AQ2,2)}, {vr(AC[0],16)}
    v_mfma_f32_32x32x16_bf16 {vr(AC[1],16)}, {vr(AKP1,4)}, {vr(AQ1,4)}, {vr(AC[1],16)}
    v_mfma_f32_32x32x8_bf16 {vr(AC[1],16)}, {vr(AKP2,2)}, {vr(AQ2,2)}, {vr(AC[1],16)}
    s_nop 11
    """)
    aregs = [AC[0] + r for r in range(16)] + [AC[1] + r for r in range(8, 16)]
    maxtree(aregs, vt)
    for r in aregs:
        a(f"v_sub_f32 v{r}, v{r}, v{vt}")
    for r in aregs:
        a(f"v_exp_f32 v{r}, v{r}")
    a("s_waitcnt lgkmcnt(0)")
    AP = NEGM
    for i in range(12):
        a(f"v_cvt_pk_bf16_f32 v{AP+i}, v{aregs[2*i]}, v{aregs[2*i+1]}")
    a(f"""
    s_nop 1
    v_mfma_f32_32x32x16_bf16 {vr(O,16)}, {vr(VF,4)}, {vr(AP,4)}, 0
    v_mfma_f32_32x32x16_bf16 {vr(O,16)}, {vr(VF+4,4)}, {vr(AP+4,4)}, {vr(O,16)}
    v_mfma_f32_32x32x16_bf16 {vr(O,16)}, {vr(P,4)}, {vr(AP+8,4)}, {vr(O,16)}
    s_nop 11
    """)
    stamp(a, 11)
    a.label("K2_STORE")
    store_o(AQ1)
    if FUSE:
        gen_pphase(a, locals())
    if STAMP: a("s_waitcnt vmcnt(0)")
    stamp(a, 6); stamp_rt(a, 7)
    stamp_flush(a, 1, SWS, sWave, 16, 8)
    a.label("K2_END")
    a("s_endpgm")

    a.label("K2_SIDE")
    a("s_cmp_eq_u32 s3, 0")
    a("s_cbranch_scc0 K2_SIDE2")
    dma_chunk(3)
    a("s_branch K2_SIDE_RET")
    a.label("K2_SIDE2")
    dma_tile(1, f"s_mov_b32 s{sTmp}, s{sAD}")
    a(f"""
    buffer_load_dwordx4 {vr(AQ1,4)}, v{vGK1}, {sr(SWS,4)}, s{sTA} offen
    buffer_load_dwordx2 {vr(AQ2,2)}, v{vGK2}, {sr(SWS,4)}, s{sTA} offen
    v_lshlrev_b32 v{vt}, 7, v1
    s_mov_b32 exec_lo, 0x1ffffff
    s_mov_b32 exec_hi, 0
    buffer_load_dword v{vt+1}, v{vt}, {sr(SWS,4)}, s{sTouch} offen
    s_mov_b64 exec, -1
    """)
    if not FUSE:
        a(f"s_cmp_eq_u32 s{sWave}, 15")
        a("s_cbranch_scc0 K2_SIDE_RET")
        code_touch(a, vt + 2, vt, sTmp, "proj_kernel", "CODE_END")
    a("s_branch K2_SIDE_RET")
    a.label("K2_FALLBACK")
    a(f"""
    s_mov_b32 s{sRedo}, 1
    s_mov_b32 s3, {4*SEGB}
    v_mov_b32 v{vt+2}, 0xff800000
    s_barrier
    """)
    ones_rows()
    for c in range(3):
        dma_chunk(c)
    a.label("K2_MAXLOOP")
    a(f"""
    buffer_load_dwordx4 {vr(KF1,4)}, v{vGK1}, {sr(SWS,4)}, s3 offen
    buffer_load_dwordx2 {vr(KF2,2)}, v{vGK2}, {sr(SWS,4)}, s3 offen
    s_waitcnt vmcnt(0)
    """)
    for l in qk(SB[0], "0"):
        a(l)
    a("s_nop 15")
    for r in range(0, 16, 2):
        a(f"v_max3_f32 v{vt+2}, v{vt+2}, v{SB[0]+r}, v{SB[0]+r+1}")
    a(f"""
    s_add_u32 s3, s3, {TB}
    s_cmp_lt_u32 s3, {5*SEGB}
    s_cbranch_scc1 K2_MAXLOOP
    v_mov_b32 v{vt+3}, v{vt+2}
    s_nop 1
    v_permlane32_swap_b32 v{vt+2}, v{vt+3}
    s_nop 1
    v_max_f32 v{vt+2}, v{vt+2}, v{vt+3}
    """)
    for r in range(16):
        a(f"v_sub_f32 v{NEGM+r}, 0, v{vt+2}")
    zero_state()
    a("s_waitcnt lgkmcnt(0)")
    a("s_barrier")
    for l in kreads(0, vK10, vK20):
        a(l)
    a("s_branch K2_HAVE_M")
    if FUSE:
        a.label("CODE_END")
    return kernel_desc(name, NV, NV, 68)


K3_DIST = int(os.environ.get('K3D', '2'))
K3_NS = K3_DIST + 2
K3_LDS = K3_NS * 20480


def gen_k3(a):
    name = "proj_kernel"
    kernel_head(a, name)
    SWS, SOUT = 20, 24
    sWave, sMb, sNb = 16, 17, 18
    sO, sW, sRot, sM0, sOc, sWc = 28, 29, 31, 32, 33, 34
    vL16, vWj, vG, vOut, vOut2 = 2, 3, 7, 8, 9
    ACC = [16, 36]
    OF = 56
    WF = 56 + 16 * (K3_DIST + 1)
    NV = WF + 40
    DIST = K3_DIST
    NO = DIST + 1
    a("s_cmp_ge_u32 s2, 256")
    a("s_cbranch_scc1 K3_END")
    stamp(a, 0); stamp_rt(a, 1)
    a("""
    s_load_dwordx2 s[4:5], s[0:1], 56
    s_load_dwordx2 s[6:7], s[0:1], 72
    v_lshrrev_b32 v9, 6, v0
    v_and_b32 v1, 63, v0
    s_and_b32 s14, s2, 7
    v_readfirstlane_b32 s16, v9
    s_lshr_b32 s15, s2, 3
    s_lshl_b32 s17, s14, 2
    s_and_b32 s3, s15, 3
    s_add_u32 s17, s17, s3
    s_lshr_b32 s18, s15, 2
    v_lshlrev_b32 v2, 4, v1
    """)
    a(f"""
    s_and_b32 s19, s{sNb}, 1
    s_lshr_b32 s{sRot}, s{sNb}, 1
    s_lshl_b32 s3, s{sMb}, 2
    s_add_u32 s3, s3, s{sWave}
    s_mul_i32 s{sO}, s3, 20480
    s_add_u32 s{sO}, s{sO}, {O_OFF}
    s_mul_i32 s{sW}, s{sNb}, {5*20480}
    s_lshl_b32 s14, s{sWave}, 10
    s_add_u32 s{sW}, s{sW}, s14
    s_add_u32 s{sW}, s{sW}, {WOF_OFF}
    s_mov_b32 s{sM0}, s14
    s_mul_i32 s14, s19, {O_BR}
    s_mul_i32 s15, s19, {WOF_BR}
    s_sub_u32 s36, {O_BR}, s14
    s_sub_u32 s37, {WOF_BR}, s15
    s_add_u32 s36, s36, s{sO}
    s_add_u32 s37, s37, s{sW}
    s_add_u32 s{sO}, s{sO}, s14
    s_add_u32 s{sW}, s{sW}, s15
    s_waitcnt lgkmcnt(0)
    """)
    srd(a, SWS, 6, WS_BYTES)
    srd(a, SOUT, 4, 2621440)

    def load_items(g):
        pre = []
        if g == 5:
            pre += [f"s_mov_b32 s{sO}, s36", f"s_mov_b32 s{sW}, s37"]
        pre += [f"s_lshl_b32 s14, s{sRot}, 12",
                f"s_add_u32 s{sOc}, s{sO}, s14",
                f"s_add_u32 s{sWc}, s{sW}, s14",
                f"s_add_u32 s{sRot}, s{sRot}, 1",
                f"s_cmp_ge_u32 s{sRot}, 5",
                f"s_cselect_b32 s{sRot}, 0, s{sRot}"]
        items = []
        for k in range(4):
            items.append([f"buffer_load_dwordx4 {vr(OF + (g % NO) * 16 + 4 * k, 4)}, v{vL16}, {sr(SWS,4)}, s{sOc} offen offset:{1024*k}"])
        for nt in range(5):
            items.append([f"s_add_u32 m0, s{sM0}, {(g % K3_NS) * 20480 + nt * 4096}",
                          f"s_add_u32 s{sWc}, s{sWc}, 20480" if nt else "s_nop 0",
                          f"buffer_load_dwordx4 v{vL16}, {sr(SWS,4)}, s{sWc} offen lds"])
        items[0] = pre + items[0]
        return items

    def loads(g):
        for it in load_items(g):
            for l in it:
                a(l)

    if 'k3_wfirst' in EXP and DIST == 2:
        i0 = load_items(0)
        pre0, o0first = i0[0][:-1], i0[0][-1]
        for l in pre0: a(l)
        a(f"s_mov_b32 s40, s{sOc}")
        for it in i0[4:]:
            for l in it: a(l)
        for l in [o0first] + [it[0] for it in i0[1:4]]:
            a(l)
        i1 = load_items(1)
        for it in i1:
            for l in it: a(l)
    else:
        for g in range(DIST):
            loads(g)
    a(f"""
    v_and_b32 v9, 15, v1
    v_lshlrev_b32 v10, 2, v9
    s_lshl_b32 s14, s3, 6
    s_add_u32 s35, s14, {G_OFF}
    v_lshrrev_b32 v11, 4, v1
    v_mul_u32_u24 v12, 2560, v9
    v_and_b32 v13, 1, v11
    v_lshlrev_b32 v13, 5, v13
    v_lshrrev_b32 v14, 1, v11
    v_lshlrev_b32 v14, 4, v14
    v_add3_u32 v{vOut}, v12, v13, v14
    v_lshl_add_u32 v{vOut2}, v11, 3, v12
    v_add_u32 v{vWj}, 40960, v{vL16}
    v_add_u32 v{vWj+1}, 81920, v{vL16}
    s_and_b32 s14, s3, 63
    s_mul_i32 s14, s14, {16*2560}
    s_lshr_b32 s15, s3, 6
    s_mul_i32 s15, s15, 1280
    s_add_u32 s30, s14, s15
    s_mul_i32 s15, s{sNb}, 160
    s_add_u32 s30, s30, s15
    """)

    def wread(g, k):
        slot = g % K3_NS
        base, off = ((vL16, vWj, vWj + 1)[slot // 2], (slot % 2) * 20480)
        return [f"ds_read_b128 {vr(WF + (k % 2) * 20 + 4 * nt, 4)}, v{base} offset:{off + nt*4096 + k*1024}" for nt in range(5)]

    for g in range(10):
        if g == 0: stamp(a, 2)
        n_after = 9 * (min(10, g + DIST) - 1 - g) + (1 if g == 9 else 0)
        a(f"s_waitcnt vmcnt({n_after})")
        a("s_barrier")
        if g == 0: stamp(a, 3)
        for l in wread(g, 0):
            a(l)
        items = load_items(g + DIST) if g + DIST < 10 else []
        if g == 8:
            items = [[f"buffer_load_dword v{vG}, v10, {sr(SWS,4)}, s35 offen"]]
        if items:
            for l in items.pop(0):
                a(l)
        acc = ACC[g // 5]
        for k in range(4):
            if k < 3:
                for l in wread(g, k + 1):
                    a(l)
                a("s_waitcnt lgkmcnt(5)")
            else:
                a("s_waitcnt lgkmcnt(0)")
            for nt in range(5):
                d = vr(acc + 4 * nt, 4)
                c = "0" if (g % 5 == 0 and k == 0) else d
                a(f"v_mfma_f32_16x16x32_bf16 {d}, {vr(WF + (k % 2) * 20 + 4 * nt, 4)}, {vr(OF + (g % NO) * 16 + 4 * k, 4)}, {c}")
                if nt in (1, 3) and items:
                    for l in items.pop(0):
                        a(l)
        assert not items
    stamp(a, 4)
    a(f"""
    s_waitcnt vmcnt(0)
    v_sub_f32 v10, 1.0, v{vG}
    s_cmp_eq_u32 s19, 0
    s_cselect_b64 s[38:39], -1, 0
    v_cndmask_b32 v11, v10, v{vG}, s[38:39]
    v_cndmask_b32 v10, v{vG}, v10, s[38:39]
    """)
    A0, A1 = ACC
    for i in range(20):
        a(f"v_mul_f32 v{A0+i}, v{A0+i}, v11")
    for i in range(20):
        a(f"v_fma_f32 v{A0+i}, v{A1+i}, v10, v{A0+i}")
    for pr in range(2):
        b0 = A0 + pr * 8
        b1 = b0 + 4
        a(f"v_cvt_pk_bf16_f32 v{b0}, v{b0}, v{b0+1}")
        a(f"v_cvt_pk_bf16_f32 v{b0+1}, v{b0+2}, v{b0+3}")
        a(f"v_cvt_pk_bf16_f32 v{b0+2}, v{b1}, v{b1+1}")
        a(f"v_cvt_pk_bf16_f32 v{b0+3}, v{b1+2}, v{b1+3}")
        a("s_nop 1")
        a(f"v_permlane16_swap_b32 v{b0}, v{b0+2}")
        a(f"v_permlane16_swap_b32 v{b0+1}, v{b0+3}")
        a("s_nop 0")
        a(f"buffer_store_dwordx4 {vr(b0,4)}, v{vOut}, {sr(SOUT,4)}, s30 offen offset:{pr*64}")
    b0 = A0 + 16
    a(f"v_cvt_pk_bf16_f32 v{b0}, v{b0}, v{b0+1}")
    a(f"v_cvt_pk_bf16_f32 v{b0+1}, v{b0+2}, v{b0+3}")
    a(f"buffer_store_dwordx2 {vr(b0,2)}, v{vOut2}, {sr(SOUT,4)}, s30 offen offset:128")
    stamp(a, 5)
    if STAMP: a("s_waitcnt vmcnt(0)")
    stamp(a, 6); stamp_rt(a, 7)
    stamp_flush(a, 2, SWS, sWave, 8, 10)
    a.label("K3_END")
    a("s_endpgm")
    a.label("CODE_END")
    return kernel_desc(name, NV, NV, 44)


def gen_diag(a):
    name = "diag_kernel"
    kernel_head(a, name)
    a("""
    s_cmp_ge_u32 s2, 1
    s_cbranch_scc1 KD_END
    s_load_dwordx4 s[4:7], s[0:1], 64
    s_waitcnt lgkmcnt(0)
    """)
    srd(a, 8, 6, WS_BYTES)
    srd(a, 12, 4, 256)
    a("v_lshlrev_b32 v1, 10, v0")
    a("v_mov_b32 v2, 0")
    for k, waves, idx in ((0, (0, 3), (3, 4)), (1, (0, 15), (3, 5)), (2, (0, 3), (3, 4))):
        for wi, w in enumerate(waves):
            a(f"s_mov_b32 s16, {DBG_OFF + k*(1<<18) + w*64}")
            a("buffer_load_dwordx4 v[4:7], v1, s[8:11], s16 offen")
            a("buffer_load_dwordx4 v[8:11], v1, s[8:11], s16 offen offset:16")
            a("s_waitcnt vmcnt(0)")
            a("v_not_b32 v12, v5")
            a(f"buffer_atomic_umax v12, v2, s[12:15], 0 offen offset:{k*20}")
            a(f"buffer_atomic_umax v11, v2, s[12:15], 0 offen offset:{k*20+4}")
            if wi == 0:
                a(f"v_sub_u32 v12, v{4+idx[0]}, v4")
                a(f"buffer_atomic_add v12, v2, s[12:15], 0 offen offset:{k*20+8}")
                a(f"v_sub_u32 v13, v{4+idx[1]}, v4")
                a(f"buffer_atomic_add v13, v2, s[12:15], 0 offen offset:{k*20+12}")
                a(f"v_sub_u32 v14, v10, v4")
                a(f"buffer_atomic_add v14, v2, s[12:15], 0 offen offset:{k*20+16}")
            a("s_waitcnt vmcnt(0)")
    a.label("KD_END")
    a("s_endpgm")
    return kernel_desc(name, 16, 16, 24)


def main():
    global STAMP
    if "--stamp" in sys.argv:
        STAMP = True
        sys.argv.remove("--stamp")
    ref = open(OUT + ".ref").read().split("\n")
    head = [l for l in ref if l.startswith(";") and "@launch" not in l]
    a = Asm()
    for l in head:
        a.raw(l)
    a.raw(f"; @launch kernel=qkv_kernel grid=(256,1,1) block=(512,1,1) lds={K1_LDS}")
    a.raw(f"; @launch kernel=attn_kernel grid=(256,1,1) block=(1024,1,1) lds={K2_LDS}")
    if not FUSE:
        a.raw(f"; @launch kernel=proj_kernel grid=(256,1,1) block=(256,1,1) lds={K3_LDS}")
    if 'diag' in EXP:
        a.raw("; @launch kernel=diag_kernel grid=(1,1,1) block=(256,1,1) lds=0")
    a.raw('.amdgcn_target "amdgcn-amd-amdhsa--gfx950"')
    a.raw(".text")
    d = [gen_k1(a), gen_k2(a)] + ([] if FUSE else [gen_k3(a)]) + ([gen_diag(a)] if 'diag' in EXP else [])
    a.raw('.section .rodata,"a"')
    for x in d:
        a.raw(".p2align 6")
        a.raw(x.rstrip("\n"))
    out = sys.argv[1] if len(sys.argv) > 1 else OUT
    open(out, "w").write(a.text())
    print("wrote", out, len(a.L), "lines")


if __name__ == "__main__":
    main()
```

```python
import sys, math, struct, os
EXP = os.environ.get('EXP', '').split(',')

NAME = "gated_mix__sliding_local_dilated__mha_block__prompt"
OUT = f"cdna_kernels/{NAME}.s"

SEGB = 2621440
TB = 40960
O_OFF = 16 << 20
O_BR = 2621440
WOF_OFF = 24 << 20
WOF_BR = 819200
G_OFF = 28 << 20
CNT_OFF = G_OFF + 65536
WS_BYTES = 32 << 20
QSCALE = (20 ** -0.5) * math.log2(math.e)


def f32(x):
    return "0x%08x" % struct.unpack("<I", struct.pack("<f", x))[0]


def pi5(i):
    return (i & ~12) | ((i & 4) << 1) | ((i & 8) >> 1)


class Asm:
    def __init__(self):
        self.L = []

    def __call__(self, s):
        for l in s.strip("\n").split("\n"):
            self.L.append("    " + l.strip())

    def label(self, l):
        self.L.append(l + ":")

    def raw(self, s):
        self.L.append(s)

    def text(self):
        return "\n".join(self.L) + "\n"


def vr(b, n=1, p="v"):
    return f"{p}{b}" if n == 1 else f"{p}[{b}:{b+n-1}]"


def ar(b, n=1):
    return vr(b, n, "a")


def sr(b, n=1):
    return vr(b, n, "s")


STAMP = False
K2STF = ' sc1' if 'k2_sc1' in EXP else ''
DBG_OFF = 30 << 20


def stamp(a, idx, sbase=70):
    if not STAMP:
        return
    a(f"s_memtime s[{sbase+16}:{sbase+17}]")
    a("s_waitcnt lgkmcnt(0)")
    a(f"s_mov_b32 s{sbase+idx}, s{sbase+16}")


def stamp_rt(a, idx, sbase=70):
    if not STAMP:
        return
    a(f"s_memrealtime s[{sbase+16}:{sbase+17}]")
    a("s_waitcnt lgkmcnt(0)")
    a(f"s_mov_b32 s{sbase+idx}, s{sbase+16}")


def stamp_flush(a, kidx, srd_ws, swave, n, vtmp, sbase=70, shift=4):
    if not STAMP:
        return
    a("s_mov_b64 exec, -1")
    a(f"s_lshl_b32 s{sbase+16}, s2, {shift}")
    a(f"s_add_u32 s{sbase+16}, s{sbase+16}, s{swave}")
    a(f"s_lshl_b32 s{sbase+16}, s{sbase+16}, 6")
    a(f"s_add_u32 s{sbase+16}, s{sbase+16}, {DBG_OFF + kidx*(1<<18)}")
    a(f"v_mov_b32 v{vtmp+1}, 0")
    for i in range(n):
        a(f"v_mov_b32 v{vtmp}, s{sbase+i}")
        a(f"buffer_store_dword v{vtmp}, v{vtmp+1}, s[{srd_ws}:{srd_ws+3}], s{sbase+16} offen offset:{4*i}")


def kernel_head(a, name):
    a.raw(f".globl {name}")
    a.raw(".p2align 8")
    a.raw(f".type {name},@function")
    a.label(name)


def kernel_desc(name, vgpr_total, accum, sgpr):
    return f""".amdhsa_kernel {name}
  .amdhsa_next_free_vgpr {vgpr_total}
  .amdhsa_next_free_sgpr {96 if STAMP else sgpr}
  .amdhsa_accum_offset {accum}
  .amdhsa_group_segment_fixed_size 0
  .amdhsa_kernarg_size 80
  .amdhsa_user_sgpr_count 2
  .amdhsa_user_sgpr_kernarg_segment_ptr 1
  .amdhsa_system_sgpr_workgroup_id_x 1
.end_amdhsa_kernel
"""


def srd(a, d, base, nbytes):
    a(f"s_mov_b32 s{d}, s{base}")
    a(f"s_mov_b32 s{d+1}, s{base+1}")
    a(f"s_mov_b32 s{d+2}, {nbytes}")
    a(f"s_mov_b32 s{d+3}, 0x00020000")


G_WST = 8704
G_ST = G_WST + 8192


def gen_gemm(a, pfx, br, NS, sJ, done_label, stf, kidx, pairx=False):
    SX, SW, SR = 20, 24, 28
    sWave = 19
    a(f"""
    s_mul_i32 s12, s{sJ}, 1093
    s_lshr_b32 s12, s12, 16
    s_mul_i32 s13, s12, 60
    s_sub_u32 s13, s{sJ}, s13
    s_lshr_b32 s17, s13, 2
    s_and_b32 s13, s13, 3
    s_lshl_b32 s12, s12, 2
    s_add_u32 s16, s12, s13
    s_lshr_b32 s14, s16, 3
    s_and_b32 s15, s16, 7
    s_cmp_ge_u32 s{sWave}, 4
    s_cbranch_scc0 {pfx}_COMPUTE
    """)
    vW, vXg = 8, 10
    sWo, sXo, sWl, sXl, sWc, sXc, sOrd = 32, 33, 34, 35, 36, 37, 38
    K1_D = int(os.environ.get('K1D', '2'))
    ORD = []
    for g in range(4):
        o = list(range(10))
        for b in range(10):
            if b % 4 == g and K1_D:
                p = o.index(b)
                o.pop(p)
                o.insert(max(0, p - K1_D), b)
        ORD.append(sum(b << (4 * i) for i, b in enumerate(o)))
    a(f"""
    v_lshrrev_b32 v4, 4, v1
    v_and_b32 v3, 15, v1
    v_mul_u32_u24 v5, {4*3840}, v4
    v_lshl_add_u32 v{vW}, v3, 4, v5
    v_add_u32 v{vW+1}, {3840-1088}, v{vW}
    v_lshrrev_b32 v5, 2, v1
    v_and_b32 v6, 3, v1
    v_xor_b32 v6, v6, v4
    v_mul_u32_u24 v5, 2560, v5
    v_lshl_add_u32 v{vXg}, v6, 4, v5
    v_add_u32 v{vXg+1}, {16*2560-1024}, v{vXg}
    s_and_b32 s3, s{sWave}, 3
    s_lshr_b32 s12, s3, 1
    s_lshl_b32 s12, s12, 4
    s_and_b32 s18, s3, 1
    s_lshl_b32 s18, s18, 1
    s_add_u32 s12, s12, s18
    s_mul_i32 s{sWo}, s12, 3840
    s_lshl_b32 s12, s17, 8
    s_add_u32 s{sWo}, s{sWo}, s12
    s_mul_i32 s{sWl}, s3, {2*1088}
    s_lshl_b32 s{sXl}, s3, 11
    s_add_u32 s{sXl}, s{sXl}, {G_WST}
    s_lshl_b32 s12, s15, 2
    s_add_u32 s12, s12, s3
    s_mul_i32 s{sXo}, s12, {32*2560}
    s_mul_i32 s12, s14, 1280
    s_add_u32 s{sXo}, s{sXo}, s12
    s_add_u32 s3, s13, s17
    s_and_b32 s3, s3, 3
    s_mov_b32 s{sOrd}, {ORD[0] & 0xffffffff}
    s_mov_b32 s{sOrd+1}, {ORD[0] >> 32}
    s_cmp_eq_u32 s3, 1
    s_cselect_b32 s{sOrd}, {ORD[1] & 0xffffffff}, s{sOrd}
    s_cselect_b32 s{sOrd+1}, {ORD[1] >> 32}, s{sOrd+1}
    s_cmp_eq_u32 s3, 2
    s_cselect_b32 s{sOrd}, {ORD[2] & 0xffffffff}, s{sOrd}
    s_cselect_b32 s{sOrd+1}, {ORD[2] >> 32}, s{sOrd+1}
    s_cmp_eq_u32 s3, 3
    s_cselect_b32 s{sOrd}, {ORD[3] & 0xffffffff}, s{sOrd}
    s_cselect_b32 s{sOrd+1}, {ORD[3] >> 32}, s{sOrd+1}
    s_waitcnt lgkmcnt(0)
    """)
    srd(a, SX, 4, 2621440)
    srd(a, SW, 6, 2457600)
    srd(a, SR, 10, WS_BYTES)

    hist = []

    def xload(k):
        a(f"s_add_u32 m0, s{sXl}, {(k % NS) * G_ST}")
        a(f"s_add_u32 s{sXc}, s{sXc}, s{sXo}" if k % 2 == 0 else f"s_add_u32 s{sXc}, s{sXc}, 64")
        for q in range(2):
            a(f"buffer_load_dwordx4 v{vXg+q}, {sr(SX,4)}, s{sXc} offen offset:{1024*q} lds")
        hist.append(("X", k))

    def stage_loads(k):
        if k % 2 == 0:
            j = k // 2
            a(f"s_bfe_u32 s3, s{sOrd + j // 8}, {(4 << 16) | (4 * (j % 8))}")
            a(f"s_mul_i32 s{sWc}, s3, {2*122880}")
            a(f"s_lshl_b32 s{sXc}, s3, 7")
            xload(k)
            if pairx:
                xload(k + 1)
        elif not pairx:
            xload(k)
        a(f"s_add_u32 m0, s{sWl}, {(k % NS) * G_ST}")
        a(f"s_add_u32 s{sWc}, s{sWc}, s{sWo}" if k % 2 == 0 else f"s_add_u32 s{sWc}, s{sWc}, 122880")
        for i in range(2):
            a(f"buffer_load_dwordx4 v{vW+i}, {sr(SW,4)}, s{sWc} offen offset:{1088*i} lds")
        hist.append(("W", k))

    issued = [0]

    def issue(step, nmax):
        n = 0
        while issued[0] < 20 and n < nmax and (issued[0] + (1 if pairx and issued[0] % 2 == 0 else 0)) - NS <= step - 1:
            stage_loads(issued[0])
            issued[0] += 1
            n += 1

    def need(ks):
        a(f"s_waitcnt vmcnt({2 * (len(hist) - 1 - hist.index(('W', ks)))})")
        a("s_barrier")

    RAMP = [int(c) for c in os.environ.get('GRAMP', '3122')]
    issue(-2, RAMP[0])
    stamp(a, 2)
    need(0)
    stamp(a, 3)
    issue(-1, RAMP[1])
    for ks in range(19):
        need(ks + 1)
        if ks % 2 == 1 and ks <= 15: stamp(a, 8 + ks // 2)
        issue(ks, RAMP[ks + 2] if ks + 2 < len(RAMP) else RAMP[-1])
    assert issued[0] == 20
    a("s_barrier")
    stamp(a, 4); stamp(a, 5)
    a(f"s_branch {done_label}")

    a.label(f"{pfx}_COMPUTE")
    ACC = 16
    WFR = 80
    XFR = [96, 112]
    vTr0, vTr, vXr0, vXr, vSt = 8, 9, 10, 12, 14
    sRd, sIt, sSt, sSeg = 32, 34, 36, 35
    a(f"""
    v_bfe_u32 v3, v1, 2, 2
    v_mul_u32_u24 v3, 1088, v3
    v_lshrrev_b32 v4, 5, v1
    v_lshl_add_u32 v3, v4, 9, v3
    v_bfe_u32 v5, v1, 4, 1
    v_lshl_add_u32 v3, v5, 5, v3
    v_and_b32 v5, 3, v1
    v_lshl_add_u32 v3, v5, 3, v3
    s_and_b32 s12, s{sWave}, 1
    s_lshl_b32 s3, s12, 7
    v_add_u32 v{vTr0}, s3, v3
    v_and_b32 v5, 19, v1
    v_bfe_u32 v6, v1, 2, 1
    v_lshl_or_b32 v5, v6, 3, v5
    v_bfe_u32 v6, v1, 3, 1
    v_lshl_or_b32 v5, v6, 2, v5
    v_bfe_u32 v6, v5, 2, 2
    v_xor_b32 v6, v6, v4
    v_lshlrev_b32 v6, 4, v6
    v_lshl_add_u32 v5, v5, 6, v6
    s_lshr_b32 s13, s{sWave}, 1
    s_lshl_b32 s3, s13, 12
    s_add_u32 s3, s3, {G_WST}
    v_add_u32 v{vXr0}, s3, v5
    v_xor_b32 v{vXr0+1}, 32, v{vXr0}
    v_mov_b32 v{vXr}, v{vXr0}
    v_mov_b32 v{vXr+1}, v{vXr0+1}
    v_mov_b32 v{vTr}, v{vTr0}
    s_mov_b32 s{sRd}, {G_ST}
    s_mov_b32 s{sIt}, 0
    s_mul_i32 s{sSeg}, s17, 52
    s_lshr_b32 s{sSeg}, s{sSeg}, 8
    s_mul_i32 s3, s{sSeg}, 5
    s_sub_u32 s17, s17, s3
    s_lshl_b32 s17, s17, 1
    s_add_u32 s17, s17, s12
    s_add_u32 s3, s{sSeg}, {br if isinstance(br, str) else 3*br}
    s_mul_i32 s{sSt}, s3, {SEGB}
    s_lshl_b32 s3, s16, 1
    s_add_u32 s3, s3, s13
    s_mul_i32 s3, s3, {2*TB}
    s_add_u32 s{sSt}, s{sSt}, s3
    s_waitcnt lgkmcnt(0)
    """)
    srd(a, SR, 10, WS_BYTES)
    for i in range(64):
        a(f"v_mov_b32 v{ACC+i}, 0")

    def xreads(fset):
        return [f"ds_read_b128 {vr(XFR[fset] + (mt*2+kk)*4, 4)}, v{vXr+kk} offset:{2048*mt}" for kk in range(2) for mt in range(2)]

    def wreads(nt, kk):
        b = WFR + (nt * 2 + kk) * 4
        return [f"ds_read_b64_tr_b16 {vr(b + 2*s, 2)}, v{vTr} offset:{kk*4352 + s*256 + nt*64}" for s in range(2)]

    stamp(a, 2)
    a("s_barrier")
    stamp(a, 3)
    x0 = xreads(0)
    for l in x0[:2] + wreads(0, 0) + x0[2:] + wreads(1, 0) + wreads(0, 1) + wreads(1, 1):
        a(l)
    a(f"s_cmp_eq_u32 s{sSeg}, 2")
    a(f"s_cbranch_scc1 {pfx}_LOOP_N")
    for ori in ("T", "N"):
        a.raw(".p2align 3")
        a.label(f"{pfx}_LOOP_{ori}")
        for s in range(2):
            a(f"v_add_u32 v{vTr}, s{sRd}, v{vTr0}")
            a(f"v_add_u32 v{vXr}, s{sRd}, v{vXr0}")
            a(f"v_add_u32 v{vXr+1}, s{sRd}, v{vXr0+1}")
            a("s_barrier")
            xr = xreads(1 - s)
            rest = [f"s_add_u32 s{sRd}, s{sRd}, {G_ST}",
                    f"s_cmp_ge_u32 s{sRd}, {NS*G_ST}",
                    f"s_cselect_b32 s{sRd}, 0, s{sRd}"]
            if s == 1:
                rest += [f"s_add_u32 s{sIt}, s{sIt}, 1", f"s_cmp_lt_u32 s{sIt}, 10"]
            idx = 0
            for kk in range(2):
                for nt in range(2):
                    for mt in range(2):
                        acc = vr(ACC + (nt * 2 + mt) * 16, 16)
                        w = vr(WFR + (nt * 2 + kk) * 4, 4)
                        x = vr(XFR[s] + (mt * 2 + kk) * 4, 4)
                        if mt == 0:
                            a(f"s_waitcnt lgkmcnt({8 if kk == 0 else 10})")
                        if ori == "T":
                            a(f"v_mfma_f32_32x32x16_bf16 {acc}, {w}, {x}, {acc}")
                        else:
                            a(f"v_mfma_f32_32x32x16_bf16 {acc}, {x}, {w}, {acc}")
                        if mt == 0:
                            if idx < 2:
                                a(xr[2 * idx]); a(xr[2 * idx + 1])
                            else:
                                for l in (rest[:3] if idx == 2 else rest[3:]):
                                    a(l)
                            idx += 1
                        else:
                            for l in wreads(nt, kk):
                                a(l)
        a(f"s_cbranch_scc1 {pfx}_LOOP_{ori}")
        stamp(a, 4)
        if ori == "T":
            a(f"""
            s_lshl_b32 s3, s17, 12
            s_add_u32 s{sSt}, s{sSt}, s3
            s_add_u32 s{sSt+1}, s{sSt}, {TB}
            s_cmp_eq_u32 s{sSeg}, 0
            s_cselect_b32 s40, {f32(QSCALE)}, 1.0
            s_mov_b32 s41, s40
            v_lshlrev_b32 v{vSt}, 4, v1
            s_nop 7
            """)
        else:
            a(f"""
            s_lshl_b32 s3, s17, 10
            s_add_u32 s{sSt}, s{sSt}, s3
            s_add_u32 s{sSt+1}, s{sSt}, {TB}
            s_add_u32 s{sSt+2}, s{sSt}, 20480
            s_add_u32 s{sSt+3}, s{sSt+1}, 20480
            v_mul_u32_u24 v5, 10240, v4
            v_and_b32 v6, 31, v1
            v_lshl_add_u32 v{vSt}, v6, 4, v5
            s_nop 7
            """)
        for nt in range(2):
            for mt in range(2):
                for jp in range(2):
                    b0 = ACC + (nt * 2 + mt) * 16 + 8 * jp
                    if ori == "T":
                        for i in range(4):
                            a(f"v_pk_mul_f32 {vr(b0+2*i,2)}, {vr(b0+2*i,2)}, s[40:41]")
                    for i in range(4):
                        a(f"v_cvt_pk_bf16_f32 v{b0+i}, v{b0+2*i}, v{b0+2*i+1}")
                    if ori == "T":
                        a("s_nop 1")
                        a(f"v_permlane32_swap_b32 v{b0}, v{b0+2}")
                        a(f"v_permlane32_swap_b32 v{b0+1}, v{b0+3}")
                        a("s_nop 0")
                        a(f"buffer_store_dwordx4 {vr(b0,4)}, v{vSt}, {sr(SR,4)}, s{sSt + mt} offen offset:{nt*2048 + jp*1024}{stf}")
                    else:
                        a(f"buffer_store_dwordx4 {vr(b0,4)}, v{vSt}, {sr(SR,4)}, s{sSt + mt + 2*jp} offen offset:{nt*512}{stf}")
        stamp(a, 5)
        a(f"s_branch {done_label}")


K1_WST = 16896
K1_NSW = 6 if 'k1_nsw6' in EXP else 5
K1_NSX = 3
K1_XB = K1_WST * K1_NSW
K1_LDS = K1_XB + K1_NSX * 16384


STF = '' if 'k1_plain' in EXP else (' nt' if 'k1_nt' in EXP else (' sc1 nt' if 'k1_sc1nt' in EXP else (' sc0 sc1 nt' if 'k1_all' in EXP else ' sc1')))


def gen_k1(a):
    name = "qkv_kernel"
    kernel_head(a, name)
    SX, SW, SR = 20, 24, 28
    sWave = 19
    a("s_cmp_ge_u32 s2, 256")
    a("s_cbranch_scc1 K1_END")
    stamp(a, 0); stamp_rt(a, 1)
    a("""
    s_load_dwordx4 s[4:7], s[0:1], 0
    s_load_dwordx2 s[8:9], s[0:1], 32
    s_load_dwordx2 s[10:11], s[0:1], 72
    """)
    if 'noct' not in EXP:
        code_touch(a, 31, 30, 52, "K1_CT0", "attn_kernel", lane="v0")
        a.label("K1_CT0")
    a("""
    v_lshrrev_b32 v2, 6, v0
    v_and_b32 v1, 63, v0
    s_and_b32 s12, s2, 7
    v_readfirstlane_b32 s19, v2
    s_cmp_ge_u32 s2, 240
    s_cbranch_scc1 K1_SIDE
    s_lshr_b32 s13, s2, 3
    s_mul_i32 s12, s12, 30
    s_add_u32 s12, s12, s13
    s_cmp_ge_u32 s12, 120
    s_cselect_b32 s14, 1, 0
    s_cselect_b32 s13, 120, 0
    s_sub_u32 s12, s12, s13
    s_and_b32 s15, s12, 7
    s_lshr_b32 s16, s12, 3
    v_and_b32 v3, 15, v1
    v_lshrrev_b32 v4, 4, v1
    """)
    a(f"""
    s_cmp_ge_u32 s{sWave}, 4
    s_cselect_b32 s12, 1, 0
    s_lshr_b32 s12, s{sWave}, s12
    s_and_b32 s12, s12, 1
    s_lshl_b32 s17, s16, 1
    s_add_u32 s17, s17, s12
    s_cmp_ge_u32 s17, 15
    s_cselect_b32 s18, 1, 0
    s_cselect_b32 s13, 15, 0
    s_sub_u32 s17, s17, s13
    s_movk_i32 s60, 3840
    s_mov_b32 s62, 2621440
    s_movk_i32 s63, 128
    s_cmp_ge_u32 s{sWave}, 4
    s_cbranch_scc0 K1_COMPUTE
    """)
    vW, vXg = 8, 12
    sWo, sXo, sWl, sXl, sWc, sXc, sOrd = 32, 33, 34, 35, 36, 37, 38
    K1_D = int(os.environ.get('K1D', '2'))
    ORD = []
    for g in range(4):
        o = list(range(10))
        for b in range(10):
            if b % 4 == g and K1_D:
                p = o.index(b)
                o.pop(p)
                o.insert(max(0, p - K1_D), b)
        ORD.append(sum(b << (4 * i) for i, b in enumerate(o)))
    a(f"""
    v_lshrrev_b32 v5, 1, v4
    v_and_b32 v6, 1, v4
    v_lshlrev_b32 v5, 4, v5
    v_lshl_add_u32 v5, v6, 2, v5
    v_mul_u32_u24 v5, 3840, v5
    v_lshl_add_u32 v{vW}, v3, 4, v5
    v_add_u32 v{vW+1}, 2784, v{vW}
    v_add_u32 v{vW+2}, {2*2784}, v{vW}
    v_add_u32 v{vW+3}, {3*2784}, v{vW}
    v_lshrrev_b32 v5, 3, v1
    v_and_b32 v6, 7, v1
    v_xor_b32 v6, v6, v5
    v_mul_u32_u24 v5, 2560, v5
    v_lshl_add_u32 v{vXg}, v6, 4, v5
    v_add_u32 v{vXg+1}, 19456, v{vXg}
    v_add_u32 v{vXg+2}, {2*19456}, v{vXg}
    v_add_u32 v{vXg+3}, {3*19456}, v{vXg}
    s_and_b32 s13, s{sWave}, 1
    s_mul_i32 s{sWo}, s13, {8*3840}
    s_lshl_b32 s3, s17, 8
    s_add_u32 s{sWo}, s{sWo}, s3
    s_and_b32 s3, s{sWave}, 3
    s_mul_i32 s{sWl}, s3, {4*1056}
    s_lshl_b32 s{sXl}, s3, 12
    s_add_u32 s{sXl}, s{sXl}, {K1_XB}
    s_lshl_b32 s13, s15, 2
    s_add_u32 s13, s13, s3
    s_mul_i32 s{sXo}, s13, {32*2560}
    s_mul_i32 s13, s14, 1280
    s_add_u32 s{sXo}, s{sXo}, s13
    s_add_u32 s3, s15, s16
    s_and_b32 s3, s3, 3
    s_mov_b32 s{sOrd}, {ORD[0] & 0xffffffff}
    s_mov_b32 s{sOrd+1}, {ORD[0] >> 32}
    s_cmp_eq_u32 s3, 1
    s_cselect_b32 s{sOrd}, {ORD[1] & 0xffffffff}, s{sOrd}
    s_cselect_b32 s{sOrd+1}, {ORD[1] >> 32}, s{sOrd+1}
    s_cmp_eq_u32 s3, 2
    s_cselect_b32 s{sOrd}, {ORD[2] & 0xffffffff}, s{sOrd}
    s_cselect_b32 s{sOrd+1}, {ORD[2] >> 32}, s{sOrd+1}
    s_cmp_eq_u32 s3, 3
    s_cselect_b32 s{sOrd}, {ORD[3] & 0xffffffff}, s{sOrd}
    s_cselect_b32 s{sOrd+1}, {ORD[3] >> 32}, s{sOrd+1}
    s_cmp_eq_u32 s18, 0
    s_waitcnt lgkmcnt(0)
    s_cselect_b64 s[6:7], s[6:7], s[8:9]
    """)
    srd(a, SX, 4, 2621440)
    srd(a, SW, 6, 2457600)
    if STAMP:
        srd(a, SR, 10, WS_BYTES)
    hist = []

    def blk(j, dst):
        r = sOrd + (j // 8)
        a(f"s_bfe_u32 s{dst}, s{r}, {(4 << 16) | (4 * (j % 8))}")

    def wl(k):
        a(f"s_add_u32 m0, s{sWl}, {(k % K1_NSW) * K1_WST}")
        if k % 2 == 0:
            blk(k // 2, sWc)
            a(f"s_mul_i32 s{sWc}, s{sWc}, {2*122880}")
            a(f"s_add_u32 s{sWc}, s{sWc}, s{sWo}")
        else:
            a(f"s_add_u32 s{sWc}, s{sWc}, 122880")
        for i in range(4):
            a(f"buffer_load_dwordx4 v{vW+i}, {sr(SW,4)}, s{sWc} offen offset:{1056*i} lds")
        hist.append(("W", k))

    def xl(j):
        a(f"s_add_u32 m0, s{sXl}, {(j % K1_NSX) * 16384}")
        blk(j, sXc)
        a(f"s_lshl_b32 s{sXc}, s{sXc}, 7")
        a(f"s_add_u32 s{sXc}, s{sXc}, s{sXo}")
        for q in range(4):
            a(f"buffer_load_dwordx4 v{vXg+q}, {sr(SX,4)}, s{sXc} offen offset:{1024*q} lds")
        hist.append(("X", j))

    def need(ks):
        req = [("W", ks), ("X", ks // 2)]
        last = max(hist.index(r) for r in req)
        a(f"s_waitcnt vmcnt({4 * (len(hist) - 1 - last)})")
        a("s_barrier")

    seq = []
    for j in range(10):
        seq += [("X", j), ("W", 2 * j), ("W", 2 * j + 1)]
    pos = [0]

    def free_at(it):
        t, i = it
        if t == "W":
            return i - K1_NSW
        return 2 * (i - K1_NSX) + 1

    def issue(step, nmax):
        n = 0
        while pos[0] < len(seq) and n < nmax and free_at(seq[pos[0]]) <= step:
            t, i = seq[pos[0]]
            (wl if t == "W" else xl)(i)
            pos[0] += 1
            n += 1
    RAMP = [int(c) for c in os.environ.get('K1RAMP', '32222')]
    issue(-2, RAMP[0])
    stamp(a, 2)
    need(0)
    stamp(a, 3)
    issue(-1, RAMP[1])
    for ks in range(19):
        need(ks + 1)
        if ks % 2 == 1 and ks <= 15: stamp(a, 8 + ks // 2)
        issue(ks, RAMP[ks + 2] if ks + 2 < len(RAMP) else RAMP[-1])
    assert pos[0] == len(seq)
    a("s_barrier")
    stamp(a, 4); stamp(a, 5); stamp(a, 6); stamp_rt(a, 7)
    stamp_flush(a, 0, SR, sWave, 16, 2)
    a("s_endpgm")

    a.label("K1_COMPUTE")
    ACC = 32
    WFR = [0, 32]
    XFR = [64, 80]
    vTr0, vTr, vXr0, vXr, vSt = 8, 9, 10, 12, 14
    sRd, sXr, sIt, sSt, sSeg = 32, 33, 34, 36, 35
    TOUCH = 'k1_touch' in EXP
    ST, sTo, sTs = 44, 42, 43
    TD = 5
    if TOUCH:
        a(f"""
        v_lshrrev_b32 v5, 1, v1
        v_and_b32 v6, 1, v1
        v_lshlrev_b32 v6, 7, v6
        v_mad_u32_u24 v16, v5, s60, v6
        v_mul_u32_u24 v17, 2560, v1
        s_mul_i32 s{sTo}, s15, {8*3840}
        s_lshl_b32 s3, s17, 8
        s_add_u32 s{sTo}, s{sTo}, s3
        s_add_u32 s{sTo}, s{sTo}, {3*64*3840}
        s_lshl_b32 s3, s15, 3
        s_and_b32 s13, s16, 3
        s_lshl_b32 s13, s13, 1
        s_add_u32 s3, s3, s13
        s_and_b32 s13, s{sWave}, 1
        s_add_u32 s3, s3, s13
        s_mul_i32 s3, s3, {16*2560}
        s_mul_i32 s13, s14, 1280
        s_add_u32 s3, s3, s13
        s_add_u32 s3, s3, {3*128}
        s_cmp_eq_u32 s18, 0
        s_waitcnt lgkmcnt(0)
        s_cselect_b64 s[6:7], s[6:7], s[8:9]
        s_cmp_lt_u32 s{sWave}, 2
        s_cselect_b64 s[{ST}:{ST+1}], s[6:7], s[4:5]
        s_cselect_b32 s{ST+2}, 2457600, s62
        s_mov_b32 s{ST+3}, 0x00020000
        s_cselect_b32 s{sTo}, s{sTo}, s3
        s_cselect_b32 s{sTs}, {64*3840}, s63
        s_cselect_b64 s[50:51], -1, 0
        v_cndmask_b32 v16, v17, v16, s[50:51]
        v_cmp_gt_u32 s[50:51], 16, v1
        v_mov_b32 v17, 0x40000000
        s_nop 0
        v_cndmask_b32 v16, v17, v16, s[50:51]
        """)
        for b in range(3, TD):
            a(f"buffer_load_dword v18, v16, {sr(ST,4)}, s{sTo} offen")
            a(f"s_add_u32 s{sTo}, s{sTo}, s{sTs}")
    a(f"""
    v_and_b32 v5, 1, v4
    v_lshrrev_b32 v6, 2, v3
    v_lshl_add_u32 v5, v5, 2, v6
    v_mul_u32_u24 v5, 1056, v5
    v_lshrrev_b32 v6, 1, v4
    v_lshlrev_b32 v6, 9, v6
    v_and_b32 v7, 3, v3
    v_lshlrev_b32 v7, 3, v7
    v_add3_u32 v5, v5, v6, v7
    s_mul_i32 s3, s12, 8448
    v_add_u32 v{vTr0}, s3, v5
    v_and_b32 v5, 3, v3
    v_bfe_u32 v6, v3, 2, 1
    v_lshl_or_b32 v5, v6, 3, v5
    v_bfe_u32 v6, v3, 3, 1
    v_lshl_or_b32 v5, v6, 2, v5
    v_and_b32 v6, 7, v5
    v_xor_b32 v6, v6, v4
    v_lshlrev_b32 v6, 4, v6
    v_lshl_add_u32 v5, v5, 7, v6
    s_lshr_b32 s13, s{sWave}, 1
    s_lshl_b32 s3, s13, 13
    s_add_u32 s3, s3, {K1_XB}
    v_add_u32 v{vXr0}, s3, v5
    v_xor_b32 v{vXr0+1}, 64, v{vXr0}
    v_mov_b32 v{vXr}, v{vXr0}
    v_mov_b32 v{vXr+1}, v{vXr0+1}
    v_mov_b32 v{vTr}, v{vTr0}
    s_mov_b32 s{sRd}, {K1_WST}
    s_mov_b32 s{sXr}, 16384
    s_mov_b32 s{sIt}, 0
    s_mul_i32 s{sSeg}, s17, 52
    s_lshr_b32 s{sSeg}, s{sSeg}, 8
    s_mul_i32 s3, s{sSeg}, 5
    s_sub_u32 s17, s17, s3
    s_mul_i32 s3, s18, 3
    s_add_u32 s3, s3, s{sSeg}
    s_mul_i32 s{sSt}, s3, {SEGB}
    s_lshl_b32 s3, s14, 4
    s_lshl_b32 s16, s15, 1
    s_add_u32 s3, s3, s16
    s_add_u32 s3, s3, s13
    s_mul_i32 s3, s3, {2*TB}
    s_add_u32 s{sSt}, s{sSt}, s3
    s_waitcnt lgkmcnt(0)
    """)
    srd(a, SR, 10, WS_BYTES)
    for i in range(128):
        a(f"v_mov_b32 v{ACC+i}, 0")

    def reads(fset, kk):
        L = [f"ds_read_b128 {ar(XFR[fset]+4*mt,4)}, v{vXr+kk} offset:{2048*mt}" for mt in range(4)]
        for t in range(8):
            for s in range(2):
                L.append(f"ds_read_b64_tr_b16 {ar(WFR[fset]+4*t+2*s,2)}, v{vTr} offset:{s*256 + t*32}")
        return L

    stamp(a, 2)
    a("s_barrier")
    stamp(a, 3)
    for l in reads(0, 0):
        a(l)
    a(f"s_cmp_eq_u32 s{sSeg}, 2")
    a("s_cbranch_scc1 K1_LOOP_N")
    for ori in ("T", "N"):
        a.raw(".p2align 3")
        a.label(f"K1_LOOP_{ori}")
        for s in range(2):
            fs = s
            rd = reads(1 - fs, 1 - s)
            mf = []
            for t in range(8):
                for mt in range(4):
                    acc = vr(ACC + (t * 4 + mt) * 4, 4)
                    w = ar(WFR[fs] + 4 * t, 4)
                    x = ar(XFR[fs] + 4 * mt, 4)
                    if ori == "T":
                        mf.append(f"v_mfma_f32_16x16x32_bf16 {acc}, {w}, {x}, {acc}")
                    else:
                        mf.append(f"v_mfma_f32_16x16x32_bf16 {acc}, {x}, {w}, {acc}")
            a(f"v_add_u32 v{vTr}, s{sRd}, v{vTr0}")
            rest = [f"s_add_u32 s{sRd}, s{sRd}, {K1_WST}",
                    f"s_cmp_ge_u32 s{sRd}, {K1_XB}",
                    f"s_cselect_b32 s{sRd}, 0, s{sRd}"]
            if s == 0 and TOUCH:
                rest += [f"s_cmp_lt_u32 s{sIt}, {10-TD}",
                         f"s_cselect_b32 s{sTo}, s{sTo}, 0x40000000",
                         f"buffer_load_dword v18, v16, {sr(ST,4)}, s{sTo} offen",
                         f"s_add_u32 s{sTo}, s{sTo}, s{sTs}"]
            if s == 1:
                a(f"v_add_u32 v{vXr}, s{sXr}, v{vXr0}")
                rest += [f"v_add_u32 v{vXr+1}, s{sXr}, v{vXr0+1}",
                         f"s_add_u32 s{sXr}, s{sXr}, 16384",
                         f"s_cmp_ge_u32 s{sXr}, {K1_NSX*16384}",
                         f"s_cselect_b32 s{sXr}, 0, s{sXr}",
                         f"s_add_u32 s{sIt}, s{sIt}, 1",
                         f"s_cmp_lt_u32 s{sIt}, 10"]
            a("s_waitcnt lgkmcnt(0)")
            a("s_barrier")
            fill = rd + rest
            for i in range(32):
                a(mf[i])
                if i < len(fill):
                    a(fill[i])
        a(f"s_cbranch_scc1 K1_LOOP_{ori}")
        stamp(a, 4)
        if ori == "T":
            a(f"""
            s_lshl_b32 s3, s17, 13
            s_add_u32 s{sSt}, s{sSt}, s3
            s_add_u32 s{sSt+1}, s{sSt}, 4096
            s_add_u32 s{sSt+2}, s{sSt}, {TB}
            s_add_u32 s{sSt+3}, s{sSt+1}, {TB}
            s_cmp_eq_u32 s{sSeg}, 0
            s_cselect_b32 s40, {f32(QSCALE)}, 1.0
            s_mov_b32 s41, s40
            v_lshlrev_b32 v{vSt}, 4, v1
            s_nop 3
            """)
        else:
            a(f"""
            s_lshl_b32 s3, s17, 11
            s_add_u32 s{sSt}, s{sSt}, s3
            s_add_u32 s{sSt+2}, s{sSt}, {TB}
            v_mul_u32_u24 v5, 10240, v4
            v_lshl_add_u32 v{vSt}, v3, 4, v5
            s_nop 7
            """)
        for t in range(8):
            for mp in range(2):
                b0 = ACC + (t * 4 + 2 * mp) * 4
                b1 = b0 + 4
                if ori == "T":
                    for i in range(4):
                        a(f"v_pk_mul_f32 {vr(b0+2*i,2)}, {vr(b0+2*i,2)}, s[40:41]")
                a(f"v_cvt_pk_bf16_f32 v{b0}, v{b0}, v{b0+1}")
                a(f"v_cvt_pk_bf16_f32 v{b0+1}, v{b0+2}, v{b0+3}")
                a(f"v_cvt_pk_bf16_f32 v{b0+2}, v{b1}, v{b1+1}")
                a(f"v_cvt_pk_bf16_f32 v{b0+3}, v{b1+2}, v{b1+3}")
                a("s_nop 1")
                sw = "v_permlane16_swap_b32" if ori == "T" else "v_permlane32_swap_b32"
                a(f"{sw} v{b0}, v{b0+2}")
                a(f"{sw} v{b0+1}, v{b0+3}")
                a("s_nop 0")
                if ori == "T":
                    a(f"buffer_store_dwordx4 {vr(b0,4)}, v{vSt}, {sr(SR,4)}, s{sSt + 2*mp + t//4} offen offset:{(t%4)*1024}{STF}")
                else:
                    a(f"buffer_store_dwordx4 {vr(b0,4)}, v{vSt}, {sr(SR,4)}, s{sSt + 2*mp} offen offset:{t*256}{STF}")
        stamp(a, 5)
        if STAMP: a("s_waitcnt vmcnt(0)")
        stamp(a, 6); stamp_rt(a, 7)
        stamp_flush(a, 0, SR, sWave, 8, 2)
        a("s_endpgm")

    a.label("K1_SIDE")
    SGW, SWO = 32, 36
    a(f"""
    s_load_dwordx2 s[46:47], s[0:1], 16
    s_load_dwordx4 s[12:15], s[0:1], 40
    s_sub_u32 s16, s2, 240
    s_lshl_b32 s16, s16, 3
    s_add_u32 s16, s16, s{sWave}
    v_lshlrev_b32 v2, 2, v1
    v_lshlrev_b32 v5, 4, v1
    v_lshrrev_b32 v3, 3, v1
    v_and_b32 v4, 7, v1
    v_mul_u32_u24 v3, 1280, v3
    v_lshl_add_u32 v3, v4, 4, v3
    v_lshrrev_b32 v4, 4, v1
    v_bfe_u32 v6, v1, 2, 2
    v_lshl_add_u32 v4, v4, 3, v6
    v_and_b32 v6, 3, v1
    v_lshlrev_b32 v6, 3, v6
    v_lshl_add_u32 v6, v4, 7, v6
    s_lshl_b32 s40, s{sWave}, 14
    v_add_u32 v6, s40, v6
    v_mov_b32 v4, 0
    s_waitcnt lgkmcnt(0)
    """)
    srd(a, SX, 4, 2621440)
    srd(a, SR, 10, WS_BYTES)
    srd(a, SGW, 14, 1280)
    a(f"""
    v_and_b32 v7, 255, v0
    v_lshlrev_b32 v7, 7, v7
    s_mov_b32 s3, {CNT_OFF}
    v_mov_b32 v24, 0
    v_mov_b32 v25, 0
    v_mov_b32 v26, 0
    v_mov_b32 v27, 0
    buffer_store_dwordx4 v[24:27], v7, {sr(SR,4)}, s3 offen
    """)
    a(f"s_mov_b32 s{SWO+2}, 819200")
    a(f"s_mov_b32 s{SWO+3}, 0x00020000")
    if 'notlb' not in EXP:
        a("s_load_dwordx2 s[50:51], s[0:1], 56")
        a("v_lshlrev_b32 v29, 16, v0")
        a(f"buffer_load_dword v28, v29, {sr(SR,4)}, 0 offen")
        a("s_waitcnt lgkmcnt(0)")
        srd(a, 56, 50, 2621440)
        a("buffer_load_dword v28, v29, s[56:59], 0 offen")
    for i in range(4):
        a(f"""
        s_add_u32 s41, s16, {128*i}
        s_cmp_ge_u32 s41, 200
        s_cselect_b32 s{SWO}, s12, s46
        s_cselect_b32 s{SWO+1}, s13, s47
        s_cselect_b32 s3, 200, 0
        s_cselect_b32 s{42+i}, {WOF_BR}, 0
        s_add_u32 s{42+i}, s{42+i}, {WOF_OFF}
        s_sub_u32 s3, s41, s3
        s_mul_i32 s17, s3, 6554
        s_lshr_b32 s17, s17, 16
        s_mul_i32 s18, s17, 10
        s_sub_u32 s18, s3, s18
        s_lshl_b32 s3, s17, 10
        s_add_u32 s{42+i}, s{42+i}, s3
        s_mul_i32 s3, s18, {4*20480}
        s_add_u32 s{42+i}, s{42+i}, s3
        s_mul_i32 s17, s17, {32*1280}
        s_lshl_b32 s18, s18, 7
        s_add_u32 s17, s17, s18
        s_cmp_ge_u32 s41, 400
        s_cselect_b32 s{42+i}, 0x7f000000, s{42+i}
        s_cselect_b32 s17, 0x7f000000, s17
        """)
        for q in range(4):
            a(f"s_add_u32 m0, s40, {4096*i + 1024*q}")
            a("s_nop 0")
            a(f"buffer_load_dwordx4 v3, {sr(SWO,4)}, s17 offen lds")
            a(f"s_add_u32 s17, s17, {8*1280}")
    GW, GX = 8, 16
    for i in range(5):
        a(f"buffer_load_dword v{GW+i}, v2, {sr(SGW,4)}, 0 offen offset:{256*i}")
    a(f"""
    s_and_b32 s3, s16, 63
    s_mul_i32 s17, s3, {16*2560}
    s_lshr_b32 s3, s16, 6
    s_mul_i32 s3, s3, 1280
    s_add_u32 s17, s17, s3
    s_lshl_b32 s18, s16, 6
    s_add_u32 s18, s18, {G_OFF}
    """)
    for half in range(2):
        for r in range(8):
            for i in range(5):
                a(f"buffer_load_dword v{GX+5*r+i}, v2, {sr(SX,4)}, s17 offen offset:{256*i}")
            a("s_add_u32 s17, s17, 2560")
        if half == 0:
            a("s_waitcnt vmcnt(45)")
            for i in range(4):
                for nt in range(4):
                    b = 72 + (4 * i + nt) * 4
                    a(f"ds_read_b64_tr_b16 {vr(b,2)}, v6 offset:{4096*i + 32*nt}")
                    a(f"ds_read_b64_tr_b16 {vr(b+2,2)}, v6 offset:{4096*i + 32*nt + 512}")
                a("s_waitcnt lgkmcnt(0)")
            a("s_waitcnt vmcnt(0)")
            for i in range(4):
                for nt in range(4):
                    b = 72 + (4 * i + nt) * 4
                    a(f"buffer_store_dwordx4 {vr(b,4)}, v5, {sr(SR,4)}, s{42+i} offen")
                    a(f"s_add_u32 s{42+i}, s{42+i}, 20480")
        else:
            a("s_waitcnt vmcnt(0)")
        for r in range(8):
            a(f"v_dot2_f32_bf16 v{60+r}, v{GX+5*r}, v{GW}, 0")
        for i in range(1, 5):
            for r in range(8):
                a(f"v_dot2_f32_bf16 v{60+r}, v{GX+5*r+i}, v{GW+i}, v{60+r}")
        a("s_nop 3")
        for sh in ("row_shr:1 row_mask:0xf bank_mask:0xf bound_ctrl:0", "row_shr:2 row_mask:0xf bank_mask:0xf bound_ctrl:0",
                   "row_shr:4 row_mask:0xf bank_mask:0xf bound_ctrl:0", "row_shr:8 row_mask:0xf bank_mask:0xf bound_ctrl:0",
                   "row_bcast:15 row_mask:0xa bank_mask:0xf", "row_bcast:31 row_mask:0xc bank_mask:0xf"):
            for r in range(8):
                a(f"v_add_f32_dpp v{60+r}, v{60+r}, v{60+r} {sh}")
        for r in range(8):
            a(f"v_mul_f32 v{60+r}, {f32(-math.log2(math.e))}, v{60+r}")
        for r in range(8):
            a(f"v_exp_f32 v{60+r}, v{60+r}")
        for r in range(8):
            a(f"v_add_f32 v{60+r}, 1.0, v{60+r}")
        for r in range(8):
            a(f"v_rcp_f32 v{60+r}, v{60+r}")
        a("s_mov_b32 exec_lo, 0")
        a("s_mov_b32 exec_hi, 0x80000000")
        a(f"buffer_store_dwordx4 v[60:63], v4, {sr(SR,4)}, s18 offen offset:{32*half}")
        a(f"buffer_store_dwordx4 v[64:67], v4, {sr(SR,4)}, s18 offen offset:{32*half+16}")
        a("s_mov_b64 exec, -1")
        a("s_nop 1")
    if 'noct' not in EXP:
        code_touch(a, 31, 30, 52, "attn_kernel", "CODE_END", lane="v0")
    if STAMP:
        a("s_waitcnt vmcnt(0)")
        for i in range(2, 7):
            stamp(a, i)
        stamp_rt(a, 7)
        stamp_flush(a, 0, SR, sWave, 8, 2)
    a.label("K1_END")
    a("s_endpgm")
    return kernel_desc(name, 256, 160, 64)


K2_TILE = 2880
K2_SLOT = 8 * K2_TILE
K2_R = 3
K2_FLAG = K2_SLOT * K2_R + 256
K2_LDS = 81920
FUSE = True


def code_touch(a, vdst, vaddr, stmp, first, last, lane="v1"):
    lab = f"CT_{len(a.L)}"
    a(f"s_getpc_b64 s[{stmp}:{stmp+1}]")
    a.label(lab)
    a(f"s_add_u32 s{stmp}, s{stmp}, {first}-{lab}")
    a(f"s_addc_u32 s{stmp+1}, s{stmp+1}, 0")
    a(f"v_lshlrev_b32 v{vaddr}, 7, {lane}")
    a(f"v_min_u32 v{vaddr}, {last}-{first}-4, v{vaddr}")
    a(f"global_load_dword v{vdst}, v{vaddr}, s[{stmp}:{stmp+1}]")


def gen_k2(a):
    name = "attn_kernel"
    kernel_head(a, name)
    SWS = 28
    sWave, sHead, sT = 19, 17, 18
    sDma, sM0, sSlot, sC, sRedo = 24, 25, 26, 27, 20
    sTA, sO, sTouch = 21, 22, 23
    sTmp = 36
    vK10, vK20, vLV, vK1, vK2, vV, vO = 2, 3, 4, 5, 6, 7, 15
    vt = 8
    Q1, Q2 = 16, 20
    KF1, KF2 = 24, 28
    vD = 22
    vD2 = 30
    vGK1, vGK2 = 31, 112
    vL16, vO2, vGV = 113, 114, 115
    VF = 32
    P = 40
    NEGM = 48
    SB = [64, 80]
    O = 96
    AKP1, AKP2 = 116, 120
    vGt, vCb, vOne = 122, 123, 124
    sProg = 46
    NV = 128
    a("s_cmp_ge_u32 s2, 512")
    a("s_cbranch_scc1 K2_END")
    stamp(a, 0); stamp_rt(a, 1)
    a("""
    s_load_dwordx2 s[10:11], s[0:1], 72
    v_lshrrev_b32 v8, 6, v0
    v_and_b32 v1, 63, v0
    s_and_b32 s14, s2, 7
    v_readfirstlane_b32 s19, v8
    s_cmp_ge_u32 s2, 256
    s_cbranch_scc1 K2_AROLE
    s_lshr_b32 s15, s2, 3
    s_lshl_b32 s17, s14, 2
    s_lshr_b32 s3, s15, 3
    s_add_u32 s17, s17, s3
    s_and_b32 s9, s15, 7
    s_lshl_b32 s9, s9, 3
    s_add_u32 s18, s9, s19
    """)

    def head_addr():
        a(f"""
        v_and_b32 v8, 31, v1
        v_lshrrev_b32 v9, 5, v1
        v_lshlrev_b32 v{vL16}, 4, v1
        s_and_b32 s4, s{sHead}, 1
        s_mul_i32 s5, s{sHead}, 5
        s_lshr_b32 s5, s5, 1
        s_lshl_b32 s5, s5, 9
        s_lshl_b32 s6, s4, 9
        s_cmp_eq_u32 s4, 0
        s_cselect_b32 s7, 1024, 8
        v_add_u32 v{vK10}, s6, v{vL16}
        v_lshl_add_u32 v{vK20}, v8, 4, s7
        v_add_u32 v{vGK1}, s5, v{vK10}
        v_add_u32 v{vGK2}, s5, v{vK20}
        s_mul_i32 s6, s{sHead}, 320
        s_mul_i32 s{sTA}, s{sT}, {TB}
        """)

    def out_addr(br):
        a(f"""
        s_lshl_b32 s5, s4, 2
        v_add_u32 v12, s5, v8
        v_subrev_u32 v13, 20, v12
        v_cmp_gt_u32 s[{sTmp}:{sTmp+1}], 20, v12
        v_cmp_gt_u32 s[{sTmp+2}:{sTmp+3}], 20, v8
        v_and_b32 v10, 3, v8
        v_cndmask_b32 v12, v13, v12, s[{sTmp}:{sTmp+1}]
        v_cndmask_b32 v12, v8, v12, s[{sTmp+2}:{sTmp+3}]
        v_bfe_u32 v11, v8, 2, 1
        v_lshl_or_b32 v10, v11, 3, v10
        v_bfe_u32 v11, v8, 3, 1
        v_lshl_or_b32 v10, v11, 2, v10
        v_lshrrev_b32 v11, 4, v8
        v_lshl_or_b32 v14, v11, 4, v10
        v_lshlrev_b32 v10, 4, v10
        v_mul_u32_u24 v11, 20480, v11
        s_mul_i32 s3, s{sHead}, 5
        s_add_u32 s3, s3, 1
        s_lshr_b32 s3, s3, 1
        s_lshl_b32 s3, s3, 8
        v_add3_u32 v10, v10, v11, s3
        v_lshl_add_u32 v{vO}, v9, 8, v10
        s_mul_i32 s5, s4, 760
        s_sub_u32 s5, 512, s5
        v_add_u32 v{vO2}, s5, v10
        s_add_u32 s{sO}, s{sTA}, {O_OFF + br * O_BR}
        v_lshlrev_b32 v13, 2, v14
        s_lshl_b32 s3, s{sT}, 7
        s_add_u32 s3, s3, {G_OFF}
        buffer_load_dword v{vGt}, v13, {sr(SWS,4)}, s3 offen
        """)

    head_addr()
    a(f"""
    s_add_u32 s5, s5, {4*SEGB}
    v_add_u32 v{vD}, s5, v{vL16}
    s_add_u32 s7, s6, {5*SEGB - 1024 - 512}
    v_cmp_le_u32 s[{sTmp}:{sTmp+1}], 53, v1
    v_mov_b32 v12, {10240-336}
    v_add_u32 v13, s7, v{vL16}
    v_cndmask_b32 v12, 0, v12, s[{sTmp}:{sTmp+1}]
    v_add_u32 v13, v13, v12
    v_cmp_le_u32 s[{sTmp}:{sTmp+1}], 32, v1
    v_add_u32 v11, 32, v1
    v_mul_u32_u24 v11, 49, v11
    v_cndmask_b32 v{vD+1}, v{vD}, v13, s[{sTmp}:{sTmp+1}]
    v_lshrrev_b32 v11, 10, v11
    v_mul_u32_u24 v11, {10240-336}, v11
    s_add_u32 s7, s6, {5*SEGB - 2048 + 512}
    v_add3_u32 v{vD2}, v11, v{vL16}, s7
    s_add_u32 s8, s{sTA}, {3*SEGB}
    s_waitcnt lgkmcnt(0)
    """)
    srd(a, SWS, 10, WS_BYTES)

    m1 = ((1 << 64) - 1) & ~(1 << 52)
    m2 = ((1 << 52) - 1) & ~(1 << 9) & ~(1 << 30) & ~(1 << 51)

    def dma_parts():
        return [[f"s_mov_b32 m0, s{sM0}",
                 f"s_add_u32 s{sM0}, s{sM0}, {K2_SLOT}",
                 f"buffer_load_dwordx4 v{vD}, {sr(SWS,4)}, s{sDma} offen lds"],
                [f"s_mov_b32 exec_hi, 0x{m1 >> 32:08x}",
                 f"buffer_load_dwordx4 v{vD+1}, {sr(SWS,4)}, s{sDma} offen offset:1024 lds",
                 "s_mov_b32 exec_hi, -1"],
                [f"s_mov_b32 exec_lo, 0x{m2 & 0xffffffff:08x}",
                 f"s_mov_b32 exec_hi, 0x{m2 >> 32:08x}",
                 f"buffer_load_dwordx4 v{vD2}, {sr(SWS,4)}, s{sDma} offen offset:2048 lds",
                 "s_mov_b64 exec, -1"],
                [f"s_add_u32 s{sDma}, s{sDma}, {8*TB}",
                 f"s_cmp_ge_u32 s{sDma}, {64*TB}",
                 f"s_cselect_b32 s{sDma}, 0x40000000, s{sDma}"],
                [f"s_cmp_ge_u32 s{sM0}, {K2_SLOT*K2_R}",
                 f"s_cselect_b32 s{sTmp}, {K2_SLOT*K2_R}, 0",
                 f"s_sub_u32 s{sM0}, s{sM0}, s{sTmp}"]]

    def dma_chunk():
        for p in dma_parts():
            for l in p:
                a(l)

    def dma_init():
        a(f"s_mul_i32 s{sDma}, s{sWave}, {TB}")
        a(f"s_mul_i32 s{sM0}, s{sWave}, {K2_TILE}")

    def zero_state():
        for r in range(16):
            a(f"v_mov_b32 v{O+r}, 0")
        for r in range(4):
            a(f"v_mov_b32 v{P+4+r}, 0")
            a(f"v_mov_b32 v{VF+4+r}, 0")
        a(f"""
        v_mov_b32 v{vV}, v{vLV}
        v_mov_b32 v{vK1}, v{vK10}
        v_mov_b32 v{vK2}, v{vK20}
        s_mov_b32 s{sSlot}, {K2_SLOT}
        s_mov_b32 s{sC}, 0
        """)

    dma_init()
    dma_chunk()
    a(f"buffer_load_dwordx4 {vr(Q1,4)}, v{vGK1}, {sr(SWS,4)}, s8 offen")
    a(f"buffer_load_dwordx2 {vr(Q2,2)}, v{vGK2}, {sr(SWS,4)}, s8 offen")
    a(f"""
    s_mov_b32 s{sRedo}, 0
    v_mov_b32 v{VF}, 0x3f803f80
    v_mov_b32 v{VF+1}, 0x3f803f80
    v_mov_b32 v{VF+2}, 0x3f803f80
    v_mov_b32 v{VF+3}, 0x3f803f80
    v_bfe_u32 v11, v1, 2, 2
    v_min_u32 v11, {K2_R-1}, v11
    v_mul_u32_u24 v11, {K2_SLOT}, v11
    v_and_b32 v12, 3, v1
    v_mul_u32_u24 v12, 336, v12
    s_mul_i32 s3, s{sWave}, {K2_TILE}
    v_add3_u32 v11, v11, v12, s3
    ds_write_b128 v11, {vr(VF,4)} offset:{1536+320}
    v_mov_b32 v11, {K2_FLAG}
    v_mov_b32 v12, 0
    ds_write_b32 v11, v12
    """)
    out_addr(1)
    a(f"""
    v_mul_u32_u24 v11, 336, v9
    v_lshl_add_u32 v11, v12, 4, v11
    v_add_u32 v{vLV}, 1536, v11
    """)
    zero_state()
    a("s_waitcnt vmcnt(0) lgkmcnt(0)")
    stamp(a, 2)
    a("s_barrier")

    def maxtree(regs, dst):
        a(f"v_max3_f32 v{dst}, v{regs[0]}, v{regs[1]}, v{regs[2]}")
        i = 3
        while i + 1 < len(regs):
            a(f"v_max3_f32 v{dst}, v{dst}, v{regs[i]}, v{regs[i+1]}")
            i += 2
        if i < len(regs):
            a(f"v_max_f32 v{dst}, v{dst}, v{regs[i]}")
        a(f"v_mov_b32 v{dst+1}, v{dst}")
        a("s_nop 1")
        a(f"v_permlane32_swap_b32 v{dst}, v{dst+1}")
        a("s_nop 1")
        a(f"v_max_f32 v{dst}, v{dst}, v{dst+1}")

    def store_o(D):
        a(f"""
        v_mov_b32 v{vt}, v{O+8}
        v_mov_b32 v{vt+1}, v{O+8}
        s_nop 1
        v_permlane32_swap_b32 v{vt}, v{vt+1}
        s_nop 1
        v_rcp_f32 v{vt}, v{vt+1}
        s_nop 0
        v_mul_f32 v{vt}, v{vt}, v{vGt}
        """)
        for r in range(12):
            a(f"v_mul_f32 v{O+r}, v{O+r}, v{vt}")
        for i in range(6):
            a(f"v_cvt_pk_bf16_f32 v{D+i}, v{O+2*i}, v{O+2*i+1}")
        a(f"v_permlane32_swap_b32 v{D}, v{D+2}")
        a(f"v_permlane32_swap_b32 v{D+1}, v{D+3}")
        a("s_mov_b32 exec_hi, 0")
        a(f"buffer_store_dwordx2 {vr(D+4,2)}, v{vO2}, {sr(SWS,4)}, s{sO} offen sc1")
        a("s_mov_b32 exec_hi, -1")
        a(f"buffer_store_dwordx4 {vr(D,4)}, v{vO}, {sr(SWS,4)}, s{sO} offen sc1")

    def kreads(tile):
        o = tile * K2_TILE
        return [f"ds_read_b128 {vr(KF1,4)}, v{vK1} offset:{o}",
                f"ds_read_b64 {vr(KF2,2)}, v{vK2} offset:{o}"]

    def vread(tile, j):
        return f"ds_read_b128 {vr(VF+4*j,4)}, v{vV} offset:{tile * K2_TILE + 672*j}"

    def qk(sb, c, k1=KF1, k2=KF2):
        return [f"v_mfma_f32_32x32x16_bf16 {vr(sb,16)}, {vr(k1,4)}, {vr(Q1,4)}, {c}",
                f"v_mfma_f32_32x32x8_bf16 {vr(sb,16)}, {vr(k2,2)}, {vr(Q2,2)}, {vr(sb,16)}"]

    stamp(a, 3)
    a(f"""
    v_mov_b32 v{vCb}, {CNT_OFF}
    v_mov_b32 v{vOne}, 1
    s_lshl_b32 s{sProg}, s2, 7
    s_cmp_eq_u32 s{sWave}, 7
    s_cselect_b32 s{sProg}, s{sProg}, 0x40000000
    s_mov_b64 exec, 1
    buffer_atomic_add v{vOne}, v{vCb}, {sr(SWS,4)}, s{sProg} offen sc1
    s_mov_b64 exec, -1
    """)
    for l in kreads(0):
        a(l)
    a(f"""
    s_mov_b32 exec_lo, 0
    v_mov_b32 v{Q2}, 0
    v_mov_b32 v{Q2+1}, 0
    s_mov_b32 exec_lo, -1
    v_sub_f32 v{vGt}, 1.0, v{vGt}
    s_waitcnt lgkmcnt(0)
    """)
    for l in qk(SB[0], "0"):
        a(l)
    dma_chunk()
    maxtree([SB[0] + r for r in range(16)], vt)
    for r in range(16):
        a(f"v_sub_f32 v{NEGM+r}, 0, v{vt}")
    a.label("K2_HAVE_M")
    a("s_waitcnt lgkmcnt(0)")
    a("s_nop 0")
    for l in qk(SB[0], vr(NEGM, 16)):
        a(l)
    for l in kreads(1):
        a(l)
    a(vread(0, 0))
    a("s_nop 9")
    stamp(a, 4)
    a.raw(".p2align 3")
    a.label("K2_LOOP")
    PR = os.environ.get('K2PRIO', '3..2.1.0')
    prio = {i: int(c) for i, c in enumerate(PR) if c != '.'}
    for i in range(8):
        cur, nxt = SB[i % 2], SB[1 - i % 2]
        e = [f"v_exp_f32 v{cur+r}, v{cur+r}" for r in range(16)]
        c = [f"v_cvt_pk_bf16_f32 v{P+j}, v{cur+2*j}, v{cur+2*j+1}" for j in range(8)]
        q = qk(nxt, vr(NEGM, 16))
        pv = [f"v_mfma_f32_32x32x16_bf16 {vr(O,16)}, {vr(VF+4*j,4)}, {vr(P+4*j,4)}, {vr(O,16)}" for j in range(2)]
        kr = kreads((i + 2) % 8)
        dp = [[]] * 5
        if i == 6:
            a("s_waitcnt vmcnt(0)")
            a("s_barrier")
            a(f"v_add_u32 v{vK1}, s{sSlot}, v{vK10}")
            a(f"v_add_u32 v{vK2}, s{sSlot}, v{vK20}")
            dp = dma_parts()
        if (i - 6) % 8 in prio:
            a(f"s_setprio {prio[(i - 6) % 8]}")
        if i == 0:
            a(f"""
            s_cmp_eq_u32 s{sC}, {os.environ.get('K2PC', '6')}
            s_cselect_b32 s3, s{sProg}, 0x40000000
            s_mov_b64 exec, 1
            buffer_atomic_add v{vOne}, v{vCb}, {sr(SWS,4)}, s3 offen sc1
            s_mov_b64 exec, -1
            """)

        def em(L):
            for l in L:
                a(l)
        a(e[0]); a(e[1])
        a(pv[1])
        a(vread(i, 1))
        a(e[2]); em(dp[0]); a(e[3]); a(c[0]); a(e[4]); a(c[1])
        a("s_waitcnt lgkmcnt(1)")
        a(q[0])
        a(e[5]); em(dp[1]); a(e[6]); a(e[7]); a(c[2]); a(e[8]); a(c[3])
        a(q[1])
        em(kr)
        a(e[9]); em(dp[2]); a(e[10]); a(e[11]); a(c[4]); a(e[12]); a(c[5])
        if i == 7:
            a(f"v_add_u32 v{vV}, s{sSlot}, v{vLV}")
        a(pv[0])
        a(vread((i + 1) % 8, 0))
        a(e[13]); em(dp[3]); a(e[14]); em(dp[4]); a(e[15]); a(c[6])
        a("s_waitcnt lgkmcnt(3)")
        a(c[7])
        if i == 7:
            a(f"s_add_u32 s{sSlot}, s{sSlot}, {K2_SLOT}")
            a(f"s_cmp_ge_u32 s{sSlot}, {K2_SLOT*K2_R}")
            a(f"s_cselect_b32 s{sSlot}, 0, s{sSlot}")
    a(f"""
    s_add_u32 s{sC}, s{sC}, 1
    s_cmp_lt_u32 s{sC}, 8
    s_cbranch_scc1 K2_LOOP
    v_mfma_f32_32x32x16_bf16 {vr(O,16)}, {vr(VF+4,4)}, {vr(P+4,4)}, {vr(O,16)}
    v_mov_b32 v{vt+3}, {K2_FLAG}
    v_mov_b32 v{vt+4}, 1
    s_mov_b32 s3, {f32(2.0**100)}
    s_waitcnt lgkmcnt(0)
    s_nop 8
    """)
    stamp(a, 5)
    a(f"v_mov_b32 v{vt+2}, v{O+8}")
    a("s_mov_b32 exec_hi, 0")
    a(f"v_mul_f32 v{vt+2}, 0, v{O+8}")
    for r in range(9, 12):
        a(f"v_fma_f32 v{vt+2}, v{O+r}, 0, v{vt+2}")
    a("s_mov_b32 exec_hi, -1")
    for r in range(8):
        a(f"v_fma_f32 v{vt+2}, v{O+r}, 0, v{vt+2}")
    a(f"v_cmp_nlt_f32 s[{sTmp}:{sTmp+1}], v{vt+2}, s3")
    store_o(P)
    a(f"""
    s_cmp_eq_u64 s[{sTmp}:{sTmp+1}], 0
    s_cbranch_scc1 K2_NOFLAG
    ds_write_b32 v{vt+3}, v{vt+4}
    """)
    a.label("K2_NOFLAG")
    a(f"""
    v_lshlrev_b32 v{vt+5}, 10, v1
    s_lshl_b32 s7, s9, 4
    s_add_u32 s7, s7, {CNT_OFF + 4}
    s_waitcnt vmcnt(0) lgkmcnt(0)
    s_barrier
    ds_read_b32 v{vt+2}, v{vt+3}
    s_waitcnt lgkmcnt(0)
    v_readfirstlane_b32 s3, v{vt+2}
    s_nop 3
    s_cmp_gt_u32 s3, s{sRedo}
    s_cbranch_scc1 K2_FALLBACK
    s_cmp_eq_u32 s{sWave}, 0
    s_cbranch_scc0 K2_DONE
    s_mov_b32 exec_hi, 0
    buffer_atomic_add v{vt+4}, v{vt+5}, {sr(SWS,4)}, s7 offen sc1
    s_mov_b32 exec_hi, -1
    """)
    a.label("K2_DONE")
    if STAMP: a("s_waitcnt vmcnt(0)")
    stamp(a, 6); stamp_rt(a, 7)
    stamp_flush(a, 1, SWS, sWave, 16, 8, shift=3)
    a.label("K2_END")
    a("s_endpgm")

    a.label("K2_FALLBACK")
    a(f"""
    s_mov_b32 s{sRedo}, 1
    s_mov_b32 s3, {4*SEGB}
    v_mov_b32 v{vt+2}, 0xff800000
    s_waitcnt vmcnt(0)
    """)
    dma_init()
    dma_chunk()
    dma_chunk()
    a.label("K2_MAXLOOP")
    a(f"""
    buffer_load_dwordx4 {vr(KF1,4)}, v{vGK1}, {sr(SWS,4)}, s3 offen
    buffer_load_dwordx2 {vr(KF2,2)}, v{vGK2}, {sr(SWS,4)}, s3 offen
    s_waitcnt vmcnt(0)
    """)
    for l in qk(SB[0], "0"):
        a(l)
    a("s_nop 15")
    for r in range(0, 16, 2):
        a(f"v_max3_f32 v{vt+2}, v{vt+2}, v{SB[0]+r}, v{SB[0]+r+1}")
    a(f"""
    s_add_u32 s3, s3, {TB}
    s_cmp_lt_u32 s3, {5*SEGB}
    s_cbranch_scc1 K2_MAXLOOP
    v_mov_b32 v{vt+3}, v{vt+2}
    s_nop 1
    v_permlane32_swap_b32 v{vt+2}, v{vt+3}
    s_nop 1
    v_max_f32 v{vt+2}, v{vt+2}, v{vt+3}
    """)
    for r in range(16):
        a(f"v_sub_f32 v{NEGM+r}, 0, v{vt+2}")
    zero_state()
    a("s_barrier")
    for l in kreads(0):
        a(l)
    a("s_branch K2_HAVE_M")

    a.label("K2_AROLE")
    sMb, sNb, sWb, sOb, sLq, sOut = 50, 51, 52, 53, 54, 55
    SOUT = 56
    a(f"""
    s_load_dwordx2 s[48:49], s[0:1], 56
    s_setprio {os.environ.get('K2APRIO', '1')}
    s_bfe_u32 s15, s2, {(5 << 16) | 3}
    s_lshl_b32 s{sMb}, s14, 2
    s_and_b32 s3, s15, 3
    s_add_u32 s{sMb}, s{sMb}, s3
    s_lshr_b32 s{sNb}, s15, 2
    s_lshl_b32 s{sHead}, s{sNb}, 2
    s_lshr_b32 s3, s{sWave}, 1
    s_add_u32 s{sHead}, s{sHead}, s3
    s_lshl_b32 s{sT}, s{sMb}, 1
    s_and_b32 s3, s{sWave}, 1
    s_add_u32 s{sT}, s{sT}, s3
    """)
    head_addr()
    sPrev, sTAp = 46, 24
    a(f"""
    s_and_b32 s3, s{sT}, 31
    s_cmp_lg_u32 s3, 0
    s_cselect_b32 s3, {TB}, 0
    s_cselect_b64 s[{sPrev}:{sPrev+1}], -1, 0
    s_sub_u32 s{sTAp}, s{sTA}, s3
    v_mov_b32 v10, {f32(-1e30)}
    """)
    AV = [VF, VF + 4, P]
    AC = SB
    for b in AV:
        for i in range(4):
            a(f"v_mov_b32 v{b+i}, 0x3f803f80")

    def lanemask(fn):
        m = 0
        for l in range(64):
            if fn(l):
                m |= 1 << l
        return m
    k = 0
    for r in range(16):
        m = lanemask(lambda l: 0 <= pi5(l % 32) - (16 * (r // 8) + 8 * (l // 32) + r % 8) <= 7)
        sp = sTmp + 2 + 2 * (k % 3); k += 1
        a(f"s_mov_b32 s{sp}, 0x{m & 0xffffffff:08x}")
        a(f"s_mov_b32 s{sp+1}, 0x{m >> 32:08x}")
        a(f"v_cndmask_b32 v{AC[0]+r}, v10, 0, s[{sp}:{sp+1}]")
    for r in range(8, 16):
        m = lanemask(lambda l: pi5(l % 32) + 32 - (16 * (r // 8) + 8 * (l // 32) + r % 8) <= 7)
        sp = sTmp + 2 + 2 * (k % 3); k += 1
        a(f"s_and_b32 s{sp}, s{sPrev}, 0x{m & 0xffffffff:08x}")
        a(f"s_and_b32 s{sp+1}, s{sPrev}, 0x{m >> 32:08x}")
        a(f"v_cndmask_b32 v{AC[1]+r}, v10, 0, s[{sp}:{sp+1}]")
    a("s_waitcnt lgkmcnt(0)")
    srd(a, SWS, 10, WS_BYTES)
    srd(a, SOUT, 48, 2621440)
    sLine = 60
    a(f"s_and_b32 s{sLine}, s2, 255")
    a(f"s_lshl_b32 s{sLine}, s{sLine}, 7")
    a(f"s_add_u32 s{sLine}, s{sLine}, {CNT_OFF}")

    def poll(lab, word, need, sleep, limit):
        a(f"""
        s_movk_i32 s9, {limit}
        v_mov_b32 v10, 0
        """)
        a.label(lab)
        a(f"""
        buffer_load_dword v11, v10, {sr(SWS,4)}, s{sLine} offen offset:{4*word} sc1
        s_waitcnt vmcnt(0)
        v_readfirstlane_b32 s3, v11
        s_sub_u32 s9, s9, 1
        s_nop 2
        s_cmp_ge_u32 s3, {need}
        s_cbranch_scc1 {lab}_OK
        s_sleep {sleep}
        s_cmp_lg_u32 s9, 0
        s_cbranch_scc1 {lab}
        """)
        a.label(lab + "_OK")

    a(f"s_cmp_eq_u32 s{sWave}, 0")
    a("s_cbranch_scc0 K2_SGO")
    poll("K2_SPOLL", 0, 1, 12, 64)
    a.label("K2_SGO")
    a("s_barrier")
    out_addr(0)
    a(f"""
    v_mul_u32_u24 v11, 10240, v9
    v_lshl_add_u32 v11, v12, 4, v11
    v_add_u32 v{vGV}, s6, v11
    s_add_u32 s3, s{sTA}, {SEGB}
    s_add_u32 s4, s{sTAp}, {SEGB}
    """)
    for (r1, r2, so) in ((Q1, Q2, sTA), (KF1, KF2, 3), (AKP1, AKP2, 4)):
        a(f"buffer_load_dwordx4 {vr(r1,4)}, v{vGK1}, {sr(SWS,4)}, s{so} offen")
        a(f"buffer_load_dwordx2 {vr(r2,2)}, v{vGK2}, {sr(SWS,4)}, s{so} offen")
    a(f"""
    s_add_u32 s3, s{sTA}, {2*SEGB}
    s_add_u32 s4, s3, 20480
    s_add_u32 s5, s{sTAp}, {2*SEGB+20480}
    s_mov_b32 exec_lo, 0x000fffff
    s_mov_b32 exec_hi, 0x000fffff
    buffer_load_dwordx4 {vr(AV[0],4)}, v{vGV}, {sr(SWS,4)}, s3 offen
    buffer_load_dwordx4 {vr(AV[1],4)}, v{vGV}, {sr(SWS,4)}, s4 offen
    buffer_load_dwordx4 {vr(AV[2],4)}, v{vGV}, {sr(SWS,4)}, s5 offen
    s_mov_b64 exec, -1
    s_waitcnt vmcnt(3)
    s_mov_b32 exec_lo, 0
    v_mov_b32 v{Q2}, 0
    v_mov_b32 v{Q2+1}, 0
    s_mov_b32 exec_lo, -1
    s_nop 1
    """)
    stamp(a, 2)
    for l in qk(AC[0], vr(AC[0], 16)) + qk(AC[1], vr(AC[1], 16), AKP1, AKP2):
        a(l)
    a("s_nop 11")
    aregs = [AC[0] + r for r in range(16)] + [AC[1] + r for r in range(8, 16)]
    maxtree(aregs, vt)
    for r in aregs:
        a(f"v_sub_f32 v{r}, v{r}, v{vt}")
    for r in aregs:
        a(f"v_exp_f32 v{r}, v{r}")
    a("s_waitcnt vmcnt(0)")
    AP = NEGM
    for i in range(12):
        a(f"v_cvt_pk_bf16_f32 v{AP+i}, v{aregs[2*i]}, v{aregs[2*i+1]}")
    a(f"""
    s_nop 1
    v_mfma_f32_32x32x16_bf16 {vr(O,16)}, {vr(AV[0],4)}, {vr(AP,4)}, 0
    v_mfma_f32_32x32x16_bf16 {vr(O,16)}, {vr(AV[1],4)}, {vr(AP+4,4)}, {vr(O,16)}
    v_mfma_f32_32x32x16_bf16 {vr(O,16)}, {vr(AV[2],4)}, {vr(AP+8,4)}, {vr(O,16)}
    s_nop 11
    """)
    store_o(AKP1)
    ACC, OF, WF = 16, 36, 76
    vLn, vW, vOut, vOut2, vCn = 2, 3, 4, 5, 6
    a(f"""
    v_mov_b32 v{vLn}, v{vL16}
    s_lshr_b32 s4, s{sWave}, 2
    s_mul_i32 s{sLq}, s4, 40960
    v_add_u32 v{vW}, s{sLq}, v{vL16}
    s_mul_i32 s5, s4, 10240
    s_mul_i32 s{sWb}, s{sNb}, {5*20480}
    s_add_u32 s{sWb}, s{sWb}, s5
    s_add_u32 s{sWb}, s{sWb}, {WOF_OFF}
    s_lshl_b32 s6, s{sMb}, 2
    s_and_b32 s3, s{sWave}, 3
    s_add_u32 s6, s6, s3
    s_mul_i32 s{sOb}, s6, 20480
    s_add_u32 s{sOb}, s{sOb}, s5
    s_add_u32 s{sOb}, s{sOb}, {O_OFF}
    s_mul_i32 s3, s3, 10240
    s_add_u32 s{sLq}, s{sLq}, s3
    v_and_b32 v9, 15, v1
    v_lshrrev_b32 v11, 4, v1
    v_mul_u32_u24 v12, 2560, v9
    v_and_b32 v13, 1, v11
    v_lshlrev_b32 v13, 5, v13
    v_lshrrev_b32 v14, 1, v11
    v_lshlrev_b32 v14, 4, v14
    v_add3_u32 v{vOut}, v12, v13, v14
    v_lshl_add_u32 v{vOut2}, v11, 3, v12
    s_and_b32 s7, s6, 63
    s_mul_i32 s7, s7, {16*2560}
    s_lshr_b32 s6, s6, 6
    s_mul_i32 s6, s6, 1280
    s_add_u32 s{sOut}, s6, s7
    s_mul_i32 s7, s{sNb}, 160
    s_add_u32 s{sOut}, s{sOut}, s7
    v_lshlrev_b32 v{vCn}, 12, v1
    v_mov_b32 v9, 1
    s_and_b32 s7, s2, 31
    s_lshl_b32 s7, s7, 7
    s_add_u32 s7, s7, {CNT_OFF + 8}
    s_waitcnt vmcnt(0)
    s_barrier
    s_cmp_eq_u32 s{sWave}, 0
    s_cbranch_scc0 K2_PNOSIG
    s_mov_b64 exec, 0xff
    buffer_atomic_add v9, v{vCn}, {sr(SWS,4)}, s7 offen sc1
    s_mov_b64 exec, -1
    """)
    a.label("K2_PNOSIG")
    stamp(a, 3)
    for i in range(20):
        a(f"v_mov_b32 v{ACC+i}, 0")
    a(f"s_mov_b32 s{sC}, 0")
    a.label("K2_PROUND")
    a(f"""
    s_and_b32 s3, s{sWave}, 3
    s_lshl_b32 s3, s3, 11
    s_add_u32 s4, s{sWb}, s3
    """)
    for nt in range(5):
        a(f"s_add_u32 m0, s{sLq}, {1024*nt}")
        a(f"s_add_u32 s4, s4, 20480" if nt else "s_nop 0")
        a(f"buffer_load_dwordx4 v{vLn}, {sr(SWS,4)}, s4 offen lds")
        a(f"s_add_u32 m0, s{sLq}, {1024*nt + 5120 - 1024}")
        a("s_nop 0")
        a(f"buffer_load_dwordx4 v{vLn}, {sr(SWS,4)}, s4 offen offset:1024 lds")
    a(f"s_add_u32 s4, s{sWb}, 8192")
    for nt in range(5):
        if nt:
            a("s_add_u32 s4, s4, 20480")
        a(f"buffer_load_dwordx4 {vr(WF+4*nt,4)}, v{vLn}, {sr(SWS,4)}, s4 offen")
        a(f"buffer_load_dwordx4 {vr(WF+20+4*nt,4)}, v{vLn}, {sr(SWS,4)}, s4 offen offset:1024")
    a(f"""
    s_cmp_eq_u32 s{sWave}, 0
    s_cbranch_scc0 K2_PGO
    s_cmp_lg_u32 s{sC}, 0
    s_cbranch_scc1 K2_PWB
    """)
    poll("K2_POLLA", 2, 8, 12, 8192)
    a("s_branch K2_PGO")
    a.label("K2_PWB")
    poll("K2_POLLE", 0, 2, int(os.environ.get('K2SLEEP2', '48')), 2048)
    poll("K2_POLLB", 1, 32, int(os.environ.get('K2SLEEP1', '4')), 16384)
    a.label("K2_PGO")
    a("s_waitcnt vmcnt(0)")
    a("s_barrier")
    if STAMP:
        a("s_memtime s[86:87]")
        a("s_waitcnt lgkmcnt(0)")
        a(f"s_cmp_eq_u32 s{sC}, 0")
        a("s_cselect_b32 s74, s86, s74")
        a("s_cselect_b32 s78, s78, s86")
    ROT = 'p_rot' in EXP

    def ksreg(i, dst, mul):
        if ROT:
            a(f"s_add_u32 s{dst}, s{sNb}, {i}")
            a(f"s_and_b32 s{dst}, s{dst}, 7")
            a(f"s_mul_i32 s{dst}, s{dst}, {mul}")
        else:
            a(f"s_mov_b32 s{dst}, {i * mul}")
    iss = [0, 1, 8, 9, 2, 3, 4, 5, 6, 7] if ROT else [8, 9, 0, 1, 2, 3, 4, 5, 6, 7]
    con = [8, 9, 0, 1, 2, 3, 4, 5, 6, 7]
    a(f"s_add_u32 s4, s{sOb}, 8192")
    for st in iss:
        if st < 8:
            ksreg(st, 3, 1024)
            a(f"s_add_u32 s3, s3, s{sOb}")
            a(f"buffer_load_dwordx4 {vr(OF+4*st,4)}, v{vLn}, {sr(SWS,4)}, s3 offen sc1")
        else:
            a(f"buffer_load_dwordx4 {vr(OF+4*st,4)}, v{vLn}, {sr(SWS,4)}, s4 offen offset:{(st-8)*1024} sc1")
    for i, st in enumerate(con):
        n = 9 - max(iss.index(x) for x in con[:i + 1])
        a(f"s_waitcnt vmcnt({n})" + (f" lgkmcnt({5 if i < 9 else 0})" if i >= 2 else ""))
        if i + 2 < 10:
            ksreg(con[i + 2], 3, 5120)
            a(f"v_add_u32 v7, s3, v{vW}")
        for nt in range(5):
            d = vr(ACC + 4 * nt, 4)
            a(f"v_mfma_f32_16x16x32_bf16 {d}, {vr(WF + (i % 2) * 20 + 4 * nt, 4)}, {vr(OF+4*st,4)}, {d}")
        if i + 2 < 10:
            for nt in range(5):
                a(f"ds_read_b128 {vr(WF + (i % 2) * 20 + 4 * nt, 4)}, v7 offset:{1024*nt}")
    a(f"""
    s_barrier
    s_cmp_lg_u32 s{sC}, 0
    s_cbranch_scc1 K2_PFIN
    s_mov_b32 s{sC}, 1
    s_add_u32 s{sWb}, s{sWb}, {WOF_BR}
    s_add_u32 s{sOb}, s{sOb}, {O_BR}
    """)
    stamp(a, 5)
    a("s_branch K2_PROUND")
    a.label("K2_PFIN")
    stamp(a, 9)
    a(f"""
    s_and_b32 s3, s{sWave}, 3
    s_mul_i32 s3, s3, 5120
    v_add_u32 v{vW}, s3, v{vLn}
    s_cmp_lt_u32 s{sWave}, 4
    s_cbranch_scc1 K2_PSUM
    """)
    for nt in range(5):
        a(f"ds_write_b128 v{vW}, {vr(ACC+4*nt,4)} offset:{1024*nt}")
    a("s_waitcnt lgkmcnt(0)")
    a("s_barrier")
    a("s_branch K2_DONE")
    a.label("K2_PSUM")
    a("s_barrier")
    for nt in range(5):
        a(f"ds_read_b128 {vr(OF + 4*nt, 4)}, v{vW} offset:{1024*nt}")
    a("s_waitcnt lgkmcnt(0)")
    for i in range(20):
        a(f"v_add_f32 v{ACC+i}, v{ACC+i}, v{OF+i}")
    for pr in range(2):
        b0 = ACC + pr * 8
        b1 = b0 + 4
        a(f"v_cvt_pk_bf16_f32 v{b0}, v{b0}, v{b0+1}")
        a(f"v_cvt_pk_bf16_f32 v{b0+1}, v{b0+2}, v{b0+3}")
        a(f"v_cvt_pk_bf16_f32 v{b0+2}, v{b1}, v{b1+1}")
        a(f"v_cvt_pk_bf16_f32 v{b0+3}, v{b1+2}, v{b1+3}")
        a("s_nop 1")
        a(f"v_permlane16_swap_b32 v{b0}, v{b0+2}")
        a(f"v_permlane16_swap_b32 v{b0+1}, v{b0+3}")
        a("s_nop 0")
        a(f"buffer_store_dwordx4 {vr(b0,4)}, v{vOut}, {sr(SOUT,4)}, s{sOut} offen offset:{pr*64}")
    b0 = ACC + 16
    a(f"v_cvt_pk_bf16_f32 v{b0}, v{b0}, v{b0+1}")
    a(f"v_cvt_pk_bf16_f32 v{b0+1}, v{b0+2}, v{b0+3}")
    a(f"buffer_store_dwordx2 {vr(b0,2)}, v{vOut2}, {sr(SOUT,4)}, s{sOut} offen offset:128")
    a("s_branch K2_DONE")
    a.label("CODE_END")
    return kernel_desc(name, NV, NV, 64)


K3_DIST = int(os.environ.get('K3D', '2'))
K3_NS = K3_DIST + 2
K3_LDS = K3_NS * 20480


def gen_k3(a):
    name = "proj_kernel"
    kernel_head(a, name)
    SWS, SOUT = 20, 24
    sWave, sMb, sNb = 16, 17, 18
    sO, sW, sRot, sM0, sOc, sWc = 28, 29, 31, 32, 33, 34
    vL16, vWj, vG, vOut, vOut2 = 2, 3, 7, 8, 9
    ACC = [16, 36]
    OF = 56
    WF = 56 + 16 * (K3_DIST + 1)
    NV = WF + 40
    DIST = K3_DIST
    NO = DIST + 1
    a("s_cmp_ge_u32 s2, 256")
    a("s_cbranch_scc1 K3_END")
    stamp(a, 0); stamp_rt(a, 1)
    a("""
    s_load_dwordx2 s[4:5], s[0:1], 56
    s_load_dwordx2 s[6:7], s[0:1], 72
    v_lshrrev_b32 v9, 6, v0
    v_and_b32 v1, 63, v0
    s_and_b32 s14, s2, 7
    v_readfirstlane_b32 s16, v9
    s_lshr_b32 s15, s2, 3
    s_lshl_b32 s17, s14, 2
    s_and_b32 s3, s15, 3
    s_add_u32 s17, s17, s3
    s_lshr_b32 s18, s15, 2
    v_lshlrev_b32 v2, 4, v1
    """)
    a(f"""
    s_and_b32 s19, s{sNb}, 1
    s_lshr_b32 s{sRot}, s{sNb}, 1
    s_lshl_b32 s3, s{sMb}, 2
    s_add_u32 s3, s3, s{sWave}
    s_mul_i32 s{sO}, s3, 20480
    s_add_u32 s{sO}, s{sO}, {O_OFF}
    s_mul_i32 s{sW}, s{sNb}, {5*20480}
    s_lshl_b32 s14, s{sWave}, 10
    s_add_u32 s{sW}, s{sW}, s14
    s_add_u32 s{sW}, s{sW}, {WOF_OFF}
    s_mov_b32 s{sM0}, s14
    s_mul_i32 s14, s19, {O_BR}
    s_mul_i32 s15, s19, {WOF_BR}
    s_sub_u32 s36, {O_BR}, s14
    s_sub_u32 s37, {WOF_BR}, s15
    s_add_u32 s36, s36, s{sO}
    s_add_u32 s37, s37, s{sW}
    s_add_u32 s{sO}, s{sO}, s14
    s_add_u32 s{sW}, s{sW}, s15
    s_waitcnt lgkmcnt(0)
    """)
    srd(a, SWS, 6, WS_BYTES)
    srd(a, SOUT, 4, 2621440)

    def load_items(g):
        pre = []
        if g == 5:
            pre += [f"s_mov_b32 s{sO}, s36", f"s_mov_b32 s{sW}, s37"]
        pre += [f"s_lshl_b32 s14, s{sRot}, 12",
                f"s_add_u32 s{sOc}, s{sO}, s14",
                f"s_add_u32 s{sWc}, s{sW}, s14",
                f"s_add_u32 s{sRot}, s{sRot}, 1",
                f"s_cmp_ge_u32 s{sRot}, 5",
                f"s_cselect_b32 s{sRot}, 0, s{sRot}"]
        items = []
        for k in range(4):
            items.append([f"buffer_load_dwordx4 {vr(OF + (g % NO) * 16 + 4 * k, 4)}, v{vL16}, {sr(SWS,4)}, s{sOc} offen offset:{1024*k}"])
        for nt in range(5):
            items.append([f"s_add_u32 m0, s{sM0}, {(g % K3_NS) * 20480 + nt * 4096}",
                          f"s_add_u32 s{sWc}, s{sWc}, 20480" if nt else "s_nop 0",
                          f"buffer_load_dwordx4 v{vL16}, {sr(SWS,4)}, s{sWc} offen lds"])
        items[0] = pre + items[0]
        return items

    def loads(g):
        for it in load_items(g):
            for l in it:
                a(l)

    if 'k3_wfirst' in EXP and DIST == 2:
        i0 = load_items(0)
        pre0, o0first = i0[0][:-1], i0[0][-1]
        for l in pre0: a(l)
        a(f"s_mov_b32 s40, s{sOc}")
        for it in i0[4:]:
            for l in it: a(l)
        for l in [o0first] + [it[0] for it in i0[1:4]]:
            a(l)
        i1 = load_items(1)
        for it in i1:
            for l in it: a(l)
    else:
        for g in range(DIST):
            loads(g)
    a(f"""
    v_and_b32 v9, 15, v1
    v_lshlrev_b32 v10, 2, v9
    s_lshl_b32 s14, s3, 6
    s_add_u32 s35, s14, {G_OFF}
    v_lshrrev_b32 v11, 4, v1
    v_mul_u32_u24 v12, 2560, v9
    v_and_b32 v13, 1, v11
    v_lshlrev_b32 v13, 5, v13
    v_lshrrev_b32 v14, 1, v11
    v_lshlrev_b32 v14, 4, v14
    v_add3_u32 v{vOut}, v12, v13, v14
    v_lshl_add_u32 v{vOut2}, v11, 3, v12
    v_add_u32 v{vWj}, 40960, v{vL16}
    v_add_u32 v{vWj+1}, 81920, v{vL16}
    s_and_b32 s14, s3, 63
    s_mul_i32 s14, s14, {16*2560}
    s_lshr_b32 s15, s3, 6
    s_mul_i32 s15, s15, 1280
    s_add_u32 s30, s14, s15
    s_mul_i32 s15, s{sNb}, 160
    s_add_u32 s30, s30, s15
    """)

    def wread(g, k):
        slot = g % K3_NS
        base, off = ((vL16, vWj, vWj + 1)[slot // 2], (slot % 2) * 20480)
        return [f"ds_read_b128 {vr(WF + (k % 2) * 20 + 4 * nt, 4)}, v{base} offset:{off + nt*4096 + k*1024}" for nt in range(5)]

    for g in range(10):
        if g == 0: stamp(a, 2)
        n_after = 9 * (min(10, g + DIST) - 1 - g) + (1 if g == 9 else 0)
        a(f"s_waitcnt vmcnt({n_after})")
        a("s_barrier")
        if g == 0: stamp(a, 3)
        for l in wread(g, 0):
            a(l)
        items = load_items(g + DIST) if g + DIST < 10 else []
        if g == 8:
            items = [[f"buffer_load_dword v{vG}, v10, {sr(SWS,4)}, s35 offen"]]
        if items:
            for l in items.pop(0):
                a(l)
        acc = ACC[g // 5]
        for k in range(4):
            if k < 3:
                for l in wread(g, k + 1):
                    a(l)
                a("s_waitcnt lgkmcnt(5)")
            else:
                a("s_waitcnt lgkmcnt(0)")
            for nt in range(5):
                d = vr(acc + 4 * nt, 4)
                c = "0" if (g % 5 == 0 and k == 0) else d
                a(f"v_mfma_f32_16x16x32_bf16 {d}, {vr(WF + (k % 2) * 20 + 4 * nt, 4)}, {vr(OF + (g % NO) * 16 + 4 * k, 4)}, {c}")
                if nt in (1, 3) and items:
                    for l in items.pop(0):
                        a(l)
        assert not items
    stamp(a, 4)
    a(f"""
    s_waitcnt vmcnt(0)
    v_sub_f32 v10, 1.0, v{vG}
    s_cmp_eq_u32 s19, 0
    s_cselect_b64 s[38:39], -1, 0
    v_cndmask_b32 v11, v10, v{vG}, s[38:39]
    v_cndmask_b32 v10, v{vG}, v10, s[38:39]
    """)
    A0, A1 = ACC
    for i in range(20):
        a(f"v_mul_f32 v{A0+i}, v{A0+i}, v11")
    for i in range(20):
        a(f"v_fma_f32 v{A0+i}, v{A1+i}, v10, v{A0+i}")
    for pr in range(2):
        b0 = A0 + pr * 8
        b1 = b0 + 4
        a(f"v_cvt_pk_bf16_f32 v{b0}, v{b0}, v{b0+1}")
        a(f"v_cvt_pk_bf16_f32 v{b0+1}, v{b0+2}, v{b0+3}")
        a(f"v_cvt_pk_bf16_f32 v{b0+2}, v{b1}, v{b1+1}")
        a(f"v_cvt_pk_bf16_f32 v{b0+3}, v{b1+2}, v{b1+3}")
        a("s_nop 1")
        a(f"v_permlane16_swap_b32 v{b0}, v{b0+2}")
        a(f"v_permlane16_swap_b32 v{b0+1}, v{b0+3}")
        a("s_nop 0")
        a(f"buffer_store_dwordx4 {vr(b0,4)}, v{vOut}, {sr(SOUT,4)}, s30 offen offset:{pr*64}")
    b0 = A0 + 16
    a(f"v_cvt_pk_bf16_f32 v{b0}, v{b0}, v{b0+1}")
    a(f"v_cvt_pk_bf16_f32 v{b0+1}, v{b0+2}, v{b0+3}")
    a(f"buffer_store_dwordx2 {vr(b0,2)}, v{vOut2}, {sr(SOUT,4)}, s30 offen offset:128")
    stamp(a, 5)
    if STAMP: a("s_waitcnt vmcnt(0)")
    stamp(a, 6); stamp_rt(a, 7)
    stamp_flush(a, 2, SWS, sWave, 8, 10)
    a.label("K3_END")
    a("s_endpgm")
    a.label("CODE_END")
    return kernel_desc(name, NV, NV, 44)


def gen_diag(a):
    name = "diag_kernel"
    kernel_head(a, name)
    a("""
    s_cmp_ge_u32 s2, 1
    s_cbranch_scc1 KD_END
    s_load_dwordx4 s[4:7], s[0:1], 64
    s_waitcnt lgkmcnt(0)
    """)
    srd(a, 8, 6, WS_BYTES)
    srd(a, 12, 4, 256)
    a("v_lshlrev_b32 v1, 10, v0")
    a("v_mov_b32 v2, 0")
    for k, waves, idx in ((0, (0, 3), (3, 4)), (1, (0, 15), (3, 5)), (2, (0, 3), (3, 4))):
        for wi, w in enumerate(waves):
            a(f"s_mov_b32 s16, {DBG_OFF + k*(1<<18) + w*64}")
            a("buffer_load_dwordx4 v[4:7], v1, s[8:11], s16 offen")
            a("buffer_load_dwordx4 v[8:11], v1, s[8:11], s16 offen offset:16")
            a("s_waitcnt vmcnt(0)")
            a("v_not_b32 v12, v5")
            a(f"buffer_atomic_umax v12, v2, s[12:15], 0 offen offset:{k*20}")
            a(f"buffer_atomic_umax v11, v2, s[12:15], 0 offen offset:{k*20+4}")
            if wi == 0:
                a(f"v_sub_u32 v12, v{4+idx[0]}, v4")
                a(f"buffer_atomic_add v12, v2, s[12:15], 0 offen offset:{k*20+8}")
                a(f"v_sub_u32 v13, v{4+idx[1]}, v4")
                a(f"buffer_atomic_add v13, v2, s[12:15], 0 offen offset:{k*20+12}")
                a(f"v_sub_u32 v14, v10, v4")
                a(f"buffer_atomic_add v14, v2, s[12:15], 0 offen offset:{k*20+16}")
            a("s_waitcnt vmcnt(0)")
    a.label("KD_END")
    a("s_endpgm")
    return kernel_desc(name, 16, 16, 24)


def main():
    global STAMP
    if "--stamp" in sys.argv:
        STAMP = True
        sys.argv.remove("--stamp")
    ref = open(OUT + ".ref").read().split("\n")
    head = [l for l in ref if l.startswith(";") and "@launch" not in l]
    a = Asm()
    for l in head:
        a.raw(l)
    a.raw(f"; @launch kernel=qkv_kernel grid=(256,1,1) block=(512,1,1) lds={K1_LDS}")
    a.raw(f"; @launch kernel=attn_kernel grid=(512,1,1) block=(512,1,1) lds={K2_LDS}")
    if not FUSE:
        a.raw(f"; @launch kernel=proj_kernel grid=(256,1,1) block=(256,1,1) lds={K3_LDS}")
    if 'diag' in EXP:
        a.raw("; @launch kernel=diag_kernel grid=(1,1,1) block=(256,1,1) lds=0")
    a.raw('.amdgcn_target "amdgcn-amd-amdhsa--gfx950"')
    a.raw(".text")
    d = [gen_k1(a), gen_k2(a)] + ([] if FUSE else [gen_k3(a)]) + ([gen_diag(a)] if 'diag' in EXP else [])
    a.raw('.section .rodata,"a"')
    for x in d:
        a.raw(".p2align 6")
        a.raw(x.rstrip("\n"))
    out = sys.argv[1] if len(sys.argv) > 1 else OUT
    open(out, "w").write(a.text())
    print("wrote", out, len(a.L), "lines")


if __name__ == "__main__":
    main()
```

```python
import sys, math, struct, os
EXP = os.environ.get('EXP', '').split(',')

NAME = "gated_mix__sliding_local_dilated__mha_block__prompt"
OUT = f"cdna_kernels/{NAME}.s"

SEGB = 2621440
TB = 40960
O_OFF = 16 << 20
O_BR = 2621440
WOF_OFF = 24 << 20
WOF_BR = 819200
G_OFF = 28 << 20
CNT_OFF = G_OFF + 65536
WS_BYTES = 32 << 20
QSCALE = (20 ** -0.5) * math.log2(math.e)


def f32(x):
    return "0x%08x" % struct.unpack("<I", struct.pack("<f", x))[0]


def pi5(i):
    return (i & ~12) | ((i & 4) << 1) | ((i & 8) >> 1)


class Asm:
    def __init__(self):
        self.L = []

    def __call__(self, s):
        for l in s.strip("\n").split("\n"):
            self.L.append("    " + l.strip())

    def label(self, l):
        self.L.append(l + ":")

    def raw(self, s):
        self.L.append(s)

    def text(self):
        return "\n".join(self.L) + "\n"


def vr(b, n=1, p="v"):
    return f"{p}{b}" if n == 1 else f"{p}[{b}:{b+n-1}]"


def ar(b, n=1):
    return vr(b, n, "a")


def sr(b, n=1):
    return vr(b, n, "s")


STAMP = False
K2STF = ' sc1' if 'k2_sc1' in EXP else ''
DBG_OFF = 30 << 20


def stamp(a, idx, sbase=70):
    if not STAMP:
        return
    a(f"s_memtime s[{sbase+16}:{sbase+17}]")
    a("s_waitcnt lgkmcnt(0)")
    a(f"s_mov_b32 s{sbase+idx}, s{sbase+16}")


def stamp_rt(a, idx, sbase=70):
    if not STAMP:
        return
    a(f"s_memrealtime s[{sbase+16}:{sbase+17}]")
    a("s_waitcnt lgkmcnt(0)")
    a(f"s_mov_b32 s{sbase+idx}, s{sbase+16}")


def stamp_flush(a, kidx, srd_ws, swave, n, vtmp, sbase=70, shift=4):
    if not STAMP:
        return
    a("s_mov_b64 exec, -1")
    a(f"s_lshl_b32 s{sbase+16}, s2, {shift}")
    a(f"s_add_u32 s{sbase+16}, s{sbase+16}, s{swave}")
    a(f"s_lshl_b32 s{sbase+16}, s{sbase+16}, 6")
    a(f"s_add_u32 s{sbase+16}, s{sbase+16}, {DBG_OFF + kidx*(1<<18)}")
    a(f"v_mov_b32 v{vtmp+1}, 0")
    for i in range(n):
        a(f"v_mov_b32 v{vtmp}, s{sbase+i}")
        a(f"buffer_store_dword v{vtmp}, v{vtmp+1}, s[{srd_ws}:{srd_ws+3}], s{sbase+16} offen offset:{4*i}")


def kernel_head(a, name):
    a.raw(f".globl {name}")
    a.raw(".p2align 8")
    a.raw(f".type {name},@function")
    a.label(name)


def kernel_desc(name, vgpr_total, accum, sgpr):
    return f""".amdhsa_kernel {name}
  .amdhsa_next_free_vgpr {vgpr_total}
  .amdhsa_next_free_sgpr {96 if STAMP else sgpr}
  .amdhsa_accum_offset {accum}
  .amdhsa_group_segment_fixed_size 0
  .amdhsa_kernarg_size 80
  .amdhsa_user_sgpr_count 2
  .amdhsa_user_sgpr_kernarg_segment_ptr 1
  .amdhsa_system_sgpr_workgroup_id_x 1
.end_amdhsa_kernel
"""


def srd(a, d, base, nbytes):
    a(f"s_mov_b32 s{d}, s{base}")
    a(f"s_mov_b32 s{d+1}, s{base+1}")
    a(f"s_mov_b32 s{d+2}, {nbytes}")
    a(f"s_mov_b32 s{d+3}, 0x00020000")


G_WST = 8704
G_ST = G_WST + 8192


def gen_gemm(a, pfx, br, NS, sJ, done_label, stf, kidx, pairx=False):
    SX, SW, SR = 20, 24, 28
    sWave = 19
    a(f"""
    s_mul_i32 s12, s{sJ}, 1093
    s_lshr_b32 s12, s12, 16
    s_mul_i32 s13, s12, 60
    s_sub_u32 s13, s{sJ}, s13
    s_lshr_b32 s17, s13, 2
    s_and_b32 s13, s13, 3
    s_lshl_b32 s12, s12, 2
    s_add_u32 s16, s12, s13
    s_lshr_b32 s14, s16, 3
    s_and_b32 s15, s16, 7
    s_cmp_ge_u32 s{sWave}, 4
    s_cbranch_scc0 {pfx}_COMPUTE
    """)
    vW, vXg = 8, 10
    sWo, sXo, sWl, sXl, sWc, sXc, sOrd = 32, 33, 34, 35, 36, 37, 38
    K1_D = int(os.environ.get('K1D', '2'))
    ORD = []
    for g in range(4):
        o = list(range(10))
        for b in range(10):
            if b % 4 == g and K1_D:
                p = o.index(b)
                o.pop(p)
                o.insert(max(0, p - K1_D), b)
        ORD.append(sum(b << (4 * i) for i, b in enumerate(o)))
    a(f"""
    v_lshrrev_b32 v4, 4, v1
    v_and_b32 v3, 15, v1
    v_mul_u32_u24 v5, {4*3840}, v4
    v_lshl_add_u32 v{vW}, v3, 4, v5
    v_add_u32 v{vW+1}, {3840-1088}, v{vW}
    v_lshrrev_b32 v5, 2, v1
    v_and_b32 v6, 3, v1
    v_xor_b32 v6, v6, v4
    v_mul_u32_u24 v5, 2560, v5
    v_lshl_add_u32 v{vXg}, v6, 4, v5
    v_add_u32 v{vXg+1}, {16*2560-1024}, v{vXg}
    s_and_b32 s3, s{sWave}, 3
    s_lshr_b32 s12, s3, 1
    s_lshl_b32 s12, s12, 4
    s_and_b32 s18, s3, 1
    s_lshl_b32 s18, s18, 1
    s_add_u32 s12, s12, s18
    s_mul_i32 s{sWo}, s12, 3840
    s_lshl_b32 s12, s17, 8
    s_add_u32 s{sWo}, s{sWo}, s12
    s_mul_i32 s{sWl}, s3, {2*1088}
    s_lshl_b32 s{sXl}, s3, 11
    s_add_u32 s{sXl}, s{sXl}, {G_WST}
    s_lshl_b32 s12, s15, 2
    s_add_u32 s12, s12, s3
    s_mul_i32 s{sXo}, s12, {32*2560}
    s_mul_i32 s12, s14, 1280
    s_add_u32 s{sXo}, s{sXo}, s12
    s_add_u32 s3, s13, s17
    s_and_b32 s3, s3, 3
    s_mov_b32 s{sOrd}, {ORD[0] & 0xffffffff}
    s_mov_b32 s{sOrd+1}, {ORD[0] >> 32}
    s_cmp_eq_u32 s3, 1
    s_cselect_b32 s{sOrd}, {ORD[1] & 0xffffffff}, s{sOrd}
    s_cselect_b32 s{sOrd+1}, {ORD[1] >> 32}, s{sOrd+1}
    s_cmp_eq_u32 s3, 2
    s_cselect_b32 s{sOrd}, {ORD[2] & 0xffffffff}, s{sOrd}
    s_cselect_b32 s{sOrd+1}, {ORD[2] >> 32}, s{sOrd+1}
    s_cmp_eq_u32 s3, 3
    s_cselect_b32 s{sOrd}, {ORD[3] & 0xffffffff}, s{sOrd}
    s_cselect_b32 s{sOrd+1}, {ORD[3] >> 32}, s{sOrd+1}
    s_waitcnt lgkmcnt(0)
    """)
    srd(a, SX, 4, 2621440)
    srd(a, SW, 6, 2457600)
    srd(a, SR, 10, WS_BYTES)

    hist = []

    def xload(k):
        a(f"s_add_u32 m0, s{sXl}, {(k % NS) * G_ST}")
        a(f"s_add_u32 s{sXc}, s{sXc}, s{sXo}" if k % 2 == 0 else f"s_add_u32 s{sXc}, s{sXc}, 64")
        for q in range(2):
            a(f"buffer_load_dwordx4 v{vXg+q}, {sr(SX,4)}, s{sXc} offen offset:{1024*q} lds")
        hist.append(("X", k))

    def stage_loads(k):
        if k % 2 == 0:
            j = k // 2
            a(f"s_bfe_u32 s3, s{sOrd + j // 8}, {(4 << 16) | (4 * (j % 8))}")
            a(f"s_mul_i32 s{sWc}, s3, {2*122880}")
            a(f"s_lshl_b32 s{sXc}, s3, 7")
            xload(k)
            if pairx:
                xload(k + 1)
        elif not pairx:
            xload(k)
        a(f"s_add_u32 m0, s{sWl}, {(k % NS) * G_ST}")
        a(f"s_add_u32 s{sWc}, s{sWc}, s{sWo}" if k % 2 == 0 else f"s_add_u32 s{sWc}, s{sWc}, 122880")
        for i in range(2):
            a(f"buffer_load_dwordx4 v{vW+i}, {sr(SW,4)}, s{sWc} offen offset:{1088*i} lds")
        hist.append(("W", k))

    issued = [0]

    def issue(step, nmax):
        n = 0
        while issued[0] < 20 and n < nmax and (issued[0] + (1 if pairx and issued[0] % 2 == 0 else 0)) - NS <= step - 1:
            stage_loads(issued[0])
            issued[0] += 1
            n += 1

    def need(ks):
        a(f"s_waitcnt vmcnt({2 * (len(hist) - 1 - hist.index(('W', ks)))})")
        a("s_barrier")

    RAMP = [int(c) for c in os.environ.get('GRAMP', '3122')]
    issue(-2, RAMP[0])
    stamp(a, 2)
    need(0)
    stamp(a, 3)
    issue(-1, RAMP[1])
    for ks in range(19):
        need(ks + 1)
        if ks % 2 == 1 and ks <= 15: stamp(a, 8 + ks // 2)
        issue(ks, RAMP[ks + 2] if ks + 2 < len(RAMP) else RAMP[-1])
    assert issued[0] == 20
    a("s_barrier")
    stamp(a, 4); stamp(a, 5)
    a(f"s_branch {done_label}")

    a.label(f"{pfx}_COMPUTE")
    ACC = 16
    WFR = 80
    XFR = [96, 112]
    vTr0, vTr, vXr0, vXr, vSt = 8, 9, 10, 12, 14
    sRd, sIt, sSt, sSeg = 32, 34, 36, 35
    a(f"""
    v_bfe_u32 v3, v1, 2, 2
    v_mul_u32_u24 v3, 1088, v3
    v_lshrrev_b32 v4, 5, v1
    v_lshl_add_u32 v3, v4, 9, v3
    v_bfe_u32 v5, v1, 4, 1
    v_lshl_add_u32 v3, v5, 5, v3
    v_and_b32 v5, 3, v1
    v_lshl_add_u32 v3, v5, 3, v3
    s_and_b32 s12, s{sWave}, 1
    s_lshl_b32 s3, s12, 7
    v_add_u32 v{vTr0}, s3, v3
    v_and_b32 v5, 19, v1
    v_bfe_u32 v6, v1, 2, 1
    v_lshl_or_b32 v5, v6, 3, v5
    v_bfe_u32 v6, v1, 3, 1
    v_lshl_or_b32 v5, v6, 2, v5
    v_bfe_u32 v6, v5, 2, 2
    v_xor_b32 v6, v6, v4
    v_lshlrev_b32 v6, 4, v6
    v_lshl_add_u32 v5, v5, 6, v6
    s_lshr_b32 s13, s{sWave}, 1
    s_lshl_b32 s3, s13, 12
    s_add_u32 s3, s3, {G_WST}
    v_add_u32 v{vXr0}, s3, v5
    v_xor_b32 v{vXr0+1}, 32, v{vXr0}
    v_mov_b32 v{vXr}, v{vXr0}
    v_mov_b32 v{vXr+1}, v{vXr0+1}
    v_mov_b32 v{vTr}, v{vTr0}
    s_mov_b32 s{sRd}, {G_ST}
    s_mov_b32 s{sIt}, 0
    s_mul_i32 s{sSeg}, s17, 52
    s_lshr_b32 s{sSeg}, s{sSeg}, 8
    s_mul_i32 s3, s{sSeg}, 5
    s_sub_u32 s17, s17, s3
    s_lshl_b32 s17, s17, 1
    s_add_u32 s17, s17, s12
    s_add_u32 s3, s{sSeg}, {br if isinstance(br, str) else 3*br}
    s_mul_i32 s{sSt}, s3, {SEGB}
    s_lshl_b32 s3, s16, 1
    s_add_u32 s3, s3, s13
    s_mul_i32 s3, s3, {2*TB}
    s_add_u32 s{sSt}, s{sSt}, s3
    s_waitcnt lgkmcnt(0)
    """)
    srd(a, SR, 10, WS_BYTES)
    for i in range(64):
        a(f"v_mov_b32 v{ACC+i}, 0")

    def xreads(fset):
        return [f"ds_read_b128 {vr(XFR[fset] + (mt*2+kk)*4, 4)}, v{vXr+kk} offset:{2048*mt}" for kk in range(2) for mt in range(2)]

    def wreads(nt, kk):
        b = WFR + (nt * 2 + kk) * 4
        return [f"ds_read_b64_tr_b16 {vr(b + 2*s, 2)}, v{vTr} offset:{kk*4352 + s*256 + nt*64}" for s in range(2)]

    stamp(a, 2)
    a("s_barrier")
    stamp(a, 3)
    x0 = xreads(0)
    for l in x0[:2] + wreads(0, 0) + x0[2:] + wreads(1, 0) + wreads(0, 1) + wreads(1, 1):
        a(l)
    a(f"s_cmp_eq_u32 s{sSeg}, 2")
    a(f"s_cbranch_scc1 {pfx}_LOOP_N")
    for ori in ("T", "N"):
        a.raw(".p2align 3")
        a.label(f"{pfx}_LOOP_{ori}")
        for s in range(2):
            a(f"v_add_u32 v{vTr}, s{sRd}, v{vTr0}")
            a(f"v_add_u32 v{vXr}, s{sRd}, v{vXr0}")
            a(f"v_add_u32 v{vXr+1}, s{sRd}, v{vXr0+1}")
            a("s_barrier")
            xr = xreads(1 - s)
            rest = [f"s_add_u32 s{sRd}, s{sRd}, {G_ST}",
                    f"s_cmp_ge_u32 s{sRd}, {NS*G_ST}",
                    f"s_cselect_b32 s{sRd}, 0, s{sRd}"]
            if s == 1:
                rest += [f"s_add_u32 s{sIt}, s{sIt}, 1", f"s_cmp_lt_u32 s{sIt}, 10"]
            idx = 0
            for kk in range(2):
                for nt in range(2):
                    for mt in range(2):
                        acc = vr(ACC + (nt * 2 + mt) * 16, 16)
                        w = vr(WFR + (nt * 2 + kk) * 4, 4)
                        x = vr(XFR[s] + (mt * 2 + kk) * 4, 4)
                        if mt == 0:
                            a(f"s_waitcnt lgkmcnt({8 if kk == 0 else 10})")
                        if ori == "T":
                            a(f"v_mfma_f32_32x32x16_bf16 {acc}, {w}, {x}, {acc}")
                        else:
                            a(f"v_mfma_f32_32x32x16_bf16 {acc}, {x}, {w}, {acc}")
                        if mt == 0:
                            if idx < 2:
                                a(xr[2 * idx]); a(xr[2 * idx + 1])
                            else:
                                for l in (rest[:3] if idx == 2 else rest[3:]):
                                    a(l)
                            idx += 1
                        else:
                            for l in wreads(nt, kk):
                                a(l)
        a(f"s_cbranch_scc1 {pfx}_LOOP_{ori}")
        stamp(a, 4)
        if ori == "T":
            a(f"""
            s_lshl_b32 s3, s17, 12
            s_add_u32 s{sSt}, s{sSt}, s3
            s_add_u32 s{sSt+1}, s{sSt}, {TB}
            s_cmp_eq_u32 s{sSeg}, 0
            s_cselect_b32 s40, {f32(QSCALE)}, 1.0
            s_mov_b32 s41, s40
            v_lshlrev_b32 v{vSt}, 4, v1
            s_nop 7
            """)
        else:
            a(f"""
            s_lshl_b32 s3, s17, 10
            s_add_u32 s{sSt}, s{sSt}, s3
            s_add_u32 s{sSt+1}, s{sSt}, {TB}
            s_add_u32 s{sSt+2}, s{sSt}, 20480
            s_add_u32 s{sSt+3}, s{sSt+1}, 20480
            v_mul_u32_u24 v5, 10240, v4
            v_and_b32 v6, 31, v1
            v_lshl_add_u32 v{vSt}, v6, 4, v5
            s_nop 7
            """)
        for nt in range(2):
            for mt in range(2):
                for jp in range(2):
                    b0 = ACC + (nt * 2 + mt) * 16 + 8 * jp
                    if ori == "T":
                        for i in range(4):
                            a(f"v_pk_mul_f32 {vr(b0+2*i,2)}, {vr(b0+2*i,2)}, s[40:41]")
                    for i in range(4):
                        a(f"v_cvt_pk_bf16_f32 v{b0+i}, v{b0+2*i}, v{b0+2*i+1}")
                    if ori == "T":
                        a("s_nop 1")
                        a(f"v_permlane32_swap_b32 v{b0}, v{b0+2}")
                        a(f"v_permlane32_swap_b32 v{b0+1}, v{b0+3}")
                        a("s_nop 0")
                        a(f"buffer_store_dwordx4 {vr(b0,4)}, v{vSt}, {sr(SR,4)}, s{sSt + mt} offen offset:{nt*2048 + jp*1024}{stf}")
                    else:
                        a(f"buffer_store_dwordx4 {vr(b0,4)}, v{vSt}, {sr(SR,4)}, s{sSt + mt + 2*jp} offen offset:{nt*512}{stf}")
        stamp(a, 5)
        a(f"s_branch {done_label}")


K1_WST = 16896
K1_NSW = 6 if 'k1_nsw6' in EXP else 5
K1_NSX = 3
K1_XB = K1_WST * K1_NSW
K1_LDS = K1_XB + K1_NSX * 16384


STF = '' if 'k1_plain' in EXP else (' nt' if 'k1_nt' in EXP else (' sc1 nt' if 'k1_sc1nt' in EXP else (' sc0 sc1 nt' if 'k1_all' in EXP else ' sc1')))


def gen_k1(a):
    name = "qkv_kernel"
    kernel_head(a, name)
    SX, SW, SR = 20, 24, 28
    sWave = 19
    a("s_cmp_ge_u32 s2, 256")
    a("s_cbranch_scc1 K1_END")
    stamp(a, 0); stamp_rt(a, 1)
    a("""
    s_load_dwordx4 s[4:7], s[0:1], 0
    s_load_dwordx2 s[8:9], s[0:1], 32
    s_load_dwordx2 s[10:11], s[0:1], 72
    """)
    if 'noct' not in EXP:
        code_touch(a, 31, 30, 52, "K1_CT0", "attn_kernel", lane="v0")
        a.label("K1_CT0")
    a("""
    v_lshrrev_b32 v2, 6, v0
    v_and_b32 v1, 63, v0
    s_and_b32 s12, s2, 7
    v_readfirstlane_b32 s19, v2
    s_cmp_ge_u32 s2, 240
    s_cbranch_scc1 K1_SIDE
    s_lshr_b32 s13, s2, 3
    s_mul_i32 s12, s12, 30
    s_add_u32 s12, s12, s13
    s_cmp_ge_u32 s12, 120
    s_cselect_b32 s14, 1, 0
    s_cselect_b32 s13, 120, 0
    s_sub_u32 s12, s12, s13
    s_and_b32 s15, s12, 7
    s_lshr_b32 s16, s12, 3
    v_and_b32 v3, 15, v1
    v_lshrrev_b32 v4, 4, v1
    """)
    a(f"""
    s_cmp_ge_u32 s{sWave}, 4
    s_cselect_b32 s12, 1, 0
    s_lshr_b32 s12, s{sWave}, s12
    s_and_b32 s12, s12, 1
    s_lshl_b32 s17, s16, 1
    s_add_u32 s17, s17, s12
    s_cmp_ge_u32 s17, 15
    s_cselect_b32 s18, 1, 0
    s_cselect_b32 s13, 15, 0
    s_sub_u32 s17, s17, s13
    s_movk_i32 s60, 3840
    s_mov_b32 s62, 2621440
    s_movk_i32 s63, 128
    s_cmp_ge_u32 s{sWave}, 4
    s_cbranch_scc0 K1_COMPUTE
    """)
    vW, vXg = 8, 12
    sWo, sXo, sWl, sXl, sWc, sXc, sOrd = 32, 33, 34, 35, 36, 37, 38
    K1_D = int(os.environ.get('K1D', '2'))
    ORD = []
    for g in range(4):
        o = list(range(10))
        for b in range(10):
            if b % 4 == g and K1_D:
                p = o.index(b)
                o.pop(p)
                o.insert(max(0, p - K1_D), b)
        ORD.append(sum(b << (4 * i) for i, b in enumerate(o)))
    a(f"""
    v_lshrrev_b32 v5, 1, v4
    v_and_b32 v6, 1, v4
    v_lshlrev_b32 v5, 4, v5
    v_lshl_add_u32 v5, v6, 2, v5
    v_mul_u32_u24 v5, 3840, v5
    v_lshl_add_u32 v{vW}, v3, 4, v5
    v_add_u32 v{vW+1}, 2784, v{vW}
    v_add_u32 v{vW+2}, {2*2784}, v{vW}
    v_add_u32 v{vW+3}, {3*2784}, v{vW}
    v_lshrrev_b32 v5, 3, v1
    v_and_b32 v6, 7, v1
    v_xor_b32 v6, v6, v5
    v_mul_u32_u24 v5, 2560, v5
    v_lshl_add_u32 v{vXg}, v6, 4, v5
    v_add_u32 v{vXg+1}, 19456, v{vXg}
    v_add_u32 v{vXg+2}, {2*19456}, v{vXg}
    v_add_u32 v{vXg+3}, {3*19456}, v{vXg}
    s_and_b32 s13, s{sWave}, 1
    s_mul_i32 s{sWo}, s13, {8*3840}
    s_lshl_b32 s3, s17, 8
    s_add_u32 s{sWo}, s{sWo}, s3
    s_and_b32 s3, s{sWave}, 3
    s_mul_i32 s{sWl}, s3, {4*1056}
    s_lshl_b32 s{sXl}, s3, 12
    s_add_u32 s{sXl}, s{sXl}, {K1_XB}
    s_lshl_b32 s13, s15, 2
    s_add_u32 s13, s13, s3
    s_mul_i32 s{sXo}, s13, {32*2560}
    s_mul_i32 s13, s14, 1280
    s_add_u32 s{sXo}, s{sXo}, s13
    s_add_u32 s3, s15, s16
    s_and_b32 s3, s3, 3
    s_mov_b32 s{sOrd}, {ORD[0] & 0xffffffff}
    s_mov_b32 s{sOrd+1}, {ORD[0] >> 32}
    s_cmp_eq_u32 s3, 1
    s_cselect_b32 s{sOrd}, {ORD[1] & 0xffffffff}, s{sOrd}
    s_cselect_b32 s{sOrd+1}, {ORD[1] >> 32}, s{sOrd+1}
    s_cmp_eq_u32 s3, 2
    s_cselect_b32 s{sOrd}, {ORD[2] & 0xffffffff}, s{sOrd}
    s_cselect_b32 s{sOrd+1}, {ORD[2] >> 32}, s{sOrd+1}
    s_cmp_eq_u32 s3, 3
    s_cselect_b32 s{sOrd}, {ORD[3] & 0xffffffff}, s{sOrd}
    s_cselect_b32 s{sOrd+1}, {ORD[3] >> 32}, s{sOrd+1}
    s_cmp_eq_u32 s18, 0
    s_waitcnt lgkmcnt(0)
    s_cselect_b64 s[6:7], s[6:7], s[8:9]
    """)
    srd(a, SX, 4, 2621440)
    srd(a, SW, 6, 2457600)
    if STAMP:
        srd(a, SR, 10, WS_BYTES)
    hist = []

    def blk(j, dst):
        r = sOrd + (j // 8)
        a(f"s_bfe_u32 s{dst}, s{r}, {(4 << 16) | (4 * (j % 8))}")

    def wl(k):
        a(f"s_add_u32 m0, s{sWl}, {(k % K1_NSW) * K1_WST}")
        if k % 2 == 0:
            blk(k // 2, sWc)
            a(f"s_mul_i32 s{sWc}, s{sWc}, {2*122880}")
            a(f"s_add_u32 s{sWc}, s{sWc}, s{sWo}")
        else:
            a(f"s_add_u32 s{sWc}, s{sWc}, 122880")
        for i in range(4):
            a(f"buffer_load_dwordx4 v{vW+i}, {sr(SW,4)}, s{sWc} offen offset:{1056*i} lds")
        hist.append(("W", k))

    def xl(j):
        a(f"s_add_u32 m0, s{sXl}, {(j % K1_NSX) * 16384}")
        blk(j, sXc)
        a(f"s_lshl_b32 s{sXc}, s{sXc}, 7")
        a(f"s_add_u32 s{sXc}, s{sXc}, s{sXo}")
        for q in range(4):
            a(f"buffer_load_dwordx4 v{vXg+q}, {sr(SX,4)}, s{sXc} offen offset:{1024*q} lds")
        hist.append(("X", j))

    def need(ks):
        req = [("W", ks), ("X", ks // 2)]
        last = max(hist.index(r) for r in req)
        a(f"s_waitcnt vmcnt({4 * (len(hist) - 1 - last)})")
        a("s_barrier")

    seq = []
    for j in range(10):
        seq += [("X", j), ("W", 2 * j), ("W", 2 * j + 1)]
    pos = [0]

    def free_at(it):
        t, i = it
        if t == "W":
            return i - K1_NSW
        return 2 * (i - K1_NSX) + 1

    def issue(step, nmax):
        n = 0
        while pos[0] < len(seq) and n < nmax and free_at(seq[pos[0]]) <= step:
            t, i = seq[pos[0]]
            (wl if t == "W" else xl)(i)
            pos[0] += 1
            n += 1
    RAMP = [int(c) for c in os.environ.get('K1RAMP', '32222')]
    issue(-2, RAMP[0])
    stamp(a, 2)
    need(0)
    stamp(a, 3)
    issue(-1, RAMP[1])
    for ks in range(19):
        need(ks + 1)
        if ks % 2 == 1 and ks <= 15: stamp(a, 8 + ks // 2)
        issue(ks, RAMP[ks + 2] if ks + 2 < len(RAMP) else RAMP[-1])
    assert pos[0] == len(seq)
    a("s_barrier")
    stamp(a, 4); stamp(a, 5); stamp(a, 6); stamp_rt(a, 7)
    stamp_flush(a, 0, SR, sWave, 16, 2)
    a("s_endpgm")

    a.label("K1_COMPUTE")
    ACC = 32
    WFR = [0, 32]
    XFR = [64, 80]
    vTr0, vTr, vXr0, vXr, vSt = 8, 9, 10, 12, 14
    sRd, sXr, sIt, sSt, sSeg = 32, 33, 34, 36, 35
    TOUCH = 'k1_touch' in EXP
    ST, sTo, sTs = 44, 42, 43
    TD = 5
    if TOUCH:
        a(f"""
        v_lshrrev_b32 v5, 1, v1
        v_and_b32 v6, 1, v1
        v_lshlrev_b32 v6, 7, v6
        v_mad_u32_u24 v16, v5, s60, v6
        v_mul_u32_u24 v17, 2560, v1
        s_mul_i32 s{sTo}, s15, {8*3840}
        s_lshl_b32 s3, s17, 8
        s_add_u32 s{sTo}, s{sTo}, s3
        s_add_u32 s{sTo}, s{sTo}, {3*64*3840}
        s_lshl_b32 s3, s15, 3
        s_and_b32 s13, s16, 3
        s_lshl_b32 s13, s13, 1
        s_add_u32 s3, s3, s13
        s_and_b32 s13, s{sWave}, 1
        s_add_u32 s3, s3, s13
        s_mul_i32 s3, s3, {16*2560}
        s_mul_i32 s13, s14, 1280
        s_add_u32 s3, s3, s13
        s_add_u32 s3, s3, {3*128}
        s_cmp_eq_u32 s18, 0
        s_waitcnt lgkmcnt(0)
        s_cselect_b64 s[6:7], s[6:7], s[8:9]
        s_cmp_lt_u32 s{sWave}, 2
        s_cselect_b64 s[{ST}:{ST+1}], s[6:7], s[4:5]
        s_cselect_b32 s{ST+2}, 2457600, s62
        s_mov_b32 s{ST+3}, 0x00020000
        s_cselect_b32 s{sTo}, s{sTo}, s3
        s_cselect_b32 s{sTs}, {64*3840}, s63
        s_cselect_b64 s[50:51], -1, 0
        v_cndmask_b32 v16, v17, v16, s[50:51]
        v_cmp_gt_u32 s[50:51], 16, v1
        v_mov_b32 v17, 0x40000000
        s_nop 0
        v_cndmask_b32 v16, v17, v16, s[50:51]
        """)
        for b in range(3, TD):
            a(f"buffer_load_dword v18, v16, {sr(ST,4)}, s{sTo} offen")
            a(f"s_add_u32 s{sTo}, s{sTo}, s{sTs}")
    a(f"""
    v_and_b32 v5, 1, v4
    v_lshrrev_b32 v6, 2, v3
    v_lshl_add_u32 v5, v5, 2, v6
    v_mul_u32_u24 v5, 1056, v5
    v_lshrrev_b32 v6, 1, v4
    v_lshlrev_b32 v6, 9, v6
    v_and_b32 v7, 3, v3
    v_lshlrev_b32 v7, 3, v7
    v_add3_u32 v5, v5, v6, v7
    s_mul_i32 s3, s12, 8448
    v_add_u32 v{vTr0}, s3, v5
    v_and_b32 v5, 3, v3
    v_bfe_u32 v6, v3, 2, 1
    v_lshl_or_b32 v5, v6, 3, v5
    v_bfe_u32 v6, v3, 3, 1
    v_lshl_or_b32 v5, v6, 2, v5
    v_and_b32 v6, 7, v5
    v_xor_b32 v6, v6, v4
    v_lshlrev_b32 v6, 4, v6
    v_lshl_add_u32 v5, v5, 7, v6
    s_lshr_b32 s13, s{sWave}, 1
    s_lshl_b32 s3, s13, 13
    s_add_u32 s3, s3, {K1_XB}
    v_add_u32 v{vXr0}, s3, v5
    v_xor_b32 v{vXr0+1}, 64, v{vXr0}
    v_mov_b32 v{vXr}, v{vXr0}
    v_mov_b32 v{vXr+1}, v{vXr0+1}
    v_mov_b32 v{vTr}, v{vTr0}
    s_mov_b32 s{sRd}, {K1_WST}
    s_mov_b32 s{sXr}, 16384
    s_mov_b32 s{sIt}, 0
    s_mul_i32 s{sSeg}, s17, 52
    s_lshr_b32 s{sSeg}, s{sSeg}, 8
    s_mul_i32 s3, s{sSeg}, 5
    s_sub_u32 s17, s17, s3
    s_mul_i32 s3, s18, 3
    s_add_u32 s3, s3, s{sSeg}
    s_mul_i32 s{sSt}, s3, {SEGB}
    s_lshl_b32 s3, s14, 4
    s_lshl_b32 s16, s15, 1
    s_add_u32 s3, s3, s16
    s_add_u32 s3, s3, s13
    s_mul_i32 s3, s3, {2*TB}
    s_add_u32 s{sSt}, s{sSt}, s3
    s_waitcnt lgkmcnt(0)
    """)
    srd(a, SR, 10, WS_BYTES)
    for i in range(128):
        a(f"v_mov_b32 v{ACC+i}, 0")

    def reads(fset, kk):
        L = [f"ds_read_b128 {ar(XFR[fset]+4*mt,4)}, v{vXr+kk} offset:{2048*mt}" for mt in range(4)]
        for t in range(8):
            for s in range(2):
                L.append(f"ds_read_b64_tr_b16 {ar(WFR[fset]+4*t+2*s,2)}, v{vTr} offset:{s*256 + t*32}")
        return L

    stamp(a, 2)
    a("s_barrier")
    stamp(a, 3)
    for l in reads(0, 0):
        a(l)
    a(f"s_cmp_eq_u32 s{sSeg}, 2")
    a("s_cbranch_scc1 K1_LOOP_N")
    for ori in ("T", "N"):
        a.raw(".p2align 3")
        a.label(f"K1_LOOP_{ori}")
        for s in range(2):
            fs = s
            rd = reads(1 - fs, 1 - s)
            mf = []
            for t in range(8):
                for mt in range(4):
                    acc = vr(ACC + (t * 4 + mt) * 4, 4)
                    w = ar(WFR[fs] + 4 * t, 4)
                    x = ar(XFR[fs] + 4 * mt, 4)
                    if ori == "T":
                        mf.append(f"v_mfma_f32_16x16x32_bf16 {acc}, {w}, {x}, {acc}")
                    else:
                        mf.append(f"v_mfma_f32_16x16x32_bf16 {acc}, {x}, {w}, {acc}")
            a(f"v_add_u32 v{vTr}, s{sRd}, v{vTr0}")
            rest = [f"s_add_u32 s{sRd}, s{sRd}, {K1_WST}",
                    f"s_cmp_ge_u32 s{sRd}, {K1_XB}",
                    f"s_cselect_b32 s{sRd}, 0, s{sRd}"]
            if s == 0 and TOUCH:
                rest += [f"s_cmp_lt_u32 s{sIt}, {10-TD}",
                         f"s_cselect_b32 s{sTo}, s{sTo}, 0x40000000",
                         f"buffer_load_dword v18, v16, {sr(ST,4)}, s{sTo} offen",
                         f"s_add_u32 s{sTo}, s{sTo}, s{sTs}"]
            if s == 1:
                a(f"v_add_u32 v{vXr}, s{sXr}, v{vXr0}")
                rest += [f"v_add_u32 v{vXr+1}, s{sXr}, v{vXr0+1}",
                         f"s_add_u32 s{sXr}, s{sXr}, 16384",
                         f"s_cmp_ge_u32 s{sXr}, {K1_NSX*16384}",
                         f"s_cselect_b32 s{sXr}, 0, s{sXr}",
                         f"s_add_u32 s{sIt}, s{sIt}, 1",
                         f"s_cmp_lt_u32 s{sIt}, 10"]
            a("s_waitcnt lgkmcnt(0)")
            a("s_barrier")
            fill = rd + rest
            for i in range(32):
                a(mf[i])
                if i < len(fill):
                    a(fill[i])
        a(f"s_cbranch_scc1 K1_LOOP_{ori}")
        stamp(a, 4)
        if ori == "T":
            a(f"""
            s_lshl_b32 s3, s17, 13
            s_add_u32 s{sSt}, s{sSt}, s3
            s_add_u32 s{sSt+1}, s{sSt}, 4096
            s_add_u32 s{sSt+2}, s{sSt}, {TB}
            s_add_u32 s{sSt+3}, s{sSt+1}, {TB}
            s_cmp_eq_u32 s{sSeg}, 0
            s_cselect_b32 s40, {f32(QSCALE)}, 1.0
            s_mov_b32 s41, s40
            v_lshlrev_b32 v{vSt}, 4, v1
            s_nop 3
            """)
        else:
            a(f"""
            s_lshl_b32 s3, s17, 11
            s_add_u32 s{sSt}, s{sSt}, s3
            s_add_u32 s{sSt+2}, s{sSt}, {TB}
            v_mul_u32_u24 v5, 10240, v4
            v_lshl_add_u32 v{vSt}, v3, 4, v5
            s_nop 7
            """)
        for t in range(8):
            for mp in range(2):
                b0 = ACC + (t * 4 + 2 * mp) * 4
                b1 = b0 + 4
                if ori == "T":
                    for i in range(4):
                        a(f"v_pk_mul_f32 {vr(b0+2*i,2)}, {vr(b0+2*i,2)}, s[40:41]")
                a(f"v_cvt_pk_bf16_f32 v{b0}, v{b0}, v{b0+1}")
                a(f"v_cvt_pk_bf16_f32 v{b0+1}, v{b0+2}, v{b0+3}")
                a(f"v_cvt_pk_bf16_f32 v{b0+2}, v{b1}, v{b1+1}")
                a(f"v_cvt_pk_bf16_f32 v{b0+3}, v{b1+2}, v{b1+3}")
                a("s_nop 1")
                sw = "v_permlane16_swap_b32" if ori == "T" else "v_permlane32_swap_b32"
                a(f"{sw} v{b0}, v{b0+2}")
                a(f"{sw} v{b0+1}, v{b0+3}")
                a("s_nop 0")
                if ori == "T":
                    a(f"buffer_store_dwordx4 {vr(b0,4)}, v{vSt}, {sr(SR,4)}, s{sSt + 2*mp + t//4} offen offset:{(t%4)*1024}{STF}")
                else:
                    a(f"buffer_store_dwordx4 {vr(b0,4)}, v{vSt}, {sr(SR,4)}, s{sSt + 2*mp} offen offset:{t*256}{STF}")
        stamp(a, 5)
        if STAMP: a("s_waitcnt vmcnt(0)")
        stamp(a, 6); stamp_rt(a, 7)
        stamp_flush(a, 0, SR, sWave, 8, 2)
        a("s_endpgm")

    a.label("K1_SIDE")
    SGW, SWO = 32, 36
    a(f"""
    s_load_dwordx2 s[46:47], s[0:1], 16
    s_load_dwordx4 s[12:15], s[0:1], 40
    s_sub_u32 s16, s2, 240
    s_lshl_b32 s16, s16, 3
    s_add_u32 s16, s16, s{sWave}
    v_lshlrev_b32 v2, 2, v1
    v_lshlrev_b32 v5, 4, v1
    v_lshrrev_b32 v3, 3, v1
    v_and_b32 v4, 7, v1
    v_mul_u32_u24 v3, 1280, v3
    v_lshl_add_u32 v3, v4, 4, v3
    v_lshrrev_b32 v4, 4, v1
    v_bfe_u32 v6, v1, 2, 2
    v_lshl_add_u32 v4, v4, 3, v6
    v_and_b32 v6, 3, v1
    v_lshlrev_b32 v6, 3, v6
    v_lshl_add_u32 v6, v4, 7, v6
    s_lshl_b32 s40, s{sWave}, 14
    v_add_u32 v6, s40, v6
    v_mov_b32 v4, 0
    s_waitcnt lgkmcnt(0)
    """)
    srd(a, SX, 4, 2621440)
    srd(a, SR, 10, WS_BYTES)
    srd(a, SGW, 14, 1280)
    a(f"""
    v_and_b32 v7, 255, v0
    v_lshlrev_b32 v7, 7, v7
    s_mov_b32 s3, {CNT_OFF}
    v_mov_b32 v24, 0
    v_mov_b32 v25, 0
    v_mov_b32 v26, 0
    v_mov_b32 v27, 0
    buffer_store_dwordx4 v[24:27], v7, {sr(SR,4)}, s3 offen
    """)
    a(f"s_mov_b32 s{SWO+2}, 819200")
    a(f"s_mov_b32 s{SWO+3}, 0x00020000")
    if 'notlb' not in EXP:
        a("s_load_dwordx2 s[50:51], s[0:1], 56")
        a("v_lshlrev_b32 v29, 16, v0")
        a(f"buffer_load_dword v28, v29, {sr(SR,4)}, 0 offen")
        a("s_waitcnt lgkmcnt(0)")
        srd(a, 56, 50, 2621440)
        a("buffer_load_dword v28, v29, s[56:59], 0 offen")
    for i in range(4):
        a(f"""
        s_add_u32 s41, s16, {128*i}
        s_cmp_ge_u32 s41, 200
        s_cselect_b32 s{SWO}, s12, s46
        s_cselect_b32 s{SWO+1}, s13, s47
        s_cselect_b32 s3, 200, 0
        s_cselect_b32 s{42+i}, {WOF_BR}, 0
        s_add_u32 s{42+i}, s{42+i}, {WOF_OFF}
        s_sub_u32 s3, s41, s3
        s_mul_i32 s17, s3, 6554
        s_lshr_b32 s17, s17, 16
        s_mul_i32 s18, s17, 10
        s_sub_u32 s18, s3, s18
        s_lshl_b32 s3, s17, 10
        s_add_u32 s{42+i}, s{42+i}, s3
        s_mul_i32 s3, s18, {4*20480}
        s_add_u32 s{42+i}, s{42+i}, s3
        s_mul_i32 s17, s17, {32*1280}
        s_lshl_b32 s18, s18, 7
        s_add_u32 s17, s17, s18
        s_cmp_ge_u32 s41, 400
        s_cselect_b32 s{42+i}, 0x7f000000, s{42+i}
        s_cselect_b32 s17, 0x7f000000, s17
        """)
        for q in range(4):
            a(f"s_add_u32 m0, s40, {4096*i + 1024*q}")
            a("s_nop 0")
            a(f"buffer_load_dwordx4 v3, {sr(SWO,4)}, s17 offen lds")
            a(f"s_add_u32 s17, s17, {8*1280}")
    GW, GX = 8, 16
    for i in range(5):
        a(f"buffer_load_dword v{GW+i}, v2, {sr(SGW,4)}, 0 offen offset:{256*i}")
    a(f"""
    s_and_b32 s3, s16, 63
    s_mul_i32 s17, s3, {16*2560}
    s_lshr_b32 s3, s16, 6
    s_mul_i32 s3, s3, 1280
    s_add_u32 s17, s17, s3
    s_lshl_b32 s18, s16, 6
    s_add_u32 s18, s18, {G_OFF}
    """)
    for half in range(2):
        for r in range(8):
            for i in range(5):
                a(f"buffer_load_dword v{GX+5*r+i}, v2, {sr(SX,4)}, s17 offen offset:{256*i}")
            a("s_add_u32 s17, s17, 2560")
        if half == 0:
            a("s_waitcnt vmcnt(45)")
            for i in range(4):
                for nt in range(4):
                    b = 72 + (4 * i + nt) * 4
                    a(f"ds_read_b64_tr_b16 {vr(b,2)}, v6 offset:{4096*i + 32*nt}")
                    a(f"ds_read_b64_tr_b16 {vr(b+2,2)}, v6 offset:{4096*i + 32*nt + 512}")
                a("s_waitcnt lgkmcnt(0)")
            a("s_waitcnt vmcnt(0)")
            for i in range(4):
                for nt in range(4):
                    b = 72 + (4 * i + nt) * 4
                    a(f"buffer_store_dwordx4 {vr(b,4)}, v5, {sr(SR,4)}, s{42+i} offen")
                    a(f"s_add_u32 s{42+i}, s{42+i}, 20480")
        else:
            a("s_waitcnt vmcnt(0)")
        for r in range(8):
            a(f"v_dot2_f32_bf16 v{60+r}, v{GX+5*r}, v{GW}, 0")
        for i in range(1, 5):
            for r in range(8):
                a(f"v_dot2_f32_bf16 v{60+r}, v{GX+5*r+i}, v{GW+i}, v{60+r}")
        a("s_nop 3")
        for sh in ("row_shr:1 row_mask:0xf bank_mask:0xf bound_ctrl:0", "row_shr:2 row_mask:0xf bank_mask:0xf bound_ctrl:0",
                   "row_shr:4 row_mask:0xf bank_mask:0xf bound_ctrl:0", "row_shr:8 row_mask:0xf bank_mask:0xf bound_ctrl:0",
                   "row_bcast:15 row_mask:0xa bank_mask:0xf", "row_bcast:31 row_mask:0xc bank_mask:0xf"):
            for r in range(8):
                a(f"v_add_f32_dpp v{60+r}, v{60+r}, v{60+r} {sh}")
        for r in range(8):
            a(f"v_mul_f32 v{60+r}, {f32(-math.log2(math.e))}, v{60+r}")
        for r in range(8):
            a(f"v_exp_f32 v{60+r}, v{60+r}")
        for r in range(8):
            a(f"v_add_f32 v{60+r}, 1.0, v{60+r}")
        for r in range(8):
            a(f"v_rcp_f32 v{60+r}, v{60+r}")
        a("s_mov_b32 exec_lo, 0")
        a("s_mov_b32 exec_hi, 0x80000000")
        a(f"buffer_store_dwordx4 v[60:63], v4, {sr(SR,4)}, s18 offen offset:{32*half}")
        a(f"buffer_store_dwordx4 v[64:67], v4, {sr(SR,4)}, s18 offen offset:{32*half+16}")
        a("s_mov_b64 exec, -1")
        a("s_nop 1")
    if 'noct' not in EXP:
        code_touch(a, 31, 30, 52, "attn_kernel", "CODE_END", lane="v0")
    if STAMP:
        a("s_waitcnt vmcnt(0)")
        for i in range(2, 7):
            stamp(a, i)
        stamp_rt(a, 7)
        stamp_flush(a, 0, SR, sWave, 8, 2)
    a.label("K1_END")
    a("s_endpgm")
    return kernel_desc(name, 256, 160, 64)


K2_TILE = 2880
K2_SLOT = 8 * K2_TILE
K2_R = 3
K2_FLAG = K2_SLOT * K2_R + 256
K2_LDS = 81920
FUSE = True


def code_touch(a, vdst, vaddr, stmp, first, last, lane="v1"):
    lab = f"CT_{len(a.L)}"
    a(f"s_getpc_b64 s[{stmp}:{stmp+1}]")
    a.label(lab)
    a(f"s_add_u32 s{stmp}, s{stmp}, {first}-{lab}")
    a(f"s_addc_u32 s{stmp+1}, s{stmp+1}, 0")
    a(f"v_lshlrev_b32 v{vaddr}, 7, {lane}")
    a(f"v_min_u32 v{vaddr}, {last}-{first}-4, v{vaddr}")
    a(f"global_load_dword v{vdst}, v{vaddr}, s[{stmp}:{stmp+1}]")


def gen_k2(a):
    name = "attn_kernel"
    kernel_head(a, name)
    SWS = 28
    sWave, sHead, sT = 19, 17, 18
    sDma, sM0, sSlot, sC, sRedo = 24, 25, 26, 27, 20
    sTA, sO, sTouch = 21, 22, 23
    sTmp = 36
    vK10, vK20, vLV, vK1, vK2, vV, vO = 2, 3, 4, 5, 6, 7, 15
    vt = 8
    Q1, Q2 = 16, 20
    KF1, KF2 = 24, 28
    vD = 22
    vD2 = 30
    vGK1, vGK2 = 31, 112
    vL16, vO2, vGV = 113, 114, 115
    VF = 32
    P = 40
    NEGM = 48
    SB = [64, 80]
    O = 96
    AKP1, AKP2 = 116, 120
    vGt, vCb, vOne = 122, 123, 124
    sProg = 46
    NV = 128
    a("s_cmp_ge_u32 s2, 512")
    a("s_cbranch_scc1 K2_END")
    stamp(a, 0); stamp_rt(a, 1)
    a("""
    s_load_dwordx2 s[10:11], s[0:1], 72
    v_lshrrev_b32 v8, 6, v0
    v_and_b32 v1, 63, v0
    s_and_b32 s14, s2, 7
    v_readfirstlane_b32 s19, v8
    s_cmp_ge_u32 s2, 256
    s_cbranch_scc1 K2_AROLE
    s_lshr_b32 s15, s2, 3
    s_lshl_b32 s17, s14, 2
    s_lshr_b32 s3, s15, 3
    s_add_u32 s17, s17, s3
    s_and_b32 s9, s15, 7
    s_lshl_b32 s9, s9, 3
    s_add_u32 s18, s9, s19
    """)

    def head_addr():
        a(f"""
        v_and_b32 v8, 31, v1
        v_lshrrev_b32 v9, 5, v1
        v_lshlrev_b32 v{vL16}, 4, v1
        s_and_b32 s4, s{sHead}, 1
        s_mul_i32 s5, s{sHead}, 5
        s_lshr_b32 s5, s5, 1
        s_lshl_b32 s5, s5, 9
        s_lshl_b32 s6, s4, 9
        s_cmp_eq_u32 s4, 0
        s_cselect_b32 s7, 1024, 8
        v_add_u32 v{vK10}, s6, v{vL16}
        v_lshl_add_u32 v{vK20}, v8, 4, s7
        v_add_u32 v{vGK1}, s5, v{vK10}
        v_add_u32 v{vGK2}, s5, v{vK20}
        s_mul_i32 s6, s{sHead}, 320
        s_mul_i32 s{sTA}, s{sT}, {TB}
        """)

    def out_addr(br):
        a(f"""
        s_lshl_b32 s5, s4, 2
        v_add_u32 v12, s5, v8
        v_subrev_u32 v13, 20, v12
        v_cmp_gt_u32 s[{sTmp}:{sTmp+1}], 20, v12
        v_cmp_gt_u32 s[{sTmp+2}:{sTmp+3}], 20, v8
        v_and_b32 v10, 3, v8
        v_cndmask_b32 v12, v13, v12, s[{sTmp}:{sTmp+1}]
        v_cndmask_b32 v12, v8, v12, s[{sTmp+2}:{sTmp+3}]
        v_bfe_u32 v11, v8, 2, 1
        v_lshl_or_b32 v10, v11, 3, v10
        v_bfe_u32 v11, v8, 3, 1
        v_lshl_or_b32 v10, v11, 2, v10
        v_lshrrev_b32 v11, 4, v8
        v_lshl_or_b32 v14, v11, 4, v10
        v_lshlrev_b32 v10, 4, v10
        v_mul_u32_u24 v11, 20480, v11
        s_mul_i32 s3, s{sHead}, 5
        s_add_u32 s3, s3, 1
        s_lshr_b32 s3, s3, 1
        s_lshl_b32 s3, s3, 8
        v_add3_u32 v10, v10, v11, s3
        v_lshl_add_u32 v{vO}, v9, 8, v10
        s_mul_i32 s5, s4, 760
        s_sub_u32 s5, 512, s5
        v_add_u32 v{vO2}, s5, v10
        s_add_u32 s{sO}, s{sTA}, {O_OFF + br * O_BR}
        v_lshlrev_b32 v13, 2, v14
        s_lshl_b32 s3, s{sT}, 7
        s_add_u32 s3, s3, {G_OFF}
        buffer_load_dword v{vGt}, v13, {sr(SWS,4)}, s3 offen
        """)

    head_addr()
    a(f"""
    s_add_u32 s5, s5, {4*SEGB}
    v_add_u32 v{vD}, s5, v{vL16}
    s_add_u32 s7, s6, {5*SEGB - 1024 - 512}
    v_cmp_le_u32 s[{sTmp}:{sTmp+1}], 53, v1
    v_mov_b32 v12, {10240-336}
    v_add_u32 v13, s7, v{vL16}
    v_cndmask_b32 v12, 0, v12, s[{sTmp}:{sTmp+1}]
    v_add_u32 v13, v13, v12
    v_cmp_le_u32 s[{sTmp}:{sTmp+1}], 32, v1
    v_add_u32 v11, 32, v1
    v_mul_u32_u24 v11, 49, v11
    v_cndmask_b32 v{vD+1}, v{vD}, v13, s[{sTmp}:{sTmp+1}]
    v_lshrrev_b32 v11, 10, v11
    v_mul_u32_u24 v11, {10240-336}, v11
    s_add_u32 s7, s6, {5*SEGB - 2048 + 512}
    v_add3_u32 v{vD2}, v11, v{vL16}, s7
    s_add_u32 s8, s{sTA}, {3*SEGB}
    s_waitcnt lgkmcnt(0)
    """)
    srd(a, SWS, 10, WS_BYTES)

    m1 = ((1 << 64) - 1) & ~(1 << 52)
    m2 = ((1 << 52) - 1) & ~(1 << 9) & ~(1 << 30) & ~(1 << 51)

    def dma_parts():
        return [[f"s_mov_b32 m0, s{sM0}",
                 f"s_add_u32 s{sM0}, s{sM0}, {K2_SLOT}",
                 f"buffer_load_dwordx4 v{vD}, {sr(SWS,4)}, s{sDma} offen lds"],
                [f"s_mov_b32 exec_hi, 0x{m1 >> 32:08x}",
                 f"buffer_load_dwordx4 v{vD+1}, {sr(SWS,4)}, s{sDma} offen offset:1024 lds",
                 "s_mov_b32 exec_hi, -1"],
                [f"s_mov_b32 exec_lo, 0x{m2 & 0xffffffff:08x}",
                 f"s_mov_b32 exec_hi, 0x{m2 >> 32:08x}",
                 f"buffer_load_dwordx4 v{vD2}, {sr(SWS,4)}, s{sDma} offen offset:2048 lds",
                 "s_mov_b64 exec, -1"],
                [f"s_add_u32 s{sDma}, s{sDma}, {8*TB}",
                 f"s_cmp_ge_u32 s{sDma}, {64*TB}",
                 f"s_cselect_b32 s{sDma}, 0x40000000, s{sDma}"],
                [f"s_cmp_ge_u32 s{sM0}, {K2_SLOT*K2_R}",
                 f"s_cselect_b32 s{sTmp}, {K2_SLOT*K2_R}, 0",
                 f"s_sub_u32 s{sM0}, s{sM0}, s{sTmp}"]]

    def dma_chunk():
        for p in dma_parts():
            for l in p:
                a(l)

    def dma_init():
        a(f"s_mul_i32 s{sDma}, s{sWave}, {TB}")
        a(f"s_mul_i32 s{sM0}, s{sWave}, {K2_TILE}")

    def zero_state():
        for r in range(16):
            a(f"v_mov_b32 v{O+r}, 0")
        for r in range(4):
            a(f"v_mov_b32 v{P+4+r}, 0")
            a(f"v_mov_b32 v{VF+4+r}, 0")
        a(f"""
        v_mov_b32 v{vV}, v{vLV}
        v_mov_b32 v{vK1}, v{vK10}
        v_mov_b32 v{vK2}, v{vK20}
        s_mov_b32 s{sSlot}, {K2_SLOT}
        s_mov_b32 s{sC}, 0
        """)

    dma_init()
    dma_chunk()
    a(f"buffer_load_dwordx4 {vr(Q1,4)}, v{vGK1}, {sr(SWS,4)}, s8 offen")
    a(f"buffer_load_dwordx2 {vr(Q2,2)}, v{vGK2}, {sr(SWS,4)}, s8 offen")
    a(f"""
    s_mov_b32 s{sRedo}, 0
    v_mov_b32 v{VF}, 0x3f803f80
    v_mov_b32 v{VF+1}, 0x3f803f80
    v_mov_b32 v{VF+2}, 0x3f803f80
    v_mov_b32 v{VF+3}, 0x3f803f80
    v_bfe_u32 v11, v1, 2, 2
    v_min_u32 v11, {K2_R-1}, v11
    v_mul_u32_u24 v11, {K2_SLOT}, v11
    v_and_b32 v12, 3, v1
    v_mul_u32_u24 v12, 336, v12
    s_mul_i32 s3, s{sWave}, {K2_TILE}
    v_add3_u32 v11, v11, v12, s3
    ds_write_b128 v11, {vr(VF,4)} offset:{1536+320}
    v_mov_b32 v11, {K2_FLAG}
    v_mov_b32 v12, 0
    ds_write_b32 v11, v12
    """)
    out_addr(1)
    a(f"""
    v_mul_u32_u24 v11, 336, v9
    v_lshl_add_u32 v11, v12, 4, v11
    v_add_u32 v{vLV}, 1536, v11
    """)
    dma_chunk()
    zero_state()
    a(f"""
    v_mov_b32 v{vCb}, {CNT_OFF}
    v_mov_b32 v{vOne}, 1
    v_mov_b32 v{AKP1}, -1
    v_mov_b32 v{AKP1+1}, -1
    v_mov_b32 v{AKP1+2}, -1
    v_mov_b32 v{AKP1+3}, -1
    s_lshl_b32 s{sProg}, s2, 7
    s_cmp_eq_u32 s{sWave}, 7
    s_cselect_b32 s{sProg}, s{sProg}, 0x40000000
    s_waitcnt vmcnt(3) lgkmcnt(0)
    """)
    stamp(a, 2)
    a("s_barrier")

    def maxtree(regs, dst):
        a(f"v_max3_f32 v{dst}, v{regs[0]}, v{regs[1]}, v{regs[2]}")
        i = 3
        while i + 1 < len(regs):
            a(f"v_max3_f32 v{dst}, v{dst}, v{regs[i]}, v{regs[i+1]}")
            i += 2
        if i < len(regs):
            a(f"v_max_f32 v{dst}, v{dst}, v{regs[i]}")
        a(f"v_mov_b32 v{dst+1}, v{dst}")
        a("s_nop 1")
        a(f"v_permlane32_swap_b32 v{dst}, v{dst+1}")
        a("s_nop 1")
        a(f"v_max_f32 v{dst}, v{dst}, v{dst+1}")

    def store_o(D):
        a(f"""
        v_mov_b32 v{vt}, v{O+8}
        v_mov_b32 v{vt+1}, v{O+8}
        s_nop 1
        v_permlane32_swap_b32 v{vt}, v{vt+1}
        s_nop 1
        v_rcp_f32 v{vt}, v{vt+1}
        s_nop 0
        v_mul_f32 v{vt}, v{vt}, v{vGt}
        """)
        for r in range(12):
            a(f"v_mul_f32 v{O+r}, v{O+r}, v{vt}")
        for i in range(6):
            a(f"v_cvt_pk_bf16_f32 v{D+i}, v{O+2*i}, v{O+2*i+1}")
        a(f"v_permlane32_swap_b32 v{D}, v{D+2}")
        a(f"v_permlane32_swap_b32 v{D+1}, v{D+3}")
        a("s_mov_b32 exec_hi, 0")
        a(f"buffer_store_dwordx2 {vr(D+4,2)}, v{vO2}, {sr(SWS,4)}, s{sO} offen sc1")
        a("s_mov_b32 exec_hi, -1")
        a(f"buffer_store_dwordx4 {vr(D,4)}, v{vO}, {sr(SWS,4)}, s{sO} offen sc1")

    def kreads(tile):
        o = tile * K2_TILE
        return [f"ds_read_b128 {vr(KF1,4)}, v{vK1} offset:{o}",
                f"ds_read_b64 {vr(KF2,2)}, v{vK2} offset:{o}"]

    def vread(tile, j):
        return f"ds_read_b128 {vr(VF+4*j,4)}, v{vV} offset:{tile * K2_TILE + 672*j}"

    def qk(sb, c, k1=KF1, k2=KF2):
        return [f"v_mfma_f32_32x32x16_bf16 {vr(sb,16)}, {vr(k1,4)}, {vr(Q1,4)}, {c}",
                f"v_mfma_f32_32x32x8_bf16 {vr(sb,16)}, {vr(k2,2)}, {vr(Q2,2)}, {vr(sb,16)}"]

    stamp(a, 3)
    for l in kreads(0):
        a(l)
    a(f"""
    s_mov_b32 exec_lo, 0
    v_mov_b32 v{Q2}, 0
    v_mov_b32 v{Q2+1}, 0
    s_mov_b32 exec_lo, -1
    v_sub_f32 v{vGt}, 1.0, v{vGt}
    s_waitcnt lgkmcnt(0)
    """)
    for l in qk(SB[0], "0"):
        a(l)
    a("s_nop 11")
    maxtree([SB[0] + r for r in range(16)], vt)
    for r in range(16):
        a(f"v_sub_f32 v{NEGM+r}, 0, v{vt}")
    a.label("K2_HAVE_M")
    a("s_waitcnt lgkmcnt(0)")
    a("s_nop 0")
    for l in qk(SB[0], vr(NEGM, 16)):
        a(l)
    for l in kreads(1):
        a(l)
    a(vread(0, 0))
    a("s_nop 9")
    stamp(a, 4)
    a.raw(".p2align 3")
    a.label("K2_LOOP")
    PR = os.environ.get('K2PRIO', '3..2.1.0')
    prio = {i: int(c) for i, c in enumerate(PR) if c != '.'}
    for i in range(8):
        cur, nxt = SB[i % 2], SB[1 - i % 2]
        e = [f"v_exp_f32 v{cur+r}, v{cur+r}" for r in range(16)]
        c = [f"v_cvt_pk_bf16_f32 v{P+j}, v{cur+2*j}, v{cur+2*j+1}" for j in range(8)]
        q = qk(nxt, vr(NEGM, 16))
        pv = [f"v_mfma_f32_32x32x16_bf16 {vr(O,16)}, {vr(VF+4*j,4)}, {vr(P+4*j,4)}, {vr(O,16)}" for j in range(2)]
        kr = kreads((i + 2) % 8)
        dp = [[]] * 5
        if i == 6:
            a("s_waitcnt vmcnt(0)")
            a("s_barrier")
            a(f"v_add_u32 v{vK1}, s{sSlot}, v{vK10}")
            a(f"v_add_u32 v{vK2}, s{sSlot}, v{vK20}")
            dp = dma_parts()
        if (i - 6) % 8 in prio:
            a(f"s_setprio {prio[(i - 6) % 8]}")
        if i == 1:
            a(f"""
            s_cmp_eq_u32 s{sC}, {os.environ.get('K2PC', '6')}
            s_cbranch_scc1 K2_SIG
            s_cmp_eq_u32 s{sC}, 0
            s_cbranch_scc0 K2_NOSIG
            s_cmp_lg_u32 s{sRedo}, 0
            s_cbranch_scc1 K2_NOSIG
            s_mov_b32 exec_hi, 0
            buffer_store_dwordx2 {vr(AKP1,2)}, v{vO2}, {sr(SWS,4)}, s{sO} offen sc1
            s_mov_b32 exec_hi, -1
            buffer_store_dwordx4 {vr(AKP1,4)}, v{vO}, {sr(SWS,4)}, s{sO} offen sc1
            """)
            a.label("K2_SIG")
            a(f"""
            s_mov_b64 exec, 1
            buffer_atomic_add v{vOne}, v{vCb}, {sr(SWS,4)}, s{sProg} offen sc1
            s_mov_b64 exec, -1
            """)
            a.label("K2_NOSIG")

        def em(L):
            for l in L:
                a(l)
        a(e[0]); a(e[1])
        a(pv[1])
        a(vread(i, 1))
        a(e[2]); em(dp[0]); a(e[3]); a(c[0]); a(e[4]); a(c[1])
        a("s_waitcnt lgkmcnt(1)")
        a(q[0])
        a(e[5]); em(dp[1]); a(e[6]); a(e[7]); a(c[2]); a(e[8]); a(c[3])
        a(q[1])
        em(kr)
        a(e[9]); em(dp[2]); a(e[10]); a(e[11]); a(c[4]); a(e[12]); a(c[5])
        if i == 7:
            a(f"v_add_u32 v{vV}, s{sSlot}, v{vLV}")
        a(pv[0])
        a(vread((i + 1) % 8, 0))
        a(e[13]); em(dp[3]); a(e[14]); em(dp[4]); a(e[15]); a(c[6])
        a("s_waitcnt lgkmcnt(3)")
        a(c[7])
        if i == 7:
            a(f"s_add_u32 s{sSlot}, s{sSlot}, {K2_SLOT}")
            a(f"s_cmp_ge_u32 s{sSlot}, {K2_SLOT*K2_R}")
            a(f"s_cselect_b32 s{sSlot}, 0, s{sSlot}")
    a(f"""
    s_add_u32 s{sC}, s{sC}, 1
    s_cmp_lt_u32 s{sC}, 8
    s_cbranch_scc1 K2_LOOP
    v_mfma_f32_32x32x16_bf16 {vr(O,16)}, {vr(VF+4,4)}, {vr(P+4,4)}, {vr(O,16)}
    v_lshlrev_b32 v{vt+5}, 10, v1
    s_lshl_b32 s7, s9, 4
    s_add_u32 s7, s7, {CNT_OFF + 4}
    s_cmp_eq_u32 s{sWave}, 7
    s_cselect_b32 s7, s7, 0x40000000
    s_mov_b32 exec_hi, 0
    buffer_atomic_add v{vOne}, v{vt+5}, {sr(SWS,4)}, s7 offen sc1
    s_mov_b32 exec_hi, -1
    v_mov_b32 v{vt+3}, {K2_FLAG}
    s_mov_b32 s3, {f32(2.0**100)}
    s_waitcnt lgkmcnt(0)
    s_nop 2
    """)
    stamp(a, 5)
    a(f"v_mov_b32 v{vt+2}, v{O+8}")
    a("s_mov_b32 exec_hi, 0")
    a(f"v_mul_f32 v{vt+2}, 0, v{O+8}")
    for r in range(9, 12):
        a(f"v_fma_f32 v{vt+2}, v{O+r}, 0, v{vt+2}")
    a("s_mov_b32 exec_hi, -1")
    for r in range(8):
        a(f"v_fma_f32 v{vt+2}, v{O+r}, 0, v{vt+2}")
    a(f"v_cmp_nlt_f32 s[{sTmp}:{sTmp+1}], v{vt+2}, s3")
    a(f"""
    s_nop 3
    s_cmp_lg_u32 s{sRedo}, 0
    s_cbranch_scc1 K2_GOOD
    s_cmp_eq_u64 s[{sTmp}:{sTmp+1}], 0
    s_cbranch_scc1 K2_GOOD
    ds_write_b32 v{vt+3}, v{vOne}
    s_branch K2_NOFLAG
    """)
    a.label("K2_GOOD")
    store_o(P)
    a.label("K2_NOFLAG")
    a(f"""
    s_waitcnt lgkmcnt(0)
    s_barrier
    ds_read_b32 v{vt+2}, v{vt+3}
    s_waitcnt lgkmcnt(0)
    v_readfirstlane_b32 s3, v{vt+2}
    s_nop 3
    s_cmp_gt_u32 s3, s{sRedo}
    s_cbranch_scc1 K2_FALLBACK
    """)
    a.label("K2_DONE")
    if STAMP: a("s_waitcnt vmcnt(0)")
    stamp(a, 6); stamp_rt(a, 7)
    stamp_flush(a, 1, SWS, sWave, 16, 8, shift=3)
    a.label("K2_END")
    a("s_endpgm")

    a.label("K2_FALLBACK")
    a(f"""
    s_mov_b32 s{sRedo}, 1
    s_mov_b32 s3, {4*SEGB}
    v_mov_b32 v{vt+2}, 0xff800000
    s_waitcnt vmcnt(0)
    """)
    dma_init()
    dma_chunk()
    dma_chunk()
    a.label("K2_MAXLOOP")
    a(f"""
    buffer_load_dwordx4 {vr(KF1,4)}, v{vGK1}, {sr(SWS,4)}, s3 offen
    buffer_load_dwordx2 {vr(KF2,2)}, v{vGK2}, {sr(SWS,4)}, s3 offen
    s_waitcnt vmcnt(0)
    """)
    for l in qk(SB[0], "0"):
        a(l)
    a("s_nop 15")
    for r in range(0, 16, 2):
        a(f"v_max3_f32 v{vt+2}, v{vt+2}, v{SB[0]+r}, v{SB[0]+r+1}")
    a(f"""
    s_add_u32 s3, s3, {TB}
    s_cmp_lt_u32 s3, {5*SEGB}
    s_cbranch_scc1 K2_MAXLOOP
    v_mov_b32 v{vt+3}, v{vt+2}
    s_nop 1
    v_permlane32_swap_b32 v{vt+2}, v{vt+3}
    s_nop 1
    v_max_f32 v{vt+2}, v{vt+2}, v{vt+3}
    """)
    for r in range(16):
        a(f"v_sub_f32 v{NEGM+r}, 0, v{vt+2}")
    zero_state()
    a("s_barrier")
    for l in kreads(0):
        a(l)
    a("s_branch K2_HAVE_M")

    a.label("K2_AROLE")
    sMb, sNb, sWb, sOb, sLq, sOut = 50, 51, 52, 53, 54, 55
    SOUT = 56
    a(f"""
    s_load_dwordx2 s[48:49], s[0:1], 56
    s_setprio {os.environ.get('K2APRIO', '1')}
    s_bfe_u32 s15, s2, {(5 << 16) | 3}
    s_lshl_b32 s{sMb}, s14, 2
    s_and_b32 s3, s15, 3
    s_add_u32 s{sMb}, s{sMb}, s3
    s_lshr_b32 s{sNb}, s15, 2
    s_lshl_b32 s{sHead}, s{sNb}, 2
    s_lshr_b32 s3, s{sWave}, 1
    s_add_u32 s{sHead}, s{sHead}, s3
    s_lshl_b32 s{sT}, s{sMb}, 1
    s_and_b32 s3, s{sWave}, 1
    s_add_u32 s{sT}, s{sT}, s3
    """)
    head_addr()
    sPrev, sTAp = 46, 24
    a(f"""
    s_and_b32 s3, s{sT}, 31
    s_cmp_lg_u32 s3, 0
    s_cselect_b32 s3, {TB}, 0
    s_cselect_b64 s[{sPrev}:{sPrev+1}], -1, 0
    s_sub_u32 s{sTAp}, s{sTA}, s3
    v_mov_b32 v10, {f32(-1e30)}
    """)
    AV = [VF, VF + 4, P]
    AC = SB
    for b in AV:
        for i in range(4):
            a(f"v_mov_b32 v{b+i}, 0x3f803f80")

    def lanemask(fn):
        m = 0
        for l in range(64):
            if fn(l):
                m |= 1 << l
        return m
    k = 0
    for r in range(16):
        m = lanemask(lambda l: 0 <= pi5(l % 32) - (16 * (r // 8) + 8 * (l // 32) + r % 8) <= 7)
        sp = sTmp + 2 + 2 * (k % 3); k += 1
        a(f"s_mov_b32 s{sp}, 0x{m & 0xffffffff:08x}")
        a(f"s_mov_b32 s{sp+1}, 0x{m >> 32:08x}")
        a(f"v_cndmask_b32 v{AC[0]+r}, v10, 0, s[{sp}:{sp+1}]")
    for r in range(8, 16):
        m = lanemask(lambda l: pi5(l % 32) + 32 - (16 * (r // 8) + 8 * (l // 32) + r % 8) <= 7)
        sp = sTmp + 2 + 2 * (k % 3); k += 1
        a(f"s_and_b32 s{sp}, s{sPrev}, 0x{m & 0xffffffff:08x}")
        a(f"s_and_b32 s{sp+1}, s{sPrev}, 0x{m >> 32:08x}")
        a(f"v_cndmask_b32 v{AC[1]+r}, v10, 0, s[{sp}:{sp+1}]")
    a("s_waitcnt lgkmcnt(0)")
    srd(a, SWS, 10, WS_BYTES)
    srd(a, SOUT, 48, 2621440)
    sLine = 60
    a(f"s_and_b32 s{sLine}, s2, 255")
    a(f"s_lshl_b32 s{sLine}, s{sLine}, 7")
    a(f"s_add_u32 s{sLine}, s{sLine}, {CNT_OFF}")

    def poll(lab, word, need, sleep, limit):
        a(f"""
        s_movk_i32 s9, {limit}
        v_mov_b32 v10, 0
        """)
        a.label(lab)
        a(f"""
        buffer_load_dword v11, v10, {sr(SWS,4)}, s{sLine} offen offset:{4*word} sc1
        s_waitcnt vmcnt(0)
        v_readfirstlane_b32 s3, v11
        s_sub_u32 s9, s9, 1
        s_nop 2
        s_cmp_ge_u32 s3, {need}
        s_cbranch_scc1 {lab}_OK
        s_sleep {sleep}
        s_cmp_lg_u32 s9, 0
        s_cbranch_scc1 {lab}
        """)
        a.label(lab + "_OK")

    a(f"s_cmp_eq_u32 s{sWave}, 0")
    a("s_cbranch_scc0 K2_SGO")
    poll("K2_SPOLL", 0, 1, 12, 64)
    a.label("K2_SGO")
    a("s_barrier")
    out_addr(0)
    a(f"""
    v_mul_u32_u24 v11, 10240, v9
    v_lshl_add_u32 v11, v12, 4, v11
    v_add_u32 v{vGV}, s6, v11
    s_add_u32 s3, s{sTA}, {SEGB}
    s_add_u32 s4, s{sTAp}, {SEGB}
    """)
    for (r1, r2, so) in ((Q1, Q2, sTA), (KF1, KF2, 3), (AKP1, AKP2, 4)):
        a(f"buffer_load_dwordx4 {vr(r1,4)}, v{vGK1}, {sr(SWS,4)}, s{so} offen")
        a(f"buffer_load_dwordx2 {vr(r2,2)}, v{vGK2}, {sr(SWS,4)}, s{so} offen")
    a(f"""
    s_add_u32 s3, s{sTA}, {2*SEGB}
    s_add_u32 s4, s3, 20480
    s_add_u32 s5, s{sTAp}, {2*SEGB+20480}
    s_mov_b32 exec_lo, 0x000fffff
    s_mov_b32 exec_hi, 0x000fffff
    buffer_load_dwordx4 {vr(AV[0],4)}, v{vGV}, {sr(SWS,4)}, s3 offen
    buffer_load_dwordx4 {vr(AV[1],4)}, v{vGV}, {sr(SWS,4)}, s4 offen
    buffer_load_dwordx4 {vr(AV[2],4)}, v{vGV}, {sr(SWS,4)}, s5 offen
    s_mov_b64 exec, -1
    s_waitcnt vmcnt(3)
    s_mov_b32 exec_lo, 0
    v_mov_b32 v{Q2}, 0
    v_mov_b32 v{Q2+1}, 0
    s_mov_b32 exec_lo, -1
    s_nop 1
    """)
    stamp(a, 2)
    for l in qk(AC[0], vr(AC[0], 16)) + qk(AC[1], vr(AC[1], 16), AKP1, AKP2):
        a(l)
    a("s_nop 11")
    aregs = [AC[0] + r for r in range(16)] + [AC[1] + r for r in range(8, 16)]
    maxtree(aregs, vt)
    for r in aregs:
        a(f"v_sub_f32 v{r}, v{r}, v{vt}")
    for r in aregs:
        a(f"v_exp_f32 v{r}, v{r}")
    a("s_waitcnt vmcnt(0)")
    AP = NEGM
    for i in range(12):
        a(f"v_cvt_pk_bf16_f32 v{AP+i}, v{aregs[2*i]}, v{aregs[2*i+1]}")
    a(f"""
    s_nop 1
    v_mfma_f32_32x32x16_bf16 {vr(O,16)}, {vr(AV[0],4)}, {vr(AP,4)}, 0
    v_mfma_f32_32x32x16_bf16 {vr(O,16)}, {vr(AV[1],4)}, {vr(AP+4,4)}, {vr(O,16)}
    v_mfma_f32_32x32x16_bf16 {vr(O,16)}, {vr(AV[2],4)}, {vr(AP+8,4)}, {vr(O,16)}
    s_nop 11
    """)
    store_o(AKP1)
    ACC, OF, WF = 16, 36, 76
    vLn, vW, vOut, vOut2, vCn = 2, 3, 4, 5, 6
    a(f"""
    v_mov_b32 v{vLn}, v{vL16}
    s_lshr_b32 s4, s{sWave}, 2
    s_mul_i32 s{sLq}, s4, 40960
    v_add_u32 v{vW}, s{sLq}, v{vL16}
    s_mul_i32 s5, s4, 10240
    s_mul_i32 s{sWb}, s{sNb}, {5*20480}
    s_add_u32 s{sWb}, s{sWb}, s5
    s_add_u32 s{sWb}, s{sWb}, {WOF_OFF}
    s_lshl_b32 s6, s{sMb}, 2
    s_and_b32 s3, s{sWave}, 3
    s_add_u32 s6, s6, s3
    s_mul_i32 s{sOb}, s6, 20480
    s_add_u32 s{sOb}, s{sOb}, s5
    s_add_u32 s{sOb}, s{sOb}, {O_OFF}
    s_mul_i32 s3, s3, 10240
    s_add_u32 s{sLq}, s{sLq}, s3
    v_and_b32 v9, 15, v1
    v_lshrrev_b32 v11, 4, v1
    v_mul_u32_u24 v12, 2560, v9
    v_and_b32 v13, 1, v11
    v_lshlrev_b32 v13, 5, v13
    v_lshrrev_b32 v14, 1, v11
    v_lshlrev_b32 v14, 4, v14
    v_add3_u32 v{vOut}, v12, v13, v14
    v_lshl_add_u32 v{vOut2}, v11, 3, v12
    s_and_b32 s7, s6, 63
    s_mul_i32 s7, s7, {16*2560}
    s_lshr_b32 s6, s6, 6
    s_mul_i32 s6, s6, 1280
    s_add_u32 s{sOut}, s6, s7
    s_mul_i32 s7, s{sNb}, 160
    s_add_u32 s{sOut}, s{sOut}, s7
    v_lshlrev_b32 v{vCn}, 12, v1
    v_mov_b32 v9, 1
    s_and_b32 s7, s2, 31
    s_lshl_b32 s7, s7, 7
    s_add_u32 s7, s7, {CNT_OFF + 8}
    s_waitcnt vmcnt(0)
    s_barrier
    s_cmp_eq_u32 s{sWave}, 0
    s_cbranch_scc0 K2_PNOSIG
    s_mov_b64 exec, 0xff
    buffer_atomic_add v9, v{vCn}, {sr(SWS,4)}, s7 offen sc1
    s_mov_b64 exec, -1
    """)
    a.label("K2_PNOSIG")
    stamp(a, 3)
    for i in range(20):
        a(f"v_mov_b32 v{ACC+i}, 0")
    a(f"s_mov_b32 s{sC}, 0")
    a.label("K2_PROUND")
    a(f"""
    s_and_b32 s3, s{sWave}, 3
    s_lshl_b32 s3, s3, 11
    s_add_u32 s4, s{sWb}, s3
    """)
    for nt in range(5):
        a(f"s_add_u32 m0, s{sLq}, {1024*nt}")
        a(f"s_add_u32 s4, s4, 20480" if nt else "s_nop 0")
        a(f"buffer_load_dwordx4 v{vLn}, {sr(SWS,4)}, s4 offen lds")
        a(f"s_add_u32 m0, s{sLq}, {1024*nt + 5120 - 1024}")
        a("s_nop 0")
        a(f"buffer_load_dwordx4 v{vLn}, {sr(SWS,4)}, s4 offen offset:1024 lds")
    a(f"s_add_u32 s4, s{sWb}, 8192")
    for nt in range(5):
        if nt:
            a("s_add_u32 s4, s4, 20480")
        a(f"buffer_load_dwordx4 {vr(WF+4*nt,4)}, v{vLn}, {sr(SWS,4)}, s4 offen")
        a(f"buffer_load_dwordx4 {vr(WF+20+4*nt,4)}, v{vLn}, {sr(SWS,4)}, s4 offen offset:1024")
    a(f"""
    s_cmp_eq_u32 s{sWave}, 0
    s_cbranch_scc0 K2_PGO
    s_cmp_lg_u32 s{sC}, 0
    s_cbranch_scc1 K2_PWB
    """)
    poll("K2_POLLA", 2, 8, 12, 8192)
    a("s_branch K2_PGO")
    a.label("K2_PWB")
    poll("K2_POLLE", 0, 2, int(os.environ.get('K2SLEEP2', '48')), 2048)
    poll("K2_POLLB", 1, 32, int(os.environ.get('K2SLEEP1', '4')), 16384)
    a.label("K2_PGO")
    a("s_waitcnt vmcnt(0)")
    a("s_barrier")
    if STAMP:
        a("s_memtime s[86:87]")
        a("s_waitcnt lgkmcnt(0)")
        a(f"s_cmp_eq_u32 s{sC}, 0")
        a("s_cselect_b32 s74, s86, s74")
        a("s_cselect_b32 s78, s78, s86")
    ROT = False

    def ksreg(i, dst, mul):
        if ROT:
            a(f"s_add_u32 s{dst}, s{sNb}, {i}")
            a(f"s_and_b32 s{dst}, s{dst}, 7")
            a(f"s_mul_i32 s{dst}, s{dst}, {mul}")
        else:
            a(f"s_mov_b32 s{dst}, {i * mul}")
    iss = [0, 1, 8, 9, 2, 3, 4, 5, 6, 7] if ROT else [8, 9, 0, 1, 2, 3, 4, 5, 6, 7]
    con = [8, 9, 0, 1, 2, 3, 4, 5, 6, 7]
    a(f"s_add_u32 s4, s{sOb}, 8192")
    for st in iss:
        if st < 8:
            ksreg(st, 3, 1024)
            a(f"s_add_u32 s3, s3, s{sOb}")
            a(f"buffer_load_dwordx4 {vr(OF+4*st,4)}, v{vLn}, {sr(SWS,4)}, s3 offen sc1")
        else:
            a(f"buffer_load_dwordx4 {vr(OF+4*st,4)}, v{vLn}, {sr(SWS,4)}, s4 offen offset:{(st-8)*1024} sc1")
    retry = []
    a("s_mov_b32 s9, 0x10000")
    for i, st in enumerate(con):
        n = 9 - max(iss.index(x) for x in con[:i + 1])
        a(f"s_waitcnt vmcnt({n})" + (f" lgkmcnt({5 if i < 9 else 0})" if i >= 2 else ""))
        a.label(f"K2_PCHK{i}")
        a(f"v_max3_u32 v8, v{OF+4*st}, v{OF+4*st+1}, v{OF+4*st+2}")
        a(f"v_max_u32 v8, v8, v{OF+4*st+3}")
        a("v_cmp_eq_u32 vcc, -1, v8")
        if i + 2 < 10:
            ksreg(con[i + 2], 3, 5120)
            a(f"v_add_u32 v7, s3, v{vW}")
        a(f"s_cbranch_vccnz K2_PRETRY{i}")
        a.label(f"K2_PCONT{i}")
        retry.append((i, st))
        for nt in range(5):
            d = vr(ACC + 4 * nt, 4)
            a(f"v_mfma_f32_16x16x32_bf16 {d}, {vr(WF + (i % 2) * 20 + 4 * nt, 4)}, {vr(OF+4*st,4)}, {d}")
        if i + 2 < 10:
            for nt in range(5):
                a(f"ds_read_b128 {vr(WF + (i % 2) * 20 + 4 * nt, 4)}, v7 offset:{1024*nt}")
    a(f"""
    s_barrier
    s_cmp_lg_u32 s{sC}, 0
    s_cbranch_scc1 K2_PFIN
    s_mov_b32 s{sC}, 1
    s_add_u32 s{sWb}, s{sWb}, {WOF_BR}
    s_add_u32 s{sOb}, s{sOb}, {O_BR}
    """)
    stamp(a, 5)
    a("s_branch K2_PROUND")
    a.label("K2_PFIN")
    stamp(a, 9)
    a(f"""
    s_and_b32 s3, s{sWave}, 3
    s_mul_i32 s3, s3, 5120
    v_add_u32 v{vW}, s3, v{vLn}
    s_cmp_lt_u32 s{sWave}, 4
    s_cbranch_scc1 K2_PSUM
    """)
    for nt in range(5):
        a(f"ds_write_b128 v{vW}, {vr(ACC+4*nt,4)} offset:{1024*nt}")
    a("s_waitcnt lgkmcnt(0)")
    a("s_barrier")
    a("s_branch K2_DONE")
    a.label("K2_PSUM")
    a("s_barrier")
    for nt in range(5):
        a(f"ds_read_b128 {vr(OF + 4*nt, 4)}, v{vW} offset:{1024*nt}")
    a("s_waitcnt lgkmcnt(0)")
    for i in range(20):
        a(f"v_add_f32 v{ACC+i}, v{ACC+i}, v{OF+i}")
    for pr in range(2):
        b0 = ACC + pr * 8
        b1 = b0 + 4
        a(f"v_cvt_pk_bf16_f32 v{b0}, v{b0}, v{b0+1}")
        a(f"v_cvt_pk_bf16_f32 v{b0+1}, v{b0+2}, v{b0+3}")
        a(f"v_cvt_pk_bf16_f32 v{b0+2}, v{b1}, v{b1+1}")
        a(f"v_cvt_pk_bf16_f32 v{b0+3}, v{b1+2}, v{b1+3}")
        a("s_nop 1")
        a(f"v_permlane16_swap_b32 v{b0}, v{b0+2}")
        a(f"v_permlane16_swap_b32 v{b0+1}, v{b0+3}")
        a("s_nop 0")
        a(f"buffer_store_dwordx4 {vr(b0,4)}, v{vOut}, {sr(SOUT,4)}, s{sOut} offen offset:{pr*64}")
    b0 = ACC + 16
    a(f"v_cvt_pk_bf16_f32 v{b0}, v{b0}, v{b0+1}")
    a(f"v_cvt_pk_bf16_f32 v{b0+1}, v{b0+2}, v{b0+3}")
    a(f"buffer_store_dwordx2 {vr(b0,2)}, v{vOut2}, {sr(SOUT,4)}, s{sOut} offen offset:128")
    a("s_branch K2_DONE")
    for i, st in retry:
        a.label(f"K2_PRETRY{i}")
        a(f"""
        s_sub_u32 s9, s9, 1
        s_cmp_eq_u32 s9, 0
        s_cbranch_scc1 K2_PGIVE{i}
        s_sleep 2
        s_add_u32 s5, s{sOb}, {1024*st}
        buffer_load_dwordx4 {vr(OF+4*st,4)}, v{vLn}, {sr(SWS,4)}, s5 offen sc1
        s_waitcnt vmcnt(0)
        s_branch K2_PCHK{i}
        """)
        a.label(f"K2_PGIVE{i}")
        a("s_mov_b32 s9, 1")
        a(f"s_branch K2_PCONT{i}")
    a.label("CODE_END")
    return kernel_desc(name, NV, NV, 64)


K3_DIST = int(os.environ.get('K3D', '2'))
K3_NS = K3_DIST + 2
K3_LDS = K3_NS * 20480


def gen_k3(a):
    name = "proj_kernel"
    kernel_head(a, name)
    SWS, SOUT = 20, 24
    sWave, sMb, sNb = 16, 17, 18
    sO, sW, sRot, sM0, sOc, sWc = 28, 29, 31, 32, 33, 34
    vL16, vWj, vG, vOut, vOut2 = 2, 3, 7, 8, 9
    ACC = [16, 36]
    OF = 56
    WF = 56 + 16 * (K3_DIST + 1)
    NV = WF + 40
    DIST = K3_DIST
    NO = DIST + 1
    a("s_cmp_ge_u32 s2, 256")
    a("s_cbranch_scc1 K3_END")
    stamp(a, 0); stamp_rt(a, 1)
    a("""
    s_load_dwordx2 s[4:5], s[0:1], 56
    s_load_dwordx2 s[6:7], s[0:1], 72
    v_lshrrev_b32 v9, 6, v0
    v_and_b32 v1, 63, v0
    s_and_b32 s14, s2, 7
    v_readfirstlane_b32 s16, v9
    s_lshr_b32 s15, s2, 3
    s_lshl_b32 s17, s14, 2
    s_and_b32 s3, s15, 3
    s_add_u32 s17, s17, s3
    s_lshr_b32 s18, s15, 2
    v_lshlrev_b32 v2, 4, v1
    """)
    a(f"""
    s_and_b32 s19, s{sNb}, 1
    s_lshr_b32 s{sRot}, s{sNb}, 1
    s_lshl_b32 s3, s{sMb}, 2
    s_add_u32 s3, s3, s{sWave}
    s_mul_i32 s{sO}, s3, 20480
    s_add_u32 s{sO}, s{sO}, {O_OFF}
    s_mul_i32 s{sW}, s{sNb}, {5*20480}
    s_lshl_b32 s14, s{sWave}, 10
    s_add_u32 s{sW}, s{sW}, s14
    s_add_u32 s{sW}, s{sW}, {WOF_OFF}
    s_mov_b32 s{sM0}, s14
    s_mul_i32 s14, s19, {O_BR}
    s_mul_i32 s15, s19, {WOF_BR}
    s_sub_u32 s36, {O_BR}, s14
    s_sub_u32 s37, {WOF_BR}, s15
    s_add_u32 s36, s36, s{sO}
    s_add_u32 s37, s37, s{sW}
    s_add_u32 s{sO}, s{sO}, s14
    s_add_u32 s{sW}, s{sW}, s15
    s_waitcnt lgkmcnt(0)
    """)
    srd(a, SWS, 6, WS_BYTES)
    srd(a, SOUT, 4, 2621440)

    def load_items(g):
        pre = []
        if g == 5:
            pre += [f"s_mov_b32 s{sO}, s36", f"s_mov_b32 s{sW}, s37"]
        pre += [f"s_lshl_b32 s14, s{sRot}, 12",
                f"s_add_u32 s{sOc}, s{sO}, s14",
                f"s_add_u32 s{sWc}, s{sW}, s14",
                f"s_add_u32 s{sRot}, s{sRot}, 1",
                f"s_cmp_ge_u32 s{sRot}, 5",
                f"s_cselect_b32 s{sRot}, 0, s{sRot}"]
        items = []
        for k in range(4):
            items.append([f"buffer_load_dwordx4 {vr(OF + (g % NO) * 16 + 4 * k, 4)}, v{vL16}, {sr(SWS,4)}, s{sOc} offen offset:{1024*k}"])
        for nt in range(5):
            items.append([f"s_add_u32 m0, s{sM0}, {(g % K3_NS) * 20480 + nt * 4096}",
                          f"s_add_u32 s{sWc}, s{sWc}, 20480" if nt else "s_nop 0",
                          f"buffer_load_dwordx4 v{vL16}, {sr(SWS,4)}, s{sWc} offen lds"])
        items[0] = pre + items[0]
        return items

    def loads(g):
        for it in load_items(g):
            for l in it:
                a(l)

    if 'k3_wfirst' in EXP and DIST == 2:
        i0 = load_items(0)
        pre0, o0first = i0[0][:-1], i0[0][-1]
        for l in pre0: a(l)
        a(f"s_mov_b32 s40, s{sOc}")
        for it in i0[4:]:
            for l in it: a(l)
        for l in [o0first] + [it[0] for it in i0[1:4]]:
            a(l)
        i1 = load_items(1)
        for it in i1:
            for l in it: a(l)
    else:
        for g in range(DIST):
            loads(g)
    a(f"""
    v_and_b32 v9, 15, v1
    v_lshlrev_b32 v10, 2, v9
    s_lshl_b32 s14, s3, 6
    s_add_u32 s35, s14, {G_OFF}
    v_lshrrev_b32 v11, 4, v1
    v_mul_u32_u24 v12, 2560, v9
    v_and_b32 v13, 1, v11
    v_lshlrev_b32 v13, 5, v13
    v_lshrrev_b32 v14, 1, v11
    v_lshlrev_b32 v14, 4, v14
    v_add3_u32 v{vOut}, v12, v13, v14
    v_lshl_add_u32 v{vOut2}, v11, 3, v12
    v_add_u32 v{vWj}, 40960, v{vL16}
    v_add_u32 v{vWj+1}, 81920, v{vL16}
    s_and_b32 s14, s3, 63
    s_mul_i32 s14, s14, {16*2560}
    s_lshr_b32 s15, s3, 6
    s_mul_i32 s15, s15, 1280
    s_add_u32 s30, s14, s15
    s_mul_i32 s15, s{sNb}, 160
    s_add_u32 s30, s30, s15
    """)

    def wread(g, k):
        slot = g % K3_NS
        base, off = ((vL16, vWj, vWj + 1)[slot // 2], (slot % 2) * 20480)
        return [f"ds_read_b128 {vr(WF + (k % 2) * 20 + 4 * nt, 4)}, v{base} offset:{off + nt*4096 + k*1024}" for nt in range(5)]

    for g in range(10):
        if g == 0: stamp(a, 2)
        n_after = 9 * (min(10, g + DIST) - 1 - g) + (1 if g == 9 else 0)
        a(f"s_waitcnt vmcnt({n_after})")
        a("s_barrier")
        if g == 0: stamp(a, 3)
        for l in wread(g, 0):
            a(l)
        items = load_items(g + DIST) if g + DIST < 10 else []
        if g == 8:
            items = [[f"buffer_load_dword v{vG}, v10, {sr(SWS,4)}, s35 offen"]]
        if items:
            for l in items.pop(0):
                a(l)
        acc = ACC[g // 5]
        for k in range(4):
            if k < 3:
                for l in wread(g, k + 1):
                    a(l)
                a("s_waitcnt lgkmcnt(5)")
            else:
                a("s_waitcnt lgkmcnt(0)")
            for nt in range(5):
                d = vr(acc + 4 * nt, 4)
                c = "0" if (g % 5 == 0 and k == 0) else d
                a(f"v_mfma_f32_16x16x32_bf16 {d}, {vr(WF + (k % 2) * 20 + 4 * nt, 4)}, {vr(OF + (g % NO) * 16 + 4 * k, 4)}, {c}")
                if nt in (1, 3) and items:
                    for l in items.pop(0):
                        a(l)
        assert not items
    stamp(a, 4)
    a(f"""
    s_waitcnt vmcnt(0)
    v_sub_f32 v10, 1.0, v{vG}
    s_cmp_eq_u32 s19, 0
    s_cselect_b64 s[38:39], -1, 0
    v_cndmask_b32 v11, v10, v{vG}, s[38:39]
    v_cndmask_b32 v10, v{vG}, v10, s[38:39]
    """)
    A0, A1 = ACC
    for i in range(20):
        a(f"v_mul_f32 v{A0+i}, v{A0+i}, v11")
    for i in range(20):
        a(f"v_fma_f32 v{A0+i}, v{A1+i}, v10, v{A0+i}")
    for pr in range(2):
        b0 = A0 + pr * 8
        b1 = b0 + 4
        a(f"v_cvt_pk_bf16_f32 v{b0}, v{b0}, v{b0+1}")
        a(f"v_cvt_pk_bf16_f32 v{b0+1}, v{b0+2}, v{b0+3}")
        a(f"v_cvt_pk_bf16_f32 v{b0+2}, v{b1}, v{b1+1}")
        a(f"v_cvt_pk_bf16_f32 v{b0+3}, v{b1+2}, v{b1+3}")
        a("s_nop 1")
        a(f"v_permlane16_swap_b32 v{b0}, v{b0+2}")
        a(f"v_permlane16_swap_b32 v{b0+1}, v{b0+3}")
        a("s_nop 0")
        a(f"buffer_store_dwordx4 {vr(b0,4)}, v{vOut}, {sr(SOUT,4)}, s30 offen offset:{pr*64}")
    b0 = A0 + 16
    a(f"v_cvt_pk_bf16_f32 v{b0}, v{b0}, v{b0+1}")
    a(f"v_cvt_pk_bf16_f32 v{b0+1}, v{b0+2}, v{b0+3}")
    a(f"buffer_store_dwordx2 {vr(b0,2)}, v{vOut2}, {sr(SOUT,4)}, s30 offen offset:128")
    stamp(a, 5)
    if STAMP: a("s_waitcnt vmcnt(0)")
    stamp(a, 6); stamp_rt(a, 7)
    stamp_flush(a, 2, SWS, sWave, 8, 10)
    a.label("K3_END")
    a("s_endpgm")
    a.label("CODE_END")
    return kernel_desc(name, NV, NV, 44)


def gen_diag(a):
    name = "diag_kernel"
    kernel_head(a, name)
    a("""
    s_cmp_ge_u32 s2, 1
    s_cbranch_scc1 KD_END
    s_load_dwordx4 s[4:7], s[0:1], 64
    s_waitcnt lgkmcnt(0)
    """)
    srd(a, 8, 6, WS_BYTES)
    srd(a, 12, 4, 256)
    a("v_lshlrev_b32 v1, 10, v0")
    a("v_mov_b32 v2, 0")
    for k, waves, idx in ((0, (0, 3), (3, 4)), (1, (0, 15), (3, 5)), (2, (0, 3), (3, 4))):
        for wi, w in enumerate(waves):
            a(f"s_mov_b32 s16, {DBG_OFF + k*(1<<18) + w*64}")
            a("buffer_load_dwordx4 v[4:7], v1, s[8:11], s16 offen")
            a("buffer_load_dwordx4 v[8:11], v1, s[8:11], s16 offen offset:16")
            a("s_waitcnt vmcnt(0)")
            a("v_not_b32 v12, v5")
            a(f"buffer_atomic_umax v12, v2, s[12:15], 0 offen offset:{k*20}")
            a(f"buffer_atomic_umax v11, v2, s[12:15], 0 offen offset:{k*20+4}")
            if wi == 0:
                a(f"v_sub_u32 v12, v{4+idx[0]}, v4")
                a(f"buffer_atomic_add v12, v2, s[12:15], 0 offen offset:{k*20+8}")
                a(f"v_sub_u32 v13, v{4+idx[1]}, v4")
                a(f"buffer_atomic_add v13, v2, s[12:15], 0 offen offset:{k*20+12}")
                a(f"v_sub_u32 v14, v10, v4")
                a(f"buffer_atomic_add v14, v2, s[12:15], 0 offen offset:{k*20+16}")
            a("s_waitcnt vmcnt(0)")
    a.label("KD_END")
    a("s_endpgm")
    return kernel_desc(name, 16, 16, 24)


def main():
    global STAMP
    if "--stamp" in sys.argv:
        STAMP = True
        sys.argv.remove("--stamp")
    ref = open(OUT + ".ref").read().split("\n")
    head = [l for l in ref if l.startswith(";") and "@launch" not in l]
    a = Asm()
    for l in head:
        a.raw(l)
    a.raw(f"; @launch kernel=qkv_kernel grid=(256,1,1) block=(512,1,1) lds={K1_LDS}")
    a.raw(f"; @launch kernel=attn_kernel grid=(512,1,1) block=(512,1,1) lds={K2_LDS}")
    if not FUSE:
        a.raw(f"; @launch kernel=proj_kernel grid=(256,1,1) block=(256,1,1) lds={K3_LDS}")
    if 'diag' in EXP:
        a.raw("; @launch kernel=diag_kernel grid=(1,1,1) block=(256,1,1) lds=0")
    a.raw('.amdgcn_target "amdgcn-amd-amdhsa--gfx950"')
    a.raw(".text")
    d = [gen_k1(a), gen_k2(a)] + ([] if FUSE else [gen_k3(a)]) + ([gen_diag(a)] if 'diag' in EXP else [])
    a.raw('.section .rodata,"a"')
    for x in d:
        a.raw(".p2align 6")
        a.raw(x.rstrip("\n"))
    out = sys.argv[1] if len(sys.argv) > 1 else OUT
    open(out, "w").write(a.text())
    print("wrote", out, len(a.L), "lines")


if __name__ == "__main__":
    main()
```

```python
import sys, math, struct, os
EXP = os.environ.get('EXP', '').split(',')

NAME = "gated_mix__sliding_local_dilated__mha_block__prompt"
OUT = f"cdna_kernels/{NAME}.s"

SEGB = 2621440
TB = 40960
O_OFF = 16 << 20
O_BR = 2621440
WOF_OFF = 24 << 20
WOF_BR = 819200
G_OFF = 28 << 20
CNT_OFF = G_OFF + 65536
WS_BYTES = 32 << 20
QSCALE = (20 ** -0.5) * math.log2(math.e)


def f32(x):
    return "0x%08x" % struct.unpack("<I", struct.pack("<f", x))[0]


def pi5(i):
    return (i & ~12) | ((i & 4) << 1) | ((i & 8) >> 1)


class Asm:
    def __init__(self):
        self.L = []

    def __call__(self, s):
        for l in s.strip("\n").split("\n"):
            self.L.append("    " + l.strip())

    def label(self, l):
        self.L.append(l + ":")

    def raw(self, s):
        self.L.append(s)

    def text(self):
        return "\n".join(self.L) + "\n"


def vr(b, n=1, p="v"):
    return f"{p}{b}" if n == 1 else f"{p}[{b}:{b+n-1}]"


def ar(b, n=1):
    return vr(b, n, "a")


def sr(b, n=1):
    return vr(b, n, "s")


STAMP = False
K2STF = ' sc1' if 'k2_sc1' in EXP else ''
DBG_OFF = 30 << 20


def stamp(a, idx, sbase=70):
    if not STAMP:
        return
    a(f"s_memtime s[{sbase+16}:{sbase+17}]")
    a("s_waitcnt lgkmcnt(0)")
    a(f"s_mov_b32 s{sbase+idx}, s{sbase+16}")


def stamp_rt(a, idx, sbase=70):
    if not STAMP:
        return
    a(f"s_memrealtime s[{sbase+16}:{sbase+17}]")
    a("s_waitcnt lgkmcnt(0)")
    a(f"s_mov_b32 s{sbase+idx}, s{sbase+16}")


def stamp_flush(a, kidx, srd_ws, swave, n, vtmp, sbase=70, shift=4):
    if not STAMP:
        return
    a("s_mov_b64 exec, -1")
    a(f"s_lshl_b32 s{sbase+16}, s2, {shift}")
    a(f"s_add_u32 s{sbase+16}, s{sbase+16}, s{swave}")
    a(f"s_lshl_b32 s{sbase+16}, s{sbase+16}, 6")
    a(f"s_add_u32 s{sbase+16}, s{sbase+16}, {DBG_OFF + kidx*(1<<18)}")
    a(f"v_mov_b32 v{vtmp+1}, 0")
    for i in range(n):
        a(f"v_mov_b32 v{vtmp}, s{sbase+i}")
        a(f"buffer_store_dword v{vtmp}, v{vtmp+1}, s[{srd_ws}:{srd_ws+3}], s{sbase+16} offen offset:{4*i}")


def kernel_head(a, name):
    a.raw(f".globl {name}")
    a.raw(".p2align 8")
    a.raw(f".type {name},@function")
    a.label(name)


def kernel_desc(name, vgpr_total, accum, sgpr):
    return f""".amdhsa_kernel {name}
  .amdhsa_next_free_vgpr {vgpr_total}
  .amdhsa_next_free_sgpr {96 if STAMP else sgpr}
  .amdhsa_accum_offset {accum}
  .amdhsa_group_segment_fixed_size 0
  .amdhsa_kernarg_size 80
  .amdhsa_user_sgpr_count 2
  .amdhsa_user_sgpr_kernarg_segment_ptr 1
  .amdhsa_system_sgpr_workgroup_id_x 1
.end_amdhsa_kernel
"""


WS_BASE = int(os.environ.get('WSBASE', '0')) << 20


def srd(a, d, base, nbytes):
    if nbytes == WS_BYTES and WS_BASE:
        a(f"s_add_u32 s{d}, s{base}, {WS_BASE}")
        a(f"s_addc_u32 s{d+1}, s{base+1}, 0")
    else:
        a(f"s_mov_b32 s{d}, s{base}")
        a(f"s_mov_b32 s{d+1}, s{base+1}")
    a(f"s_mov_b32 s{d+2}, {nbytes}")
    a(f"s_mov_b32 s{d+3}, 0x00020000")


G_WST = 8704
G_ST = G_WST + 8192


def gen_gemm(a, pfx, br, NS, sJ, done_label, stf, kidx, pairx=False):
    SX, SW, SR = 20, 24, 28
    sWave = 19
    a(f"""
    s_mul_i32 s12, s{sJ}, 1093
    s_lshr_b32 s12, s12, 16
    s_mul_i32 s13, s12, 60
    s_sub_u32 s13, s{sJ}, s13
    s_lshr_b32 s17, s13, 2
    s_and_b32 s13, s13, 3
    s_lshl_b32 s12, s12, 2
    s_add_u32 s16, s12, s13
    s_lshr_b32 s14, s16, 3
    s_and_b32 s15, s16, 7
    s_cmp_ge_u32 s{sWave}, 4
    s_cbranch_scc0 {pfx}_COMPUTE
    """)
    vW, vXg = 8, 10
    sWo, sXo, sWl, sXl, sWc, sXc, sOrd = 32, 33, 34, 35, 36, 37, 38
    K1_D = int(os.environ.get('K1D', '2'))
    ORD = []
    for g in range(4):
        o = list(range(10))
        for b in range(10):
            if b % 4 == g and K1_D:
                p = o.index(b)
                o.pop(p)
                o.insert(max(0, p - K1_D), b)
        ORD.append(sum(b << (4 * i) for i, b in enumerate(o)))
    a(f"""
    v_lshrrev_b32 v4, 4, v1
    v_and_b32 v3, 15, v1
    v_mul_u32_u24 v5, {4*3840}, v4
    v_lshl_add_u32 v{vW}, v3, 4, v5
    v_add_u32 v{vW+1}, {3840-1088}, v{vW}
    v_lshrrev_b32 v5, 2, v1
    v_and_b32 v6, 3, v1
    v_xor_b32 v6, v6, v4
    v_mul_u32_u24 v5, 2560, v5
    v_lshl_add_u32 v{vXg}, v6, 4, v5
    v_add_u32 v{vXg+1}, {16*2560-1024}, v{vXg}
    s_and_b32 s3, s{sWave}, 3
    s_lshr_b32 s12, s3, 1
    s_lshl_b32 s12, s12, 4
    s_and_b32 s18, s3, 1
    s_lshl_b32 s18, s18, 1
    s_add_u32 s12, s12, s18
    s_mul_i32 s{sWo}, s12, 3840
    s_lshl_b32 s12, s17, 8
    s_add_u32 s{sWo}, s{sWo}, s12
    s_mul_i32 s{sWl}, s3, {2*1088}
    s_lshl_b32 s{sXl}, s3, 11
    s_add_u32 s{sXl}, s{sXl}, {G_WST}
    s_lshl_b32 s12, s15, 2
    s_add_u32 s12, s12, s3
    s_mul_i32 s{sXo}, s12, {32*2560}
    s_mul_i32 s12, s14, 1280
    s_add_u32 s{sXo}, s{sXo}, s12
    s_add_u32 s3, s13, s17
    s_and_b32 s3, s3, 3
    s_mov_b32 s{sOrd}, {ORD[0] & 0xffffffff}
    s_mov_b32 s{sOrd+1}, {ORD[0] >> 32}
    s_cmp_eq_u32 s3, 1
    s_cselect_b32 s{sOrd}, {ORD[1] & 0xffffffff}, s{sOrd}
    s_cselect_b32 s{sOrd+1}, {ORD[1] >> 32}, s{sOrd+1}
    s_cmp_eq_u32 s3, 2
    s_cselect_b32 s{sOrd}, {ORD[2] & 0xffffffff}, s{sOrd}
    s_cselect_b32 s{sOrd+1}, {ORD[2] >> 32}, s{sOrd+1}
    s_cmp_eq_u32 s3, 3
    s_cselect_b32 s{sOrd}, {ORD[3] & 0xffffffff}, s{sOrd}
    s_cselect_b32 s{sOrd+1}, {ORD[3] >> 32}, s{sOrd+1}
    s_waitcnt lgkmcnt(0)
    """)
    srd(a, SX, 4, 2621440)
    srd(a, SW, 6, 2457600)
    srd(a, SR, 10, WS_BYTES)

    hist = []

    def xload(k):
        a(f"s_add_u32 m0, s{sXl}, {(k % NS) * G_ST}")
        a(f"s_add_u32 s{sXc}, s{sXc}, s{sXo}" if k % 2 == 0 else f"s_add_u32 s{sXc}, s{sXc}, 64")
        for q in range(2):
            a(f"buffer_load_dwordx4 v{vXg+q}, {sr(SX,4)}, s{sXc} offen offset:{1024*q} lds")
        hist.append(("X", k))

    def stage_loads(k):
        if k % 2 == 0:
            j = k // 2
            a(f"s_bfe_u32 s3, s{sOrd + j // 8}, {(4 << 16) | (4 * (j % 8))}")
            a(f"s_mul_i32 s{sWc}, s3, {2*122880}")
            a(f"s_lshl_b32 s{sXc}, s3, 7")
            xload(k)
            if pairx:
                xload(k + 1)
        elif not pairx:
            xload(k)
        a(f"s_add_u32 m0, s{sWl}, {(k % NS) * G_ST}")
        a(f"s_add_u32 s{sWc}, s{sWc}, s{sWo}" if k % 2 == 0 else f"s_add_u32 s{sWc}, s{sWc}, 122880")
        for i in range(2):
            a(f"buffer_load_dwordx4 v{vW+i}, {sr(SW,4)}, s{sWc} offen offset:{1088*i} lds")
        hist.append(("W", k))

    issued = [0]

    def issue(step, nmax):
        n = 0
        while issued[0] < 20 and n < nmax and (issued[0] + (1 if pairx and issued[0] % 2 == 0 else 0)) - NS <= step - 1:
            stage_loads(issued[0])
            issued[0] += 1
            n += 1

    def need(ks):
        a(f"s_waitcnt vmcnt({2 * (len(hist) - 1 - hist.index(('W', ks)))})")
        a("s_barrier")

    RAMP = [int(c) for c in os.environ.get('GRAMP', '3122')]
    issue(-2, RAMP[0])
    stamp(a, 2)
    need(0)
    stamp(a, 3)
    issue(-1, RAMP[1])
    for ks in range(19):
        need(ks + 1)
        if ks % 2 == 1 and ks <= 15: stamp(a, 8 + ks // 2)
        issue(ks, RAMP[ks + 2] if ks + 2 < len(RAMP) else RAMP[-1])
    assert issued[0] == 20
    a("s_barrier")
    stamp(a, 4); stamp(a, 5)
    a(f"s_branch {done_label}")

    a.label(f"{pfx}_COMPUTE")
    ACC = 16
    WFR = 80
    XFR = [96, 112]
    vTr0, vTr, vXr0, vXr, vSt = 8, 9, 10, 12, 14
    sRd, sIt, sSt, sSeg = 32, 34, 36, 35
    a(f"""
    v_bfe_u32 v3, v1, 2, 2
    v_mul_u32_u24 v3, 1088, v3
    v_lshrrev_b32 v4, 5, v1
    v_lshl_add_u32 v3, v4, 9, v3
    v_bfe_u32 v5, v1, 4, 1
    v_lshl_add_u32 v3, v5, 5, v3
    v_and_b32 v5, 3, v1
    v_lshl_add_u32 v3, v5, 3, v3
    s_and_b32 s12, s{sWave}, 1
    s_lshl_b32 s3, s12, 7
    v_add_u32 v{vTr0}, s3, v3
    v_and_b32 v5, 19, v1
    v_bfe_u32 v6, v1, 2, 1
    v_lshl_or_b32 v5, v6, 3, v5
    v_bfe_u32 v6, v1, 3, 1
    v_lshl_or_b32 v5, v6, 2, v5
    v_bfe_u32 v6, v5, 2, 2
    v_xor_b32 v6, v6, v4
    v_lshlrev_b32 v6, 4, v6
    v_lshl_add_u32 v5, v5, 6, v6
    s_lshr_b32 s13, s{sWave}, 1
    s_lshl_b32 s3, s13, 12
    s_add_u32 s3, s3, {G_WST}
    v_add_u32 v{vXr0}, s3, v5
    v_xor_b32 v{vXr0+1}, 32, v{vXr0}
    v_mov_b32 v{vXr}, v{vXr0}
    v_mov_b32 v{vXr+1}, v{vXr0+1}
    v_mov_b32 v{vTr}, v{vTr0}
    s_mov_b32 s{sRd}, {G_ST}
    s_mov_b32 s{sIt}, 0
    s_mul_i32 s{sSeg}, s17, 52
    s_lshr_b32 s{sSeg}, s{sSeg}, 8
    s_mul_i32 s3, s{sSeg}, 5
    s_sub_u32 s17, s17, s3
    s_lshl_b32 s17, s17, 1
    s_add_u32 s17, s17, s12
    s_add_u32 s3, s{sSeg}, {br if isinstance(br, str) else 3*br}
    s_mul_i32 s{sSt}, s3, {SEGB}
    s_lshl_b32 s3, s16, 1
    s_add_u32 s3, s3, s13
    s_mul_i32 s3, s3, {2*TB}
    s_add_u32 s{sSt}, s{sSt}, s3
    s_waitcnt lgkmcnt(0)
    """)
    srd(a, SR, 10, WS_BYTES)
    for i in range(64):
        a(f"v_mov_b32 v{ACC+i}, 0")

    def xreads(fset):
        return [f"ds_read_b128 {vr(XFR[fset] + (mt*2+kk)*4, 4)}, v{vXr+kk} offset:{2048*mt}" for kk in range(2) for mt in range(2)]

    def wreads(nt, kk):
        b = WFR + (nt * 2 + kk) * 4
        return [f"ds_read_b64_tr_b16 {vr(b + 2*s, 2)}, v{vTr} offset:{kk*4352 + s*256 + nt*64}" for s in range(2)]

    stamp(a, 2)
    a("s_barrier")
    stamp(a, 3)
    x0 = xreads(0)
    for l in x0[:2] + wreads(0, 0) + x0[2:] + wreads(1, 0) + wreads(0, 1) + wreads(1, 1):
        a(l)
    a(f"s_cmp_eq_u32 s{sSeg}, 2")
    a(f"s_cbranch_scc1 {pfx}_LOOP_N")
    for ori in ("T", "N"):
        a.raw(".p2align 3")
        a.label(f"{pfx}_LOOP_{ori}")
        for s in range(2):
            a(f"v_add_u32 v{vTr}, s{sRd}, v{vTr0}")
            a(f"v_add_u32 v{vXr}, s{sRd}, v{vXr0}")
            a(f"v_add_u32 v{vXr+1}, s{sRd}, v{vXr0+1}")
            a("s_barrier")
            xr = xreads(1 - s)
            rest = [f"s_add_u32 s{sRd}, s{sRd}, {G_ST}",
                    f"s_cmp_ge_u32 s{sRd}, {NS*G_ST}",
                    f"s_cselect_b32 s{sRd}, 0, s{sRd}"]
            if s == 1:
                rest += [f"s_add_u32 s{sIt}, s{sIt}, 1", f"s_cmp_lt_u32 s{sIt}, 10"]
            idx = 0
            for kk in range(2):
                for nt in range(2):
                    for mt in range(2):
                        acc = vr(ACC + (nt * 2 + mt) * 16, 16)
                        w = vr(WFR + (nt * 2 + kk) * 4, 4)
                        x = vr(XFR[s] + (mt * 2 + kk) * 4, 4)
                        if mt == 0:
                            a(f"s_waitcnt lgkmcnt({8 if kk == 0 else 10})")
                        if ori == "T":
                            a(f"v_mfma_f32_32x32x16_bf16 {acc}, {w}, {x}, {acc}")
                        else:
                            a(f"v_mfma_f32_32x32x16_bf16 {acc}, {x}, {w}, {acc}")
                        if mt == 0:
                            if idx < 2:
                                a(xr[2 * idx]); a(xr[2 * idx + 1])
                            else:
                                for l in (rest[:3] if idx == 2 else rest[3:]):
                                    a(l)
                            idx += 1
                        else:
                            for l in wreads(nt, kk):
                                a(l)
        a(f"s_cbranch_scc1 {pfx}_LOOP_{ori}")
        stamp(a, 4)
        if ori == "T":
            a(f"""
            s_lshl_b32 s3, s17, 12
            s_add_u32 s{sSt}, s{sSt}, s3
            s_add_u32 s{sSt+1}, s{sSt}, {TB}
            s_cmp_eq_u32 s{sSeg}, 0
            s_cselect_b32 s40, {f32(QSCALE)}, 1.0
            s_mov_b32 s41, s40
            v_lshlrev_b32 v{vSt}, 4, v1
            s_nop 7
            """)
        else:
            a(f"""
            s_lshl_b32 s3, s17, 10
            s_add_u32 s{sSt}, s{sSt}, s3
            s_add_u32 s{sSt+1}, s{sSt}, {TB}
            s_add_u32 s{sSt+2}, s{sSt}, 20480
            s_add_u32 s{sSt+3}, s{sSt+1}, 20480
            v_mul_u32_u24 v5, 10240, v4
            v_and_b32 v6, 31, v1
            v_lshl_add_u32 v{vSt}, v6, 4, v5
            s_nop 7
            """)
        for nt in range(2):
            for mt in range(2):
                for jp in range(2):
                    b0 = ACC + (nt * 2 + mt) * 16 + 8 * jp
                    if ori == "T":
                        for i in range(4):
                            a(f"v_pk_mul_f32 {vr(b0+2*i,2)}, {vr(b0+2*i,2)}, s[40:41]")
                    for i in range(4):
                        a(f"v_cvt_pk_bf16_f32 v{b0+i}, v{b0+2*i}, v{b0+2*i+1}")
                    if ori == "T":
                        a("s_nop 1")
                        a(f"v_permlane32_swap_b32 v{b0}, v{b0+2}")
                        a(f"v_permlane32_swap_b32 v{b0+1}, v{b0+3}")
                        a("s_nop 0")
                        a(f"buffer_store_dwordx4 {vr(b0,4)}, v{vSt}, {sr(SR,4)}, s{sSt + mt} offen offset:{nt*2048 + jp*1024}{stf}")
                    else:
                        a(f"buffer_store_dwordx4 {vr(b0,4)}, v{vSt}, {sr(SR,4)}, s{sSt + mt + 2*jp} offen offset:{nt*512}{stf}")
        stamp(a, 5)
        a(f"s_branch {done_label}")


K1_WST = 16896
K1_NSW = 6 if 'k1_nsw6' in EXP else 5
K1_NSX = 3
K1_XB = K1_WST * K1_NSW
K1_LDS = K1_XB + K1_NSX * 16384


STF = '' if 'k1_plain' in EXP else (' nt' if 'k1_nt' in EXP else (' sc1 nt' if 'k1_sc1nt' in EXP else (' sc0 sc1 nt' if 'k1_all' in EXP else ' sc1')))


def gate_rows(a, n, SX, SGW, SR, sRow, sDst, GW, GX, GA, vL4, vZ):
    for i in range(5):
        a(f"buffer_load_dword v{GW+i}, v{vL4}, {sr(SGW,4)}, 0 offen offset:{256*i}")
    for r in range(n):
        for i in range(5):
            a(f"buffer_load_dword v{GX+5*r+i}, v{vL4}, {sr(SX,4)}, s{sRow} offen offset:{2560*r + 256*i}")
    a("s_waitcnt vmcnt(0)")
    for i in range(5):
        for r in range(n):
            a(f"v_dot2_f32_bf16 v{GA+r}, v{GX+5*r+i}, v{GW+i}, {'0' if i == 0 else 'v%d' % (GA+r)}")
    a("s_nop 3")
    for sh in ("row_shr:1 row_mask:0xf bank_mask:0xf bound_ctrl:0", "row_shr:2 row_mask:0xf bank_mask:0xf bound_ctrl:0",
               "row_shr:4 row_mask:0xf bank_mask:0xf bound_ctrl:0", "row_shr:8 row_mask:0xf bank_mask:0xf bound_ctrl:0",
               "row_bcast:15 row_mask:0xa bank_mask:0xf", "row_bcast:31 row_mask:0xc bank_mask:0xf"):
        for r in range(n):
            a(f"v_add_f32_dpp v{GA+r}, v{GA+r}, v{GA+r} {sh}")
        a("s_nop 1")
    for op in (f"v_mul_f32 vR, {f32(-math.log2(math.e))}, vR", "v_exp_f32 vR, vR", "s_nop 0", "v_add_f32 vR, 1.0, vR", "v_rcp_f32 vR, vR"):
        for r in range(n if "vR" in op else 1):
            a(op.replace("vR", f"v{GA+r}"))
    a("s_mov_b32 exec_lo, 0")
    a("s_mov_b32 exec_hi, 0x80000000")
    for r in range(n):
        a(f"buffer_store_dword v{GA+r}, v{vZ}, {sr(SR,4)}, s{sDst} offen offset:{4*r}")
    a("s_mov_b64 exec, -1")


def gen_k1(a):
    name = "qkv_kernel"
    kernel_head(a, name)
    SX, SW, SR = 20, 24, 28
    sWave = 19
    a("s_cmp_ge_u32 s2, 256")
    a("s_cbranch_scc1 K1_END")
    stamp(a, 0); stamp_rt(a, 1)
    a("""
    s_load_dwordx4 s[4:7], s[0:1], 0
    s_load_dwordx2 s[8:9], s[0:1], 32
    s_load_dwordx2 s[10:11], s[0:1], 72
    s_load_dwordx2 s[54:55], s[0:1], 48
    """)
    if 'noct' not in EXP:
        code_touch(a, 31, 30, 52, "K1_CT0", "attn_kernel", lane="v0")
        a.label("K1_CT0")
    a("""
    v_lshrrev_b32 v2, 6, v0
    v_and_b32 v1, 63, v0
    s_and_b32 s12, s2, 7
    v_readfirstlane_b32 s19, v2
    s_cmp_ge_u32 s2, 240
    s_cbranch_scc1 K1_SIDE
    s_lshr_b32 s13, s2, 3
    s_mul_i32 s12, s12, 30
    s_add_u32 s12, s12, s13
    s_cmp_ge_u32 s12, 120
    s_cselect_b32 s14, 1, 0
    s_cselect_b32 s13, 120, 0
    s_sub_u32 s12, s12, s13
    s_and_b32 s15, s12, 7
    s_lshr_b32 s16, s12, 3
    v_and_b32 v3, 15, v1
    v_lshrrev_b32 v4, 4, v1
    """)
    a(f"""
    s_cmp_ge_u32 s{sWave}, 4
    s_cselect_b32 s12, 1, 0
    s_lshr_b32 s12, s{sWave}, s12
    s_and_b32 s12, s12, 1
    s_lshl_b32 s17, s16, 1
    s_add_u32 s17, s17, s12
    s_cmp_ge_u32 s17, 15
    s_cselect_b32 s18, 1, 0
    s_cselect_b32 s13, 15, 0
    s_sub_u32 s17, s17, s13
    s_movk_i32 s60, 3840
    s_mov_b32 s62, 2621440
    s_movk_i32 s63, 128
    s_cmp_ge_u32 s{sWave}, 4
    s_cbranch_scc0 K1_COMPUTE
    """)
    vW, vXg = 8, 12
    sWo, sXo, sWl, sXl, sWc, sXc, sOrd = 32, 33, 34, 35, 36, 37, 38
    K1_D = int(os.environ.get('K1D', '2'))
    ORD = []
    for g in range(4):
        o = list(range(10))
        for b in range(10):
            if b % 4 == g and K1_D:
                p = o.index(b)
                o.pop(p)
                o.insert(max(0, p - K1_D), b)
        ORD.append(sum(b << (4 * i) for i, b in enumerate(o)))
    a(f"""
    v_lshrrev_b32 v5, 1, v4
    v_and_b32 v6, 1, v4
    v_lshlrev_b32 v5, 4, v5
    v_lshl_add_u32 v5, v6, 2, v5
    v_mul_u32_u24 v5, 3840, v5
    v_lshl_add_u32 v{vW}, v3, 4, v5
    v_add_u32 v{vW+1}, 2784, v{vW}
    v_add_u32 v{vW+2}, {2*2784}, v{vW}
    v_add_u32 v{vW+3}, {3*2784}, v{vW}
    v_lshrrev_b32 v5, 3, v1
    v_and_b32 v6, 7, v1
    v_xor_b32 v6, v6, v5
    v_mul_u32_u24 v5, 2560, v5
    v_lshl_add_u32 v{vXg}, v6, 4, v5
    v_add_u32 v{vXg+1}, 19456, v{vXg}
    v_add_u32 v{vXg+2}, {2*19456}, v{vXg}
    v_add_u32 v{vXg+3}, {3*19456}, v{vXg}
    s_and_b32 s13, s{sWave}, 1
    s_mul_i32 s{sWo}, s13, {8*3840}
    s_lshl_b32 s3, s17, 8
    s_add_u32 s{sWo}, s{sWo}, s3
    s_and_b32 s3, s{sWave}, 3
    s_mul_i32 s{sWl}, s3, {4*1056}
    s_lshl_b32 s{sXl}, s3, 12
    s_add_u32 s{sXl}, s{sXl}, {K1_XB}
    s_lshl_b32 s13, s15, 2
    s_add_u32 s13, s13, s3
    s_mul_i32 s{sXo}, s13, {32*2560}
    s_mul_i32 s13, s14, 1280
    s_add_u32 s{sXo}, s{sXo}, s13
    s_add_u32 s3, s15, s16
    s_and_b32 s3, s3, 3
    s_mov_b32 s{sOrd}, {ORD[0] & 0xffffffff}
    s_mov_b32 s{sOrd+1}, {ORD[0] >> 32}
    s_cmp_eq_u32 s3, 1
    s_cselect_b32 s{sOrd}, {ORD[1] & 0xffffffff}, s{sOrd}
    s_cselect_b32 s{sOrd+1}, {ORD[1] >> 32}, s{sOrd+1}
    s_cmp_eq_u32 s3, 2
    s_cselect_b32 s{sOrd}, {ORD[2] & 0xffffffff}, s{sOrd}
    s_cselect_b32 s{sOrd+1}, {ORD[2] >> 32}, s{sOrd+1}
    s_cmp_eq_u32 s3, 3
    s_cselect_b32 s{sOrd}, {ORD[3] & 0xffffffff}, s{sOrd}
    s_cselect_b32 s{sOrd+1}, {ORD[3] >> 32}, s{sOrd+1}
    s_cmp_eq_u32 s18, 0
    s_waitcnt lgkmcnt(0)
    s_cselect_b64 s[6:7], s[6:7], s[8:9]
    """)
    srd(a, SX, 4, 2621440)
    srd(a, SW, 6, 2457600)
    if STAMP:
        srd(a, SR, 10, WS_BYTES)
    hist = []

    def blk(j, dst):
        r = sOrd + (j // 8)
        a(f"s_bfe_u32 s{dst}, s{r}, {(4 << 16) | (4 * (j % 8))}")

    def wl(k):
        a(f"s_add_u32 m0, s{sWl}, {(k % K1_NSW) * K1_WST}")
        if k % 2 == 0:
            blk(k // 2, sWc)
            a(f"s_mul_i32 s{sWc}, s{sWc}, {2*122880}")
            a(f"s_add_u32 s{sWc}, s{sWc}, s{sWo}")
        else:
            a(f"s_add_u32 s{sWc}, s{sWc}, 122880")
        for i in range(4):
            a(f"buffer_load_dwordx4 v{vW+i}, {sr(SW,4)}, s{sWc} offen offset:{1056*i} lds")
        hist.append(("W", k))

    def xl(j):
        a(f"s_add_u32 m0, s{sXl}, {(j % K1_NSX) * 16384}")
        blk(j, sXc)
        a(f"s_lshl_b32 s{sXc}, s{sXc}, 7")
        a(f"s_add_u32 s{sXc}, s{sXc}, s{sXo}")
        for q in range(4):
            a(f"buffer_load_dwordx4 v{vXg+q}, {sr(SX,4)}, s{sXc} offen offset:{1024*q} lds")
        hist.append(("X", j))

    def need(ks):
        req = [("W", ks), ("X", ks // 2)]
        last = max(hist.index(r) for r in req)
        a(f"s_waitcnt vmcnt({4 * (len(hist) - 1 - last)})")
        a("s_barrier")

    seq = []
    for j in range(10):
        seq += [("X", j), ("W", 2 * j), ("W", 2 * j + 1)]
    pos = [0]

    def free_at(it):
        t, i = it
        if t == "W":
            return i - K1_NSW
        return 2 * (i - K1_NSX) + 1

    def issue(step, nmax):
        n = 0
        while pos[0] < len(seq) and n < nmax and free_at(seq[pos[0]]) <= step:
            t, i = seq[pos[0]]
            (wl if t == "W" else xl)(i)
            pos[0] += 1
            n += 1
    RAMP = [int(c) for c in os.environ.get('K1RAMP', '32222')]
    issue(-2, RAMP[0])
    stamp(a, 2)
    need(0)
    stamp(a, 3)
    issue(-1, RAMP[1])
    for ks in range(19):
        need(ks + 1)
        if ks % 2 == 1 and ks <= 15: stamp(a, 8 + ks // 2)
        issue(ks, RAMP[ks + 2] if ks + 2 < len(RAMP) else RAMP[-1])
    assert pos[0] == len(seq)
    a("s_barrier")
    stamp(a, 4)
    srd(a, SR, 10, WS_BYTES)
    srd(a, 56, 54, 1280)
    a(f"""
    s_lshl_b32 s3, s15, 7
    s_lshl_b32 s12, s16, 3
    s_add_u32 s3, s3, s12
    s_and_b32 s12, s{sWave}, 3
    s_lshl_b32 s12, s12, 1
    s_add_u32 s3, s3, s12
    s_mul_i32 s40, s3, 2560
    s_mul_i32 s12, s14, 1280
    s_add_u32 s40, s40, s12
    s_lshl_b32 s12, s14, 10
    s_add_u32 s3, s3, s12
    s_lshl_b32 s41, s3, 2
    s_add_u32 s41, s41, {G_OFF}
    v_lshlrev_b32 v2, 2, v1
    v_mov_b32 v3, 0
    """)
    gate_rows(a, 2, SX, 56, SR, 40, 41, 32, 40, 52, 2, 3)
    stamp(a, 5); stamp(a, 6); stamp_rt(a, 7)
    stamp_flush(a, 0, SR, sWave, 16, 2)
    a("s_endpgm")

    a.label("K1_COMPUTE")
    TAIL = 'k1_notail' not in EXP and K1_NSW == 5 and K1_NSX == 3
    ACC = 32
    WFR = [0, 32]
    XFR = [64, 80]
    vTr0, vTr, vXr0, vXr, vSt = 8, 9, 10, 12, 14
    sRd, sXr, sIt, sSt, sSeg = 32, 33, 34, 36, 35
    TOUCH = 'k1_touch' in EXP
    ST, sTo, sTs = 44, 42, 43
    TD = 5
    if TOUCH:
        a(f"""
        v_lshrrev_b32 v5, 1, v1
        v_and_b32 v6, 1, v1
        v_lshlrev_b32 v6, 7, v6
        v_mad_u32_u24 v16, v5, s60, v6
        v_mul_u32_u24 v17, 2560, v1
        s_mul_i32 s{sTo}, s15, {8*3840}
        s_lshl_b32 s3, s17, 8
        s_add_u32 s{sTo}, s{sTo}, s3
        s_add_u32 s{sTo}, s{sTo}, {3*64*3840}
        s_lshl_b32 s3, s15, 3
        s_and_b32 s13, s16, 3
        s_lshl_b32 s13, s13, 1
        s_add_u32 s3, s3, s13
        s_and_b32 s13, s{sWave}, 1
        s_add_u32 s3, s3, s13
        s_mul_i32 s3, s3, {16*2560}
        s_mul_i32 s13, s14, 1280
        s_add_u32 s3, s3, s13
        s_add_u32 s3, s3, {3*128}
        s_cmp_eq_u32 s18, 0
        s_waitcnt lgkmcnt(0)
        s_cselect_b64 s[6:7], s[6:7], s[8:9]
        s_cmp_lt_u32 s{sWave}, 2
        s_cselect_b64 s[{ST}:{ST+1}], s[6:7], s[4:5]
        s_cselect_b32 s{ST+2}, 2457600, s62
        s_mov_b32 s{ST+3}, 0x00020000
        s_cselect_b32 s{sTo}, s{sTo}, s3
        s_cselect_b32 s{sTs}, {64*3840}, s63
        s_cselect_b64 s[50:51], -1, 0
        v_cndmask_b32 v16, v17, v16, s[50:51]
        v_cmp_gt_u32 s[50:51], 16, v1
        v_mov_b32 v17, 0x40000000
        s_nop 0
        v_cndmask_b32 v16, v17, v16, s[50:51]
        """)
        for b in range(3, TD):
            a(f"buffer_load_dword v18, v16, {sr(ST,4)}, s{sTo} offen")
            a(f"s_add_u32 s{sTo}, s{sTo}, s{sTs}")
    a(f"""
    v_and_b32 v5, 1, v4
    v_lshrrev_b32 v6, 2, v3
    v_lshl_add_u32 v5, v5, 2, v6
    v_mul_u32_u24 v5, 1056, v5
    v_lshrrev_b32 v6, 1, v4
    v_lshlrev_b32 v6, 9, v6
    v_and_b32 v7, 3, v3
    v_lshlrev_b32 v7, 3, v7
    v_add3_u32 v5, v5, v6, v7
    s_mul_i32 s3, s12, 8448
    v_add_u32 v{vTr0}, s3, v5
    v_and_b32 v5, 3, v3
    v_bfe_u32 v6, v3, 2, 1
    v_lshl_or_b32 v5, v6, 3, v5
    v_bfe_u32 v6, v3, 3, 1
    v_lshl_or_b32 v5, v6, 2, v5
    v_and_b32 v6, 7, v5
    v_xor_b32 v6, v6, v4
    v_lshlrev_b32 v6, 4, v6
    v_lshl_add_u32 v5, v5, 7, v6
    s_lshr_b32 s13, s{sWave}, 1
    s_lshl_b32 s3, s13, 13
    s_add_u32 s3, s3, {K1_XB}
    v_add_u32 v{vXr0}, s3, v5
    v_xor_b32 v{vXr0+1}, 64, v{vXr0}
    v_mov_b32 v{vXr}, v{vXr0}
    v_mov_b32 v{vXr+1}, v{vXr0+1}
    v_mov_b32 v{vTr}, v{vTr0}
    s_mov_b32 s{sRd}, {K1_WST}
    s_mov_b32 s{sXr}, 16384
    s_mov_b32 s{sIt}, 0
    s_mul_i32 s{sSeg}, s17, 52
    s_lshr_b32 s{sSeg}, s{sSeg}, 8
    s_mul_i32 s3, s{sSeg}, 5
    s_sub_u32 s17, s17, s3
    s_mul_i32 s3, s18, 3
    s_add_u32 s3, s3, s{sSeg}
    s_mul_i32 s{sSt}, s3, {SEGB}
    s_lshl_b32 s3, s14, 4
    s_lshl_b32 s16, s15, 1
    s_add_u32 s3, s3, s16
    s_add_u32 s3, s3, s13
    s_mul_i32 s3, s3, {2*TB}
    s_add_u32 s{sSt}, s{sSt}, s3
    s_waitcnt lgkmcnt(0)
    """)
    srd(a, SR, 10, WS_BYTES)
    for i in range(128):
        a(f"v_mov_b32 v{ACC+i}, 0")

    def reads(fset, kk):
        L = [f"ds_read_b128 {ar(XFR[fset]+4*mt,4)}, v{vXr+kk} offset:{2048*mt}" for mt in range(4)]
        for t in range(8):
            for s in range(2):
                L.append(f"ds_read_b64_tr_b16 {ar(WFR[fset]+4*t+2*s,2)}, v{vTr} offset:{s*256 + t*32}")
        return L

    stamp(a, 2)
    a("s_barrier")
    stamp(a, 3)
    for l in reads(0, 0):
        a(l)
    a(f"s_cmp_eq_u32 s{sSeg}, 2")
    a("s_cbranch_scc1 K1_LOOP_N")
    for ori in ("T", "N"):
        a.raw(".p2align 3")
        a.label(f"K1_LOOP_{ori}")
        for s in range(2):
            fs = s
            rd = reads(1 - fs, 1 - s)
            mf = []
            for t in range(8):
                for mt in range(4):
                    acc = vr(ACC + (t * 4 + mt) * 4, 4)
                    w = ar(WFR[fs] + 4 * t, 4)
                    x = ar(XFR[fs] + 4 * mt, 4)
                    if ori == "T":
                        mf.append(f"v_mfma_f32_16x16x32_bf16 {acc}, {w}, {x}, {acc}")
                    else:
                        mf.append(f"v_mfma_f32_16x16x32_bf16 {acc}, {x}, {w}, {acc}")
            a(f"v_add_u32 v{vTr}, s{sRd}, v{vTr0}")
            rest = [f"s_add_u32 s{sRd}, s{sRd}, {K1_WST}",
                    f"s_cmp_ge_u32 s{sRd}, {K1_XB}",
                    f"s_cselect_b32 s{sRd}, 0, s{sRd}"]
            if s == 0 and TOUCH:
                rest += [f"s_cmp_lt_u32 s{sIt}, {10-TD}",
                         f"s_cselect_b32 s{sTo}, s{sTo}, 0x40000000",
                         f"buffer_load_dword v18, v16, {sr(ST,4)}, s{sTo} offen",
                         f"s_add_u32 s{sTo}, s{sTo}, s{sTs}"]
            if s == 1:
                a(f"v_add_u32 v{vXr}, s{sXr}, v{vXr0}")
                rest += [f"v_add_u32 v{vXr+1}, s{sXr}, v{vXr0+1}",
                         f"s_add_u32 s{sXr}, s{sXr}, 16384",
                         f"s_cmp_ge_u32 s{sXr}, {K1_NSX*16384}",
                         f"s_cselect_b32 s{sXr}, 0, s{sXr}",
                         f"s_add_u32 s{sIt}, s{sIt}, 1",
                         f"s_cmp_lt_u32 s{sIt}, {8 if TAIL else 10}"]
            a("s_waitcnt lgkmcnt(0)")
            a("s_barrier")
            fill = rd + rest
            for i in range(32):
                a(mf[i])
                if i < len(fill):
                    a(fill[i])
        a(f"s_cbranch_scc1 K1_LOOP_{ori}")
        stamp(a, 4)
        if ori == "T":
            a(f"""
            s_lshl_b32 s3, s17, 13
            s_add_u32 s{sSt}, s{sSt}, s3
            s_add_u32 s{sSt+1}, s{sSt}, 4096
            s_add_u32 s{sSt+2}, s{sSt}, {TB}
            s_add_u32 s{sSt+3}, s{sSt+1}, {TB}
            s_cmp_eq_u32 s{sSeg}, 0
            s_cselect_b32 s40, {f32(QSCALE)}, 1.0
            s_mov_b32 s41, s40
            v_lshlrev_b32 v{vSt}, 4, v1
            s_nop 3
            """)
        else:
            a(f"""
            s_lshl_b32 s3, s17, 11
            s_add_u32 s{sSt}, s{sSt}, s3
            s_add_u32 s{sSt+2}, s{sSt}, {TB}
            v_mul_u32_u24 v5, 10240, v4
            v_lshl_add_u32 v{vSt}, v3, 4, v5
            s_nop 7
            """)
        def epi(t):
            L = []
            for mp in range(2):
                b0 = ACC + (t * 4 + 2 * mp) * 4
                b1 = b0 + 4
                if ori == "T":
                    for i in range(4):
                        L.append(f"v_pk_mul_f32 {vr(b0+2*i,2)}, {vr(b0+2*i,2)}, s[40:41]")
                L.append(f"v_cvt_pk_bf16_f32 v{b0}, v{b0}, v{b0+1}")
                L.append(f"v_cvt_pk_bf16_f32 v{b0+1}, v{b0+2}, v{b0+3}")
                L.append(f"v_cvt_pk_bf16_f32 v{b0+2}, v{b1}, v{b1+1}")
                L.append(f"v_cvt_pk_bf16_f32 v{b0+3}, v{b1+2}, v{b1+3}")
                L.append("s_nop 1")
                sw = "v_permlane16_swap_b32" if ori == "T" else "v_permlane32_swap_b32"
                L.append(f"{sw} v{b0}, v{b0+2}")
                L.append(f"{sw} v{b0+1}, v{b0+3}")
                L.append("s_nop 0")
                if ori == "T":
                    L.append(f"buffer_store_dwordx4 {vr(b0,4)}, v{vSt}, {sr(SR,4)}, s{sSt + 2*mp + t//4} offen offset:{(t%4)*1024}{STF}")
                else:
                    L.append(f"buffer_store_dwordx4 {vr(b0,4)}, v{vSt}, {sr(SR,4)}, s{sSt + 2*mp} offen offset:{t*256}{STF}")
            return L

        if not TAIL:
            for t in range(8):
                for l in epi(t):
                    a(l)
        else:
            XT = [64, 80, 32, 48]
            a(f"v_add_u32 v{vTr}, {3*K1_WST}, v{vTr0}")
            a("s_waitcnt lgkmcnt(0)")
            for i in range(4):
                a("s_barrier")

            def wt(t):
                L = []
                for k in range(4):
                    base, off = (vTr0, (1 + k) * K1_WST) if k < 2 else (vTr, (k - 2) * K1_WST)
                    for h in range(2):
                        L.append(f"ds_read_b64_tr_b16 {ar((t % 2) * 16 + 4 * k + 2 * h, 2)}, v{base} offset:{off + h*256 + t*32}")
                return L
            for l in wt(0):
                a(l)
            for k, (slot, kk) in enumerate(((2, 1), (0, 0), (0, 1))):
                for mt in range(4):
                    a(f"ds_read_b128 {ar(XT[k+1] + 4*mt, 4)}, v{vXr0+kk} offset:{slot*16384 + 2048*mt}")
            for t in range(9):
                fill = (wt(t + 1) if t + 1 < 8 else ["s_nop 3", "s_nop 3"]) + (epi(t - 1) if t >= 1 else [])
                if t == 8:
                    a("s_nop 7")
                    for l in fill:
                        a(l)
                    break
                n = 0
                for k in range(4):
                    if t == 0:
                        a(f"s_waitcnt lgkmcnt({min(15, 12 - 4*k + min(8, n))})" if k else "s_waitcnt lgkmcnt(12)")
                    elif k == 0:
                        a("s_waitcnt lgkmcnt(0)")
                    for mt in range(4):
                        acc = vr(ACC + (t * 4 + mt) * 4, 4)
                        w = ar((t % 2) * 16 + 4 * k, 4)
                        x = ar(XT[k] + 4 * mt, 4)
                        if ori == "T":
                            a(f"v_mfma_f32_16x16x32_bf16 {acc}, {w}, {x}, {acc}")
                        else:
                            a(f"v_mfma_f32_16x16x32_bf16 {acc}, {x}, {w}, {acc}")
                        for l in fill[n:n + 2]:
                            a(l)
                        n += 2
                for l in fill[n:]:
                    a(l)
        stamp(a, 5)
        if STAMP: a("s_waitcnt vmcnt(0)")
        stamp(a, 6); stamp_rt(a, 7)
        stamp_flush(a, 0, SR, sWave, 8, 2)
        a("s_endpgm")

    a.label("K1_SIDE")
    SGW, SWO = 32, 36
    a(f"""
    s_load_dwordx2 s[46:47], s[0:1], 16
    s_load_dwordx4 s[12:15], s[0:1], 40
    s_sub_u32 s16, s2, 240
    s_lshl_b32 s16, s16, 3
    s_add_u32 s16, s16, s{sWave}
    v_lshlrev_b32 v2, 2, v1
    v_lshlrev_b32 v5, 4, v1
    v_lshrrev_b32 v3, 3, v1
    v_and_b32 v4, 7, v1
    v_mul_u32_u24 v3, 1280, v3
    v_lshl_add_u32 v3, v4, 4, v3
    v_lshrrev_b32 v4, 4, v1
    v_bfe_u32 v6, v1, 2, 2
    v_lshl_add_u32 v4, v4, 3, v6
    v_and_b32 v6, 3, v1
    v_lshlrev_b32 v6, 3, v6
    v_lshl_add_u32 v6, v4, 7, v6
    s_lshl_b32 s40, s{sWave}, 14
    v_add_u32 v6, s40, v6
    v_mov_b32 v4, 0
    s_waitcnt lgkmcnt(0)
    """)
    srd(a, SX, 4, 2621440)
    srd(a, SR, 10, WS_BYTES)
    srd(a, SGW, 14, 1280)
    a(f"""
    v_and_b32 v7, 255, v0
    v_lshlrev_b32 v7, 7, v7
    s_mov_b32 s3, {CNT_OFF}
    v_mov_b32 v24, 0
    v_mov_b32 v25, 0
    v_mov_b32 v26, 0
    v_mov_b32 v27, 0
    buffer_store_dwordx4 v[24:27], v7, {sr(SR,4)}, s3 offen
    """)
    a(f"s_mov_b32 s{SWO+2}, 819200")
    a(f"s_mov_b32 s{SWO+3}, 0x00020000")
    if 'notlb' not in EXP:
        a("s_load_dwordx2 s[50:51], s[0:1], 56")
        a("v_lshlrev_b32 v29, 16, v0")
        a(f"buffer_load_dword v28, v29, {sr(SR,4)}, 0 offen")
        a("s_waitcnt lgkmcnt(0)")
        srd(a, 56, 50, 2621440)
        a("buffer_load_dword v28, v29, s[56:59], 0 offen")
    for i in range(4):
        a(f"""
        s_add_u32 s41, s16, {128*i}
        s_cmp_ge_u32 s41, 200
        s_cselect_b32 s{SWO}, s12, s46
        s_cselect_b32 s{SWO+1}, s13, s47
        s_cselect_b32 s3, 200, 0
        s_cselect_b32 s{42+i}, {WOF_BR}, 0
        s_add_u32 s{42+i}, s{42+i}, {WOF_OFF}
        s_sub_u32 s3, s41, s3
        s_mul_i32 s17, s3, 6554
        s_lshr_b32 s17, s17, 16
        s_mul_i32 s18, s17, 10
        s_sub_u32 s18, s3, s18
        s_lshl_b32 s3, s17, 10
        s_add_u32 s{42+i}, s{42+i}, s3
        s_mul_i32 s3, s18, {4*20480}
        s_add_u32 s{42+i}, s{42+i}, s3
        s_mul_i32 s17, s17, {32*1280}
        s_lshl_b32 s18, s18, 7
        s_add_u32 s17, s17, s18
        s_cmp_ge_u32 s41, 400
        s_cselect_b32 s{42+i}, 0x7f000000, s{42+i}
        s_cselect_b32 s17, 0x7f000000, s17
        """)
        for q in range(4):
            a(f"s_add_u32 m0, s40, {4096*i + 1024*q}")
            a("s_nop 0")
            a(f"buffer_load_dwordx4 v3, {sr(SWO,4)}, s17 offen lds")
            a(f"s_add_u32 s17, s17, {8*1280}")
    for i in range(4):
        a("s_waitcnt vmcnt(12)")
        for nt in range(4):
            b = 72 + (4 * i + nt) * 4
            a(f"ds_read_b64_tr_b16 {vr(b,2)}, v6 offset:{4096*i + 32*nt}")
            a(f"ds_read_b64_tr_b16 {vr(b+2,2)}, v6 offset:{4096*i + 32*nt + 512}")
        a("s_waitcnt lgkmcnt(0)")
        for nt in range(4):
            b = 72 + (4 * i + nt) * 4
            a(f"buffer_store_dwordx4 {vr(b,4)}, v5, {sr(SR,4)}, s{42+i} offen sc1")
            a(f"s_add_u32 s{42+i}, s{42+i}, 20480")
    a(f"""
    s_lshr_b32 s3, s16, 3
    s_lshl_b32 s3, s3, 7
    s_and_b32 s17, s16, 7
    s_add_u32 s3, s3, s17
    s_add_u32 s3, s3, 120
    s_and_b32 s17, s3, 1023
    s_mul_i32 s17, s17, 2560
    s_lshr_b32 s18, s3, 10
    s_mul_i32 s18, s18, 1280
    s_add_u32 s17, s17, s18
    s_lshl_b32 s18, s3, 2
    s_add_u32 s18, s18, {G_OFF}
    """)
    gate_rows(a, 1, SX, SGW, SR, 17, 18, 8, 16, 22, 2, 4)
    if 'noct' not in EXP:
        code_touch(a, 31, 30, 52, "attn_kernel", "CODE_END", lane="v0")
    if STAMP:
        a("s_waitcnt vmcnt(0)")
        for i in range(2, 7):
            stamp(a, i)
        stamp_rt(a, 7)
        stamp_flush(a, 0, SR, sWave, 8, 2)
    a.label("K1_END")
    a("s_endpgm")
    return kernel_desc(name, 256, 160, 64)


VB = 352
K2_TILE = 1536 + 4 * VB
K2_SLOT = 8 * K2_TILE
K2_R = 3
K2_FLAG = K2_SLOT * K2_R + 256
K2_LDS = 81920
FUSE = True


def code_touch(a, vdst, vaddr, stmp, first, last, lane="v1"):
    lab = f"CT_{len(a.L)}"
    a(f"s_getpc_b64 s[{stmp}:{stmp+1}]")
    a.label(lab)
    a(f"s_add_u32 s{stmp}, s{stmp}, {first}-{lab}")
    a(f"s_addc_u32 s{stmp+1}, s{stmp+1}, 0")
    a(f"v_lshlrev_b32 v{vaddr}, 7, {lane}")
    a(f"v_min_u32 v{vaddr}, {last}-{first}-4, v{vaddr}")
    a(f"global_load_dword v{vdst}, v{vaddr}, s[{stmp}:{stmp+1}]")


def gen_k2(a):
    name = "attn_kernel"
    kernel_head(a, name)
    SWS = 28
    sWave, sHead, sT = 19, 17, 18
    sDma, sM0, sSlot, sC, sRedo = 24, 25, 26, 27, 20
    sTA, sO, sTouch = 21, 22, 23
    sTmp = 36
    vK10, vK20, vLV, vK1, vK2, vV, vO = 2, 3, 4, 5, 6, 7, 15
    vt = 8
    Q1, Q2 = 16, 20
    KF1, KF2 = 24, 28
    vD = 22
    vD2 = 30
    vGK1, vGK2 = 31, 112
    vL16, vO2, vGV = 113, 114, 115
    VF = 32
    P = 40
    NEGM = 48
    SB = [64, 80]
    O = 96
    AKP1, AKP2 = 116, 120
    vGt, vCb, vOne, vHint = 122, 123, 124, 125
    sProg, sHint, sBad = 46, 47, 48
    NV = 128
    a("s_cmp_ge_u32 s2, 512")
    a("s_cbranch_scc1 K2_END")
    stamp(a, 0); stamp_rt(a, 1)
    a("""
    s_load_dwordx2 s[10:11], s[0:1], 72
    v_lshrrev_b32 v8, 6, v0
    v_and_b32 v1, 63, v0
    s_and_b32 s14, s2, 7
    v_readfirstlane_b32 s19, v8
    s_cmp_ge_u32 s2, 256
    s_cbranch_scc1 K2_AROLE
    s_setprio 3
    s_lshr_b32 s15, s2, 3
    s_lshl_b32 s17, s14, 2
    s_lshr_b32 s3, s15, 3
    s_add_u32 s17, s17, s3
    s_and_b32 s9, s15, 7
    s_lshl_b32 s9, s9, 3
    s_add_u32 s18, s9, s19
    """)

    def head_addr():
        a(f"""
        v_and_b32 v8, 31, v1
        v_lshrrev_b32 v9, 5, v1
        v_lshlrev_b32 v{vL16}, 4, v1
        s_and_b32 s4, s{sHead}, 1
        s_mul_i32 s5, s{sHead}, 5
        s_lshr_b32 s5, s5, 1
        s_lshl_b32 s5, s5, 9
        s_lshl_b32 s6, s4, 9
        s_cmp_eq_u32 s4, 0
        s_cselect_b32 s7, 1024, 8
        v_add_u32 v{vK10}, s6, v{vL16}
        v_lshl_add_u32 v{vK20}, v8, 4, s7
        v_add_u32 v{vGK1}, s5, v{vK10}
        v_add_u32 v{vGK2}, s5, v{vK20}
        s_mul_i32 s6, s{sHead}, 320
        s_mul_i32 s{sTA}, s{sT}, {TB}
        """)

    def out_addr(br):
        a(f"""
        s_lshl_b32 s5, s4, 2
        v_add_u32 v12, s5, v8
        v_subrev_u32 v13, 20, v12
        v_cmp_gt_u32 s[{sTmp}:{sTmp+1}], 20, v12
        v_cmp_gt_u32 s[{sTmp+2}:{sTmp+3}], 20, v8
        v_and_b32 v10, 3, v8
        v_cndmask_b32 v12, v13, v12, s[{sTmp}:{sTmp+1}]
        v_cndmask_b32 v12, v8, v12, s[{sTmp+2}:{sTmp+3}]
        v_bfe_u32 v11, v8, 2, 1
        v_lshl_or_b32 v10, v11, 3, v10
        v_bfe_u32 v11, v8, 3, 1
        v_lshl_or_b32 v10, v11, 2, v10
        v_lshrrev_b32 v11, 4, v8
        v_lshl_or_b32 v14, v11, 4, v10
        v_lshlrev_b32 v10, 4, v10
        v_mul_u32_u24 v11, 20480, v11
        s_mul_i32 s3, s{sHead}, 5
        s_add_u32 s3, s3, 1
        s_lshr_b32 s3, s3, 1
        s_lshl_b32 s3, s3, 8
        v_add3_u32 v10, v10, v11, s3
        v_lshl_add_u32 v{vO}, v9, 8, v10
        s_mul_i32 s5, s4, 760
        s_sub_u32 s5, 512, s5
        v_add_u32 v{vO2}, s5, v10
        s_add_u32 s{sO}, s{sTA}, {O_OFF + br * O_BR}
        v_lshlrev_b32 v{vGt}, 2, v14
        s_lshl_b32 s{sTouch}, s{sT}, 7
        s_add_u32 s{sTouch}, s{sTouch}, {G_OFF}
        """)

    def gate_load():
        a(f"buffer_load_dword v{vGt}, v{vGt}, {sr(SWS,4)}, s{sTouch} offen")

    head_addr()
    a(f"""
    s_add_u32 s5, s5, {4*SEGB}
    v_add_u32 v{vD}, s5, v{vL16}
    s_add_u32 s7, s6, {5*SEGB - 1024 - 512}
    v_cmp_le_u32 s[{sTmp}:{sTmp+1}], 54, v1
    v_mov_b32 v12, {10240-VB}
    v_add_u32 v13, s7, v{vL16}
    v_cndmask_b32 v12, 0, v12, s[{sTmp}:{sTmp+1}]
    v_add_u32 v13, v13, v12
    v_cmp_le_u32 s[{sTmp}:{sTmp+1}], 32, v1
    v_add_u32 v11, 32, v1
    v_mul_u32_u24 v11, 47, v11
    v_cndmask_b32 v{vD+1}, v{vD}, v13, s[{sTmp}:{sTmp+1}]
    v_lshrrev_b32 v11, 10, v11
    v_mul_u32_u24 v11, {10240-VB}, v11
    s_add_u32 s7, s6, {5*SEGB - 2048 + 512}
    v_add3_u32 v{vD2}, v11, v{vL16}, s7
    s_add_u32 s8, s{sTA}, {3*SEGB}
    s_waitcnt lgkmcnt(0)
    """)
    srd(a, SWS, 10, WS_BYTES)

    m1 = ((1 << 64) - 1) & ~(3 << 52)
    m2 = ((1 << 54) - 1) & ~(3 << 10) & ~(3 << 32)

    def dma_parts():
        return [[f"s_mov_b32 m0, s{sM0}",
                 f"s_add_u32 s{sM0}, s{sM0}, {K2_SLOT}",
                 f"buffer_load_dwordx4 v{vD}, {sr(SWS,4)}, s{sDma} offen lds"],
                [f"s_mov_b32 exec_hi, 0x{m1 >> 32:08x}",
                 f"buffer_load_dwordx4 v{vD+1}, {sr(SWS,4)}, s{sDma} offen offset:1024 lds",
                 "s_mov_b32 exec_hi, -1"],
                [f"s_mov_b32 exec_lo, 0x{m2 & 0xffffffff:08x}",
                 f"s_mov_b32 exec_hi, 0x{m2 >> 32:08x}",
                 f"buffer_load_dwordx4 v{vD2}, {sr(SWS,4)}, s{sDma} offen offset:2048 lds",
                 "s_mov_b64 exec, -1"],
                [f"s_add_u32 s{sDma}, s{sDma}, {8*TB}",
                 f"s_cmp_ge_u32 s{sDma}, {64*TB}",
                 f"s_cselect_b32 s{sDma}, 0x40000000, s{sDma}"],
                [f"s_cmp_ge_u32 s{sM0}, {K2_SLOT*K2_R}",
                 f"s_cselect_b32 s{sTmp}, {K2_SLOT*K2_R}, 0",
                 f"s_sub_u32 s{sM0}, s{sM0}, s{sTmp}"]]

    def dma_chunk():
        for p in dma_parts():
            for l in p:
                a(l)

    def dma_init():
        a(f"s_mul_i32 s{sDma}, s{sWave}, {TB}")
        a(f"s_mul_i32 s{sM0}, s{sWave}, {K2_TILE}")

    def zero_state():
        for r in range(16):
            a(f"v_mov_b32 v{O+r}, 0")
        for r in range(4):
            a(f"v_mov_b32 v{P+4+r}, 0")
            a(f"v_mov_b32 v{VF+4+r}, 0")
        a(f"""
        v_mov_b32 v{vV}, v{vLV}
        v_mov_b32 v{vK1}, v{vK10}
        v_mov_b32 v{vK2}, v{vK20}
        s_mov_b32 s{sSlot}, {K2_SLOT}
        s_mov_b32 s{sC}, 0
        """)

    dma_init()
    dma_chunk()
    a(f"buffer_load_dwordx4 {vr(Q1,4)}, v{vGK1}, {sr(SWS,4)}, s8 offen")
    a(f"buffer_load_dwordx2 {vr(Q2,2)}, v{vGK2}, {sr(SWS,4)}, s8 offen")
    a(f"""
    s_mov_b32 s{sRedo}, 0
    v_mov_b32 v{VF}, 0x3f803f80
    v_mov_b32 v{VF+1}, 0x3f803f80
    v_mov_b32 v{VF+2}, 0x3f803f80
    v_mov_b32 v{VF+3}, 0x3f803f80
    v_bfe_u32 v11, v1, 2, 2
    v_min_u32 v11, {K2_R-1}, v11
    v_mul_u32_u24 v11, {K2_SLOT}, v11
    v_and_b32 v12, 3, v1
    v_mul_u32_u24 v12, {VB}, v12
    s_mul_i32 s3, s{sWave}, {K2_TILE}
    v_add3_u32 v11, v11, v12, s3
    ds_write_b128 v11, {vr(VF,4)} offset:{1536+320}
    v_mov_b32 v12, 0
    v_mov_b32 v13, 0
    ds_write_b64 v11, v[12:13] offset:{1536+336}
    ds_write_b64 v11, v[12:13] offset:{1536+344}
    v_mov_b32 v11, {K2_FLAG}
    ds_write_b32 v11, v12
    """)
    out_addr(1)
    gate_load()
    a(f"""
    v_mul_u32_u24 v11, {VB}, v9
    v_min_u32 v12, 21, v12
    v_lshl_add_u32 v11, v12, 4, v11
    v_add_u32 v{vLV}, 1536, v11
    s_mov_b32 exec_lo, 0
    v_mov_b32 v{vK20}, {1536+336}
    s_mov_b32 exec_lo, -1
    """)
    dma_chunk()
    zero_state()
    a(f"""
    v_mov_b32 v{vCb}, {CNT_OFF}
    v_mov_b32 v{vOne}, 1
    v_mov_b32 v{AKP1}, -1
    v_mov_b32 v{AKP1+1}, -1
    v_mov_b32 v{AKP1+2}, -1
    v_mov_b32 v{AKP1+3}, -1
    s_lshl_b32 s{sProg}, s2, 7
    s_cmp_eq_u32 s{sWave}, 7
    s_cselect_b32 s{sProg}, s{sProg}, 0x40000000
    s_cselect_b32 s{sHint}, 0, 0x40000000
    s_lshl_b32 s3, s9, 4
    s_add_u32 s{sHint}, s{sHint}, s3
    s_add_u32 s{sHint}, s{sHint}, {CNT_OFF + 4}
    v_lshlrev_b32 v{vHint}, 10, v1
    s_waitcnt vmcnt(3) lgkmcnt(0)
    """)
    stamp(a, 2)
    a("s_barrier")

    def maxtree(regs, dst):
        a(f"v_max3_f32 v{dst}, v{regs[0]}, v{regs[1]}, v{regs[2]}")
        i = 3
        while i + 1 < len(regs):
            a(f"v_max3_f32 v{dst}, v{dst}, v{regs[i]}, v{regs[i+1]}")
            i += 2
        if i < len(regs):
            a(f"v_max_f32 v{dst}, v{dst}, v{regs[i]}")
        a(f"v_mov_b32 v{dst+1}, v{dst}")
        a("s_nop 1")
        a(f"v_permlane32_swap_b32 v{dst}, v{dst+1}")
        a("s_nop 1")
        a(f"v_max_f32 v{dst}, v{dst}, v{dst+1}")

    def store_o(D):
        a(f"""
        v_mov_b32 v{vt}, v{O+8}
        v_mov_b32 v{vt+1}, v{O+8}
        s_nop 1
        v_permlane32_swap_b32 v{vt}, v{vt+1}
        s_nop 1
        v_rcp_f32 v{vt}, v{vt+1}
        s_nop 0
        v_mul_f32 v{vt}, v{vt}, v{vGt}
        """)
        for r in range(12):
            a(f"v_mul_f32 v{O+r}, v{O+r}, v{vt}")
        for i in range(6):
            a(f"v_cvt_pk_bf16_f32 v{D+i}, v{O+2*i}, v{O+2*i+1}")
        a(f"v_permlane32_swap_b32 v{D}, v{D+2}")
        a(f"v_permlane32_swap_b32 v{D+1}, v{D+3}")
        a("s_mov_b32 exec_hi, 0")
        a(f"buffer_store_dwordx2 {vr(D+4,2)}, v{vO2}, {sr(SWS,4)}, s{sO} offen sc1")
        a("s_mov_b32 exec_hi, -1")
        a(f"buffer_store_dwordx4 {vr(D,4)}, v{vO}, {sr(SWS,4)}, s{sO} offen sc1")

    def kreads(tile):
        o = tile * K2_TILE
        return [f"ds_read_b128 {vr(KF1,4)}, v{vK1} offset:{o}",
                f"ds_read_b64 {vr(KF2,2)}, v{vK2} offset:{o}"]

    def vread(tile, j):
        return f"ds_read_b128 {vr(VF+4*j,4)}, v{vV} offset:{tile * K2_TILE + 2*VB*j}"

    def qk(sb, c, k1=KF1, k2=KF2):
        return [f"v_mfma_f32_32x32x16_bf16 {vr(sb,16)}, {vr(k1,4)}, {vr(Q1,4)}, {c}",
                f"v_mfma_f32_32x32x8_bf16 {vr(sb,16)}, {vr(k2,2)}, {vr(Q2,2)}, {vr(sb,16)}"]

    stamp(a, 3)
    for l in kreads(0):
        a(l)
    a(f"""
    s_mov_b32 exec_lo, 0
    v_mov_b32 v{Q2}, 0
    v_mov_b32 v{Q2+1}, 0
    s_mov_b32 exec_lo, -1
    v_sub_f32 v{vGt}, 1.0, v{vGt}
    s_waitcnt lgkmcnt(0)
    """)
    for l in qk(SB[0], "0"):
        a(l)
    a("s_nop 11")
    maxtree([SB[0] + r for r in range(16)], vt)
    for r in range(16):
        a(f"v_sub_f32 v{NEGM+r}, 0, v{vt}")
    a.label("K2_HAVE_M")
    a("s_waitcnt lgkmcnt(0)")
    a("s_nop 0")
    for l in qk(SB[0], vr(NEGM, 16)):
        a(l)
    for l in kreads(1):
        a(l)
    a(vread(0, 0))
    a("s_nop 9")
    stamp(a, 4)
    a.raw(".p2align 3")
    a.label("K2_LOOP")
    HI = int(os.environ.get('K2HI', '7'))

    def hint():
        a(f"""
        s_mov_b32 exec_hi, 0
        buffer_atomic_add v{vOne}, v{vHint}, {sr(SWS,4)}, s{sHint} offen sc1
        s_mov_b32 exec_hi, -1
        """)
    PR = os.environ.get('K2PRIO', '3..2.1.0')
    prio = {i: int(c) for i, c in enumerate(PR) if c != '.'}
    for i in range(8):
        cur, nxt = SB[i % 2], SB[1 - i % 2]
        e = [f"v_exp_f32 v{cur+r}, v{cur+r}" for r in range(16)]
        c = [f"v_cvt_pk_bf16_f32 v{P+j}, v{cur+2*j}, v{cur+2*j+1}" for j in range(8)]
        q = qk(nxt, vr(NEGM, 16))
        pv = [f"v_mfma_f32_32x32x16_bf16 {vr(O,16)}, {vr(VF+4*j,4)}, {vr(P+4*j,4)}, {vr(O,16)}" for j in range(2)]
        kr = kreads((i + 2) % 8)
        dp = [[]] * 5
        if i == 6:
            a("s_waitcnt vmcnt(0)")
            a("s_barrier")
            a(f"v_add_u32 v{vK1}, s{sSlot}, v{vK10}")
            a(f"v_add_u32 v{vK2}, s{sSlot}, v{vK20}")
            dp = dma_parts()
        if (i - 6) % 8 in prio:
            a(f"s_setprio {prio[(i - 6) % 8]}")
        if i == 1:
            a(f"""
            s_cmp_eq_u32 s{sC}, {os.environ.get('K2PC', '6')}
            s_cbranch_scc1 K2_SIG
            s_cmp_eq_u32 s{sC}, 0
            s_cbranch_scc0 K2_NOSIG
            s_cmp_lg_u32 s{sRedo}, 0
            s_cbranch_scc1 K2_NOSIG
            s_mov_b32 exec_hi, 0
            buffer_store_dwordx2 {vr(AKP1,2)}, v{vO2}, {sr(SWS,4)}, s{sO} offen sc1
            s_mov_b32 exec_hi, -1
            buffer_store_dwordx4 {vr(AKP1,4)}, v{vO}, {sr(SWS,4)}, s{sO} offen sc1
            """)
            a.label("K2_SIG")
            a(f"""
            s_mov_b64 exec, 1
            buffer_atomic_add v{vOne}, v{vCb}, {sr(SWS,4)}, s{sProg} offen sc1
            s_mov_b64 exec, -1
            """)
            a.label("K2_NOSIG")

        if i == HI:
            a(f"s_cmp_eq_u32 s{sC}, 7")
            a("s_cbranch_scc0 K2_NOHINT")
            hint()
            a.label("K2_NOHINT")

        def em(L):
            for l in L:
                a(l)
        a(e[0]); a(e[1])
        a(pv[1])
        a(vread(i, 1))
        a(e[2]); em(dp[0]); a(e[3]); a(c[0]); a(e[4]); a(c[1])
        a("s_waitcnt lgkmcnt(1)")
        a(q[0])
        a(e[5]); em(dp[1]); a(e[6]); a(e[7]); a(c[2]); a(e[8]); a(c[3])
        a(q[1])
        em(kr)
        a(e[9]); em(dp[2]); a(e[10]); a(e[11]); a(c[4]); a(e[12]); a(c[5])
        if i == 7:
            a(f"v_add_u32 v{vV}, s{sSlot}, v{vLV}")
        a(pv[0])
        a(vread((i + 1) % 8, 0))
        a(e[13]); em(dp[3]); a(e[14]); em(dp[4]); a(e[15]); a(c[6])
        a("s_waitcnt lgkmcnt(3)")
        a(c[7])
        if i == 7:
            a(f"s_add_u32 s{sSlot}, s{sSlot}, {K2_SLOT}")
            a(f"s_cmp_ge_u32 s{sSlot}, {K2_SLOT*K2_R}")
            a(f"s_cselect_b32 s{sSlot}, 0, s{sSlot}")
    a(f"""
    s_add_u32 s{sC}, s{sC}, 1
    s_cmp_lt_u32 s{sC}, 8
    s_cbranch_scc1 K2_LOOP
    v_mfma_f32_32x32x16_bf16 {vr(O,16)}, {vr(VF+4,4)}, {vr(P+4,4)}, {vr(O,16)}
    """)
    if HI >= 8:
        hint()
    a(f"""
    v_mov_b32 v{vt+3}, {K2_FLAG}
    s_mov_b32 s3, {f32(2.0**100)}
    s_waitcnt lgkmcnt(0)
    s_nop 9
    """)
    stamp(a, 5)
    a(f"v_mov_b32 v{vt+2}, v{O+8}")
    a("s_mov_b32 exec_hi, 0")
    a(f"v_mul_f32 v{vt+2}, 0, v{O+8}")
    for r in range(9, 12):
        a(f"v_fma_f32 v{vt+2}, v{O+r}, 0, v{vt+2}")
    a("s_mov_b32 exec_hi, -1")
    for r in range(8):
        a(f"v_fma_f32 v{vt+2}, v{O+r}, 0, v{vt+2}")
    a(f"v_cmp_nlt_f32 s[{sTmp}:{sTmp+1}], v{vt+2}, s3")
    a(f"""
    s_nop 3
    s_cmp_eq_u32 s{sRedo}, 0
    s_cbranch_scc1 K2_FIRST
    s_cmp_eq_u32 s{sBad}, 0
    s_cbranch_scc1 K2_NOFLAG
    s_branch K2_GOOD
    """)
    a.label("K2_FIRST")
    a(f"""
    s_cmp_eq_u64 s[{sTmp}:{sTmp+1}], 0
    s_cselect_b32 s{sBad}, 0, 1
    s_cbranch_scc1 K2_GOOD
    ds_write_b32 v{vt+3}, v{vOne}
    s_branch K2_NOFLAG
    """)
    a.label("K2_GOOD")
    store_o(P)
    a.label("K2_NOFLAG")
    a(f"""
    s_waitcnt lgkmcnt(0)
    s_barrier
    ds_read_b32 v{vt+2}, v{vt+3}
    s_waitcnt lgkmcnt(0)
    v_readfirstlane_b32 s3, v{vt+2}
    s_nop 3
    s_cmp_gt_u32 s3, s{sRedo}
    s_cbranch_scc1 K2_FALLBACK
    """)
    a.label("K2_DONE")
    if STAMP: a("s_waitcnt vmcnt(0)")
    stamp(a, 6); stamp_rt(a, 7)
    stamp_flush(a, 1, SWS, sWave, 16, 8, shift=3)
    a.label("K2_END")
    a("s_endpgm")

    a.label("K2_FALLBACK")
    a(f"""
    s_mov_b32 s{sRedo}, 1
    s_mov_b32 s3, {4*SEGB}
    v_mov_b32 v{vt+2}, 0xff800000
    s_waitcnt vmcnt(0)
    """)
    dma_init()
    dma_chunk()
    dma_chunk()
    a.label("K2_MAXLOOP")
    a(f"""
    buffer_load_dwordx4 {vr(KF1,4)}, v{vGK1}, {sr(SWS,4)}, s3 offen
    buffer_load_dwordx2 {vr(KF2,2)}, v{vGK2}, {sr(SWS,4)}, s3 offen
    s_waitcnt vmcnt(0)
    """)
    for l in qk(SB[0], "0"):
        a(l)
    a("s_nop 15")
    for r in range(0, 16, 2):
        a(f"v_max3_f32 v{vt+2}, v{vt+2}, v{SB[0]+r}, v{SB[0]+r+1}")
    a(f"""
    s_add_u32 s3, s3, {TB}
    s_cmp_lt_u32 s3, {5*SEGB}
    s_cbranch_scc1 K2_MAXLOOP
    v_mov_b32 v{vt+3}, v{vt+2}
    s_nop 1
    v_permlane32_swap_b32 v{vt+2}, v{vt+3}
    s_nop 1
    v_max_f32 v{vt+2}, v{vt+2}, v{vt+3}
    """)
    for r in range(16):
        a(f"v_sub_f32 v{NEGM+r}, 0, v{vt+2}")
    zero_state()
    a("s_barrier")
    for l in kreads(0):
        a(l)
    a("s_branch K2_HAVE_M")

    a.label("K2_AROLE")
    sMb, sNb, sWb, sOb, sLq, sOut = 50, 51, 52, 53, 54, 55
    SOUT = 56
    a(f"""
    s_load_dwordx2 s[48:49], s[0:1], 56
    s_setprio {os.environ.get('K2APRIO', '1')}
    s_bfe_u32 s15, s2, {(5 << 16) | 3}
    s_lshl_b32 s{sMb}, s14, 2
    s_and_b32 s3, s15, 3
    s_add_u32 s{sMb}, s{sMb}, s3
    s_lshr_b32 s{sNb}, s15, 2
    s_lshl_b32 s{sHead}, s{sNb}, 2
    s_lshr_b32 s3, s{sWave}, 1
    s_add_u32 s{sHead}, s{sHead}, s3
    s_lshl_b32 s{sT}, s{sMb}, 1
    s_and_b32 s3, s{sWave}, 1
    s_add_u32 s{sT}, s{sT}, s3
    """)
    head_addr()
    sPrev, sTAp = 46, 24
    a(f"""
    s_and_b32 s3, s{sT}, 31
    s_cmp_lg_u32 s3, 0
    s_cselect_b32 s3, {TB}, 0
    s_cselect_b64 s[{sPrev}:{sPrev+1}], -1, 0
    s_sub_u32 s{sTAp}, s{sTA}, s3
    v_mov_b32 v10, {f32(-1e30)}
    """)
    AV = [VF, VF + 4, P]
    AC = SB
    for b in AV:
        for i in range(4):
            a(f"v_mov_b32 v{b+i}, 0x3f803f80")

    def lanemask(fn):
        m = 0
        for l in range(64):
            if fn(l):
                m |= 1 << l
        return m
    k = 0
    for r in range(16):
        m = lanemask(lambda l: 0 <= pi5(l % 32) - (16 * (r // 8) + 8 * (l // 32) + r % 8) <= 7)
        sp = sTmp + 2 + 2 * (k % 3); k += 1
        a(f"s_mov_b32 s{sp}, 0x{m & 0xffffffff:08x}")
        a(f"s_mov_b32 s{sp+1}, 0x{m >> 32:08x}")
        a(f"v_cndmask_b32 v{AC[0]+r}, v10, 0, s[{sp}:{sp+1}]")
    for r in range(8, 16):
        m = lanemask(lambda l: pi5(l % 32) + 32 - (16 * (r // 8) + 8 * (l // 32) + r % 8) <= 7)
        sp = sTmp + 2 + 2 * (k % 3); k += 1
        a(f"s_and_b32 s{sp}, s{sPrev}, 0x{m & 0xffffffff:08x}")
        a(f"s_and_b32 s{sp+1}, s{sPrev}, 0x{m >> 32:08x}")
        a(f"v_cndmask_b32 v{AC[1]+r}, v10, 0, s[{sp}:{sp+1}]")
    a("s_waitcnt lgkmcnt(0)")
    srd(a, SWS, 10, WS_BYTES)
    srd(a, SOUT, 48, 2621440)
    sLine = 60
    a(f"s_and_b32 s{sLine}, s2, 255")
    a(f"s_lshl_b32 s{sLine}, s{sLine}, 7")
    a(f"s_add_u32 s{sLine}, s{sLine}, {CNT_OFF}")

    def poll(lab, word, need, sleep, limit):
        a(f"""
        s_movk_i32 s9, {limit}
        v_mov_b32 v10, 0
        """)
        a.label(lab)
        a(f"""
        buffer_load_dword v11, v10, {sr(SWS,4)}, s{sLine} offen offset:{4*word} sc1
        s_waitcnt vmcnt(0)
        v_readfirstlane_b32 s3, v11
        s_sub_u32 s9, s9, 1
        s_nop 2
        s_cmp_ge_u32 s3, {need}
        s_cbranch_scc1 {lab}_OK
        s_sleep {sleep}
        s_cmp_lg_u32 s9, 0
        s_cbranch_scc1 {lab}
        """)
        a.label(lab + "_OK")

    out_addr(0)
    a(f"""
    v_mul_u32_u24 v11, 10240, v9
    v_lshl_add_u32 v11, v12, 4, v11
    v_add_u32 v{vGV}, s6, v11
    """)
    ACC, OF, WF = 16, 36, 76
    vLn, vW, vOut, vOut2, vCn = 2, 3, 4, 5, 6
    a(f"""
    v_mov_b32 v{vLn}, v{vL16}
    s_lshr_b32 s4, s{sWave}, 2
    s_mul_i32 s{sLq}, s4, 40960
    v_add_u32 v{vW}, s{sLq}, v{vL16}
    s_mul_i32 s5, s4, 10240
    s_mul_i32 s{sWb}, s{sNb}, {5*20480}
    s_add_u32 s{sWb}, s{sWb}, s5
    s_add_u32 s{sWb}, s{sWb}, {WOF_OFF}
    s_lshl_b32 s6, s{sMb}, 2
    s_and_b32 s3, s{sWave}, 3
    s_add_u32 s6, s6, s3
    s_mul_i32 s{sOb}, s6, 20480
    s_add_u32 s{sOb}, s{sOb}, s5
    s_add_u32 s{sOb}, s{sOb}, {O_OFF}
    s_mul_i32 s3, s3, 10240
    s_add_u32 s{sLq}, s{sLq}, s3
    v_and_b32 v9, 15, v1
    v_lshrrev_b32 v11, 4, v1
    v_mul_u32_u24 v12, 2560, v9
    v_and_b32 v13, 1, v11
    v_lshlrev_b32 v13, 5, v13
    v_lshrrev_b32 v14, 1, v11
    v_lshlrev_b32 v14, 4, v14
    v_add3_u32 v{vOut}, v12, v13, v14
    v_lshl_add_u32 v{vOut2}, v11, 3, v12
    s_and_b32 s7, s6, 63
    s_mul_i32 s7, s7, {16*2560}
    s_lshr_b32 s6, s6, 6
    s_mul_i32 s6, s6, 1280
    s_add_u32 s{sOut}, s6, s7
    s_mul_i32 s7, s{sNb}, 160
    s_add_u32 s{sOut}, s{sOut}, s7
    """)
    a(f"s_cmp_eq_u32 s{sWave}, 0")
    a("s_cbranch_scc0 K2_SGO")
    poll("K2_SPOLL", 0, 1, 12, 64)
    a.label("K2_SGO")
    a("s_barrier")
    gate_load()
    a(f"""
    s_add_u32 s3, s{sTA}, {SEGB}
    s_add_u32 s4, s{sTAp}, {SEGB}
    """)
    for (r1, r2, so) in ((Q1, Q2, sTA), (KF1, KF2, 3), (AKP1, AKP2, 4)):
        a(f"buffer_load_dwordx4 {vr(r1,4)}, v{vGK1}, {sr(SWS,4)}, s{so} offen")
        a(f"buffer_load_dwordx2 {vr(r2,2)}, v{vGK2}, {sr(SWS,4)}, s{so} offen")
    a(f"""
    s_add_u32 s3, s{sTA}, {2*SEGB}
    s_add_u32 s4, s3, 20480
    s_add_u32 s5, s{sTAp}, {2*SEGB+20480}
    s_mov_b32 exec_lo, 0x000fffff
    s_mov_b32 exec_hi, 0x000fffff
    buffer_load_dwordx4 {vr(AV[0],4)}, v{vGV}, {sr(SWS,4)}, s3 offen
    buffer_load_dwordx4 {vr(AV[1],4)}, v{vGV}, {sr(SWS,4)}, s4 offen
    buffer_load_dwordx4 {vr(AV[2],4)}, v{vGV}, {sr(SWS,4)}, s5 offen
    s_mov_b64 exec, -1
    s_waitcnt vmcnt(3)
    s_mov_b32 exec_lo, 0
    v_mov_b32 v{Q2}, 0
    v_mov_b32 v{Q2+1}, 0
    s_mov_b32 exec_lo, -1
    s_nop 1
    """)
    stamp(a, 2)
    for l in qk(AC[0], vr(AC[0], 16)) + qk(AC[1], vr(AC[1], 16), AKP1, AKP2):
        a(l)
    a("s_nop 11")
    aregs = [AC[0] + r for r in range(16)] + [AC[1] + r for r in range(8, 16)]
    maxtree(aregs, vt)
    for r in aregs:
        a(f"v_sub_f32 v{r}, v{r}, v{vt}")
    for r in aregs:
        a(f"v_exp_f32 v{r}, v{r}")
    a("s_waitcnt vmcnt(0)")
    AP = NEGM
    for i in range(12):
        a(f"v_cvt_pk_bf16_f32 v{AP+i}, v{aregs[2*i]}, v{aregs[2*i+1]}")
    a(f"""
    s_nop 1
    v_mfma_f32_32x32x16_bf16 {vr(O,16)}, {vr(AV[0],4)}, {vr(AP,4)}, 0
    v_mfma_f32_32x32x16_bf16 {vr(O,16)}, {vr(AV[1],4)}, {vr(AP+4,4)}, {vr(O,16)}
    v_mfma_f32_32x32x16_bf16 {vr(O,16)}, {vr(AV[2],4)}, {vr(AP+8,4)}, {vr(O,16)}
    s_nop 11
    """)
    store_o(AKP1)
    a(f"""
    v_lshlrev_b32 v{vCn}, 12, v1
    v_mov_b32 v9, 1
    s_and_b32 s7, s2, 31
    s_lshl_b32 s7, s7, 7
    s_add_u32 s7, s7, {CNT_OFF + 8}
    s_waitcnt vmcnt(0)
    s_barrier
    s_cmp_eq_u32 s{sWave}, 0
    s_cbranch_scc0 K2_PNOSIG
    s_mov_b64 exec, 0xff
    buffer_atomic_add v9, v{vCn}, {sr(SWS,4)}, s7 offen sc1
    s_mov_b64 exec, -1
    """)
    a.label("K2_PNOSIG")
    stamp(a, 3)
    for i in range(20):
        a(f"v_mov_b32 v{ACC+i}, 0")
    a(f"s_mov_b32 s{sC}, 0")
    a.label("K2_PROUND")
    a(f"""
    s_and_b32 s3, s{sWave}, 3
    s_lshl_b32 s3, s3, 11
    s_add_u32 s4, s{sWb}, s3
    """)
    for nt in range(5):
        a(f"s_add_u32 m0, s{sLq}, {1024*nt}")
        a(f"s_add_u32 s4, s4, 20480" if nt else "s_nop 0")
        a(f"buffer_load_dwordx4 v{vLn}, {sr(SWS,4)}, s4 offen lds")
        a(f"s_add_u32 m0, s{sLq}, {1024*nt + 5120 - 1024}")
        a("s_nop 0")
        a(f"buffer_load_dwordx4 v{vLn}, {sr(SWS,4)}, s4 offen offset:1024 lds")
    a(f"s_add_u32 s4, s{sWb}, 8192")
    for nt in range(5):
        if nt:
            a("s_add_u32 s4, s4, 20480")
        a(f"buffer_load_dwordx4 {vr(WF+4*nt,4)}, v{vLn}, {sr(SWS,4)}, s4 offen")
        a(f"buffer_load_dwordx4 {vr(WF+20+4*nt,4)}, v{vLn}, {sr(SWS,4)}, s4 offen offset:1024")
    a(f"""
    s_cmp_eq_u32 s{sWave}, 0
    s_cbranch_scc0 K2_PGO
    s_cmp_lg_u32 s{sC}, 0
    s_cbranch_scc1 K2_PWB
    """)
    poll("K2_POLLA", 2, 8, 12, 8192)
    a("s_branch K2_PGO")
    a.label("K2_PWB")
    poll("K2_POLLE", 0, 2, int(os.environ.get('K2SLEEP2', '48')), 2048)
    poll("K2_POLLB", 1, 32, int(os.environ.get('K2SLEEP1', '4')), 16384)
    a.label("K2_PGO")
    a("s_waitcnt vmcnt(0)")
    a("s_barrier")
    if STAMP:
        a("s_memtime s[86:87]")
        a("s_waitcnt lgkmcnt(0)")
        a(f"s_cmp_eq_u32 s{sC}, 0")
        a("s_cselect_b32 s74, s86, s74")
        a("s_cselect_b32 s78, s78, s86")
    ROT = False

    def ksreg(i, dst, mul):
        if ROT:
            a(f"s_add_u32 s{dst}, s{sNb}, {i}")
            a(f"s_and_b32 s{dst}, s{dst}, 7")
            a(f"s_mul_i32 s{dst}, s{dst}, {mul}")
        else:
            a(f"s_mov_b32 s{dst}, {i * mul}")
    iss = [0, 1, 8, 9, 2, 3, 4, 5, 6, 7] if ROT else [8, 9, 0, 1, 2, 3, 4, 5, 6, 7]
    con = [8, 9, 0, 1, 2, 3, 4, 5, 6, 7]
    a(f"s_add_u32 s4, s{sOb}, 8192")
    for st in iss:
        if st < 8:
            ksreg(st, 3, 1024)
            a(f"s_add_u32 s3, s3, s{sOb}")
            a(f"buffer_load_dwordx4 {vr(OF+4*st,4)}, v{vLn}, {sr(SWS,4)}, s3 offen sc1")
        else:
            a(f"buffer_load_dwordx4 {vr(OF+4*st,4)}, v{vLn}, {sr(SWS,4)}, s4 offen offset:{(st-8)*1024} sc1")
    retry = []
    a("s_mov_b32 s9, 0x10000")
    for i, st in enumerate(con):
        n = 9 - max(iss.index(x) for x in con[:i + 1])
        a(f"s_waitcnt vmcnt({n})" + (f" lgkmcnt({5 if i < 9 else 0})" if i >= 2 else ""))
        if STAMP and i in (0, 5):
            a("s_memtime s[86:87]")
            a("s_waitcnt lgkmcnt(0)")
            a(f"s_mov_b32 s{81 if i == 0 else 82}, s86")
        a.label(f"K2_PCHK{i}")
        a(f"v_max3_u32 v8, v{OF+4*st}, v{OF+4*st+1}, v{OF+4*st+2}")
        a(f"v_max_u32 v8, v8, v{OF+4*st+3}")
        a("v_cmp_eq_u32 vcc, -1, v8")
        if i + 2 < 10:
            ksreg(con[i + 2], 3, 5120)
            a(f"v_add_u32 v7, s3, v{vW}")
        a(f"s_cbranch_vccnz K2_PRETRY{i}")
        a.label(f"K2_PCONT{i}")
        retry.append((i, st))
        for nt in range(5):
            d = vr(ACC + 4 * nt, 4)
            a(f"v_mfma_f32_16x16x32_bf16 {d}, {vr(WF + (i % 2) * 20 + 4 * nt, 4)}, {vr(OF+4*st,4)}, {d}")
        if i + 2 < 10:
            for nt in range(5):
                a(f"ds_read_b128 {vr(WF + (i % 2) * 20 + 4 * nt, 4)}, v7 offset:{1024*nt}")
    a(f"""
    s_barrier
    s_cmp_lg_u32 s{sC}, 0
    s_cbranch_scc1 K2_PFIN
    s_mov_b32 s{sC}, 1
    s_add_u32 s{sWb}, s{sWb}, {WOF_BR}
    s_add_u32 s{sOb}, s{sOb}, {O_BR}
    """)
    stamp(a, 5)
    a("s_branch K2_PROUND")
    a.label("K2_PFIN")
    stamp(a, 9)
    if STAMP:
        a("s_sub_u32 s80, 0x10000, s9")
        a("s_add_u32 s80, s80, s70")
    a(f"""
    s_and_b32 s3, s{sWave}, 3
    s_mul_i32 s3, s3, 5120
    v_add_u32 v{vW}, s3, v{vLn}
    s_cmp_lt_u32 s{sWave}, 4
    s_cbranch_scc1 K2_PSUM
    """)
    for nt in range(5):
        a(f"ds_write_b128 v{vW}, {vr(ACC+4*nt,4)} offset:{1024*nt}")
    a("s_waitcnt lgkmcnt(0)")
    a("s_barrier")
    a("s_branch K2_DONE")
    a.label("K2_PSUM")
    a("s_barrier")
    for nt in range(5):
        a(f"ds_read_b128 {vr(OF + 4*nt, 4)}, v{vW} offset:{1024*nt}")
    a("s_waitcnt lgkmcnt(0)")
    for i in range(20):
        a(f"v_add_f32 v{ACC+i}, v{ACC+i}, v{OF+i}")
    for pr in range(2):
        b0 = ACC + pr * 8
        b1 = b0 + 4
        a(f"v_cvt_pk_bf16_f32 v{b0}, v{b0}, v{b0+1}")
        a(f"v_cvt_pk_bf16_f32 v{b0+1}, v{b0+2}, v{b0+3}")
        a(f"v_cvt_pk_bf16_f32 v{b0+2}, v{b1}, v{b1+1}")
        a(f"v_cvt_pk_bf16_f32 v{b0+3}, v{b1+2}, v{b1+3}")
        a("s_nop 1")
        a(f"v_permlane16_swap_b32 v{b0}, v{b0+2}")
        a(f"v_permlane16_swap_b32 v{b0+1}, v{b0+3}")
        a("s_nop 0")
        a(f"buffer_store_dwordx4 {vr(b0,4)}, v{vOut}, {sr(SOUT,4)}, s{sOut} offen offset:{pr*64}")
    b0 = ACC + 16
    a(f"v_cvt_pk_bf16_f32 v{b0}, v{b0}, v{b0+1}")
    a(f"v_cvt_pk_bf16_f32 v{b0+1}, v{b0+2}, v{b0+3}")
    a(f"buffer_store_dwordx2 {vr(b0,2)}, v{vOut2}, {sr(SOUT,4)}, s{sOut} offen offset:128")
    a("s_branch K2_DONE")
    for i, st in retry:
        a.label(f"K2_PRETRY{i}")
        a(f"""
        s_sub_u32 s9, s9, 1
        s_cmp_eq_u32 s9, 0
        s_cbranch_scc1 K2_PGIVE{i}
        s_waitcnt vmcnt(0)
        """)
        for st2 in con[i:]:
            a(f"s_add_u32 s5, s{sOb}, {1024*st2}")
            a(f"buffer_load_dwordx4 {vr(OF+4*st2,4)}, v{vLn}, {sr(SWS,4)}, s5 offen sc1")
        a(f"s_waitcnt vmcnt({9-i})")
        a(f"s_branch K2_PCHK{i}")
        a.label(f"K2_PGIVE{i}")
        a("s_mov_b32 s9, 1")
        a(f"s_branch K2_PCONT{i}")
    a.label("CODE_END")
    return kernel_desc(name, NV, NV, 64)


K3_DIST = int(os.environ.get('K3D', '2'))
K3_NS = K3_DIST + 2
K3_LDS = K3_NS * 20480


def gen_k3(a):
    name = "proj_kernel"
    kernel_head(a, name)
    SWS, SOUT = 20, 24
    sWave, sMb, sNb = 16, 17, 18
    sO, sW, sRot, sM0, sOc, sWc = 28, 29, 31, 32, 33, 34
    vL16, vWj, vG, vOut, vOut2 = 2, 3, 7, 8, 9
    ACC = [16, 36]
    OF = 56
    WF = 56 + 16 * (K3_DIST + 1)
    NV = WF + 40
    DIST = K3_DIST
    NO = DIST + 1
    a("s_cmp_ge_u32 s2, 256")
    a("s_cbranch_scc1 K3_END")
    stamp(a, 0); stamp_rt(a, 1)
    a("""
    s_load_dwordx2 s[4:5], s[0:1], 56
    s_load_dwordx2 s[6:7], s[0:1], 72
    v_lshrrev_b32 v9, 6, v0
    v_and_b32 v1, 63, v0
    s_and_b32 s14, s2, 7
    v_readfirstlane_b32 s16, v9
    s_lshr_b32 s15, s2, 3
    s_lshl_b32 s17, s14, 2
    s_and_b32 s3, s15, 3
    s_add_u32 s17, s17, s3
    s_lshr_b32 s18, s15, 2
    v_lshlrev_b32 v2, 4, v1
    """)
    a(f"""
    s_and_b32 s19, s{sNb}, 1
    s_lshr_b32 s{sRot}, s{sNb}, 1
    s_lshl_b32 s3, s{sMb}, 2
    s_add_u32 s3, s3, s{sWave}
    s_mul_i32 s{sO}, s3, 20480
    s_add_u32 s{sO}, s{sO}, {O_OFF}
    s_mul_i32 s{sW}, s{sNb}, {5*20480}
    s_lshl_b32 s14, s{sWave}, 10
    s_add_u32 s{sW}, s{sW}, s14
    s_add_u32 s{sW}, s{sW}, {WOF_OFF}
    s_mov_b32 s{sM0}, s14
    s_mul_i32 s14, s19, {O_BR}
    s_mul_i32 s15, s19, {WOF_BR}
    s_sub_u32 s36, {O_BR}, s14
    s_sub_u32 s37, {WOF_BR}, s15
    s_add_u32 s36, s36, s{sO}
    s_add_u32 s37, s37, s{sW}
    s_add_u32 s{sO}, s{sO}, s14
    s_add_u32 s{sW}, s{sW}, s15
    s_waitcnt lgkmcnt(0)
    """)
    srd(a, SWS, 6, WS_BYTES)
    srd(a, SOUT, 4, 2621440)

    def load_items(g):
        pre = []
        if g == 5:
            pre += [f"s_mov_b32 s{sO}, s36", f"s_mov_b32 s{sW}, s37"]
        pre += [f"s_lshl_b32 s14, s{sRot}, 12",
                f"s_add_u32 s{sOc}, s{sO}, s14",
                f"s_add_u32 s{sWc}, s{sW}, s14",
                f"s_add_u32 s{sRot}, s{sRot}, 1",
                f"s_cmp_ge_u32 s{sRot}, 5",
                f"s_cselect_b32 s{sRot}, 0, s{sRot}"]
        items = []
        for k in range(4):
            items.append([f"buffer_load_dwordx4 {vr(OF + (g % NO) * 16 + 4 * k, 4)}, v{vL16}, {sr(SWS,4)}, s{sOc} offen offset:{1024*k}"])
        for nt in range(5):
            items.append([f"s_add_u32 m0, s{sM0}, {(g % K3_NS) * 20480 + nt * 4096}",
                          f"s_add_u32 s{sWc}, s{sWc}, 20480" if nt else "s_nop 0",
                          f"buffer_load_dwordx4 v{vL16}, {sr(SWS,4)}, s{sWc} offen lds"])
        items[0] = pre + items[0]
        return items

    def loads(g):
        for it in load_items(g):
            for l in it:
                a(l)

    if 'k3_wfirst' in EXP and DIST == 2:
        i0 = load_items(0)
        pre0, o0first = i0[0][:-1], i0[0][-1]
        for l in pre0: a(l)
        a(f"s_mov_b32 s40, s{sOc}")
        for it in i0[4:]:
            for l in it: a(l)
        for l in [o0first] + [it[0] for it in i0[1:4]]:
            a(l)
        i1 = load_items(1)
        for it in i1:
            for l in it: a(l)
    else:
        for g in range(DIST):
            loads(g)
    a(f"""
    v_and_b32 v9, 15, v1
    v_lshlrev_b32 v10, 2, v9
    s_lshl_b32 s14, s3, 6
    s_add_u32 s35, s14, {G_OFF}
    v_lshrrev_b32 v11, 4, v1
    v_mul_u32_u24 v12, 2560, v9
    v_and_b32 v13, 1, v11
    v_lshlrev_b32 v13, 5, v13
    v_lshrrev_b32 v14, 1, v11
    v_lshlrev_b32 v14, 4, v14
    v_add3_u32 v{vOut}, v12, v13, v14
    v_lshl_add_u32 v{vOut2}, v11, 3, v12
    v_add_u32 v{vWj}, 40960, v{vL16}
    v_add_u32 v{vWj+1}, 81920, v{vL16}
    s_and_b32 s14, s3, 63
    s_mul_i32 s14, s14, {16*2560}
    s_lshr_b32 s15, s3, 6
    s_mul_i32 s15, s15, 1280
    s_add_u32 s30, s14, s15
    s_mul_i32 s15, s{sNb}, 160
    s_add_u32 s30, s30, s15
    """)

    def wread(g, k):
        slot = g % K3_NS
        base, off = ((vL16, vWj, vWj + 1)[slot // 2], (slot % 2) * 20480)
        return [f"ds_read_b128 {vr(WF + (k % 2) * 20 + 4 * nt, 4)}, v{base} offset:{off + nt*4096 + k*1024}" for nt in range(5)]

    for g in range(10):
        if g == 0: stamp(a, 2)
        n_after = 9 * (min(10, g + DIST) - 1 - g) + (1 if g == 9 else 0)
        a(f"s_waitcnt vmcnt({n_after})")
        a("s_barrier")
        if g == 0: stamp(a, 3)
        for l in wread(g, 0):
            a(l)
        items = load_items(g + DIST) if g + DIST < 10 else []
        if g == 8:
            items = [[f"buffer_load_dword v{vG}, v10, {sr(SWS,4)}, s35 offen"]]
        if items:
            for l in items.pop(0):
                a(l)
        acc = ACC[g // 5]
        for k in range(4):
            if k < 3:
                for l in wread(g, k + 1):
                    a(l)
                a("s_waitcnt lgkmcnt(5)")
            else:
                a("s_waitcnt lgkmcnt(0)")
            for nt in range(5):
                d = vr(acc + 4 * nt, 4)
                c = "0" if (g % 5 == 0 and k == 0) else d
                a(f"v_mfma_f32_16x16x32_bf16 {d}, {vr(WF + (k % 2) * 20 + 4 * nt, 4)}, {vr(OF + (g % NO) * 16 + 4 * k, 4)}, {c}")
                if nt in (1, 3) and items:
                    for l in items.pop(0):
                        a(l)
        assert not items
    stamp(a, 4)
    a(f"""
    s_waitcnt vmcnt(0)
    v_sub_f32 v10, 1.0, v{vG}
    s_cmp_eq_u32 s19, 0
    s_cselect_b64 s[38:39], -1, 0
    v_cndmask_b32 v11, v10, v{vG}, s[38:39]
    v_cndmask_b32 v10, v{vG}, v10, s[38:39]
    """)
    A0, A1 = ACC
    for i in range(20):
        a(f"v_mul_f32 v{A0+i}, v{A0+i}, v11")
    for i in range(20):
        a(f"v_fma_f32 v{A0+i}, v{A1+i}, v10, v{A0+i}")
    for pr in range(2):
        b0 = A0 + pr * 8
        b1 = b0 + 4
        a(f"v_cvt_pk_bf16_f32 v{b0}, v{b0}, v{b0+1}")
        a(f"v_cvt_pk_bf16_f32 v{b0+1}, v{b0+2}, v{b0+3}")
        a(f"v_cvt_pk_bf16_f32 v{b0+2}, v{b1}, v{b1+1}")
        a(f"v_cvt_pk_bf16_f32 v{b0+3}, v{b1+2}, v{b1+3}")
        a("s_nop 1")
        a(f"v_permlane16_swap_b32 v{b0}, v{b0+2}")
        a(f"v_permlane16_swap_b32 v{b0+1}, v{b0+3}")
        a("s_nop 0")
        a(f"buffer_store_dwordx4 {vr(b0,4)}, v{vOut}, {sr(SOUT,4)}, s30 offen offset:{pr*64}")
    b0 = A0 + 16
    a(f"v_cvt_pk_bf16_f32 v{b0}, v{b0}, v{b0+1}")
    a(f"v_cvt_pk_bf16_f32 v{b0+1}, v{b0+2}, v{b0+3}")
    a(f"buffer_store_dwordx2 {vr(b0,2)}, v{vOut2}, {sr(SOUT,4)}, s30 offen offset:128")
    stamp(a, 5)
    if STAMP: a("s_waitcnt vmcnt(0)")
    stamp(a, 6); stamp_rt(a, 7)
    stamp_flush(a, 2, SWS, sWave, 8, 10)
    a.label("K3_END")
    a("s_endpgm")
    a.label("CODE_END")
    return kernel_desc(name, NV, NV, 44)


def gen_diag(a):
    name = "diag_kernel"
    kernel_head(a, name)
    a("""
    s_cmp_ge_u32 s2, 1
    s_cbranch_scc1 KD_END
    s_load_dwordx4 s[4:7], s[0:1], 64
    s_waitcnt lgkmcnt(0)
    """)
    srd(a, 8, 6, WS_BYTES)
    srd(a, 12, 4, 256)
    a("v_lshlrev_b32 v1, 10, v0")
    a("v_mov_b32 v2, 0")
    for k, waves, idx in ((0, (0, 3), (3, 4)), (1, (0, 15), (3, 5)), (2, (0, 3), (3, 4))):
        for wi, w in enumerate(waves):
            a(f"s_mov_b32 s16, {DBG_OFF + k*(1<<18) + w*64}")
            a("buffer_load_dwordx4 v[4:7], v1, s[8:11], s16 offen")
            a("buffer_load_dwordx4 v[8:11], v1, s[8:11], s16 offen offset:16")
            a("s_waitcnt vmcnt(0)")
            a("v_not_b32 v12, v5")
            a(f"buffer_atomic_umax v12, v2, s[12:15], 0 offen offset:{k*20}")
            a(f"buffer_atomic_umax v11, v2, s[12:15], 0 offen offset:{k*20+4}")
            if wi == 0:
                a(f"v_sub_u32 v12, v{4+idx[0]}, v4")
                a(f"buffer_atomic_add v12, v2, s[12:15], 0 offen offset:{k*20+8}")
                a(f"v_sub_u32 v13, v{4+idx[1]}, v4")
                a(f"buffer_atomic_add v13, v2, s[12:15], 0 offen offset:{k*20+12}")
                a(f"v_sub_u32 v14, v10, v4")
                a(f"buffer_atomic_add v14, v2, s[12:15], 0 offen offset:{k*20+16}")
            a("s_waitcnt vmcnt(0)")
    a.label("KD_END")
    a("s_endpgm")
    return kernel_desc(name, 16, 16, 24)


def main():
    global STAMP
    if "--stamp" in sys.argv:
        STAMP = True
        sys.argv.remove("--stamp")
    ref = open(OUT + ".ref").read().split("\n")
    head = [l for l in ref if l.startswith(";") and "@launch" not in l]
    a = Asm()
    for l in head:
        a.raw(l)
    a.raw(f"; @launch kernel=qkv_kernel grid=(256,1,1) block=(512,1,1) lds={K1_LDS}")
    a.raw(f"; @launch kernel=attn_kernel grid=(512,1,1) block=(512,1,1) lds={K2_LDS}")
    if not FUSE:
        a.raw(f"; @launch kernel=proj_kernel grid=(256,1,1) block=(256,1,1) lds={K3_LDS}")
    if 'diag' in EXP:
        a.raw("; @launch kernel=diag_kernel grid=(1,1,1) block=(256,1,1) lds=0")
    a.raw('.amdgcn_target "amdgcn-amd-amdhsa--gfx950"')
    a.raw(".text")
    d = [gen_k1(a), gen_k2(a)] + ([] if FUSE else [gen_k3(a)]) + ([gen_diag(a)] if 'diag' in EXP else [])
    a.raw('.section .rodata,"a"')
    for x in d:
        a.raw(".p2align 6")
        a.raw(x.rstrip("\n"))
    out = sys.argv[1] if len(sys.argv) > 1 else OUT
    open(out, "w").write(a.text())
    print("wrote", out, len(a.L), "lines")


if __name__ == "__main__":
    main()
```

```python
import sys, math, struct, os
EXP = os.environ.get('EXP', '').split(',')

NAME = "gated_mix__sliding_local_dilated__mha_block__prompt"
OUT = f"cdna_kernels/{NAME}.s"

SEGB = 2621440
TB = 40960
O_OFF = 16 << 20
O_BR = 2621440
WOF_OFF = 24 << 20
WOF_BR = 819200
G_OFF = 28 << 20
CNT_OFF = G_OFF + 65536
WS_BYTES = 32 << 20
QSCALE = (20 ** -0.5) * math.log2(math.e)


def f32(x):
    return "0x%08x" % struct.unpack("<I", struct.pack("<f", x))[0]


def pi5(i):
    return (i & ~12) | ((i & 4) << 1) | ((i & 8) >> 1)


class Asm:
    def __init__(self):
        self.L = []

    def __call__(self, s):
        for l in s.strip("\n").split("\n"):
            self.L.append("    " + l.strip())

    def label(self, l):
        self.L.append(l + ":")

    def raw(self, s):
        self.L.append(s)

    def text(self):
        return "\n".join(self.L) + "\n"


def vr(b, n=1, p="v"):
    return f"{p}{b}" if n == 1 else f"{p}[{b}:{b+n-1}]"


def ar(b, n=1):
    return vr(b, n, "a")


def sr(b, n=1):
    return vr(b, n, "s")


STAMP = False
K2STF = ' sc1' if 'k2_sc1' in EXP else ''
DBG_OFF = 30 << 20


def stamp(a, idx, sbase=70):
    if not STAMP:
        return
    a(f"s_memtime s[{sbase+16}:{sbase+17}]")
    a("s_waitcnt lgkmcnt(0)")
    a(f"s_mov_b32 s{sbase+idx}, s{sbase+16}")


def stamp_rt(a, idx, sbase=70):
    if not STAMP:
        return
    a(f"s_memrealtime s[{sbase+16}:{sbase+17}]")
    a("s_waitcnt lgkmcnt(0)")
    a(f"s_mov_b32 s{sbase+idx}, s{sbase+16}")


def stamp_flush(a, kidx, srd_ws, swave, n, vtmp, sbase=70, shift=4):
    if not STAMP:
        return
    a("s_mov_b64 exec, -1")
    a(f"s_lshl_b32 s{sbase+16}, s2, {shift}")
    a(f"s_add_u32 s{sbase+16}, s{sbase+16}, s{swave}")
    a(f"s_lshl_b32 s{sbase+16}, s{sbase+16}, 6")
    a(f"s_add_u32 s{sbase+16}, s{sbase+16}, {DBG_OFF + kidx*(1<<18)}")
    a(f"v_mov_b32 v{vtmp+1}, 0")
    for i in range(n):
        a(f"v_mov_b32 v{vtmp}, s{sbase+i}")
        a(f"buffer_store_dword v{vtmp}, v{vtmp+1}, s[{srd_ws}:{srd_ws+3}], s{sbase+16} offen offset:{4*i}")


def kernel_head(a, name):
    a.raw(f".globl {name}")
    a.raw(".p2align 8")
    a.raw(f".type {name},@function")
    a.label(name)


def kernel_desc(name, vgpr_total, accum, sgpr):
    return f""".amdhsa_kernel {name}
  .amdhsa_next_free_vgpr {vgpr_total}
  .amdhsa_next_free_sgpr {96 if STAMP else sgpr}
  .amdhsa_accum_offset {accum}
  .amdhsa_group_segment_fixed_size 0
  .amdhsa_kernarg_size 80
  .amdhsa_user_sgpr_count 2
  .amdhsa_user_sgpr_kernarg_segment_ptr 1
  .amdhsa_system_sgpr_workgroup_id_x 1
.end_amdhsa_kernel
"""


WS_BASE = int(os.environ.get('WSBASE', '0')) << 20


def srd(a, d, base, nbytes):
    if nbytes == WS_BYTES and WS_BASE:
        a(f"s_add_u32 s{d}, s{base}, {WS_BASE}")
        a(f"s_addc_u32 s{d+1}, s{base+1}, 0")
    else:
        a(f"s_mov_b32 s{d}, s{base}")
        a(f"s_mov_b32 s{d+1}, s{base+1}")
    a(f"s_mov_b32 s{d+2}, {nbytes}")
    a(f"s_mov_b32 s{d+3}, 0x00020000")


G_WST = 8704
G_ST = G_WST + 8192


def gen_gemm(a, pfx, br, NS, sJ, done_label, stf, kidx, pairx=False):
    SX, SW, SR = 20, 24, 28
    sWave = 19
    a(f"""
    s_mul_i32 s12, s{sJ}, 1093
    s_lshr_b32 s12, s12, 16
    s_mul_i32 s13, s12, 60
    s_sub_u32 s13, s{sJ}, s13
    s_lshr_b32 s17, s13, 2
    s_and_b32 s13, s13, 3
    s_lshl_b32 s12, s12, 2
    s_add_u32 s16, s12, s13
    s_lshr_b32 s14, s16, 3
    s_and_b32 s15, s16, 7
    s_cmp_ge_u32 s{sWave}, 4
    s_cbranch_scc0 {pfx}_COMPUTE
    """)
    vW, vXg = 8, 10
    sWo, sXo, sWl, sXl, sWc, sXc, sOrd = 32, 33, 34, 35, 36, 37, 38
    K1_D = int(os.environ.get('K1D', '2'))
    ORD = []
    for g in range(4):
        o = list(range(10))
        for b in range(10):
            if b % 4 == g and K1_D:
                p = o.index(b)
                o.pop(p)
                o.insert(max(0, p - K1_D), b)
        ORD.append(sum(b << (4 * i) for i, b in enumerate(o)))
    a(f"""
    v_lshrrev_b32 v4, 4, v1
    v_and_b32 v3, 15, v1
    v_mul_u32_u24 v5, {4*3840}, v4
    v_lshl_add_u32 v{vW}, v3, 4, v5
    v_add_u32 v{vW+1}, {3840-1088}, v{vW}
    v_lshrrev_b32 v5, 2, v1
    v_and_b32 v6, 3, v1
    v_xor_b32 v6, v6, v4
    v_mul_u32_u24 v5, 2560, v5
    v_lshl_add_u32 v{vXg}, v6, 4, v5
    v_add_u32 v{vXg+1}, {16*2560-1024}, v{vXg}
    s_and_b32 s3, s{sWave}, 3
    s_lshr_b32 s12, s3, 1
    s_lshl_b32 s12, s12, 4
    s_and_b32 s18, s3, 1
    s_lshl_b32 s18, s18, 1
    s_add_u32 s12, s12, s18
    s_mul_i32 s{sWo}, s12, 3840
    s_lshl_b32 s12, s17, 8
    s_add_u32 s{sWo}, s{sWo}, s12
    s_mul_i32 s{sWl}, s3, {2*1088}
    s_lshl_b32 s{sXl}, s3, 11
    s_add_u32 s{sXl}, s{sXl}, {G_WST}
    s_lshl_b32 s12, s15, 2
    s_add_u32 s12, s12, s3
    s_mul_i32 s{sXo}, s12, {32*2560}
    s_mul_i32 s12, s14, 1280
    s_add_u32 s{sXo}, s{sXo}, s12
    s_add_u32 s3, s13, s17
    s_and_b32 s3, s3, 3
    s_mov_b32 s{sOrd}, {ORD[0] & 0xffffffff}
    s_mov_b32 s{sOrd+1}, {ORD[0] >> 32}
    s_cmp_eq_u32 s3, 1
    s_cselect_b32 s{sOrd}, {ORD[1] & 0xffffffff}, s{sOrd}
    s_cselect_b32 s{sOrd+1}, {ORD[1] >> 32}, s{sOrd+1}
    s_cmp_eq_u32 s3, 2
    s_cselect_b32 s{sOrd}, {ORD[2] & 0xffffffff}, s{sOrd}
    s_cselect_b32 s{sOrd+1}, {ORD[2] >> 32}, s{sOrd+1}
    s_cmp_eq_u32 s3, 3
    s_cselect_b32 s{sOrd}, {ORD[3] & 0xffffffff}, s{sOrd}
    s_cselect_b32 s{sOrd+1}, {ORD[3] >> 32}, s{sOrd+1}
    s_waitcnt lgkmcnt(0)
    """)
    srd(a, SX, 4, 2621440)
    srd(a, SW, 6, 2457600)
    srd(a, SR, 10, WS_BYTES)

    hist = []

    def xload(k):
        a(f"s_add_u32 m0, s{sXl}, {(k % NS) * G_ST}")
        a(f"s_add_u32 s{sXc}, s{sXc}, s{sXo}" if k % 2 == 0 else f"s_add_u32 s{sXc}, s{sXc}, 64")
        for q in range(2):
            a(f"buffer_load_dwordx4 v{vXg+q}, {sr(SX,4)}, s{sXc} offen offset:{1024*q} lds")
        hist.append(("X", k))

    def stage_loads(k):
        if k % 2 == 0:
            j = k // 2
            a(f"s_bfe_u32 s3, s{sOrd + j // 8}, {(4 << 16) | (4 * (j % 8))}")
            a(f"s_mul_i32 s{sWc}, s3, {2*122880}")
            a(f"s_lshl_b32 s{sXc}, s3, 7")
            xload(k)
            if pairx:
                xload(k + 1)
        elif not pairx:
            xload(k)
        a(f"s_add_u32 m0, s{sWl}, {(k % NS) * G_ST}")
        a(f"s_add_u32 s{sWc}, s{sWc}, s{sWo}" if k % 2 == 0 else f"s_add_u32 s{sWc}, s{sWc}, 122880")
        for i in range(2):
            a(f"buffer_load_dwordx4 v{vW+i}, {sr(SW,4)}, s{sWc} offen offset:{1088*i} lds")
        hist.append(("W", k))

    issued = [0]

    def issue(step, nmax):
        n = 0
        while issued[0] < 20 and n < nmax and (issued[0] + (1 if pairx and issued[0] % 2 == 0 else 0)) - NS <= step - 1:
            stage_loads(issued[0])
            issued[0] += 1
            n += 1

    def need(ks):
        a(f"s_waitcnt vmcnt({2 * (len(hist) - 1 - hist.index(('W', ks)))})")
        a("s_barrier")

    RAMP = [int(c) for c in os.environ.get('GRAMP', '3122')]
    issue(-2, RAMP[0])
    stamp(a, 2)
    need(0)
    stamp(a, 3)
    issue(-1, RAMP[1])
    for ks in range(19):
        need(ks + 1)
        if ks % 2 == 1 and ks <= 15: stamp(a, 8 + ks // 2)
        issue(ks, RAMP[ks + 2] if ks + 2 < len(RAMP) else RAMP[-1])
    assert issued[0] == 20
    a("s_barrier")
    stamp(a, 4); stamp(a, 5)
    a(f"s_branch {done_label}")

    a.label(f"{pfx}_COMPUTE")
    ACC = 16
    WFR = 80
    XFR = [96, 112]
    vTr0, vTr, vXr0, vXr, vSt = 8, 9, 10, 12, 14
    sRd, sIt, sSt, sSeg = 32, 34, 36, 35
    a(f"""
    v_bfe_u32 v3, v1, 2, 2
    v_mul_u32_u24 v3, 1088, v3
    v_lshrrev_b32 v4, 5, v1
    v_lshl_add_u32 v3, v4, 9, v3
    v_bfe_u32 v5, v1, 4, 1
    v_lshl_add_u32 v3, v5, 5, v3
    v_and_b32 v5, 3, v1
    v_lshl_add_u32 v3, v5, 3, v3
    s_and_b32 s12, s{sWave}, 1
    s_lshl_b32 s3, s12, 7
    v_add_u32 v{vTr0}, s3, v3
    v_and_b32 v5, 19, v1
    v_bfe_u32 v6, v1, 2, 1
    v_lshl_or_b32 v5, v6, 3, v5
    v_bfe_u32 v6, v1, 3, 1
    v_lshl_or_b32 v5, v6, 2, v5
    v_bfe_u32 v6, v5, 2, 2
    v_xor_b32 v6, v6, v4
    v_lshlrev_b32 v6, 4, v6
    v_lshl_add_u32 v5, v5, 6, v6
    s_lshr_b32 s13, s{sWave}, 1
    s_lshl_b32 s3, s13, 12
    s_add_u32 s3, s3, {G_WST}
    v_add_u32 v{vXr0}, s3, v5
    v_xor_b32 v{vXr0+1}, 32, v{vXr0}
    v_mov_b32 v{vXr}, v{vXr0}
    v_mov_b32 v{vXr+1}, v{vXr0+1}
    v_mov_b32 v{vTr}, v{vTr0}
    s_mov_b32 s{sRd}, {G_ST}
    s_mov_b32 s{sIt}, 0
    s_mul_i32 s{sSeg}, s17, 52
    s_lshr_b32 s{sSeg}, s{sSeg}, 8
    s_mul_i32 s3, s{sSeg}, 5
    s_sub_u32 s17, s17, s3
    s_lshl_b32 s17, s17, 1
    s_add_u32 s17, s17, s12
    s_add_u32 s3, s{sSeg}, {br if isinstance(br, str) else 3*br}
    s_mul_i32 s{sSt}, s3, {SEGB}
    s_lshl_b32 s3, s16, 1
    s_add_u32 s3, s3, s13
    s_mul_i32 s3, s3, {2*TB}
    s_add_u32 s{sSt}, s{sSt}, s3
    s_waitcnt lgkmcnt(0)
    """)
    srd(a, SR, 10, WS_BYTES)
    for i in range(64):
        a(f"v_mov_b32 v{ACC+i}, 0")

    def xreads(fset):
        return [f"ds_read_b128 {vr(XFR[fset] + (mt*2+kk)*4, 4)}, v{vXr+kk} offset:{2048*mt}" for kk in range(2) for mt in range(2)]

    def wreads(nt, kk):
        b = WFR + (nt * 2 + kk) * 4
        return [f"ds_read_b64_tr_b16 {vr(b + 2*s, 2)}, v{vTr} offset:{kk*4352 + s*256 + nt*64}" for s in range(2)]

    stamp(a, 2)
    a("s_barrier")
    stamp(a, 3)
    x0 = xreads(0)
    for l in x0[:2] + wreads(0, 0) + x0[2:] + wreads(1, 0) + wreads(0, 1) + wreads(1, 1):
        a(l)
    a(f"s_cmp_eq_u32 s{sSeg}, 2")
    a(f"s_cbranch_scc1 {pfx}_LOOP_N")
    for ori in ("T", "N"):
        a.raw(".p2align 3")
        a.label(f"{pfx}_LOOP_{ori}")
        for s in range(2):
            a(f"v_add_u32 v{vTr}, s{sRd}, v{vTr0}")
            a(f"v_add_u32 v{vXr}, s{sRd}, v{vXr0}")
            a(f"v_add_u32 v{vXr+1}, s{sRd}, v{vXr0+1}")
            a("s_barrier")
            xr = xreads(1 - s)
            rest = [f"s_add_u32 s{sRd}, s{sRd}, {G_ST}",
                    f"s_cmp_ge_u32 s{sRd}, {NS*G_ST}",
                    f"s_cselect_b32 s{sRd}, 0, s{sRd}"]
            if s == 1:
                rest += [f"s_add_u32 s{sIt}, s{sIt}, 1", f"s_cmp_lt_u32 s{sIt}, 10"]
            idx = 0
            for kk in range(2):
                for nt in range(2):
                    for mt in range(2):
                        acc = vr(ACC + (nt * 2 + mt) * 16, 16)
                        w = vr(WFR + (nt * 2 + kk) * 4, 4)
                        x = vr(XFR[s] + (mt * 2 + kk) * 4, 4)
                        if mt == 0:
                            a(f"s_waitcnt lgkmcnt({8 if kk == 0 else 10})")
                        if ori == "T":
                            a(f"v_mfma_f32_32x32x16_bf16 {acc}, {w}, {x}, {acc}")
                        else:
                            a(f"v_mfma_f32_32x32x16_bf16 {acc}, {x}, {w}, {acc}")
                        if mt == 0:
                            if idx < 2:
                                a(xr[2 * idx]); a(xr[2 * idx + 1])
                            else:
                                for l in (rest[:3] if idx == 2 else rest[3:]):
                                    a(l)
                            idx += 1
                        else:
                            for l in wreads(nt, kk):
                                a(l)
        a(f"s_cbranch_scc1 {pfx}_LOOP_{ori}")
        stamp(a, 4)
        if ori == "T":
            a(f"""
            s_lshl_b32 s3, s17, 12
            s_add_u32 s{sSt}, s{sSt}, s3
            s_add_u32 s{sSt+1}, s{sSt}, {TB}
            s_cmp_eq_u32 s{sSeg}, 0
            s_cselect_b32 s40, {f32(QSCALE)}, 1.0
            s_mov_b32 s41, s40
            v_lshlrev_b32 v{vSt}, 4, v1
            s_nop 7
            """)
        else:
            a(f"""
            s_lshl_b32 s3, s17, 10
            s_add_u32 s{sSt}, s{sSt}, s3
            s_add_u32 s{sSt+1}, s{sSt}, {TB}
            s_add_u32 s{sSt+2}, s{sSt}, 20480
            s_add_u32 s{sSt+3}, s{sSt+1}, 20480
            v_mul_u32_u24 v5, 10240, v4
            v_and_b32 v6, 31, v1
            v_lshl_add_u32 v{vSt}, v6, 4, v5
            s_nop 7
            """)
        for nt in range(2):
            for mt in range(2):
                for jp in range(2):
                    b0 = ACC + (nt * 2 + mt) * 16 + 8 * jp
                    if ori == "T":
                        for i in range(4):
                            a(f"v_pk_mul_f32 {vr(b0+2*i,2)}, {vr(b0+2*i,2)}, s[40:41]")
                    for i in range(4):
                        a(f"v_cvt_pk_bf16_f32 v{b0+i}, v{b0+2*i}, v{b0+2*i+1}")
                    if ori == "T":
                        a("s_nop 1")
                        a(f"v_permlane32_swap_b32 v{b0}, v{b0+2}")
                        a(f"v_permlane32_swap_b32 v{b0+1}, v{b0+3}")
                        a("s_nop 0")
                        a(f"buffer_store_dwordx4 {vr(b0,4)}, v{vSt}, {sr(SR,4)}, s{sSt + mt} offen offset:{nt*2048 + jp*1024}{stf}")
                    else:
                        a(f"buffer_store_dwordx4 {vr(b0,4)}, v{vSt}, {sr(SR,4)}, s{sSt + mt + 2*jp} offen offset:{nt*512}{stf}")
        stamp(a, 5)
        a(f"s_branch {done_label}")


K1_WST = 16896
K1_NSW = 6 if 'k1_nsw6' in EXP else 5
K1_NSX = 3
K1_XB = K1_WST * K1_NSW
K1_LDS = K1_XB + K1_NSX * 16384


STF = '' if 'k1_plain' in EXP else (' nt' if 'k1_nt' in EXP else (' sc1 nt' if 'k1_sc1nt' in EXP else (' sc0 sc1 nt' if 'k1_all' in EXP else ' sc1')))


def gate_rows(a, n, SX, SGW, SR, sRow, sDst, GW, GX, GA, vL4, vZ):
    for i in range(5):
        a(f"buffer_load_dword v{GW+i}, v{vL4}, {sr(SGW,4)}, 0 offen offset:{256*i}")
    for r in range(n):
        for i in range(5):
            a(f"buffer_load_dword v{GX+5*r+i}, v{vL4}, {sr(SX,4)}, s{sRow} offen offset:{2560*r + 256*i}")
    a("s_waitcnt vmcnt(0)")
    for i in range(5):
        for r in range(n):
            a(f"v_dot2_f32_bf16 v{GA+r}, v{GX+5*r+i}, v{GW+i}, {'0' if i == 0 else 'v%d' % (GA+r)}")
    a("s_nop 3")
    for sh in ("row_shr:1 row_mask:0xf bank_mask:0xf bound_ctrl:0", "row_shr:2 row_mask:0xf bank_mask:0xf bound_ctrl:0",
               "row_shr:4 row_mask:0xf bank_mask:0xf bound_ctrl:0", "row_shr:8 row_mask:0xf bank_mask:0xf bound_ctrl:0",
               "row_bcast:15 row_mask:0xa bank_mask:0xf", "row_bcast:31 row_mask:0xc bank_mask:0xf"):
        for r in range(n):
            a(f"v_add_f32_dpp v{GA+r}, v{GA+r}, v{GA+r} {sh}")
        a("s_nop 1")
    for op in (f"v_mul_f32 vR, {f32(-math.log2(math.e))}, vR", "v_exp_f32 vR, vR", "s_nop 0", "v_add_f32 vR, 1.0, vR", "v_rcp_f32 vR, vR"):
        for r in range(n if "vR" in op else 1):
            a(op.replace("vR", f"v{GA+r}"))
    a("s_mov_b32 exec_lo, 0")
    a("s_mov_b32 exec_hi, 0x80000000")
    for r in range(n):
        a(f"buffer_store_dword v{GA+r}, v{vZ}, {sr(SR,4)}, s{sDst} offen offset:{4*r}")
    a("s_mov_b64 exec, -1")


def gen_k1(a):
    name = "qkv_kernel"
    kernel_head(a, name)
    SX, SW, SR = 20, 24, 28
    sWave = 19
    a("s_cmp_ge_u32 s2, 256")
    a("s_cbranch_scc1 K1_END")
    stamp(a, 0); stamp_rt(a, 1)
    a("""
    s_load_dwordx4 s[4:7], s[0:1], 0
    s_load_dwordx2 s[8:9], s[0:1], 32
    s_load_dwordx2 s[10:11], s[0:1], 72
    s_load_dwordx2 s[54:55], s[0:1], 48
    """)
    if 'noct' not in EXP:
        code_touch(a, 31, 30, 52, "K1_CT0", "attn_kernel", lane="v0")
        a.label("K1_CT0")
    a("""
    v_lshrrev_b32 v2, 6, v0
    v_and_b32 v1, 63, v0
    s_and_b32 s12, s2, 7
    v_readfirstlane_b32 s19, v2
    s_cmp_ge_u32 s2, 240
    s_cbranch_scc1 K1_SIDE
    s_lshr_b32 s13, s2, 3
    s_mul_i32 s12, s12, 30
    s_add_u32 s12, s12, s13
    s_cmp_ge_u32 s12, 120
    s_cselect_b32 s14, 1, 0
    s_cselect_b32 s13, 120, 0
    s_sub_u32 s12, s12, s13
    s_and_b32 s15, s12, 7
    s_lshr_b32 s16, s12, 3
    v_and_b32 v3, 15, v1
    v_lshrrev_b32 v4, 4, v1
    """)
    a(f"""
    s_cmp_ge_u32 s{sWave}, 4
    s_cselect_b32 s12, 1, 0
    s_lshr_b32 s12, s{sWave}, s12
    s_and_b32 s12, s12, 1
    s_lshl_b32 s17, s16, 1
    s_add_u32 s17, s17, s12
    s_cmp_ge_u32 s17, 15
    s_cselect_b32 s18, 1, 0
    s_cselect_b32 s13, 15, 0
    s_sub_u32 s17, s17, s13
    s_movk_i32 s60, 3840
    s_mov_b32 s62, 2621440
    s_movk_i32 s63, 128
    s_cmp_ge_u32 s{sWave}, 4
    s_cbranch_scc0 K1_COMPUTE
    """)
    vW, vXg = 8, 12
    sWo, sXo, sWl, sXl, sWc, sXc, sOrd = 32, 33, 34, 35, 36, 37, 38
    K1_D = int(os.environ.get('K1D', '2'))
    ORD = []
    for g in range(4):
        o = list(range(10))
        for b in range(10):
            if b % 4 == g and K1_D:
                p = o.index(b)
                o.pop(p)
                o.insert(max(0, p - K1_D), b)
        ORD.append(sum(b << (4 * i) for i, b in enumerate(o)))
    a(f"""
    v_lshrrev_b32 v5, 1, v4
    v_and_b32 v6, 1, v4
    v_lshlrev_b32 v5, 4, v5
    v_lshl_add_u32 v5, v6, 2, v5
    v_mul_u32_u24 v5, 3840, v5
    v_lshl_add_u32 v{vW}, v3, 4, v5
    v_add_u32 v{vW+1}, 2784, v{vW}
    v_add_u32 v{vW+2}, {2*2784}, v{vW}
    v_add_u32 v{vW+3}, {3*2784}, v{vW}
    v_lshrrev_b32 v5, 3, v1
    v_and_b32 v6, 7, v1
    v_xor_b32 v6, v6, v5
    v_mul_u32_u24 v5, 2560, v5
    v_lshl_add_u32 v{vXg}, v6, 4, v5
    v_add_u32 v{vXg+1}, 19456, v{vXg}
    v_add_u32 v{vXg+2}, {2*19456}, v{vXg}
    v_add_u32 v{vXg+3}, {3*19456}, v{vXg}
    s_and_b32 s13, s{sWave}, 1
    s_mul_i32 s{sWo}, s13, {8*3840}
    s_lshl_b32 s3, s17, 8
    s_add_u32 s{sWo}, s{sWo}, s3
    s_and_b32 s3, s{sWave}, 3
    s_mul_i32 s{sWl}, s3, {4*1056}
    s_lshl_b32 s{sXl}, s3, 12
    s_add_u32 s{sXl}, s{sXl}, {K1_XB}
    s_lshl_b32 s13, s15, 2
    s_add_u32 s13, s13, s3
    s_mul_i32 s{sXo}, s13, {32*2560}
    s_mul_i32 s13, s14, 1280
    s_add_u32 s{sXo}, s{sXo}, s13
    s_add_u32 s3, s15, s16
    s_and_b32 s3, s3, 3
    s_mov_b32 s{sOrd}, {ORD[0] & 0xffffffff}
    s_mov_b32 s{sOrd+1}, {ORD[0] >> 32}
    s_cmp_eq_u32 s3, 1
    s_cselect_b32 s{sOrd}, {ORD[1] & 0xffffffff}, s{sOrd}
    s_cselect_b32 s{sOrd+1}, {ORD[1] >> 32}, s{sOrd+1}
    s_cmp_eq_u32 s3, 2
    s_cselect_b32 s{sOrd}, {ORD[2] & 0xffffffff}, s{sOrd}
    s_cselect_b32 s{sOrd+1}, {ORD[2] >> 32}, s{sOrd+1}
    s_cmp_eq_u32 s3, 3
    s_cselect_b32 s{sOrd}, {ORD[3] & 0xffffffff}, s{sOrd}
    s_cselect_b32 s{sOrd+1}, {ORD[3] >> 32}, s{sOrd+1}
    s_cmp_eq_u32 s18, 0
    s_waitcnt lgkmcnt(0)
    s_cselect_b64 s[6:7], s[6:7], s[8:9]
    """)
    srd(a, SX, 4, 2621440)
    srd(a, SW, 6, 2457600)
    if STAMP:
        srd(a, SR, 10, WS_BYTES)
    hist = []

    def blk(j, dst):
        r = sOrd + (j // 8)
        a(f"s_bfe_u32 s{dst}, s{r}, {(4 << 16) | (4 * (j % 8))}")

    def wl(k):
        a(f"s_add_u32 m0, s{sWl}, {(k % K1_NSW) * K1_WST}")
        if k % 2 == 0:
            blk(k // 2, sWc)
            a(f"s_mul_i32 s{sWc}, s{sWc}, {2*122880}")
            a(f"s_add_u32 s{sWc}, s{sWc}, s{sWo}")
        else:
            a(f"s_add_u32 s{sWc}, s{sWc}, 122880")
        for i in range(4):
            a(f"buffer_load_dwordx4 v{vW+i}, {sr(SW,4)}, s{sWc} offen offset:{1056*i} lds")
        hist.append(("W", k))

    def xl(j):
        a(f"s_add_u32 m0, s{sXl}, {(j % K1_NSX) * 16384}")
        blk(j, sXc)
        a(f"s_lshl_b32 s{sXc}, s{sXc}, 7")
        a(f"s_add_u32 s{sXc}, s{sXc}, s{sXo}")
        for q in range(4):
            a(f"buffer_load_dwordx4 v{vXg+q}, {sr(SX,4)}, s{sXc} offen offset:{1024*q} lds")
        hist.append(("X", j))

    def need(ks):
        req = [("W", ks), ("X", ks // 2)]
        last = max(hist.index(r) for r in req)
        a(f"s_waitcnt vmcnt({4 * (len(hist) - 1 - last)})")
        a("s_barrier")

    seq = []
    for j in range(10):
        seq += [("X", j), ("W", 2 * j), ("W", 2 * j + 1)]
    pos = [0]

    def free_at(it):
        t, i = it
        if t == "W":
            return i - K1_NSW
        return 2 * (i - K1_NSX) + 1

    def issue(step, nmax):
        n = 0
        while pos[0] < len(seq) and n < nmax and free_at(seq[pos[0]]) <= step:
            t, i = seq[pos[0]]
            (wl if t == "W" else xl)(i)
            pos[0] += 1
            n += 1
    RAMP = [int(c) for c in os.environ.get('K1RAMP', '32222')]
    issue(-2, RAMP[0])
    stamp(a, 2)
    need(0)
    stamp(a, 3)
    issue(-1, RAMP[1])
    for ks in range(19):
        need(ks + 1)
        if ks % 2 == 1 and ks <= 15: stamp(a, 8 + ks // 2)
        issue(ks, RAMP[ks + 2] if ks + 2 < len(RAMP) else RAMP[-1])
    assert pos[0] == len(seq)
    a("s_barrier")
    stamp(a, 4)
    srd(a, SR, 10, WS_BYTES)
    srd(a, 56, 54, 1280)
    a(f"""
    s_lshl_b32 s3, s15, 7
    s_lshl_b32 s12, s16, 3
    s_add_u32 s3, s3, s12
    s_and_b32 s12, s{sWave}, 3
    s_lshl_b32 s12, s12, 1
    s_add_u32 s3, s3, s12
    s_mul_i32 s40, s3, 2560
    s_mul_i32 s12, s14, 1280
    s_add_u32 s40, s40, s12
    s_lshl_b32 s12, s14, 10
    s_add_u32 s3, s3, s12
    s_lshl_b32 s41, s3, 2
    s_add_u32 s41, s41, {G_OFF}
    v_lshlrev_b32 v2, 2, v1
    v_mov_b32 v3, 0
    """)
    gate_rows(a, 2, SX, 56, SR, 40, 41, 32, 40, 52, 2, 3)
    stamp(a, 5); stamp(a, 6); stamp_rt(a, 7)
    stamp_flush(a, 0, SR, sWave, 16, 2)
    a("s_endpgm")

    a.label("K1_COMPUTE")
    TAIL = 'k1_notail' not in EXP and K1_NSW == 5 and K1_NSX == 3
    ACC = 32
    WFR = [0, 32]
    XFR = [64, 80]
    vTr0, vTr, vXr0, vXr, vSt = 8, 9, 10, 12, 14
    sRd, sXr, sIt, sSt, sSeg = 32, 33, 34, 36, 35
    TOUCH = 'k1_touch' in EXP
    ST, sTo, sTs = 44, 42, 43
    TD = 5
    if TOUCH:
        a(f"""
        v_lshrrev_b32 v5, 1, v1
        v_and_b32 v6, 1, v1
        v_lshlrev_b32 v6, 7, v6
        v_mad_u32_u24 v16, v5, s60, v6
        v_mul_u32_u24 v17, 2560, v1
        s_mul_i32 s{sTo}, s15, {8*3840}
        s_lshl_b32 s3, s17, 8
        s_add_u32 s{sTo}, s{sTo}, s3
        s_add_u32 s{sTo}, s{sTo}, {3*64*3840}
        s_lshl_b32 s3, s15, 3
        s_and_b32 s13, s16, 3
        s_lshl_b32 s13, s13, 1
        s_add_u32 s3, s3, s13
        s_and_b32 s13, s{sWave}, 1
        s_add_u32 s3, s3, s13
        s_mul_i32 s3, s3, {16*2560}
        s_mul_i32 s13, s14, 1280
        s_add_u32 s3, s3, s13
        s_add_u32 s3, s3, {3*128}
        s_cmp_eq_u32 s18, 0
        s_waitcnt lgkmcnt(0)
        s_cselect_b64 s[6:7], s[6:7], s[8:9]
        s_cmp_lt_u32 s{sWave}, 2
        s_cselect_b64 s[{ST}:{ST+1}], s[6:7], s[4:5]
        s_cselect_b32 s{ST+2}, 2457600, s62
        s_mov_b32 s{ST+3}, 0x00020000
        s_cselect_b32 s{sTo}, s{sTo}, s3
        s_cselect_b32 s{sTs}, {64*3840}, s63
        s_cselect_b64 s[50:51], -1, 0
        v_cndmask_b32 v16, v17, v16, s[50:51]
        v_cmp_gt_u32 s[50:51], 16, v1
        v_mov_b32 v17, 0x40000000
        s_nop 0
        v_cndmask_b32 v16, v17, v16, s[50:51]
        """)
        for b in range(3, TD):
            a(f"buffer_load_dword v18, v16, {sr(ST,4)}, s{sTo} offen")
            a(f"s_add_u32 s{sTo}, s{sTo}, s{sTs}")
    a(f"""
    v_and_b32 v5, 1, v4
    v_lshrrev_b32 v6, 2, v3
    v_lshl_add_u32 v5, v5, 2, v6
    v_mul_u32_u24 v5, 1056, v5
    v_lshrrev_b32 v6, 1, v4
    v_lshlrev_b32 v6, 9, v6
    v_and_b32 v7, 3, v3
    v_lshlrev_b32 v7, 3, v7
    v_add3_u32 v5, v5, v6, v7
    s_mul_i32 s3, s12, 8448
    v_add_u32 v{vTr0}, s3, v5
    v_and_b32 v5, 3, v3
    v_bfe_u32 v6, v3, 2, 1
    v_lshl_or_b32 v5, v6, 3, v5
    v_bfe_u32 v6, v3, 3, 1
    v_lshl_or_b32 v5, v6, 2, v5
    v_and_b32 v6, 7, v5
    v_xor_b32 v6, v6, v4
    v_lshlrev_b32 v6, 4, v6
    v_lshl_add_u32 v5, v5, 7, v6
    s_lshr_b32 s13, s{sWave}, 1
    s_lshl_b32 s3, s13, 13
    s_add_u32 s3, s3, {K1_XB}
    v_add_u32 v{vXr0}, s3, v5
    v_xor_b32 v{vXr0+1}, 64, v{vXr0}
    v_mov_b32 v{vXr}, v{vXr0}
    v_mov_b32 v{vXr+1}, v{vXr0+1}
    v_mov_b32 v{vTr}, v{vTr0}
    s_mov_b32 s{sRd}, {K1_WST}
    s_mov_b32 s{sXr}, 16384
    s_mov_b32 s{sIt}, 0
    s_mul_i32 s{sSeg}, s17, 52
    s_lshr_b32 s{sSeg}, s{sSeg}, 8
    s_mul_i32 s3, s{sSeg}, 5
    s_sub_u32 s17, s17, s3
    s_mul_i32 s3, s18, 3
    s_add_u32 s3, s3, s{sSeg}
    s_mul_i32 s{sSt}, s3, {SEGB}
    s_lshl_b32 s3, s14, 4
    s_lshl_b32 s16, s15, 1
    s_add_u32 s3, s3, s16
    s_add_u32 s3, s3, s13
    s_mul_i32 s3, s3, {2*TB}
    s_add_u32 s{sSt}, s{sSt}, s3
    s_waitcnt lgkmcnt(0)
    """)
    srd(a, SR, 10, WS_BYTES)
    PFW = int(os.environ.get('K1PFW', '0'))
    if PFW:
        a(f"""
        v_lshlrev_b32 v16, 7, v1
        v_mul_u32_u24 v17, 10240, v4
        v_lshl_add_u32 v17, v3, 7, v17
        s_cmp_eq_u32 s{sSeg}, 2
        s_cselect_b64 s[46:47], -1, 0
        s_cselect_b32 s3, 11, 13
        s_lshl_b32 s3, s17, s3
        s_add_u32 s42, s{sSt}, s3
        s_add_u32 s43, s42, {TB}
        v_cndmask_b32 v16, v16, v17, s[46:47]
        """)
    for i in range(128):
        a(f"v_mov_b32 v{ACC+i}, 0")

    def reads(fset, kk):
        L = [f"ds_read_b128 {ar(XFR[fset]+4*mt,4)}, v{vXr+kk} offset:{2048*mt}" for mt in range(4)]
        for t in range(8):
            for s in range(2):
                L.append(f"ds_read_b64_tr_b16 {ar(WFR[fset]+4*t+2*s,2)}, v{vTr} offset:{s*256 + t*32}")
        return L

    stamp(a, 2)
    a("s_barrier")
    stamp(a, 3)
    for l in reads(0, 0):
        a(l)
    a(f"s_cmp_eq_u32 s{sSeg}, 2")
    a("s_cbranch_scc1 K1_LOOP_N")
    for ori in ("T", "N"):
        a.raw(".p2align 3")
        a.label(f"K1_LOOP_{ori}")
        for s in range(2):
            fs = s
            rd = reads(1 - fs, 1 - s)
            mf = []
            for t in range(8):
                for mt in range(4):
                    acc = vr(ACC + (t * 4 + mt) * 4, 4)
                    w = ar(WFR[fs] + 4 * t, 4)
                    x = ar(XFR[fs] + 4 * mt, 4)
                    if ori == "T":
                        mf.append(f"v_mfma_f32_16x16x32_bf16 {acc}, {w}, {x}, {acc}")
                    else:
                        mf.append(f"v_mfma_f32_16x16x32_bf16 {acc}, {x}, {w}, {acc}")
            a(f"v_add_u32 v{vTr}, s{sRd}, v{vTr0}")
            rest = [f"s_add_u32 s{sRd}, s{sRd}, {K1_WST}",
                    f"s_cmp_ge_u32 s{sRd}, {K1_XB}",
                    f"s_cselect_b32 s{sRd}, 0, s{sRd}"]
            if s == 0 and PFW:
                rest += [f"s_cmp_eq_u32 s{sIt}, {PFW}",
                         f"s_cselect_b32 s44, s42, 0x40000000",
                         f"s_cselect_b32 s45, s43, 0x40000000",
                         f"buffer_load_dword v18, v16, {sr(SR,4)}, s44 offen",
                         f"buffer_load_dword v19, v16, {sr(SR,4)}, s45 offen"]
            if s == 0 and TOUCH:
                rest += [f"s_cmp_lt_u32 s{sIt}, {10-TD}",
                         f"s_cselect_b32 s{sTo}, s{sTo}, 0x40000000",
                         f"buffer_load_dword v18, v16, {sr(ST,4)}, s{sTo} offen",
                         f"s_add_u32 s{sTo}, s{sTo}, s{sTs}"]
            if s == 1:
                a(f"v_add_u32 v{vXr}, s{sXr}, v{vXr0}")
                rest += [f"v_add_u32 v{vXr+1}, s{sXr}, v{vXr0+1}",
                         f"s_add_u32 s{sXr}, s{sXr}, 16384",
                         f"s_cmp_ge_u32 s{sXr}, {K1_NSX*16384}",
                         f"s_cselect_b32 s{sXr}, 0, s{sXr}",
                         f"s_add_u32 s{sIt}, s{sIt}, 1",
                         f"s_cmp_lt_u32 s{sIt}, {8 if TAIL else 10}"]
            a("s_waitcnt lgkmcnt(0)")
            a("s_barrier")
            fill = rd + rest
            for i in range(32):
                a(mf[i])
                if i < len(fill):
                    a(fill[i])
        a(f"s_cbranch_scc1 K1_LOOP_{ori}")
        stamp(a, 4)
        if ori == "T":
            a(f"""
            s_lshl_b32 s3, s17, 13
            s_add_u32 s{sSt}, s{sSt}, s3
            s_add_u32 s{sSt+1}, s{sSt}, 4096
            s_add_u32 s{sSt+2}, s{sSt}, {TB}
            s_add_u32 s{sSt+3}, s{sSt+1}, {TB}
            s_cmp_eq_u32 s{sSeg}, 0
            s_cselect_b32 s40, {f32(QSCALE)}, 1.0
            s_mov_b32 s41, s40
            v_lshlrev_b32 v{vSt}, 4, v1
            s_nop 3
            """)
        else:
            a(f"""
            s_lshl_b32 s3, s17, 11
            s_add_u32 s{sSt}, s{sSt}, s3
            s_add_u32 s{sSt+2}, s{sSt}, {TB}
            v_mul_u32_u24 v5, 10240, v4
            v_lshl_add_u32 v{vSt}, v3, 4, v5
            s_nop 7
            """)
        def epi(t):
            L = []
            for mp in range(2):
                b0 = ACC + (t * 4 + 2 * mp) * 4
                b1 = b0 + 4
                if ori == "T":
                    for i in range(4):
                        L.append(f"v_pk_mul_f32 {vr(b0+2*i,2)}, {vr(b0+2*i,2)}, s[40:41]")
                L.append(f"v_cvt_pk_bf16_f32 v{b0}, v{b0}, v{b0+1}")
                L.append(f"v_cvt_pk_bf16_f32 v{b0+1}, v{b0+2}, v{b0+3}")
                L.append(f"v_cvt_pk_bf16_f32 v{b0+2}, v{b1}, v{b1+1}")
                L.append(f"v_cvt_pk_bf16_f32 v{b0+3}, v{b1+2}, v{b1+3}")
                L.append("s_nop 1")
                sw = "v_permlane16_swap_b32" if ori == "T" else "v_permlane32_swap_b32"
                L.append(f"{sw} v{b0}, v{b0+2}")
                L.append(f"{sw} v{b0+1}, v{b0+3}")
                L.append("s_nop 0")
                if ori == "T":
                    L.append(f"buffer_store_dwordx4 {vr(b0,4)}, v{vSt}, {sr(SR,4)}, s{sSt + 2*mp + t//4} offen offset:{(t%4)*1024}{STF}")
                else:
                    L.append(f"buffer_store_dwordx4 {vr(b0,4)}, v{vSt}, {sr(SR,4)}, s{sSt + 2*mp} offen offset:{t*256}{STF}")
            return L

        if not TAIL:
            for t in range(8):
                for l in epi(t):
                    a(l)
        else:
            XT = [64, 80, 32, 48]
            a(f"v_add_u32 v{vTr}, {3*K1_WST}, v{vTr0}")
            a("s_waitcnt lgkmcnt(0)")
            for i in range(4):
                a("s_barrier")

            def wt(t):
                L = []
                for k in range(4):
                    base, off = (vTr0, (1 + k) * K1_WST) if k < 2 else (vTr, (k - 2) * K1_WST)
                    for h in range(2):
                        L.append(f"ds_read_b64_tr_b16 {ar((t % 2) * 16 + 4 * k + 2 * h, 2)}, v{base} offset:{off + h*256 + t*32}")
                return L
            for l in wt(0):
                a(l)
            for k, (slot, kk) in enumerate(((2, 1), (0, 0), (0, 1))):
                for mt in range(4):
                    a(f"ds_read_b128 {ar(XT[k+1] + 4*mt, 4)}, v{vXr0+kk} offset:{slot*16384 + 2048*mt}")
            for t in range(9):
                fill = (wt(t + 1) if t + 1 < 8 else ["s_nop 3", "s_nop 3"]) + (epi(t - 1) if t >= 1 else [])
                if t == 8:
                    a("s_nop 7")
                    for l in fill:
                        a(l)
                    break
                n = 0
                for k in range(4):
                    if t == 0:
                        a(f"s_waitcnt lgkmcnt({min(15, 12 - 4*k + min(8, n))})" if k else "s_waitcnt lgkmcnt(12)")
                    elif k == 0:
                        a("s_waitcnt lgkmcnt(0)")
                    for mt in range(4):
                        acc = vr(ACC + (t * 4 + mt) * 4, 4)
                        w = ar((t % 2) * 16 + 4 * k, 4)
                        x = ar(XT[k] + 4 * mt, 4)
                        if ori == "T":
                            a(f"v_mfma_f32_16x16x32_bf16 {acc}, {w}, {x}, {acc}")
                        else:
                            a(f"v_mfma_f32_16x16x32_bf16 {acc}, {x}, {w}, {acc}")
                        for l in fill[n:n + 2]:
                            a(l)
                        n += 2
                for l in fill[n:]:
                    a(l)
        stamp(a, 5)
        if STAMP: a("s_waitcnt vmcnt(0)")
        stamp(a, 6); stamp_rt(a, 7)
        stamp_flush(a, 0, SR, sWave, 8, 2)
        a("s_endpgm")

    a.label("K1_SIDE")
    SGW, SWO = 32, 36
    a(f"""
    s_load_dwordx2 s[46:47], s[0:1], 16
    s_load_dwordx4 s[12:15], s[0:1], 40
    s_sub_u32 s16, s2, 240
    s_lshl_b32 s16, s16, 3
    s_add_u32 s16, s16, s{sWave}
    v_lshlrev_b32 v2, 2, v1
    v_lshlrev_b32 v5, 4, v1
    v_lshrrev_b32 v3, 3, v1
    v_and_b32 v4, 7, v1
    v_mul_u32_u24 v3, 1280, v3
    v_lshl_add_u32 v3, v4, 4, v3
    v_lshrrev_b32 v4, 4, v1
    v_bfe_u32 v6, v1, 2, 2
    v_lshl_add_u32 v4, v4, 3, v6
    v_and_b32 v6, 3, v1
    v_lshlrev_b32 v6, 3, v6
    v_lshl_add_u32 v6, v4, 7, v6
    s_lshl_b32 s40, s{sWave}, 14
    v_add_u32 v6, s40, v6
    v_mov_b32 v4, 0
    s_waitcnt lgkmcnt(0)
    """)
    srd(a, SX, 4, 2621440)
    srd(a, SR, 10, WS_BYTES)
    srd(a, SGW, 14, 1280)
    a(f"""
    v_and_b32 v7, 255, v0
    v_lshlrev_b32 v7, 7, v7
    s_mov_b32 s3, {CNT_OFF}
    v_mov_b32 v24, 0
    v_mov_b32 v25, 0
    v_mov_b32 v26, 0
    v_mov_b32 v27, 0
    buffer_store_dwordx4 v[24:27], v7, {sr(SR,4)}, s3 offen
    """)
    a(f"s_mov_b32 s{SWO+2}, 819200")
    a(f"s_mov_b32 s{SWO+3}, 0x00020000")
    if 'notlb' not in EXP:
        a("s_load_dwordx2 s[50:51], s[0:1], 56")
        a("v_lshlrev_b32 v29, 16, v0")
        a(f"buffer_load_dword v28, v29, {sr(SR,4)}, 0 offen")
        a("s_waitcnt lgkmcnt(0)")
        srd(a, 56, 50, 2621440)
        a("buffer_load_dword v28, v29, s[56:59], 0 offen")
    for i in range(4):
        a(f"""
        s_add_u32 s41, s16, {128*i}
        s_cmp_ge_u32 s41, 200
        s_cselect_b32 s{SWO}, s12, s46
        s_cselect_b32 s{SWO+1}, s13, s47
        s_cselect_b32 s3, 200, 0
        s_cselect_b32 s{42+i}, {WOF_BR}, 0
        s_add_u32 s{42+i}, s{42+i}, {WOF_OFF}
        s_sub_u32 s3, s41, s3
        s_mul_i32 s17, s3, 6554
        s_lshr_b32 s17, s17, 16
        s_mul_i32 s18, s17, 10
        s_sub_u32 s18, s3, s18
        s_lshl_b32 s3, s17, 10
        s_add_u32 s{42+i}, s{42+i}, s3
        s_mul_i32 s3, s18, {4*20480}
        s_add_u32 s{42+i}, s{42+i}, s3
        s_mul_i32 s17, s17, {32*1280}
        s_lshl_b32 s18, s18, 7
        s_add_u32 s17, s17, s18
        s_cmp_ge_u32 s41, 400
        s_cselect_b32 s{42+i}, 0x7f000000, s{42+i}
        s_cselect_b32 s17, 0x7f000000, s17
        """)
        for q in range(4):
            a(f"s_add_u32 m0, s40, {4096*i + 1024*q}")
            a("s_nop 0")
            a(f"buffer_load_dwordx4 v3, {sr(SWO,4)}, s17 offen lds")
            a(f"s_add_u32 s17, s17, {8*1280}")
    for i in range(4):
        a("s_waitcnt vmcnt(12)")
        for nt in range(4):
            b = 72 + (4 * i + nt) * 4
            a(f"ds_read_b64_tr_b16 {vr(b,2)}, v6 offset:{4096*i + 32*nt}")
            a(f"ds_read_b64_tr_b16 {vr(b+2,2)}, v6 offset:{4096*i + 32*nt + 512}")
        a("s_waitcnt lgkmcnt(0)")
        for nt in range(4):
            b = 72 + (4 * i + nt) * 4
            a(f"buffer_store_dwordx4 {vr(b,4)}, v5, {sr(SR,4)}, s{42+i} offen sc1")
            a(f"s_add_u32 s{42+i}, s{42+i}, 20480")
    a(f"""
    s_lshr_b32 s3, s16, 3
    s_lshl_b32 s3, s3, 7
    s_and_b32 s17, s16, 7
    s_add_u32 s3, s3, s17
    s_add_u32 s3, s3, 120
    s_and_b32 s17, s3, 1023
    s_mul_i32 s17, s17, 2560
    s_lshr_b32 s18, s3, 10
    s_mul_i32 s18, s18, 1280
    s_add_u32 s17, s17, s18
    s_lshl_b32 s18, s3, 2
    s_add_u32 s18, s18, {G_OFF}
    """)
    gate_rows(a, 1, SX, SGW, SR, 17, 18, 8, 16, 22, 2, 4)
    if 'noct' not in EXP:
        code_touch(a, 31, 30, 52, "attn_kernel", "CODE_END", lane="v0")
    if STAMP:
        a("s_waitcnt vmcnt(0)")
        for i in range(2, 7):
            stamp(a, i)
        stamp_rt(a, 7)
        stamp_flush(a, 0, SR, sWave, 8, 2)
    a.label("K1_END")
    a("s_endpgm")
    return kernel_desc(name, 256, 160, 64)


VB = 352
K2_TILE = 1536 + 4 * VB
K2_SLOT = 8 * K2_TILE
K2_R = 3
K2_FLAG = K2_SLOT * K2_R + 256
K2_LDS = 81920
FUSE = True


def code_touch(a, vdst, vaddr, stmp, first, last, lane="v1"):
    lab = f"CT_{len(a.L)}"
    a(f"s_getpc_b64 s[{stmp}:{stmp+1}]")
    a.label(lab)
    a(f"s_add_u32 s{stmp}, s{stmp}, {first}-{lab}")
    a(f"s_addc_u32 s{stmp+1}, s{stmp+1}, 0")
    a(f"v_lshlrev_b32 v{vaddr}, 7, {lane}")
    a(f"v_min_u32 v{vaddr}, {last}-{first}-4, v{vaddr}")
    a(f"global_load_dword v{vdst}, v{vaddr}, s[{stmp}:{stmp+1}]")


def gen_k2(a):
    name = "attn_kernel"
    kernel_head(a, name)
    SWS = 28
    sWave, sHead, sT = 19, 17, 18
    sDma, sM0, sSlot, sC, sRedo = 24, 25, 26, 27, 20
    sTA, sO, sTouch = 21, 22, 23
    sTmp = 36
    vK10, vK20, vLV, vK1, vK2, vV, vO = 2, 3, 4, 5, 6, 7, 15
    vt = 8
    Q1, Q2 = 16, 20
    KF1, KF2 = 24, 28
    vD = 22
    vD2 = 30
    vGK1, vGK2 = 31, 112
    vL16, vO2, vGV = 113, 114, 115
    VF = 32
    P = 40
    NEGM = 48
    SB = [64, 80]
    O = 96
    AKP1, AKP2 = 116, 120
    vGt, vCb, vOne, vHint = 122, 123, 124, 125
    sProg, sHint, sBad = 46, 47, 48
    NV = 128
    a("s_cmp_ge_u32 s2, 512")
    a("s_cbranch_scc1 K2_END")
    stamp(a, 0); stamp_rt(a, 1)
    a("""
    s_load_dwordx2 s[10:11], s[0:1], 72
    v_lshrrev_b32 v8, 6, v0
    v_and_b32 v1, 63, v0
    s_and_b32 s14, s2, 7
    v_readfirstlane_b32 s19, v8
    s_cmp_ge_u32 s2, 256
    s_cbranch_scc1 K2_AROLE
    s_setprio 3
    s_lshr_b32 s15, s2, 3
    s_lshl_b32 s17, s14, 2
    s_lshr_b32 s3, s15, 3
    s_add_u32 s17, s17, s3
    s_and_b32 s9, s15, 7
    s_lshl_b32 s9, s9, 3
    s_add_u32 s18, s9, s19
    """)

    def head_addr():
        a(f"""
        v_and_b32 v8, 31, v1
        v_lshrrev_b32 v9, 5, v1
        v_lshlrev_b32 v{vL16}, 4, v1
        s_and_b32 s4, s{sHead}, 1
        s_mul_i32 s5, s{sHead}, 5
        s_lshr_b32 s5, s5, 1
        s_lshl_b32 s5, s5, 9
        s_lshl_b32 s6, s4, 9
        s_cmp_eq_u32 s4, 0
        s_cselect_b32 s7, 1024, 8
        v_add_u32 v{vK10}, s6, v{vL16}
        v_lshl_add_u32 v{vK20}, v8, 4, s7
        v_add_u32 v{vGK1}, s5, v{vK10}
        v_add_u32 v{vGK2}, s5, v{vK20}
        s_mul_i32 s6, s{sHead}, 320
        s_mul_i32 s{sTA}, s{sT}, {TB}
        """)

    def out_addr(br):
        a(f"""
        s_lshl_b32 s5, s4, 2
        v_add_u32 v12, s5, v8
        v_subrev_u32 v13, 20, v12
        v_cmp_gt_u32 s[{sTmp}:{sTmp+1}], 20, v12
        v_cmp_gt_u32 s[{sTmp+2}:{sTmp+3}], 20, v8
        v_and_b32 v10, 3, v8
        v_cndmask_b32 v12, v13, v12, s[{sTmp}:{sTmp+1}]
        v_cndmask_b32 v12, v8, v12, s[{sTmp+2}:{sTmp+3}]
        v_bfe_u32 v11, v8, 2, 1
        v_lshl_or_b32 v10, v11, 3, v10
        v_bfe_u32 v11, v8, 3, 1
        v_lshl_or_b32 v10, v11, 2, v10
        v_lshrrev_b32 v11, 4, v8
        v_lshl_or_b32 v14, v11, 4, v10
        v_lshlrev_b32 v10, 4, v10
        v_mul_u32_u24 v11, 20480, v11
        s_mul_i32 s3, s{sHead}, 5
        s_add_u32 s3, s3, 1
        s_lshr_b32 s3, s3, 1
        s_lshl_b32 s3, s3, 8
        v_add3_u32 v10, v10, v11, s3
        v_lshl_add_u32 v{vO}, v9, 8, v10
        s_mul_i32 s5, s4, 760
        s_sub_u32 s5, 512, s5
        v_add_u32 v{vO2}, s5, v10
        s_add_u32 s{sO}, s{sTA}, {O_OFF + br * O_BR}
        v_lshlrev_b32 v{vGt}, 2, v14
        s_lshl_b32 s{sTouch}, s{sT}, 7
        s_add_u32 s{sTouch}, s{sTouch}, {G_OFF}
        """)

    def gate_load():
        a(f"buffer_load_dword v{vGt}, v{vGt}, {sr(SWS,4)}, s{sTouch} offen")

    head_addr()
    a(f"""
    s_add_u32 s5, s5, {4*SEGB}
    v_add_u32 v{vD}, s5, v{vL16}
    s_add_u32 s7, s6, {5*SEGB - 1024 - 512}
    v_cmp_le_u32 s[{sTmp}:{sTmp+1}], 54, v1
    v_mov_b32 v12, {10240-VB}
    v_add_u32 v13, s7, v{vL16}
    v_cndmask_b32 v12, 0, v12, s[{sTmp}:{sTmp+1}]
    v_add_u32 v13, v13, v12
    v_cmp_le_u32 s[{sTmp}:{sTmp+1}], 32, v1
    v_add_u32 v11, 32, v1
    v_mul_u32_u24 v11, 47, v11
    v_cndmask_b32 v{vD+1}, v{vD}, v13, s[{sTmp}:{sTmp+1}]
    v_lshrrev_b32 v11, 10, v11
    v_mul_u32_u24 v11, {10240-VB}, v11
    s_add_u32 s7, s6, {5*SEGB - 2048 + 512}
    v_add3_u32 v{vD2}, v11, v{vL16}, s7
    s_add_u32 s8, s{sTA}, {3*SEGB}
    s_waitcnt lgkmcnt(0)
    """)
    srd(a, SWS, 10, WS_BYTES)

    m1 = ((1 << 64) - 1) & ~(3 << 52)
    m2 = ((1 << 54) - 1) & ~(3 << 10) & ~(3 << 32)

    def dma_parts():
        return [[f"s_mov_b32 m0, s{sM0}",
                 f"s_add_u32 s{sM0}, s{sM0}, {K2_SLOT}",
                 f"buffer_load_dwordx4 v{vD}, {sr(SWS,4)}, s{sDma} offen lds"],
                [f"s_mov_b32 exec_hi, 0x{m1 >> 32:08x}",
                 f"buffer_load_dwordx4 v{vD+1}, {sr(SWS,4)}, s{sDma} offen offset:1024 lds",
                 "s_mov_b32 exec_hi, -1"],
                [f"s_mov_b32 exec_lo, 0x{m2 & 0xffffffff:08x}",
                 f"s_mov_b32 exec_hi, 0x{m2 >> 32:08x}",
                 f"buffer_load_dwordx4 v{vD2}, {sr(SWS,4)}, s{sDma} offen offset:2048 lds",
                 "s_mov_b64 exec, -1"],
                [f"s_add_u32 s{sDma}, s{sDma}, {8*TB}",
                 f"s_cmp_ge_u32 s{sDma}, {64*TB}",
                 f"s_cselect_b32 s{sDma}, 0x40000000, s{sDma}"],
                [f"s_cmp_ge_u32 s{sM0}, {K2_SLOT*K2_R}",
                 f"s_cselect_b32 s{sTmp}, {K2_SLOT*K2_R}, 0",
                 f"s_sub_u32 s{sM0}, s{sM0}, s{sTmp}"]]

    def dma_chunk():
        for p in dma_parts():
            for l in p:
                a(l)

    def dma_init():
        a(f"s_mul_i32 s{sDma}, s{sWave}, {TB}")
        a(f"s_mul_i32 s{sM0}, s{sWave}, {K2_TILE}")

    def zero_state():
        for r in range(16):
            a(f"v_mov_b32 v{O+r}, 0")
        for r in range(4):
            a(f"v_mov_b32 v{P+4+r}, 0")
            a(f"v_mov_b32 v{VF+4+r}, 0")
        a(f"""
        v_mov_b32 v{vV}, v{vLV}
        v_mov_b32 v{vK1}, v{vK10}
        v_mov_b32 v{vK2}, v{vK20}
        s_mov_b32 s{sSlot}, {K2_SLOT}
        s_mov_b32 s{sC}, 0
        """)

    dma_init()
    dma_chunk()
    a(f"buffer_load_dwordx4 {vr(Q1,4)}, v{vGK1}, {sr(SWS,4)}, s8 offen")
    a(f"buffer_load_dwordx2 {vr(Q2,2)}, v{vGK2}, {sr(SWS,4)}, s8 offen")
    a(f"""
    s_mov_b32 s{sRedo}, 0
    v_mov_b32 v{VF}, 0x3f803f80
    v_mov_b32 v{VF+1}, 0x3f803f80
    v_mov_b32 v{VF+2}, 0x3f803f80
    v_mov_b32 v{VF+3}, 0x3f803f80
    v_bfe_u32 v11, v1, 2, 2
    v_min_u32 v11, {K2_R-1}, v11
    v_mul_u32_u24 v11, {K2_SLOT}, v11
    v_and_b32 v12, 3, v1
    v_mul_u32_u24 v12, {VB}, v12
    s_mul_i32 s3, s{sWave}, {K2_TILE}
    v_add3_u32 v11, v11, v12, s3
    ds_write_b128 v11, {vr(VF,4)} offset:{1536+320}
    v_mov_b32 v12, 0
    v_mov_b32 v13, 0
    ds_write_b64 v11, v[12:13] offset:{1536+336}
    ds_write_b64 v11, v[12:13] offset:{1536+344}
    v_mov_b32 v11, {K2_FLAG}
    ds_write_b32 v11, v12
    """)
    out_addr(1)
    gate_load()
    a(f"""
    v_mul_u32_u24 v11, {VB}, v9
    v_min_u32 v12, 21, v12
    v_lshl_add_u32 v11, v12, 4, v11
    v_add_u32 v{vLV}, 1536, v11
    s_mov_b32 exec_lo, 0
    v_mov_b32 v{vK20}, {1536+336}
    s_mov_b32 exec_lo, -1
    """)
    dma_chunk()
    zero_state()
    a(f"""
    v_mov_b32 v{vCb}, {CNT_OFF}
    v_mov_b32 v{vOne}, 1
    v_mov_b32 v{AKP1}, -1
    v_mov_b32 v{AKP1+1}, -1
    v_mov_b32 v{AKP1+2}, -1
    v_mov_b32 v{AKP1+3}, -1
    s_lshl_b32 s{sProg}, s2, 7
    s_cmp_eq_u32 s{sWave}, 7
    s_cselect_b32 s{sProg}, s{sProg}, 0x40000000
    s_cselect_b32 s{sHint}, 0, 0x40000000
    s_lshl_b32 s3, s9, 4
    s_add_u32 s{sHint}, s{sHint}, s3
    s_add_u32 s{sHint}, s{sHint}, {CNT_OFF + 4}
    v_lshlrev_b32 v{vHint}, 10, v1
    s_waitcnt vmcnt(3) lgkmcnt(0)
    """)
    stamp(a, 2)
    a("s_barrier")

    def maxtree(regs, dst):
        a(f"v_max3_f32 v{dst}, v{regs[0]}, v{regs[1]}, v{regs[2]}")
        i = 3
        while i + 1 < len(regs):
            a(f"v_max3_f32 v{dst}, v{dst}, v{regs[i]}, v{regs[i+1]}")
            i += 2
        if i < len(regs):
            a(f"v_max_f32 v{dst}, v{dst}, v{regs[i]}")
        a(f"v_mov_b32 v{dst+1}, v{dst}")
        a("s_nop 1")
        a(f"v_permlane32_swap_b32 v{dst}, v{dst+1}")
        a("s_nop 1")
        a(f"v_max_f32 v{dst}, v{dst}, v{dst+1}")

    def store_o(D):
        a(f"""
        v_mov_b32 v{vt}, v{O+8}
        v_mov_b32 v{vt+1}, v{O+8}
        s_nop 1
        v_permlane32_swap_b32 v{vt}, v{vt+1}
        s_nop 1
        v_rcp_f32 v{vt}, v{vt+1}
        s_nop 0
        v_mul_f32 v{vt}, v{vt}, v{vGt}
        """)
        for r in range(12):
            a(f"v_mul_f32 v{O+r}, v{O+r}, v{vt}")
        for i in range(6):
            a(f"v_cvt_pk_bf16_f32 v{D+i}, v{O+2*i}, v{O+2*i+1}")
        a(f"v_permlane32_swap_b32 v{D}, v{D+2}")
        a(f"v_permlane32_swap_b32 v{D+1}, v{D+3}")
        a("s_mov_b32 exec_hi, 0")
        a(f"buffer_store_dwordx2 {vr(D+4,2)}, v{vO2}, {sr(SWS,4)}, s{sO} offen sc1")
        a("s_mov_b32 exec_hi, -1")
        a(f"buffer_store_dwordx4 {vr(D,4)}, v{vO}, {sr(SWS,4)}, s{sO} offen sc1")

    def kreads(tile):
        o = tile * K2_TILE
        return [f"ds_read_b128 {vr(KF1,4)}, v{vK1} offset:{o}",
                f"ds_read_b64 {vr(KF2,2)}, v{vK2} offset:{o}"]

    def vread(tile, j):
        return f"ds_read_b128 {vr(VF+4*j,4)}, v{vV} offset:{tile * K2_TILE + 2*VB*j}"

    def qk(sb, c, k1=KF1, k2=KF2):
        return [f"v_mfma_f32_32x32x16_bf16 {vr(sb,16)}, {vr(k1,4)}, {vr(Q1,4)}, {c}",
                f"v_mfma_f32_32x32x8_bf16 {vr(sb,16)}, {vr(k2,2)}, {vr(Q2,2)}, {vr(sb,16)}"]

    stamp(a, 3)
    for l in kreads(0):
        a(l)
    a(f"""
    s_mov_b32 exec_lo, 0
    v_mov_b32 v{Q2}, 0
    v_mov_b32 v{Q2+1}, 0
    s_mov_b32 exec_lo, -1
    v_sub_f32 v{vGt}, 1.0, v{vGt}
    s_waitcnt lgkmcnt(0)
    """)
    for l in qk(SB[0], "0"):
        a(l)
    a("s_nop 11")
    maxtree([SB[0] + r for r in range(16)], vt)
    for r in range(16):
        a(f"v_sub_f32 v{NEGM+r}, 0, v{vt}")
    a.label("K2_HAVE_M")
    a("s_waitcnt lgkmcnt(0)")
    a("s_nop 0")
    for l in qk(SB[0], vr(NEGM, 16)):
        a(l)
    for l in kreads(1):
        a(l)
    a(vread(0, 0))
    a("s_nop 9")
    stamp(a, 4)
    a.raw(".p2align 3")
    a.label("K2_LOOP")
    HI = int(os.environ.get('K2HI', '7'))

    def hint():
        a(f"""
        s_mov_b32 exec_hi, 0
        buffer_atomic_add v{vOne}, v{vHint}, {sr(SWS,4)}, s{sHint} offen sc1
        s_mov_b32 exec_hi, -1
        """)
    PR = os.environ.get('K2PRIO', '3..2.1.0')
    prio = {i: int(c) for i, c in enumerate(PR) if c != '.'}
    for i in range(8):
        cur, nxt = SB[i % 2], SB[1 - i % 2]
        e = [f"v_exp_f32 v{cur+r}, v{cur+r}" for r in range(16)]
        c = [f"v_cvt_pk_bf16_f32 v{P+j}, v{cur+2*j}, v{cur+2*j+1}" for j in range(8)]
        q = qk(nxt, vr(NEGM, 16))
        pv = [f"v_mfma_f32_32x32x16_bf16 {vr(O,16)}, {vr(VF+4*j,4)}, {vr(P+4*j,4)}, {vr(O,16)}" for j in range(2)]
        kr = kreads((i + 2) % 8)
        dp = [[]] * 5
        if i == 6:
            a("s_waitcnt vmcnt(0)")
            a("s_barrier")
            a(f"v_add_u32 v{vK1}, s{sSlot}, v{vK10}")
            a(f"v_add_u32 v{vK2}, s{sSlot}, v{vK20}")
            dp = dma_parts()
        if (i - 6) % 8 in prio:
            a(f"s_setprio {prio[(i - 6) % 8]}")
        if i == 1:
            a(f"""
            s_cmp_eq_u32 s{sC}, {os.environ.get('K2PC', '6')}
            s_cbranch_scc1 K2_SIG
            s_cmp_eq_u32 s{sC}, 0
            s_cbranch_scc0 K2_NOSIG
            s_cmp_lg_u32 s{sRedo}, 0
            s_cbranch_scc1 K2_NOSIG
            s_mov_b32 exec_hi, 0
            buffer_store_dwordx2 {vr(AKP1,2)}, v{vO2}, {sr(SWS,4)}, s{sO} offen sc1
            s_mov_b32 exec_hi, -1
            buffer_store_dwordx4 {vr(AKP1,4)}, v{vO}, {sr(SWS,4)}, s{sO} offen sc1
            """)
            a.label("K2_SIG")
            a(f"""
            s_mov_b64 exec, 1
            buffer_atomic_add v{vOne}, v{vCb}, {sr(SWS,4)}, s{sProg} offen sc1
            s_mov_b64 exec, -1
            """)
            a.label("K2_NOSIG")

        if i == HI:
            a(f"s_cmp_eq_u32 s{sC}, 7")
            a("s_cbranch_scc0 K2_NOHINT")
            hint()
            a.label("K2_NOHINT")

        def em(L):
            for l in L:
                a(l)
        a(e[0]); a(e[1])
        a(pv[1])
        a(vread(i, 1))
        a(e[2]); em(dp[0]); a(e[3]); a(c[0]); a(e[4]); a(c[1])
        a("s_waitcnt lgkmcnt(1)")
        a(q[0])
        a(e[5]); em(dp[1]); a(e[6]); a(e[7]); a(c[2]); a(e[8]); a(c[3])
        a(q[1])
        em(kr)
        a(e[9]); em(dp[2]); a(e[10]); a(e[11]); a(c[4]); a(e[12]); a(c[5])
        if i == 7:
            a(f"v_add_u32 v{vV}, s{sSlot}, v{vLV}")
        a(pv[0])
        a(vread((i + 1) % 8, 0))
        a(e[13]); em(dp[3]); a(e[14]); em(dp[4]); a(e[15]); a(c[6])
        a("s_waitcnt lgkmcnt(3)")
        a(c[7])
        if i == 7:
            a(f"s_add_u32 s{sSlot}, s{sSlot}, {K2_SLOT}")
            a(f"s_cmp_ge_u32 s{sSlot}, {K2_SLOT*K2_R}")
            a(f"s_cselect_b32 s{sSlot}, 0, s{sSlot}")
    a(f"""
    s_add_u32 s{sC}, s{sC}, 1
    s_cmp_lt_u32 s{sC}, 8
    s_cbranch_scc1 K2_LOOP
    v_mfma_f32_32x32x16_bf16 {vr(O,16)}, {vr(VF+4,4)}, {vr(P+4,4)}, {vr(O,16)}
    """)
    if HI >= 8:
        hint()
    a(f"""
    v_mov_b32 v{vt+3}, {K2_FLAG}
    s_mov_b32 s3, {f32(2.0**100)}
    s_waitcnt lgkmcnt(0)
    s_nop 9
    """)
    stamp(a, 5)
    a(f"v_mov_b32 v{vt+2}, v{O+8}")
    a("s_mov_b32 exec_hi, 0")
    a(f"v_mul_f32 v{vt+2}, 0, v{O+8}")
    for r in range(9, 12):
        a(f"v_fma_f32 v{vt+2}, v{O+r}, 0, v{vt+2}")
    a("s_mov_b32 exec_hi, -1")
    for r in range(8):
        a(f"v_fma_f32 v{vt+2}, v{O+r}, 0, v{vt+2}")
    a(f"v_cmp_nlt_f32 s[{sTmp}:{sTmp+1}], v{vt+2}, s3")
    a(f"""
    s_nop 3
    s_cmp_eq_u32 s{sRedo}, 0
    s_cbranch_scc1 K2_FIRST
    s_cmp_eq_u32 s{sBad}, 0
    s_cbranch_scc1 K2_NOFLAG
    s_branch K2_GOOD
    """)
    a.label("K2_FIRST")
    a(f"""
    s_cmp_eq_u64 s[{sTmp}:{sTmp+1}], 0
    s_cselect_b32 s{sBad}, 0, 1
    s_cbranch_scc1 K2_GOOD
    ds_write_b32 v{vt+3}, v{vOne}
    s_branch K2_NOFLAG
    """)
    a.label("K2_GOOD")
    store_o(P)
    a.label("K2_NOFLAG")
    a(f"""
    s_waitcnt lgkmcnt(0)
    s_barrier
    ds_read_b32 v{vt+2}, v{vt+3}
    s_waitcnt lgkmcnt(0)
    v_readfirstlane_b32 s3, v{vt+2}
    s_nop 3
    s_cmp_gt_u32 s3, s{sRedo}
    s_cbranch_scc1 K2_FALLBACK
    """)
    a.label("K2_DONE")
    if STAMP: a("s_waitcnt vmcnt(0)")
    stamp(a, 6); stamp_rt(a, 7)
    stamp_flush(a, 1, SWS, sWave, 16, 8, shift=3)
    a.label("K2_END")
    a("s_endpgm")

    a.label("K2_FALLBACK")
    a(f"""
    s_mov_b32 s{sRedo}, 1
    s_mov_b32 s3, {4*SEGB}
    v_mov_b32 v{vt+2}, 0xff800000
    s_waitcnt vmcnt(0)
    """)
    dma_init()
    dma_chunk()
    dma_chunk()
    a.label("K2_MAXLOOP")
    a(f"""
    buffer_load_dwordx4 {vr(KF1,4)}, v{vGK1}, {sr(SWS,4)}, s3 offen
    buffer_load_dwordx2 {vr(KF2,2)}, v{vGK2}, {sr(SWS,4)}, s3 offen
    s_waitcnt vmcnt(0)
    """)
    for l in qk(SB[0], "0"):
        a(l)
    a("s_nop 15")
    for r in range(0, 16, 2):
        a(f"v_max3_f32 v{vt+2}, v{vt+2}, v{SB[0]+r}, v{SB[0]+r+1}")
    a(f"""
    s_add_u32 s3, s3, {TB}
    s_cmp_lt_u32 s3, {5*SEGB}
    s_cbranch_scc1 K2_MAXLOOP
    v_mov_b32 v{vt+3}, v{vt+2}
    s_nop 1
    v_permlane32_swap_b32 v{vt+2}, v{vt+3}
    s_nop 1
    v_max_f32 v{vt+2}, v{vt+2}, v{vt+3}
    """)
    for r in range(16):
        a(f"v_sub_f32 v{NEGM+r}, 0, v{vt+2}")
    zero_state()
    a("s_barrier")
    for l in kreads(0):
        a(l)
    a("s_branch K2_HAVE_M")

    a.label("K2_AROLE")
    sMb, sNb, sWb, sOb, sLq, sOut = 50, 51, 52, 53, 54, 55
    SOUT = 56
    a(f"""
    s_load_dwordx2 s[48:49], s[0:1], 56
    s_setprio {os.environ.get('K2APRIO', '1')}
    s_bfe_u32 s15, s2, {(5 << 16) | 3}
    s_lshl_b32 s{sMb}, s14, 2
    s_and_b32 s3, s15, 3
    s_add_u32 s{sMb}, s{sMb}, s3
    s_lshr_b32 s{sNb}, s15, 2
    s_lshl_b32 s{sHead}, s{sNb}, 2
    s_lshr_b32 s3, s{sWave}, 1
    s_add_u32 s{sHead}, s{sHead}, s3
    s_lshl_b32 s{sT}, s{sMb}, 1
    s_and_b32 s3, s{sWave}, 1
    s_add_u32 s{sT}, s{sT}, s3
    """)
    head_addr()
    sPrev, sTAp = 46, 24
    a(f"""
    s_and_b32 s3, s{sT}, 31
    s_cmp_lg_u32 s3, 0
    s_cselect_b32 s3, {TB}, 0
    s_cselect_b64 s[{sPrev}:{sPrev+1}], -1, 0
    s_sub_u32 s{sTAp}, s{sTA}, s3
    v_mov_b32 v10, {f32(-1e30)}
    """)
    AV = [VF, VF + 4, P]
    AC = SB
    for b in AV:
        for i in range(4):
            a(f"v_mov_b32 v{b+i}, 0x3f803f80")

    def lanemask(fn):
        m = 0
        for l in range(64):
            if fn(l):
                m |= 1 << l
        return m
    k = 0
    for r in range(16):
        m = lanemask(lambda l: 0 <= pi5(l % 32) - (16 * (r // 8) + 8 * (l // 32) + r % 8) <= 7)
        sp = sTmp + 2 + 2 * (k % 3); k += 1
        a(f"s_mov_b32 s{sp}, 0x{m & 0xffffffff:08x}")
        a(f"s_mov_b32 s{sp+1}, 0x{m >> 32:08x}")
        a(f"v_cndmask_b32 v{AC[0]+r}, v10, 0, s[{sp}:{sp+1}]")
    for r in range(8, 16):
        m = lanemask(lambda l: pi5(l % 32) + 32 - (16 * (r // 8) + 8 * (l // 32) + r % 8) <= 7)
        sp = sTmp + 2 + 2 * (k % 3); k += 1
        a(f"s_and_b32 s{sp}, s{sPrev}, 0x{m & 0xffffffff:08x}")
        a(f"s_and_b32 s{sp+1}, s{sPrev}, 0x{m >> 32:08x}")
        a(f"v_cndmask_b32 v{AC[1]+r}, v10, 0, s[{sp}:{sp+1}]")
    a("s_waitcnt lgkmcnt(0)")
    srd(a, SWS, 10, WS_BYTES)
    srd(a, SOUT, 48, 2621440)
    sLine = 60
    a(f"s_and_b32 s{sLine}, s2, 255")
    a(f"s_lshl_b32 s{sLine}, s{sLine}, 7")
    a(f"s_add_u32 s{sLine}, s{sLine}, {CNT_OFF}")

    def poll(lab, word, need, sleep, limit):
        a(f"""
        s_movk_i32 s9, {limit}
        v_mov_b32 v10, 0
        """)
        a.label(lab)
        a(f"""
        buffer_load_dword v11, v10, {sr(SWS,4)}, s{sLine} offen offset:{4*word} sc1
        s_waitcnt vmcnt(0)
        v_readfirstlane_b32 s3, v11
        s_sub_u32 s9, s9, 1
        s_nop 2
        s_cmp_ge_u32 s3, {need}
        s_cbranch_scc1 {lab}_OK
        s_sleep {sleep}
        s_cmp_lg_u32 s9, 0
        s_cbranch_scc1 {lab}
        """)
        a.label(lab + "_OK")

    out_addr(0)
    a(f"""
    v_mul_u32_u24 v11, 10240, v9
    v_lshl_add_u32 v11, v12, 4, v11
    v_add_u32 v{vGV}, s6, v11
    """)
    ACC, OF, WF = 16, 36, 76
    vLn, vW, vOut, vOut2, vCn = 2, 3, 4, 5, 6
    a(f"""
    v_mov_b32 v{vLn}, v{vL16}
    s_lshr_b32 s4, s{sWave}, 2
    s_mul_i32 s{sLq}, s4, 40960
    v_add_u32 v{vW}, s{sLq}, v{vL16}
    s_mul_i32 s5, s4, 10240
    s_mul_i32 s{sWb}, s{sNb}, {5*20480}
    s_add_u32 s{sWb}, s{sWb}, s5
    s_add_u32 s{sWb}, s{sWb}, {WOF_OFF}
    s_lshl_b32 s6, s{sMb}, 2
    s_and_b32 s3, s{sWave}, 3
    s_add_u32 s6, s6, s3
    s_mul_i32 s{sOb}, s6, 20480
    s_add_u32 s{sOb}, s{sOb}, s5
    s_add_u32 s{sOb}, s{sOb}, {O_OFF}
    s_mul_i32 s3, s3, 10240
    s_add_u32 s{sLq}, s{sLq}, s3
    v_and_b32 v9, 15, v1
    v_lshrrev_b32 v11, 4, v1
    v_mul_u32_u24 v12, 2560, v9
    v_and_b32 v13, 1, v11
    v_lshlrev_b32 v13, 5, v13
    v_lshrrev_b32 v14, 1, v11
    v_lshlrev_b32 v14, 4, v14
    v_add3_u32 v{vOut}, v12, v13, v14
    v_lshl_add_u32 v{vOut2}, v11, 3, v12
    s_and_b32 s7, s6, 63
    s_mul_i32 s7, s7, {16*2560}
    s_lshr_b32 s6, s6, 6
    s_mul_i32 s6, s6, 1280
    s_add_u32 s{sOut}, s6, s7
    s_mul_i32 s7, s{sNb}, 160
    s_add_u32 s{sOut}, s{sOut}, s7
    """)
    a(f"s_cmp_eq_u32 s{sWave}, 0")
    a("s_cbranch_scc0 K2_SGO")
    poll("K2_SPOLL", 0, 1, 12, 64)
    a.label("K2_SGO")
    a("s_barrier")
    gate_load()
    a(f"""
    s_add_u32 s3, s{sTA}, {SEGB}
    s_add_u32 s4, s{sTAp}, {SEGB}
    """)
    for (r1, r2, so) in ((Q1, Q2, sTA), (KF1, KF2, 3), (AKP1, AKP2, 4)):
        a(f"buffer_load_dwordx4 {vr(r1,4)}, v{vGK1}, {sr(SWS,4)}, s{so} offen")
        a(f"buffer_load_dwordx2 {vr(r2,2)}, v{vGK2}, {sr(SWS,4)}, s{so} offen")
    a(f"""
    s_add_u32 s3, s{sTA}, {2*SEGB}
    s_add_u32 s4, s3, 20480
    s_add_u32 s5, s{sTAp}, {2*SEGB+20480}
    s_mov_b32 exec_lo, 0x000fffff
    s_mov_b32 exec_hi, 0x000fffff
    buffer_load_dwordx4 {vr(AV[0],4)}, v{vGV}, {sr(SWS,4)}, s3 offen
    buffer_load_dwordx4 {vr(AV[1],4)}, v{vGV}, {sr(SWS,4)}, s4 offen
    buffer_load_dwordx4 {vr(AV[2],4)}, v{vGV}, {sr(SWS,4)}, s5 offen
    s_mov_b64 exec, -1
    s_waitcnt vmcnt(3)
    s_mov_b32 exec_lo, 0
    v_mov_b32 v{Q2}, 0
    v_mov_b32 v{Q2+1}, 0
    s_mov_b32 exec_lo, -1
    s_nop 1
    """)
    stamp(a, 2)
    for l in qk(AC[0], vr(AC[0], 16)) + qk(AC[1], vr(AC[1], 16), AKP1, AKP2):
        a(l)
    a("s_nop 11")
    aregs = [AC[0] + r for r in range(16)] + [AC[1] + r for r in range(8, 16)]
    maxtree(aregs, vt)
    for r in aregs:
        a(f"v_sub_f32 v{r}, v{r}, v{vt}")
    for r in aregs:
        a(f"v_exp_f32 v{r}, v{r}")
    a("s_waitcnt vmcnt(0)")
    AP = NEGM
    for i in range(12):
        a(f"v_cvt_pk_bf16_f32 v{AP+i}, v{aregs[2*i]}, v{aregs[2*i+1]}")
    a(f"""
    s_nop 1
    v_mfma_f32_32x32x16_bf16 {vr(O,16)}, {vr(AV[0],4)}, {vr(AP,4)}, 0
    v_mfma_f32_32x32x16_bf16 {vr(O,16)}, {vr(AV[1],4)}, {vr(AP+4,4)}, {vr(O,16)}
    v_mfma_f32_32x32x16_bf16 {vr(O,16)}, {vr(AV[2],4)}, {vr(AP+8,4)}, {vr(O,16)}
    s_nop 11
    """)
    store_o(AKP1)
    a(f"""
    v_lshlrev_b32 v{vCn}, 12, v1
    v_mov_b32 v9, 1
    s_and_b32 s7, s2, 31
    s_lshl_b32 s7, s7, 7
    s_add_u32 s7, s7, {CNT_OFF + 8}
    s_waitcnt vmcnt(0)
    s_barrier
    s_cmp_eq_u32 s{sWave}, 0
    s_cbranch_scc0 K2_PNOSIG
    s_mov_b64 exec, 0xff
    buffer_atomic_add v9, v{vCn}, {sr(SWS,4)}, s7 offen sc1
    s_mov_b64 exec, -1
    """)
    a.label("K2_PNOSIG")
    stamp(a, 3)
    for i in range(20):
        a(f"v_mov_b32 v{ACC+i}, 0")
    a(f"s_mov_b32 s{sC}, 0")
    a.label("K2_PROUND")
    a(f"""
    s_and_b32 s3, s{sWave}, 3
    s_lshl_b32 s3, s3, 11
    s_add_u32 s4, s{sWb}, s3
    """)
    for nt in range(5):
        a(f"s_add_u32 m0, s{sLq}, {1024*nt}")
        a(f"s_add_u32 s4, s4, 20480" if nt else "s_nop 0")
        a(f"buffer_load_dwordx4 v{vLn}, {sr(SWS,4)}, s4 offen lds")
        a(f"s_add_u32 m0, s{sLq}, {1024*nt + 5120 - 1024}")
        a("s_nop 0")
        a(f"buffer_load_dwordx4 v{vLn}, {sr(SWS,4)}, s4 offen offset:1024 lds")
    a(f"s_add_u32 s4, s{sWb}, 8192")
    for nt in range(5):
        if nt:
            a("s_add_u32 s4, s4, 20480")
        a(f"buffer_load_dwordx4 {vr(WF+4*nt,4)}, v{vLn}, {sr(SWS,4)}, s4 offen")
        a(f"buffer_load_dwordx4 {vr(WF+20+4*nt,4)}, v{vLn}, {sr(SWS,4)}, s4 offen offset:1024")
    a(f"""
    s_cmp_eq_u32 s{sWave}, 0
    s_cbranch_scc0 K2_PGO
    s_cmp_lg_u32 s{sC}, 0
    s_cbranch_scc1 K2_PWB
    """)
    poll("K2_POLLA", 2, 8, 12, 8192)
    a("s_branch K2_PGO")
    a.label("K2_PWB")
    poll("K2_POLLE", 0, 2, int(os.environ.get('K2SLEEP2', '48')), 2048)
    poll("K2_POLLB", 1, 32, int(os.environ.get('K2SLEEP1', '4')), 16384)
    a.label("K2_PGO")
    a("s_waitcnt vmcnt(0)")
    a("s_barrier")
    if STAMP:
        a("s_memtime s[86:87]")
        a("s_waitcnt lgkmcnt(0)")
        a(f"s_cmp_eq_u32 s{sC}, 0")
        a("s_cselect_b32 s74, s86, s74")
        a("s_cselect_b32 s78, s78, s86")
    ROT = False

    def ksreg(i, dst, mul):
        if ROT:
            a(f"s_add_u32 s{dst}, s{sNb}, {i}")
            a(f"s_and_b32 s{dst}, s{dst}, 7")
            a(f"s_mul_i32 s{dst}, s{dst}, {mul}")
        else:
            a(f"s_mov_b32 s{dst}, {i * mul}")
    iss = [0, 1, 8, 9, 2, 3, 4, 5, 6, 7] if ROT else [8, 9, 0, 1, 2, 3, 4, 5, 6, 7]
    con = [8, 9, 0, 1, 2, 3, 4, 5, 6, 7]
    a(f"s_add_u32 s4, s{sOb}, 8192")
    for st in iss:
        if st < 8:
            ksreg(st, 3, 1024)
            a(f"s_add_u32 s3, s3, s{sOb}")
            a(f"buffer_load_dwordx4 {vr(OF+4*st,4)}, v{vLn}, {sr(SWS,4)}, s3 offen sc1")
        else:
            a(f"buffer_load_dwordx4 {vr(OF+4*st,4)}, v{vLn}, {sr(SWS,4)}, s4 offen offset:{(st-8)*1024} sc1")
    retry = []
    a("s_mov_b32 s9, 0x10000")
    for i, st in enumerate(con):
        n = 9 - max(iss.index(x) for x in con[:i + 1])
        a(f"s_waitcnt vmcnt({n})" + (f" lgkmcnt({5 if i < 9 else 0})" if i >= 2 else ""))
        if STAMP and i in (0, 5):
            a("s_memtime s[86:87]")
            a("s_waitcnt lgkmcnt(0)")
            a(f"s_mov_b32 s{81 if i == 0 else 82}, s86")
        a.label(f"K2_PCHK{i}")
        a(f"v_max3_u32 v8, v{OF+4*st}, v{OF+4*st+1}, v{OF+4*st+2}")
        a(f"v_max_u32 v8, v8, v{OF+4*st+3}")
        a("v_cmp_eq_u32 vcc, -1, v8")
        if i + 2 < 10:
            ksreg(con[i + 2], 3, 5120)
            a(f"v_add_u32 v7, s3, v{vW}")
        a(f"s_cbranch_vccnz K2_PRETRY{i}")
        a.label(f"K2_PCONT{i}")
        retry.append((i, st))
        for nt in range(5):
            d = vr(ACC + 4 * nt, 4)
            a(f"v_mfma_f32_16x16x32_bf16 {d}, {vr(WF + (i % 2) * 20 + 4 * nt, 4)}, {vr(OF+4*st,4)}, {d}")
        if i + 2 < 10:
            for nt in range(5):
                a(f"ds_read_b128 {vr(WF + (i % 2) * 20 + 4 * nt, 4)}, v7 offset:{1024*nt}")
    a(f"""
    s_barrier
    s_cmp_lg_u32 s{sC}, 0
    s_cbranch_scc1 K2_PFIN
    s_mov_b32 s{sC}, 1
    s_add_u32 s{sWb}, s{sWb}, {WOF_BR}
    s_add_u32 s{sOb}, s{sOb}, {O_BR}
    """)
    stamp(a, 5)
    a("s_branch K2_PROUND")
    a.label("K2_PFIN")
    stamp(a, 9)
    if STAMP:
        a("s_sub_u32 s80, 0x10000, s9")
        a("s_add_u32 s80, s80, s70")
    a(f"""
    s_and_b32 s3, s{sWave}, 3
    s_mul_i32 s3, s3, 5120
    v_add_u32 v{vW}, s3, v{vLn}
    s_cmp_lt_u32 s{sWave}, 4
    s_cbranch_scc1 K2_PSUM
    """)
    for nt in range(5):
        a(f"ds_write_b128 v{vW}, {vr(ACC+4*nt,4)} offset:{1024*nt}")
    a("s_waitcnt lgkmcnt(0)")
    a("s_barrier")
    a("s_branch K2_DONE")
    a.label("K2_PSUM")
    a("s_barrier")
    for nt in range(5):
        a(f"ds_read_b128 {vr(OF + 4*nt, 4)}, v{vW} offset:{1024*nt}")
    a("s_waitcnt lgkmcnt(0)")
    for i in range(20):
        a(f"v_add_f32 v{ACC+i}, v{ACC+i}, v{OF+i}")
    for pr in range(2):
        b0 = ACC + pr * 8
        b1 = b0 + 4
        a(f"v_cvt_pk_bf16_f32 v{b0}, v{b0}, v{b0+1}")
        a(f"v_cvt_pk_bf16_f32 v{b0+1}, v{b0+2}, v{b0+3}")
        a(f"v_cvt_pk_bf16_f32 v{b0+2}, v{b1}, v{b1+1}")
        a(f"v_cvt_pk_bf16_f32 v{b0+3}, v{b1+2}, v{b1+3}")
        a("s_nop 1")
        a(f"v_permlane16_swap_b32 v{b0}, v{b0+2}")
        a(f"v_permlane16_swap_b32 v{b0+1}, v{b0+3}")
        a("s_nop 0")
        a(f"buffer_store_dwordx4 {vr(b0,4)}, v{vOut}, {sr(SOUT,4)}, s{sOut} offen offset:{pr*64}")
    b0 = ACC + 16
    a(f"v_cvt_pk_bf16_f32 v{b0}, v{b0}, v{b0+1}")
    a(f"v_cvt_pk_bf16_f32 v{b0+1}, v{b0+2}, v{b0+3}")
    a(f"buffer_store_dwordx2 {vr(b0,2)}, v{vOut2}, {sr(SOUT,4)}, s{sOut} offen offset:128")
    a("s_branch K2_DONE")
    for i, st in retry:
        a.label(f"K2_PRETRY{i}")
        a(f"""
        s_sub_u32 s9, s9, 1
        s_cmp_eq_u32 s9, 0
        s_cbranch_scc1 K2_PGIVE{i}
        s_waitcnt vmcnt(0)
        """)
        for st2 in con[i:]:
            a(f"s_add_u32 s5, s{sOb}, {1024*st2}")
            a(f"buffer_load_dwordx4 {vr(OF+4*st2,4)}, v{vLn}, {sr(SWS,4)}, s5 offen sc1")
        a(f"s_waitcnt vmcnt({9-i})")
        a(f"s_branch K2_PCHK{i}")
        a.label(f"K2_PGIVE{i}")
        a("s_mov_b32 s9, 1")
        a(f"s_branch K2_PCONT{i}")
    a.label("CODE_END")
    return kernel_desc(name, NV, NV, 64)


K3_DIST = int(os.environ.get('K3D', '2'))
K3_NS = K3_DIST + 2
K3_LDS = K3_NS * 20480


def gen_k3(a):
    name = "proj_kernel"
    kernel_head(a, name)
    SWS, SOUT = 20, 24
    sWave, sMb, sNb = 16, 17, 18
    sO, sW, sRot, sM0, sOc, sWc = 28, 29, 31, 32, 33, 34
    vL16, vWj, vG, vOut, vOut2 = 2, 3, 7, 8, 9
    ACC = [16, 36]
    OF = 56
    WF = 56 + 16 * (K3_DIST + 1)
    NV = WF + 40
    DIST = K3_DIST
    NO = DIST + 1
    a("s_cmp_ge_u32 s2, 256")
    a("s_cbranch_scc1 K3_END")
    stamp(a, 0); stamp_rt(a, 1)
    a("""
    s_load_dwordx2 s[4:5], s[0:1], 56
    s_load_dwordx2 s[6:7], s[0:1], 72
    v_lshrrev_b32 v9, 6, v0
    v_and_b32 v1, 63, v0
    s_and_b32 s14, s2, 7
    v_readfirstlane_b32 s16, v9
    s_lshr_b32 s15, s2, 3
    s_lshl_b32 s17, s14, 2
    s_and_b32 s3, s15, 3
    s_add_u32 s17, s17, s3
    s_lshr_b32 s18, s15, 2
    v_lshlrev_b32 v2, 4, v1
    """)
    a(f"""
    s_and_b32 s19, s{sNb}, 1
    s_lshr_b32 s{sRot}, s{sNb}, 1
    s_lshl_b32 s3, s{sMb}, 2
    s_add_u32 s3, s3, s{sWave}
    s_mul_i32 s{sO}, s3, 20480
    s_add_u32 s{sO}, s{sO}, {O_OFF}
    s_mul_i32 s{sW}, s{sNb}, {5*20480}
    s_lshl_b32 s14, s{sWave}, 10
    s_add_u32 s{sW}, s{sW}, s14
    s_add_u32 s{sW}, s{sW}, {WOF_OFF}
    s_mov_b32 s{sM0}, s14
    s_mul_i32 s14, s19, {O_BR}
    s_mul_i32 s15, s19, {WOF_BR}
    s_sub_u32 s36, {O_BR}, s14
    s_sub_u32 s37, {WOF_BR}, s15
    s_add_u32 s36, s36, s{sO}
    s_add_u32 s37, s37, s{sW}
    s_add_u32 s{sO}, s{sO}, s14
    s_add_u32 s{sW}, s{sW}, s15
    s_waitcnt lgkmcnt(0)
    """)
    srd(a, SWS, 6, WS_BYTES)
    srd(a, SOUT, 4, 2621440)

    def load_items(g):
        pre = []
        if g == 5:
            pre += [f"s_mov_b32 s{sO}, s36", f"s_mov_b32 s{sW}, s37"]
        pre += [f"s_lshl_b32 s14, s{sRot}, 12",
                f"s_add_u32 s{sOc}, s{sO}, s14",
                f"s_add_u32 s{sWc}, s{sW}, s14",
                f"s_add_u32 s{sRot}, s{sRot}, 1",
                f"s_cmp_ge_u32 s{sRot}, 5",
                f"s_cselect_b32 s{sRot}, 0, s{sRot}"]
        items = []
        for k in range(4):
            items.append([f"buffer_load_dwordx4 {vr(OF + (g % NO) * 16 + 4 * k, 4)}, v{vL16}, {sr(SWS,4)}, s{sOc} offen offset:{1024*k}"])
        for nt in range(5):
            items.append([f"s_add_u32 m0, s{sM0}, {(g % K3_NS) * 20480 + nt * 4096}",
                          f"s_add_u32 s{sWc}, s{sWc}, 20480" if nt else "s_nop 0",
                          f"buffer_load_dwordx4 v{vL16}, {sr(SWS,4)}, s{sWc} offen lds"])
        items[0] = pre + items[0]
        return items

    def loads(g):
        for it in load_items(g):
            for l in it:
                a(l)

    if 'k3_wfirst' in EXP and DIST == 2:
        i0 = load_items(0)
        pre0, o0first = i0[0][:-1], i0[0][-1]
        for l in pre0: a(l)
        a(f"s_mov_b32 s40, s{sOc}")
        for it in i0[4:]:
            for l in it: a(l)
        for l in [o0first] + [it[0] for it in i0[1:4]]:
            a(l)
        i1 = load_items(1)
        for it in i1:
            for l in it: a(l)
    else:
        for g in range(DIST):
            loads(g)
    a(f"""
    v_and_b32 v9, 15, v1
    v_lshlrev_b32 v10, 2, v9
    s_lshl_b32 s14, s3, 6
    s_add_u32 s35, s14, {G_OFF}
    v_lshrrev_b32 v11, 4, v1
    v_mul_u32_u24 v12, 2560, v9
    v_and_b32 v13, 1, v11
    v_lshlrev_b32 v13, 5, v13
    v_lshrrev_b32 v14, 1, v11
    v_lshlrev_b32 v14, 4, v14
    v_add3_u32 v{vOut}, v12, v13, v14
    v_lshl_add_u32 v{vOut2}, v11, 3, v12
    v_add_u32 v{vWj}, 40960, v{vL16}
    v_add_u32 v{vWj+1}, 81920, v{vL16}
    s_and_b32 s14, s3, 63
    s_mul_i32 s14, s14, {16*2560}
    s_lshr_b32 s15, s3, 6
    s_mul_i32 s15, s15, 1280
    s_add_u32 s30, s14, s15
    s_mul_i32 s15, s{sNb}, 160
    s_add_u32 s30, s30, s15
    """)

    def wread(g, k):
        slot = g % K3_NS
        base, off = ((vL16, vWj, vWj + 1)[slot // 2], (slot % 2) * 20480)
        return [f"ds_read_b128 {vr(WF + (k % 2) * 20 + 4 * nt, 4)}, v{base} offset:{off + nt*4096 + k*1024}" for nt in range(5)]

    for g in range(10):
        if g == 0: stamp(a, 2)
        n_after = 9 * (min(10, g + DIST) - 1 - g) + (1 if g == 9 else 0)
        a(f"s_waitcnt vmcnt({n_after})")
        a("s_barrier")
        if g == 0: stamp(a, 3)
        for l in wread(g, 0):
            a(l)
        items = load_items(g + DIST) if g + DIST < 10 else []
        if g == 8:
            items = [[f"buffer_load_dword v{vG}, v10, {sr(SWS,4)}, s35 offen"]]
        if items:
            for l in items.pop(0):
                a(l)
        acc = ACC[g // 5]
        for k in range(4):
            if k < 3:
                for l in wread(g, k + 1):
                    a(l)
                a("s_waitcnt lgkmcnt(5)")
            else:
                a("s_waitcnt lgkmcnt(0)")
            for nt in range(5):
                d = vr(acc + 4 * nt, 4)
                c = "0" if (g % 5 == 0 and k == 0) else d
                a(f"v_mfma_f32_16x16x32_bf16 {d}, {vr(WF + (k % 2) * 20 + 4 * nt, 4)}, {vr(OF + (g % NO) * 16 + 4 * k, 4)}, {c}")
                if nt in (1, 3) and items:
                    for l in items.pop(0):
                        a(l)
        assert not items
    stamp(a, 4)
    a(f"""
    s_waitcnt vmcnt(0)
    v_sub_f32 v10, 1.0, v{vG}
    s_cmp_eq_u32 s19, 0
    s_cselect_b64 s[38:39], -1, 0
    v_cndmask_b32 v11, v10, v{vG}, s[38:39]
    v_cndmask_b32 v10, v{vG}, v10, s[38:39]
    """)
    A0, A1 = ACC
    for i in range(20):
        a(f"v_mul_f32 v{A0+i}, v{A0+i}, v11")
    for i in range(20):
        a(f"v_fma_f32 v{A0+i}, v{A1+i}, v10, v{A0+i}")
    for pr in range(2):
        b0 = A0 + pr * 8
        b1 = b0 + 4
        a(f"v_cvt_pk_bf16_f32 v{b0}, v{b0}, v{b0+1}")
        a(f"v_cvt_pk_bf16_f32 v{b0+1}, v{b0+2}, v{b0+3}")
        a(f"v_cvt_pk_bf16_f32 v{b0+2}, v{b1}, v{b1+1}")
        a(f"v_cvt_pk_bf16_f32 v{b0+3}, v{b1+2}, v{b1+3}")
        a("s_nop 1")
        a(f"v_permlane16_swap_b32 v{b0}, v{b0+2}")
        a(f"v_permlane16_swap_b32 v{b0+1}, v{b0+3}")
        a("s_nop 0")
        a(f"buffer_store_dwordx4 {vr(b0,4)}, v{vOut}, {sr(SOUT,4)}, s30 offen offset:{pr*64}")
    b0 = A0 + 16
    a(f"v_cvt_pk_bf16_f32 v{b0}, v{b0}, v{b0+1}")
    a(f"v_cvt_pk_bf16_f32 v{b0+1}, v{b0+2}, v{b0+3}")
    a(f"buffer_store_dwordx2 {vr(b0,2)}, v{vOut2}, {sr(SOUT,4)}, s30 offen offset:128")
    stamp(a, 5)
    if STAMP: a("s_waitcnt vmcnt(0)")
    stamp(a, 6); stamp_rt(a, 7)
    stamp_flush(a, 2, SWS, sWave, 8, 10)
    a.label("K3_END")
    a("s_endpgm")
    a.label("CODE_END")
    return kernel_desc(name, NV, NV, 44)


def gen_diag(a):
    name = "diag_kernel"
    kernel_head(a, name)
    a("""
    s_cmp_ge_u32 s2, 1
    s_cbranch_scc1 KD_END
    s_load_dwordx4 s[4:7], s[0:1], 64
    s_waitcnt lgkmcnt(0)
    """)
    srd(a, 8, 6, WS_BYTES)
    srd(a, 12, 4, 256)
    a("v_lshlrev_b32 v1, 10, v0")
    a("v_mov_b32 v2, 0")
    for k, waves, idx in ((0, (0, 3), (3, 4)), (1, (0, 15), (3, 5)), (2, (0, 3), (3, 4))):
        for wi, w in enumerate(waves):
            a(f"s_mov_b32 s16, {DBG_OFF + k*(1<<18) + w*64}")
            a("buffer_load_dwordx4 v[4:7], v1, s[8:11], s16 offen")
            a("buffer_load_dwordx4 v[8:11], v1, s[8:11], s16 offen offset:16")
            a("s_waitcnt vmcnt(0)")
            a("v_not_b32 v12, v5")
            a(f"buffer_atomic_umax v12, v2, s[12:15], 0 offen offset:{k*20}")
            a(f"buffer_atomic_umax v11, v2, s[12:15], 0 offen offset:{k*20+4}")
            if wi == 0:
                a(f"v_sub_u32 v12, v{4+idx[0]}, v4")
                a(f"buffer_atomic_add v12, v2, s[12:15], 0 offen offset:{k*20+8}")
                a(f"v_sub_u32 v13, v{4+idx[1]}, v4")
                a(f"buffer_atomic_add v13, v2, s[12:15], 0 offen offset:{k*20+12}")
                a(f"v_sub_u32 v14, v10, v4")
                a(f"buffer_atomic_add v14, v2, s[12:15], 0 offen offset:{k*20+16}")
            a("s_waitcnt vmcnt(0)")
    a.label("KD_END")
    a("s_endpgm")
    return kernel_desc(name, 16, 16, 24)


DOC = """
(generated by a script of the author; all code below is hand-designed assembly)
Launch 1, qkv_kernel: both qkv GEMMs (128 x 256 tiles, 4 MFMA waves + 4 LDS-DMA loader waves; positions in parity-split
  order so that the dilated window becomes a plain window of 8), the gate, Wo re-tiled into MFMA fragments, hand-off words zeroed.
Launch 2, attn_kernel: two workgroups per CU.
  ids < 256: full attention of branch B. Softmax reference value = max over the first 32 keys (a lower bound of the row
    max, folded into the MFMA C operand); after the pass every wave checks that l < 2^100 and that O is finite. If the
    check fails anywhere in the workgroup the true row max is computed over all keys (K2_FALLBACK) and the pass is redone with it.
  ids >= 256: local attention of branch A (true max), then one 64 x 80 tile of the out projection of both branches.
  Hand-offs between workgroups: sc1 stores, counters added with sc1 atomics on a line per consumer, sc1 loads; o_B is
    additionally pre-marked with all-ones words inside the launch and every loaded word is checked. All polls are bounded.
"""


def main():
    global STAMP
    if "--stamp" in sys.argv:
        STAMP = True
        sys.argv.remove("--stamp")
    ref = open(OUT + ".ref").read().split("\n")
    head = [l for l in ref if l.startswith(";") and "@launch" not in l]
    a = Asm()
    for l in head:
        a.raw(l)
    a.raw(f"; @launch kernel=qkv_kernel grid=(256,1,1) block=(512,1,1) lds={K1_LDS}")
    a.raw(f"; @launch kernel=attn_kernel grid=(512,1,1) block=(512,1,1) lds={K2_LDS}")
    if not FUSE:
        a.raw(f"; @launch kernel=proj_kernel grid=(256,1,1) block=(256,1,1) lds={K3_LDS}")
    if 'diag' in EXP:
        a.raw("; @launch kernel=diag_kernel grid=(1,1,1) block=(256,1,1) lds=0")
    for l in DOC.strip("\n").split("\n"):
        a.raw("; " + l)
    a.raw('.amdgcn_target "amdgcn-amd-amdhsa--gfx950"')
    a.raw(".text")
    d = [gen_k1(a), gen_k2(a)] + ([] if FUSE else [gen_k3(a)]) + ([gen_diag(a)] if 'diag' in EXP else [])
    a.raw('.section .rodata,"a"')
    for x in d:
        a.raw(".p2align 6")
        a.raw(x.rstrip("\n"))
    out = sys.argv[1] if len(sys.argv) > 1 else OUT
    open(out, "w").write(a.text())
    print("wrote", out, len(a.L), "lines")


if __name__ == "__main__":
    main()
```

```python
import sys, math, struct, os
EXP = os.environ.get('EXP', '').split(',')

NAME = "gated_mix__sliding_local_dilated__mha_block__prompt"
OUT = f"cdna_kernels/{NAME}.s"

SEGB = 2621440
TB = 40960
O_OFF = 16 << 20
O_BR = 2621440
WOF_OFF = 24 << 20
WOF_BR = 819200
G_OFF = 28 << 20
CNT_OFF = G_OFF + 65536
WS_BYTES = 32 << 20
QSCALE = (20 ** -0.5) * math.log2(math.e)


def f32(x):
    return "0x%08x" % struct.unpack("<I", struct.pack("<f", x))[0]


def pi5(i):
    return (i & ~12) | ((i & 4) << 1) | ((i & 8) >> 1)


class Asm:
    def __init__(self):
        self.L = []

    def __call__(self, s):
        for l in s.strip("\n").split("\n"):
            self.L.append("    " + l.strip())

    def label(self, l):
        self.L.append(l + ":")

    def raw(self, s):
        self.L.append(s)

    def text(self):
        return "\n".join(self.L) + "\n"


def vr(b, n=1, p="v"):
    return f"{p}{b}" if n == 1 else f"{p}[{b}:{b+n-1}]"


def ar(b, n=1):
    return vr(b, n, "a")


def sr(b, n=1):
    return vr(b, n, "s")


STAMP = False
K2STF = ' sc1' if 'k2_sc1' in EXP else ''
DBG_OFF = 30 << 20


def stamp(a, idx, sbase=70):
    if not STAMP:
        return
    a(f"s_memtime s[{sbase+16}:{sbase+17}]")
    a("s_waitcnt lgkmcnt(0)")
    a(f"s_mov_b32 s{sbase+idx}, s{sbase+16}")


def stamp_rt(a, idx, sbase=70):
    if not STAMP:
        return
    a(f"s_memrealtime s[{sbase+16}:{sbase+17}]")
    a("s_waitcnt lgkmcnt(0)")
    a(f"s_mov_b32 s{sbase+idx}, s{sbase+16}")


def stamp_flush(a, kidx, srd_ws, swave, n, vtmp, sbase=70, shift=4):
    if not STAMP:
        return
    a("s_mov_b64 exec, -1")
    a(f"s_lshl_b32 s{sbase+16}, s2, {shift}")
    a(f"s_add_u32 s{sbase+16}, s{sbase+16}, s{swave}")
    a(f"s_lshl_b32 s{sbase+16}, s{sbase+16}, 6")
    a(f"s_add_u32 s{sbase+16}, s{sbase+16}, {DBG_OFF + kidx*(1<<18)}")
    a(f"v_mov_b32 v{vtmp+1}, 0")
    for i in range(n):
        a(f"v_mov_b32 v{vtmp}, s{sbase+i}")
        a(f"buffer_store_dword v{vtmp}, v{vtmp+1}, s[{srd_ws}:{srd_ws+3}], s{sbase+16} offen offset:{4*i}")


def kernel_head(a, name):
    a.raw(f".globl {name}")
    a.raw(".p2align 8")
    a.raw(f".type {name},@function")
    a.label(name)


def kernel_desc(name, vgpr_total, accum, sgpr):
    return f""".amdhsa_kernel {name}
  .amdhsa_next_free_vgpr {vgpr_total}
  .amdhsa_next_free_sgpr {96 if STAMP else sgpr}
  .amdhsa_accum_offset {accum}
  .amdhsa_group_segment_fixed_size 0
  .amdhsa_kernarg_size 80
  .amdhsa_user_sgpr_count 2
  .amdhsa_user_sgpr_kernarg_segment_ptr 1
  .amdhsa_system_sgpr_workgroup_id_x 1
.end_amdhsa_kernel
"""


WS_BASE = int(os.environ.get('WSBASE', '0')) << 20


def srd(a, d, base, nbytes):
    if nbytes == WS_BYTES and WS_BASE:
        a(f"s_add_u32 s{d}, s{base}, {WS_BASE}")
        a(f"s_addc_u32 s{d+1}, s{base+1}, 0")
    else:
        a(f"s_mov_b32 s{d}, s{base}")
        a(f"s_mov_b32 s{d+1}, s{base+1}")
    a(f"s_mov_b32 s{d+2}, {nbytes}")
    a(f"s_mov_b32 s{d+3}, 0x00020000")


G_WST = 8704
G_ST = G_WST + 8192


def gen_gemm(a, pfx, br, NS, sJ, done_label, stf, kidx, pairx=False):
    SX, SW, SR = 20, 24, 28
    sWave = 19
    a(f"""
    s_mul_i32 s12, s{sJ}, 1093
    s_lshr_b32 s12, s12, 16
    s_mul_i32 s13, s12, 60
    s_sub_u32 s13, s{sJ}, s13
    s_lshr_b32 s17, s13, 2
    s_and_b32 s13, s13, 3
    s_lshl_b32 s12, s12, 2
    s_add_u32 s16, s12, s13
    s_lshr_b32 s14, s16, 3
    s_and_b32 s15, s16, 7
    s_cmp_ge_u32 s{sWave}, 4
    s_cbranch_scc0 {pfx}_COMPUTE
    """)
    vW, vXg = 8, 10
    sWo, sXo, sWl, sXl, sWc, sXc, sOrd = 32, 33, 34, 35, 36, 37, 38
    K1_D = int(os.environ.get('K1D', '2'))
    ORD = []
    for g in range(4):
        o = list(range(10))
        for b in range(10):
            if b % 4 == g and K1_D:
                p = o.index(b)
                o.pop(p)
                o.insert(max(0, p - K1_D), b)
        ORD.append(sum(b << (4 * i) for i, b in enumerate(o)))
    a(f"""
    v_lshrrev_b32 v4, 4, v1
    v_and_b32 v3, 15, v1
    v_mul_u32_u24 v5, {4*3840}, v4
    v_lshl_add_u32 v{vW}, v3, 4, v5
    v_add_u32 v{vW+1}, {3840-1088}, v{vW}
    v_lshrrev_b32 v5, 2, v1
    v_and_b32 v6, 3, v1
    v_xor_b32 v6, v6, v4
    v_mul_u32_u24 v5, 2560, v5
    v_lshl_add_u32 v{vXg}, v6, 4, v5
    v_add_u32 v{vXg+1}, {16*2560-1024}, v{vXg}
    s_and_b32 s3, s{sWave}, 3
    s_lshr_b32 s12, s3, 1
    s_lshl_b32 s12, s12, 4
    s_and_b32 s18, s3, 1
    s_lshl_b32 s18, s18, 1
    s_add_u32 s12, s12, s18
    s_mul_i32 s{sWo}, s12, 3840
    s_lshl_b32 s12, s17, 8
    s_add_u32 s{sWo}, s{sWo}, s12
    s_mul_i32 s{sWl}, s3, {2*1088}
    s_lshl_b32 s{sXl}, s3, 11
    s_add_u32 s{sXl}, s{sXl}, {G_WST}
    s_lshl_b32 s12, s15, 2
    s_add_u32 s12, s12, s3
    s_mul_i32 s{sXo}, s12, {32*2560}
    s_mul_i32 s12, s14, 1280
    s_add_u32 s{sXo}, s{sXo}, s12
    s_add_u32 s3, s13, s17
    s_and_b32 s3, s3, 3
    s_mov_b32 s{sOrd}, {ORD[0] & 0xffffffff}
    s_mov_b32 s{sOrd+1}, {ORD[0] >> 32}
    s_cmp_eq_u32 s3, 1
    s_cselect_b32 s{sOrd}, {ORD[1] & 0xffffffff}, s{sOrd}
    s_cselect_b32 s{sOrd+1}, {ORD[1] >> 32}, s{sOrd+1}
    s_cmp_eq_u32 s3, 2
    s_cselect_b32 s{sOrd}, {ORD[2] & 0xffffffff}, s{sOrd}
    s_cselect_b32 s{sOrd+1}, {ORD[2] >> 32}, s{sOrd+1}
    s_cmp_eq_u32 s3, 3
    s_cselect_b32 s{sOrd}, {ORD[3] & 0xffffffff}, s{sOrd}
    s_cselect_b32 s{sOrd+1}, {ORD[3] >> 32}, s{sOrd+1}
    s_waitcnt lgkmcnt(0)
    """)
    srd(a, SX, 4, 2621440)
    srd(a, SW, 6, 2457600)
    srd(a, SR, 10, WS_BYTES)

    hist = []

    def xload(k):
        a(f"s_add_u32 m0, s{sXl}, {(k % NS) * G_ST}")
        a(f"s_add_u32 s{sXc}, s{sXc}, s{sXo}" if k % 2 == 0 else f"s_add_u32 s{sXc}, s{sXc}, 64")
        for q in range(2):
            a(f"buffer_load_dwordx4 v{vXg+q}, {sr(SX,4)}, s{sXc} offen offset:{1024*q} lds")
        hist.append(("X", k))

    def stage_loads(k):
        if k % 2 == 0:
            j = k // 2
            a(f"s_bfe_u32 s3, s{sOrd + j // 8}, {(4 << 16) | (4 * (j % 8))}")
            a(f"s_mul_i32 s{sWc}, s3, {2*122880}")
            a(f"s_lshl_b32 s{sXc}, s3, 7")
            xload(k)
            if pairx:
                xload(k + 1)
        elif not pairx:
            xload(k)
        a(f"s_add_u32 m0, s{sWl}, {(k % NS) * G_ST}")
        a(f"s_add_u32 s{sWc}, s{sWc}, s{sWo}" if k % 2 == 0 else f"s_add_u32 s{sWc}, s{sWc}, 122880")
        for i in range(2):
            a(f"buffer_load_dwordx4 v{vW+i}, {sr(SW,4)}, s{sWc} offen offset:{1088*i} lds")
        hist.append(("W", k))

    issued = [0]

    def issue(step, nmax):
        n = 0
        while issued[0] < 20 and n < nmax and (issued[0] + (1 if pairx and issued[0] % 2 == 0 else 0)) - NS <= step - 1:
            stage_loads(issued[0])
            issued[0] += 1
            n += 1

    def need(ks):
        a(f"s_waitcnt vmcnt({2 * (len(hist) - 1 - hist.index(('W', ks)))})")
        a("s_barrier")

    RAMP = [int(c) for c in os.environ.get('GRAMP', '3122')]
    issue(-2, RAMP[0])
    stamp(a, 2)
    need(0)
    stamp(a, 3)
    issue(-1, RAMP[1])
    for ks in range(19):
        need(ks + 1)
        if ks % 2 == 1 and ks <= 15: stamp(a, 8 + ks // 2)
        issue(ks, RAMP[ks + 2] if ks + 2 < len(RAMP) else RAMP[-1])
    assert issued[0] == 20
    a("s_barrier")
    stamp(a, 4); stamp(a, 5)
    a(f"s_branch {done_label}")

    a.label(f"{pfx}_COMPUTE")
    ACC = 16
    WFR = 80
    XFR = [96, 112]
    vTr0, vTr, vXr0, vXr, vSt = 8, 9, 10, 12, 14
    sRd, sIt, sSt, sSeg = 32, 34, 36, 35
    a(f"""
    v_bfe_u32 v3, v1, 2, 2
    v_mul_u32_u24 v3, 1088, v3
    v_lshrrev_b32 v4, 5, v1
    v_lshl_add_u32 v3, v4, 9, v3
    v_bfe_u32 v5, v1, 4, 1
    v_lshl_add_u32 v3, v5, 5, v3
    v_and_b32 v5, 3, v1
    v_lshl_add_u32 v3, v5, 3, v3
    s_and_b32 s12, s{sWave}, 1
    s_lshl_b32 s3, s12, 7
    v_add_u32 v{vTr0}, s3, v3
    v_and_b32 v5, 19, v1
    v_bfe_u32 v6, v1, 2, 1
    v_lshl_or_b32 v5, v6, 3, v5
    v_bfe_u32 v6, v1, 3, 1
    v_lshl_or_b32 v5, v6, 2, v5
    v_bfe_u32 v6, v5, 2, 2
    v_xor_b32 v6, v6, v4
    v_lshlrev_b32 v6, 4, v6
    v_lshl_add_u32 v5, v5, 6, v6
    s_lshr_b32 s13, s{sWave}, 1
    s_lshl_b32 s3, s13, 12
    s_add_u32 s3, s3, {G_WST}
    v_add_u32 v{vXr0}, s3, v5
    v_xor_b32 v{vXr0+1}, 32, v{vXr0}
    v_mov_b32 v{vXr}, v{vXr0}
    v_mov_b32 v{vXr+1}, v{vXr0+1}
    v_mov_b32 v{vTr}, v{vTr0}
    s_mov_b32 s{sRd}, {G_ST}
    s_mov_b32 s{sIt}, 0
    s_mul_i32 s{sSeg}, s17, 52
    s_lshr_b32 s{sSeg}, s{sSeg}, 8
    s_mul_i32 s3, s{sSeg}, 5
    s_sub_u32 s17, s17, s3
    s_lshl_b32 s17, s17, 1
    s_add_u32 s17, s17, s12
    s_add_u32 s3, s{sSeg}, {br if isinstance(br, str) else 3*br}
    s_mul_i32 s{sSt}, s3, {SEGB}
    s_lshl_b32 s3, s16, 1
    s_add_u32 s3, s3, s13
    s_mul_i32 s3, s3, {2*TB}
    s_add_u32 s{sSt}, s{sSt}, s3
    s_waitcnt lgkmcnt(0)
    """)
    srd(a, SR, 10, WS_BYTES)
    for i in range(64):
        a(f"v_mov_b32 v{ACC+i}, 0")

    def xreads(fset):
        return [f"ds_read_b128 {vr(XFR[fset] + (mt*2+kk)*4, 4)}, v{vXr+kk} offset:{2048*mt}" for kk in range(2) for mt in range(2)]

    def wreads(nt, kk):
        b = WFR + (nt * 2 + kk) * 4
        return [f"ds_read_b64_tr_b16 {vr(b + 2*s, 2)}, v{vTr} offset:{kk*4352 + s*256 + nt*64}" for s in range(2)]

    stamp(a, 2)
    a("s_barrier")
    stamp(a, 3)
    x0 = xreads(0)
    for l in x0[:2] + wreads(0, 0) + x0[2:] + wreads(1, 0) + wreads(0, 1) + wreads(1, 1):
        a(l)
    a(f"s_cmp_eq_u32 s{sSeg}, 2")
    a(f"s_cbranch_scc1 {pfx}_LOOP_N")
    for ori in ("T", "N"):
        a.raw(".p2align 3")
        a.label(f"{pfx}_LOOP_{ori}")
        for s in range(2):
            a(f"v_add_u32 v{vTr}, s{sRd}, v{vTr0}")
            a(f"v_add_u32 v{vXr}, s{sRd}, v{vXr0}")
            a(f"v_add_u32 v{vXr+1}, s{sRd}, v{vXr0+1}")
            a("s_barrier")
            xr = xreads(1 - s)
            rest = [f"s_add_u32 s{sRd}, s{sRd}, {G_ST}",
                    f"s_cmp_ge_u32 s{sRd}, {NS*G_ST}",
                    f"s_cselect_b32 s{sRd}, 0, s{sRd}"]
            if s == 1:
                rest += [f"s_add_u32 s{sIt}, s{sIt}, 1", f"s_cmp_lt_u32 s{sIt}, 10"]
            idx = 0
            for kk in range(2):
                for nt in range(2):
                    for mt in range(2):
                        acc = vr(ACC + (nt * 2 + mt) * 16, 16)
                        w = vr(WFR + (nt * 2 + kk) * 4, 4)
                        x = vr(XFR[s] + (mt * 2 + kk) * 4, 4)
                        if mt == 0:
                            a(f"s_waitcnt lgkmcnt({8 if kk == 0 else 10})")
                        if ori == "T":
                            a(f"v_mfma_f32_32x32x16_bf16 {acc}, {w}, {x}, {acc}")
                        else:
                            a(f"v_mfma_f32_32x32x16_bf16 {acc}, {x}, {w}, {acc}")
                        if mt == 0:
                            if idx < 2:
                                a(xr[2 * idx]); a(xr[2 * idx + 1])
                            else:
                                for l in (rest[:3] if idx == 2 else rest[3:]):
                                    a(l)
                            idx += 1
                        else:
                            for l in wreads(nt, kk):
                                a(l)
        a(f"s_cbranch_scc1 {pfx}_LOOP_{ori}")
        stamp(a, 4)
        if ori == "T":
            a(f"""
            s_lshl_b32 s3, s17, 12
            s_add_u32 s{sSt}, s{sSt}, s3
            s_add_u32 s{sSt+1}, s{sSt}, {TB}
            s_cmp_eq_u32 s{sSeg}, 0
            s_cselect_b32 s40, {f32(QSCALE)}, 1.0
            s_mov_b32 s41, s40
            v_lshlrev_b32 v{vSt}, 4, v1
            s_nop 7
            """)
        else:
            a(f"""
            s_lshl_b32 s3, s17, 10
            s_add_u32 s{sSt}, s{sSt}, s3
            s_add_u32 s{sSt+1}, s{sSt}, {TB}
            s_add_u32 s{sSt+2}, s{sSt}, 20480
            s_add_u32 s{sSt+3}, s{sSt+1}, 20480
            v_mul_u32_u24 v5, 10240, v4
            v_and_b32 v6, 31, v1
            v_lshl_add_u32 v{vSt}, v6, 4, v5
            s_nop 7
            """)
        for nt in range(2):
            for mt in range(2):
                for jp in range(2):
                    b0 = ACC + (nt * 2 + mt) * 16 + 8 * jp
                    if ori == "T":
                        for i in range(4):
                            a(f"v_pk_mul_f32 {vr(b0+2*i,2)}, {vr(b0+2*i,2)}, s[40:41]")
                    for i in range(4):
                        a(f"v_cvt_pk_bf16_f32 v{b0+i}, v{b0+2*i}, v{b0+2*i+1}")
                    if ori == "T":
                        a("s_nop 1")
                        a(f"v_permlane32_swap_b32 v{b0}, v{b0+2}")
                        a(f"v_permlane32_swap_b32 v{b0+1}, v{b0+3}")
                        a("s_nop 0")
                        a(f"buffer_store_dwordx4 {vr(b0,4)}, v{vSt}, {sr(SR,4)}, s{sSt + mt} offen offset:{nt*2048 + jp*1024}{stf}")
                    else:
                        a(f"buffer_store_dwordx4 {vr(b0,4)}, v{vSt}, {sr(SR,4)}, s{sSt + mt + 2*jp} offen offset:{nt*512}{stf}")
        stamp(a, 5)
        a(f"s_branch {done_label}")


K1_WST = 16896
K1_NSW = 6 if 'k1_nsw6' in EXP else 5
K1_NSX = 3
K1_XB = K1_WST * K1_NSW
K1_LDS = K1_XB + K1_NSX * 16384


STF = '' if 'k1_plain' in EXP else (' nt' if 'k1_nt' in EXP else (' sc1 nt' if 'k1_sc1nt' in EXP else (' sc0 sc1 nt' if 'k1_all' in EXP else ' sc1')))


def gate_rows(a, n, SX, SGW, SR, sRow, sDst, GW, GX, GA, vL4, vZ):
    for i in range(5):
        a(f"buffer_load_dword v{GW+i}, v{vL4}, {sr(SGW,4)}, 0 offen offset:{256*i}")
    for r in range(n):
        for i in range(5):
            a(f"buffer_load_dword v{GX+5*r+i}, v{vL4}, {sr(SX,4)}, s{sRow} offen offset:{2560*r + 256*i}")
    a("s_waitcnt vmcnt(0)")
    for i in range(5):
        for r in range(n):
            a(f"v_dot2_f32_bf16 v{GA+r}, v{GX+5*r+i}, v{GW+i}, {'0' if i == 0 else 'v%d' % (GA+r)}")
    a("s_nop 3")
    for sh in ("row_shr:1 row_mask:0xf bank_mask:0xf bound_ctrl:0", "row_shr:2 row_mask:0xf bank_mask:0xf bound_ctrl:0",
               "row_shr:4 row_mask:0xf bank_mask:0xf bound_ctrl:0", "row_shr:8 row_mask:0xf bank_mask:0xf bound_ctrl:0",
               "row_bcast:15 row_mask:0xa bank_mask:0xf", "row_bcast:31 row_mask:0xc bank_mask:0xf"):
        for r in range(n):
            a(f"v_add_f32_dpp v{GA+r}, v{GA+r}, v{GA+r} {sh}")
        a("s_nop 1")
    for op in (f"v_mul_f32 vR, {f32(-math.log2(math.e))}, vR", "v_exp_f32 vR, vR", "s_nop 0", "v_add_f32 vR, 1.0, vR", "v_rcp_f32 vR, vR"):
        for r in range(n if "vR" in op else 1):
            a(op.replace("vR", f"v{GA+r}"))
    a("s_mov_b32 exec_lo, 0")
    a("s_mov_b32 exec_hi, 0x80000000")
    for r in range(n):
        a(f"buffer_store_dword v{GA+r}, v{vZ}, {sr(SR,4)}, s{sDst} offen offset:{4*r}")
    a("s_mov_b64 exec, -1")


def gen_k1(a):
    name = "qkv_kernel"
    kernel_head(a, name)
    SX, SW, SR = 20, 24, 28
    sWave = 19
    a("s_cmp_ge_u32 s2, 256")
    a("s_cbranch_scc1 K1_END")
    stamp(a, 0); stamp_rt(a, 1)
    a("""
    s_load_dwordx4 s[4:7], s[0:1], 0
    s_load_dwordx2 s[8:9], s[0:1], 32
    s_load_dwordx2 s[10:11], s[0:1], 72
    s_load_dwordx2 s[54:55], s[0:1], 48
    """)
    if 'noct' not in EXP:
        code_touch(a, 31, 30, 52, "K1_CT0", "attn_kernel", lane="v0")
        a.label("K1_CT0")
    a("""
    v_lshrrev_b32 v2, 6, v0
    v_and_b32 v1, 63, v0
    s_and_b32 s12, s2, 7
    v_readfirstlane_b32 s19, v2
    s_cmp_ge_u32 s2, 240
    s_cbranch_scc1 K1_SIDE
    s_lshr_b32 s13, s2, 3
    s_mul_i32 s12, s12, 30
    s_add_u32 s12, s12, s13
    s_cmp_ge_u32 s12, 120
    s_cselect_b32 s14, 1, 0
    s_cselect_b32 s13, 120, 0
    s_sub_u32 s12, s12, s13
    s_and_b32 s15, s12, 7
    s_lshr_b32 s16, s12, 3
    v_and_b32 v3, 15, v1
    v_lshrrev_b32 v4, 4, v1
    """)
    a(f"""
    s_cmp_ge_u32 s{sWave}, 4
    s_cselect_b32 s12, 1, 0
    s_lshr_b32 s12, s{sWave}, s12
    s_and_b32 s12, s12, 1
    s_lshl_b32 s17, s16, 1
    s_add_u32 s17, s17, s12
    s_cmp_ge_u32 s17, 15
    s_cselect_b32 s18, 1, 0
    s_cselect_b32 s13, 15, 0
    s_sub_u32 s17, s17, s13
    s_movk_i32 s60, 3840
    s_mov_b32 s62, 2621440
    s_movk_i32 s63, 128
    s_cmp_ge_u32 s{sWave}, 4
    s_cbranch_scc0 K1_COMPUTE
    """)
    vW, vXg = 8, 12
    sWo, sXo, sWl, sXl, sWc, sXc, sOrd = 32, 33, 34, 35, 36, 37, 38
    K1_D = int(os.environ.get('K1D', '2'))
    ORD = []
    for g in range(4):
        o = list(range(10))
        for b in range(10):
            if b % 4 == g and K1_D:
                p = o.index(b)
                o.pop(p)
                o.insert(max(0, p - K1_D), b)
        ORD.append(sum(b << (4 * i) for i, b in enumerate(o)))
    a(f"""
    v_lshrrev_b32 v5, 1, v4
    v_and_b32 v6, 1, v4
    v_lshlrev_b32 v5, 4, v5
    v_lshl_add_u32 v5, v6, 2, v5
    v_mul_u32_u24 v5, 3840, v5
    v_lshl_add_u32 v{vW}, v3, 4, v5
    v_add_u32 v{vW+1}, 2784, v{vW}
    v_add_u32 v{vW+2}, {2*2784}, v{vW}
    v_add_u32 v{vW+3}, {3*2784}, v{vW}
    v_lshrrev_b32 v5, 3, v1
    v_and_b32 v6, 7, v1
    v_xor_b32 v6, v6, v5
    v_mul_u32_u24 v5, 2560, v5
    v_lshl_add_u32 v{vXg}, v6, 4, v5
    v_add_u32 v{vXg+1}, 19456, v{vXg}
    v_add_u32 v{vXg+2}, {2*19456}, v{vXg}
    v_add_u32 v{vXg+3}, {3*19456}, v{vXg}
    s_and_b32 s13, s{sWave}, 1
    s_mul_i32 s{sWo}, s13, {8*3840}
    s_lshl_b32 s3, s17, 8
    s_add_u32 s{sWo}, s{sWo}, s3
    s_and_b32 s3, s{sWave}, 3
    s_mul_i32 s{sWl}, s3, {4*1056}
    s_lshl_b32 s{sXl}, s3, 12
    s_add_u32 s{sXl}, s{sXl}, {K1_XB}
    s_lshl_b32 s13, s15, 2
    s_add_u32 s13, s13, s3
    s_mul_i32 s{sXo}, s13, {32*2560}
    s_mul_i32 s13, s14, 1280
    s_add_u32 s{sXo}, s{sXo}, s13
    s_add_u32 s3, s15, s16
    s_and_b32 s3, s3, 3
    s_mov_b32 s{sOrd}, {ORD[0] & 0xffffffff}
    s_mov_b32 s{sOrd+1}, {ORD[0] >> 32}
    s_cmp_eq_u32 s3, 1
    s_cselect_b32 s{sOrd}, {ORD[1] & 0xffffffff}, s{sOrd}
    s_cselect_b32 s{sOrd+1}, {ORD[1] >> 32}, s{sOrd+1}
    s_cmp_eq_u32 s3, 2
    s_cselect_b32 s{sOrd}, {ORD[2] & 0xffffffff}, s{sOrd}
    s_cselect_b32 s{sOrd+1}, {ORD[2] >> 32}, s{sOrd+1}
    s_cmp_eq_u32 s3, 3
    s_cselect_b32 s{sOrd}, {ORD[3] & 0xffffffff}, s{sOrd}
    s_cselect_b32 s{sOrd+1}, {ORD[3] >> 32}, s{sOrd+1}
    s_cmp_eq_u32 s18, 0
    s_waitcnt lgkmcnt(0)
    s_cselect_b64 s[6:7], s[6:7], s[8:9]
    """)
    srd(a, SX, 4, 2621440)
    srd(a, SW, 6, 2457600)
    if STAMP:
        srd(a, SR, 10, WS_BYTES)
    hist = []

    def blk(j, dst):
        r = sOrd + (j // 8)
        a(f"s_bfe_u32 s{dst}, s{r}, {(4 << 16) | (4 * (j % 8))}")

    def wl(k):
        a(f"s_add_u32 m0, s{sWl}, {(k % K1_NSW) * K1_WST}")
        if k % 2 == 0:
            blk(k // 2, sWc)
            a(f"s_mul_i32 s{sWc}, s{sWc}, {2*122880}")
            a(f"s_add_u32 s{sWc}, s{sWc}, s{sWo}")
        else:
            a(f"s_add_u32 s{sWc}, s{sWc}, 122880")
        for i in range(4):
            a(f"buffer_load_dwordx4 v{vW+i}, {sr(SW,4)}, s{sWc} offen offset:{1056*i} lds")
        hist.append(("W", k))

    def xl(j):
        a(f"s_add_u32 m0, s{sXl}, {(j % K1_NSX) * 16384}")
        blk(j, sXc)
        a(f"s_lshl_b32 s{sXc}, s{sXc}, 7")
        a(f"s_add_u32 s{sXc}, s{sXc}, s{sXo}")
        for q in range(4):
            a(f"buffer_load_dwordx4 v{vXg+q}, {sr(SX,4)}, s{sXc} offen offset:{1024*q} lds")
        hist.append(("X", j))

    def need(ks):
        req = [("W", ks), ("X", ks // 2)]
        last = max(hist.index(r) for r in req)
        a(f"s_waitcnt vmcnt({4 * (len(hist) - 1 - last)})")
        a("s_barrier")

    seq = []
    for j in range(10):
        seq += [("X", j), ("W", 2 * j), ("W", 2 * j + 1)]
    pos = [0]

    def free_at(it):
        t, i = it
        if t == "W":
            return i - K1_NSW
        return 2 * (i - K1_NSX) + 1

    def issue(step, nmax):
        n = 0
        while pos[0] < len(seq) and n < nmax and free_at(seq[pos[0]]) <= step:
            t, i = seq[pos[0]]
            (wl if t == "W" else xl)(i)
            pos[0] += 1
            n += 1
    RAMP = [int(c) for c in os.environ.get('K1RAMP', '32222')]
    issue(-2, RAMP[0])
    stamp(a, 2)
    need(0)
    stamp(a, 3)
    issue(-1, RAMP[1])
    for ks in range(19):
        need(ks + 1)
        if ks % 2 == 1 and ks <= 15: stamp(a, 8 + ks // 2)
        issue(ks, RAMP[ks + 2] if ks + 2 < len(RAMP) else RAMP[-1])
    assert pos[0] == len(seq)
    a("s_barrier")
    stamp(a, 4)
    srd(a, SR, 10, WS_BYTES)
    srd(a, 56, 54, 1280)
    a(f"""
    s_lshl_b32 s3, s15, 7
    s_lshl_b32 s12, s16, 3
    s_add_u32 s3, s3, s12
    s_and_b32 s12, s{sWave}, 3
    s_lshl_b32 s12, s12, 1
    s_add_u32 s3, s3, s12
    s_mul_i32 s40, s3, 2560
    s_mul_i32 s12, s14, 1280
    s_add_u32 s40, s40, s12
    s_lshl_b32 s12, s14, 10
    s_add_u32 s3, s3, s12
    s_lshl_b32 s41, s3, 2
    s_add_u32 s41, s41, {G_OFF}
    v_lshlrev_b32 v2, 2, v1
    v_mov_b32 v3, 0
    """)
    gate_rows(a, 2, SX, 56, SR, 40, 41, 32, 40, 52, 2, 3)
    stamp(a, 5); stamp(a, 6); stamp_rt(a, 7)
    stamp_flush(a, 0, SR, sWave, 16, 2)
    a("s_endpgm")

    a.label("K1_COMPUTE")
    TAIL = 'k1_notail' not in EXP and K1_NSW == 5 and K1_NSX == 3
    ACC = 32
    WFR = [0, 32]
    XFR = [64, 80]
    vTr0, vTr, vXr0, vXr, vSt = 8, 9, 10, 12, 14
    sRd, sXr, sIt, sSt, sSeg = 32, 33, 34, 36, 35
    TOUCH = 'k1_touch' in EXP
    ST, sTo, sTs = 44, 42, 43
    TD = 5
    if TOUCH:
        a(f"""
        v_lshrrev_b32 v5, 1, v1
        v_and_b32 v6, 1, v1
        v_lshlrev_b32 v6, 7, v6
        v_mad_u32_u24 v16, v5, s60, v6
        v_mul_u32_u24 v17, 2560, v1
        s_mul_i32 s{sTo}, s15, {8*3840}
        s_lshl_b32 s3, s17, 8
        s_add_u32 s{sTo}, s{sTo}, s3
        s_add_u32 s{sTo}, s{sTo}, {3*64*3840}
        s_lshl_b32 s3, s15, 3
        s_and_b32 s13, s16, 3
        s_lshl_b32 s13, s13, 1
        s_add_u32 s3, s3, s13
        s_and_b32 s13, s{sWave}, 1
        s_add_u32 s3, s3, s13
        s_mul_i32 s3, s3, {16*2560}
        s_mul_i32 s13, s14, 1280
        s_add_u32 s3, s3, s13
        s_add_u32 s3, s3, {3*128}
        s_cmp_eq_u32 s18, 0
        s_waitcnt lgkmcnt(0)
        s_cselect_b64 s[6:7], s[6:7], s[8:9]
        s_cmp_lt_u32 s{sWave}, 2
        s_cselect_b64 s[{ST}:{ST+1}], s[6:7], s[4:5]
        s_cselect_b32 s{ST+2}, 2457600, s62
        s_mov_b32 s{ST+3}, 0x00020000
        s_cselect_b32 s{sTo}, s{sTo}, s3
        s_cselect_b32 s{sTs}, {64*3840}, s63
        s_cselect_b64 s[50:51], -1, 0
        v_cndmask_b32 v16, v17, v16, s[50:51]
        v_cmp_gt_u32 s[50:51], 16, v1
        v_mov_b32 v17, 0x40000000
        s_nop 0
        v_cndmask_b32 v16, v17, v16, s[50:51]
        """)
        for b in range(3, TD):
            a(f"buffer_load_dword v18, v16, {sr(ST,4)}, s{sTo} offen")
            a(f"s_add_u32 s{sTo}, s{sTo}, s{sTs}")
    a(f"""
    v_and_b32 v5, 1, v4
    v_lshrrev_b32 v6, 2, v3
    v_lshl_add_u32 v5, v5, 2, v6
    v_mul_u32_u24 v5, 1056, v5
    v_lshrrev_b32 v6, 1, v4
    v_lshlrev_b32 v6, 9, v6
    v_and_b32 v7, 3, v3
    v_lshlrev_b32 v7, 3, v7
    v_add3_u32 v5, v5, v6, v7
    s_mul_i32 s3, s12, 8448
    v_add_u32 v{vTr0}, s3, v5
    v_and_b32 v5, 3, v3
    v_bfe_u32 v6, v3, 2, 1
    v_lshl_or_b32 v5, v6, 3, v5
    v_bfe_u32 v6, v3, 3, 1
    v_lshl_or_b32 v5, v6, 2, v5
    v_and_b32 v6, 7, v5
    v_xor_b32 v6, v6, v4
    v_lshlrev_b32 v6, 4, v6
    v_lshl_add_u32 v5, v5, 7, v6
    s_lshr_b32 s13, s{sWave}, 1
    s_lshl_b32 s3, s13, 13
    s_add_u32 s3, s3, {K1_XB}
    v_add_u32 v{vXr0}, s3, v5
    v_xor_b32 v{vXr0+1}, 64, v{vXr0}
    v_mov_b32 v{vXr}, v{vXr0}
    v_mov_b32 v{vXr+1}, v{vXr0+1}
    v_mov_b32 v{vTr}, v{vTr0}
    s_mov_b32 s{sRd}, {K1_WST}
    s_mov_b32 s{sXr}, 16384
    s_mov_b32 s{sIt}, 0
    s_mul_i32 s{sSeg}, s17, 52
    s_lshr_b32 s{sSeg}, s{sSeg}, 8
    s_mul_i32 s3, s{sSeg}, 5
    s_sub_u32 s17, s17, s3
    s_mul_i32 s3, s18, 3
    s_add_u32 s3, s3, s{sSeg}
    s_mul_i32 s{sSt}, s3, {SEGB}
    s_lshl_b32 s3, s14, 4
    s_lshl_b32 s16, s15, 1
    s_add_u32 s3, s3, s16
    s_add_u32 s3, s3, s13
    s_mul_i32 s3, s3, {2*TB}
    s_add_u32 s{sSt}, s{sSt}, s3
    s_waitcnt lgkmcnt(0)
    """)
    srd(a, SR, 10, WS_BYTES)
    PFW = int(os.environ.get('K1PFW', '0'))
    if PFW:
        a(f"""
        v_lshlrev_b32 v16, 7, v1
        v_mul_u32_u24 v17, 10240, v4
        v_lshl_add_u32 v17, v3, 7, v17
        s_cmp_eq_u32 s{sSeg}, 2
        s_cselect_b64 s[46:47], -1, 0
        s_cselect_b32 s3, 11, 13
        s_lshl_b32 s3, s17, s3
        s_add_u32 s42, s{sSt}, s3
        s_add_u32 s43, s42, {TB}
        v_cndmask_b32 v16, v16, v17, s[46:47]
        """)
    for i in range(128):
        a(f"v_mov_b32 v{ACC+i}, 0")

    def reads(fset, kk):
        L = [f"ds_read_b128 {ar(XFR[fset]+4*mt,4)}, v{vXr+kk} offset:{2048*mt}" for mt in range(4)]
        for t in range(8):
            for s in range(2):
                L.append(f"ds_read_b64_tr_b16 {ar(WFR[fset]+4*t+2*s,2)}, v{vTr} offset:{s*256 + t*32}")
        return L

    stamp(a, 2)
    a("s_barrier")
    stamp(a, 3)
    for l in reads(0, 0):
        a(l)
    a(f"s_cmp_eq_u32 s{sSeg}, 2")
    a("s_cbranch_scc1 K1_LOOP_N")
    for ori in ("T", "N"):
        a.raw(".p2align 3")
        a.label(f"K1_LOOP_{ori}")
        for s in range(2):
            fs = s
            rd = reads(1 - fs, 1 - s)
            mf = []
            for t in range(8):
                for mt in range(4):
                    acc = vr(ACC + (t * 4 + mt) * 4, 4)
                    w = ar(WFR[fs] + 4 * t, 4)
                    x = ar(XFR[fs] + 4 * mt, 4)
                    if ori == "T":
                        mf.append(f"v_mfma_f32_16x16x32_bf16 {acc}, {w}, {x}, {acc}")
                    else:
                        mf.append(f"v_mfma_f32_16x16x32_bf16 {acc}, {x}, {w}, {acc}")
            a(f"v_add_u32 v{vTr}, s{sRd}, v{vTr0}")
            rest = [f"s_add_u32 s{sRd}, s{sRd}, {K1_WST}",
                    f"s_cmp_ge_u32 s{sRd}, {K1_XB}",
                    f"s_cselect_b32 s{sRd}, 0, s{sRd}"]
            if s == 0 and PFW:
                rest += [f"s_cmp_eq_u32 s{sIt}, {PFW}",
                         f"s_cselect_b32 s44, s42, 0x40000000",
                         f"s_cselect_b32 s45, s43, 0x40000000",
                         f"buffer_load_dword v18, v16, {sr(SR,4)}, s44 offen",
                         f"buffer_load_dword v19, v16, {sr(SR,4)}, s45 offen"]
            if s == 0 and TOUCH:
                rest += [f"s_cmp_lt_u32 s{sIt}, {10-TD}",
                         f"s_cselect_b32 s{sTo}, s{sTo}, 0x40000000",
                         f"buffer_load_dword v18, v16, {sr(ST,4)}, s{sTo} offen",
                         f"s_add_u32 s{sTo}, s{sTo}, s{sTs}"]
            if s == 1:
                a(f"v_add_u32 v{vXr}, s{sXr}, v{vXr0}")
                rest += [f"v_add_u32 v{vXr+1}, s{sXr}, v{vXr0+1}",
                         f"s_add_u32 s{sXr}, s{sXr}, 16384",
                         f"s_cmp_ge_u32 s{sXr}, {K1_NSX*16384}",
                         f"s_cselect_b32 s{sXr}, 0, s{sXr}",
                         f"s_add_u32 s{sIt}, s{sIt}, 1",
                         f"s_cmp_lt_u32 s{sIt}, {8 if TAIL else 10}"]
            a("s_waitcnt lgkmcnt(0)")
            a("s_barrier")
            fill = rd + rest
            for i in range(32):
                a(mf[i])
                if i < len(fill):
                    a(fill[i])
        a(f"s_cbranch_scc1 K1_LOOP_{ori}")
        stamp(a, 4)
        if ori == "T":
            a(f"""
            s_lshl_b32 s3, s17, 13
            s_add_u32 s{sSt}, s{sSt}, s3
            s_add_u32 s{sSt+1}, s{sSt}, 4096
            s_add_u32 s{sSt+2}, s{sSt}, {TB}
            s_add_u32 s{sSt+3}, s{sSt+1}, {TB}
            s_cmp_eq_u32 s{sSeg}, 0
            s_cselect_b32 s40, {f32(QSCALE)}, 1.0
            s_mov_b32 s41, s40
            v_lshlrev_b32 v{vSt}, 4, v1
            s_nop 3
            """)
        else:
            a(f"""
            s_lshl_b32 s3, s17, 11
            s_add_u32 s{sSt}, s{sSt}, s3
            s_add_u32 s{sSt+2}, s{sSt}, {TB}
            v_mul_u32_u24 v5, 10240, v4
            v_lshl_add_u32 v{vSt}, v3, 4, v5
            s_nop 7
            """)
        def epi(t):
            L = []
            for mp in range(2):
                b0 = ACC + (t * 4 + 2 * mp) * 4
                b1 = b0 + 4
                if ori == "T":
                    for i in range(4):
                        L.append(f"v_pk_mul_f32 {vr(b0+2*i,2)}, {vr(b0+2*i,2)}, s[40:41]")
                L.append(f"v_cvt_pk_bf16_f32 v{b0}, v{b0}, v{b0+1}")
                L.append(f"v_cvt_pk_bf16_f32 v{b0+1}, v{b0+2}, v{b0+3}")
                L.append(f"v_cvt_pk_bf16_f32 v{b0+2}, v{b1}, v{b1+1}")
                L.append(f"v_cvt_pk_bf16_f32 v{b0+3}, v{b1+2}, v{b1+3}")
                L.append("s_nop 1")
                sw = "v_permlane16_swap_b32" if ori == "T" else "v_permlane32_swap_b32"
                L.append(f"{sw} v{b0}, v{b0+2}")
                L.append(f"{sw} v{b0+1}, v{b0+3}")
                L.append("s_nop 0")
                if ori == "T":
                    L.append(f"buffer_store_dwordx4 {vr(b0,4)}, v{vSt}, {sr(SR,4)}, s{sSt + 2*mp + t//4} offen offset:{(t%4)*1024}{STF}")
                else:
                    L.append(f"buffer_store_dwordx4 {vr(b0,4)}, v{vSt}, {sr(SR,4)}, s{sSt + 2*mp} offen offset:{t*256}{STF}")
            return L

        if not TAIL:
            for t in range(8):
                for l in epi(t):
                    a(l)
        else:
            XT = [64, 80, 32, 48]
            a(f"v_add_u32 v{vTr}, {3*K1_WST}, v{vTr0}")
            a("s_waitcnt lgkmcnt(0)")
            for i in range(4):
                a("s_barrier")

            def wt(t):
                L = []
                for k in range(4):
                    base, off = (vTr0, (1 + k) * K1_WST) if k < 2 else (vTr, (k - 2) * K1_WST)
                    for h in range(2):
                        L.append(f"ds_read_b64_tr_b16 {ar((t % 2) * 16 + 4 * k + 2 * h, 2)}, v{base} offset:{off + h*256 + t*32}")
                return L
            for l in wt(0):
                a(l)
            for k, (slot, kk) in enumerate(((2, 1), (0, 0), (0, 1))):
                for mt in range(4):
                    a(f"ds_read_b128 {ar(XT[k+1] + 4*mt, 4)}, v{vXr0+kk} offset:{slot*16384 + 2048*mt}")
            for t in range(9):
                fill = (wt(t + 1) if t + 1 < 8 else ["s_nop 3", "s_nop 3"]) + (epi(t - 1) if t >= 1 else [])
                if t == 8:
                    a("s_nop 7")
                    for l in fill:
                        a(l)
                    break
                n = 0
                for k in range(4):
                    if t == 0:
                        a(f"s_waitcnt lgkmcnt({min(15, 12 - 4*k + min(8, n))})" if k else "s_waitcnt lgkmcnt(12)")
                    elif k == 0:
                        a("s_waitcnt lgkmcnt(0)")
                    for mt in range(4):
                        acc = vr(ACC + (t * 4 + mt) * 4, 4)
                        w = ar((t % 2) * 16 + 4 * k, 4)
                        x = ar(XT[k] + 4 * mt, 4)
                        if ori == "T":
                            a(f"v_mfma_f32_16x16x32_bf16 {acc}, {w}, {x}, {acc}")
                        else:
                            a(f"v_mfma_f32_16x16x32_bf16 {acc}, {x}, {w}, {acc}")
                        for l in fill[n:n + 2]:
                            a(l)
                        n += 2
                for l in fill[n:]:
                    a(l)
        stamp(a, 5)
        if STAMP: a("s_waitcnt vmcnt(0)")
        stamp(a, 6); stamp_rt(a, 7)
        stamp_flush(a, 0, SR, sWave, 8, 2)
        a("s_endpgm")

    a.label("K1_SIDE")
    SGW, SWO = 32, 36
    a(f"""
    s_load_dwordx2 s[46:47], s[0:1], 16
    s_load_dwordx4 s[12:15], s[0:1], 40
    s_sub_u32 s16, s2, 240
    s_lshl_b32 s16, s16, 3
    s_add_u32 s16, s16, s{sWave}
    v_lshlrev_b32 v2, 2, v1
    v_lshlrev_b32 v5, 4, v1
    v_lshrrev_b32 v3, 3, v1
    v_and_b32 v4, 7, v1
    v_mul_u32_u24 v3, 1280, v3
    v_lshl_add_u32 v3, v4, 4, v3
    v_lshrrev_b32 v4, 4, v1
    v_bfe_u32 v6, v1, 2, 2
    v_lshl_add_u32 v4, v4, 3, v6
    v_and_b32 v6, 3, v1
    v_lshlrev_b32 v6, 3, v6
    v_lshl_add_u32 v6, v4, 7, v6
    s_lshl_b32 s40, s{sWave}, 14
    v_add_u32 v6, s40, v6
    v_mov_b32 v4, 0
    s_waitcnt lgkmcnt(0)
    """)
    srd(a, SX, 4, 2621440)
    srd(a, SR, 10, WS_BYTES)
    srd(a, SGW, 14, 1280)
    a(f"""
    v_and_b32 v7, 255, v0
    v_lshlrev_b32 v7, 7, v7
    s_mov_b32 s3, {CNT_OFF}
    v_mov_b32 v24, 0
    v_mov_b32 v25, 0
    v_mov_b32 v26, 0
    v_mov_b32 v27, 0
    buffer_store_dwordx4 v[24:27], v7, {sr(SR,4)}, s3 offen
    """)
    a(f"s_mov_b32 s{SWO+2}, 819200")
    a(f"s_mov_b32 s{SWO+3}, 0x00020000")
    if 'notlb' not in EXP:
        a("s_load_dwordx2 s[50:51], s[0:1], 56")
        a("v_lshlrev_b32 v29, 16, v0")
        a(f"buffer_load_dword v28, v29, {sr(SR,4)}, 0 offen")
        a("s_waitcnt lgkmcnt(0)")
        srd(a, 56, 50, 2621440)
        a("buffer_load_dword v28, v29, s[56:59], 0 offen")
    for i in range(4):
        a(f"""
        s_add_u32 s41, s16, {128*i}
        s_cmp_ge_u32 s41, 200
        s_cselect_b32 s{SWO}, s12, s46
        s_cselect_b32 s{SWO+1}, s13, s47
        s_cselect_b32 s3, 200, 0
        s_cselect_b32 s{42+i}, {WOF_BR}, 0
        s_add_u32 s{42+i}, s{42+i}, {WOF_OFF}
        s_sub_u32 s3, s41, s3
        s_mul_i32 s17, s3, 6554
        s_lshr_b32 s17, s17, 16
        s_mul_i32 s18, s17, 10
        s_sub_u32 s18, s3, s18
        s_lshl_b32 s3, s17, 10
        s_add_u32 s{42+i}, s{42+i}, s3
        s_mul_i32 s3, s18, {4*20480}
        s_add_u32 s{42+i}, s{42+i}, s3
        s_mul_i32 s17, s17, {32*1280}
        s_lshl_b32 s18, s18, 7
        s_add_u32 s17, s17, s18
        s_cmp_ge_u32 s41, 400
        s_cselect_b32 s{42+i}, 0x7f000000, s{42+i}
        s_cselect_b32 s17, 0x7f000000, s17
        """)
        for q in range(4):
            a(f"s_add_u32 m0, s40, {4096*i + 1024*q}")
            a("s_nop 0")
            a(f"buffer_load_dwordx4 v3, {sr(SWO,4)}, s17 offen lds")
            a(f"s_add_u32 s17, s17, {8*1280}")
    for i in range(4):
        a("s_waitcnt vmcnt(12)")
        for nt in range(4):
            b = 72 + (4 * i + nt) * 4
            a(f"ds_read_b64_tr_b16 {vr(b,2)}, v6 offset:{4096*i + 32*nt}")
            a(f"ds_read_b64_tr_b16 {vr(b+2,2)}, v6 offset:{4096*i + 32*nt + 512}")
        a("s_waitcnt lgkmcnt(0)")
        for nt in range(4):
            b = 72 + (4 * i + nt) * 4
            a(f"buffer_store_dwordx4 {vr(b,4)}, v5, {sr(SR,4)}, s{42+i} offen sc1")
            a(f"s_add_u32 s{42+i}, s{42+i}, 20480")
    a(f"""
    s_lshr_b32 s3, s16, 3
    s_lshl_b32 s3, s3, 7
    s_and_b32 s17, s16, 7
    s_add_u32 s3, s3, s17
    s_add_u32 s3, s3, 120
    s_and_b32 s17, s3, 1023
    s_mul_i32 s17, s17, 2560
    s_lshr_b32 s18, s3, 10
    s_mul_i32 s18, s18, 1280
    s_add_u32 s17, s17, s18
    s_lshl_b32 s18, s3, 2
    s_add_u32 s18, s18, {G_OFF}
    """)
    gate_rows(a, 1, SX, SGW, SR, 17, 18, 8, 16, 22, 2, 4)
    if 'noct' not in EXP:
        code_touch(a, 31, 30, 52, "attn_kernel", "CODE_END", lane="v0")
    if STAMP:
        a("s_waitcnt vmcnt(0)")
        for i in range(2, 7):
            stamp(a, i)
        stamp_rt(a, 7)
        stamp_flush(a, 0, SR, sWave, 8, 2)
    a.label("K1_END")
    a("s_endpgm")
    return kernel_desc(name, 256, 160, 64)


VB = 352
K2_TILE = 1536 + 4 * VB
K2_SLOT = 8 * K2_TILE
K2_R = 3
K2_FLAG = K2_SLOT * K2_R + 256
K2_LDS = 81920
FUSE = True


def code_touch(a, vdst, vaddr, stmp, first, last, lane="v1"):
    lab = f"CT_{len(a.L)}"
    a(f"s_getpc_b64 s[{stmp}:{stmp+1}]")
    a.label(lab)
    a(f"s_add_u32 s{stmp}, s{stmp}, {first}-{lab}")
    a(f"s_addc_u32 s{stmp+1}, s{stmp+1}, 0")
    a(f"v_lshlrev_b32 v{vaddr}, 7, {lane}")
    a(f"v_min_u32 v{vaddr}, {last}-{first}-4, v{vaddr}")
    a(f"global_load_dword v{vdst}, v{vaddr}, s[{stmp}:{stmp+1}]")


def gen_k2(a):
    name = "attn_kernel"
    kernel_head(a, name)
    SWS = 28
    sWave, sHead, sT = 19, 17, 18
    sDma, sM0, sSlot, sC, sRedo = 24, 25, 26, 27, 20
    sTA, sO, sTouch = 21, 22, 23
    sTmp = 36
    vK10, vK20, vLV, vK1, vK2, vV, vO = 2, 3, 4, 5, 6, 7, 15
    vt = 8
    Q1, Q2 = 16, 20
    KF1, KF2 = 24, 28
    vD = 22
    vD2 = 30
    vGK1, vGK2 = 31, 112
    vL16, vO2, vGV = 113, 114, 115
    VF = 32
    P = 40
    NEGM = 48
    SB = [64, 80]
    O = 96
    AKP1, AKP2 = 116, 120
    vGt, vCb, vOne, vHint = 122, 123, 124, 125
    sProg, sHint, sBad = 46, 47, 48
    NV = 128
    a("s_cmp_ge_u32 s2, 512")
    a("s_cbranch_scc1 K2_END")
    stamp(a, 0); stamp_rt(a, 1)
    a("""
    s_load_dwordx2 s[10:11], s[0:1], 72
    v_lshrrev_b32 v8, 6, v0
    v_and_b32 v1, 63, v0
    s_and_b32 s14, s2, 7
    v_readfirstlane_b32 s19, v8
    s_cmp_ge_u32 s2, 256
    s_cbranch_scc1 K2_AROLE
    s_setprio 3
    s_lshr_b32 s15, s2, 3
    s_lshl_b32 s17, s14, 2
    s_lshr_b32 s3, s15, 3
    s_add_u32 s17, s17, s3
    s_and_b32 s9, s15, 7
    s_lshl_b32 s9, s9, 3
    s_add_u32 s18, s9, s19
    """)

    def head_addr():
        a(f"""
        v_and_b32 v8, 31, v1
        v_lshrrev_b32 v9, 5, v1
        v_lshlrev_b32 v{vL16}, 4, v1
        s_and_b32 s4, s{sHead}, 1
        s_mul_i32 s5, s{sHead}, 5
        s_lshr_b32 s5, s5, 1
        s_lshl_b32 s5, s5, 9
        s_lshl_b32 s6, s4, 9
        s_cmp_eq_u32 s4, 0
        s_cselect_b32 s7, 1024, 8
        v_add_u32 v{vK10}, s6, v{vL16}
        v_lshl_add_u32 v{vK20}, v8, 4, s7
        v_add_u32 v{vGK1}, s5, v{vK10}
        v_add_u32 v{vGK2}, s5, v{vK20}
        s_mul_i32 s6, s{sHead}, 320
        s_mul_i32 s{sTA}, s{sT}, {TB}
        """)

    def out_addr(br):
        a(f"""
        s_lshl_b32 s5, s4, 2
        v_add_u32 v12, s5, v8
        v_subrev_u32 v13, 20, v12
        v_cmp_gt_u32 s[{sTmp}:{sTmp+1}], 20, v12
        v_cmp_gt_u32 s[{sTmp+2}:{sTmp+3}], 20, v8
        v_and_b32 v10, 3, v8
        v_cndmask_b32 v12, v13, v12, s[{sTmp}:{sTmp+1}]
        v_cndmask_b32 v12, v8, v12, s[{sTmp+2}:{sTmp+3}]
        v_bfe_u32 v11, v8, 2, 1
        v_lshl_or_b32 v10, v11, 3, v10
        v_bfe_u32 v11, v8, 3, 1
        v_lshl_or_b32 v10, v11, 2, v10
        v_lshrrev_b32 v11, 4, v8
        v_lshl_or_b32 v14, v11, 4, v10
        v_lshlrev_b32 v10, 4, v10
        v_mul_u32_u24 v11, 20480, v11
        s_mul_i32 s3, s{sHead}, 5
        s_add_u32 s3, s3, 1
        s_lshr_b32 s3, s3, 1
        s_lshl_b32 s3, s3, 8
        v_add3_u32 v10, v10, v11, s3
        v_lshl_add_u32 v{vO}, v9, 8, v10
        s_mul_i32 s5, s4, 760
        s_sub_u32 s5, 512, s5
        v_add_u32 v{vO2}, s5, v10
        s_add_u32 s{sO}, s{sTA}, {O_OFF + br * O_BR}
        v_lshlrev_b32 v{vGt}, 2, v14
        s_lshl_b32 s{sTouch}, s{sT}, 7
        s_add_u32 s{sTouch}, s{sTouch}, {G_OFF}
        """)

    def gate_load():
        a(f"buffer_load_dword v{vGt}, v{vGt}, {sr(SWS,4)}, s{sTouch} offen")

    head_addr()
    a(f"""
    s_add_u32 s5, s5, {4*SEGB}
    v_add_u32 v{vD}, s5, v{vL16}
    s_add_u32 s7, s6, {5*SEGB - 1024 - 512}
    v_cmp_le_u32 s[{sTmp}:{sTmp+1}], 54, v1
    v_mov_b32 v12, {10240-VB}
    v_add_u32 v13, s7, v{vL16}
    v_cndmask_b32 v12, 0, v12, s[{sTmp}:{sTmp+1}]
    v_add_u32 v13, v13, v12
    v_cmp_le_u32 s[{sTmp}:{sTmp+1}], 32, v1
    v_add_u32 v11, 32, v1
    v_mul_u32_u24 v11, 47, v11
    v_cndmask_b32 v{vD+1}, v{vD}, v13, s[{sTmp}:{sTmp+1}]
    v_lshrrev_b32 v11, 10, v11
    v_mul_u32_u24 v11, {10240-VB}, v11
    s_add_u32 s7, s6, {5*SEGB - 2048 + 512}
    v_add3_u32 v{vD2}, v11, v{vL16}, s7
    s_add_u32 s8, s{sTA}, {3*SEGB}
    s_waitcnt lgkmcnt(0)
    """)
    srd(a, SWS, 10, WS_BYTES)

    m1 = ((1 << 64) - 1) & ~(3 << 52)
    m2 = ((1 << 54) - 1) & ~(3 << 10) & ~(3 << 32)

    def dma_parts():
        return [[f"s_mov_b32 m0, s{sM0}",
                 f"s_add_u32 s{sM0}, s{sM0}, {K2_SLOT}",
                 f"buffer_load_dwordx4 v{vD}, {sr(SWS,4)}, s{sDma} offen lds"],
                [f"s_mov_b32 exec_hi, 0x{m1 >> 32:08x}",
                 f"buffer_load_dwordx4 v{vD+1}, {sr(SWS,4)}, s{sDma} offen offset:1024 lds",
                 "s_mov_b32 exec_hi, -1"],
                [f"s_mov_b32 exec_lo, 0x{m2 & 0xffffffff:08x}",
                 f"s_mov_b32 exec_hi, 0x{m2 >> 32:08x}",
                 f"buffer_load_dwordx4 v{vD2}, {sr(SWS,4)}, s{sDma} offen offset:2048 lds",
                 "s_mov_b64 exec, -1"],
                [f"s_add_u32 s{sDma}, s{sDma}, {8*TB}",
                 f"s_cmp_ge_u32 s{sDma}, {64*TB}",
                 f"s_cselect_b32 s{sDma}, 0x40000000, s{sDma}"],
                [f"s_cmp_ge_u32 s{sM0}, {K2_SLOT*K2_R}",
                 f"s_cselect_b32 s{sTmp}, {K2_SLOT*K2_R}, 0",
                 f"s_sub_u32 s{sM0}, s{sM0}, s{sTmp}"]]

    def dma_chunk():
        for p in dma_parts():
            for l in p:
                a(l)

    def dma_init():
        a(f"s_mul_i32 s{sDma}, s{sWave}, {TB}")
        a(f"s_mul_i32 s{sM0}, s{sWave}, {K2_TILE}")

    def zero_state():
        for r in range(16):
            a(f"v_mov_b32 v{O+r}, 0")
        for r in range(4):
            a(f"v_mov_b32 v{P+4+r}, 0")
            a(f"v_mov_b32 v{VF+4+r}, 0")
        a(f"""
        v_mov_b32 v{vV}, v{vLV}
        v_mov_b32 v{vK1}, v{vK10}
        v_mov_b32 v{vK2}, v{vK20}
        s_mov_b32 s{sSlot}, {K2_SLOT}
        s_mov_b32 s{sC}, 0
        """)

    dma_init()
    dma_chunk()
    a(f"buffer_load_dwordx4 {vr(Q1,4)}, v{vGK1}, {sr(SWS,4)}, s8 offen")
    a(f"buffer_load_dwordx2 {vr(Q2,2)}, v{vGK2}, {sr(SWS,4)}, s8 offen")
    a(f"""
    s_mov_b32 s{sRedo}, 0
    v_mov_b32 v{VF}, 0x3f803f80
    v_mov_b32 v{VF+1}, 0x3f803f80
    v_mov_b32 v{VF+2}, 0x3f803f80
    v_mov_b32 v{VF+3}, 0x3f803f80
    v_bfe_u32 v11, v1, 2, 2
    v_min_u32 v11, {K2_R-1}, v11
    v_mul_u32_u24 v11, {K2_SLOT}, v11
    v_and_b32 v12, 3, v1
    v_mul_u32_u24 v12, {VB}, v12
    s_mul_i32 s3, s{sWave}, {K2_TILE}
    v_add3_u32 v11, v11, v12, s3
    ds_write_b128 v11, {vr(VF,4)} offset:{1536+320}
    v_mov_b32 v12, 0
    v_mov_b32 v13, 0
    ds_write_b64 v11, v[12:13] offset:{1536+336}
    ds_write_b64 v11, v[12:13] offset:{1536+344}
    v_mov_b32 v11, {K2_FLAG}
    ds_write_b32 v11, v12
    """)
    out_addr(1)
    gate_load()
    a(f"""
    v_mul_u32_u24 v11, {VB}, v9
    v_min_u32 v12, 21, v12
    v_lshl_add_u32 v11, v12, 4, v11
    v_add_u32 v{vLV}, 1536, v11
    s_mov_b32 exec_lo, 0
    v_mov_b32 v{vK20}, {1536+336}
    s_mov_b32 exec_lo, -1
    """)
    dma_chunk()
    zero_state()
    a(f"""
    v_mov_b32 v{vCb}, {CNT_OFF}
    v_mov_b32 v{vOne}, 1
    v_mov_b32 v{AKP1}, -1
    v_mov_b32 v{AKP1+1}, -1
    v_mov_b32 v{AKP1+2}, -1
    v_mov_b32 v{AKP1+3}, -1
    s_lshl_b32 s{sProg}, s2, 7
    s_cmp_eq_u32 s{sWave}, 7
    s_cselect_b32 s{sProg}, s{sProg}, 0x40000000
    s_cselect_b32 s{sHint}, 0, 0x40000000
    s_lshl_b32 s3, s9, 4
    s_add_u32 s{sHint}, s{sHint}, s3
    s_add_u32 s{sHint}, s{sHint}, {CNT_OFF + 4}
    v_lshlrev_b32 v{vHint}, 10, v1
    s_waitcnt vmcnt(3) lgkmcnt(0)
    """)
    stamp(a, 2)
    a("s_barrier")

    def maxtree(regs, dst):
        a(f"v_max3_f32 v{dst}, v{regs[0]}, v{regs[1]}, v{regs[2]}")
        i = 3
        while i + 1 < len(regs):
            a(f"v_max3_f32 v{dst}, v{dst}, v{regs[i]}, v{regs[i+1]}")
            i += 2
        if i < len(regs):
            a(f"v_max_f32 v{dst}, v{dst}, v{regs[i]}")
        a(f"v_mov_b32 v{dst+1}, v{dst}")
        a("s_nop 1")
        a(f"v_permlane32_swap_b32 v{dst}, v{dst+1}")
        a("s_nop 1")
        a(f"v_max_f32 v{dst}, v{dst}, v{dst+1}")

    def store_o(D):
        a(f"""
        v_mov_b32 v{vt}, v{O+8}
        v_mov_b32 v{vt+1}, v{O+8}
        s_nop 1
        v_permlane32_swap_b32 v{vt}, v{vt+1}
        s_nop 1
        v_rcp_f32 v{vt}, v{vt+1}
        s_nop 0
        v_mul_f32 v{vt}, v{vt}, v{vGt}
        """)
        for r in range(12):
            a(f"v_mul_f32 v{O+r}, v{O+r}, v{vt}")
        for i in range(6):
            a(f"v_cvt_pk_bf16_f32 v{D+i}, v{O+2*i}, v{O+2*i+1}")
        a(f"v_permlane32_swap_b32 v{D}, v{D+2}")
        a(f"v_permlane32_swap_b32 v{D+1}, v{D+3}")
        a("s_mov_b32 exec_hi, 0")
        a(f"buffer_store_dwordx2 {vr(D+4,2)}, v{vO2}, {sr(SWS,4)}, s{sO} offen sc1")
        a("s_mov_b32 exec_hi, -1")
        a(f"buffer_store_dwordx4 {vr(D,4)}, v{vO}, {sr(SWS,4)}, s{sO} offen sc1")

    def kreads(tile):
        o = tile * K2_TILE
        return [f"ds_read_b128 {vr(KF1,4)}, v{vK1} offset:{o}",
                f"ds_read_b64 {vr(KF2,2)}, v{vK2} offset:{o}"]

    def vread(tile, j):
        return f"ds_read_b128 {vr(VF+4*j,4)}, v{vV} offset:{tile * K2_TILE + 2*VB*j}"

    def qk(sb, c, k1=KF1, k2=KF2):
        return [f"v_mfma_f32_32x32x16_bf16 {vr(sb,16)}, {vr(k1,4)}, {vr(Q1,4)}, {c}",
                f"v_mfma_f32_32x32x8_bf16 {vr(sb,16)}, {vr(k2,2)}, {vr(Q2,2)}, {vr(sb,16)}"]

    stamp(a, 3)
    for l in kreads(0):
        a(l)
    a(f"""
    s_mov_b32 exec_lo, 0
    v_mov_b32 v{Q2}, 0
    v_mov_b32 v{Q2+1}, 0
    s_mov_b32 exec_lo, -1
    v_sub_f32 v{vGt}, 1.0, v{vGt}
    s_waitcnt lgkmcnt(0)
    """)
    for l in qk(SB[0], "0"):
        a(l)
    a("s_nop 11")
    maxtree([SB[0] + r for r in range(16)], vt)
    for r in range(16):
        a(f"v_sub_f32 v{NEGM+r}, 0, v{vt}")
    a.label("K2_HAVE_M")
    a("s_waitcnt lgkmcnt(0)")
    a("s_nop 0")
    for l in qk(SB[0], vr(NEGM, 16)):
        a(l)
    for l in kreads(1):
        a(l)
    a(vread(0, 0))
    a("s_nop 9")
    stamp(a, 4)
    a.raw(".p2align 3")
    a.label("K2_LOOP")
    HI = int(os.environ.get('K2HI', '7'))

    def hint():
        a(f"""
        s_mov_b32 exec_hi, 0
        buffer_atomic_add v{vOne}, v{vHint}, {sr(SWS,4)}, s{sHint} offen sc1
        s_mov_b32 exec_hi, -1
        """)
    PR = os.environ.get('K2PRIO', '3..2.1.0')
    prio = {i: int(c) for i, c in enumerate(PR) if c != '.'}
    for i in range(8):
        cur, nxt = SB[i % 2], SB[1 - i % 2]
        e = [f"v_exp_f32 v{cur+r}, v{cur+r}" for r in range(16)]
        c = [f"v_cvt_pk_bf16_f32 v{P+j}, v{cur+2*j}, v{cur+2*j+1}" for j in range(8)]
        q = qk(nxt, vr(NEGM, 16))
        pv = [f"v_mfma_f32_32x32x16_bf16 {vr(O,16)}, {vr(VF+4*j,4)}, {vr(P+4*j,4)}, {vr(O,16)}" for j in range(2)]
        kr = kreads((i + 2) % 8)
        dp = [[]] * 5
        if i == 6:
            a("s_waitcnt vmcnt(0)")
            a("s_barrier")
            a(f"v_add_u32 v{vK1}, s{sSlot}, v{vK10}")
            a(f"v_add_u32 v{vK2}, s{sSlot}, v{vK20}")
            dp = dma_parts()
        if (i - 6) % 8 in prio:
            a(f"s_setprio {prio[(i - 6) % 8]}")
        if i == 1:
            a(f"""
            s_cmp_eq_u32 s{sC}, {os.environ.get('K2PC', '6')}
            s_cbranch_scc1 K2_SIG
            s_cmp_eq_u32 s{sC}, 0
            s_cbranch_scc0 K2_NOSIG
            s_cmp_lg_u32 s{sRedo}, 0
            s_cbranch_scc1 K2_NOSIG
            s_mov_b32 exec_hi, 0
            buffer_store_dwordx2 {vr(AKP1,2)}, v{vO2}, {sr(SWS,4)}, s{sO} offen sc1
            s_mov_b32 exec_hi, -1
            buffer_store_dwordx4 {vr(AKP1,4)}, v{vO}, {sr(SWS,4)}, s{sO} offen sc1
            """)
            a.label("K2_SIG")
            a(f"""
            s_mov_b64 exec, 1
            buffer_atomic_add v{vOne}, v{vCb}, {sr(SWS,4)}, s{sProg} offen sc1
            s_mov_b64 exec, -1
            """)
            a.label("K2_NOSIG")

        if i == HI:
            a(f"s_cmp_eq_u32 s{sC}, 7")
            a("s_cbranch_scc0 K2_NOHINT")
            hint()
            a.label("K2_NOHINT")

        def em(L):
            for l in L:
                a(l)
        a(e[0]); a(e[1])
        a(pv[1])
        a(vread(i, 1))
        a(e[2]); em(dp[0]); a(e[3]); a(c[0]); a(e[4]); a(c[1])
        a("s_waitcnt lgkmcnt(1)")
        a(q[0])
        a(e[5]); em(dp[1]); a(e[6]); a(e[7]); a(c[2]); a(e[8]); a(c[3])
        a(q[1])
        em(kr)
        a(e[9]); em(dp[2]); a(e[10]); a(e[11]); a(c[4]); a(e[12]); a(c[5])
        if i == 7:
            a(f"v_add_u32 v{vV}, s{sSlot}, v{vLV}")
        a(pv[0])
        a(vread((i + 1) % 8, 0))
        a(e[13]); em(dp[3]); a(e[14]); em(dp[4]); a(e[15]); a(c[6])
        a("s_waitcnt lgkmcnt(3)")
        a(c[7])
        if i == 7:
            a(f"s_add_u32 s{sSlot}, s{sSlot}, {K2_SLOT}")
            a(f"s_cmp_ge_u32 s{sSlot}, {K2_SLOT*K2_R}")
            a(f"s_cselect_b32 s{sSlot}, 0, s{sSlot}")
    a(f"""
    s_add_u32 s{sC}, s{sC}, 1
    s_cmp_lt_u32 s{sC}, 8
    s_cbranch_scc1 K2_LOOP
    v_mfma_f32_32x32x16_bf16 {vr(O,16)}, {vr(VF+4,4)}, {vr(P+4,4)}, {vr(O,16)}
    """)
    if HI >= 8:
        hint()
    a(f"""
    v_mov_b32 v{vt+3}, {K2_FLAG}
    s_mov_b32 s3, {f32(2.0**100)}
    s_waitcnt lgkmcnt(0)
    s_nop 9
    """)
    stamp(a, 5)
    a(f"v_mov_b32 v{vt+2}, v{O+8}")
    a("s_mov_b32 exec_hi, 0")
    a(f"v_mul_f32 v{vt+2}, 0, v{O+8}")
    for r in range(9, 12):
        a(f"v_fma_f32 v{vt+2}, v{O+r}, 0, v{vt+2}")
    a("s_mov_b32 exec_hi, -1")
    for r in range(8):
        a(f"v_fma_f32 v{vt+2}, v{O+r}, 0, v{vt+2}")
    a(f"v_cmp_nlt_f32 s[{sTmp}:{sTmp+1}], v{vt+2}, s3")
    a(f"""
    s_nop 3
    s_cmp_eq_u32 s{sRedo}, 0
    s_cbranch_scc1 K2_FIRST
    s_cmp_eq_u32 s{sBad}, 0
    s_cbranch_scc1 K2_NOFLAG
    s_branch K2_GOOD
    """)
    a.label("K2_FIRST")
    a(f"""
    s_cmp_eq_u64 s[{sTmp}:{sTmp+1}], 0
    s_cselect_b32 s{sBad}, 0, 1
    s_cbranch_scc1 K2_GOOD
    ds_write_b32 v{vt+3}, v{vOne}
    s_branch K2_NOFLAG
    """)
    a.label("K2_GOOD")
    store_o(P)
    a.label("K2_NOFLAG")
    a(f"""
    s_waitcnt lgkmcnt(0)
    s_barrier
    ds_read_b32 v{vt+2}, v{vt+3}
    s_waitcnt lgkmcnt(0)
    v_readfirstlane_b32 s3, v{vt+2}
    s_nop 3
    s_cmp_gt_u32 s3, s{sRedo}
    s_cbranch_scc1 K2_FALLBACK
    """)
    a.label("K2_DONE")
    if STAMP: a("s_waitcnt vmcnt(0)")
    stamp(a, 6); stamp_rt(a, 7)
    stamp_flush(a, 1, SWS, sWave, 16, 8, shift=3)
    a.label("K2_END")
    a("s_endpgm")

    a.label("K2_FALLBACK")
    a(f"""
    s_mov_b32 s{sRedo}, 1
    s_mov_b32 s3, {4*SEGB}
    v_mov_b32 v{vt+2}, 0xff800000
    s_waitcnt vmcnt(0)
    """)
    dma_init()
    dma_chunk()
    dma_chunk()
    a.label("K2_MAXLOOP")
    a(f"""
    buffer_load_dwordx4 {vr(KF1,4)}, v{vGK1}, {sr(SWS,4)}, s3 offen
    buffer_load_dwordx2 {vr(KF2,2)}, v{vGK2}, {sr(SWS,4)}, s3 offen
    s_waitcnt vmcnt(0)
    """)
    for l in qk(SB[0], "0"):
        a(l)
    a("s_nop 15")
    for r in range(0, 16, 2):
        a(f"v_max3_f32 v{vt+2}, v{vt+2}, v{SB[0]+r}, v{SB[0]+r+1}")
    a(f"""
    s_add_u32 s3, s3, {TB}
    s_cmp_lt_u32 s3, {5*SEGB}
    s_cbranch_scc1 K2_MAXLOOP
    v_mov_b32 v{vt+3}, v{vt+2}
    s_nop 1
    v_permlane32_swap_b32 v{vt+2}, v{vt+3}
    s_nop 1
    v_max_f32 v{vt+2}, v{vt+2}, v{vt+3}
    """)
    for r in range(16):
        a(f"v_sub_f32 v{NEGM+r}, 0, v{vt+2}")
    zero_state()
    a("s_barrier")
    for l in kreads(0):
        a(l)
    a("s_branch K2_HAVE_M")

    a.label("K2_AROLE")
    sMb, sNb, sWb, sOb, sLq, sOut = 50, 51, 52, 53, 54, 55
    SOUT = 56
    a(f"""
    s_load_dwordx2 s[48:49], s[0:1], 56
    s_setprio {os.environ.get('K2APRIO', '1')}
    s_bfe_u32 s15, s2, {(5 << 16) | 3}
    s_lshl_b32 s{sMb}, s14, 2
    s_and_b32 s3, s15, 3
    s_add_u32 s{sMb}, s{sMb}, s3
    s_lshr_b32 s{sNb}, s15, 2
    s_lshl_b32 s{sHead}, s{sNb}, 2
    s_lshr_b32 s3, s{sWave}, 1
    s_add_u32 s{sHead}, s{sHead}, s3
    s_lshl_b32 s{sT}, s{sMb}, 1
    s_and_b32 s3, s{sWave}, 1
    s_add_u32 s{sT}, s{sT}, s3
    """)
    head_addr()
    sPrev, sTAp = 46, 24
    a(f"""
    s_and_b32 s3, s{sT}, 31
    s_cmp_lg_u32 s3, 0
    s_cselect_b32 s3, {TB}, 0
    s_cselect_b64 s[{sPrev}:{sPrev+1}], -1, 0
    s_sub_u32 s{sTAp}, s{sTA}, s3
    v_mov_b32 v10, {f32(-1e30)}
    """)
    AV = [VF, VF + 4, P]
    AC = SB
    for b in AV:
        for i in range(4):
            a(f"v_mov_b32 v{b+i}, 0x3f803f80")

    def lanemask(fn):
        m = 0
        for l in range(64):
            if fn(l):
                m |= 1 << l
        return m
    k = 0
    for r in range(16):
        m = lanemask(lambda l: 0 <= pi5(l % 32) - (16 * (r // 8) + 8 * (l // 32) + r % 8) <= 7)
        sp = sTmp + 2 + 2 * (k % 3); k += 1
        a(f"s_mov_b32 s{sp}, 0x{m & 0xffffffff:08x}")
        a(f"s_mov_b32 s{sp+1}, 0x{m >> 32:08x}")
        a(f"v_cndmask_b32 v{AC[0]+r}, v10, 0, s[{sp}:{sp+1}]")
    for r in range(8, 16):
        m = lanemask(lambda l: pi5(l % 32) + 32 - (16 * (r // 8) + 8 * (l // 32) + r % 8) <= 7)
        sp = sTmp + 2 + 2 * (k % 3); k += 1
        a(f"s_and_b32 s{sp}, s{sPrev}, 0x{m & 0xffffffff:08x}")
        a(f"s_and_b32 s{sp+1}, s{sPrev}, 0x{m >> 32:08x}")
        a(f"v_cndmask_b32 v{AC[1]+r}, v10, 0, s[{sp}:{sp+1}]")
    a("s_waitcnt lgkmcnt(0)")
    srd(a, SWS, 10, WS_BYTES)
    srd(a, SOUT, 48, 2621440)
    sLine = 60
    a(f"s_and_b32 s{sLine}, s2, 255")
    a(f"s_lshl_b32 s{sLine}, s{sLine}, 7")
    a(f"s_add_u32 s{sLine}, s{sLine}, {CNT_OFF}")

    def poll(lab, word, need, sleep, limit):
        a(f"""
        s_movk_i32 s9, {limit}
        v_mov_b32 v10, 0
        """)
        a.label(lab)
        a(f"""
        buffer_load_dword v11, v10, {sr(SWS,4)}, s{sLine} offen offset:{4*word} sc1
        s_waitcnt vmcnt(0)
        v_readfirstlane_b32 s3, v11
        s_sub_u32 s9, s9, 1
        s_nop 2
        s_cmp_ge_u32 s3, {need}
        s_cbranch_scc1 {lab}_OK
        s_sleep {sleep}
        s_cmp_lg_u32 s9, 0
        s_cbranch_scc1 {lab}
        """)
        a.label(lab + "_OK")

    out_addr(0)
    a(f"""
    v_mul_u32_u24 v11, 10240, v9
    v_lshl_add_u32 v11, v12, 4, v11
    v_add_u32 v{vGV}, s6, v11
    """)
    ACC, OF, WF = 16, 36, 76
    vLn, vW, vOut, vOut2, vCn = 2, 3, 4, 5, 6
    a(f"""
    v_mov_b32 v{vLn}, v{vL16}
    s_lshr_b32 s4, s{sWave}, 2
    s_mul_i32 s{sLq}, s4, 40960
    v_add_u32 v{vW}, s{sLq}, v{vL16}
    s_mul_i32 s5, s4, 10240
    s_mul_i32 s{sWb}, s{sNb}, {5*20480}
    s_add_u32 s{sWb}, s{sWb}, s5
    s_add_u32 s{sWb}, s{sWb}, {WOF_OFF}
    s_lshl_b32 s6, s{sMb}, 2
    s_and_b32 s3, s{sWave}, 3
    s_add_u32 s6, s6, s3
    s_mul_i32 s{sOb}, s6, 20480
    s_add_u32 s{sOb}, s{sOb}, s5
    s_add_u32 s{sOb}, s{sOb}, {O_OFF}
    s_mul_i32 s3, s3, 10240
    s_add_u32 s{sLq}, s{sLq}, s3
    v_and_b32 v9, 15, v1
    v_lshrrev_b32 v11, 4, v1
    v_mul_u32_u24 v12, 2560, v9
    v_and_b32 v13, 1, v11
    v_lshlrev_b32 v13, 5, v13
    v_lshrrev_b32 v14, 1, v11
    v_lshlrev_b32 v14, 4, v14
    v_add3_u32 v{vOut}, v12, v13, v14
    v_lshl_add_u32 v{vOut2}, v11, 3, v12
    s_and_b32 s7, s6, 63
    s_mul_i32 s7, s7, {16*2560}
    s_lshr_b32 s6, s6, 6
    s_mul_i32 s6, s6, 1280
    s_add_u32 s{sOut}, s6, s7
    s_mul_i32 s7, s{sNb}, 160
    s_add_u32 s{sOut}, s{sOut}, s7
    """)
    a(f"s_cmp_eq_u32 s{sWave}, 0")
    a("s_cbranch_scc0 K2_SGO")
    poll("K2_SPOLL", 0, 1, 12, 64)
    a.label("K2_SGO")
    a("s_barrier")
    gate_load()
    a(f"""
    s_add_u32 s3, s{sTA}, {SEGB}
    s_add_u32 s4, s{sTAp}, {SEGB}
    """)
    for (r1, r2, so) in ((Q1, Q2, sTA), (KF1, KF2, 3), (AKP1, AKP2, 4)):
        a(f"buffer_load_dwordx4 {vr(r1,4)}, v{vGK1}, {sr(SWS,4)}, s{so} offen")
        a(f"buffer_load_dwordx2 {vr(r2,2)}, v{vGK2}, {sr(SWS,4)}, s{so} offen")
    a(f"""
    s_add_u32 s3, s{sTA}, {2*SEGB}
    s_add_u32 s4, s3, 20480
    s_add_u32 s5, s{sTAp}, {2*SEGB+20480}
    s_mov_b32 exec_lo, 0x000fffff
    s_mov_b32 exec_hi, 0x000fffff
    buffer_load_dwordx4 {vr(AV[0],4)}, v{vGV}, {sr(SWS,4)}, s3 offen
    buffer_load_dwordx4 {vr(AV[1],4)}, v{vGV}, {sr(SWS,4)}, s4 offen
    buffer_load_dwordx4 {vr(AV[2],4)}, v{vGV}, {sr(SWS,4)}, s5 offen
    s_mov_b64 exec, -1
    s_waitcnt vmcnt(3)
    s_mov_b32 exec_lo, 0
    v_mov_b32 v{Q2}, 0
    v_mov_b32 v{Q2+1}, 0
    s_mov_b32 exec_lo, -1
    s_nop 1
    """)
    stamp(a, 2)
    for l in qk(AC[0], vr(AC[0], 16)) + qk(AC[1], vr(AC[1], 16), AKP1, AKP2):
        a(l)
    a("s_nop 11")
    aregs = [AC[0] + r for r in range(16)] + [AC[1] + r for r in range(8, 16)]
    maxtree(aregs, vt)
    for r in aregs:
        a(f"v_sub_f32 v{r}, v{r}, v{vt}")
    for r in aregs:
        a(f"v_exp_f32 v{r}, v{r}")
    a("s_waitcnt vmcnt(0)")
    AP = NEGM
    for i in range(12):
        a(f"v_cvt_pk_bf16_f32 v{AP+i}, v{aregs[2*i]}, v{aregs[2*i+1]}")
    a(f"""
    s_nop 1
    v_mfma_f32_32x32x16_bf16 {vr(O,16)}, {vr(AV[0],4)}, {vr(AP,4)}, 0
    v_mfma_f32_32x32x16_bf16 {vr(O,16)}, {vr(AV[1],4)}, {vr(AP+4,4)}, {vr(O,16)}
    v_mfma_f32_32x32x16_bf16 {vr(O,16)}, {vr(AV[2],4)}, {vr(AP+8,4)}, {vr(O,16)}
    s_nop 11
    """)
    store_o(AKP1)
    a(f"""
    v_lshlrev_b32 v{vCn}, 12, v1
    v_mov_b32 v9, 1
    s_and_b32 s7, s2, 31
    s_lshl_b32 s7, s7, 7
    s_add_u32 s7, s7, {CNT_OFF + 8}
    s_waitcnt vmcnt(0)
    s_barrier
    s_cmp_eq_u32 s{sWave}, 0
    s_cbranch_scc0 K2_PNOSIG
    s_mov_b64 exec, 0xff
    buffer_atomic_add v9, v{vCn}, {sr(SWS,4)}, s7 offen sc1
    s_mov_b64 exec, -1
    """)
    a.label("K2_PNOSIG")
    stamp(a, 3)
    for i in range(20):
        a(f"v_mov_b32 v{ACC+i}, 0")
    a(f"s_mov_b32 s{sC}, 0")
    a.label("K2_PROUND")
    a(f"""
    s_and_b32 s3, s{sWave}, 3
    s_lshl_b32 s3, s3, 11
    s_add_u32 s4, s{sWb}, s3
    """)
    for nt in range(5):
        a(f"s_add_u32 m0, s{sLq}, {1024*nt}")
        a(f"s_add_u32 s4, s4, 20480" if nt else "s_nop 0")
        a(f"buffer_load_dwordx4 v{vLn}, {sr(SWS,4)}, s4 offen lds")
        a(f"s_add_u32 m0, s{sLq}, {1024*nt + 5120 - 1024}")
        a("s_nop 0")
        a(f"buffer_load_dwordx4 v{vLn}, {sr(SWS,4)}, s4 offen offset:1024 lds")
    a(f"s_add_u32 s4, s{sWb}, 8192")
    for nt in range(5):
        if nt:
            a("s_add_u32 s4, s4, 20480")
        a(f"buffer_load_dwordx4 {vr(WF+4*nt,4)}, v{vLn}, {sr(SWS,4)}, s4 offen")
        a(f"buffer_load_dwordx4 {vr(WF+20+4*nt,4)}, v{vLn}, {sr(SWS,4)}, s4 offen offset:1024")
    a(f"""
    s_cmp_eq_u32 s{sWave}, 0
    s_cbranch_scc0 K2_PGO
    s_cmp_lg_u32 s{sC}, 0
    s_cbranch_scc1 K2_PWB
    """)
    poll("K2_POLLA", 2, 8, 12, 8192)
    a("s_branch K2_PGO")
    a.label("K2_PWB")
    poll("K2_POLLE", 0, 2, int(os.environ.get('K2SLEEP2', '48')), 2048)
    if 'p_prio3' in EXP: a("s_setprio 3")
    poll("K2_POLLB", 1, 32, int(os.environ.get('K2SLEEP1', '4')), 16384)
    a.label("K2_PGO")
    a("s_waitcnt vmcnt(0)")
    a("s_barrier")
    if STAMP:
        a("s_memtime s[86:87]")
        a("s_waitcnt lgkmcnt(0)")
        a(f"s_cmp_eq_u32 s{sC}, 0")
        a("s_cselect_b32 s74, s86, s74")
        a("s_cselect_b32 s78, s78, s86")
    ROT = False

    def ksreg(i, dst, mul):
        if ROT:
            a(f"s_add_u32 s{dst}, s{sNb}, {i}")
            a(f"s_and_b32 s{dst}, s{dst}, 7")
            a(f"s_mul_i32 s{dst}, s{dst}, {mul}")
        else:
            a(f"s_mov_b32 s{dst}, {i * mul}")
    iss = [0, 1, 8, 9, 2, 3, 4, 5, 6, 7] if ROT else [8, 9, 0, 1, 2, 3, 4, 5, 6, 7]
    con = [8, 9, 0, 1, 2, 3, 4, 5, 6, 7]
    a(f"s_add_u32 s4, s{sOb}, 8192")
    NB1 = int(os.environ.get('K2NB1', '10'))

    def oload(st):
        if st < 8:
            a(f"s_add_u32 s6, s{sOb}, {1024*st}")
            a(f"buffer_load_dwordx4 {vr(OF+4*st,4)}, v{vLn}, {sr(SWS,4)}, s6 offen sc1")
        else:
            a(f"buffer_load_dwordx4 {vr(OF+4*st,4)}, v{vLn}, {sr(SWS,4)}, s4 offen offset:{(st-8)*1024} sc1")
    for st in con[:NB1]:
        oload(st)
    retry = []
    a("s_mov_b32 s9, 0x10000")
    for i, st in enumerate(con):
        if i == 0 and NB1 < 10:
            a(f"s_waitcnt vmcnt({NB1-1})")
            for st2 in con[NB1:]:
                oload(st2)
        else:
            a(f"s_waitcnt vmcnt({9-i})" + (f" lgkmcnt({5 if i < 9 else 0})" if i >= 2 else ""))
        if STAMP and i in (0, 5):
            a("s_memtime s[86:87]")
            a("s_waitcnt lgkmcnt(0)")
            a(f"s_mov_b32 s{81 if i == 0 else 82}, s86")
        a.label(f"K2_PCHK{i}")
        a(f"v_max3_u32 v8, v{OF+4*st}, v{OF+4*st+1}, v{OF+4*st+2}")
        a(f"v_max_u32 v8, v8, v{OF+4*st+3}")
        a("v_cmp_eq_u32 vcc, -1, v8")
        if i + 2 < 10:
            ksreg(con[i + 2], 3, 5120)
            a(f"v_add_u32 v7, s3, v{vW}")
        a(f"s_cbranch_vccnz K2_PRETRY{i}")
        a.label(f"K2_PCONT{i}")
        retry.append((i, st))
        for nt in range(5):
            d = vr(ACC + 4 * nt, 4)
            a(f"v_mfma_f32_16x16x32_bf16 {d}, {vr(WF + (i % 2) * 20 + 4 * nt, 4)}, {vr(OF+4*st,4)}, {d}")
        if i + 2 < 10:
            for nt in range(5):
                a(f"ds_read_b128 {vr(WF + (i % 2) * 20 + 4 * nt, 4)}, v7 offset:{1024*nt}")
    a(f"""
    s_barrier
    s_cmp_lg_u32 s{sC}, 0
    s_cbranch_scc1 K2_PFIN
    s_mov_b32 s{sC}, 1
    s_add_u32 s{sWb}, s{sWb}, {WOF_BR}
    s_add_u32 s{sOb}, s{sOb}, {O_BR}
    """)
    stamp(a, 5)
    a("s_branch K2_PROUND")
    a.label("K2_PFIN")
    stamp(a, 9)
    if STAMP:
        a("s_sub_u32 s80, 0x10000, s9")
        a("s_add_u32 s80, s80, s70")
    a(f"""
    s_and_b32 s3, s{sWave}, 3
    s_mul_i32 s3, s3, 5120
    v_add_u32 v{vW}, s3, v{vLn}
    s_cmp_lt_u32 s{sWave}, 4
    s_cbranch_scc1 K2_PSUM
    """)
    for nt in range(5):
        a(f"ds_write_b128 v{vW}, {vr(ACC+4*nt,4)} offset:{1024*nt}")
    a("s_waitcnt lgkmcnt(0)")
    a("s_barrier")
    a("s_branch K2_DONE")
    a.label("K2_PSUM")
    a("s_barrier")
    for nt in range(5):
        a(f"ds_read_b128 {vr(OF + 4*nt, 4)}, v{vW} offset:{1024*nt}")
    a("s_waitcnt lgkmcnt(0)")
    for i in range(20):
        a(f"v_add_f32 v{ACC+i}, v{ACC+i}, v{OF+i}")
    for pr in range(2):
        b0 = ACC + pr * 8
        b1 = b0 + 4
        a(f"v_cvt_pk_bf16_f32 v{b0}, v{b0}, v{b0+1}")
        a(f"v_cvt_pk_bf16_f32 v{b0+1}, v{b0+2}, v{b0+3}")
        a(f"v_cvt_pk_bf16_f32 v{b0+2}, v{b1}, v{b1+1}")
        a(f"v_cvt_pk_bf16_f32 v{b0+3}, v{b1+2}, v{b1+3}")
        a("s_nop 1")
        a(f"v_permlane16_swap_b32 v{b0}, v{b0+2}")
        a(f"v_permlane16_swap_b32 v{b0+1}, v{b0+3}")
        a("s_nop 0")
        a(f"buffer_store_dwordx4 {vr(b0,4)}, v{vOut}, {sr(SOUT,4)}, s{sOut} offen offset:{pr*64}")
    b0 = ACC + 16
    a(f"v_cvt_pk_bf16_f32 v{b0}, v{b0}, v{b0+1}")
    a(f"v_cvt_pk_bf16_f32 v{b0+1}, v{b0+2}, v{b0+3}")
    a(f"buffer_store_dwordx2 {vr(b0,2)}, v{vOut2}, {sr(SOUT,4)}, s{sOut} offen offset:128")
    a("s_branch K2_DONE")
    for i, st in retry:
        a.label(f"K2_PRETRY{i}")
        a(f"""
        s_sub_u32 s9, s9, 1
        s_cmp_eq_u32 s9, 0
        s_cbranch_scc1 K2_PGIVE{i}
        s_waitcnt vmcnt(0)
        """)
        for st2 in con[i:]:
            a(f"s_add_u32 s5, s{sOb}, {1024*st2}")
            a(f"buffer_load_dwordx4 {vr(OF+4*st2,4)}, v{vLn}, {sr(SWS,4)}, s5 offen sc1")
        a(f"s_waitcnt vmcnt({9-i})")
        a(f"s_branch K2_PCHK{i}")
        a.label(f"K2_PGIVE{i}")
        a("s_mov_b32 s9, 1")
        a(f"s_branch K2_PCONT{i}")
    a.label("CODE_END")
    return kernel_desc(name, NV, NV, 64)


K3_DIST = int(os.environ.get('K3D', '2'))
K3_NS = K3_DIST + 2
K3_LDS = K3_NS * 20480


def gen_k3(a):
    name = "proj_kernel"
    kernel_head(a, name)
    SWS, SOUT = 20, 24
    sWave, sMb, sNb = 16, 17, 18
    sO, sW, sRot, sM0, sOc, sWc = 28, 29, 31, 32, 33, 34
    vL16, vWj, vG, vOut, vOut2 = 2, 3, 7, 8, 9
    ACC = [16, 36]
    OF = 56
    WF = 56 + 16 * (K3_DIST + 1)
    NV = WF + 40
    DIST = K3_DIST
    NO = DIST + 1
    a("s_cmp_ge_u32 s2, 256")
    a("s_cbranch_scc1 K3_END")
    stamp(a, 0); stamp_rt(a, 1)
    a("""
    s_load_dwordx2 s[4:5], s[0:1], 56
    s_load_dwordx2 s[6:7], s[0:1], 72
    v_lshrrev_b32 v9, 6, v0
    v_and_b32 v1, 63, v0
    s_and_b32 s14, s2, 7
    v_readfirstlane_b32 s16, v9
    s_lshr_b32 s15, s2, 3
    s_lshl_b32 s17, s14, 2
    s_and_b32 s3, s15, 3
    s_add_u32 s17, s17, s3
    s_lshr_b32 s18, s15, 2
    v_lshlrev_b32 v2, 4, v1
    """)
    a(f"""
    s_and_b32 s19, s{sNb}, 1
    s_lshr_b32 s{sRot}, s{sNb}, 1
    s_lshl_b32 s3, s{sMb}, 2
    s_add_u32 s3, s3, s{sWave}
    s_mul_i32 s{sO}, s3, 20480
    s_add_u32 s{sO}, s{sO}, {O_OFF}
    s_mul_i32 s{sW}, s{sNb}, {5*20480}
    s_lshl_b32 s14, s{sWave}, 10
    s_add_u32 s{sW}, s{sW}, s14
    s_add_u32 s{sW}, s{sW}, {WOF_OFF}
    s_mov_b32 s{sM0}, s14
    s_mul_i32 s14, s19, {O_BR}
    s_mul_i32 s15, s19, {WOF_BR}
    s_sub_u32 s36, {O_BR}, s14
    s_sub_u32 s37, {WOF_BR}, s15
    s_add_u32 s36, s36, s{sO}
    s_add_u32 s37, s37, s{sW}
    s_add_u32 s{sO}, s{sO}, s14
    s_add_u32 s{sW}, s{sW}, s15
    s_waitcnt lgkmcnt(0)
    """)
    srd(a, SWS, 6, WS_BYTES)
    srd(a, SOUT, 4, 2621440)

    def load_items(g):
        pre = []
        if g == 5:
            pre += [f"s_mov_b32 s{sO}, s36", f"s_mov_b32 s{sW}, s37"]
        pre += [f"s_lshl_b32 s14, s{sRot}, 12",
                f"s_add_u32 s{sOc}, s{sO}, s14",
                f"s_add_u32 s{sWc}, s{sW}, s14",
                f"s_add_u32 s{sRot}, s{sRot}, 1",
                f"s_cmp_ge_u32 s{sRot}, 5",
                f"s_cselect_b32 s{sRot}, 0, s{sRot}"]
        items = []
        for k in range(4):
            items.append([f"buffer_load_dwordx4 {vr(OF + (g % NO) * 16 + 4 * k, 4)}, v{vL16}, {sr(SWS,4)}, s{sOc} offen offset:{1024*k}"])
        for nt in range(5):
            items.append([f"s_add_u32 m0, s{sM0}, {(g % K3_NS) * 20480 + nt * 4096}",
                          f"s_add_u32 s{sWc}, s{sWc}, 20480" if nt else "s_nop 0",
                          f"buffer_load_dwordx4 v{vL16}, {sr(SWS,4)}, s{sWc} offen lds"])
        items[0] = pre + items[0]
        return items

    def loads(g):
        for it in load_items(g):
            for l in it:
                a(l)

    if 'k3_wfirst' in EXP and DIST == 2:
        i0 = load_items(0)
        pre0, o0first = i0[0][:-1], i0[0][-1]
        for l in pre0: a(l)
        a(f"s_mov_b32 s40, s{sOc}")
        for it in i0[4:]:
            for l in it: a(l)
        for l in [o0first] + [it[0] for it in i0[1:4]]:
            a(l)
        i1 = load_items(1)
        for it in i1:
            for l in it: a(l)
    else:
        for g in range(DIST):
            loads(g)
    a(f"""
    v_and_b32 v9, 15, v1
    v_lshlrev_b32 v10, 2, v9
    s_lshl_b32 s14, s3, 6
    s_add_u32 s35, s14, {G_OFF}
    v_lshrrev_b32 v11, 4, v1
    v_mul_u32_u24 v12, 2560, v9
    v_and_b32 v13, 1, v11
    v_lshlrev_b32 v13, 5, v13
    v_lshrrev_b32 v14, 1, v11
    v_lshlrev_b32 v14, 4, v14
    v_add3_u32 v{vOut}, v12, v13, v14
    v_lshl_add_u32 v{vOut2}, v11, 3, v12
    v_add_u32 v{vWj}, 40960, v{vL16}
    v_add_u32 v{vWj+1}, 81920, v{vL16}
    s_and_b32 s14, s3, 63
    s_mul_i32 s14, s14, {16*2560}
    s_lshr_b32 s15, s3, 6
    s_mul_i32 s15, s15, 1280
    s_add_u32 s30, s14, s15
    s_mul_i32 s15, s{sNb}, 160
    s_add_u32 s30, s30, s15
    """)

    def wread(g, k):
        slot = g % K3_NS
        base, off = ((vL16, vWj, vWj + 1)[slot // 2], (slot % 2) * 20480)
        return [f"ds_read_b128 {vr(WF + (k % 2) * 20 + 4 * nt, 4)}, v{base} offset:{off + nt*4096 + k*1024}" for nt in range(5)]

    for g in range(10):
        if g == 0: stamp(a, 2)
        n_after = 9 * (min(10, g + DIST) - 1 - g) + (1 if g == 9 else 0)
        a(f"s_waitcnt vmcnt({n_after})")
        a("s_barrier")
        if g == 0: stamp(a, 3)
        for l in wread(g, 0):
            a(l)
        items = load_items(g + DIST) if g + DIST < 10 else []
        if g == 8:
            items = [[f"buffer_load_dword v{vG}, v10, {sr(SWS,4)}, s35 offen"]]
        if items:
            for l in items.pop(0):
                a(l)
        acc = ACC[g // 5]
        for k in range(4):
            if k < 3:
                for l in wread(g, k + 1):
                    a(l)
                a("s_waitcnt lgkmcnt(5)")
            else:
                a("s_waitcnt lgkmcnt(0)")
            for nt in range(5):
                d = vr(acc + 4 * nt, 4)
                c = "0" if (g % 5 == 0 and k == 0) else d
                a(f"v_mfma_f32_16x16x32_bf16 {d}, {vr(WF + (k % 2) * 20 + 4 * nt, 4)}, {vr(OF + (g % NO) * 16 + 4 * k, 4)}, {c}")
                if nt in (1, 3) and items:
                    for l in items.pop(0):
                        a(l)
        assert not items
    stamp(a, 4)
    a(f"""
    s_waitcnt vmcnt(0)
    v_sub_f32 v10, 1.0, v{vG}
    s_cmp_eq_u32 s19, 0
    s_cselect_b64 s[38:39], -1, 0
    v_cndmask_b32 v11, v10, v{vG}, s[38:39]
    v_cndmask_b32 v10, v{vG}, v10, s[38:39]
    """)
    A0, A1 = ACC
    for i in range(20):
        a(f"v_mul_f32 v{A0+i}, v{A0+i}, v11")
    for i in range(20):
        a(f"v_fma_f32 v{A0+i}, v{A1+i}, v10, v{A0+i}")
    for pr in range(2):
        b0 = A0 + pr * 8
        b1 = b0 + 4
        a(f"v_cvt_pk_bf16_f32 v{b0}, v{b0}, v{b0+1}")
        a(f"v_cvt_pk_bf16_f32 v{b0+1}, v{b0+2}, v{b0+3}")
        a(f"v_cvt_pk_bf16_f32 v{b0+2}, v{b1}, v{b1+1}")
        a(f"v_cvt_pk_bf16_f32 v{b0+3}, v{b1+2}, v{b1+3}")
        a("s_nop 1")
        a(f"v_permlane16_swap_b32 v{b0}, v{b0+2}")
        a(f"v_permlane16_swap_b32 v{b0+1}, v{b0+3}")
        a("s_nop 0")
        a(f"buffer_store_dwordx4 {vr(b0,4)}, v{vOut}, {sr(SOUT,4)}, s30 offen offset:{pr*64}")
    b0 = A0 + 16
    a(f"v_cvt_pk_bf16_f32 v{b0}, v{b0}, v{b0+1}")
    a(f"v_cvt_pk_bf16_f32 v{b0+1}, v{b0+2}, v{b0+3}")
    a(f"buffer_store_dwordx2 {vr(b0,2)}, v{vOut2}, {sr(SOUT,4)}, s30 offen offset:128")
    stamp(a, 5)
    if STAMP: a("s_waitcnt vmcnt(0)")
    stamp(a, 6); stamp_rt(a, 7)
    stamp_flush(a, 2, SWS, sWave, 8, 10)
    a.label("K3_END")
    a("s_endpgm")
    a.label("CODE_END")
    return kernel_desc(name, NV, NV, 44)


def gen_diag(a):
    name = "diag_kernel"
    kernel_head(a, name)
    a("""
    s_cmp_ge_u32 s2, 1
    s_cbranch_scc1 KD_END
    s_load_dwordx4 s[4:7], s[0:1], 64
    s_waitcnt lgkmcnt(0)
    """)
    srd(a, 8, 6, WS_BYTES)
    srd(a, 12, 4, 256)
    a("v_lshlrev_b32 v1, 10, v0")
    a("v_mov_b32 v2, 0")
    for k, waves, idx in ((0, (0, 3), (3, 4)), (1, (0, 15), (3, 5)), (2, (0, 3), (3, 4))):
        for wi, w in enumerate(waves):
            a(f"s_mov_b32 s16, {DBG_OFF + k*(1<<18) + w*64}")
            a("buffer_load_dwordx4 v[4:7], v1, s[8:11], s16 offen")
            a("buffer_load_dwordx4 v[8:11], v1, s[8:11], s16 offen offset:16")
            a("s_waitcnt vmcnt(0)")
            a("v_not_b32 v12, v5")
            a(f"buffer_atomic_umax v12, v2, s[12:15], 0 offen offset:{k*20}")
            a(f"buffer_atomic_umax v11, v2, s[12:15], 0 offen offset:{k*20+4}")
            if wi == 0:
                a(f"v_sub_u32 v12, v{4+idx[0]}, v4")
                a(f"buffer_atomic_add v12, v2, s[12:15], 0 offen offset:{k*20+8}")
                a(f"v_sub_u32 v13, v{4+idx[1]}, v4")
                a(f"buffer_atomic_add v13, v2, s[12:15], 0 offen offset:{k*20+12}")
                a(f"v_sub_u32 v14, v10, v4")
                a(f"buffer_atomic_add v14, v2, s[12:15], 0 offen offset:{k*20+16}")
            a("s_waitcnt vmcnt(0)")
    a.label("KD_END")
    a("s_endpgm")
    return kernel_desc(name, 16, 16, 24)


DOC = """
(generated by a script of the author; all code below is hand-designed assembly)
Launch 1, qkv_kernel: both qkv GEMMs (128 x 256 tiles, 4 MFMA waves + 4 LDS-DMA loader waves; positions in parity-split
  order so that the dilated window becomes a plain window of 8), the gate, Wo re-tiled into MFMA fragments, hand-off words zeroed.
Launch 2, attn_kernel: two workgroups per CU.
  ids < 256: full attention of branch B. Softmax reference value = max over the first 32 keys (a lower bound of the row
    max, folded into the MFMA C operand); after the pass every wave checks that l < 2^100 and that O is finite. If the
    check fails anywhere in the workgroup the true row max is computed over all keys (K2_FALLBACK) and the pass is redone with it.
  ids >= 256: local attention of branch A (true max), then one 64 x 80 tile of the out projection of both branches.
  Hand-offs between workgroups: sc1 stores, counters added with sc1 atomics on a line per consumer, sc1 loads; o_B is
    additionally pre-marked with all-ones words inside the launch and every loaded word is checked. All polls are bounded.
"""


def main():
    global STAMP
    if "--stamp" in sys.argv:
        STAMP = True
        sys.argv.remove("--stamp")
    ref = open(OUT + ".ref").read().split("\n")
    head = [l for l in ref if l.startswith(";") and "@launch" not in l]
    a = Asm()
    for l in head:
        a.raw(l)
    a.raw(f"; @launch kernel=qkv_kernel grid=(256,1,1) block=(512,1,1) lds={K1_LDS}")
    a.raw(f"; @launch kernel=attn_kernel grid=(512,1,1) block=(512,1,1) lds={K2_LDS}")
    if not FUSE:
        a.raw(f"; @launch kernel=proj_kernel grid=(256,1,1) block=(256,1,1) lds={K3_LDS}")
    if 'diag' in EXP:
        a.raw("; @launch kernel=diag_kernel grid=(1,1,1) block=(256,1,1) lds=0")
    for l in DOC.strip("\n").split("\n"):
        a.raw("; " + l)
    a.raw('.amdgcn_target "amdgcn-amd-amdhsa--gfx950"')
    a.raw(".text")
    d = [gen_k1(a), gen_k2(a)] + ([] if FUSE else [gen_k3(a)]) + ([gen_diag(a)] if 'diag' in EXP else [])
    a.raw('.section .rodata,"a"')
    for x in d:
        a.raw(".p2align 6")
        a.raw(x.rstrip("\n"))
    out = sys.argv[1] if len(sys.argv) > 1 else OUT
    open(out, "w").write(a.text())
    print("wrote", out, len(a.L), "lines")


if __name__ == "__main__":
    main()
```

```python
import sys, math, struct, os
EXP = os.environ.get('EXP', '').split(',')

NAME = "gated_mix__sliding_local_dilated__mha_block__prompt"
OUT = f"cdna_kernels/{NAME}.s"

SEGB = 2621440
TB = 40960
O_OFF = 16 << 20
O_BR = 2621440
WOF_OFF = 24 << 20
WOF_BR = 819200
G_OFF = 28 << 20
CNT_OFF = G_OFF + 65536
WS_BYTES = 32 << 20
QSCALE = (20 ** -0.5) * math.log2(math.e)


def f32(x):
    return "0x%08x" % struct.unpack("<I", struct.pack("<f", x))[0]


def pi5(i):
    return (i & ~12) | ((i & 4) << 1) | ((i & 8) >> 1)


class Asm:
    def __init__(self):
        self.L = []

    def __call__(self, s):
        for l in s.strip("\n").split("\n"):
            self.L.append("    " + l.strip())

    def label(self, l):
        self.L.append(l + ":")

    def raw(self, s):
        self.L.append(s)

    def text(self):
        return "\n".join(self.L) + "\n"


def vr(b, n=1, p="v"):
    return f"{p}{b}" if n == 1 else f"{p}[{b}:{b+n-1}]"


def ar(b, n=1):
    return vr(b, n, "a")


def sr(b, n=1):
    return vr(b, n, "s")


STAMP = False
K2STF = ' sc1' if 'k2_sc1' in EXP else ''
DBG_OFF = 30 << 20


def stamp(a, idx, sbase=70):
    if not STAMP:
        return
    a(f"s_memtime s[{sbase+16}:{sbase+17}]")
    a("s_waitcnt lgkmcnt(0)")
    a(f"s_mov_b32 s{sbase+idx}, s{sbase+16}")


def stamp_rt(a, idx, sbase=70):
    if not STAMP:
        return
    a(f"s_memrealtime s[{sbase+16}:{sbase+17}]")
    a("s_waitcnt lgkmcnt(0)")
    a(f"s_mov_b32 s{sbase+idx}, s{sbase+16}")


def stamp_flush(a, kidx, srd_ws, swave, n, vtmp, sbase=70, shift=4):
    if not STAMP:
        return
    a("s_mov_b64 exec, -1")
    a(f"s_lshl_b32 s{sbase+16}, s2, {shift}")
    a(f"s_add_u32 s{sbase+16}, s{sbase+16}, s{swave}")
    a(f"s_lshl_b32 s{sbase+16}, s{sbase+16}, 6")
    a(f"s_add_u32 s{sbase+16}, s{sbase+16}, {DBG_OFF + kidx*(1<<18)}")
    a(f"v_mov_b32 v{vtmp+1}, 0")
    for i in range(n):
        a(f"v_mov_b32 v{vtmp}, s{sbase+i}")
        a(f"buffer_store_dword v{vtmp}, v{vtmp+1}, s[{srd_ws}:{srd_ws+3}], s{sbase+16} offen offset:{4*i}")


def kernel_head(a, name):
    a.raw(f".globl {name}")
    a.raw(".p2align 8")
    a.raw(f".type {name},@function")
    a.label(name)


def kernel_desc(name, vgpr_total, accum, sgpr):
    return f""".amdhsa_kernel {name}
  .amdhsa_next_free_vgpr {vgpr_total}
  .amdhsa_next_free_sgpr {96 if STAMP else sgpr}
  .amdhsa_accum_offset {accum}
  .amdhsa_group_segment_fixed_size 0
  .amdhsa_kernarg_size 80
  .amdhsa_user_sgpr_count 2
  .amdhsa_user_sgpr_kernarg_segment_ptr 1
  .amdhsa_system_sgpr_workgroup_id_x 1
.end_amdhsa_kernel
"""


WS_BASE = int(os.environ.get('WSBASE', '0')) << 20


def srd(a, d, base, nbytes):
    if nbytes == WS_BYTES and WS_BASE:
        a(f"s_add_u32 s{d}, s{base}, {WS_BASE}")
        a(f"s_addc_u32 s{d+1}, s{base+1}, 0")
    else:
        a(f"s_mov_b32 s{d}, s{base}")
        a(f"s_mov_b32 s{d+1}, s{base+1}")
    a(f"s_mov_b32 s{d+2}, {nbytes}")
    a(f"s_mov_b32 s{d+3}, 0x00020000")


G_WST = 8704
G_ST = G_WST + 8192


def gen_gemm(a, pfx, br, NS, sJ, done_label, stf, kidx, pairx=False):
    SX, SW, SR = 20, 24, 28
    sWave = 19
    a(f"""
    s_mul_i32 s12, s{sJ}, 1093
    s_lshr_b32 s12, s12, 16
    s_mul_i32 s13, s12, 60
    s_sub_u32 s13, s{sJ}, s13
    s_lshr_b32 s17, s13, 2
    s_and_b32 s13, s13, 3
    s_lshl_b32 s12, s12, 2
    s_add_u32 s16, s12, s13
    s_lshr_b32 s14, s16, 3
    s_and_b32 s15, s16, 7
    s_cmp_ge_u32 s{sWave}, 4
    s_cbranch_scc0 {pfx}_COMPUTE
    """)
    vW, vXg = 8, 10
    sWo, sXo, sWl, sXl, sWc, sXc, sOrd = 32, 33, 34, 35, 36, 37, 38
    K1_D = int(os.environ.get('K1D', '2'))
    ORD = []
    for g in range(4):
        o = list(range(10))
        for b in range(10):
            if b % 4 == g and K1_D:
                p = o.index(b)
                o.pop(p)
                o.insert(max(0, p - K1_D), b)
        ORD.append(sum(b << (4 * i) for i, b in enumerate(o)))
    a(f"""
    v_lshrrev_b32 v4, 4, v1
    v_and_b32 v3, 15, v1
    v_mul_u32_u24 v5, {4*3840}, v4
    v_lshl_add_u32 v{vW}, v3, 4, v5
    v_add_u32 v{vW+1}, {3840-1088}, v{vW}
    v_lshrrev_b32 v5, 2, v1
    v_and_b32 v6, 3, v1
    v_xor_b32 v6, v6, v4
    v_mul_u32_u24 v5, 2560, v5
    v_lshl_add_u32 v{vXg}, v6, 4, v5
    v_add_u32 v{vXg+1}, {16*2560-1024}, v{vXg}
    s_and_b32 s3, s{sWave}, 3
    s_lshr_b32 s12, s3, 1
    s_lshl_b32 s12, s12, 4
    s_and_b32 s18, s3, 1
    s_lshl_b32 s18, s18, 1
    s_add_u32 s12, s12, s18
    s_mul_i32 s{sWo}, s12, 3840
    s_lshl_b32 s12, s17, 8
    s_add_u32 s{sWo}, s{sWo}, s12
    s_mul_i32 s{sWl}, s3, {2*1088}
    s_lshl_b32 s{sXl}, s3, 11
    s_add_u32 s{sXl}, s{sXl}, {G_WST}
    s_lshl_b32 s12, s15, 2
    s_add_u32 s12, s12, s3
    s_mul_i32 s{sXo}, s12, {32*2560}
    s_mul_i32 s12, s14, 1280
    s_add_u32 s{sXo}, s{sXo}, s12
    s_add_u32 s3, s13, s17
    s_and_b32 s3, s3, 3
    s_mov_b32 s{sOrd}, {ORD[0] & 0xffffffff}
    s_mov_b32 s{sOrd+1}, {ORD[0] >> 32}
    s_cmp_eq_u32 s3, 1
    s_cselect_b32 s{sOrd}, {ORD[1] & 0xffffffff}, s{sOrd}
    s_cselect_b32 s{sOrd+1}, {ORD[1] >> 32}, s{sOrd+1}
    s_cmp_eq_u32 s3, 2
    s_cselect_b32 s{sOrd}, {ORD[2] & 0xffffffff}, s{sOrd}
    s_cselect_b32 s{sOrd+1}, {ORD[2] >> 32}, s{sOrd+1}
    s_cmp_eq_u32 s3, 3
    s_cselect_b32 s{sOrd}, {ORD[3] & 0xffffffff}, s{sOrd}
    s_cselect_b32 s{sOrd+1}, {ORD[3] >> 32}, s{sOrd+1}
    s_waitcnt lgkmcnt(0)
    """)
    srd(a, SX, 4, 2621440)
    srd(a, SW, 6, 2457600)
    srd(a, SR, 10, WS_BYTES)

    hist = []

    def xload(k):
        a(f"s_add_u32 m0, s{sXl}, {(k % NS) * G_ST}")
        a(f"s_add_u32 s{sXc}, s{sXc}, s{sXo}" if k % 2 == 0 else f"s_add_u32 s{sXc}, s{sXc}, 64")
        for q in range(2):
            a(f"buffer_load_dwordx4 v{vXg+q}, {sr(SX,4)}, s{sXc} offen offset:{1024*q} lds")
        hist.append(("X", k))

    def stage_loads(k):
        if k % 2 == 0:
            j = k // 2
            a(f"s_bfe_u32 s3, s{sOrd + j // 8}, {(4 << 16) | (4 * (j % 8))}")
            a(f"s_mul_i32 s{sWc}, s3, {2*122880}")
            a(f"s_lshl_b32 s{sXc}, s3, 7")
            xload(k)
            if pairx:
                xload(k + 1)
        elif not pairx:
            xload(k)
        a(f"s_add_u32 m0, s{sWl}, {(k % NS) * G_ST}")
        a(f"s_add_u32 s{sWc}, s{sWc}, s{sWo}" if k % 2 == 0 else f"s_add_u32 s{sWc}, s{sWc}, 122880")
        for i in range(2):
            a(f"buffer_load_dwordx4 v{vW+i}, {sr(SW,4)}, s{sWc} offen offset:{1088*i} lds")
        hist.append(("W", k))

    issued = [0]

    def issue(step, nmax):
        n = 0
        while issued[0] < 20 and n < nmax and (issued[0] + (1 if pairx and issued[0] % 2 == 0 else 0)) - NS <= step - 1:
            stage_loads(issued[0])
            issued[0] += 1
            n += 1

    def need(ks):
        a(f"s_waitcnt vmcnt({2 * (len(hist) - 1 - hist.index(('W', ks)))})")
        a("s_barrier")

    RAMP = [int(c) for c in os.environ.get('GRAMP', '3122')]
    issue(-2, RAMP[0])
    stamp(a, 2)
    need(0)
    stamp(a, 3)
    issue(-1, RAMP[1])
    for ks in range(19):
        need(ks + 1)
        if ks % 2 == 1 and ks <= 15: stamp(a, 8 + ks // 2)
        issue(ks, RAMP[ks + 2] if ks + 2 < len(RAMP) else RAMP[-1])
    assert issued[0] == 20
    a("s_barrier")
    stamp(a, 4); stamp(a, 5)
    a(f"s_branch {done_label}")

    a.label(f"{pfx}_COMPUTE")
    ACC = 16
    WFR = 80
    XFR = [96, 112]
    vTr0, vTr, vXr0, vXr, vSt = 8, 9, 10, 12, 14
    sRd, sIt, sSt, sSeg = 32, 34, 36, 35
    a(f"""
    v_bfe_u32 v3, v1, 2, 2
    v_mul_u32_u24 v3, 1088, v3
    v_lshrrev_b32 v4, 5, v1
    v_lshl_add_u32 v3, v4, 9, v3
    v_bfe_u32 v5, v1, 4, 1
    v_lshl_add_u32 v3, v5, 5, v3
    v_and_b32 v5, 3, v1
    v_lshl_add_u32 v3, v5, 3, v3
    s_and_b32 s12, s{sWave}, 1
    s_lshl_b32 s3, s12, 7
    v_add_u32 v{vTr0}, s3, v3
    v_and_b32 v5, 19, v1
    v_bfe_u32 v6, v1, 2, 1
    v_lshl_or_b32 v5, v6, 3, v5
    v_bfe_u32 v6, v1, 3, 1
    v_lshl_or_b32 v5, v6, 2, v5
    v_bfe_u32 v6, v5, 2, 2
    v_xor_b32 v6, v6, v4
    v_lshlrev_b32 v6, 4, v6
    v_lshl_add_u32 v5, v5, 6, v6
    s_lshr_b32 s13, s{sWave}, 1
    s_lshl_b32 s3, s13, 12
    s_add_u32 s3, s3, {G_WST}
    v_add_u32 v{vXr0}, s3, v5
    v_xor_b32 v{vXr0+1}, 32, v{vXr0}
    v_mov_b32 v{vXr}, v{vXr0}
    v_mov_b32 v{vXr+1}, v{vXr0+1}
    v_mov_b32 v{vTr}, v{vTr0}
    s_mov_b32 s{sRd}, {G_ST}
    s_mov_b32 s{sIt}, 0
    s_mul_i32 s{sSeg}, s17, 52
    s_lshr_b32 s{sSeg}, s{sSeg}, 8
    s_mul_i32 s3, s{sSeg}, 5
    s_sub_u32 s17, s17, s3
    s_lshl_b32 s17, s17, 1
    s_add_u32 s17, s17, s12
    s_add_u32 s3, s{sSeg}, {br if isinstance(br, str) else 3*br}
    s_mul_i32 s{sSt}, s3, {SEGB}
    s_lshl_b32 s3, s16, 1
    s_add_u32 s3, s3, s13
    s_mul_i32 s3, s3, {2*TB}
    s_add_u32 s{sSt}, s{sSt}, s3
    s_waitcnt lgkmcnt(0)
    """)
    srd(a, SR, 10, WS_BYTES)
    for i in range(64):
        a(f"v_mov_b32 v{ACC+i}, 0")

    def xreads(fset):
        return [f"ds_read_b128 {vr(XFR[fset] + (mt*2+kk)*4, 4)}, v{vXr+kk} offset:{2048*mt}" for kk in range(2) for mt in range(2)]

    def wreads(nt, kk):
        b = WFR + (nt * 2 + kk) * 4
        return [f"ds_read_b64_tr_b16 {vr(b + 2*s, 2)}, v{vTr} offset:{kk*4352 + s*256 + nt*64}" for s in range(2)]

    stamp(a, 2)
    a("s_barrier")
    stamp(a, 3)
    x0 = xreads(0)
    for l in x0[:2] + wreads(0, 0) + x0[2:] + wreads(1, 0) + wreads(0, 1) + wreads(1, 1):
        a(l)
    a(f"s_cmp_eq_u32 s{sSeg}, 2")
    a(f"s_cbranch_scc1 {pfx}_LOOP_N")
    for ori in ("T", "N"):
        a.raw(".p2align 3")
        a.label(f"{pfx}_LOOP_{ori}")
        for s in range(2):
            a(f"v_add_u32 v{vTr}, s{sRd}, v{vTr0}")
            a(f"v_add_u32 v{vXr}, s{sRd}, v{vXr0}")
            a(f"v_add_u32 v{vXr+1}, s{sRd}, v{vXr0+1}")
            a("s_barrier")
            xr = xreads(1 - s)
            rest = [f"s_add_u32 s{sRd}, s{sRd}, {G_ST}",
                    f"s_cmp_ge_u32 s{sRd}, {NS*G_ST}",
                    f"s_cselect_b32 s{sRd}, 0, s{sRd}"]
            if s == 1:
                rest += [f"s_add_u32 s{sIt}, s{sIt}, 1", f"s_cmp_lt_u32 s{sIt}, 10"]
            idx = 0
            for kk in range(2):
                for nt in range(2):
                    for mt in range(2):
                        acc = vr(ACC + (nt * 2 + mt) * 16, 16)
                        w = vr(WFR + (nt * 2 + kk) * 4, 4)
                        x = vr(XFR[s] + (mt * 2 + kk) * 4, 4)
                        if mt == 0:
                            a(f"s_waitcnt lgkmcnt({8 if kk == 0 else 10})")
                        if ori == "T":
                            a(f"v_mfma_f32_32x32x16_bf16 {acc}, {w}, {x}, {acc}")
                        else:
                            a(f"v_mfma_f32_32x32x16_bf16 {acc}, {x}, {w}, {acc}")
                        if mt == 0:
                            if idx < 2:
                                a(xr[2 * idx]); a(xr[2 * idx + 1])
                            else:
                                for l in (rest[:3] if idx == 2 else rest[3:]):
                                    a(l)
                            idx += 1
                        else:
                            for l in wreads(nt, kk):
                                a(l)
        a(f"s_cbranch_scc1 {pfx}_LOOP_{ori}")
        stamp(a, 4)
        if ori == "T":
            a(f"""
            s_lshl_b32 s3, s17, 12
            s_add_u32 s{sSt}, s{sSt}, s3
            s_add_u32 s{sSt+1}, s{sSt}, {TB}
            s_cmp_eq_u32 s{sSeg}, 0
            s_cselect_b32 s40, {f32(QSCALE)}, 1.0
            s_mov_b32 s41, s40
            v_lshlrev_b32 v{vSt}, 4, v1
            s_nop 7
            """)
        else:
            a(f"""
            s_lshl_b32 s3, s17, 10
            s_add_u32 s{sSt}, s{sSt}, s3
            s_add_u32 s{sSt+1}, s{sSt}, {TB}
            s_add_u32 s{sSt+2}, s{sSt}, 20480
            s_add_u32 s{sSt+3}, s{sSt+1}, 20480
            v_mul_u32_u24 v5, 10240, v4
            v_and_b32 v6, 31, v1
            v_lshl_add_u32 v{vSt}, v6, 4, v5
            s_nop 7
            """)
        for nt in range(2):
            for mt in range(2):
                for jp in range(2):
                    b0 = ACC + (nt * 2 + mt) * 16 + 8 * jp
                    if ori == "T":
                        for i in range(4):
                            a(f"v_pk_mul_f32 {vr(b0+2*i,2)}, {vr(b0+2*i,2)}, s[40:41]")
                    for i in range(4):
                        a(f"v_cvt_pk_bf16_f32 v{b0+i}, v{b0+2*i}, v{b0+2*i+1}")
                    if ori == "T":
                        a("s_nop 1")
                        a(f"v_permlane32_swap_b32 v{b0}, v{b0+2}")
                        a(f"v_permlane32_swap_b32 v{b0+1}, v{b0+3}")
                        a("s_nop 0")
                        a(f"buffer_store_dwordx4 {vr(b0,4)}, v{vSt}, {sr(SR,4)}, s{sSt + mt} offen offset:{nt*2048 + jp*1024}{stf}")
                    else:
                        a(f"buffer_store_dwordx4 {vr(b0,4)}, v{vSt}, {sr(SR,4)}, s{sSt + mt + 2*jp} offen offset:{nt*512}{stf}")
        stamp(a, 5)
        a(f"s_branch {done_label}")


K1_WST = 16896
K1_NSW = 6 if 'k1_nsw6' in EXP else 5
K1_NSX = 3
K1_XB = K1_WST * K1_NSW
K1_LDS = K1_XB + K1_NSX * 16384


STF = '' if 'k1_plain' in EXP else (' nt' if 'k1_nt' in EXP else (' sc1 nt' if 'k1_sc1nt' in EXP else (' sc0 sc1 nt' if 'k1_all' in EXP else ' sc1')))


def gate_rows(a, n, SX, SGW, SR, sRow, sDst, GW, GX, GA, vL4, vZ):
    for i in range(5):
        a(f"buffer_load_dword v{GW+i}, v{vL4}, {sr(SGW,4)}, 0 offen offset:{256*i}")
    for r in range(n):
        for i in range(5):
            a(f"buffer_load_dword v{GX+5*r+i}, v{vL4}, {sr(SX,4)}, s{sRow} offen offset:{2560*r + 256*i}")
    a("s_waitcnt vmcnt(0)")
    for i in range(5):
        for r in range(n):
            a(f"v_dot2_f32_bf16 v{GA+r}, v{GX+5*r+i}, v{GW+i}, {'0' if i == 0 else 'v%d' % (GA+r)}")
    a("s_nop 3")
    for sh in ("row_shr:1 row_mask:0xf bank_mask:0xf bound_ctrl:0", "row_shr:2 row_mask:0xf bank_mask:0xf bound_ctrl:0",
               "row_shr:4 row_mask:0xf bank_mask:0xf bound_ctrl:0", "row_shr:8 row_mask:0xf bank_mask:0xf bound_ctrl:0",
               "row_bcast:15 row_mask:0xa bank_mask:0xf", "row_bcast:31 row_mask:0xc bank_mask:0xf"):
        for r in range(n):
            a(f"v_add_f32_dpp v{GA+r}, v{GA+r}, v{GA+r} {sh}")
        a("s_nop 1")
    for op in (f"v_mul_f32 vR, {f32(-math.log2(math.e))}, vR", "v_exp_f32 vR, vR", "s_nop 0", "v_add_f32 vR, 1.0, vR", "v_rcp_f32 vR, vR"):
        for r in range(n if "vR" in op else 1):
            a(op.replace("vR", f"v{GA+r}"))
    a("s_mov_b32 exec_lo, 0")
    a("s_mov_b32 exec_hi, 0x80000000")
    for r in range(n):
        a(f"buffer_store_dword v{GA+r}, v{vZ}, {sr(SR,4)}, s{sDst} offen offset:{4*r}")
    a("s_mov_b64 exec, -1")


def gen_k1(a):
    name = "qkv_kernel"
    kernel_head(a, name)
    SX, SW, SR = 20, 24, 28
    sWave = 19
    a("s_cmp_ge_u32 s2, 256")
    a("s_cbranch_scc1 K1_END")
    stamp(a, 0); stamp_rt(a, 1)
    a("""
    s_load_dwordx4 s[4:7], s[0:1], 0
    s_load_dwordx2 s[8:9], s[0:1], 32
    s_load_dwordx2 s[10:11], s[0:1], 72
    s_load_dwordx2 s[54:55], s[0:1], 48
    """)
    if 'noct' not in EXP:
        code_touch(a, 31, 30, 52, "K1_CT0", "attn_kernel", lane="v0")
        a.label("K1_CT0")
    a("""
    v_lshrrev_b32 v2, 6, v0
    v_and_b32 v1, 63, v0
    s_and_b32 s12, s2, 7
    v_readfirstlane_b32 s19, v2
    s_cmp_ge_u32 s2, 240
    s_cbranch_scc1 K1_SIDE
    s_lshr_b32 s13, s2, 3
    s_mul_i32 s12, s12, 30
    s_add_u32 s12, s12, s13
    s_cmp_ge_u32 s12, 120
    s_cselect_b32 s14, 1, 0
    s_cselect_b32 s13, 120, 0
    s_sub_u32 s12, s12, s13
    s_and_b32 s15, s12, 7
    s_lshr_b32 s16, s12, 3
    v_and_b32 v3, 15, v1
    v_lshrrev_b32 v4, 4, v1
    """)
    a(f"""
    s_cmp_ge_u32 s{sWave}, 4
    s_cselect_b32 s12, 1, 0
    s_lshr_b32 s12, s{sWave}, s12
    s_and_b32 s12, s12, 1
    s_lshl_b32 s17, s16, 1
    s_add_u32 s17, s17, s12
    s_cmp_ge_u32 s17, 15
    s_cselect_b32 s18, 1, 0
    s_cselect_b32 s13, 15, 0
    s_sub_u32 s17, s17, s13
    s_movk_i32 s60, 3840
    s_mov_b32 s62, 2621440
    s_movk_i32 s63, 128
    s_cmp_ge_u32 s{sWave}, 4
    s_cbranch_scc0 K1_COMPUTE
    """)
    vW, vXg = 8, 12
    sWo, sXo, sWl, sXl, sWc, sXc, sOrd = 32, 33, 34, 35, 36, 37, 38
    K1_D = int(os.environ.get('K1D', '2'))
    ORD = []
    for g in range(4):
        o = list(range(10))
        for b in range(10):
            if b % 4 == g and K1_D:
                p = o.index(b)
                o.pop(p)
                o.insert(max(0, p - K1_D), b)
        ORD.append(sum(b << (4 * i) for i, b in enumerate(o)))
    a(f"""
    v_lshrrev_b32 v5, 1, v4
    v_and_b32 v6, 1, v4
    v_lshlrev_b32 v5, 4, v5
    v_lshl_add_u32 v5, v6, 2, v5
    v_mul_u32_u24 v5, 3840, v5
    v_lshl_add_u32 v{vW}, v3, 4, v5
    v_add_u32 v{vW+1}, 2784, v{vW}
    v_add_u32 v{vW+2}, {2*2784}, v{vW}
    v_add_u32 v{vW+3}, {3*2784}, v{vW}
    v_lshrrev_b32 v5, 3, v1
    v_and_b32 v6, 7, v1
    v_xor_b32 v6, v6, v5
    v_mul_u32_u24 v5, 2560, v5
    v_lshl_add_u32 v{vXg}, v6, 4, v5
    v_add_u32 v{vXg+1}, 19456, v{vXg}
    v_add_u32 v{vXg+2}, {2*19456}, v{vXg}
    v_add_u32 v{vXg+3}, {3*19456}, v{vXg}
    s_and_b32 s13, s{sWave}, 1
    s_mul_i32 s{sWo}, s13, {8*3840}
    s_lshl_b32 s3, s17, 8
    s_add_u32 s{sWo}, s{sWo}, s3
    s_and_b32 s3, s{sWave}, 3
    s_mul_i32 s{sWl}, s3, {4*1056}
    s_lshl_b32 s{sXl}, s3, 12
    s_add_u32 s{sXl}, s{sXl}, {K1_XB}
    s_lshl_b32 s13, s15, 2
    s_add_u32 s13, s13, s3
    s_mul_i32 s{sXo}, s13, {32*2560}
    s_mul_i32 s13, s14, 1280
    s_add_u32 s{sXo}, s{sXo}, s13
    s_add_u32 s3, s15, s16
    s_and_b32 s3, s3, 3
    s_mov_b32 s{sOrd}, {ORD[0] & 0xffffffff}
    s_mov_b32 s{sOrd+1}, {ORD[0] >> 32}
    s_cmp_eq_u32 s3, 1
    s_cselect_b32 s{sOrd}, {ORD[1] & 0xffffffff}, s{sOrd}
    s_cselect_b32 s{sOrd+1}, {ORD[1] >> 32}, s{sOrd+1}
    s_cmp_eq_u32 s3, 2
    s_cselect_b32 s{sOrd}, {ORD[2] & 0xffffffff}, s{sOrd}
    s_cselect_b32 s{sOrd+1}, {ORD[2] >> 32}, s{sOrd+1}
    s_cmp_eq_u32 s3, 3
    s_cselect_b32 s{sOrd}, {ORD[3] & 0xffffffff}, s{sOrd}
    s_cselect_b32 s{sOrd+1}, {ORD[3] >> 32}, s{sOrd+1}
    s_cmp_eq_u32 s18, 0
    s_waitcnt lgkmcnt(0)
    s_cselect_b64 s[6:7], s[6:7], s[8:9]
    """)
    srd(a, SX, 4, 2621440)
    srd(a, SW, 6, 2457600)
    if STAMP:
        srd(a, SR, 10, WS_BYTES)
    hist = []

    def blk(j, dst):
        r = sOrd + (j // 8)
        a(f"s_bfe_u32 s{dst}, s{r}, {(4 << 16) | (4 * (j % 8))}")

    def wl(k):
        a(f"s_add_u32 m0, s{sWl}, {(k % K1_NSW) * K1_WST}")
        if k % 2 == 0:
            blk(k // 2, sWc)
            a(f"s_mul_i32 s{sWc}, s{sWc}, {2*122880}")
            a(f"s_add_u32 s{sWc}, s{sWc}, s{sWo}")
        else:
            a(f"s_add_u32 s{sWc}, s{sWc}, 122880")
        for i in range(4):
            a(f"buffer_load_dwordx4 v{vW+i}, {sr(SW,4)}, s{sWc} offen offset:{1056*i} lds")
        hist.append(("W", k))

    def xl(j):
        a(f"s_add_u32 m0, s{sXl}, {(j % K1_NSX) * 16384}")
        blk(j, sXc)
        a(f"s_lshl_b32 s{sXc}, s{sXc}, 7")
        a(f"s_add_u32 s{sXc}, s{sXc}, s{sXo}")
        for q in range(4):
            a(f"buffer_load_dwordx4 v{vXg+q}, {sr(SX,4)}, s{sXc} offen offset:{1024*q} lds")
        hist.append(("X", j))

    def need(ks):
        req = [("W", ks), ("X", ks // 2)]
        last = max(hist.index(r) for r in req)
        a(f"s_waitcnt vmcnt({4 * (len(hist) - 1 - last)})")
        a("s_barrier")

    seq = []
    for j in range(10):
        seq += [("X", j), ("W", 2 * j), ("W", 2 * j + 1)]
    pos = [0]

    def free_at(it):
        t, i = it
        if t == "W":
            return i - K1_NSW
        return 2 * (i - K1_NSX) + 1

    def issue(step, nmax):
        n = 0
        while pos[0] < len(seq) and n < nmax and free_at(seq[pos[0]]) <= step:
            t, i = seq[pos[0]]
            (wl if t == "W" else xl)(i)
            pos[0] += 1
            n += 1
    RAMP = [int(c) for c in os.environ.get('K1RAMP', '32222')]
    issue(-2, RAMP[0])
    stamp(a, 2)
    need(0)
    stamp(a, 3)
    issue(-1, RAMP[1])
    for ks in range(19):
        need(ks + 1)
        if ks % 2 == 1 and ks <= 15: stamp(a, 8 + ks // 2)
        issue(ks, RAMP[ks + 2] if ks + 2 < len(RAMP) else RAMP[-1])
    assert pos[0] == len(seq)
    a("s_barrier")
    stamp(a, 4)
    srd(a, SR, 10, WS_BYTES)
    srd(a, 56, 54, 1280)
    a(f"""
    s_lshl_b32 s3, s15, 7
    s_lshl_b32 s12, s16, 3
    s_add_u32 s3, s3, s12
    s_and_b32 s12, s{sWave}, 3
    s_lshl_b32 s12, s12, 1
    s_add_u32 s3, s3, s12
    s_mul_i32 s40, s3, 2560
    s_mul_i32 s12, s14, 1280
    s_add_u32 s40, s40, s12
    s_lshl_b32 s12, s14, 10
    s_add_u32 s3, s3, s12
    s_lshl_b32 s41, s3, 2
    s_add_u32 s41, s41, {G_OFF}
    v_lshlrev_b32 v2, 2, v1
    v_mov_b32 v3, 0
    """)
    gate_rows(a, 2, SX, 56, SR, 40, 41, 32, 40, 52, 2, 3)
    stamp(a, 5); stamp(a, 6); stamp_rt(a, 7)
    stamp_flush(a, 0, SR, sWave, 16, 2)
    a("s_endpgm")

    a.label("K1_COMPUTE")
    TAIL = 'k1_notail' not in EXP and K1_NSW == 5 and K1_NSX == 3
    ACC = 32
    WFR = [0, 32]
    XFR = [64, 80]
    vTr0, vTr, vXr0, vXr, vSt = 8, 9, 10, 12, 14
    sRd, sXr, sIt, sSt, sSeg = 32, 33, 34, 36, 35
    TOUCH = 'k1_touch' in EXP
    ST, sTo, sTs = 44, 42, 43
    TD = 5
    if TOUCH:
        a(f"""
        v_lshrrev_b32 v5, 1, v1
        v_and_b32 v6, 1, v1
        v_lshlrev_b32 v6, 7, v6
        v_mad_u32_u24 v16, v5, s60, v6
        v_mul_u32_u24 v17, 2560, v1
        s_mul_i32 s{sTo}, s15, {8*3840}
        s_lshl_b32 s3, s17, 8
        s_add_u32 s{sTo}, s{sTo}, s3
        s_add_u32 s{sTo}, s{sTo}, {3*64*3840}
        s_lshl_b32 s3, s15, 3
        s_and_b32 s13, s16, 3
        s_lshl_b32 s13, s13, 1
        s_add_u32 s3, s3, s13
        s_and_b32 s13, s{sWave}, 1
        s_add_u32 s3, s3, s13
        s_mul_i32 s3, s3, {16*2560}
        s_mul_i32 s13, s14, 1280
        s_add_u32 s3, s3, s13
        s_add_u32 s3, s3, {3*128}
        s_cmp_eq_u32 s18, 0
        s_waitcnt lgkmcnt(0)
        s_cselect_b64 s[6:7], s[6:7], s[8:9]
        s_cmp_lt_u32 s{sWave}, 2
        s_cselect_b64 s[{ST}:{ST+1}], s[6:7], s[4:5]
        s_cselect_b32 s{ST+2}, 2457600, s62
        s_mov_b32 s{ST+3}, 0x00020000
        s_cselect_b32 s{sTo}, s{sTo}, s3
        s_cselect_b32 s{sTs}, {64*3840}, s63
        s_cselect_b64 s[50:51], -1, 0
        v_cndmask_b32 v16, v17, v16, s[50:51]
        v_cmp_gt_u32 s[50:51], 16, v1
        v_mov_b32 v17, 0x40000000
        s_nop 0
        v_cndmask_b32 v16, v17, v16, s[50:51]
        """)
        for b in range(3, TD):
            a(f"buffer_load_dword v18, v16, {sr(ST,4)}, s{sTo} offen")
            a(f"s_add_u32 s{sTo}, s{sTo}, s{sTs}")
    a(f"""
    v_and_b32 v5, 1, v4
    v_lshrrev_b32 v6, 2, v3
    v_lshl_add_u32 v5, v5, 2, v6
    v_mul_u32_u24 v5, 1056, v5
    v_lshrrev_b32 v6, 1, v4
    v_lshlrev_b32 v6, 9, v6
    v_and_b32 v7, 3, v3
    v_lshlrev_b32 v7, 3, v7
    v_add3_u32 v5, v5, v6, v7
    s_mul_i32 s3, s12, 8448
    v_add_u32 v{vTr0}, s3, v5
    v_and_b32 v5, 3, v3
    v_bfe_u32 v6, v3, 2, 1
    v_lshl_or_b32 v5, v6, 3, v5
    v_bfe_u32 v6, v3, 3, 1
    v_lshl_or_b32 v5, v6, 2, v5
    v_and_b32 v6, 7, v5
    v_xor_b32 v6, v6, v4
    v_lshlrev_b32 v6, 4, v6
    v_lshl_add_u32 v5, v5, 7, v6
    s_lshr_b32 s13, s{sWave}, 1
    s_lshl_b32 s3, s13, 13
    s_add_u32 s3, s3, {K1_XB}
    v_add_u32 v{vXr0}, s3, v5
    v_xor_b32 v{vXr0+1}, 64, v{vXr0}
    v_mov_b32 v{vXr}, v{vXr0}
    v_mov_b32 v{vXr+1}, v{vXr0+1}
    v_mov_b32 v{vTr}, v{vTr0}
    s_mov_b32 s{sRd}, {K1_WST}
    s_mov_b32 s{sXr}, 16384
    s_mov_b32 s{sIt}, 0
    s_mul_i32 s{sSeg}, s17, 52
    s_lshr_b32 s{sSeg}, s{sSeg}, 8
    s_mul_i32 s3, s{sSeg}, 5
    s_sub_u32 s17, s17, s3
    s_mul_i32 s3, s18, 3
    s_add_u32 s3, s3, s{sSeg}
    s_mul_i32 s{sSt}, s3, {SEGB}
    s_lshl_b32 s3, s14, 4
    s_lshl_b32 s16, s15, 1
    s_add_u32 s3, s3, s16
    s_add_u32 s3, s3, s13
    s_mul_i32 s3, s3, {2*TB}
    s_add_u32 s{sSt}, s{sSt}, s3
    s_waitcnt lgkmcnt(0)
    """)
    srd(a, SR, 10, WS_BYTES)
    PFW = int(os.environ.get('K1PFW', '0'))
    if PFW:
        a(f"""
        v_lshlrev_b32 v16, 7, v1
        v_mul_u32_u24 v17, 10240, v4
        v_lshl_add_u32 v17, v3, 7, v17
        s_cmp_eq_u32 s{sSeg}, 2
        s_cselect_b64 s[46:47], -1, 0
        s_cselect_b32 s3, 11, 13
        s_lshl_b32 s3, s17, s3
        s_add_u32 s42, s{sSt}, s3
        s_add_u32 s43, s42, {TB}
        v_cndmask_b32 v16, v16, v17, s[46:47]
        """)
    for i in range(128):
        a(f"v_mov_b32 v{ACC+i}, 0")

    def reads(fset, kk):
        L = [f"ds_read_b128 {ar(XFR[fset]+4*mt,4)}, v{vXr+kk} offset:{2048*mt}" for mt in range(4)]
        for t in range(8):
            for s in range(2):
                L.append(f"ds_read_b64_tr_b16 {ar(WFR[fset]+4*t+2*s,2)}, v{vTr} offset:{s*256 + t*32}")
        return L

    a(f"s_cmp_eq_u32 s{sSeg}, 2")
    a("s_cbranch_scc1 K1_PRE_N")
    for ori in ("T", "N"):
        a.label(f"K1_PRE_{ori}")
        stamp(a, 2)
        a("s_barrier")
        stamp(a, 3)
        for l in reads(0, 0):
            a(l)
        a.raw(".p2align 3")
        a.label(f"K1_LOOP_{ori}")
        for s in range(2):
            fs = s
            rd = reads(1 - fs, 1 - s)
            mf = []
            for t in range(8):
                for mt in range(4):
                    acc = vr(ACC + (t * 4 + mt) * 4, 4)
                    w = ar(WFR[fs] + 4 * t, 4)
                    x = ar(XFR[fs] + 4 * mt, 4)
                    if ori == "T":
                        mf.append(f"v_mfma_f32_16x16x32_bf16 {acc}, {w}, {x}, {acc}")
                    else:
                        mf.append(f"v_mfma_f32_16x16x32_bf16 {acc}, {x}, {w}, {acc}")
            a(f"v_add_u32 v{vTr}, s{sRd}, v{vTr0}")
            rest = [f"s_add_u32 s{sRd}, s{sRd}, {K1_WST}",
                    f"s_cmp_ge_u32 s{sRd}, {K1_XB}",
                    f"s_cselect_b32 s{sRd}, 0, s{sRd}"]
            if s == 0 and PFW:
                rest += [f"s_cmp_eq_u32 s{sIt}, {PFW}",
                         f"s_cselect_b32 s44, s42, 0x40000000",
                         f"s_cselect_b32 s45, s43, 0x40000000",
                         f"buffer_load_dword v18, v16, {sr(SR,4)}, s44 offen",
                         f"buffer_load_dword v19, v16, {sr(SR,4)}, s45 offen"]
            if s == 0 and TOUCH:
                rest += [f"s_cmp_lt_u32 s{sIt}, {10-TD}",
                         f"s_cselect_b32 s{sTo}, s{sTo}, 0x40000000",
                         f"buffer_load_dword v18, v16, {sr(ST,4)}, s{sTo} offen",
                         f"s_add_u32 s{sTo}, s{sTo}, s{sTs}"]
            if s == 1:
                a(f"v_add_u32 v{vXr}, s{sXr}, v{vXr0}")
                rest += [f"v_add_u32 v{vXr+1}, s{sXr}, v{vXr0+1}",
                         f"s_add_u32 s{sXr}, s{sXr}, 16384",
                         f"s_cmp_ge_u32 s{sXr}, {K1_NSX*16384}",
                         f"s_cselect_b32 s{sXr}, 0, s{sXr}",
                         f"s_add_u32 s{sIt}, s{sIt}, 1",
                         f"s_cmp_lt_u32 s{sIt}, {8 if TAIL else 10}"]
            a("s_waitcnt lgkmcnt(0)")
            a("s_barrier")
            fill = rd + rest
            for i in range(32):
                a(mf[i])
                if i < len(fill):
                    a(fill[i])
        a(f"s_cbranch_scc1 K1_LOOP_{ori}")
        stamp(a, 4)
        if ori == "T":
            a(f"""
            s_lshl_b32 s3, s17, 13
            s_add_u32 s{sSt}, s{sSt}, s3
            s_add_u32 s{sSt+1}, s{sSt}, 4096
            s_add_u32 s{sSt+2}, s{sSt}, {TB}
            s_add_u32 s{sSt+3}, s{sSt+1}, {TB}
            s_cmp_eq_u32 s{sSeg}, 0
            s_cselect_b32 s40, {f32(QSCALE)}, 1.0
            s_mov_b32 s41, s40
            v_lshlrev_b32 v{vSt}, 4, v1
            s_nop 3
            """)
        else:
            a(f"""
            s_lshl_b32 s3, s17, 11
            s_add_u32 s{sSt}, s{sSt}, s3
            s_add_u32 s{sSt+2}, s{sSt}, {TB}
            v_mul_u32_u24 v5, 10240, v4
            v_lshl_add_u32 v{vSt}, v3, 4, v5
            s_nop 7
            """)
        def epi(t):
            L = []
            for mp in range(2):
                b0 = ACC + (t * 4 + 2 * mp) * 4
                b1 = b0 + 4
                if ori == "T":
                    for i in range(4):
                        L.append(f"v_pk_mul_f32 {vr(b0+2*i,2)}, {vr(b0+2*i,2)}, s[40:41]")
                L.append(f"v_cvt_pk_bf16_f32 v{b0}, v{b0}, v{b0+1}")
                L.append(f"v_cvt_pk_bf16_f32 v{b0+1}, v{b0+2}, v{b0+3}")
                L.append(f"v_cvt_pk_bf16_f32 v{b0+2}, v{b1}, v{b1+1}")
                L.append(f"v_cvt_pk_bf16_f32 v{b0+3}, v{b1+2}, v{b1+3}")
                L.append("s_nop 1")
                sw = "v_permlane16_swap_b32" if ori == "T" else "v_permlane32_swap_b32"
                L.append(f"{sw} v{b0}, v{b0+2}")
                L.append(f"{sw} v{b0+1}, v{b0+3}")
                L.append("s_nop 0")
                if ori == "T":
                    L.append(f"buffer_store_dwordx4 {vr(b0,4)}, v{vSt}, {sr(SR,4)}, s{sSt + 2*mp + t//4} offen offset:{(t%4)*1024}{STF}")
                else:
                    L.append(f"buffer_store_dwordx4 {vr(b0,4)}, v{vSt}, {sr(SR,4)}, s{sSt + 2*mp} offen offset:{t*256}{STF}")
            return L

        if not TAIL:
            for t in range(8):
                for l in epi(t):
                    a(l)
        else:
            XT = [64, 80, 32, 48]
            a(f"v_add_u32 v{vTr}, {3*K1_WST}, v{vTr0}")
            a("s_waitcnt lgkmcnt(0)")
            for i in range(4):
                a("s_barrier")

            def wt(t):
                L = []
                for k in range(4):
                    base, off = (vTr0, (1 + k) * K1_WST) if k < 2 else (vTr, (k - 2) * K1_WST)
                    for h in range(2):
                        L.append(f"ds_read_b64_tr_b16 {ar((t % 2) * 16 + 4 * k + 2 * h, 2)}, v{base} offset:{off + h*256 + t*32}")
                return L
            for l in wt(0):
                a(l)
            for k, (slot, kk) in enumerate(((2, 1), (0, 0), (0, 1))):
                for mt in range(4):
                    a(f"ds_read_b128 {ar(XT[k+1] + 4*mt, 4)}, v{vXr0+kk} offset:{slot*16384 + 2048*mt}")
            for t in range(9):
                fill = (wt(t + 1) if t + 1 < 8 else ["s_nop 3", "s_nop 3"]) + (epi(t - 1) if t >= 1 else [])
                if t == 8:
                    a("s_nop 7")
                    for l in fill:
                        a(l)
                    break
                n = 0
                for k in range(4):
                    if t == 0:
                        a(f"s_waitcnt lgkmcnt({min(15, 12 - 4*k + min(8, n))})" if k else "s_waitcnt lgkmcnt(12)")
                    elif k == 0:
                        a("s_waitcnt lgkmcnt(0)")
                    for mt in range(4):
                        acc = vr(ACC + (t * 4 + mt) * 4, 4)
                        w = ar((t % 2) * 16 + 4 * k, 4)
                        x = ar(XT[k] + 4 * mt, 4)
                        if ori == "T":
                            a(f"v_mfma_f32_16x16x32_bf16 {acc}, {w}, {x}, {acc}")
                        else:
                            a(f"v_mfma_f32_16x16x32_bf16 {acc}, {x}, {w}, {acc}")
                        for l in fill[n:n + 2]:
                            a(l)
                        n += 2
                for l in fill[n:]:
                    a(l)
        stamp(a, 5)
        if STAMP: a("s_waitcnt vmcnt(0)")
        stamp(a, 6); stamp_rt(a, 7)
        stamp_flush(a, 0, SR, sWave, 8, 2)
        a("s_endpgm")

    a.label("K1_SIDE")
    SGW, SWO = 32, 36
    a(f"""
    s_load_dwordx2 s[46:47], s[0:1], 16
    s_load_dwordx4 s[12:15], s[0:1], 40
    s_sub_u32 s16, s2, 240
    s_lshl_b32 s16, s16, 3
    s_add_u32 s16, s16, s{sWave}
    v_lshlrev_b32 v2, 2, v1
    v_lshlrev_b32 v5, 4, v1
    v_lshrrev_b32 v3, 3, v1
    v_and_b32 v4, 7, v1
    v_mul_u32_u24 v3, 1280, v3
    v_lshl_add_u32 v3, v4, 4, v3
    v_lshrrev_b32 v4, 4, v1
    v_bfe_u32 v6, v1, 2, 2
    v_lshl_add_u32 v4, v4, 3, v6
    v_and_b32 v6, 3, v1
    v_lshlrev_b32 v6, 3, v6
    v_lshl_add_u32 v6, v4, 7, v6
    s_lshl_b32 s40, s{sWave}, 14
    v_add_u32 v6, s40, v6
    v_mov_b32 v4, 0
    s_waitcnt lgkmcnt(0)
    """)
    srd(a, SX, 4, 2621440)
    srd(a, SR, 10, WS_BYTES)
    srd(a, SGW, 14, 1280)
    a(f"""
    v_and_b32 v7, 255, v0
    v_lshlrev_b32 v7, 7, v7
    s_mov_b32 s3, {CNT_OFF}
    v_mov_b32 v24, 0
    v_mov_b32 v25, 0
    v_mov_b32 v26, 0
    v_mov_b32 v27, 0
    buffer_store_dwordx4 v[24:27], v7, {sr(SR,4)}, s3 offen
    """)
    a(f"s_mov_b32 s{SWO+2}, 819200")
    a(f"s_mov_b32 s{SWO+3}, 0x00020000")
    if 'notlb' not in EXP:
        a("s_load_dwordx2 s[50:51], s[0:1], 56")
        a("v_lshlrev_b32 v29, 16, v0")
        a(f"buffer_load_dword v28, v29, {sr(SR,4)}, 0 offen")
        a("s_waitcnt lgkmcnt(0)")
        srd(a, 56, 50, 2621440)
        a("buffer_load_dword v28, v29, s[56:59], 0 offen")
    for i in range(4):
        a(f"""
        s_add_u32 s41, s16, {128*i}
        s_cmp_ge_u32 s41, 200
        s_cselect_b32 s{SWO}, s12, s46
        s_cselect_b32 s{SWO+1}, s13, s47
        s_cselect_b32 s3, 200, 0
        s_cselect_b32 s{42+i}, {WOF_BR}, 0
        s_add_u32 s{42+i}, s{42+i}, {WOF_OFF}
        s_sub_u32 s3, s41, s3
        s_mul_i32 s17, s3, 6554
        s_lshr_b32 s17, s17, 16
        s_mul_i32 s18, s17, 10
        s_sub_u32 s18, s3, s18
        s_lshl_b32 s3, s17, 10
        s_add_u32 s{42+i}, s{42+i}, s3
        s_mul_i32 s3, s18, {4*20480}
        s_add_u32 s{42+i}, s{42+i}, s3
        s_mul_i32 s17, s17, {32*1280}
        s_lshl_b32 s18, s18, 7
        s_add_u32 s17, s17, s18
        s_cmp_ge_u32 s41, 400
        s_cselect_b32 s{42+i}, 0x7f000000, s{42+i}
        s_cselect_b32 s17, 0x7f000000, s17
        """)
        for q in range(4):
            a(f"s_add_u32 m0, s40, {4096*i + 1024*q}")
            a("s_nop 0")
            a(f"buffer_load_dwordx4 v3, {sr(SWO,4)}, s17 offen lds")
            a(f"s_add_u32 s17, s17, {8*1280}")
    for i in range(4):
        a("s_waitcnt vmcnt(12)")
        for nt in range(4):
            b = 72 + (4 * i + nt) * 4
            a(f"ds_read_b64_tr_b16 {vr(b,2)}, v6 offset:{4096*i + 32*nt}")
            a(f"ds_read_b64_tr_b16 {vr(b+2,2)}, v6 offset:{4096*i + 32*nt + 512}")
        a("s_waitcnt lgkmcnt(0)")
        for nt in range(4):
            b = 72 + (4 * i + nt) * 4
            a(f"buffer_store_dwordx4 {vr(b,4)}, v5, {sr(SR,4)}, s{42+i} offen sc1")
            a(f"s_add_u32 s{42+i}, s{42+i}, 20480")
    a(f"""
    s_lshr_b32 s3, s16, 3
    s_lshl_b32 s3, s3, 7
    s_and_b32 s17, s16, 7
    s_add_u32 s3, s3, s17
    s_add_u32 s3, s3, 120
    s_and_b32 s17, s3, 1023
    s_mul_i32 s17, s17, 2560
    s_lshr_b32 s18, s3, 10
    s_mul_i32 s18, s18, 1280
    s_add_u32 s17, s17, s18
    s_lshl_b32 s18, s3, 2
    s_add_u32 s18, s18, {G_OFF}
    """)
    gate_rows(a, 1, SX, SGW, SR, 17, 18, 8, 16, 22, 2, 4)
    if 'noct' not in EXP:
        code_touch(a, 31, 30, 52, "attn_kernel", "CODE_END", lane="v0")
    if STAMP:
        a("s_waitcnt vmcnt(0)")
        for i in range(2, 7):
            stamp(a, i)
        stamp_rt(a, 7)
        stamp_flush(a, 0, SR, sWave, 8, 2)
    a.label("K1_END")
    a("s_endpgm")
    return kernel_desc(name, 256, 160, 64)


VB = 352
K2_TILE = 1536 + 4 * VB
K2_SLOT = 8 * K2_TILE
K2_R = 3
K2_FLAG = K2_SLOT * K2_R + 256
K2_LDS = 81920
FUSE = True


def code_touch(a, vdst, vaddr, stmp, first, last, lane="v1"):
    lab = f"CT_{len(a.L)}"
    a(f"s_getpc_b64 s[{stmp}:{stmp+1}]")
    a.label(lab)
    a(f"s_add_u32 s{stmp}, s{stmp}, {first}-{lab}")
    a(f"s_addc_u32 s{stmp+1}, s{stmp+1}, 0")
    a(f"v_lshlrev_b32 v{vaddr}, 7, {lane}")
    a(f"v_min_u32 v{vaddr}, {last}-{first}-4, v{vaddr}")
    a(f"global_load_dword v{vdst}, v{vaddr}, s[{stmp}:{stmp+1}]")


def gen_k2(a):
    name = "attn_kernel"
    kernel_head(a, name)
    SWS = 28
    sWave, sHead, sT = 19, 17, 18
    sDma, sM0, sSlot, sC, sRedo = 24, 25, 26, 27, 20
    sTA, sO, sTouch = 21, 22, 23
    sTmp = 36
    vK10, vK20, vLV, vK1, vK2, vV, vO = 2, 3, 4, 5, 6, 7, 15
    vt = 8
    Q1, Q2 = 16, 20
    KF1, KF2 = 24, 28
    vD = 22
    vD2 = 30
    vGK1, vGK2 = 31, 112
    vL16, vO2, vGV = 113, 114, 115
    VF = 32
    P = 40
    NEGM = 48
    SB = [64, 80]
    O = 96
    AKP1, AKP2 = 116, 120
    vGt, vCb, vOne, vHint = 122, 123, 124, 125
    sProg, sHint, sBad = 46, 47, 48
    NV = 128
    a("s_cmp_ge_u32 s2, 512")
    a("s_cbranch_scc1 K2_END")
    stamp(a, 0); stamp_rt(a, 1)
    a("""
    s_load_dwordx2 s[10:11], s[0:1], 72
    v_lshrrev_b32 v8, 6, v0
    v_and_b32 v1, 63, v0
    s_and_b32 s14, s2, 7
    v_readfirstlane_b32 s19, v8
    s_cmp_ge_u32 s2, 256
    s_cbranch_scc1 K2_AROLE
    s_setprio 3
    s_lshr_b32 s15, s2, 3
    s_lshl_b32 s17, s14, 2
    s_lshr_b32 s3, s15, 3
    s_add_u32 s17, s17, s3
    s_and_b32 s9, s15, 7
    s_lshl_b32 s9, s9, 3
    s_add_u32 s18, s9, s19
    """)

    def head_addr():
        a(f"""
        v_and_b32 v8, 31, v1
        v_lshrrev_b32 v9, 5, v1
        v_lshlrev_b32 v{vL16}, 4, v1
        s_and_b32 s4, s{sHead}, 1
        s_mul_i32 s5, s{sHead}, 5
        s_lshr_b32 s5, s5, 1
        s_lshl_b32 s5, s5, 9
        s_lshl_b32 s6, s4, 9
        s_cmp_eq_u32 s4, 0
        s_cselect_b32 s7, 1024, 8
        v_add_u32 v{vK10}, s6, v{vL16}
        v_lshl_add_u32 v{vK20}, v8, 4, s7
        v_add_u32 v{vGK1}, s5, v{vK10}
        v_add_u32 v{vGK2}, s5, v{vK20}
        s_mul_i32 s6, s{sHead}, 320
        s_mul_i32 s{sTA}, s{sT}, {TB}
        """)

    def out_addr(br):
        a(f"""
        s_lshl_b32 s5, s4, 2
        v_add_u32 v12, s5, v8
        v_subrev_u32 v13, 20, v12
        v_cmp_gt_u32 s[{sTmp}:{sTmp+1}], 20, v12
        v_cmp_gt_u32 s[{sTmp+2}:{sTmp+3}], 20, v8
        v_and_b32 v10, 3, v8
        v_cndmask_b32 v12, v13, v12, s[{sTmp}:{sTmp+1}]
        v_cndmask_b32 v12, v8, v12, s[{sTmp+2}:{sTmp+3}]
        v_bfe_u32 v11, v8, 2, 1
        v_lshl_or_b32 v10, v11, 3, v10
        v_bfe_u32 v11, v8, 3, 1
        v_lshl_or_b32 v10, v11, 2, v10
        v_lshrrev_b32 v11, 4, v8
        v_lshl_or_b32 v14, v11, 4, v10
        v_lshlrev_b32 v10, 4, v10
        v_mul_u32_u24 v11, 20480, v11
        s_mul_i32 s3, s{sHead}, 5
        s_add_u32 s3, s3, 1
        s_lshr_b32 s3, s3, 1
        s_lshl_b32 s3, s3, 8
        v_add3_u32 v10, v10, v11, s3
        v_lshl_add_u32 v{vO}, v9, 8, v10
        s_mul_i32 s5, s4, 760
        s_sub_u32 s5, 512, s5
        v_add_u32 v{vO2}, s5, v10
        s_add_u32 s{sO}, s{sTA}, {O_OFF + br * O_BR}
        v_lshlrev_b32 v{vGt}, 2, v14
        s_lshl_b32 s{sTouch}, s{sT}, 7
        s_add_u32 s{sTouch}, s{sTouch}, {G_OFF}
        """)

    def gate_load():
        a(f"buffer_load_dword v{vGt}, v{vGt}, {sr(SWS,4)}, s{sTouch} offen")

    head_addr()
    a(f"""
    s_add_u32 s5, s5, {4*SEGB}
    v_add_u32 v{vD}, s5, v{vL16}
    s_add_u32 s7, s6, {5*SEGB - 1024 - 512}
    v_cmp_le_u32 s[{sTmp}:{sTmp+1}], 54, v1
    v_mov_b32 v12, {10240-VB}
    v_add_u32 v13, s7, v{vL16}
    v_cndmask_b32 v12, 0, v12, s[{sTmp}:{sTmp+1}]
    v_add_u32 v13, v13, v12
    v_cmp_le_u32 s[{sTmp}:{sTmp+1}], 32, v1
    v_add_u32 v11, 32, v1
    v_mul_u32_u24 v11, 47, v11
    v_cndmask_b32 v{vD+1}, v{vD}, v13, s[{sTmp}:{sTmp+1}]
    v_lshrrev_b32 v11, 10, v11
    v_mul_u32_u24 v11, {10240-VB}, v11
    s_add_u32 s7, s6, {5*SEGB - 2048 + 512}
    v_add3_u32 v{vD2}, v11, v{vL16}, s7
    s_add_u32 s8, s{sTA}, {3*SEGB}
    s_waitcnt lgkmcnt(0)
    """)
    srd(a, SWS, 10, WS_BYTES)

    m1 = ((1 << 64) - 1) & ~(3 << 52)
    m2 = ((1 << 54) - 1) & ~(3 << 10) & ~(3 << 32)

    def dma_parts():
        return [[f"s_mov_b32 m0, s{sM0}",
                 f"s_add_u32 s{sM0}, s{sM0}, {K2_SLOT}",
                 f"buffer_load_dwordx4 v{vD}, {sr(SWS,4)}, s{sDma} offen lds"],
                [f"s_mov_b32 exec_hi, 0x{m1 >> 32:08x}",
                 f"buffer_load_dwordx4 v{vD+1}, {sr(SWS,4)}, s{sDma} offen offset:1024 lds",
                 "s_mov_b32 exec_hi, -1"],
                [f"s_mov_b32 exec_lo, 0x{m2 & 0xffffffff:08x}",
                 f"s_mov_b32 exec_hi, 0x{m2 >> 32:08x}",
                 f"buffer_load_dwordx4 v{vD2}, {sr(SWS,4)}, s{sDma} offen offset:2048 lds",
                 "s_mov_b64 exec, -1"],
                [f"s_add_u32 s{sDma}, s{sDma}, {8*TB}",
                 f"s_cmp_ge_u32 s{sDma}, {64*TB}",
                 f"s_cselect_b32 s{sDma}, 0x40000000, s{sDma}"],
                [f"s_cmp_ge_u32 s{sM0}, {K2_SLOT*K2_R}",
                 f"s_cselect_b32 s{sTmp}, {K2_SLOT*K2_R}, 0",
                 f"s_sub_u32 s{sM0}, s{sM0}, s{sTmp}"]]

    def dma_chunk():
        for p in dma_parts():
            for l in p:
                a(l)

    def dma_init():
        a(f"s_mul_i32 s{sDma}, s{sWave}, {TB}")
        a(f"s_mul_i32 s{sM0}, s{sWave}, {K2_TILE}")

    def zero_state():
        for r in range(16):
            a(f"v_mov_b32 v{O+r}, 0")
        for r in range(4):
            a(f"v_mov_b32 v{P+4+r}, 0")
            a(f"v_mov_b32 v{VF+4+r}, 0")
        a(f"""
        v_mov_b32 v{vV}, v{vLV}
        v_mov_b32 v{vK1}, v{vK10}
        v_mov_b32 v{vK2}, v{vK20}
        s_mov_b32 s{sSlot}, {K2_SLOT}
        s_mov_b32 s{sC}, 0
        """)

    dma_init()
    dma_chunk()
    a(f"buffer_load_dwordx4 {vr(Q1,4)}, v{vGK1}, {sr(SWS,4)}, s8 offen")
    a(f"buffer_load_dwordx2 {vr(Q2,2)}, v{vGK2}, {sr(SWS,4)}, s8 offen")
    a(f"""
    s_mov_b32 s{sRedo}, 0
    v_mov_b32 v{VF}, 0x3f803f80
    v_mov_b32 v{VF+1}, 0x3f803f80
    v_mov_b32 v{VF+2}, 0x3f803f80
    v_mov_b32 v{VF+3}, 0x3f803f80
    v_bfe_u32 v11, v1, 2, 2
    v_min_u32 v11, {K2_R-1}, v11
    v_mul_u32_u24 v11, {K2_SLOT}, v11
    v_and_b32 v12, 3, v1
    v_mul_u32_u24 v12, {VB}, v12
    s_mul_i32 s3, s{sWave}, {K2_TILE}
    v_add3_u32 v11, v11, v12, s3
    ds_write_b128 v11, {vr(VF,4)} offset:{1536+320}
    v_mov_b32 v12, 0
    v_mov_b32 v13, 0
    ds_write_b64 v11, v[12:13] offset:{1536+336}
    ds_write_b64 v11, v[12:13] offset:{1536+344}
    v_mov_b32 v11, {K2_FLAG}
    ds_write_b32 v11, v12
    """)
    out_addr(1)
    gate_load()
    a(f"""
    v_mul_u32_u24 v11, {VB}, v9
    v_min_u32 v12, 21, v12
    v_lshl_add_u32 v11, v12, 4, v11
    v_add_u32 v{vLV}, 1536, v11
    s_mov_b32 exec_lo, 0
    v_mov_b32 v{vK20}, {1536+336}
    s_mov_b32 exec_lo, -1
    """)
    dma_chunk()
    zero_state()
    a(f"""
    v_mov_b32 v{vCb}, {CNT_OFF}
    v_mov_b32 v{vOne}, 1
    v_mov_b32 v{AKP1}, -1
    v_mov_b32 v{AKP1+1}, -1
    v_mov_b32 v{AKP1+2}, -1
    v_mov_b32 v{AKP1+3}, -1
    s_lshl_b32 s{sProg}, s2, 7
    s_cmp_eq_u32 s{sWave}, 7
    s_cselect_b32 s{sProg}, s{sProg}, 0x40000000
    s_cselect_b32 s{sHint}, 0, 0x40000000
    s_lshl_b32 s3, s9, 4
    s_add_u32 s{sHint}, s{sHint}, s3
    s_add_u32 s{sHint}, s{sHint}, {CNT_OFF + 4}
    v_lshlrev_b32 v{vHint}, 10, v1
    s_waitcnt vmcnt(3) lgkmcnt(0)
    """)
    stamp(a, 2)
    a("s_barrier")

    def maxtree(regs, dst):
        a(f"v_max3_f32 v{dst}, v{regs[0]}, v{regs[1]}, v{regs[2]}")
        i = 3
        while i + 1 < len(regs):
            a(f"v_max3_f32 v{dst}, v{dst}, v{regs[i]}, v{regs[i+1]}")
            i += 2
        if i < len(regs):
            a(f"v_max_f32 v{dst}, v{dst}, v{regs[i]}")
        a(f"v_mov_b32 v{dst+1}, v{dst}")
        a("s_nop 1")
        a(f"v_permlane32_swap_b32 v{dst}, v{dst+1}")
        a("s_nop 1")
        a(f"v_max_f32 v{dst}, v{dst}, v{dst+1}")

    def store_o(D):
        a(f"""
        v_mov_b32 v{vt}, v{O+8}
        v_mov_b32 v{vt+1}, v{O+8}
        s_nop 1
        v_permlane32_swap_b32 v{vt}, v{vt+1}
        s_nop 1
        v_rcp_f32 v{vt}, v{vt+1}
        s_nop 0
        v_mul_f32 v{vt}, v{vt}, v{vGt}
        """)
        for r in range(12):
            a(f"v_mul_f32 v{O+r}, v{O+r}, v{vt}")
        for i in range(6):
            a(f"v_cvt_pk_bf16_f32 v{D+i}, v{O+2*i}, v{O+2*i+1}")
        a(f"v_permlane32_swap_b32 v{D}, v{D+2}")
        a(f"v_permlane32_swap_b32 v{D+1}, v{D+3}")
        a("s_mov_b32 exec_hi, 0")
        a(f"buffer_store_dwordx2 {vr(D+4,2)}, v{vO2}, {sr(SWS,4)}, s{sO} offen sc1")
        a("s_mov_b32 exec_hi, -1")
        a(f"buffer_store_dwordx4 {vr(D,4)}, v{vO}, {sr(SWS,4)}, s{sO} offen sc1")

    def kreads(tile):
        o = tile * K2_TILE
        return [f"ds_read_b128 {vr(KF1,4)}, v{vK1} offset:{o}",
                f"ds_read_b64 {vr(KF2,2)}, v{vK2} offset:{o}"]

    def vread(tile, j):
        return f"ds_read_b128 {vr(VF+4*j,4)}, v{vV} offset:{tile * K2_TILE + 2*VB*j}"

    def qk(sb, c, k1=KF1, k2=KF2):
        return [f"v_mfma_f32_32x32x16_bf16 {vr(sb,16)}, {vr(k1,4)}, {vr(Q1,4)}, {c}",
                f"v_mfma_f32_32x32x8_bf16 {vr(sb,16)}, {vr(k2,2)}, {vr(Q2,2)}, {vr(sb,16)}"]

    stamp(a, 3)
    for l in kreads(0):
        a(l)
    a(f"""
    s_mov_b32 exec_lo, 0
    v_mov_b32 v{Q2}, 0
    v_mov_b32 v{Q2+1}, 0
    s_mov_b32 exec_lo, -1
    v_sub_f32 v{vGt}, 1.0, v{vGt}
    s_waitcnt lgkmcnt(0)
    """)
    for l in qk(SB[0], "0"):
        a(l)
    a("s_nop 11")
    maxtree([SB[0] + r for r in range(16)], vt)
    for r in range(16):
        a(f"v_sub_f32 v{NEGM+r}, 0, v{vt}")
    a.label("K2_HAVE_M")
    a("s_waitcnt lgkmcnt(0)")
    a("s_nop 0")
    for l in qk(SB[0], vr(NEGM, 16)):
        a(l)
    for l in kreads(1):
        a(l)
    a(vread(0, 0))
    a("s_nop 9")
    stamp(a, 4)
    a.raw(".p2align 3")
    a.label("K2_LOOP")
    HI = int(os.environ.get('K2HI', '7'))

    def hint():
        a(f"""
        s_mov_b32 exec_hi, 0
        buffer_atomic_add v{vOne}, v{vHint}, {sr(SWS,4)}, s{sHint} offen sc1
        s_mov_b32 exec_hi, -1
        """)
    PR = os.environ.get('K2PRIO', '3..2.1.0')
    prio = {i: int(c) for i, c in enumerate(PR) if c != '.'}
    for i in range(8):
        cur, nxt = SB[i % 2], SB[1 - i % 2]
        e = [f"v_exp_f32 v{cur+r}, v{cur+r}" for r in range(16)]
        c = [f"v_cvt_pk_bf16_f32 v{P+j}, v{cur+2*j}, v{cur+2*j+1}" for j in range(8)]
        q = qk(nxt, vr(NEGM, 16))
        pv = [f"v_mfma_f32_32x32x16_bf16 {vr(O,16)}, {vr(VF+4*j,4)}, {vr(P+4*j,4)}, {vr(O,16)}" for j in range(2)]
        kr = kreads((i + 2) % 8)
        dp = [[]] * 5
        if i == 6:
            a("s_waitcnt vmcnt(0)")
            a("s_barrier")
            a(f"v_add_u32 v{vK1}, s{sSlot}, v{vK10}")
            a(f"v_add_u32 v{vK2}, s{sSlot}, v{vK20}")
            dp = dma_parts()
        if (i - 6) % 8 in prio:
            a(f"s_setprio {prio[(i - 6) % 8]}")
        if i == 1:
            a(f"""
            s_cmp_eq_u32 s{sC}, {os.environ.get('K2PC', '6')}
            s_cbranch_scc1 K2_SIG
            s_cmp_eq_u32 s{sC}, 0
            s_cbranch_scc0 K2_NOSIG
            s_cmp_lg_u32 s{sRedo}, 0
            s_cbranch_scc1 K2_NOSIG
            s_mov_b32 exec_hi, 0
            buffer_store_dwordx2 {vr(AKP1,2)}, v{vO2}, {sr(SWS,4)}, s{sO} offen sc1
            s_mov_b32 exec_hi, -1
            buffer_store_dwordx4 {vr(AKP1,4)}, v{vO}, {sr(SWS,4)}, s{sO} offen sc1
            """)
            a.label("K2_SIG")
            a(f"""
            s_mov_b64 exec, 1
            buffer_atomic_add v{vOne}, v{vCb}, {sr(SWS,4)}, s{sProg} offen sc1
            s_mov_b64 exec, -1
            """)
            a.label("K2_NOSIG")

        if i == HI:
            a(f"s_cmp_eq_u32 s{sC}, 7")
            a("s_cbranch_scc0 K2_NOHINT")
            hint()
            a.label("K2_NOHINT")

        def em(L):
            for l in L:
                a(l)
        a(e[0]); a(e[1])
        a(pv[1])
        a(vread(i, 1))
        a(e[2]); em(dp[0]); a(e[3]); a(c[0]); a(e[4]); a(c[1])
        a("s_waitcnt lgkmcnt(1)")
        a(q[0])
        a(e[5]); em(dp[1]); a(e[6]); a(e[7]); a(c[2]); a(e[8]); a(c[3])
        a(q[1])
        em(kr)
        a(e[9]); em(dp[2]); a(e[10]); a(e[11]); a(c[4]); a(e[12]); a(c[5])
        if i == 7:
            a(f"v_add_u32 v{vV}, s{sSlot}, v{vLV}")
        a(pv[0])
        a(vread((i + 1) % 8, 0))
        a(e[13]); em(dp[3]); a(e[14]); em(dp[4]); a(e[15]); a(c[6])
        a("s_waitcnt lgkmcnt(3)")
        a(c[7])
        if i == 7:
            a(f"s_add_u32 s{sSlot}, s{sSlot}, {K2_SLOT}")
            a(f"s_cmp_ge_u32 s{sSlot}, {K2_SLOT*K2_R}")
            a(f"s_cselect_b32 s{sSlot}, 0, s{sSlot}")
    a(f"""
    s_add_u32 s{sC}, s{sC}, 1
    s_cmp_lt_u32 s{sC}, 8
    s_cbranch_scc1 K2_LOOP
    v_mfma_f32_32x32x16_bf16 {vr(O,16)}, {vr(VF+4,4)}, {vr(P+4,4)}, {vr(O,16)}
    """)
    if HI >= 8:
        hint()
    a(f"""
    v_mov_b32 v{vt+3}, {K2_FLAG}
    s_mov_b32 s3, {f32(2.0**100)}
    s_waitcnt lgkmcnt(0)
    s_nop 9
    """)
    stamp(a, 5)
    a(f"v_mov_b32 v{vt+2}, v{O+8}")
    a("s_mov_b32 exec_hi, 0")
    a(f"v_mul_f32 v{vt+2}, 0, v{O+8}")
    for r in range(9, 12):
        a(f"v_fma_f32 v{vt+2}, v{O+r}, 0, v{vt+2}")
    a("s_mov_b32 exec_hi, -1")
    for r in range(8):
        a(f"v_fma_f32 v{vt+2}, v{O+r}, 0, v{vt+2}")
    a(f"v_cmp_nlt_f32 s[{sTmp}:{sTmp+1}], v{vt+2}, s3")
    a(f"""
    s_nop 3
    s_cmp_eq_u32 s{sRedo}, 0
    s_cbranch_scc1 K2_FIRST
    s_cmp_eq_u32 s{sBad}, 0
    s_cbranch_scc1 K2_NOFLAG
    s_branch K2_GOOD
    """)
    a.label("K2_FIRST")
    a(f"""
    s_cmp_eq_u64 s[{sTmp}:{sTmp+1}], 0
    s_cselect_b32 s{sBad}, 0, 1
    s_cbranch_scc1 K2_GOOD
    ds_write_b32 v{vt+3}, v{vOne}
    s_branch K2_NOFLAG
    """)
    a.label("K2_GOOD")
    store_o(P)
    a.label("K2_NOFLAG")
    a(f"""
    s_waitcnt lgkmcnt(0)
    s_barrier
    ds_read_b32 v{vt+2}, v{vt+3}
    s_waitcnt lgkmcnt(0)
    v_readfirstlane_b32 s3, v{vt+2}
    s_nop 3
    s_cmp_gt_u32 s3, s{sRedo}
    s_cbranch_scc1 K2_FALLBACK
    """)
    a.label("K2_DONE")
    if STAMP: a("s_waitcnt vmcnt(0)")
    stamp(a, 6); stamp_rt(a, 7)
    stamp_flush(a, 1, SWS, sWave, 16, 8, shift=3)
    a.label("K2_END")
    a("s_endpgm")

    a.label("K2_FALLBACK")
    a(f"""
    s_mov_b32 s{sRedo}, 1
    s_mov_b32 s3, {4*SEGB}
    v_mov_b32 v{vt+2}, 0xff800000
    s_waitcnt vmcnt(0)
    """)
    dma_init()
    dma_chunk()
    dma_chunk()
    a.label("K2_MAXLOOP")
    a(f"""
    buffer_load_dwordx4 {vr(KF1,4)}, v{vGK1}, {sr(SWS,4)}, s3 offen
    buffer_load_dwordx2 {vr(KF2,2)}, v{vGK2}, {sr(SWS,4)}, s3 offen
    s_waitcnt vmcnt(0)
    """)
    for l in qk(SB[0], "0"):
        a(l)
    a("s_nop 15")
    for r in range(0, 16, 2):
        a(f"v_max3_f32 v{vt+2}, v{vt+2}, v{SB[0]+r}, v{SB[0]+r+1}")
    a(f"""
    s_add_u32 s3, s3, {TB}
    s_cmp_lt_u32 s3, {5*SEGB}
    s_cbranch_scc1 K2_MAXLOOP
    v_mov_b32 v{vt+3}, v{vt+2}
    s_nop 1
    v_permlane32_swap_b32 v{vt+2}, v{vt+3}
    s_nop 1
    v_max_f32 v{vt+2}, v{vt+2}, v{vt+3}
    """)
    for r in range(16):
        a(f"v_sub_f32 v{NEGM+r}, 0, v{vt+2}")
    zero_state()
    a("s_barrier")
    for l in kreads(0):
        a(l)
    a("s_branch K2_HAVE_M")

    a.label("K2_AROLE")
    sMb, sNb, sWb, sOb, sLq, sOut = 50, 51, 52, 53, 54, 55
    SOUT = 56
    a(f"""
    s_load_dwordx2 s[48:49], s[0:1], 56
    s_setprio {os.environ.get('K2APRIO', '1')}
    s_bfe_u32 s15, s2, {(5 << 16) | 3}
    s_lshl_b32 s{sMb}, s14, 2
    s_and_b32 s3, s15, 3
    s_add_u32 s{sMb}, s{sMb}, s3
    s_lshr_b32 s{sNb}, s15, 2
    s_lshl_b32 s{sHead}, s{sNb}, 2
    s_lshr_b32 s3, s{sWave}, 1
    s_add_u32 s{sHead}, s{sHead}, s3
    s_lshl_b32 s{sT}, s{sMb}, 1
    s_and_b32 s3, s{sWave}, 1
    s_add_u32 s{sT}, s{sT}, s3
    """)
    head_addr()
    sPrev, sTAp = 46, 24
    a(f"""
    s_and_b32 s3, s{sT}, 31
    s_cmp_lg_u32 s3, 0
    s_cselect_b32 s3, {TB}, 0
    s_cselect_b64 s[{sPrev}:{sPrev+1}], -1, 0
    s_sub_u32 s{sTAp}, s{sTA}, s3
    v_mov_b32 v10, {f32(-1e30)}
    """)
    AV = [VF, VF + 4, P]
    AC = SB
    for b in AV:
        for i in range(4):
            a(f"v_mov_b32 v{b+i}, 0x3f803f80")

    def lanemask(fn):
        m = 0
        for l in range(64):
            if fn(l):
                m |= 1 << l
        return m
    k = 0
    for r in range(16):
        m = lanemask(lambda l: 0 <= pi5(l % 32) - (16 * (r // 8) + 8 * (l // 32) + r % 8) <= 7)
        sp = sTmp + 2 + 2 * (k % 3); k += 1
        a(f"s_mov_b32 s{sp}, 0x{m & 0xffffffff:08x}")
        a(f"s_mov_b32 s{sp+1}, 0x{m >> 32:08x}")
        a(f"v_cndmask_b32 v{AC[0]+r}, v10, 0, s[{sp}:{sp+1}]")
    for r in range(8, 16):
        m = lanemask(lambda l: pi5(l % 32) + 32 - (16 * (r // 8) + 8 * (l // 32) + r % 8) <= 7)
        sp = sTmp + 2 + 2 * (k % 3); k += 1
        a(f"s_and_b32 s{sp}, s{sPrev}, 0x{m & 0xffffffff:08x}")
        a(f"s_and_b32 s{sp+1}, s{sPrev}, 0x{m >> 32:08x}")
        a(f"v_cndmask_b32 v{AC[1]+r}, v10, 0, s[{sp}:{sp+1}]")
    a("s_waitcnt lgkmcnt(0)")
    srd(a, SWS, 10, WS_BYTES)
    srd(a, SOUT, 48, 2621440)
    sLine = 60
    a(f"s_and_b32 s{sLine}, s2, 255")
    a(f"s_lshl_b32 s{sLine}, s{sLine}, 7")
    a(f"s_add_u32 s{sLine}, s{sLine}, {CNT_OFF}")

    def poll(lab, word, need, sleep, limit):
        a(f"""
        s_movk_i32 s9, {limit}
        v_mov_b32 v10, 0
        """)
        a.label(lab)
        a(f"""
        buffer_load_dword v11, v10, {sr(SWS,4)}, s{sLine} offen offset:{4*word} sc1
        s_waitcnt vmcnt(0)
        v_readfirstlane_b32 s3, v11
        s_sub_u32 s9, s9, 1
        s_nop 2
        s_cmp_ge_u32 s3, {need}
        s_cbranch_scc1 {lab}_OK
        s_sleep {sleep}
        s_cmp_lg_u32 s9, 0
        s_cbranch_scc1 {lab}
        """)
        a.label(lab + "_OK")

    out_addr(0)
    a(f"""
    v_mul_u32_u24 v11, 10240, v9
    v_lshl_add_u32 v11, v12, 4, v11
    v_add_u32 v{vGV}, s6, v11
    """)
    ACC, OF, WF = 16, 36, 76
    vLn, vW, vOut, vOut2, vCn = 2, 3, 4, 5, 6
    a(f"""
    v_mov_b32 v{vLn}, v{vL16}
    s_lshr_b32 s4, s{sWave}, 2
    s_mul_i32 s{sLq}, s4, 40960
    v_add_u32 v{vW}, s{sLq}, v{vL16}
    s_mul_i32 s5, s4, 10240
    s_mul_i32 s{sWb}, s{sNb}, {5*20480}
    s_add_u32 s{sWb}, s{sWb}, s5
    s_add_u32 s{sWb}, s{sWb}, {WOF_OFF}
    s_lshl_b32 s6, s{sMb}, 2
    s_and_b32 s3, s{sWave}, 3
    s_add_u32 s6, s6, s3
    s_mul_i32 s{sOb}, s6, 20480
    s_add_u32 s{sOb}, s{sOb}, s5
    s_add_u32 s{sOb}, s{sOb}, {O_OFF}
    s_mul_i32 s3, s3, 10240
    s_add_u32 s{sLq}, s{sLq}, s3
    v_and_b32 v9, 15, v1
    v_lshrrev_b32 v11, 4, v1
    v_mul_u32_u24 v12, 2560, v9
    v_and_b32 v13, 1, v11
    v_lshlrev_b32 v13, 5, v13
    v_lshrrev_b32 v14, 1, v11
    v_lshlrev_b32 v14, 4, v14
    v_add3_u32 v{vOut}, v12, v13, v14
    v_lshl_add_u32 v{vOut2}, v11, 3, v12
    s_and_b32 s7, s6, 63
    s_mul_i32 s7, s7, {16*2560}
    s_lshr_b32 s6, s6, 6
    s_mul_i32 s6, s6, 1280
    s_add_u32 s{sOut}, s6, s7
    s_mul_i32 s7, s{sNb}, 160
    s_add_u32 s{sOut}, s{sOut}, s7
    """)
    a(f"s_cmp_eq_u32 s{sWave}, 0")
    a("s_cbranch_scc0 K2_SGO")
    poll("K2_SPOLL", 0, 1, 12, 64)
    a.label("K2_SGO")
    a("s_barrier")
    gate_load()
    a(f"""
    s_add_u32 s3, s{sTA}, {SEGB}
    s_add_u32 s4, s{sTAp}, {SEGB}
    """)
    for (r1, r2, so) in ((Q1, Q2, sTA), (KF1, KF2, 3), (AKP1, AKP2, 4)):
        a(f"buffer_load_dwordx4 {vr(r1,4)}, v{vGK1}, {sr(SWS,4)}, s{so} offen")
        a(f"buffer_load_dwordx2 {vr(r2,2)}, v{vGK2}, {sr(SWS,4)}, s{so} offen")
    a(f"""
    s_add_u32 s3, s{sTA}, {2*SEGB}
    s_add_u32 s4, s3, 20480
    s_add_u32 s5, s{sTAp}, {2*SEGB+20480}
    s_mov_b32 exec_lo, 0x000fffff
    s_mov_b32 exec_hi, 0x000fffff
    buffer_load_dwordx4 {vr(AV[0],4)}, v{vGV}, {sr(SWS,4)}, s3 offen
    buffer_load_dwordx4 {vr(AV[1],4)}, v{vGV}, {sr(SWS,4)}, s4 offen
    buffer_load_dwordx4 {vr(AV[2],4)}, v{vGV}, {sr(SWS,4)}, s5 offen
    s_mov_b64 exec, -1
    s_waitcnt vmcnt(3)
    s_mov_b32 exec_lo, 0
    v_mov_b32 v{Q2}, 0
    v_mov_b32 v{Q2+1}, 0
    s_mov_b32 exec_lo, -1
    s_nop 1
    """)
    stamp(a, 2)
    for l in qk(AC[0], vr(AC[0], 16)) + qk(AC[1], vr(AC[1], 16), AKP1, AKP2):
        a(l)
    a("s_nop 11")
    aregs = [AC[0] + r for r in range(16)] + [AC[1] + r for r in range(8, 16)]
    maxtree(aregs, vt)
    for r in aregs:
        a(f"v_sub_f32 v{r}, v{r}, v{vt}")
    for r in aregs:
        a(f"v_exp_f32 v{r}, v{r}")
    a("s_waitcnt vmcnt(0)")
    AP = NEGM
    for i in range(12):
        a(f"v_cvt_pk_bf16_f32 v{AP+i}, v{aregs[2*i]}, v{aregs[2*i+1]}")
    a(f"""
    s_nop 1
    v_mfma_f32_32x32x16_bf16 {vr(O,16)}, {vr(AV[0],4)}, {vr(AP,4)}, 0
    v_mfma_f32_32x32x16_bf16 {vr(O,16)}, {vr(AV[1],4)}, {vr(AP+4,4)}, {vr(O,16)}
    v_mfma_f32_32x32x16_bf16 {vr(O,16)}, {vr(AV[2],4)}, {vr(AP+8,4)}, {vr(O,16)}
    s_nop 11
    """)
    store_o(AKP1)
    a(f"""
    v_lshlrev_b32 v{vCn}, 12, v1
    v_mov_b32 v9, 1
    s_and_b32 s7, s2, 31
    s_lshl_b32 s7, s7, 7
    s_add_u32 s7, s7, {CNT_OFF + 8}
    s_waitcnt vmcnt(0)
    s_barrier
    s_cmp_eq_u32 s{sWave}, 0
    s_cbranch_scc0 K2_PNOSIG
    s_mov_b64 exec, 0xff
    buffer_atomic_add v9, v{vCn}, {sr(SWS,4)}, s7 offen sc1
    s_mov_b64 exec, -1
    """)
    a.label("K2_PNOSIG")
    stamp(a, 3)
    for i in range(20):
        a(f"v_mov_b32 v{ACC+i}, 0")
    a(f"s_mov_b32 s{sC}, 0")
    a.label("K2_PROUND")
    a(f"""
    s_and_b32 s3, s{sWave}, 3
    s_lshl_b32 s3, s3, 11
    s_add_u32 s4, s{sWb}, s3
    """)
    for nt in range(5):
        a(f"s_add_u32 m0, s{sLq}, {1024*nt}")
        a(f"s_add_u32 s4, s4, 20480" if nt else "s_nop 0")
        a(f"buffer_load_dwordx4 v{vLn}, {sr(SWS,4)}, s4 offen lds")
        a(f"s_add_u32 m0, s{sLq}, {1024*nt + 5120 - 1024}")
        a("s_nop 0")
        a(f"buffer_load_dwordx4 v{vLn}, {sr(SWS,4)}, s4 offen offset:1024 lds")
    a(f"s_add_u32 s4, s{sWb}, 8192")
    for nt in range(5):
        if nt:
            a("s_add_u32 s4, s4, 20480")
        a(f"buffer_load_dwordx4 {vr(WF+4*nt,4)}, v{vLn}, {sr(SWS,4)}, s4 offen")
        a(f"buffer_load_dwordx4 {vr(WF+20+4*nt,4)}, v{vLn}, {sr(SWS,4)}, s4 offen offset:1024")
    a(f"""
    s_cmp_eq_u32 s{sWave}, 0
    s_cbranch_scc0 K2_PGO
    s_cmp_lg_u32 s{sC}, 0
    s_cbranch_scc1 K2_PWB
    """)
    poll("K2_POLLA", 2, 8, 12, 8192)
    a("s_branch K2_PGO")
    a.label("K2_PWB")
    poll("K2_POLLE", 0, 2, int(os.environ.get('K2SLEEP2', '48')), 2048)
    if 'p_prio3' in EXP: a("s_setprio 3")
    poll("K2_POLLB", 1, 32, int(os.environ.get('K2SLEEP1', '4')), 16384)
    a.label("K2_PGO")
    a("s_waitcnt vmcnt(0)")
    a("s_barrier")
    if STAMP:
        a("s_memtime s[86:87]")
        a("s_waitcnt lgkmcnt(0)")
        a(f"s_cmp_eq_u32 s{sC}, 0")
        a("s_cselect_b32 s74, s86, s74")
        a("s_cselect_b32 s78, s78, s86")
    ROT = False

    def ksreg(i, dst, mul):
        if ROT:
            a(f"s_add_u32 s{dst}, s{sNb}, {i}")
            a(f"s_and_b32 s{dst}, s{dst}, 7")
            a(f"s_mul_i32 s{dst}, s{dst}, {mul}")
        else:
            a(f"s_mov_b32 s{dst}, {i * mul}")
    iss = [0, 1, 8, 9, 2, 3, 4, 5, 6, 7] if ROT else [8, 9, 0, 1, 2, 3, 4, 5, 6, 7]
    con = [8, 9, 0, 1, 2, 3, 4, 5, 6, 7]
    a(f"s_add_u32 s4, s{sOb}, 8192")
    NB1 = int(os.environ.get('K2NB1', '10'))

    def oload(st):
        if st < 8:
            a(f"s_add_u32 s6, s{sOb}, {1024*st}")
            a(f"buffer_load_dwordx4 {vr(OF+4*st,4)}, v{vLn}, {sr(SWS,4)}, s6 offen sc1")
        else:
            a(f"buffer_load_dwordx4 {vr(OF+4*st,4)}, v{vLn}, {sr(SWS,4)}, s4 offen offset:{(st-8)*1024} sc1")
    for st in con[:NB1]:
        oload(st)
    retry = []
    a("s_mov_b32 s9, 0x10000")
    for i, st in enumerate(con):
        if i == 0 and NB1 < 10:
            a(f"s_waitcnt vmcnt({NB1-1})")
            for st2 in con[NB1:]:
                oload(st2)
        else:
            a(f"s_waitcnt vmcnt({9-i})" + (f" lgkmcnt({5 if i < 9 else 0})" if i >= 2 else ""))
        if STAMP and i in (0, 5):
            a("s_memtime s[86:87]")
            a("s_waitcnt lgkmcnt(0)")
            a(f"s_mov_b32 s{81 if i == 0 else 82}, s86")
        a.label(f"K2_PCHK{i}")
        a(f"v_max3_u32 v8, v{OF+4*st}, v{OF+4*st+1}, v{OF+4*st+2}")
        a(f"v_max_u32 v8, v8, v{OF+4*st+3}")
        a("v_cmp_eq_u32 vcc, -1, v8")
        if i + 2 < 10:
            ksreg(con[i + 2], 3, 5120)
            a(f"v_add_u32 v7, s3, v{vW}")
        a(f"s_cbranch_vccnz K2_PRETRY{i}")
        a.label(f"K2_PCONT{i}")
        retry.append((i, st))
        for nt in range(5):
            d = vr(ACC + 4 * nt, 4)
            a(f"v_mfma_f32_16x16x32_bf16 {d}, {vr(WF + (i % 2) * 20 + 4 * nt, 4)}, {vr(OF+4*st,4)}, {d}")
        if i + 2 < 10:
            for nt in range(5):
                a(f"ds_read_b128 {vr(WF + (i % 2) * 20 + 4 * nt, 4)}, v7 offset:{1024*nt}")
    a(f"""
    s_barrier
    s_cmp_lg_u32 s{sC}, 0
    s_cbranch_scc1 K2_PFIN
    s_mov_b32 s{sC}, 1
    s_add_u32 s{sWb}, s{sWb}, {WOF_BR}
    s_add_u32 s{sOb}, s{sOb}, {O_BR}
    """)
    stamp(a, 5)
    a("s_branch K2_PROUND")
    a.label("K2_PFIN")
    stamp(a, 9)
    if STAMP:
        a("s_sub_u32 s80, 0x10000, s9")
        a("s_add_u32 s80, s80, s70")
    a(f"""
    s_and_b32 s3, s{sWave}, 3
    s_mul_i32 s3, s3, 5120
    v_add_u32 v{vW}, s3, v{vLn}
    s_cmp_lt_u32 s{sWave}, 4
    s_cbranch_scc1 K2_PSUM
    """)
    for nt in range(5):
        a(f"ds_write_b128 v{vW}, {vr(ACC+4*nt,4)} offset:{1024*nt}")
    a("s_waitcnt lgkmcnt(0)")
    a("s_barrier")
    a("s_branch K2_DONE")
    a.label("K2_PSUM")
    a("s_barrier")
    for nt in range(5):
        a(f"ds_read_b128 {vr(OF + 4*nt, 4)}, v{vW} offset:{1024*nt}")
    a("s_waitcnt lgkmcnt(0)")
    for i in range(20):
        a(f"v_add_f32 v{ACC+i}, v{ACC+i}, v{OF+i}")
    for pr in range(2):
        b0 = ACC + pr * 8
        b1 = b0 + 4
        a(f"v_cvt_pk_bf16_f32 v{b0}, v{b0}, v{b0+1}")
        a(f"v_cvt_pk_bf16_f32 v{b0+1}, v{b0+2}, v{b0+3}")
        a(f"v_cvt_pk_bf16_f32 v{b0+2}, v{b1}, v{b1+1}")
        a(f"v_cvt_pk_bf16_f32 v{b0+3}, v{b1+2}, v{b1+3}")
        a("s_nop 1")
        a(f"v_permlane16_swap_b32 v{b0}, v{b0+2}")
        a(f"v_permlane16_swap_b32 v{b0+1}, v{b0+3}")
        a("s_nop 0")
        a(f"buffer_store_dwordx4 {vr(b0,4)}, v{vOut}, {sr(SOUT,4)}, s{sOut} offen offset:{pr*64}")
    b0 = ACC + 16
    a(f"v_cvt_pk_bf16_f32 v{b0}, v{b0}, v{b0+1}")
    a(f"v_cvt_pk_bf16_f32 v{b0+1}, v{b0+2}, v{b0+3}")
    a(f"buffer_store_dwordx2 {vr(b0,2)}, v{vOut2}, {sr(SOUT,4)}, s{sOut} offen offset:128")
    a("s_branch K2_DONE")
    for i, st in retry:
        a.label(f"K2_PRETRY{i}")
        a(f"""
        s_sub_u32 s9, s9, 1
        s_cmp_eq_u32 s9, 0
        s_cbranch_scc1 K2_PGIVE{i}
        s_waitcnt vmcnt(0)
        """)
        for st2 in con[i:]:
            a(f"s_add_u32 s5, s{sOb}, {1024*st2}")
            a(f"buffer_load_dwordx4 {vr(OF+4*st2,4)}, v{vLn}, {sr(SWS,4)}, s5 offen sc1")
        a(f"s_waitcnt vmcnt({9-i})")
        a(f"s_branch K2_PCHK{i}")
        a.label(f"K2_PGIVE{i}")
        a("s_mov_b32 s9, 1")
        a(f"s_branch K2_PCONT{i}")
    a.label("CODE_END")
    return kernel_desc(name, NV, NV, 64)


K3_DIST = int(os.environ.get('K3D', '2'))
K3_NS = K3_DIST + 2
K3_LDS = K3_NS * 20480


def gen_k3(a):
    name = "proj_kernel"
    kernel_head(a, name)
    SWS, SOUT = 20, 24
    sWave, sMb, sNb = 16, 17, 18
    sO, sW, sRot, sM0, sOc, sWc = 28, 29, 31, 32, 33, 34
    vL16, vWj, vG, vOut, vOut2 = 2, 3, 7, 8, 9
    ACC = [16, 36]
    OF = 56
    WF = 56 + 16 * (K3_DIST + 1)
    NV = WF + 40
    DIST = K3_DIST
    NO = DIST + 1
    a("s_cmp_ge_u32 s2, 256")
    a("s_cbranch_scc1 K3_END")
    stamp(a, 0); stamp_rt(a, 1)
    a("""
    s_load_dwordx2 s[4:5], s[0:1], 56
    s_load_dwordx2 s[6:7], s[0:1], 72
    v_lshrrev_b32 v9, 6, v0
    v_and_b32 v1, 63, v0
    s_and_b32 s14, s2, 7
    v_readfirstlane_b32 s16, v9
    s_lshr_b32 s15, s2, 3
    s_lshl_b32 s17, s14, 2
    s_and_b32 s3, s15, 3
    s_add_u32 s17, s17, s3
    s_lshr_b32 s18, s15, 2
    v_lshlrev_b32 v2, 4, v1
    """)
    a(f"""
    s_and_b32 s19, s{sNb}, 1
    s_lshr_b32 s{sRot}, s{sNb}, 1
    s_lshl_b32 s3, s{sMb}, 2
    s_add_u32 s3, s3, s{sWave}
    s_mul_i32 s{sO}, s3, 20480
    s_add_u32 s{sO}, s{sO}, {O_OFF}
    s_mul_i32 s{sW}, s{sNb}, {5*20480}
    s_lshl_b32 s14, s{sWave}, 10
    s_add_u32 s{sW}, s{sW}, s14
    s_add_u32 s{sW}, s{sW}, {WOF_OFF}
    s_mov_b32 s{sM0}, s14
    s_mul_i32 s14, s19, {O_BR}
    s_mul_i32 s15, s19, {WOF_BR}
    s_sub_u32 s36, {O_BR}, s14
    s_sub_u32 s37, {WOF_BR}, s15
    s_add_u32 s36, s36, s{sO}
    s_add_u32 s37, s37, s{sW}
    s_add_u32 s{sO}, s{sO}, s14
    s_add_u32 s{sW}, s{sW}, s15
    s_waitcnt lgkmcnt(0)
    """)
    srd(a, SWS, 6, WS_BYTES)
    srd(a, SOUT, 4, 2621440)

    def load_items(g):
        pre = []
        if g == 5:
            pre += [f"s_mov_b32 s{sO}, s36", f"s_mov_b32 s{sW}, s37"]
        pre += [f"s_lshl_b32 s14, s{sRot}, 12",
                f"s_add_u32 s{sOc}, s{sO}, s14",
                f"s_add_u32 s{sWc}, s{sW}, s14",
                f"s_add_u32 s{sRot}, s{sRot}, 1",
                f"s_cmp_ge_u32 s{sRot}, 5",
                f"s_cselect_b32 s{sRot}, 0, s{sRot}"]
        items = []
        for k in range(4):
            items.append([f"buffer_load_dwordx4 {vr(OF + (g % NO) * 16 + 4 * k, 4)}, v{vL16}, {sr(SWS,4)}, s{sOc} offen offset:{1024*k}"])
        for nt in range(5):
            items.append([f"s_add_u32 m0, s{sM0}, {(g % K3_NS) * 20480 + nt * 4096}",
                          f"s_add_u32 s{sWc}, s{sWc}, 20480" if nt else "s_nop 0",
                          f"buffer_load_dwordx4 v{vL16}, {sr(SWS,4)}, s{sWc} offen lds"])
        items[0] = pre + items[0]
        return items

    def loads(g):
        for it in load_items(g):
            for l in it:
                a(l)

    if 'k3_wfirst' in EXP and DIST == 2:
        i0 = load_items(0)
        pre0, o0first = i0[0][:-1], i0[0][-1]
        for l in pre0: a(l)
        a(f"s_mov_b32 s40, s{sOc}")
        for it in i0[4:]:
            for l in it: a(l)
        for l in [o0first] + [it[0] for it in i0[1:4]]:
            a(l)
        i1 = load_items(1)
        for it in i1:
            for l in it: a(l)
    else:
        for g in range(DIST):
            loads(g)
    a(f"""
    v_and_b32 v9, 15, v1
    v_lshlrev_b32 v10, 2, v9
    s_lshl_b32 s14, s3, 6
    s_add_u32 s35, s14, {G_OFF}
    v_lshrrev_b32 v11, 4, v1
    v_mul_u32_u24 v12, 2560, v9
    v_and_b32 v13, 1, v11
    v_lshlrev_b32 v13, 5, v13
    v_lshrrev_b32 v14, 1, v11
    v_lshlrev_b32 v14, 4, v14
    v_add3_u32 v{vOut}, v12, v13, v14
    v_lshl_add_u32 v{vOut2}, v11, 3, v12
    v_add_u32 v{vWj}, 40960, v{vL16}
    v_add_u32 v{vWj+1}, 81920, v{vL16}
    s_and_b32 s14, s3, 63
    s_mul_i32 s14, s14, {16*2560}
    s_lshr_b32 s15, s3, 6
    s_mul_i32 s15, s15, 1280
    s_add_u32 s30, s14, s15
    s_mul_i32 s15, s{sNb}, 160
    s_add_u32 s30, s30, s15
    """)

    def wread(g, k):
        slot = g % K3_NS
        base, off = ((vL16, vWj, vWj + 1)[slot // 2], (slot % 2) * 20480)
        return [f"ds_read_b128 {vr(WF + (k % 2) * 20 + 4 * nt, 4)}, v{base} offset:{off + nt*4096 + k*1024}" for nt in range(5)]

    for g in range(10):
        if g == 0: stamp(a, 2)
        n_after = 9 * (min(10, g + DIST) - 1 - g) + (1 if g == 9 else 0)
        a(f"s_waitcnt vmcnt({n_after})")
        a("s_barrier")
        if g == 0: stamp(a, 3)
        for l in wread(g, 0):
            a(l)
        items = load_items(g + DIST) if g + DIST < 10 else []
        if g == 8:
            items = [[f"buffer_load_dword v{vG}, v10, {sr(SWS,4)}, s35 offen"]]
        if items:
            for l in items.pop(0):
                a(l)
        acc = ACC[g // 5]
        for k in range(4):
            if k < 3:
                for l in wread(g, k + 1):
                    a(l)
                a("s_waitcnt lgkmcnt(5)")
            else:
                a("s_waitcnt lgkmcnt(0)")
            for nt in range(5):
                d = vr(acc + 4 * nt, 4)
                c = "0" if (g % 5 == 0 and k == 0) else d
                a(f"v_mfma_f32_16x16x32_bf16 {d}, {vr(WF + (k % 2) * 20 + 4 * nt, 4)}, {vr(OF + (g % NO) * 16 + 4 * k, 4)}, {c}")
                if nt in (1, 3) and items:
                    for l in items.pop(0):
                        a(l)
        assert not items
    stamp(a, 4)
    a(f"""
    s_waitcnt vmcnt(0)
    v_sub_f32 v10, 1.0, v{vG}
    s_cmp_eq_u32 s19, 0
    s_cselect_b64 s[38:39], -1, 0
    v_cndmask_b32 v11, v10, v{vG}, s[38:39]
    v_cndmask_b32 v10, v{vG}, v10, s[38:39]
    """)
    A0, A1 = ACC
    for i in range(20):
        a(f"v_mul_f32 v{A0+i}, v{A0+i}, v11")
    for i in range(20):
        a(f"v_fma_f32 v{A0+i}, v{A1+i}, v10, v{A0+i}")
    for pr in range(2):
        b0 = A0 + pr * 8
        b1 = b0 + 4
        a(f"v_cvt_pk_bf16_f32 v{b0}, v{b0}, v{b0+1}")
        a(f"v_cvt_pk_bf16_f32 v{b0+1}, v{b0+2}, v{b0+3}")
        a(f"v_cvt_pk_bf16_f32 v{b0+2}, v{b1}, v{b1+1}")
        a(f"v_cvt_pk_bf16_f32 v{b0+3}, v{b1+2}, v{b1+3}")
        a("s_nop 1")
        a(f"v_permlane16_swap_b32 v{b0}, v{b0+2}")
        a(f"v_permlane16_swap_b32 v{b0+1}, v{b0+3}")
        a("s_nop 0")
        a(f"buffer_store_dwordx4 {vr(b0,4)}, v{vOut}, {sr(SOUT,4)}, s30 offen offset:{pr*64}")
    b0 = A0 + 16
    a(f"v_cvt_pk_bf16_f32 v{b0}, v{b0}, v{b0+1}")
    a(f"v_cvt_pk_bf16_f32 v{b0+1}, v{b0+2}, v{b0+3}")
    a(f"buffer_store_dwordx2 {vr(b0,2)}, v{vOut2}, {sr(SOUT,4)}, s30 offen offset:128")
    stamp(a, 5)
    if STAMP: a("s_waitcnt vmcnt(0)")
    stamp(a, 6); stamp_rt(a, 7)
    stamp_flush(a, 2, SWS, sWave, 8, 10)
    a.label("K3_END")
    a("s_endpgm")
    a.label("CODE_END")
    return kernel_desc(name, NV, NV, 44)


def gen_diag(a):
    name = "diag_kernel"
    kernel_head(a, name)
    a("""
    s_cmp_ge_u32 s2, 1
    s_cbranch_scc1 KD_END
    s_load_dwordx4 s[4:7], s[0:1], 64
    s_waitcnt lgkmcnt(0)
    """)
    srd(a, 8, 6, WS_BYTES)
    srd(a, 12, 4, 256)
    a("v_lshlrev_b32 v1, 10, v0")
    a("v_mov_b32 v2, 0")
    for k, waves, idx in ((0, (0, 3), (3, 4)), (1, (0, 15), (3, 5)), (2, (0, 3), (3, 4))):
        for wi, w in enumerate(waves):
            a(f"s_mov_b32 s16, {DBG_OFF + k*(1<<18) + w*64}")
            a("buffer_load_dwordx4 v[4:7], v1, s[8:11], s16 offen")
            a("buffer_load_dwordx4 v[8:11], v1, s[8:11], s16 offen offset:16")
            a("s_waitcnt vmcnt(0)")
            a("v_not_b32 v12, v5")
            a(f"buffer_atomic_umax v12, v2, s[12:15], 0 offen offset:{k*20}")
            a(f"buffer_atomic_umax v11, v2, s[12:15], 0 offen offset:{k*20+4}")
            if wi == 0:
                a(f"v_sub_u32 v12, v{4+idx[0]}, v4")
                a(f"buffer_atomic_add v12, v2, s[12:15], 0 offen offset:{k*20+8}")
                a(f"v_sub_u32 v13, v{4+idx[1]}, v4")
                a(f"buffer_atomic_add v13, v2, s[12:15], 0 offen offset:{k*20+12}")
                a(f"v_sub_u32 v14, v10, v4")
                a(f"buffer_atomic_add v14, v2, s[12:15], 0 offen offset:{k*20+16}")
            a("s_waitcnt vmcnt(0)")
    a.label("KD_END")
    a("s_endpgm")
    return kernel_desc(name, 16, 16, 24)


DOC = """
(generated by a script of the author; all code below is hand-designed assembly)
Launch 1, qkv_kernel: both qkv GEMMs (128 x 256 tiles, 4 MFMA waves + 4 LDS-DMA loader waves; positions in parity-split
  order so that the dilated window becomes a plain window of 8), the gate, Wo re-tiled into MFMA fragments, hand-off words zeroed.
Launch 2, attn_kernel: two workgroups per CU.
  ids < 256: full attention of branch B. Softmax reference value = max over the first 32 keys (a lower bound of the row
    max, folded into the MFMA C operand); after the pass every wave checks that l < 2^100 and that O is finite. If the
    check fails anywhere in the workgroup the true row max is computed over all keys (K2_FALLBACK) and the pass is redone with it.
  ids >= 256: local attention of branch A (true max), then one 64 x 80 tile of the out projection of both branches.
  Hand-offs between workgroups: sc1 stores, counters added with sc1 atomics on a line per consumer, sc1 loads; o_B is
    additionally pre-marked with all-ones words inside the launch and every loaded word is checked. All polls are bounded.
"""


def main():
    global STAMP
    if "--stamp" in sys.argv:
        STAMP = True
        sys.argv.remove("--stamp")
    ref = open(OUT + ".ref").read().split("\n")
    head = [l for l in ref if l.startswith(";") and "@launch" not in l]
    a = Asm()
    for l in head:
        a.raw(l)
    a.raw(f"; @launch kernel=qkv_kernel grid=(256,1,1) block=(512,1,1) lds={K1_LDS}")
    a.raw(f"; @launch kernel=attn_kernel grid=(512,1,1) block=(512,1,1) lds={K2_LDS}")
    if not FUSE:
        a.raw(f"; @launch kernel=proj_kernel grid=(256,1,1) block=(256,1,1) lds={K3_LDS}")
    if 'diag' in EXP:
        a.raw("; @launch kernel=diag_kernel grid=(1,1,1) block=(256,1,1) lds=0")
    for l in DOC.strip("\n").split("\n"):
        a.raw("; " + l)
    a.raw('.amdgcn_target "amdgcn-amd-amdhsa--gfx950"')
    a.raw(".text")
    d = [gen_k1(a), gen_k2(a)] + ([] if FUSE else [gen_k3(a)]) + ([gen_diag(a)] if 'diag' in EXP else [])
    a.raw('.section .rodata,"a"')
    for x in d:
        a.raw(".p2align 6")
        a.raw(x.rstrip("\n"))
    out = sys.argv[1] if len(sys.argv) > 1 else OUT
    open(out, "w").write(a.text())
    print("wrote", out, len(a.L), "lines")


if __name__ == "__main__":
    main()
```

```python
import sys, math, struct, os
EXP = os.environ.get('EXP', '').split(',')

NAME = "gated_mix__sliding_local_dilated__mha_block__prompt"
OUT = f"cdna_kernels/{NAME}.s"

SEGB = 2621440
TB = 40960
O_OFF = 16 << 20
O_BR = 2621440
WOF_OFF = 24 << 20
WOF_BR = 819200
G_OFF = 28 << 20
CNT_OFF = G_OFF + 65536
WS_BYTES = 32 << 20
QSCALE = (20 ** -0.5) * math.log2(math.e)


def f32(x):
    return "0x%08x" % struct.unpack("<I", struct.pack("<f", x))[0]


def pi5(i):
    return (i & ~12) | ((i & 4) << 1) | ((i & 8) >> 1)


class Asm:
    def __init__(self):
        self.L = []

    def __call__(self, s):
        for l in s.strip("\n").split("\n"):
            self.L.append("    " + l.strip())

    def label(self, l):
        self.L.append(l + ":")

    def raw(self, s):
        self.L.append(s)

    def text(self):
        return "\n".join(self.L) + "\n"


def vr(b, n=1, p="v"):
    return f"{p}{b}" if n == 1 else f"{p}[{b}:{b+n-1}]"


def ar(b, n=1):
    return vr(b, n, "a")


def sr(b, n=1):
    return vr(b, n, "s")


STAMP = False
K2STF = ' sc1' if 'k2_sc1' in EXP else ''
DBG_OFF = 30 << 20


def stamp(a, idx, sbase=70):
    if not STAMP:
        return
    a(f"s_memtime s[{sbase+16}:{sbase+17}]")
    a("s_waitcnt lgkmcnt(0)")
    a(f"s_mov_b32 s{sbase+idx}, s{sbase+16}")


def stamp_rt(a, idx, sbase=70):
    if not STAMP:
        return
    a(f"s_memrealtime s[{sbase+16}:{sbase+17}]")
    a("s_waitcnt lgkmcnt(0)")
    a(f"s_mov_b32 s{sbase+idx}, s{sbase+16}")


def stamp_flush(a, kidx, srd_ws, swave, n, vtmp, sbase=70, shift=4):
    if not STAMP:
        return
    a("s_mov_b64 exec, -1")
    a(f"s_lshl_b32 s{sbase+16}, s2, {shift}")
    a(f"s_add_u32 s{sbase+16}, s{sbase+16}, s{swave}")
    a(f"s_lshl_b32 s{sbase+16}, s{sbase+16}, 6")
    a(f"s_add_u32 s{sbase+16}, s{sbase+16}, {DBG_OFF + kidx*(1<<18)}")
    a(f"v_mov_b32 v{vtmp+1}, 0")
    for i in range(n):
        a(f"v_mov_b32 v{vtmp}, s{sbase+i}")
        a(f"buffer_store_dword v{vtmp}, v{vtmp+1}, s[{srd_ws}:{srd_ws+3}], s{sbase+16} offen offset:{4*i}")


def kernel_head(a, name):
    a.raw(f".globl {name}")
    a.raw(".p2align 8")
    a.raw(f".type {name},@function")
    a.label(name)


def kernel_desc(name, vgpr_total, accum, sgpr):
    return f""".amdhsa_kernel {name}
  .amdhsa_next_free_vgpr {vgpr_total}
  .amdhsa_next_free_sgpr {96 if STAMP else sgpr}
  .amdhsa_accum_offset {accum}
  .amdhsa_group_segment_fixed_size 0
  .amdhsa_kernarg_size 80
  .amdhsa_user_sgpr_count 2
  .amdhsa_user_sgpr_kernarg_segment_ptr 1
  .amdhsa_system_sgpr_workgroup_id_x 1
.end_amdhsa_kernel
"""


WS_BASE = int(os.environ.get('WSBASE', '0')) << 20


def srd(a, d, base, nbytes):
    if nbytes == WS_BYTES and WS_BASE:
        a(f"s_add_u32 s{d}, s{base}, {WS_BASE}")
        a(f"s_addc_u32 s{d+1}, s{base+1}, 0")
    else:
        a(f"s_mov_b32 s{d}, s{base}")
        a(f"s_mov_b32 s{d+1}, s{base+1}")
    a(f"s_mov_b32 s{d+2}, {nbytes}")
    a(f"s_mov_b32 s{d+3}, 0x00020000")


G_WST = 8704
G_ST = G_WST + 8192


def gen_gemm(a, pfx, br, NS, sJ, done_label, stf, kidx, pairx=False):
    SX, SW, SR = 20, 24, 28
    sWave = 19
    a(f"""
    s_mul_i32 s12, s{sJ}, 1093
    s_lshr_b32 s12, s12, 16
    s_mul_i32 s13, s12, 60
    s_sub_u32 s13, s{sJ}, s13
    s_lshr_b32 s17, s13, 2
    s_and_b32 s13, s13, 3
    s_lshl_b32 s12, s12, 2
    s_add_u32 s16, s12, s13
    s_lshr_b32 s14, s16, 3
    s_and_b32 s15, s16, 7
    s_cmp_ge_u32 s{sWave}, 4
    s_cbranch_scc0 {pfx}_COMPUTE
    """)
    vW, vXg = 8, 10
    sWo, sXo, sWl, sXl, sWc, sXc, sOrd = 32, 33, 34, 35, 36, 37, 38
    K1_D = int(os.environ.get('K1D', '2'))
    ORD = []
    for g in range(4):
        o = list(range(10))
        for b in range(10):
            if b % 4 == g and K1_D:
                p = o.index(b)
                o.pop(p)
                o.insert(max(0, p - K1_D), b)
        ORD.append(sum(b << (4 * i) for i, b in enumerate(o)))
    a(f"""
    v_lshrrev_b32 v4, 4, v1
    v_and_b32 v3, 15, v1
    v_mul_u32_u24 v5, {4*3840}, v4
    v_lshl_add_u32 v{vW}, v3, 4, v5
    v_add_u32 v{vW+1}, {3840-1088}, v{vW}
    v_lshrrev_b32 v5, 2, v1
    v_and_b32 v6, 3, v1
    v_xor_b32 v6, v6, v4
    v_mul_u32_u24 v5, 2560, v5
    v_lshl_add_u32 v{vXg}, v6, 4, v5
    v_add_u32 v{vXg+1}, {16*2560-1024}, v{vXg}
    s_and_b32 s3, s{sWave}, 3
    s_lshr_b32 s12, s3, 1
    s_lshl_b32 s12, s12, 4
    s_and_b32 s18, s3, 1
    s_lshl_b32 s18, s18, 1
    s_add_u32 s12, s12, s18
    s_mul_i32 s{sWo}, s12, 3840
    s_lshl_b32 s12, s17, 8
    s_add_u32 s{sWo}, s{sWo}, s12
    s_mul_i32 s{sWl}, s3, {2*1088}
    s_lshl_b32 s{sXl}, s3, 11
    s_add_u32 s{sXl}, s{sXl}, {G_WST}
    s_lshl_b32 s12, s15, 2
    s_add_u32 s12, s12, s3
    s_mul_i32 s{sXo}, s12, {32*2560}
    s_mul_i32 s12, s14, 1280
    s_add_u32 s{sXo}, s{sXo}, s12
    s_add_u32 s3, s13, s17
    s_and_b32 s3, s3, 3
    s_mov_b32 s{sOrd}, {ORD[0] & 0xffffffff}
    s_mov_b32 s{sOrd+1}, {ORD[0] >> 32}
    s_cmp_eq_u32 s3, 1
    s_cselect_b32 s{sOrd}, {ORD[1] & 0xffffffff}, s{sOrd}
    s_cselect_b32 s{sOrd+1}, {ORD[1] >> 32}, s{sOrd+1}
    s_cmp_eq_u32 s3, 2
    s_cselect_b32 s{sOrd}, {ORD[2] & 0xffffffff}, s{sOrd}
    s_cselect_b32 s{sOrd+1}, {ORD[2] >> 32}, s{sOrd+1}
    s_cmp_eq_u32 s3, 3
    s_cselect_b32 s{sOrd}, {ORD[3] & 0xffffffff}, s{sOrd}
    s_cselect_b32 s{sOrd+1}, {ORD[3] >> 32}, s{sOrd+1}
    s_waitcnt lgkmcnt(0)
    """)
    srd(a, SX, 4, 2621440)
    srd(a, SW, 6, 2457600)
    srd(a, SR, 10, WS_BYTES)

    hist = []

    def xload(k):
        a(f"s_add_u32 m0, s{sXl}, {(k % NS) * G_ST}")
        a(f"s_add_u32 s{sXc}, s{sXc}, s{sXo}" if k % 2 == 0 else f"s_add_u32 s{sXc}, s{sXc}, 64")
        for q in range(2):
            a(f"buffer_load_dwordx4 v{vXg+q}, {sr(SX,4)}, s{sXc} offen offset:{1024*q} lds")
        hist.append(("X", k))

    def stage_loads(k):
        if k % 2 == 0:
            j = k // 2
            a(f"s_bfe_u32 s3, s{sOrd + j // 8}, {(4 << 16) | (4 * (j % 8))}")
            a(f"s_mul_i32 s{sWc}, s3, {2*122880}")
            a(f"s_lshl_b32 s{sXc}, s3, 7")
            xload(k)
            if pairx:
                xload(k + 1)
        elif not pairx:
            xload(k)
        a(f"s_add_u32 m0, s{sWl}, {(k % NS) * G_ST}")
        a(f"s_add_u32 s{sWc}, s{sWc}, s{sWo}" if k % 2 == 0 else f"s_add_u32 s{sWc}, s{sWc}, 122880")
        for i in range(2):
            a(f"buffer_load_dwordx4 v{vW+i}, {sr(SW,4)}, s{sWc} offen offset:{1088*i} lds")
        hist.append(("W", k))

    issued = [0]

    def issue(step, nmax):
        n = 0
        while issued[0] < 20 and n < nmax and (issued[0] + (1 if pairx and issued[0] % 2 == 0 else 0)) - NS <= step - 1:
            stage_loads(issued[0])
            issued[0] += 1
            n += 1

    def need(ks):
        a(f"s_waitcnt vmcnt({2 * (len(hist) - 1 - hist.index(('W', ks)))})")
        a("s_barrier")

    RAMP = [int(c) for c in os.environ.get('GRAMP', '3122')]
    issue(-2, RAMP[0])
    stamp(a, 2)
    need(0)
    stamp(a, 3)
    issue(-1, RAMP[1])
    for ks in range(19):
        need(ks + 1)
        if ks % 2 == 1 and ks <= 15: stamp(a, 8 + ks // 2)
        issue(ks, RAMP[ks + 2] if ks + 2 < len(RAMP) else RAMP[-1])
    assert issued[0] == 20
    a("s_barrier")
    stamp(a, 4); stamp(a, 5)
    a(f"s_branch {done_label}")

    a.label(f"{pfx}_COMPUTE")
    ACC = 16
    WFR = 80
    XFR = [96, 112]
    vTr0, vTr, vXr0, vXr, vSt = 8, 9, 10, 12, 14
    sRd, sIt, sSt, sSeg = 32, 34, 36, 35
    a(f"""
    v_bfe_u32 v3, v1, 2, 2
    v_mul_u32_u24 v3, 1088, v3
    v_lshrrev_b32 v4, 5, v1
    v_lshl_add_u32 v3, v4, 9, v3
    v_bfe_u32 v5, v1, 4, 1
    v_lshl_add_u32 v3, v5, 5, v3
    v_and_b32 v5, 3, v1
    v_lshl_add_u32 v3, v5, 3, v3
    s_and_b32 s12, s{sWave}, 1
    s_lshl_b32 s3, s12, 7
    v_add_u32 v{vTr0}, s3, v3
    v_and_b32 v5, 19, v1
    v_bfe_u32 v6, v1, 2, 1
    v_lshl_or_b32 v5, v6, 3, v5
    v_bfe_u32 v6, v1, 3, 1
    v_lshl_or_b32 v5, v6, 2, v5
    v_bfe_u32 v6, v5, 2, 2
    v_xor_b32 v6, v6, v4
    v_lshlrev_b32 v6, 4, v6
    v_lshl_add_u32 v5, v5, 6, v6
    s_lshr_b32 s13, s{sWave}, 1
    s_lshl_b32 s3, s13, 12
    s_add_u32 s3, s3, {G_WST}
    v_add_u32 v{vXr0}, s3, v5
    v_xor_b32 v{vXr0+1}, 32, v{vXr0}
    v_mov_b32 v{vXr}, v{vXr0}
    v_mov_b32 v{vXr+1}, v{vXr0+1}
    v_mov_b32 v{vTr}, v{vTr0}
    s_mov_b32 s{sRd}, {G_ST}
    s_mov_b32 s{sIt}, 0
    s_mul_i32 s{sSeg}, s17, 52
    s_lshr_b32 s{sSeg}, s{sSeg}, 8
    s_mul_i32 s3, s{sSeg}, 5
    s_sub_u32 s17, s17, s3
    s_lshl_b32 s17, s17, 1
    s_add_u32 s17, s17, s12
    s_add_u32 s3, s{sSeg}, {br if isinstance(br, str) else 3*br}
    s_mul_i32 s{sSt}, s3, {SEGB}
    s_lshl_b32 s3, s16, 1
    s_add_u32 s3, s3, s13
    s_mul_i32 s3, s3, {2*TB}
    s_add_u32 s{sSt}, s{sSt}, s3
    s_waitcnt lgkmcnt(0)
    """)
    srd(a, SR, 10, WS_BYTES)
    for i in range(64):
        a(f"v_mov_b32 v{ACC+i}, 0")

    def xreads(fset):
        return [f"ds_read_b128 {vr(XFR[fset] + (mt*2+kk)*4, 4)}, v{vXr+kk} offset:{2048*mt}" for kk in range(2) for mt in range(2)]

    def wreads(nt, kk):
        b = WFR + (nt * 2 + kk) * 4
        return [f"ds_read_b64_tr_b16 {vr(b + 2*s, 2)}, v{vTr} offset:{kk*4352 + s*256 + nt*64}" for s in range(2)]

    stamp(a, 2)
    a("s_barrier")
    stamp(a, 3)
    x0 = xreads(0)
    for l in x0[:2] + wreads(0, 0) + x0[2:] + wreads(1, 0) + wreads(0, 1) + wreads(1, 1):
        a(l)
    a(f"s_cmp_eq_u32 s{sSeg}, 2")
    a(f"s_cbranch_scc1 {pfx}_LOOP_N")
    for ori in ("T", "N"):
        a.raw(".p2align 3")
        a.label(f"{pfx}_LOOP_{ori}")
        for s in range(2):
            a(f"v_add_u32 v{vTr}, s{sRd}, v{vTr0}")
            a(f"v_add_u32 v{vXr}, s{sRd}, v{vXr0}")
            a(f"v_add_u32 v{vXr+1}, s{sRd}, v{vXr0+1}")
            a("s_barrier")
            xr = xreads(1 - s)
            rest = [f"s_add_u32 s{sRd}, s{sRd}, {G_ST}",
                    f"s_cmp_ge_u32 s{sRd}, {NS*G_ST}",
                    f"s_cselect_b32 s{sRd}, 0, s{sRd}"]
            if s == 1:
                rest += [f"s_add_u32 s{sIt}, s{sIt}, 1", f"s_cmp_lt_u32 s{sIt}, 10"]
            idx = 0
            for kk in range(2):
                for nt in range(2):
                    for mt in range(2):
                        acc = vr(ACC + (nt * 2 + mt) * 16, 16)
                        w = vr(WFR + (nt * 2 + kk) * 4, 4)
                        x = vr(XFR[s] + (mt * 2 + kk) * 4, 4)
                        if mt == 0:
                            a(f"s_waitcnt lgkmcnt({8 if kk == 0 else 10})")
                        if ori == "T":
                            a(f"v_mfma_f32_32x32x16_bf16 {acc}, {w}, {x}, {acc}")
                        else:
                            a(f"v_mfma_f32_32x32x16_bf16 {acc}, {x}, {w}, {acc}")
                        if mt == 0:
                            if idx < 2:
                                a(xr[2 * idx]); a(xr[2 * idx + 1])
                            else:
                                for l in (rest[:3] if idx == 2 else rest[3:]):
                                    a(l)
                            idx += 1
                        else:
                            for l in wreads(nt, kk):
                                a(l)
        a(f"s_cbranch_scc1 {pfx}_LOOP_{ori}")
        stamp(a, 4)
        if ori == "T":
            a(f"""
            s_lshl_b32 s3, s17, 12
            s_add_u32 s{sSt}, s{sSt}, s3
            s_add_u32 s{sSt+1}, s{sSt}, {TB}
            s_cmp_eq_u32 s{sSeg}, 0
            s_cselect_b32 s40, {f32(QSCALE)}, 1.0
            s_mov_b32 s41, s40
            v_lshlrev_b32 v{vSt}, 4, v1
            s_nop 7
            """)
        else:
            a(f"""
            s_lshl_b32 s3, s17, 10
            s_add_u32 s{sSt}, s{sSt}, s3
            s_add_u32 s{sSt+1}, s{sSt}, {TB}
            s_add_u32 s{sSt+2}, s{sSt}, 20480
            s_add_u32 s{sSt+3}, s{sSt+1}, 20480
            v_mul_u32_u24 v5, 10240, v4
            v_and_b32 v6, 31, v1
            v_lshl_add_u32 v{vSt}, v6, 4, v5
            s_nop 7
            """)
        for nt in range(2):
            for mt in range(2):
                for jp in range(2):
                    b0 = ACC + (nt * 2 + mt) * 16 + 8 * jp
                    if ori == "T":
                        for i in range(4):
                            a(f"v_pk_mul_f32 {vr(b0+2*i,2)}, {vr(b0+2*i,2)}, s[40:41]")
                    for i in range(4):
                        a(f"v_cvt_pk_bf16_f32 v{b0+i}, v{b0+2*i}, v{b0+2*i+1}")
                    if ori == "T":
                        a("s_nop 1")
                        a(f"v_permlane32_swap_b32 v{b0}, v{b0+2}")
                        a(f"v_permlane32_swap_b32 v{b0+1}, v{b0+3}")
                        a("s_nop 0")
                        a(f"buffer_store_dwordx4 {vr(b0,4)}, v{vSt}, {sr(SR,4)}, s{sSt + mt} offen offset:{nt*2048 + jp*1024}{stf}")
                    else:
                        a(f"buffer_store_dwordx4 {vr(b0,4)}, v{vSt}, {sr(SR,4)}, s{sSt + mt + 2*jp} offen offset:{nt*512}{stf}")
        stamp(a, 5)
        a(f"s_branch {done_label}")


K1_WST = 16896
K1_NSW = 6 if 'k1_nsw6' in EXP else 5
K1_NSX = 3
K1_XB = K1_WST * K1_NSW
K1_LDS = K1_XB + K1_NSX * 16384


STF = '' if 'k1_plain' in EXP else (' nt' if 'k1_nt' in EXP else (' sc1 nt' if 'k1_sc1nt' in EXP else (' sc0 sc1 nt' if 'k1_all' in EXP else ' sc1')))


def gate_rows(a, n, SX, SGW, SR, sRow, sDst, GW, GX, GA, vL4, vZ):
    for i in range(5):
        a(f"buffer_load_dword v{GW+i}, v{vL4}, {sr(SGW,4)}, 0 offen offset:{256*i}")
    for r in range(n):
        for i in range(5):
            a(f"buffer_load_dword v{GX+5*r+i}, v{vL4}, {sr(SX,4)}, s{sRow} offen offset:{2560*r + 256*i}")
    a("s_waitcnt vmcnt(0)")
    for i in range(5):
        for r in range(n):
            a(f"v_dot2_f32_bf16 v{GA+r}, v{GX+5*r+i}, v{GW+i}, {'0' if i == 0 else 'v%d' % (GA+r)}")
    a("s_nop 3")
    for sh in ("row_shr:1 row_mask:0xf bank_mask:0xf bound_ctrl:0", "row_shr:2 row_mask:0xf bank_mask:0xf bound_ctrl:0",
               "row_shr:4 row_mask:0xf bank_mask:0xf bound_ctrl:0", "row_shr:8 row_mask:0xf bank_mask:0xf bound_ctrl:0",
               "row_bcast:15 row_mask:0xa bank_mask:0xf", "row_bcast:31 row_mask:0xc bank_mask:0xf"):
        for r in range(n):
            a(f"v_add_f32_dpp v{GA+r}, v{GA+r}, v{GA+r} {sh}")
        a("s_nop 1")
    for op in (f"v_mul_f32 vR, {f32(-math.log2(math.e))}, vR", "v_exp_f32 vR, vR", "s_nop 0", "v_add_f32 vR, 1.0, vR", "v_rcp_f32 vR, vR"):
        for r in range(n if "vR" in op else 1):
            a(op.replace("vR", f"v{GA+r}"))
    a("s_mov_b32 exec_lo, 0")
    a("s_mov_b32 exec_hi, 0x80000000")
    for r in range(n):
        a(f"buffer_store_dword v{GA+r}, v{vZ}, {sr(SR,4)}, s{sDst} offen offset:{4*r}{' sc1' if 'allsc1' in EXP else ''}")
    a("s_mov_b64 exec, -1")


def gen_k1(a):
    name = "qkv_kernel"
    kernel_head(a, name)
    SX, SW, SR = 20, 24, 28
    sWave = 19
    a("s_cmp_ge_u32 s2, 256")
    a("s_cbranch_scc1 K1_END")
    stamp(a, 0); stamp_rt(a, 1)
    a("""
    s_load_dwordx4 s[4:7], s[0:1], 0
    s_load_dwordx2 s[8:9], s[0:1], 32
    s_load_dwordx2 s[10:11], s[0:1], 72
    s_load_dwordx2 s[54:55], s[0:1], 48
    """)
    if 'noct' not in EXP:
        code_touch(a, 31, 30, 52, "K1_CT0", "attn_kernel", lane="v0")
        a.label("K1_CT0")
    a("""
    v_lshrrev_b32 v2, 6, v0
    v_and_b32 v1, 63, v0
    s_and_b32 s12, s2, 7
    v_readfirstlane_b32 s19, v2
    s_cmp_ge_u32 s2, 240
    s_cbranch_scc1 K1_SIDE
    s_lshr_b32 s13, s2, 3
    s_mul_i32 s12, s12, 30
    s_add_u32 s12, s12, s13
    s_cmp_ge_u32 s12, 120
    s_cselect_b32 s14, 1, 0
    s_cselect_b32 s13, 120, 0
    s_sub_u32 s12, s12, s13
    s_and_b32 s15, s12, 7
    s_lshr_b32 s16, s12, 3
    v_and_b32 v3, 15, v1
    v_lshrrev_b32 v4, 4, v1
    """)
    a(f"""
    s_cmp_ge_u32 s{sWave}, 4
    s_cselect_b32 s12, 1, 0
    s_lshr_b32 s12, s{sWave}, s12
    s_and_b32 s12, s12, 1
    s_lshl_b32 s17, s16, 1
    s_add_u32 s17, s17, s12
    s_cmp_ge_u32 s17, 15
    s_cselect_b32 s18, 1, 0
    s_cselect_b32 s13, 15, 0
    s_sub_u32 s17, s17, s13
    s_movk_i32 s60, 3840
    s_mov_b32 s62, 2621440
    s_movk_i32 s63, 128
    s_cmp_ge_u32 s{sWave}, 4
    s_cbranch_scc0 K1_COMPUTE
    """)
    vW, vXg = 8, 12
    sWo, sXo, sWl, sXl, sWc, sXc, sOrd = 32, 33, 34, 35, 36, 37, 38
    K1_D = int(os.environ.get('K1D', '2'))
    ORD = []
    for g in range(4):
        o = list(range(10))
        for b in range(10):
            if b % 4 == g and K1_D:
                p = o.index(b)
                o.pop(p)
                o.insert(max(0, p - K1_D), b)
        ORD.append(sum(b << (4 * i) for i, b in enumerate(o)))
    a(f"""
    v_lshrrev_b32 v5, 1, v4
    v_and_b32 v6, 1, v4
    v_lshlrev_b32 v5, 4, v5
    v_lshl_add_u32 v5, v6, 2, v5
    v_mul_u32_u24 v5, 3840, v5
    v_lshl_add_u32 v{vW}, v3, 4, v5
    v_add_u32 v{vW+1}, 2784, v{vW}
    v_add_u32 v{vW+2}, {2*2784}, v{vW}
    v_add_u32 v{vW+3}, {3*2784}, v{vW}
    v_lshrrev_b32 v5, 3, v1
    v_and_b32 v6, 7, v1
    v_xor_b32 v6, v6, v5
    v_mul_u32_u24 v5, 2560, v5
    v_lshl_add_u32 v{vXg}, v6, 4, v5
    v_add_u32 v{vXg+1}, 19456, v{vXg}
    v_add_u32 v{vXg+2}, {2*19456}, v{vXg}
    v_add_u32 v{vXg+3}, {3*19456}, v{vXg}
    s_and_b32 s13, s{sWave}, 1
    s_mul_i32 s{sWo}, s13, {8*3840}
    s_lshl_b32 s3, s17, 8
    s_add_u32 s{sWo}, s{sWo}, s3
    s_and_b32 s3, s{sWave}, 3
    s_mul_i32 s{sWl}, s3, {4*1056}
    s_lshl_b32 s{sXl}, s3, 12
    s_add_u32 s{sXl}, s{sXl}, {K1_XB}
    s_lshl_b32 s13, s15, 2
    s_add_u32 s13, s13, s3
    s_mul_i32 s{sXo}, s13, {32*2560}
    s_mul_i32 s13, s14, 1280
    s_add_u32 s{sXo}, s{sXo}, s13
    s_add_u32 s3, s15, s16
    s_and_b32 s3, s3, 3
    s_mov_b32 s{sOrd}, {ORD[0] & 0xffffffff}
    s_mov_b32 s{sOrd+1}, {ORD[0] >> 32}
    s_cmp_eq_u32 s3, 1
    s_cselect_b32 s{sOrd}, {ORD[1] & 0xffffffff}, s{sOrd}
    s_cselect_b32 s{sOrd+1}, {ORD[1] >> 32}, s{sOrd+1}
    s_cmp_eq_u32 s3, 2
    s_cselect_b32 s{sOrd}, {ORD[2] & 0xffffffff}, s{sOrd}
    s_cselect_b32 s{sOrd+1}, {ORD[2] >> 32}, s{sOrd+1}
    s_cmp_eq_u32 s3, 3
    s_cselect_b32 s{sOrd}, {ORD[3] & 0xffffffff}, s{sOrd}
    s_cselect_b32 s{sOrd+1}, {ORD[3] >> 32}, s{sOrd+1}
    s_cmp_eq_u32 s18, 0
    s_waitcnt lgkmcnt(0)
    s_cselect_b64 s[6:7], s[6:7], s[8:9]
    """)
    srd(a, SX, 4, 2621440)
    srd(a, SW, 6, 2457600)
    if STAMP:
        srd(a, SR, 10, WS_BYTES)
    hist = []

    def blk(j, dst):
        r = sOrd + (j // 8)
        a(f"s_bfe_u32 s{dst}, s{r}, {(4 << 16) | (4 * (j % 8))}")

    def wl(k):
        a(f"s_add_u32 m0, s{sWl}, {(k % K1_NSW) * K1_WST}")
        if k % 2 == 0:
            blk(k // 2, sWc)
            a(f"s_mul_i32 s{sWc}, s{sWc}, {2*122880}")
            a(f"s_add_u32 s{sWc}, s{sWc}, s{sWo}")
        else:
            a(f"s_add_u32 s{sWc}, s{sWc}, 122880")
        for i in range(4):
            a(f"buffer_load_dwordx4 v{vW+i}, {sr(SW,4)}, s{sWc} offen offset:{1056*i} lds")
        hist.append(("W", k))

    def xl(j):
        a(f"s_add_u32 m0, s{sXl}, {(j % K1_NSX) * 16384}")
        blk(j, sXc)
        a(f"s_lshl_b32 s{sXc}, s{sXc}, 7")
        a(f"s_add_u32 s{sXc}, s{sXc}, s{sXo}")
        for q in range(4):
            a(f"buffer_load_dwordx4 v{vXg+q}, {sr(SX,4)}, s{sXc} offen offset:{1024*q} lds")
        hist.append(("X", j))

    def need(ks):
        req = [("W", ks), ("X", ks // 2)]
        last = max(hist.index(r) for r in req)
        a(f"s_waitcnt vmcnt({4 * (len(hist) - 1 - last)})")
        a("s_barrier")

    seq = []
    for j in range(10):
        seq += [("X", j), ("W", 2 * j), ("W", 2 * j + 1)]
    pos = [0]

    def free_at(it):
        t, i = it
        if t == "W":
            return i - K1_NSW
        return 2 * (i - K1_NSX) + 1

    def issue(step, nmax):
        n = 0
        while pos[0] < len(seq) and n < nmax and free_at(seq[pos[0]]) <= step:
            t, i = seq[pos[0]]
            (wl if t == "W" else xl)(i)
            pos[0] += 1
            n += 1
    RAMP = [int(c) for c in os.environ.get('K1RAMP', '32222')]
    issue(-2, RAMP[0])
    stamp(a, 2)
    need(0)
    stamp(a, 3)
    issue(-1, RAMP[1])
    for ks in range(19):
        need(ks + 1)
        if ks % 2 == 1 and ks <= 15: stamp(a, 8 + ks // 2)
        issue(ks, RAMP[ks + 2] if ks + 2 < len(RAMP) else RAMP[-1])
    assert pos[0] == len(seq)
    a("s_barrier")
    stamp(a, 4)
    srd(a, SR, 10, WS_BYTES)
    srd(a, 56, 54, 1280)
    a(f"""
    s_lshl_b32 s3, s15, 7
    s_lshl_b32 s12, s16, 3
    s_add_u32 s3, s3, s12
    s_and_b32 s12, s{sWave}, 3
    s_lshl_b32 s12, s12, 1
    s_add_u32 s3, s3, s12
    s_mul_i32 s40, s3, 2560
    s_mul_i32 s12, s14, 1280
    s_add_u32 s40, s40, s12
    s_lshl_b32 s12, s14, 10
    s_add_u32 s3, s3, s12
    s_lshl_b32 s41, s3, 2
    s_add_u32 s41, s41, {G_OFF}
    v_lshlrev_b32 v2, 2, v1
    v_mov_b32 v3, 0
    """)
    gate_rows(a, 2, SX, 56, SR, 40, 41, 32, 40, 52, 2, 3)
    stamp(a, 5); stamp(a, 6); stamp_rt(a, 7)
    stamp_flush(a, 0, SR, sWave, 16, 2)
    a("s_endpgm")

    a.label("K1_COMPUTE")
    TAIL = 'k1_notail' not in EXP and K1_NSW == 5 and K1_NSX == 3
    ACC = 32
    WFR = [0, 32]
    XFR = [64, 80]
    vTr0, vTr, vXr0, vXr, vSt = 8, 9, 10, 12, 14
    sRd, sXr, sIt, sSt, sSeg = 32, 33, 34, 36, 35
    TOUCH = 'k1_touch' in EXP
    ST, sTo, sTs = 44, 42, 43
    TD = 5
    if TOUCH:
        a(f"""
        v_lshrrev_b32 v5, 1, v1
        v_and_b32 v6, 1, v1
        v_lshlrev_b32 v6, 7, v6
        v_mad_u32_u24 v16, v5, s60, v6
        v_mul_u32_u24 v17, 2560, v1
        s_mul_i32 s{sTo}, s15, {8*3840}
        s_lshl_b32 s3, s17, 8
        s_add_u32 s{sTo}, s{sTo}, s3
        s_add_u32 s{sTo}, s{sTo}, {3*64*3840}
        s_lshl_b32 s3, s15, 3
        s_and_b32 s13, s16, 3
        s_lshl_b32 s13, s13, 1
        s_add_u32 s3, s3, s13
        s_and_b32 s13, s{sWave}, 1
        s_add_u32 s3, s3, s13
        s_mul_i32 s3, s3, {16*2560}
        s_mul_i32 s13, s14, 1280
        s_add_u32 s3, s3, s13
        s_add_u32 s3, s3, {3*128}
        s_cmp_eq_u32 s18, 0
        s_waitcnt lgkmcnt(0)
        s_cselect_b64 s[6:7], s[6:7], s[8:9]
        s_cmp_lt_u32 s{sWave}, 2
        s_cselect_b64 s[{ST}:{ST+1}], s[6:7], s[4:5]
        s_cselect_b32 s{ST+2}, 2457600, s62
        s_mov_b32 s{ST+3}, 0x00020000
        s_cselect_b32 s{sTo}, s{sTo}, s3
        s_cselect_b32 s{sTs}, {64*3840}, s63
        s_cselect_b64 s[50:51], -1, 0
        v_cndmask_b32 v16, v17, v16, s[50:51]
        v_cmp_gt_u32 s[50:51], 16, v1
        v_mov_b32 v17, 0x40000000
        s_nop 0
        v_cndmask_b32 v16, v17, v16, s[50:51]
        """)
        for b in range(3, TD):
            a(f"buffer_load_dword v18, v16, {sr(ST,4)}, s{sTo} offen")
            a(f"s_add_u32 s{sTo}, s{sTo}, s{sTs}")
    a(f"""
    v_and_b32 v5, 1, v4
    v_lshrrev_b32 v6, 2, v3
    v_lshl_add_u32 v5, v5, 2, v6
    v_mul_u32_u24 v5, 1056, v5
    v_lshrrev_b32 v6, 1, v4
    v_lshlrev_b32 v6, 9, v6
    v_and_b32 v7, 3, v3
    v_lshlrev_b32 v7, 3, v7
    v_add3_u32 v5, v5, v6, v7
    s_mul_i32 s3, s12, 8448
    v_add_u32 v{vTr0}, s3, v5
    v_and_b32 v5, 3, v3
    v_bfe_u32 v6, v3, 2, 1
    v_lshl_or_b32 v5, v6, 3, v5
    v_bfe_u32 v6, v3, 3, 1
    v_lshl_or_b32 v5, v6, 2, v5
    v_and_b32 v6, 7, v5
    v_xor_b32 v6, v6, v4
    v_lshlrev_b32 v6, 4, v6
    v_lshl_add_u32 v5, v5, 7, v6
    s_lshr_b32 s13, s{sWave}, 1
    s_lshl_b32 s3, s13, 13
    s_add_u32 s3, s3, {K1_XB}
    v_add_u32 v{vXr0}, s3, v5
    v_xor_b32 v{vXr0+1}, 64, v{vXr0}
    v_mov_b32 v{vXr}, v{vXr0}
    v_mov_b32 v{vXr+1}, v{vXr0+1}
    v_mov_b32 v{vTr}, v{vTr0}
    s_mov_b32 s{sRd}, {K1_WST}
    s_mov_b32 s{sXr}, 16384
    s_mov_b32 s{sIt}, 0
    s_mul_i32 s{sSeg}, s17, 52
    s_lshr_b32 s{sSeg}, s{sSeg}, 8
    s_mul_i32 s3, s{sSeg}, 5
    s_sub_u32 s17, s17, s3
    s_mul_i32 s3, s18, 3
    s_add_u32 s3, s3, s{sSeg}
    s_mul_i32 s{sSt}, s3, {SEGB}
    s_lshl_b32 s3, s14, 4
    s_lshl_b32 s16, s15, 1
    s_add_u32 s3, s3, s16
    s_add_u32 s3, s3, s13
    s_mul_i32 s3, s3, {2*TB}
    s_add_u32 s{sSt}, s{sSt}, s3
    s_waitcnt lgkmcnt(0)
    """)
    srd(a, SR, 10, WS_BYTES)
    PFW = int(os.environ.get('K1PFW', '0'))
    if PFW:
        a(f"""
        v_lshlrev_b32 v16, 7, v1
        v_mul_u32_u24 v17, 10240, v4
        v_lshl_add_u32 v17, v3, 7, v17
        s_cmp_eq_u32 s{sSeg}, 2
        s_cselect_b64 s[46:47], -1, 0
        s_cselect_b32 s3, 11, 13
        s_lshl_b32 s3, s17, s3
        s_add_u32 s42, s{sSt}, s3
        s_add_u32 s43, s42, {TB}
        v_cndmask_b32 v16, v16, v17, s[46:47]
        """)
    for i in range(128):
        a(f"v_mov_b32 v{ACC+i}, 0")

    def reads(fset, kk):
        L = [f"ds_read_b128 {ar(XFR[fset]+4*mt,4)}, v{vXr+kk} offset:{2048*mt}" for mt in range(4)]
        for t in range(8):
            for s in range(2):
                L.append(f"ds_read_b64_tr_b16 {ar(WFR[fset]+4*t+2*s,2)}, v{vTr} offset:{s*256 + t*32}")
        return L

    a(f"s_cmp_eq_u32 s{sSeg}, 2")
    a("s_cbranch_scc1 K1_PRE_N")
    for ori in ("T", "N"):
        a.label(f"K1_PRE_{ori}")
        stamp(a, 2)
        a("s_barrier")
        stamp(a, 3)
        for l in reads(0, 0):
            a(l)
        a.raw(".p2align 3")
        a.label(f"K1_LOOP_{ori}")
        for s in range(2):
            fs = s
            rd = reads(1 - fs, 1 - s)
            mf = []
            for t in range(8):
                for mt in range(4):
                    acc = vr(ACC + (t * 4 + mt) * 4, 4)
                    w = ar(WFR[fs] + 4 * t, 4)
                    x = ar(XFR[fs] + 4 * mt, 4)
                    if ori == "T":
                        mf.append(f"v_mfma_f32_16x16x32_bf16 {acc}, {w}, {x}, {acc}")
                    else:
                        mf.append(f"v_mfma_f32_16x16x32_bf16 {acc}, {x}, {w}, {acc}")
            a(f"v_add_u32 v{vTr}, s{sRd}, v{vTr0}")
            rest = [f"s_add_u32 s{sRd}, s{sRd}, {K1_WST}",
                    f"s_cmp_ge_u32 s{sRd}, {K1_XB}",
                    f"s_cselect_b32 s{sRd}, 0, s{sRd}"]
            if s == 0 and PFW:
                rest += [f"s_cmp_eq_u32 s{sIt}, {PFW}",
                         f"s_cselect_b32 s44, s42, 0x40000000",
                         f"s_cselect_b32 s45, s43, 0x40000000",
                         f"buffer_load_dword v18, v16, {sr(SR,4)}, s44 offen",
                         f"buffer_load_dword v19, v16, {sr(SR,4)}, s45 offen"]
            if s == 0 and TOUCH:
                rest += [f"s_cmp_lt_u32 s{sIt}, {10-TD}",
                         f"s_cselect_b32 s{sTo}, s{sTo}, 0x40000000",
                         f"buffer_load_dword v18, v16, {sr(ST,4)}, s{sTo} offen",
                         f"s_add_u32 s{sTo}, s{sTo}, s{sTs}"]
            if s == 1:
                a(f"v_add_u32 v{vXr}, s{sXr}, v{vXr0}")
                rest += [f"v_add_u32 v{vXr+1}, s{sXr}, v{vXr0+1}",
                         f"s_add_u32 s{sXr}, s{sXr}, 16384",
                         f"s_cmp_ge_u32 s{sXr}, {K1_NSX*16384}",
                         f"s_cselect_b32 s{sXr}, 0, s{sXr}",
                         f"s_add_u32 s{sIt}, s{sIt}, 1",
                         f"s_cmp_lt_u32 s{sIt}, {8 if TAIL else 10}"]
            a("s_waitcnt lgkmcnt(0)")
            a("s_barrier")
            fill = rd + rest
            for i in range(32):
                a(mf[i])
                if i < len(fill):
                    a(fill[i])
        a(f"s_cbranch_scc1 K1_LOOP_{ori}")
        stamp(a, 4)
        if ori == "T":
            a(f"""
            s_lshl_b32 s3, s17, 13
            s_add_u32 s{sSt}, s{sSt}, s3
            s_add_u32 s{sSt+1}, s{sSt}, 4096
            s_add_u32 s{sSt+2}, s{sSt}, {TB}
            s_add_u32 s{sSt+3}, s{sSt+1}, {TB}
            s_cmp_eq_u32 s{sSeg}, 0
            s_cselect_b32 s40, {f32(QSCALE)}, 1.0
            s_mov_b32 s41, s40
            v_lshlrev_b32 v{vSt}, 4, v1
            s_nop 3
            """)
        else:
            a(f"""
            s_lshl_b32 s3, s17, 11
            s_add_u32 s{sSt}, s{sSt}, s3
            s_add_u32 s{sSt+2}, s{sSt}, {TB}
            v_mul_u32_u24 v5, 10240, v4
            v_lshl_add_u32 v{vSt}, v3, 4, v5
            s_nop 7
            """)
        def epi(t):
            L = []
            for mp in range(2):
                b0 = ACC + (t * 4 + 2 * mp) * 4
                b1 = b0 + 4
                if ori == "T":
                    for i in range(4):
                        L.append(f"v_pk_mul_f32 {vr(b0+2*i,2)}, {vr(b0+2*i,2)}, s[40:41]")
                L.append(f"v_cvt_pk_bf16_f32 v{b0}, v{b0}, v{b0+1}")
                L.append(f"v_cvt_pk_bf16_f32 v{b0+1}, v{b0+2}, v{b0+3}")
                L.append(f"v_cvt_pk_bf16_f32 v{b0+2}, v{b1}, v{b1+1}")
                L.append(f"v_cvt_pk_bf16_f32 v{b0+3}, v{b1+2}, v{b1+3}")
                L.append("s_nop 1")
                sw = "v_permlane16_swap_b32" if ori == "T" else "v_permlane32_swap_b32"
                L.append(f"{sw} v{b0}, v{b0+2}")
                L.append(f"{sw} v{b0+1}, v{b0+3}")
                L.append("s_nop 0")
                if ori == "T":
                    L.append(f"buffer_store_dwordx4 {vr(b0,4)}, v{vSt}, {sr(SR,4)}, s{sSt + 2*mp + t//4} offen offset:{(t%4)*1024}{STF}")
                else:
                    L.append(f"buffer_store_dwordx4 {vr(b0,4)}, v{vSt}, {sr(SR,4)}, s{sSt + 2*mp} offen offset:{t*256}{STF}")
            return L

        if not TAIL:
            for t in range(8):
                for l in epi(t):
                    a(l)
        else:
            XT = [64, 80, 32, 48]
            a(f"v_add_u32 v{vTr}, {3*K1_WST}, v{vTr0}")
            a("s_waitcnt lgkmcnt(0)")
            for i in range(4):
                a("s_barrier")

            def wt(t):
                L = []
                for k in range(4):
                    base, off = (vTr0, (1 + k) * K1_WST) if k < 2 else (vTr, (k - 2) * K1_WST)
                    for h in range(2):
                        L.append(f"ds_read_b64_tr_b16 {ar((t % 2) * 16 + 4 * k + 2 * h, 2)}, v{base} offset:{off + h*256 + t*32}")
                return L
            for l in wt(0):
                a(l)
            for k, (slot, kk) in enumerate(((2, 1), (0, 0), (0, 1))):
                for mt in range(4):
                    a(f"ds_read_b128 {ar(XT[k+1] + 4*mt, 4)}, v{vXr0+kk} offset:{slot*16384 + 2048*mt}")
            for t in range(9):
                fill = (wt(t + 1) if t + 1 < 8 else ["s_nop 3", "s_nop 3"]) + (epi(t - 1) if t >= 1 else [])
                if t == 8:
                    a("s_nop 7")
                    for l in fill:
                        a(l)
                    break
                n = 0
                for k in range(4):
                    if t == 0:
                        a(f"s_waitcnt lgkmcnt({min(15, 12 - 4*k + min(8, n))})" if k else "s_waitcnt lgkmcnt(12)")
                    elif k == 0:
                        a("s_waitcnt lgkmcnt(0)")
                    for mt in range(4):
                        acc = vr(ACC + (t * 4 + mt) * 4, 4)
                        w = ar((t % 2) * 16 + 4 * k, 4)
                        x = ar(XT[k] + 4 * mt, 4)
                        if ori == "T":
                            a(f"v_mfma_f32_16x16x32_bf16 {acc}, {w}, {x}, {acc}")
                        else:
                            a(f"v_mfma_f32_16x16x32_bf16 {acc}, {x}, {w}, {acc}")
                        for l in fill[n:n + 2]:
                            a(l)
                        n += 2
                for l in fill[n:]:
                    a(l)
        stamp(a, 5)
        if STAMP: a("s_waitcnt vmcnt(0)")
        stamp(a, 6); stamp_rt(a, 7)
        stamp_flush(a, 0, SR, sWave, 8, 2)
        a("s_endpgm")

    a.label("K1_SIDE")
    SGW, SWO = 32, 36
    a(f"""
    s_load_dwordx2 s[46:47], s[0:1], 16
    s_load_dwordx4 s[12:15], s[0:1], 40
    s_sub_u32 s16, s2, 240
    s_lshl_b32 s16, s16, 3
    s_add_u32 s16, s16, s{sWave}
    v_lshlrev_b32 v2, 2, v1
    v_lshlrev_b32 v5, 4, v1
    v_lshrrev_b32 v3, 3, v1
    v_and_b32 v4, 7, v1
    v_mul_u32_u24 v3, 1280, v3
    v_lshl_add_u32 v3, v4, 4, v3
    v_lshrrev_b32 v4, 4, v1
    v_bfe_u32 v6, v1, 2, 2
    v_lshl_add_u32 v4, v4, 3, v6
    v_and_b32 v6, 3, v1
    v_lshlrev_b32 v6, 3, v6
    v_lshl_add_u32 v6, v4, 7, v6
    s_lshl_b32 s40, s{sWave}, 14
    v_add_u32 v6, s40, v6
    v_mov_b32 v4, 0
    s_waitcnt lgkmcnt(0)
    """)
    srd(a, SX, 4, 2621440)
    srd(a, SR, 10, WS_BYTES)
    srd(a, SGW, 14, 1280)
    a(f"""
    v_and_b32 v7, 255, v0
    v_lshlrev_b32 v7, 7, v7
    s_mov_b32 s3, {CNT_OFF}
    v_mov_b32 v24, 0
    v_mov_b32 v25, 0
    v_mov_b32 v26, 0
    v_mov_b32 v27, 0
    buffer_store_dwordx4 v[24:27], v7, {sr(SR,4)}, s3 offen{' sc1' if 'allsc1' in EXP else ''}
    """)
    a(f"s_mov_b32 s{SWO+2}, 819200")
    a(f"s_mov_b32 s{SWO+3}, 0x00020000")
    if 'notlb' not in EXP:
        a("s_load_dwordx2 s[50:51], s[0:1], 56")
        a("v_lshlrev_b32 v29, 16, v0")
        a(f"buffer_load_dword v28, v29, {sr(SR,4)}, 0 offen")
        a("s_waitcnt lgkmcnt(0)")
        srd(a, 56, 50, 2621440)
        a("buffer_load_dword v28, v29, s[56:59], 0 offen")
    for i in range(4):
        a(f"""
        s_add_u32 s41, s16, {128*i}
        s_cmp_ge_u32 s41, 200
        s_cselect_b32 s{SWO}, s12, s46
        s_cselect_b32 s{SWO+1}, s13, s47
        s_cselect_b32 s3, 200, 0
        s_cselect_b32 s{42+i}, {WOF_BR}, 0
        s_add_u32 s{42+i}, s{42+i}, {WOF_OFF}
        s_sub_u32 s3, s41, s3
        s_mul_i32 s17, s3, 6554
        s_lshr_b32 s17, s17, 16
        s_mul_i32 s18, s17, 10
        s_sub_u32 s18, s3, s18
        s_lshl_b32 s3, s17, 10
        s_add_u32 s{42+i}, s{42+i}, s3
        s_mul_i32 s3, s18, {4*20480}
        s_add_u32 s{42+i}, s{42+i}, s3
        s_mul_i32 s17, s17, {32*1280}
        s_lshl_b32 s18, s18, 7
        s_add_u32 s17, s17, s18
        s_cmp_ge_u32 s41, 400
        s_cselect_b32 s{42+i}, 0x7f000000, s{42+i}
        s_cselect_b32 s17, 0x7f000000, s17
        """)
        for q in range(4):
            a(f"s_add_u32 m0, s40, {4096*i + 1024*q}")
            a("s_nop 0")
            a(f"buffer_load_dwordx4 v3, {sr(SWO,4)}, s17 offen lds")
            a(f"s_add_u32 s17, s17, {8*1280}")
    for i in range(4):
        a("s_waitcnt vmcnt(12)")
        for nt in range(4):
            b = 72 + (4 * i + nt) * 4
            a(f"ds_read_b64_tr_b16 {vr(b,2)}, v6 offset:{4096*i + 32*nt}")
            a(f"ds_read_b64_tr_b16 {vr(b+2,2)}, v6 offset:{4096*i + 32*nt + 512}")
        a("s_waitcnt lgkmcnt(0)")
        for nt in range(4):
            b = 72 + (4 * i + nt) * 4
            a(f"buffer_store_dwordx4 {vr(b,4)}, v5, {sr(SR,4)}, s{42+i} offen sc1")
            a(f"s_add_u32 s{42+i}, s{42+i}, 20480")
    a(f"""
    s_lshr_b32 s3, s16, 3
    s_lshl_b32 s3, s3, 7
    s_and_b32 s17, s16, 7
    s_add_u32 s3, s3, s17
    s_add_u32 s3, s3, 120
    s_and_b32 s17, s3, 1023
    s_mul_i32 s17, s17, 2560
    s_lshr_b32 s18, s3, 10
    s_mul_i32 s18, s18, 1280
    s_add_u32 s17, s17, s18
    s_lshl_b32 s18, s3, 2
    s_add_u32 s18, s18, {G_OFF}
    """)
    gate_rows(a, 1, SX, SGW, SR, 17, 18, 8, 16, 22, 2, 4)
    if 'noct' not in EXP:
        code_touch(a, 31, 30, 52, "attn_kernel", "CODE_END", lane="v0")
    if STAMP:
        a("s_waitcnt vmcnt(0)")
        for i in range(2, 7):
            stamp(a, i)
        stamp_rt(a, 7)
        stamp_flush(a, 0, SR, sWave, 8, 2)
    a.label("K1_END")
    a("s_endpgm")
    return kernel_desc(name, 256, 160, 64)


VB = 352
K2_TILE = 1536 + 4 * VB
K2_SLOT = 8 * K2_TILE
K2_R = 3
K2_FLAG = K2_SLOT * K2_R + 256
K2_LDS = 81920
FUSE = True
OST = ' sc1' if 'outsc1' in EXP else (' nt' if 'outnt' in EXP else '')


def code_touch(a, vdst, vaddr, stmp, first, last, lane="v1"):
    lab = f"CT_{len(a.L)}"
    a(f"s_getpc_b64 s[{stmp}:{stmp+1}]")
    a.label(lab)
    a(f"s_add_u32 s{stmp}, s{stmp}, {first}-{lab}")
    a(f"s_addc_u32 s{stmp+1}, s{stmp+1}, 0")
    a(f"v_lshlrev_b32 v{vaddr}, 7, {lane}")
    a(f"v_min_u32 v{vaddr}, {last}-{first}-4, v{vaddr}")
    a(f"global_load_dword v{vdst}, v{vaddr}, s[{stmp}:{stmp+1}]")


def gen_k2(a):
    name = "attn_kernel"
    kernel_head(a, name)
    SWS = 28
    sWave, sHead, sT = 19, 17, 18
    sDma, sM0, sSlot, sC, sRedo = 24, 25, 26, 27, 20
    sTA, sO, sTouch = 21, 22, 23
    sTmp = 36
    vK10, vK20, vLV, vK1, vK2, vV, vO = 2, 3, 4, 5, 6, 7, 15
    vt = 8
    Q1, Q2 = 16, 20
    KF1, KF2 = 24, 28
    vD = 22
    vD2 = 30
    vGK1, vGK2 = 31, 112
    vL16, vO2, vGV = 113, 114, 115
    VF = 32
    P = 40
    NEGM = 48
    SB = [64, 80]
    O = 96
    AKP1, AKP2 = 116, 120
    vGt, vCb, vOne, vHint = 122, 123, 124, 125
    sProg, sHint, sBad = 46, 47, 48
    NV = 128
    a("s_cmp_ge_u32 s2, 512")
    a("s_cbranch_scc1 K2_END")
    stamp(a, 0); stamp_rt(a, 1)
    a("""
    s_load_dwordx2 s[10:11], s[0:1], 72
    v_lshrrev_b32 v8, 6, v0
    v_and_b32 v1, 63, v0
    s_and_b32 s14, s2, 7
    v_readfirstlane_b32 s19, v8
    s_cmp_ge_u32 s2, 256
    s_cbranch_scc1 K2_AROLE
    s_setprio 3
    s_lshr_b32 s15, s2, 3
    s_lshl_b32 s17, s14, 2
    s_lshr_b32 s3, s15, 3
    s_add_u32 s17, s17, s3
    s_and_b32 s9, s15, 7
    s_lshl_b32 s9, s9, 3
    s_add_u32 s18, s9, s19
    """)

    def head_addr():
        a(f"""
        v_and_b32 v8, 31, v1
        v_lshrrev_b32 v9, 5, v1
        v_lshlrev_b32 v{vL16}, 4, v1
        s_and_b32 s4, s{sHead}, 1
        s_mul_i32 s5, s{sHead}, 5
        s_lshr_b32 s5, s5, 1
        s_lshl_b32 s5, s5, 9
        s_lshl_b32 s6, s4, 9
        s_cmp_eq_u32 s4, 0
        s_cselect_b32 s7, 1024, 8
        v_add_u32 v{vK10}, s6, v{vL16}
        v_lshl_add_u32 v{vK20}, v8, 4, s7
        v_add_u32 v{vGK1}, s5, v{vK10}
        v_add_u32 v{vGK2}, s5, v{vK20}
        s_mul_i32 s6, s{sHead}, 320
        s_mul_i32 s{sTA}, s{sT}, {TB}
        """)

    def out_addr(br):
        a(f"""
        s_lshl_b32 s5, s4, 2
        v_add_u32 v12, s5, v8
        v_subrev_u32 v13, 20, v12
        v_cmp_gt_u32 s[{sTmp}:{sTmp+1}], 20, v12
        v_cmp_gt_u32 s[{sTmp+2}:{sTmp+3}], 20, v8
        v_and_b32 v10, 3, v8
        v_cndmask_b32 v12, v13, v12, s[{sTmp}:{sTmp+1}]
        v_cndmask_b32 v12, v8, v12, s[{sTmp+2}:{sTmp+3}]
        v_bfe_u32 v11, v8, 2, 1
        v_lshl_or_b32 v10, v11, 3, v10
        v_bfe_u32 v11, v8, 3, 1
        v_lshl_or_b32 v10, v11, 2, v10
        v_lshrrev_b32 v11, 4, v8
        v_lshl_or_b32 v14, v11, 4, v10
        v_lshlrev_b32 v10, 4, v10
        v_mul_u32_u24 v11, 20480, v11
        s_mul_i32 s3, s{sHead}, 5
        s_add_u32 s3, s3, 1
        s_lshr_b32 s3, s3, 1
        s_lshl_b32 s3, s3, 8
        v_add3_u32 v10, v10, v11, s3
        v_lshl_add_u32 v{vO}, v9, 8, v10
        s_mul_i32 s5, s4, 760
        s_sub_u32 s5, 512, s5
        v_add_u32 v{vO2}, s5, v10
        s_add_u32 s{sO}, s{sTA}, {O_OFF + br * O_BR}
        v_lshlrev_b32 v{vGt}, 2, v14
        s_lshl_b32 s{sTouch}, s{sT}, 7
        s_add_u32 s{sTouch}, s{sTouch}, {G_OFF}
        """)

    def gate_load():
        a(f"buffer_load_dword v{vGt}, v{vGt}, {sr(SWS,4)}, s{sTouch} offen")

    head_addr()
    a(f"""
    s_add_u32 s5, s5, {4*SEGB}
    v_add_u32 v{vD}, s5, v{vL16}
    s_add_u32 s7, s6, {5*SEGB - 1024 - 512}
    v_cmp_le_u32 s[{sTmp}:{sTmp+1}], 54, v1
    v_mov_b32 v12, {10240-VB}
    v_add_u32 v13, s7, v{vL16}
    v_cndmask_b32 v12, 0, v12, s[{sTmp}:{sTmp+1}]
    v_add_u32 v13, v13, v12
    v_cmp_le_u32 s[{sTmp}:{sTmp+1}], 32, v1
    v_add_u32 v11, 32, v1
    v_mul_u32_u24 v11, 47, v11
    v_cndmask_b32 v{vD+1}, v{vD}, v13, s[{sTmp}:{sTmp+1}]
    v_lshrrev_b32 v11, 10, v11
    v_mul_u32_u24 v11, {10240-VB}, v11
    s_add_u32 s7, s6, {5*SEGB - 2048 + 512}
    v_add3_u32 v{vD2}, v11, v{vL16}, s7
    s_add_u32 s8, s{sTA}, {3*SEGB}
    s_waitcnt lgkmcnt(0)
    """)
    srd(a, SWS, 10, WS_BYTES)

    m1 = ((1 << 64) - 1) & ~(3 << 52)
    m2 = ((1 << 54) - 1) & ~(3 << 10) & ~(3 << 32)

    def dma_parts():
        return [[f"s_mov_b32 m0, s{sM0}",
                 f"s_add_u32 s{sM0}, s{sM0}, {K2_SLOT}",
                 f"buffer_load_dwordx4 v{vD}, {sr(SWS,4)}, s{sDma} offen lds"],
                [f"s_mov_b32 exec_hi, 0x{m1 >> 32:08x}",
                 f"buffer_load_dwordx4 v{vD+1}, {sr(SWS,4)}, s{sDma} offen offset:1024 lds",
                 "s_mov_b32 exec_hi, -1"],
                [f"s_mov_b32 exec_lo, 0x{m2 & 0xffffffff:08x}",
                 f"s_mov_b32 exec_hi, 0x{m2 >> 32:08x}",
                 f"buffer_load_dwordx4 v{vD2}, {sr(SWS,4)}, s{sDma} offen offset:2048 lds",
                 "s_mov_b64 exec, -1"],
                [f"s_add_u32 s{sDma}, s{sDma}, {8*TB}",
                 f"s_cmp_ge_u32 s{sDma}, {64*TB}",
                 f"s_cselect_b32 s{sDma}, 0x40000000, s{sDma}"],
                [f"s_cmp_ge_u32 s{sM0}, {K2_SLOT*K2_R}",
                 f"s_cselect_b32 s{sTmp}, {K2_SLOT*K2_R}, 0",
                 f"s_sub_u32 s{sM0}, s{sM0}, s{sTmp}"]]

    def dma_chunk():
        for p in dma_parts():
            for l in p:
                a(l)

    def dma_init():
        a(f"s_mul_i32 s{sDma}, s{sWave}, {TB}")
        a(f"s_mul_i32 s{sM0}, s{sWave}, {K2_TILE}")

    def zero_state():
        for r in range(16):
            a(f"v_mov_b32 v{O+r}, 0")
        for r in range(4):
            a(f"v_mov_b32 v{P+4+r}, 0")
            a(f"v_mov_b32 v{VF+4+r}, 0")
        a(f"""
        v_mov_b32 v{vV}, v{vLV}
        v_mov_b32 v{vK1}, v{vK10}
        v_mov_b32 v{vK2}, v{vK20}
        s_mov_b32 s{sSlot}, {K2_SLOT}
        s_mov_b32 s{sC}, 0
        """)

    dma_init()
    dma_chunk()
    a(f"buffer_load_dwordx4 {vr(Q1,4)}, v{vGK1}, {sr(SWS,4)}, s8 offen")
    a(f"buffer_load_dwordx2 {vr(Q2,2)}, v{vGK2}, {sr(SWS,4)}, s8 offen")
    a(f"""
    s_mov_b32 s{sRedo}, 0
    v_mov_b32 v{VF}, 0x3f803f80
    v_mov_b32 v{VF+1}, 0x3f803f80
    v_mov_b32 v{VF+2}, 0x3f803f80
    v_mov_b32 v{VF+3}, 0x3f803f80
    v_bfe_u32 v11, v1, 2, 2
    v_min_u32 v11, {K2_R-1}, v11
    v_mul_u32_u24 v11, {K2_SLOT}, v11
    v_and_b32 v12, 3, v1
    v_mul_u32_u24 v12, {VB}, v12
    s_mul_i32 s3, s{sWave}, {K2_TILE}
    v_add3_u32 v11, v11, v12, s3
    ds_write_b128 v11, {vr(VF,4)} offset:{1536+320}
    v_mov_b32 v12, 0
    v_mov_b32 v13, 0
    ds_write_b64 v11, v[12:13] offset:{1536+336}
    ds_write_b64 v11, v[12:13] offset:{1536+344}
    v_mov_b32 v11, {K2_FLAG}
    ds_write_b32 v11, v12
    """)
    out_addr(1)
    gate_load()
    a(f"""
    v_mul_u32_u24 v11, {VB}, v9
    v_min_u32 v12, 21, v12
    v_lshl_add_u32 v11, v12, 4, v11
    v_add_u32 v{vLV}, 1536, v11
    s_mov_b32 exec_lo, 0
    v_mov_b32 v{vK20}, {1536+336}
    s_mov_b32 exec_lo, -1
    """)
    dma_chunk()
    zero_state()
    a(f"""
    v_mov_b32 v{vCb}, {CNT_OFF}
    v_mov_b32 v{vOne}, 1
    v_mov_b32 v{AKP1}, -1
    v_mov_b32 v{AKP1+1}, -1
    v_mov_b32 v{AKP1+2}, -1
    v_mov_b32 v{AKP1+3}, -1
    s_lshl_b32 s{sProg}, s2, 7
    s_cmp_eq_u32 s{sWave}, 7
    s_cselect_b32 s{sProg}, s{sProg}, 0x40000000
    s_cselect_b32 s{sHint}, 0, 0x40000000
    s_lshl_b32 s3, s9, 4
    s_add_u32 s{sHint}, s{sHint}, s3
    s_add_u32 s{sHint}, s{sHint}, {CNT_OFF + 4}
    v_lshlrev_b32 v{vHint}, 10, v1
    s_waitcnt vmcnt(3) lgkmcnt(0)
    """)
    stamp(a, 2)
    a("s_barrier")

    def maxtree(regs, dst):
        a(f"v_max3_f32 v{dst}, v{regs[0]}, v{regs[1]}, v{regs[2]}")
        i = 3
        while i + 1 < len(regs):
            a(f"v_max3_f32 v{dst}, v{dst}, v{regs[i]}, v{regs[i+1]}")
            i += 2
        if i < len(regs):
            a(f"v_max_f32 v{dst}, v{dst}, v{regs[i]}")
        a(f"v_mov_b32 v{dst+1}, v{dst}")
        a("s_nop 1")
        a(f"v_permlane32_swap_b32 v{dst}, v{dst+1}")
        a("s_nop 1")
        a(f"v_max_f32 v{dst}, v{dst}, v{dst+1}")

    def store_o(D):
        a(f"""
        v_mov_b32 v{vt}, v{O+8}
        v_mov_b32 v{vt+1}, v{O+8}
        s_nop 1
        v_permlane32_swap_b32 v{vt}, v{vt+1}
        s_nop 1
        v_rcp_f32 v{vt}, v{vt+1}
        s_nop 0
        v_mul_f32 v{vt}, v{vt}, v{vGt}
        """)
        for r in range(12):
            a(f"v_mul_f32 v{O+r}, v{O+r}, v{vt}")
        for i in range(6):
            a(f"v_cvt_pk_bf16_f32 v{D+i}, v{O+2*i}, v{O+2*i+1}")
        a(f"v_permlane32_swap_b32 v{D}, v{D+2}")
        a(f"v_permlane32_swap_b32 v{D+1}, v{D+3}")
        a("s_mov_b32 exec_hi, 0")
        a(f"buffer_store_dwordx2 {vr(D+4,2)}, v{vO2}, {sr(SWS,4)}, s{sO} offen sc1")
        a("s_mov_b32 exec_hi, -1")
        a(f"buffer_store_dwordx4 {vr(D,4)}, v{vO}, {sr(SWS,4)}, s{sO} offen sc1")

    def kreads(tile):
        o = tile * K2_TILE
        return [f"ds_read_b128 {vr(KF1,4)}, v{vK1} offset:{o}",
                f"ds_read_b64 {vr(KF2,2)}, v{vK2} offset:{o}"]

    def vread(tile, j):
        return f"ds_read_b128 {vr(VF+4*j,4)}, v{vV} offset:{tile * K2_TILE + 2*VB*j}"

    def qk(sb, c, k1=KF1, k2=KF2):
        return [f"v_mfma_f32_32x32x16_bf16 {vr(sb,16)}, {vr(k1,4)}, {vr(Q1,4)}, {c}",
                f"v_mfma_f32_32x32x8_bf16 {vr(sb,16)}, {vr(k2,2)}, {vr(Q2,2)}, {vr(sb,16)}"]

    stamp(a, 3)
    for l in kreads(0):
        a(l)
    a(f"""
    s_mov_b32 exec_lo, 0
    v_mov_b32 v{Q2}, 0
    v_mov_b32 v{Q2+1}, 0
    s_mov_b32 exec_lo, -1
    v_sub_f32 v{vGt}, 1.0, v{vGt}
    s_waitcnt lgkmcnt(0)
    """)
    for l in qk(SB[0], "0"):
        a(l)
    a("s_nop 11")
    maxtree([SB[0] + r for r in range(16)], vt)
    for r in range(16):
        a(f"v_sub_f32 v{NEGM+r}, 0, v{vt}")
    a.label("K2_HAVE_M")
    a("s_waitcnt lgkmcnt(0)")
    a("s_nop 0")
    for l in qk(SB[0], vr(NEGM, 16)):
        a(l)
    for l in kreads(1):
        a(l)
    a(vread(0, 0))
    a("s_nop 9")
    stamp(a, 4)
    a.raw(".p2align 3")
    a.label("K2_LOOP")
    HI = int(os.environ.get('K2HI', '7'))

    def hint():
        a(f"""
        s_mov_b32 exec_hi, 0
        buffer_atomic_add v{vOne}, v{vHint}, {sr(SWS,4)}, s{sHint} offen sc1
        s_mov_b32 exec_hi, -1
        """)
    PR = os.environ.get('K2PRIO', '3..2.1.0')
    prio = {i: int(c) for i, c in enumerate(PR) if c != '.'}
    for i in range(8):
        cur, nxt = SB[i % 2], SB[1 - i % 2]
        e = [f"v_exp_f32 v{cur+r}, v{cur+r}" for r in range(16)]
        c = [f"v_cvt_pk_bf16_f32 v{P+j}, v{cur+2*j}, v{cur+2*j+1}" for j in range(8)]
        q = qk(nxt, vr(NEGM, 16))
        pv = [f"v_mfma_f32_32x32x16_bf16 {vr(O,16)}, {vr(VF+4*j,4)}, {vr(P+4*j,4)}, {vr(O,16)}" for j in range(2)]
        kr = kreads((i + 2) % 8)
        dp = [[]] * 5
        if i == 6:
            a("s_waitcnt vmcnt(0)")
            a("s_barrier")
            a(f"v_add_u32 v{vK1}, s{sSlot}, v{vK10}")
            a(f"v_add_u32 v{vK2}, s{sSlot}, v{vK20}")
            dp = dma_parts()
        if (i - 6) % 8 in prio:
            a(f"s_setprio {prio[(i - 6) % 8]}")
        if i == 1:
            a(f"""
            s_cmp_eq_u32 s{sC}, {os.environ.get('K2PC', '6')}
            s_cbranch_scc1 K2_SIG
            s_cmp_eq_u32 s{sC}, 0
            s_cbranch_scc0 K2_NOSIG
            s_cmp_lg_u32 s{sRedo}, 0
            s_cbranch_scc1 K2_NOSIG
            s_mov_b32 exec_hi, 0
            buffer_store_dwordx2 {vr(AKP1,2)}, v{vO2}, {sr(SWS,4)}, s{sO} offen sc1
            s_mov_b32 exec_hi, -1
            buffer_store_dwordx4 {vr(AKP1,4)}, v{vO}, {sr(SWS,4)}, s{sO} offen sc1
            """)
            a.label("K2_SIG")
            a(f"""
            s_mov_b64 exec, 1
            buffer_atomic_add v{vOne}, v{vCb}, {sr(SWS,4)}, s{sProg} offen sc1
            s_mov_b64 exec, -1
            """)
            a.label("K2_NOSIG")

        if i == HI:
            a(f"s_cmp_eq_u32 s{sC}, 7")
            a("s_cbranch_scc0 K2_NOHINT")
            hint()
            a.label("K2_NOHINT")

        def em(L):
            for l in L:
                a(l)
        a(e[0]); a(e[1])
        a(pv[1])
        a(vread(i, 1))
        a(e[2]); em(dp[0]); a(e[3]); a(c[0]); a(e[4]); a(c[1])
        a("s_waitcnt lgkmcnt(1)")
        a(q[0])
        a(e[5]); em(dp[1]); a(e[6]); a(e[7]); a(c[2]); a(e[8]); a(c[3])
        a(q[1])
        em(kr)
        a(e[9]); em(dp[2]); a(e[10]); a(e[11]); a(c[4]); a(e[12]); a(c[5])
        if i == 7:
            a(f"v_add_u32 v{vV}, s{sSlot}, v{vLV}")
        a(pv[0])
        a(vread((i + 1) % 8, 0))
        a(e[13]); em(dp[3]); a(e[14]); em(dp[4]); a(e[15]); a(c[6])
        a("s_waitcnt lgkmcnt(3)")
        a(c[7])
        if i == 7:
            a(f"s_add_u32 s{sSlot}, s{sSlot}, {K2_SLOT}")
            a(f"s_cmp_ge_u32 s{sSlot}, {K2_SLOT*K2_R}")
            a(f"s_cselect_b32 s{sSlot}, 0, s{sSlot}")
    a(f"""
    s_add_u32 s{sC}, s{sC}, 1
    s_cmp_lt_u32 s{sC}, 8
    s_cbranch_scc1 K2_LOOP
    v_mfma_f32_32x32x16_bf16 {vr(O,16)}, {vr(VF+4,4)}, {vr(P+4,4)}, {vr(O,16)}
    """)
    if HI >= 8:
        hint()
    a(f"""
    v_mov_b32 v{vt+3}, {K2_FLAG}
    s_mov_b32 s3, {f32(2.0**100)}
    s_waitcnt lgkmcnt(0)
    s_nop 9
    """)
    stamp(a, 5)
    a(f"v_mov_b32 v{vt+2}, v{O+8}")
    a("s_mov_b32 exec_hi, 0")
    a(f"v_mul_f32 v{vt+2}, 0, v{O+8}")
    for r in range(9, 12):
        a(f"v_fma_f32 v{vt+2}, v{O+r}, 0, v{vt+2}")
    a("s_mov_b32 exec_hi, -1")
    for r in range(8):
        a(f"v_fma_f32 v{vt+2}, v{O+r}, 0, v{vt+2}")
    a(f"v_cmp_nlt_f32 s[{sTmp}:{sTmp+1}], v{vt+2}, s3")
    a(f"""
    s_nop 3
    s_cmp_eq_u32 s{sRedo}, 0
    s_cbranch_scc1 K2_FIRST
    s_cmp_eq_u32 s{sBad}, 0
    s_cbranch_scc1 K2_NOFLAG
    s_branch K2_GOOD
    """)
    a.label("K2_FIRST")
    a(f"""
    s_cmp_eq_u64 s[{sTmp}:{sTmp+1}], 0
    s_cselect_b32 s{sBad}, 0, 1
    s_cbranch_scc1 K2_GOOD
    ds_write_b32 v{vt+3}, v{vOne}
    s_branch K2_NOFLAG
    """)
    a.label("K2_GOOD")
    store_o(P)
    a.label("K2_NOFLAG")
    a(f"""
    s_waitcnt lgkmcnt(0)
    s_barrier
    ds_read_b32 v{vt+2}, v{vt+3}
    s_waitcnt lgkmcnt(0)
    v_readfirstlane_b32 s3, v{vt+2}
    s_nop 3
    s_cmp_gt_u32 s3, s{sRedo}
    s_cbranch_scc1 K2_FALLBACK
    """)
    a.label("K2_DONE")
    if STAMP: a("s_waitcnt vmcnt(0)")
    stamp(a, 6); stamp_rt(a, 7)
    stamp_flush(a, 1, SWS, sWave, 16, 8, shift=3)
    a.label("K2_END")
    a("s_endpgm")

    a.label("K2_FALLBACK")
    a(f"""
    s_mov_b32 s{sRedo}, 1
    s_mov_b32 s3, {4*SEGB}
    v_mov_b32 v{vt+2}, 0xff800000
    s_waitcnt vmcnt(0)
    """)
    dma_init()
    dma_chunk()
    dma_chunk()
    a.label("K2_MAXLOOP")
    a(f"""
    buffer_load_dwordx4 {vr(KF1,4)}, v{vGK1}, {sr(SWS,4)}, s3 offen
    buffer_load_dwordx2 {vr(KF2,2)}, v{vGK2}, {sr(SWS,4)}, s3 offen
    s_waitcnt vmcnt(0)
    """)
    for l in qk(SB[0], "0"):
        a(l)
    a("s_nop 15")
    for r in range(0, 16, 2):
        a(f"v_max3_f32 v{vt+2}, v{vt+2}, v{SB[0]+r}, v{SB[0]+r+1}")
    a(f"""
    s_add_u32 s3, s3, {TB}
    s_cmp_lt_u32 s3, {5*SEGB}
    s_cbranch_scc1 K2_MAXLOOP
    v_mov_b32 v{vt+3}, v{vt+2}
    s_nop 1
    v_permlane32_swap_b32 v{vt+2}, v{vt+3}
    s_nop 1
    v_max_f32 v{vt+2}, v{vt+2}, v{vt+3}
    """)
    for r in range(16):
        a(f"v_sub_f32 v{NEGM+r}, 0, v{vt+2}")
    zero_state()
    a("s_barrier")
    for l in kreads(0):
        a(l)
    a("s_branch K2_HAVE_M")

    a.label("K2_AROLE")
    sMb, sNb, sWb, sOb, sLq, sOut = 50, 51, 52, 53, 54, 55
    SOUT = 56
    a(f"""
    s_load_dwordx2 s[48:49], s[0:1], 56
    s_setprio {os.environ.get('K2APRIO', '1')}
    s_bfe_u32 s15, s2, {(5 << 16) | 3}
    s_lshl_b32 s{sMb}, s14, 2
    s_and_b32 s3, s15, 3
    s_add_u32 s{sMb}, s{sMb}, s3
    s_lshr_b32 s{sNb}, s15, 2
    s_lshl_b32 s{sHead}, s{sNb}, 2
    s_lshr_b32 s3, s{sWave}, 1
    s_add_u32 s{sHead}, s{sHead}, s3
    s_lshl_b32 s{sT}, s{sMb}, 1
    s_and_b32 s3, s{sWave}, 1
    s_add_u32 s{sT}, s{sT}, s3
    """)
    head_addr()
    sPrev, sTAp = 46, 24
    a(f"""
    s_and_b32 s3, s{sT}, 31
    s_cmp_lg_u32 s3, 0
    s_cselect_b32 s3, {TB}, 0
    s_cselect_b64 s[{sPrev}:{sPrev+1}], -1, 0
    s_sub_u32 s{sTAp}, s{sTA}, s3
    v_mov_b32 v10, {f32(-1e30)}
    """)
    AV = [VF, VF + 4, P]
    AC = SB
    for b in AV:
        for i in range(4):
            a(f"v_mov_b32 v{b+i}, 0x3f803f80")

    def lanemask(fn):
        m = 0
        for l in range(64):
            if fn(l):
                m |= 1 << l
        return m
    k = 0
    for r in range(16):
        m = lanemask(lambda l: 0 <= pi5(l % 32) - (16 * (r // 8) + 8 * (l // 32) + r % 8) <= 7)
        sp = sTmp + 2 + 2 * (k % 3); k += 1
        a(f"s_mov_b32 s{sp}, 0x{m & 0xffffffff:08x}")
        a(f"s_mov_b32 s{sp+1}, 0x{m >> 32:08x}")
        a(f"v_cndmask_b32 v{AC[0]+r}, v10, 0, s[{sp}:{sp+1}]")
    for r in range(8, 16):
        m = lanemask(lambda l: pi5(l % 32) + 32 - (16 * (r // 8) + 8 * (l // 32) + r % 8) <= 7)
        sp = sTmp + 2 + 2 * (k % 3); k += 1
        a(f"s_and_b32 s{sp}, s{sPrev}, 0x{m & 0xffffffff:08x}")
        a(f"s_and_b32 s{sp+1}, s{sPrev}, 0x{m >> 32:08x}")
        a(f"v_cndmask_b32 v{AC[1]+r}, v10, 0, s[{sp}:{sp+1}]")
    a("s_waitcnt lgkmcnt(0)")
    srd(a, SWS, 10, WS_BYTES)
    srd(a, SOUT, 48, 2621440)
    sLine = 60
    a(f"s_and_b32 s{sLine}, s2, 255")
    a(f"s_lshl_b32 s{sLine}, s{sLine}, 7")
    a(f"s_add_u32 s{sLine}, s{sLine}, {CNT_OFF}")

    def poll(lab, word, need, sleep, limit):
        a(f"""
        s_movk_i32 s9, {limit}
        v_mov_b32 v10, 0
        """)
        a.label(lab)
        a(f"""
        buffer_load_dword v11, v10, {sr(SWS,4)}, s{sLine} offen offset:{4*word} sc1
        s_waitcnt vmcnt(0)
        v_readfirstlane_b32 s3, v11
        s_sub_u32 s9, s9, 1
        s_nop 2
        s_cmp_ge_u32 s3, {need}
        s_cbranch_scc1 {lab}_OK
        s_sleep {sleep}
        s_cmp_lg_u32 s9, 0
        s_cbranch_scc1 {lab}
        """)
        a.label(lab + "_OK")

    out_addr(0)
    a(f"""
    v_mul_u32_u24 v11, 10240, v9
    v_lshl_add_u32 v11, v12, 4, v11
    v_add_u32 v{vGV}, s6, v11
    """)
    ACC, OF, WF = 16, 36, 76
    vLn, vW, vOut, vOut2, vCn = 2, 3, 4, 5, 6
    a(f"""
    v_mov_b32 v{vLn}, v{vL16}
    s_lshr_b32 s4, s{sWave}, 2
    s_mul_i32 s{sLq}, s4, 40960
    v_add_u32 v{vW}, s{sLq}, v{vL16}
    s_mul_i32 s5, s4, 10240
    s_mul_i32 s{sWb}, s{sNb}, {5*20480}
    s_add_u32 s{sWb}, s{sWb}, s5
    s_add_u32 s{sWb}, s{sWb}, {WOF_OFF}
    s_lshl_b32 s6, s{sMb}, 2
    s_and_b32 s3, s{sWave}, 3
    s_add_u32 s6, s6, s3
    s_mul_i32 s{sOb}, s6, 20480
    s_add_u32 s{sOb}, s{sOb}, s5
    s_add_u32 s{sOb}, s{sOb}, {O_OFF}
    s_mul_i32 s3, s3, 10240
    s_add_u32 s{sLq}, s{sLq}, s3
    v_and_b32 v9, 15, v1
    v_lshrrev_b32 v11, 4, v1
    v_mul_u32_u24 v12, 2560, v9
    v_and_b32 v13, 1, v11
    v_lshlrev_b32 v13, 5, v13
    v_lshrrev_b32 v14, 1, v11
    v_lshlrev_b32 v14, 4, v14
    v_add3_u32 v{vOut}, v12, v13, v14
    v_lshl_add_u32 v{vOut2}, v11, 3, v12
    s_and_b32 s7, s6, 63
    s_mul_i32 s7, s7, {16*2560}
    s_lshr_b32 s6, s6, 6
    s_mul_i32 s6, s6, 1280
    s_add_u32 s{sOut}, s6, s7
    s_mul_i32 s7, s{sNb}, 160
    s_add_u32 s{sOut}, s{sOut}, s7
    """)
    a(f"s_cmp_eq_u32 s{sWave}, 0")
    a("s_cbranch_scc0 K2_SGO")
    poll("K2_SPOLL", 0, 1, 12, 64)
    a.label("K2_SGO")
    a("s_barrier")
    gate_load()
    a(f"""
    s_add_u32 s3, s{sTA}, {SEGB}
    s_add_u32 s4, s{sTAp}, {SEGB}
    """)
    for (r1, r2, so) in ((Q1, Q2, sTA), (KF1, KF2, 3), (AKP1, AKP2, 4)):
        a(f"buffer_load_dwordx4 {vr(r1,4)}, v{vGK1}, {sr(SWS,4)}, s{so} offen")
        a(f"buffer_load_dwordx2 {vr(r2,2)}, v{vGK2}, {sr(SWS,4)}, s{so} offen")
    a(f"""
    s_add_u32 s3, s{sTA}, {2*SEGB}
    s_add_u32 s4, s3, 20480
    s_add_u32 s5, s{sTAp}, {2*SEGB+20480}
    s_mov_b32 exec_lo, 0x000fffff
    s_mov_b32 exec_hi, 0x000fffff
    buffer_load_dwordx4 {vr(AV[0],4)}, v{vGV}, {sr(SWS,4)}, s3 offen
    buffer_load_dwordx4 {vr(AV[1],4)}, v{vGV}, {sr(SWS,4)}, s4 offen
    buffer_load_dwordx4 {vr(AV[2],4)}, v{vGV}, {sr(SWS,4)}, s5 offen
    s_mov_b64 exec, -1
    s_waitcnt vmcnt(3)
    s_mov_b32 exec_lo, 0
    v_mov_b32 v{Q2}, 0
    v_mov_b32 v{Q2+1}, 0
    s_mov_b32 exec_lo, -1
    s_nop 1
    """)
    stamp(a, 2)
    for l in qk(AC[0], vr(AC[0], 16)) + qk(AC[1], vr(AC[1], 16), AKP1, AKP2):
        a(l)
    a("s_nop 11")
    aregs = [AC[0] + r for r in range(16)] + [AC[1] + r for r in range(8, 16)]
    maxtree(aregs, vt)
    for r in aregs:
        a(f"v_sub_f32 v{r}, v{r}, v{vt}")
    for r in aregs:
        a(f"v_exp_f32 v{r}, v{r}")
    a("s_waitcnt vmcnt(0)")
    AP = NEGM
    for i in range(12):
        a(f"v_cvt_pk_bf16_f32 v{AP+i}, v{aregs[2*i]}, v{aregs[2*i+1]}")
    a(f"""
    s_nop 1
    v_mfma_f32_32x32x16_bf16 {vr(O,16)}, {vr(AV[0],4)}, {vr(AP,4)}, 0
    v_mfma_f32_32x32x16_bf16 {vr(O,16)}, {vr(AV[1],4)}, {vr(AP+4,4)}, {vr(O,16)}
    v_mfma_f32_32x32x16_bf16 {vr(O,16)}, {vr(AV[2],4)}, {vr(AP+8,4)}, {vr(O,16)}
    s_nop 11
    """)
    store_o(AKP1)
    a(f"""
    v_lshlrev_b32 v{vCn}, 12, v1
    v_mov_b32 v9, 1
    s_and_b32 s7, s2, 31
    s_lshl_b32 s7, s7, 7
    s_add_u32 s7, s7, {CNT_OFF + 8}
    s_waitcnt vmcnt(0)
    s_barrier
    s_cmp_eq_u32 s{sWave}, 0
    s_cbranch_scc0 K2_PNOSIG
    s_mov_b64 exec, 0xff
    buffer_atomic_add v9, v{vCn}, {sr(SWS,4)}, s7 offen sc1
    s_mov_b64 exec, -1
    """)
    a.label("K2_PNOSIG")
    stamp(a, 3)
    for i in range(20):
        a(f"v_mov_b32 v{ACC+i}, 0")
    a(f"s_mov_b32 s{sC}, 0")
    a.label("K2_PROUND")
    a(f"""
    s_and_b32 s3, s{sWave}, 3
    s_lshl_b32 s3, s3, 11
    s_add_u32 s4, s{sWb}, s3
    """)
    for nt in range(5):
        a(f"s_add_u32 m0, s{sLq}, {1024*nt}")
        a(f"s_add_u32 s4, s4, 20480" if nt else "s_nop 0")
        a(f"buffer_load_dwordx4 v{vLn}, {sr(SWS,4)}, s4 offen lds")
        a(f"s_add_u32 m0, s{sLq}, {1024*nt + 5120 - 1024}")
        a("s_nop 0")
        a(f"buffer_load_dwordx4 v{vLn}, {sr(SWS,4)}, s4 offen offset:1024 lds")
    a(f"s_add_u32 s4, s{sWb}, 8192")
    for nt in range(5):
        if nt:
            a("s_add_u32 s4, s4, 20480")
        a(f"buffer_load_dwordx4 {vr(WF+4*nt,4)}, v{vLn}, {sr(SWS,4)}, s4 offen")
        a(f"buffer_load_dwordx4 {vr(WF+20+4*nt,4)}, v{vLn}, {sr(SWS,4)}, s4 offen offset:1024")
    a(f"""
    s_cmp_eq_u32 s{sWave}, 0
    s_cbranch_scc0 K2_PGO
    s_cmp_lg_u32 s{sC}, 0
    s_cbranch_scc1 K2_PWB
    """)
    poll("K2_POLLA", 2, 8, 12, 8192)
    a("s_branch K2_PGO")
    a.label("K2_PWB")
    poll("K2_POLLE", 0, 2, int(os.environ.get('K2SLEEP2', '48')), 2048)
    if 'p_prio3' in EXP: a("s_setprio 3")
    poll("K2_POLLB", 1, 32, int(os.environ.get('K2SLEEP1', '4')), 16384)
    a.label("K2_PGO")
    a("s_waitcnt vmcnt(0)")
    a("s_barrier")
    if STAMP:
        a("s_memtime s[86:87]")
        a("s_waitcnt lgkmcnt(0)")
        a(f"s_cmp_eq_u32 s{sC}, 0")
        a("s_cselect_b32 s74, s86, s74")
        a("s_cselect_b32 s78, s78, s86")
    ROT = False

    def ksreg(i, dst, mul):
        if ROT:
            a(f"s_add_u32 s{dst}, s{sNb}, {i}")
            a(f"s_and_b32 s{dst}, s{dst}, 7")
            a(f"s_mul_i32 s{dst}, s{dst}, {mul}")
        else:
            a(f"s_mov_b32 s{dst}, {i * mul}")
    iss = [0, 1, 8, 9, 2, 3, 4, 5, 6, 7] if ROT else [8, 9, 0, 1, 2, 3, 4, 5, 6, 7]
    con = [8, 9, 0, 1, 2, 3, 4, 5, 6, 7]
    a(f"s_add_u32 s4, s{sOb}, 8192")
    NB1 = int(os.environ.get('K2NB1', '10'))

    def oload(st):
        if st < 8:
            a(f"s_add_u32 s6, s{sOb}, {1024*st}")
            a(f"buffer_load_dwordx4 {vr(OF+4*st,4)}, v{vLn}, {sr(SWS,4)}, s6 offen sc1")
        else:
            a(f"buffer_load_dwordx4 {vr(OF+4*st,4)}, v{vLn}, {sr(SWS,4)}, s4 offen offset:{(st-8)*1024} sc1")
    for st in con[:NB1]:
        oload(st)
    retry = []
    a("s_mov_b32 s9, 0x10000")
    for i, st in enumerate(con):
        if i == 0 and NB1 < 10:
            a(f"s_waitcnt vmcnt({NB1-1})")
            for st2 in con[NB1:]:
                oload(st2)
        else:
            a(f"s_waitcnt vmcnt({9-i})" + (f" lgkmcnt({5 if i < 9 else 0})" if i >= 2 else ""))
        if STAMP and i in (0, 5):
            a("s_memtime s[86:87]")
            a("s_waitcnt lgkmcnt(0)")
            a(f"s_mov_b32 s{81 if i == 0 else 82}, s86")
        a.label(f"K2_PCHK{i}")
        a(f"v_max3_u32 v8, v{OF+4*st}, v{OF+4*st+1}, v{OF+4*st+2}")
        a(f"v_max_u32 v8, v8, v{OF+4*st+3}")
        a("v_cmp_eq_u32 vcc, -1, v8")
        if i + 2 < 10:
            ksreg(con[i + 2], 3, 5120)
            a(f"v_add_u32 v7, s3, v{vW}")
        a(f"s_cbranch_vccnz K2_PRETRY{i}")
        a.label(f"K2_PCONT{i}")
        retry.append((i, st))
        for nt in range(5):
            d = vr(ACC + 4 * nt, 4)
            a(f"v_mfma_f32_16x16x32_bf16 {d}, {vr(WF + (i % 2) * 20 + 4 * nt, 4)}, {vr(OF+4*st,4)}, {d}")
        if i + 2 < 10:
            for nt in range(5):
                a(f"ds_read_b128 {vr(WF + (i % 2) * 20 + 4 * nt, 4)}, v7 offset:{1024*nt}")
    a(f"""
    s_barrier
    s_cmp_lg_u32 s{sC}, 0
    s_cbranch_scc1 K2_PFIN
    s_mov_b32 s{sC}, 1
    s_add_u32 s{sWb}, s{sWb}, {WOF_BR}
    s_add_u32 s{sOb}, s{sOb}, {O_BR}
    """)
    stamp(a, 5)
    a("s_branch K2_PROUND")
    a.label("K2_PFIN")
    stamp(a, 9)
    if STAMP:
        a("s_sub_u32 s80, 0x10000, s9")
        a("s_add_u32 s80, s80, s70")
    a(f"""
    s_and_b32 s3, s{sWave}, 3
    s_mul_i32 s3, s3, 5120
    v_add_u32 v{vW}, s3, v{vLn}
    s_cmp_lt_u32 s{sWave}, 4
    s_cbranch_scc1 K2_PSUM
    """)
    for nt in range(5):
        a(f"ds_write_b128 v{vW}, {vr(ACC+4*nt,4)} offset:{1024*nt}")
    a("s_waitcnt lgkmcnt(0)")
    a("s_barrier")
    a("s_branch K2_DONE")
    a.label("K2_PSUM")
    a("s_barrier")
    for nt in range(5):
        a(f"ds_read_b128 {vr(OF + 4*nt, 4)}, v{vW} offset:{1024*nt}")
    a("s_waitcnt lgkmcnt(0)")
    for i in range(20):
        a(f"v_add_f32 v{ACC+i}, v{ACC+i}, v{OF+i}")
    for pr in range(2):
        b0 = ACC + pr * 8
        b1 = b0 + 4
        a(f"v_cvt_pk_bf16_f32 v{b0}, v{b0}, v{b0+1}")
        a(f"v_cvt_pk_bf16_f32 v{b0+1}, v{b0+2}, v{b0+3}")
        a(f"v_cvt_pk_bf16_f32 v{b0+2}, v{b1}, v{b1+1}")
        a(f"v_cvt_pk_bf16_f32 v{b0+3}, v{b1+2}, v{b1+3}")
        a("s_nop 1")
        a(f"v_permlane16_swap_b32 v{b0}, v{b0+2}")
        a(f"v_permlane16_swap_b32 v{b0+1}, v{b0+3}")
        a("s_nop 0")
        a(f"buffer_store_dwordx4 {vr(b0,4)}, v{vOut}, {sr(SOUT,4)}, s{sOut} offen offset:{pr*64}{OST}")
    b0 = ACC + 16
    a(f"v_cvt_pk_bf16_f32 v{b0}, v{b0}, v{b0+1}")
    a(f"v_cvt_pk_bf16_f32 v{b0+1}, v{b0+2}, v{b0+3}")
    a(f"buffer_store_dwordx2 {vr(b0,2)}, v{vOut2}, {sr(SOUT,4)}, s{sOut} offen offset:128{OST}")
    a("s_branch K2_DONE")
    for i, st in retry:
        a.label(f"K2_PRETRY{i}")
        a(f"""
        s_sub_u32 s9, s9, 1
        s_cmp_eq_u32 s9, 0
        s_cbranch_scc1 K2_PGIVE{i}
        s_waitcnt vmcnt(0)
        """)
        for st2 in con[i:]:
            a(f"s_add_u32 s5, s{sOb}, {1024*st2}")
            a(f"buffer_load_dwordx4 {vr(OF+4*st2,4)}, v{vLn}, {sr(SWS,4)}, s5 offen sc1")
        a(f"s_waitcnt vmcnt({9-i})")
        a(f"s_branch K2_PCHK{i}")
        a.label(f"K2_PGIVE{i}")
        a("s_mov_b32 s9, 1")
        a(f"s_branch K2_PCONT{i}")
    a.label("CODE_END")
    return kernel_desc(name, NV, NV, 64)


K3_DIST = int(os.environ.get('K3D', '2'))
K3_NS = K3_DIST + 2
K3_LDS = K3_NS * 20480


def gen_k3(a):
    name = "proj_kernel"
    kernel_head(a, name)
    SWS, SOUT = 20, 24
    sWave, sMb, sNb = 16, 17, 18
    sO, sW, sRot, sM0, sOc, sWc = 28, 29, 31, 32, 33, 34
    vL16, vWj, vG, vOut, vOut2 = 2, 3, 7, 8, 9
    ACC = [16, 36]
    OF = 56
    WF = 56 + 16 * (K3_DIST + 1)
    NV = WF + 40
    DIST = K3_DIST
    NO = DIST + 1
    a("s_cmp_ge_u32 s2, 256")
    a("s_cbranch_scc1 K3_END")
    stamp(a, 0); stamp_rt(a, 1)
    a("""
    s_load_dwordx2 s[4:5], s[0:1], 56
    s_load_dwordx2 s[6:7], s[0:1], 72
    v_lshrrev_b32 v9, 6, v0
    v_and_b32 v1, 63, v0
    s_and_b32 s14, s2, 7
    v_readfirstlane_b32 s16, v9
    s_lshr_b32 s15, s2, 3
    s_lshl_b32 s17, s14, 2
    s_and_b32 s3, s15, 3
    s_add_u32 s17, s17, s3
    s_lshr_b32 s18, s15, 2
    v_lshlrev_b32 v2, 4, v1
    """)
    a(f"""
    s_and_b32 s19, s{sNb}, 1
    s_lshr_b32 s{sRot}, s{sNb}, 1
    s_lshl_b32 s3, s{sMb}, 2
    s_add_u32 s3, s3, s{sWave}
    s_mul_i32 s{sO}, s3, 20480
    s_add_u32 s{sO}, s{sO}, {O_OFF}
    s_mul_i32 s{sW}, s{sNb}, {5*20480}
    s_lshl_b32 s14, s{sWave}, 10
    s_add_u32 s{sW}, s{sW}, s14
    s_add_u32 s{sW}, s{sW}, {WOF_OFF}
    s_mov_b32 s{sM0}, s14
    s_mul_i32 s14, s19, {O_BR}
    s_mul_i32 s15, s19, {WOF_BR}
    s_sub_u32 s36, {O_BR}, s14
    s_sub_u32 s37, {WOF_BR}, s15
    s_add_u32 s36, s36, s{sO}
    s_add_u32 s37, s37, s{sW}
    s_add_u32 s{sO}, s{sO}, s14
    s_add_u32 s{sW}, s{sW}, s15
    s_waitcnt lgkmcnt(0)
    """)
    srd(a, SWS, 6, WS_BYTES)
    srd(a, SOUT, 4, 2621440)

    def load_items(g):
        pre = []
        if g == 5:
            pre += [f"s_mov_b32 s{sO}, s36", f"s_mov_b32 s{sW}, s37"]
        pre += [f"s_lshl_b32 s14, s{sRot}, 12",
                f"s_add_u32 s{sOc}, s{sO}, s14",
                f"s_add_u32 s{sWc}, s{sW}, s14",
                f"s_add_u32 s{sRot}, s{sRot}, 1",
                f"s_cmp_ge_u32 s{sRot}, 5",
                f"s_cselect_b32 s{sRot}, 0, s{sRot}"]
        items = []
        for k in range(4):
            items.append([f"buffer_load_dwordx4 {vr(OF + (g % NO) * 16 + 4 * k, 4)}, v{vL16}, {sr(SWS,4)}, s{sOc} offen offset:{1024*k}"])
        for nt in range(5):
            items.append([f"s_add_u32 m0, s{sM0}, {(g % K3_NS) * 20480 + nt * 4096}",
                          f"s_add_u32 s{sWc}, s{sWc}, 20480" if nt else "s_nop 0",
                          f"buffer_load_dwordx4 v{vL16}, {sr(SWS,4)}, s{sWc} offen lds"])
        items[0] = pre + items[0]
        return items

    def loads(g):
        for it in load_items(g):
            for l in it:
                a(l)

    if 'k3_wfirst' in EXP and DIST == 2:
        i0 = load_items(0)
        pre0, o0first = i0[0][:-1], i0[0][-1]
        for l in pre0: a(l)
        a(f"s_mov_b32 s40, s{sOc}")
        for it in i0[4:]:
            for l in it: a(l)
        for l in [o0first] + [it[0] for it in i0[1:4]]:
            a(l)
        i1 = load_items(1)
        for it in i1:
            for l in it: a(l)
    else:
        for g in range(DIST):
            loads(g)
    a(f"""
    v_and_b32 v9, 15, v1
    v_lshlrev_b32 v10, 2, v9
    s_lshl_b32 s14, s3, 6
    s_add_u32 s35, s14, {G_OFF}
    v_lshrrev_b32 v11, 4, v1
    v_mul_u32_u24 v12, 2560, v9
    v_and_b32 v13, 1, v11
    v_lshlrev_b32 v13, 5, v13
    v_lshrrev_b32 v14, 1, v11
    v_lshlrev_b32 v14, 4, v14
    v_add3_u32 v{vOut}, v12, v13, v14
    v_lshl_add_u32 v{vOut2}, v11, 3, v12
    v_add_u32 v{vWj}, 40960, v{vL16}
    v_add_u32 v{vWj+1}, 81920, v{vL16}
    s_and_b32 s14, s3, 63
    s_mul_i32 s14, s14, {16*2560}
    s_lshr_b32 s15, s3, 6
    s_mul_i32 s15, s15, 1280
    s_add_u32 s30, s14, s15
    s_mul_i32 s15, s{sNb}, 160
    s_add_u32 s30, s30, s15
    """)

    def wread(g, k):
        slot = g % K3_NS
        base, off = ((vL16, vWj, vWj + 1)[slot // 2], (slot % 2) * 20480)
        return [f"ds_read_b128 {vr(WF + (k % 2) * 20 + 4 * nt, 4)}, v{base} offset:{off + nt*4096 + k*1024}" for nt in range(5)]

    for g in range(10):
        if g == 0: stamp(a, 2)
        n_after = 9 * (min(10, g + DIST) - 1 - g) + (1 if g == 9 else 0)
        a(f"s_waitcnt vmcnt({n_after})")
        a("s_barrier")
        if g == 0: stamp(a, 3)
        for l in wread(g, 0):
            a(l)
        items = load_items(g + DIST) if g + DIST < 10 else []
        if g == 8:
            items = [[f"buffer_load_dword v{vG}, v10, {sr(SWS,4)}, s35 offen"]]
        if items:
            for l in items.pop(0):
                a(l)
        acc = ACC[g // 5]
        for k in range(4):
            if k < 3:
                for l in wread(g, k + 1):
                    a(l)
                a("s_waitcnt lgkmcnt(5)")
            else:
                a("s_waitcnt lgkmcnt(0)")
            for nt in range(5):
                d = vr(acc + 4 * nt, 4)
                c = "0" if (g % 5 == 0 and k == 0) else d
                a(f"v_mfma_f32_16x16x32_bf16 {d}, {vr(WF + (k % 2) * 20 + 4 * nt, 4)}, {vr(OF + (g % NO) * 16 + 4 * k, 4)}, {c}")
                if nt in (1, 3) and items:
                    for l in items.pop(0):
                        a(l)
        assert not items
    stamp(a, 4)
    a(f"""
    s_waitcnt vmcnt(0)
    v_sub_f32 v10, 1.0, v{vG}
    s_cmp_eq_u32 s19, 0
    s_cselect_b64 s[38:39], -1, 0
    v_cndmask_b32 v11, v10, v{vG}, s[38:39]
    v_cndmask_b32 v10, v{vG}, v10, s[38:39]
    """)
    A0, A1 = ACC
    for i in range(20):
        a(f"v_mul_f32 v{A0+i}, v{A0+i}, v11")
    for i in range(20):
        a(f"v_fma_f32 v{A0+i}, v{A1+i}, v10, v{A0+i}")
    for pr in range(2):
        b0 = A0 + pr * 8
        b1 = b0 + 4
        a(f"v_cvt_pk_bf16_f32 v{b0}, v{b0}, v{b0+1}")
        a(f"v_cvt_pk_bf16_f32 v{b0+1}, v{b0+2}, v{b0+3}")
        a(f"v_cvt_pk_bf16_f32 v{b0+2}, v{b1}, v{b1+1}")
        a(f"v_cvt_pk_bf16_f32 v{b0+3}, v{b1+2}, v{b1+3}")
        a("s_nop 1")
        a(f"v_permlane16_swap_b32 v{b0}, v{b0+2}")
        a(f"v_permlane16_swap_b32 v{b0+1}, v{b0+3}")
        a("s_nop 0")
        a(f"buffer_store_dwordx4 {vr(b0,4)}, v{vOut}, {sr(SOUT,4)}, s30 offen offset:{pr*64}")
    b0 = A0 + 16
    a(f"v_cvt_pk_bf16_f32 v{b0}, v{b0}, v{b0+1}")
    a(f"v_cvt_pk_bf16_f32 v{b0+1}, v{b0+2}, v{b0+3}")
    a(f"buffer_store_dwordx2 {vr(b0,2)}, v{vOut2}, {sr(SOUT,4)}, s30 offen offset:128")
    stamp(a, 5)
    if STAMP: a("s_waitcnt vmcnt(0)")
    stamp(a, 6); stamp_rt(a, 7)
    stamp_flush(a, 2, SWS, sWave, 8, 10)
    a.label("K3_END")
    a("s_endpgm")
    a.label("CODE_END")
    return kernel_desc(name, NV, NV, 44)


def gen_diag(a):
    name = "diag_kernel"
    kernel_head(a, name)
    a("""
    s_cmp_ge_u32 s2, 1
    s_cbranch_scc1 KD_END
    s_load_dwordx4 s[4:7], s[0:1], 64
    s_waitcnt lgkmcnt(0)
    """)
    srd(a, 8, 6, WS_BYTES)
    srd(a, 12, 4, 256)
    a("v_lshlrev_b32 v1, 10, v0")
    a("v_mov_b32 v2, 0")
    for k, waves, idx in ((0, (0, 3), (3, 4)), (1, (0, 15), (3, 5)), (2, (0, 3), (3, 4))):
        for wi, w in enumerate(waves):
            a(f"s_mov_b32 s16, {DBG_OFF + k*(1<<18) + w*64}")
            a("buffer_load_dwordx4 v[4:7], v1, s[8:11], s16 offen")
            a("buffer_load_dwordx4 v[8:11], v1, s[8:11], s16 offen offset:16")
            a("s_waitcnt vmcnt(0)")
            a("v_not_b32 v12, v5")
            a(f"buffer_atomic_umax v12, v2, s[12:15], 0 offen offset:{k*20}")
            a(f"buffer_atomic_umax v11, v2, s[12:15], 0 offen offset:{k*20+4}")
            if wi == 0:
                a(f"v_sub_u32 v12, v{4+idx[0]}, v4")
                a(f"buffer_atomic_add v12, v2, s[12:15], 0 offen offset:{k*20+8}")
                a(f"v_sub_u32 v13, v{4+idx[1]}, v4")
                a(f"buffer_atomic_add v13, v2, s[12:15], 0 offen offset:{k*20+12}")
                a(f"v_sub_u32 v14, v10, v4")
                a(f"buffer_atomic_add v14, v2, s[12:15], 0 offen offset:{k*20+16}")
            a("s_waitcnt vmcnt(0)")
    a.label("KD_END")
    a("s_endpgm")
    return kernel_desc(name, 16, 16, 24)


DOC = """
(generated by a script of the author; all code below is hand-designed assembly)
Launch 1, qkv_kernel: both qkv GEMMs (128 x 256 tiles, 4 MFMA waves + 4 LDS-DMA loader waves; positions in parity-split
  order so that the dilated window becomes a plain window of 8), the gate, Wo re-tiled into MFMA fragments, hand-off words zeroed.
Launch 2, attn_kernel: two workgroups per CU.
  ids < 256: full attention of branch B. Softmax reference value = max over the first 32 keys (a lower bound of the row
    max, folded into the MFMA C operand); after the pass every wave checks that l < 2^100 and that O is finite. If the
    check fails anywhere in the workgroup the true row max is computed over all keys (K2_FALLBACK) and the pass is redone with it.
  ids >= 256: local attention of branch A (true max), then one 64 x 80 tile of the out projection of both branches.
  Hand-offs between workgroups: sc1 stores, counters added with sc1 atomics on a line per consumer, sc1 loads; o_B is
    additionally pre-marked with all-ones words inside the launch and every loaded word is checked. All polls are bounded.
"""


def main():
    global STAMP
    if "--stamp" in sys.argv:
        STAMP = True
        sys.argv.remove("--stamp")
    ref = open(OUT + ".ref").read().split("\n")
    head = [l for l in ref if l.startswith(";") and "@launch" not in l]
    a = Asm()
    for l in head:
        a.raw(l)
    a.raw(f"; @launch kernel=qkv_kernel grid=(256,1,1) block=(512,1,1) lds={K1_LDS}")
    a.raw(f"; @launch kernel=attn_kernel grid=(512,1,1) block=(512,1,1) lds={K2_LDS}")
    if not FUSE:
        a.raw(f"; @launch kernel=proj_kernel grid=(256,1,1) block=(256,1,1) lds={K3_LDS}")
    if 'diag' in EXP:
        a.raw("; @launch kernel=diag_kernel grid=(1,1,1) block=(256,1,1) lds=0")
    for l in DOC.strip("\n").split("\n"):
        a.raw("; " + l)
    a.raw('.amdgcn_target "amdgcn-amd-amdhsa--gfx950"')
    a.raw(".text")
    d = [gen_k1(a), gen_k2(a)] + ([] if FUSE else [gen_k3(a)]) + ([gen_diag(a)] if 'diag' in EXP else [])
    a.raw('.section .rodata,"a"')
    for x in d:
        a.raw(".p2align 6")
        a.raw(x.rstrip("\n"))
    out = sys.argv[1] if len(sys.argv) > 1 else OUT
    open(out, "w").write(a.text())
    print("wrote", out, len(a.L), "lines")


if __name__ == "__main__":
    main()
```
